```python
import torch

def _softmax(x, axis=-1):
    return torch.softmax(x, dim=axis)

def _gelu(x):
    return torch.nn.functional.gelu(x, approximate='tanh')

def _silu(x):
    return torch.nn.functional.silu(x)

def _sigmoid(x):
    return torch.sigmoid(x)

def _layernorm(x, axis=-1, eps=1e-05):
    m = x.mean(dim=axis, keepdim=True)
    v = x.var(dim=axis, keepdim=True, unbiased=False)
    return (x - m) / torch.sqrt(v + eps)

def _scatter_add(tgt, idx, src, axis=0):
    return tgt.clone().index_add_(axis, idx, src)

def _segment_sum(src, seg, n):
    out = torch.zeros((n,) + src.shape[1:], dtype=src.dtype)
    return out.index_add_(0, seg, src)

def _pad(x, pw):
    flat = tuple((v for pair in reversed(pw) for v in pair))
    return torch.nn.functional.pad(x, flat)
kernel_name = 'parallel_sum__grouped_kv_mqa__mixer_gmlp__prompt'

def setup_inputs():

    _w = lambda a: (lambda t: t.to(torch.bfloat16) if t.is_floating_point() else t)(torch.as_tensor(a))

    def _A_setup():
        B, S, D, H = (1, 2048, 640, 32)
        Dh = D // H
        return {'x': _w((lambda *s: torch.randn(*s, dtype=torch.bfloat16) * 0.05)(B, S, D)), 'wq': _w((lambda *s: torch.randn(*s, dtype=torch.bfloat16) * 0.2)(D, H * Dh)), 'wk': _w((lambda *s: torch.randn(*s, dtype=torch.bfloat16) * 0.2)(D, Dh)), 'wv': _w((lambda *s: torch.randn(*s, dtype=torch.bfloat16) * 0.1)(D, Dh)), 'wo': _w((lambda *s: torch.randn(*s, dtype=torch.bfloat16) * 0.1)(H * Dh, D))}
    _A_in = _A_setup()

    def _B_setup():
        B, S, D, F = (1, 2048, 640, 1728)
        Fh = F // 2
        return {'x': _w((lambda *s: torch.randn(*s, dtype=torch.bfloat16) * 0.05)(B, S, D)), 'w_in': _w((lambda *s: torch.randn(*s, dtype=torch.bfloat16) * 0.8)(D, 2 * Fh)), 'w_sp': _w(0.01 * (lambda *s: torch.randn(*s, dtype=torch.bfloat16) * 0.8)(S, S)), 'b_sp': _w(1.0 + 0.01 * (lambda *s: torch.randn(*s, dtype=torch.bfloat16) * 0.1)(S)), 'w_out': _w((lambda *s: torch.randn(*s, dtype=torch.bfloat16) * 0.1)(Fh, D))}
    _B_in = _B_setup()
    return {'A_x': _A_in['x'], 'A_wq': _A_in['wq'], 'A_wk': _A_in['wk'], 'A_wv': _A_in['wv'], 'A_wo': _A_in['wo'], 'B_x': _B_in['x'], 'B_w_in': _B_in['w_in'], 'B_w_sp': _B_in['w_sp'], 'B_b_sp': _B_in['b_sp'], 'B_w_out': _B_in['w_out']}

def reference(A_x, A_wq, A_wk, A_wv, A_wo, B_x, B_w_in, B_w_sp, B_b_sp, B_w_out):

    def _A_ref(x, wq, wk, wv, wo):
        B, S, D = x.shape
        H = 32
        Dh = D // H
        q = (lambda x, *d: x.permute(*d))((x @ wq).reshape(B, S, H, Dh), 0, 2, 1, 3)
        k = x @ wk
        v = x @ wv
        scores = torch.einsum('bhqd,bkd->bhqk', q, k) * Dh ** (-0.5)
        p = _softmax(scores, axis=-1)
        o = torch.einsum('bhqk,bkd->bhqd', p, v)
        return (lambda x, *d: x.permute(*d))(o, 0, 2, 1, 3).reshape(B, S, H * Dh) @ wo

    def _B_ref(x, w_in, w_sp, b_sp, w_out):
        B, S, D = x.shape
        F = w_in.shape[-1]
        Fh = F // 2
        z = _gelu(torch.einsum('bsd,df->bsf', x, w_in))
        z1 = z[..., :Fh].clone()
        z2 = _layernorm(z[..., Fh:], axis=-1)
        g = torch.einsum('ts,bsf->btf', w_sp, z2) + b_sp[None, :, None]
        return torch.einsum('bsf,fd->bsd', z1 * g, w_out)
    x = A_x
    xn = _layernorm(x, axis=-1)
    return x + _A_ref(xn, A_wq, A_wk, A_wv, A_wo) + _B_ref(xn, B_w_in, B_w_sp, B_b_sp, B_w_out)
```

```python
from common import *

CH = 8 * KV_TILE
NSLOT = 4
ATT_LDS = NSLOT * CH
MARGIN = 32.0

def emit_attn(k, sTok, sW, vL, P_WS, sS, vb, lds_base, flag_base):
    sKV, sQ = sS, sS + 4
    sT, sC, sSo, sM0, sDelta, sRet, sMask, sSlot = sS + 8, sS + 11, sS + 12, sS + 13, sS + 14, sS + 15, sS + 16, sS + 17
    sEx = sS + 18
    a = Alloc(vb)
    Sx = [a(16, 4), a(16, 4)]
    O = a(16, 4)
    P = [a(8, 4), a(8, 4)]
    QA = a(4, 4); KA = a(4, 4); V0 = a(4, 4); V1 = a(4, 4)
    QB = a(2, 2); KB = a(2, 2)
    vKa, vKb, vVa, vD, vM, vN, vH, vFa, vFw, vFl = [a() for _ in range(10)]
    vT = a(6, 2)
    k.srd(sKV, P_WS, SZ_KV, WS_KV)
    k.srd(sQ, P_WS, SZ_Q, WS_Q)
    k(f"""v_and_b32 v{vN}, 31, v{vL}
    v_lshrrev_b32 v{vH}, 5, v{vL}
    v_lshlrev_b32 v{vD}, 4, v{vL}
    s_mul_i32 s{sSo}, s{sW}, {KV_TILE}
    s_add_u32 s{sM0}, s{sSo}, {lds_base}
    s_mov_b32 s{sMask}, 0xffff0000
    s_mov_b32 s{sEx}, -1
    s_mov_b32 s{sEx+1}, 0xf""")
    def dma(slot):
        k(f"s_add_u32 m0, s{sM0}, {slot}")
        k("s_nop 0")
        k(f"buffer_load_dwordx4 v{vD}, s[{sKV}:{sKV+3}], s{sSo} offen lds")
        k(f"buffer_load_dwordx4 v{vD}, s[{sKV}:{sKV+3}], s{sSo} offen offset:1024 lds")
        k(f"s_mov_b64 exec, s[{sEx}:{sEx+1}]")
        k(f"buffer_load_dwordx4 v{vD}, s[{sKV}:{sKV+3}], s{sSo} offen offset:2048 lds")
        k(f"s_mov_b64 exec, -1")
        k(f"s_add_u32 s{sSo}, s{sSo}, {CH}")
    dma(0)
    k(f"""s_mul_i32 s{sT}, s{sTok}, 1280
    v_mul_u32_u24 v{vT}, 40, v{vN}
    v_lshl_add_u32 v{vT+1}, v{vH}, 4, v{vT}
    v_lshl_add_u32 v{vT+2}, v{vH}, 2, v{vT}
    buffer_load_dwordx4 {v(QA,4)}, v{vT+1}, s[{sQ}:{sQ+3}], s{sT} offen
    buffer_load_dword v{QB}, v{vT+2}, s[{sQ}:{sQ+3}], s{sT} offen offset:32""")
    dma(CH)
    k(f"""v_add_u32 v{vKa}, {lds_base}, v{vD}
    v_lshlrev_b32 v{vKb}, 2, v{vL}
    v_add_u32 v{vKb}, {lds_base+KV_KB}, v{vKb}
    v_min_u32 v{vVa}, 20, v{vN}
    v_lshlrev_b32 v{vVa}, 4, v{vVa}
    v_mul_u32_u24 v{vT}, 336, v{vH}
    v_add_u32 v{vVa}, v{vVa}, v{vT}
    v_add_u32 v{vVa}, {lds_base+KV_V}, v{vVa}
    v_mov_b32 v{KB+1}, 0x3f803f80
    v_mov_b32 v{QB+1}, 0
    v_and_b32 v{vFa}, 7, v{vL}
    v_lshlrev_b32 v{vFa}, 2, v{vFa}
    v_add_u32 v{vFa}, {flag_base}, v{vFa}
    s_lshl_b32 s{sT}, s{sW}, 2
    s_add_u32 s{sT}, s{sT}, {flag_base}
    v_mov_b32 v{vFw}, s{sT}""")
    for i in range(16):
        k(f"v_mov_b32 v{O+i}, 0")
    for i in range(8):
        k(f"v_mov_b32 v{P[1]+i}, 0")
    for r in (V0, V1):
        for i in range(4):
            k(f"v_mov_b32 v{r+i}, 0")

    def publish(val):
        k(f"v_mov_b32 v{vFl}, {val}")
        k(f"ds_write_b32 v{vFw}, v{vFl}")
    def spin(val):
        l = k.lab("spin"); d = k.lab("spun")
        k.label(l)
        k(f"ds_read_b32 v{vFl}, v{vFa}\ns_waitcnt lgkmcnt(0)\nv_cmp_gt_u32 vcc, {val}, v{vFl}\ns_cbranch_vccz {d}\ns_sleep 1\ns_branch {l}")
        k.label(d)
    def set_m():
        k(f"""v_sub_f32 v{vT}, 0, v{vM}
        v_and_b32 v{vT+1}, s{sMask}, v{vT}
        v_sub_f32 v{vT}, v{vT}, v{vT+1}
        v_and_b32 v{vT+2}, s{sMask}, v{vT}
        v_sub_f32 v{vT}, v{vT}, v{vT+2}
        v_lshrrev_b32 v{vT+1}, 16, v{vT+1}
        v_or_b32 v{vT+1}, v{vT+1}, v{vT+2}
        v_cmp_eq_u32 vcc, 0, v{vH}
        v_lshrrev_b32 v{vT}, 16, v{vT}
        s_nop 0
        v_cndmask_b32 v{QB+1}, v{vT}, v{vT+1}, vcc
        s_nop 1""")
    def qk(S):
        return [f"v_mfma_f32_32x32x16_bf16 {v(S,16)}, {v(KA,4)}, {v(QA,4)}, 0",
                f"v_mfma_f32_32x32x8_bf16 {v(S,16)}, {v(KB,2)}, {v(QB,2)}, {v(S,16)}"]
    def pv(Pp):
        return [f"v_mfma_f32_32x32x16_bf16 {v(O,16)}, {v(V0,4)}, {v(Pp,4)}, {v(O,16)}",
                f"v_mfma_f32_32x32x16_bf16 {v(O,16)}, {v(V1,4)}, {v(Pp+4,4)}, {v(O,16)}"]
    rdK = lambda i: [f"ds_read_b128 {v(KA,4)}, v{vKa} offset:{KV_TILE*i}", f"ds_read_b32 v{KB}, v{vKb} offset:{KV_TILE*i}"]
    rdV = lambda i: [f"ds_read_b128 {v(V0,4)}, v{vVa} offset:{KV_TILE*i}", f"ds_read_b128 {v(V1,4)}, v{vVa} offset:{KV_TILE*i+672}"]
    def maxtree(S, first):
        if first:
            k(f"v_max3_f32 v{vM}, v{S}, v{S+1}, v{S+2}\nv_max_f32 v{vM}, v{vM}, v{S+3}")
            rng = range(4, 16, 2)
        else:
            rng = range(0, 16, 2)
        for i in rng:
            k(f"v_max3_f32 v{vM}, v{vM}, v{S+i}, v{S+i+1}")
    def cross_half_max():
        k(f"v_mov_b32 v{vT}, v{vM}\ns_nop 1\nv_permlane32_swap_b32 v{vM}, v{vT}\nv_max_f32 v{vM}, v{vM}, v{vT}")

    k("s_waitcnt vmcnt(3)")
    publish(1)
    spin(1)
    for t in range(2):
        for x in rdK(t):
            k(x)
        k("s_waitcnt lgkmcnt(0)")
        for x in qk(Sx[t]):
            k(x)
    for x in rdK(0):
        k(x)
    k("s_nop 7\ns_nop 1")
    maxtree(Sx[0], True)
    maxtree(Sx[1], False)
    cross_half_max()
    k(f"v_ceil_f32 v{vM}, v{vM}\nv_add_f32 v{vM}, {fl(MARGIN)}, v{vM}")
    set_m()
    k("s_waitcnt lgkmcnt(0)")
    for x in qk(Sx[0]):
        k(x)
    for x in rdK(1):
        k(x)
    k(f"ds_read_b32 v{vFl}, v{vFa}\nds_read_b32 v{vFl}, v{vFa}")
    k(f"s_mov_b32 s{sC}, 0\ns_mov_b32 s{sSlot}, 0\ns_mov_b64 vcc, 0\ns_nop 4")
    loop = k.lab("aloop"); rare = k.lab("rare")
    rl = [k.lab(f"rin{i}") for i in range(4)]
    rb = [k.lab(f"rback{i}") for i in range(4)]
    k.align(6)
    k.label(loop)
    for i in range(8):
        S, Sn, Pc, Pp = Sx[i % 2], Sx[1 - i % 2], P[i % 2], P[1 - i % 2]
        if i % 2 == 0:
            k(f"s_cbranch_vccnz {rl[i//2]}")
            k.label(rb[i // 2])
        if i == 6:
            l = k.lab("x"); d = k.lab("xd")
            k(f"s_waitcnt lgkmcnt(4)\nv_cmp_gt_u32 vcc, s{sT}, v{vFl}\ns_cbranch_vccz {d}")
            spin(f"s{sT}")
            k.label(d)
            k(f"v_add_u32 v{vKa}, s{sDelta}, v{vKa}\nv_add_u32 v{vKb}, s{sDelta}, v{vKb}")
        e = [f"v_exp_f32 v{S+j}, v{S+j}" for j in range(16)]
        c = [f"v_cvt_pk_bf16_f32 v{Pc+j}, v{S+2*j}, v{S+2*j+1}" for j in range(8)]
        m = qk(Sn) + pv(Pp)
        rk = rdK((i + 2) % 8); rv = rdV(i)
        k("s_waitcnt lgkmcnt(2)" if i != 2 else "s_waitcnt lgkmcnt(3)")
        seq = [m[0], rk[0]] + e[0:4] + [c[0]]
        seq += [m[1], rk[1]] + e[4:6] + [c[1]] + e[6:8] + [c[2]]
        if i % 2 == 1:
            seq += [f"v_cmp_lt_f32 vcc, 1.0, v{O+12}"]
        seq += ["s_waitcnt lgkmcnt(2)"]
        seq += [m[2], rv[0]] + e[8:10] + [c[3]] + e[10:12] + [c[4]]
        seq += [m[3], rv[1]] + e[12:14] + [c[5]] + e[14:16] + [c[6], c[7]]
        if i == 5:
            seq = [f"ds_read_b32 v{vFl}, v{vFa}"] + seq
            seq[seq.index("s_waitcnt lgkmcnt(2)")] = "s_waitcnt lgkmcnt(2)"
        for x in seq:
            k(x)
        if i == 1:
            nod = k.lab("nod")
            k(f"s_add_u32 s{sT}, s{sC}, 2\ns_waitcnt vmcnt(0)")
            publish(f"s{sT}")
            k(f"""s_mov_b32 s{sDelta}, {CH}
            s_cmp_eq_u32 s{sSlot}, {3*CH}
            s_cmov_b32 s{sDelta}, {hx(-3*CH)}
            s_cmp_ge_u32 s{sC}, 6
            s_cbranch_scc1 {nod}
            s_add_u32 s{sT+1}, s{sSlot}, {2*CH}
            s_sub_u32 s{sT+2}, s{sSlot}, {2*CH}
            s_cmp_ge_u32 s{sSlot}, {2*CH}
            s_cselect_b32 s{sT+1}, s{sT+2}, s{sT+1}""")
            dma(f"s{sT+1}")
            k.label(nod)
    k(f"""v_add_u32 v{vVa}, s{sDelta}, v{vVa}
    s_add_u32 s{sSlot}, s{sSlot}, s{sDelta}
    s_add_u32 s{sC}, s{sC}, 1
    s_cmp_lt_u32 s{sC}, 8
    s_cbranch_scc1 {loop}""")
    k("s_waitcnt lgkmcnt(0)")
    for x in pv(P[1]):
        k(x)
    fin = k.lab("afin"); slow = k.lab("slow")
    k("s_nop 7\ns_nop 3")
    k(f"v_mov_b32 v{vT}, 0x207")
    k(f"s_mov_b64 s[{sEx}:{sEx+1}], 0")
    for i in list(range(13)):
        k(f"v_cmp_class_f32 vcc, v{O+i}, v{vT}\ns_or_b64 s[{sEx}:{sEx+1}], s[{sEx}:{sEx+1}], vcc")
    k(f"s_cbranch_scc1 {slow}")
    k.label(fin)
    k.srd(sQ, P_WS, SZ_OUF, WS_OUF)
    k(f"""v_rcp_f32 v{vT+4}, v{O+12}
    v_mul_u32_u24 v{vT}, 5, v{vN}
    v_add_u32 v{vT}, v{vT}, v{vH}
    v_lshrrev_b32 v{vT+1}, 1, v{vT}
    v_and_b32 v{vT}, 1, v{vT}
    v_lshlrev_b32 v{vT}, 3, v{vT}
    v_lshl_add_u32 v{vT}, v{vT+1}, 8, v{vT}
    s_lshr_b32 s{sT}, s{sTok}, 4
    s_mul_i32 s{sT}, s{sT}, {47*1024}
    s_and_b32 s{sT+1}, s{sTok}, 15
    s_lshl_b32 s{sT+1}, s{sT+1}, 4
    s_add_u32 s{sT}, s{sT}, s{sT+1}""")
    for i in range(12):
        k(f"v_mul_f32 v{O+i}, v{O+i}, v{vT+4}")
    for i in range(6):
        k(f"v_cvt_pk_bf16_f32 v{P[0]+i}, v{O+2*i}, v{O+2*i+1}")
    k(f"""buffer_store_dwordx2 {v(P[0],2)}, v{vT}, s[{sQ}:{sQ+3}], s{sT} offen
    buffer_store_dwordx2 {v(P[0]+2,2)}, v{vT}, s[{sQ}:{sQ+3}], s{sT} offen offset:256
    s_mov_b32 exec_hi, 0
    buffer_store_dwordx2 {v(P[0]+4,2)}, v{vT}, s[{sQ}:{sQ+3}], s{sT} offen offset:512
    s_endpgm""")
    for i in range(4):
        k.label(rl[i])
        k(f"s_mov_b32 s{sRet}, {i}\ns_branch {rare}")
    k.label(rare)
    k("s_nop 7\ns_nop 3")
    k(f"""v_frexp_exp_i32_f32 v{vT+3}, v{O+12}
    v_add_u32 v{vT+3}, {int(MARGIN)}, v{vT+3}
    v_max_i32 v{vT+3}, 0, v{vT+3}
    v_cvt_f32_i32 v{vT+4}, v{vT+3}
    v_add_f32 v{vT+5}, v{vM}, v{vT+4}
    v_sub_f32 v{vT+4}, v{vT+5}, v{vM}
    v_mov_b32 v{vM}, v{vT+5}
    v_cvt_i32_f32 v{vT+3}, v{vT+4}
    v_sub_u32 v{vT+3}, 0, v{vT+3}""")
    for i in range(16):
        k(f"v_ldexp_f32 v{O+i}, v{O+i}, v{vT+3}")
    for i in range(16):
        k(f"v_sub_f32 v{Sx[0]+i}, v{Sx[0]+i}, v{vT+4}")
    for i in range(8):
        k(f"""v_lshlrev_b32 v{vT}, 16, v{P[1]+i}
        v_and_b32 v{vT+1}, s{sMask}, v{P[1]+i}
        v_ldexp_f32 v{vT}, v{vT}, v{vT+3}
        v_ldexp_f32 v{vT+1}, v{vT+1}, v{vT+3}
        v_cvt_pk_bf16_f32 v{P[1]+i}, v{vT}, v{vT+1}""")
    set_m()
    for i in range(3):
        k(f"s_cmp_eq_u32 s{sRet}, {i}\ns_cbranch_scc1 {rb[i]}")
    k(f"s_branch {rb[3]}")
    k.label(slow)
    p1 = k.lab("p1"); p2 = k.lab("p2")
    k(f"""v_mov_b32 v{QB+1}, 0
    v_mov_b32 v{vM}, 0xff7fffff
    v_lshlrev_b32 v{vKb}, 2, v{vL}
    v_min_u32 v{vVa}, 20, v{vN}
    v_lshlrev_b32 v{vVa}, 4, v{vVa}
    v_mul_u32_u24 v{vT}, 336, v{vH}
    v_add_u32 v{vVa}, v{vVa}, v{vT}
    s_mov_b32 s{sSo}, 0""")
    def gK():
        k(f"buffer_load_dwordx4 {v(KA,4)}, v{vD}, s[{sKV}:{sKV+3}], s{sSo} offen offset:{KV_KA}")
        k(f"buffer_load_dword v{KB}, v{vKb}, s[{sKV}:{sKV+3}], s{sSo} offen offset:{KV_KB}")
    k.label(p1)
    gK()
    k("s_waitcnt vmcnt(0)")
    for x in qk(Sx[0]):
        k(x)
    k("s_nop 7\ns_nop 3")
    maxtree(Sx[0], False)
    k(f"s_add_u32 s{sSo}, s{sSo}, {KV_TILE}\ns_cmp_lt_u32 s{sSo}, {SZ_KV}\ns_cbranch_scc1 {p1}")
    cross_half_max()
    set_m()
    for i in range(16):
        k(f"v_mov_b32 v{O+i}, 0")
    k(f"s_mov_b32 s{sSo}, 0")
    k.label(p2)
    gK()
    k(f"buffer_load_dwordx4 {v(V0,4)}, v{vVa}, s[{sKV}:{sKV+3}], s{sSo} offen offset:{KV_V}")
    k(f"buffer_load_dwordx4 {v(V1,4)}, v{vVa}, s[{sKV}:{sKV+3}], s{sSo} offen offset:{KV_V+672}")
    k("s_waitcnt vmcnt(0)")
    for x in qk(Sx[0]):
        k(x)
    k("s_nop 7\ns_nop 3")
    for j in range(16):
        k(f"v_exp_f32 v{Sx[0]+j}, v{Sx[0]+j}")
    k("s_nop 0")
    for j in range(8):
        k(f"v_cvt_pk_bf16_f32 v{P[0]+j}, v{Sx[0]+2*j}, v{Sx[0]+2*j+1}")
    k("s_nop 1")
    for x in pv(P[0]):
        k(x)
    k(f"s_add_u32 s{sSo}, s{sSo}, {KV_TILE}\ns_cmp_lt_u32 s{sSo}, {SZ_KV}\ns_cbranch_scc1 {p2}")
    k(f"s_nop 7\ns_nop 3\ns_branch {fin}")
    return a.n


def gen_k2a():
    k = Kern("k2_attn_kernel", 256, 512, ATT_LDS + 256, 104)
    end = k.lab("end")
    k(f"s_cmp_ge_u32 s2, 256\ns_cbranch_scc1 {end}")
    k(f"s_load_dwordx2 s[4:5], s[0:1], {KA_WS}")
    k(f"""v_lshrrev_b32 v2, 6, v0
    v_and_b32 v1, 63, v0
    v_readfirstlane_b32 s3, v2
    v_lshlrev_b32 v2, 2, v1
    v_add_u32 v2, {ATT_LDS}, v2
    v_mov_b32 v3, 0
    ds_write_b32 v2, v3
    s_lshl_b32 s6, s2, 3
    s_add_u32 s6, s6, s3
    s_waitcnt lgkmcnt(0)
    s_barrier""")
    n = emit_attn(k, 6, 3, 1, 4, 8, 4, 0, ATT_LDS)
    assert n <= 104, n
    k.label(end)
    k("s_endpgm")
    return k
```

```python
import sys, importlib
sys.path.insert(0, "gen")
from common import *
import lint, fixalign

HDR = open("parallel_sum__grouped_kv_mqa__mixer_gmlp__prompt.s.ref").read().split("; Override launch")[0]

def build(kerns, path, launches=None):
    t = HDR
    for kk in (launches or kerns):
        t += kk.launch_line() + "\n"
    t += '.amdgcn_target "amdgcn-amd-amdhsa--gfx950"\n.text\n'
    nerr = 0
    for kk in kerns:
        kk.L, unf = fixalign.fix(kk.L)
        body = kk.text()
        e = lint.lint(body)
        for x in e:
            print(kk.name, x)
        nerr += len(e)
        t += body
    t += '.section .rodata,"a"\n'
    for kk in kerns:
        t += kk.desc()
    open(path, "w").write(t)
    print("hazard findings:", nerr, " bytes:", len(t))

if __name__ == "__main__":
    import k1
    ks = [k1.gen_k1()]
    build(ks, sys.argv[1] if len(sys.argv) > 1 else "out.s")
```

```python
import struct

S, D, H, DH, F, FH = 2048, 640, 32, 20, 1728, 864
WS_Q   = 0x0
WS_Z   = 0x280000
WS_KV  = 0x940000
KV_TILE = 2624
KV_KA, KV_KB, KV_V = 0, 1024, 1280
WS_Z2F = 0x970000
WS_OUF = 0xCF0000
WS_WF  = 0x12D0000
WS_FLAG = 0x1500000
SZ_Q, SZ_Z, SZ_KV = 2048*1280, 2048*3456, 64*KV_TILE
SZ_Z2F, SZ_OUF, SZ_WF = 27*128*1024, 128*47*1024, 8*47*5*1024
KA_X, KA_WQ, KA_WK, KA_WV, KA_WO, KA_BX, KA_WIN, KA_WSP, KA_BSP, KA_WOUT, KA_OUT, KA_DBG, KA_WS = [8*i for i in range(13)]

def f2u(x):
    return struct.unpack("<I", struct.pack("<f", x))[0]
def hx(x):
    return "0x%08x" % (x & 0xffffffff)
def fl(x):
    return hx(f2u(x))

def v(i, n=1):
    return f"v{i}" if n == 1 else f"v[{i}:{i+n-1}]"
def s(i, n=1):
    return f"s{i}" if n == 1 else f"s[{i}:{i+n-1}]"

class Kern:
    def __init__(self, name, grid, block, lds, vgprs, sgprs=100):
        self.name, self.grid, self.block, self.lds, self.vgprs, self.sgprs = name, grid, block, lds, vgprs, sgprs
        self.L = []
        self.nlab = 0
    def __call__(self, txt):
        for l in txt.strip("\n").split("\n"):
            l = l.strip()
            if l:
                self.L.append(("" if l.endswith(":") else "    ") + l)
    def c(self, txt):
        self.L.append("    ; " + txt)
    def lab(self, base):
        self.nlab += 1
        return f"L_{self.name[:-7]}_{base}_{self.nlab}"
    def label(self, l):
        self.L.append(l + ":")
    def align(self, n=6):
        self.L.append(f"    .p2align {n}")
    def srd(self, d, base, size, off=0):
        if off:
            self(f"s_add_u32 s{d}, s{base}, {hx(off)}\ns_addc_u32 s{d+1}, s{base+1}, 0")
        else:
            self(f"s_mov_b32 s{d}, s{base}\ns_mov_b32 s{d+1}, s{base+1}")
        self(f"s_mov_b32 s{d+2}, {hx(size)}\ns_mov_b32 s{d+3}, 0x00020000")
    def launch_line(self):
        return f"; @launch kernel={self.name} grid=({self.grid},1,1) block=({self.block},1,1) lds={self.lds}"
    def text(self):
        t = f".globl {self.name}\n.p2align 8\n.type {self.name},@function\n{self.name}:\n"
        return t + "\n".join(self.L) + "\n"
    def desc(self):
        acc = (self.vgprs + 3) // 4 * 4
        if acc > 256:
            acc = 256
        return f""".p2align 6
.amdhsa_kernel {self.name}
  .amdhsa_next_free_vgpr {self.vgprs}
  .amdhsa_next_free_sgpr {self.sgprs}
  .amdhsa_accum_offset {acc}
  .amdhsa_group_segment_fixed_size 0
  .amdhsa_kernarg_size 104
  .amdhsa_user_sgpr_count 2
  .amdhsa_user_sgpr_kernarg_segment_ptr 1
  .amdhsa_system_sgpr_workgroup_id_x 1
  .amdhsa_float_denorm_mode_32 3
.end_amdhsa_kernel
"""

class Alloc:
    def __init__(self, start=0):
        self.n = start
    def __call__(self, cnt=1, align=1):
        if cnt >= 2 and align == 1:
            align = 2
        self.n = (self.n + align - 1) // align * align
        r = self.n
        self.n += cnt
        return r

def interleave(prim, fill):
    out = []
    n, m = len(prim), len(fill)
    k = 0
    for i, p in enumerate(prim):
        out.append(p)
        e = (i + 1) * m // n
        out += fill[k:e]
        k = e
    return out
```

```python
from common import *
import math

QSCALE = math.log2(math.e) / math.sqrt(20.0)
GC0 = -2.0 * math.sqrt(2.0 / math.pi) * math.log2(math.e)
GC1 = GC0 * 0.044715

STG = 36864
NSTG = 4
L_CS = NSTG * STG
L_ST = L_CS + 1024
K1_LDS = L_ST + 1024

def gen_k1(rot=False):
    k = Kern("k1_proj_kernel", 256, 512, K1_LDS, 128)
    sX, sW, sO = 8, 12, 16
    sW2 = 20
    sRB, sCG, sWid, sTW, sST, sCO = 24, 25, 26, 27, 28, 29
    sI, sKS, sM0, sSo, sSoBase, sSoStep, sDelta, sT0, sT1, sOnes, sBuf = 30, 31, 32, 33, 34, 35, 36, 37, 38, 39, 40
    sMask = 41
    P_X, P_WQ, P_WK, P_WV, P_WIN, P_WS = 44, 46, 48, 50, 52, 54
    a = Alloc(1)
    vL, vN, vH = a(), a(), a()
    vD = a(5, 1)
    vXa = a(4, 1); vWa = a(4, 1)
    vT = a(8, 2)
    vOnes = a(2, 2)
    vX = [a(4, 4), a(4, 4)]
    vW = [[a(4, 4) for u in range(3)] for b in range(2)]
    vAcc = [a(16, 4) for u in range(3)]
    vCs = [a(4, 4) for u in range(3)]
    vSx = a(4, 2)
    assert a.n <= 128, a.n

    end = k.lab("end"); kv = k.lab("kv")
    k(f"s_cmp_ge_u32 s2, 256\ns_cbranch_scc1 {end}")
    k(f"s_load_dwordx4 s[{P_X}:{P_X+3}], s[0:1], {KA_X}")
    k(f"s_load_dwordx4 s[{P_WK}:{P_WK+3}], s[0:1], {KA_WK}")
    k(f"s_load_dwordx2 s[{P_WIN}:{P_WIN+1}], s[0:1], {KA_WIN}")
    k(f"s_load_dwordx2 s[{P_WS}:{P_WS+1}], s[0:1], {KA_WS}")
    k(f"""v_lshrrev_b32 v{vT}, 6, v0
    v_and_b32 v{vL}, 63, v0
    v_readfirstlane_b32 s{sWid}, v{vT}
    v_and_b32 v{vN}, 31, v0
    v_bfe_u32 v{vH}, v0, 5, 1
    s_and_b32 s{sT0}, s2, 7
    s_lshr_b32 s{sT1}, s2, 3
    s_lshr_b32 s{sRB}, s{sT0}, 2
    s_lshl_b32 s{sRB}, s{sRB}, 3
    s_and_b32 s{sCG}, s{sT1}, 7
    s_add_u32 s{sRB}, s{sRB}, s{sCG}
    s_and_b32 s{sCG}, s{sT0}, 3
    s_lshl_b32 s{sCG}, s{sCG}, 2
    s_lshr_b32 s{sT1}, s{sT1}, 3
    s_add_u32 s{sCG}, s{sCG}, s{sT1}
    s_and_b32 s{sTW}, s{sWid}, 3
    s_mov_b32 s{sOnes}, 0x3f803f80
    s_mov_b32 s{sMask}, 0xffff0000
    v_mov_b32 v{vOnes}, 0x3f803f80
    v_mov_b32 v{vOnes+1}, 0x3f803f80""")
    if rot:
        k(f"""s_mul_i32 s{sT0}, s2, 6554
        s_lshr_b32 s{sT0}, s{sT0}, 16
        s_mul_i32 s{sT0}, s{sT0}, 10
        s_sub_u32 s{sKS}, s2, s{sT0}""")
    else:
        k(f"s_mov_b32 s{sKS}, 0")
    k(f"""v_lshlrev_b32 v{vT}, 2, v0
    v_and_b32 v{vT}, 0x3ff, v{vT}
    v_add_u32 v{vT}, {L_CS}, v{vT}
    v_mov_b32 v{vT+1}, 0
    ds_write_b32 v{vT}, v{vT+1}""")
    for u in range(3):
        for i in range(16):
            k(f"v_mov_b32 v{vAcc[u]+i}, 0")
        for i in range(4):
            k(f"v_mov_b32 v{vCs[u]+i}, 0")
    for i in range(4):
        k(f"v_mov_b32 v{vSx+i}, 0")
    k(f"""v_bfe_u32 v{vT}, v{vN}, 1, 3
    v_xor_b32 v{vT}, v{vT}, v{vH}
    s_lshl_b32 s{sT0}, s{sTW}, 12
    v_lshlrev_b32 v{vT+1}, 7, v{vN}
    v_add_u32 v{vT+1}, s{sT0}, v{vT+1}""")
    for q in range(4):
        k(f"""s_add_u32 s{sT0}, s{sTW}, {q}
        s_and_b32 s{sT0}, s{sT0}, 3
        s_lshl_b32 s{sT0}, s{sT0}, 1
        v_xor_b32 v{vT+2}, s{sT0}, v{vT}
        v_lshl_add_u32 v{vXa+q}, v{vT+2}, 4, v{vT+1}""")
    def a_dma_addr():
        k(f"v_lshrrev_b32 v{vT}, 3, v{vL}\nv_and_b32 v{vT+1}, 7, v{vL}")
        for p in range(4):
            k(f"""v_add_u32 v{vT+2}, {8*p}, v{vT}
            v_bfe_u32 v{vT+3}, v{vT+2}, 1, 3
            v_xor_b32 v{vT+3}, v{vT+3}, v{vT+1}
            v_mul_u32_u24 v{vT+2}, 1280, v{vT+2}
            v_lshl_add_u32 v{vD+p}, v{vT+3}, 4, v{vT+2}""")
            if p:
                k(f"v_subrev_u32 v{vD+p}, {1024*p}, v{vD+p}")
        k(f"""s_lshl_b32 s{sSoBase}, s{sRB}, 2
        s_add_u32 s{sSoBase}, s{sSoBase}, s{sTW}
        s_mul_i32 s{sSoBase}, s{sSoBase}, {32*1280}
        s_mov_b32 s{sSoStep}, 128""")
    k("s_waitcnt lgkmcnt(0)")
    k.srd(sX, P_X, SZ_Q)
    k(f"s_cmp_eq_u32 s{sCG}, 15\ns_cbranch_scc1 {kv}")

    def issue_dma(role, stgbytes, kvpath):
        k(f"s_mul_i32 s{sSo}, s{sKS}, s{sSoStep}\ns_add_u32 s{sSo}, s{sSo}, s{sSoBase}")
        k(f"s_add_u32 m0, s{sBuf}, s{sM0}")
        k(f"s_add_u32 s{sKS}, s{sKS}, 1")
        if role == 0:
            for p in range(4):
                k(f"buffer_load_dwordx4 v{vD+p}, s[{sX}:{sX+3}], s{sSo} offen offset:{1024*p} lds")
        else:
            for p in range(4):
                k(f"buffer_load_dwordx4 v{vD+p}, s[{sW}:{sW+3}], s{sSo} offen offset:{1024*p} lds")
            k(f"s_add_u32 m0, m0, 4096")
            k(f"s_nop 0")
            k(f"buffer_load_dwordx4 v{vD+4}, s[{sW}:{sW+3}], s{sSo} offen lds")
        k(f"""s_cmp_eq_u32 s{sKS}, 10
        s_cselect_b32 s{sKS}, 0, s{sKS}
        s_add_u32 s{sBuf}, s{sBuf}, {stgbytes}
        s_cmp_eq_u32 s{sBuf}, {NSTG*stgbytes}
        s_cselect_b32 s{sBuf}, 0, s{sBuf}""")

    def reads(q, b, nu, wrow):
        r = [f"ds_read_b128 {v(vX[b],4)}, v{vXa+q}"]
        for u in range(nu):
            r.append(f"ds_read_b64_tr_b16 {v(vW[b][u],2)}, v{vWa+q} offset:{u*64}")
            r.append(f"ds_read_b64_tr_b16 {v(vW[b][u]+2,2)}, v{vWa+q} offset:{u*64+4*wrow}")
        return r

    def xstats(b):
        r = []
        for i in range(4):
            x = vX[b] + i
            t0, t1 = vT + 2*(i % 2), vT + 2*(i % 2) + 1
            r += [f"v_lshlrev_b32 v{t0}, 16, v{x}", f"v_and_b32 v{t1}, s{sMask}, v{x}",
                  f"v_add_f32 v{vSx}, v{vSx}, v{t0}", f"v_add_f32 v{vSx+1}, v{vSx+1}, v{t1}",
                  f"v_fmac_f32 v{vSx+2}, v{t0}, v{t0}", f"v_fmac_f32 v{vSx+3}, v{t1}, v{t1}"]
        return r

    def mainloop(role, nu, stgbytes, wrow, ndma, kvpath=False, swap=False):
        loop = k.lab("loop"); w0 = k.lab("w0"); w1 = k.lab("w1"); nod = k.lab("nod")
        has_dma = ndma > 0
        k(f"s_mov_b32 s{sBuf}, 0\ns_mov_b32 s{sI}, 0")
        if has_dma:
            for st in range(NSTG):
                issue_dma(role, stgbytes, kvpath)
            k(f"s_waitcnt vmcnt({3*ndma}) lgkmcnt(0)")
        else:
            k(f"s_waitcnt vmcnt(0) lgkmcnt(0)")
        k("s_barrier")
        for r in reads(0, 0, nu, wrow):
            k(r)
        k.align(3)
        k.label(loop)
        for q in range(4):
            b = q % 2
            k("s_waitcnt lgkmcnt(0)")
            mf = []
            for u in range(nu):
                A, B = (vX[b], vW[b][u]) if swap else (vW[b][u], vX[b])
                mf.append(f"v_mfma_f32_32x32x16_bf16 {v(vAcc[u],16)}, {v(A,4)}, {v(B,4)}, {v(vAcc[u],16)}")
            small = []
            if q == 0:
                for hh in range(2):
                    for u in range(nu):
                        small.append(f"v_mfma_f32_4x4x4_16b_bf16 {v(vCs[u],4)}, {v(vOnes,2)}, {v(vW[b][u]+2*hh,2)}, {v(vCs[u],4)}")
                    if nu < 3 and hh == 0:
                        small.append(f"s_nop {2-nu}")
            st = xstats(b) if role == 1 else []
            if q < 3:
                rd = reads(q + 1, 1 - b, nu, wrow)
                for x in interleave(mf, rd):
                    k(x)
                for x in small + st:
                    k(x)
            else:
                if has_dma:
                    k(f"s_cmp_lt_u32 s{sI}, 7\ns_cbranch_scc1 {w0}\ns_waitcnt vmcnt(0)\ns_branch {w1}")
                    k.label(w0)
                    k(f"s_waitcnt vmcnt({2*ndma})")
                    k.label(w1)
                k("s_barrier")
                k(f"s_and_b32 s{sT0}, s{sI}, 3\ns_mov_b32 s{sDelta}, {stgbytes}\ns_cmp_eq_u32 s{sT0}, 3\ns_cmov_b32 s{sDelta}, {hx(-3*stgbytes)}")
                k(mf[0])
                for i in range(4):
                    k(f"v_add_u32 v{vXa+i}, s{sDelta}, v{vXa+i}")
                if kvpath:
                    k(f"s_add_u32 s{sT1}, s{sT1}, 1\ns_mov_b32 s{sDelta}, {64*wrow}\ns_cmp_eq_u32 s{sT1}, 10\ns_cmov_b32 s{sDelta}, {hx(-9*64*wrow)}\ns_cselect_b32 s{sT1}, 0, s{sT1}")
                for i in range(4):
                    k(f"v_add_u32 v{vWa+i}, s{sDelta}, v{vWa+i}")
                rd = reads(0, 0, nu, wrow)
                if nu > 1:
                    for x in interleave(mf[1:], rd):
                        k(x)
                else:
                    for x in rd:
                        k(x)
                if has_dma:
                    k(f"s_cmp_ge_u32 s{sI}, 6\ns_cbranch_scc1 {nod}")
                    issue_dma(role, stgbytes, kvpath)
                    k.label(nod)
                for x in st:
                    k(x)
        k(f"s_add_u32 s{sI}, s{sI}, 1\ns_cmp_lt_u32 s{sI}, 10\ns_cbranch_scc1 {loop}")
        k("s_waitcnt lgkmcnt(0)")

    def w_read_addr(base, wrow, role_off):
        k(f"""v_bfe_u32 v{vT}, v{vL}, 2, 2
        v_lshl_add_u32 v{vT}, v{vH}, 3, v{vT}
        v_mul_u32_u24 v{vT}, {wrow}, v{vT}
        v_bfe_u32 v{vT+1}, v{vL}, 4, 1
        v_lshl_add_u32 v{vT}, v{vT+1}, 5, v{vT}
        v_and_b32 v{vT+1}, 3, v{vL}
        v_lshl_add_u32 v{vT}, v{vT+1}, 3, v{vT}""")
        for q in range(4):
            k(f"""s_add_u32 s{sT0}, s{sTW}, {q}
            s_and_b32 s{sT0}, s{sT0}, 3
            s_mul_i32 s{sT0}, s{sT0}, {16*wrow}
            s_add_u32 s{sT0}, s{sT0}, {base+role_off}
            v_add_u32 v{vWa+q}, s{sT0}, v{vT}""")

    def publish_stats_and_cs(role, nu, u0):
        k("s_nop 7\ns_nop 3")
        if role == 1:
            k(f"""v_add_f32 v{vSx}, v{vSx}, v{vSx+1}
            v_add_f32 v{vSx+2}, v{vSx+2}, v{vSx+3}
            v_mov_b32 v{vSx+1}, v{vSx}
            v_mov_b32 v{vSx+3}, v{vSx+2}
            s_nop 1
            v_permlane32_swap_b32 v{vSx}, v{vSx+1}
            v_permlane32_swap_b32 v{vSx+2}, v{vSx+3}
            v_add_f32 v{vSx}, v{vSx}, v{vSx+1}
            v_add_f32 v{vSx+2}, v{vSx+2}, v{vSx+3}
            v_mul_f32 v{vSx}, {fl(1.0/640)}, v{vSx}
            v_mul_f32 v{vSx+2}, {fl(1.0/640)}, v{vSx+2}
            v_fma_f32 v{vSx+2}, -v{vSx}, v{vSx}, v{vSx+2}
            v_max_f32 v{vSx+2}, 0, v{vSx+2}
            v_add_f32 v{vSx+2}, {fl(1e-5)}, v{vSx+2}
            v_rsq_f32 v{vSx+1}, v{vSx+2}
            s_lshl_b32 s{sT0}, s{sTW}, 8
            s_add_u32 s{sT0}, s{sT0}, {L_ST}
            v_lshl_add_u32 v{vT}, v{vN}, 3, s{sT0}
            ds_write_b64 v{vT}, {v(vSx,2)}""")
        k(f"v_lshlrev_b32 v{vT+1}, 2, v{vN}\nv_add_u32 v{vT+1}, {L_CS}, v{vT+1}")
        for u in range(nu):
            k(f"ds_add_f32 v{vT+1}, v{vCs[u]} offset:{(u0+u)*128}")
        k("s_waitcnt lgkmcnt(0)\ns_barrier")

    isw = k.lab("isw"); wdone = k.lab("wdone"); role1 = k.lab("role1")
    k(f"s_cmp_ge_u32 s{sCG}, 4\ns_cbranch_scc1 {isw}")
    k.srd(sW, P_WQ, 640*1280)
    k.srd(sO, P_WS, SZ_Q, WS_Q)
    k(f"s_mov_b32 s{sST}, 1280\ns_mul_i32 s{sCO}, s{sCG}, 320\ns_branch {wdone}")
    k.label(isw)
    k.srd(sW, P_WIN, 640*3456)
    k.srd(sO, P_WS, SZ_Z, WS_Z)
    k(f"s_mov_b32 s{sST}, 3456\ns_mul_i32 s{sCO}, s{sCG}, 320\ns_sub_u32 s{sCO}, s{sCO}, 1280")
    k.label(wdone)
    k(f"s_cmp_ge_u32 s{sWid}, 4\ns_cbranch_scc1 {role1}")

    def epilogue_main(role, nu):
        u0 = 3 * role
        vMu, vR = vSx, vSx + 1
        vA, vB, vRi = vT, vT + 2, vT + 4
        vOut = vT + 6
        cs = [vW[0][0], vW[0][1], vW[0][2], vW[1][0]]
        tmp = vX[0]
        assert vX[1] == vX[0] + 4
        pk = vW[1][1]
        assert vW[1][2] == vW[1][1] + 4
        isq = k.lab("isq"); fin = k.lab("fin")
        k(f"""s_lshl_b32 s{sT0}, s{sTW}, 8
        s_add_u32 s{sT0}, s{sT0}, {L_ST}
        v_lshl_add_u32 v{vT}, v{vN}, 3, s{sT0}
        ds_read_b64 {v(vMu,2)}, v{vT}
        v_lshlrev_b32 v{vD}, 4, v{vH}
        v_add_u32 v{vD}, {L_CS + u0*128}, v{vD}
        s_lshl_b32 s{sT0}, s{sRB}, 7
        s_lshl_b32 s{sT1}, s{sTW}, 5
        s_add_u32 s{sT0}, s{sT0}, s{sT1}
        v_add_u32 v{vOut}, s{sT0}, v{vN}
        v_mul_lo_u32 v{vOut}, v{vOut}, s{sST}
        s_add_u32 s{sT0}, s{sCO}, {u0*64}
        v_lshl_add_u32 v{vOut+1}, v{vH}, 4, s{sT0}
        v_add_u32 v{vOut}, v{vOut}, v{vOut+1}""")
        def store_unit(u):
            k("s_nop 0")
            for jp in range(2):
                b0 = pk + 4*jp
                k(f"v_permlane32_swap_b32 v{b0}, v{b0+2}\nv_permlane32_swap_b32 v{b0+1}, v{b0+3}")
            for jp in range(2):
                k(f"buffer_store_dwordx4 {v(pk+4*jp,4)}, v{vOut}, s[{sO}:{sO+3}], 0 offen offset:{u*64+jp*32}")
        def load_cs(u):
            for j in range(4):
                k(f"ds_read_b128 {v(cs[j],4)}, v{vD} offset:{u*128+j*32}")
        load_cs(0)
        k(f"s_cmp_lt_u32 s{sCG}, 4\ns_cbranch_scc1 {isq}")
        k(f"""s_waitcnt lgkmcnt(4)
        v_mul_f32 v{vA}, {fl(GC0)}, v{vR}
        v_mul_f32 v{vB}, v{vR}, v{vR}
        v_rcp_f32 v{vRi}, v{vR}
        v_mul_f32 v{vB}, v{vB}, v{vA}
        v_mul_f32 v{vB}, {fl(0.044715)}, v{vB}""")
        for u in range(nu):
            skip = None
            if role == 1 and u == 1:
                skip = fin
                k(f"s_cmp_eq_u32 s{sCG}, 14\ns_cbranch_scc1 {fin}")
            k("s_waitcnt lgkmcnt(0)")
            acc = vAcc[u]
            for j in range(4):
                for i in range(0, 4, 2):
                    k(f"v_pk_fma_f32 {v(acc+4*j+i,2)}, {v(cs[j]+i,2)}, {v(vMu,2)}, {v(acc+4*j+i,2)} op_sel_hi:[1,0,1] neg_lo:[0,1,0] neg_hi:[0,1,0]")
            if u + 1 < nu:
                load_cs(u + 1)
            for g in range(2):
                t = acc + 8*g
                for i in range(0, 8, 2):
                    k(f"v_pk_mul_f32 {v(tmp+i,2)}, {v(t+i,2)}, {v(t+i,2)}")
                for i in range(0, 8, 2):
                    k(f"v_pk_fma_f32 {v(tmp+i,2)}, {v(tmp+i,2)}, {v(vB,2)}, {v(vA,2)} op_sel_hi:[1,0,0]")
                for i in range(0, 8, 2):
                    k(f"v_pk_mul_f32 {v(tmp+i,2)}, {v(tmp+i,2)}, {v(t+i,2)}")
                for i in range(8):
                    k(f"v_exp_f32 v{tmp+i}, v{tmp+i}")
                for i in range(0, 8, 2):
                    k(f"v_pk_fma_f32 {v(tmp+i,2)}, {v(tmp+i,2)}, {v(vRi,2)}, {v(vRi,2)} op_sel_hi:[1,0,0]")
                for i in range(8):
                    k(f"v_rcp_f32 v{tmp+i}, v{tmp+i}")
                for i in range(0, 8, 2):
                    k(f"v_pk_mul_f32 {v(tmp+i,2)}, {v(tmp+i,2)}, {v(t+i,2)}")
                for i in range(0, 8, 2):
                    k(f"v_cvt_pk_bf16_f32 v{pk+4*g+i//2}, v{tmp+i}, v{tmp+i+1}")
            store_unit(u)
        k(f"s_branch {fin}")
        k.label(isq)
        k(f"s_waitcnt lgkmcnt(4)\nv_mul_f32 v{vA}, {fl(QSCALE)}, v{vR}")
        for u in range(nu):
            k("s_waitcnt lgkmcnt(0)")
            acc = vAcc[u]
            for j in range(4):
                for i in range(0, 4, 2):
                    k(f"v_pk_fma_f32 {v(acc+4*j+i,2)}, {v(cs[j]+i,2)}, {v(vMu,2)}, {v(acc+4*j+i,2)} op_sel_hi:[1,0,1] neg_lo:[0,1,0] neg_hi:[0,1,0]")
            if u + 1 < nu:
                load_cs(u + 1)
            for i in range(0, 16, 2):
                k(f"v_pk_mul_f32 {v(acc+i,2)}, {v(acc+i,2)}, {v(vA,2)} op_sel_hi:[1,0]")
            for i in range(0, 16, 2):
                k(f"v_cvt_pk_bf16_f32 v{pk+i//2}, v{acc+i}, v{acc+i+1}")
            store_unit(u)
        k.label(fin)
        k("s_endpgm")

    a_dma_addr()
    k(f"s_lshl_b32 s{sM0}, s{sTW}, 12")
    w_read_addr(16384, 320, 0)
    mainloop(0, 3, STG, 320, 4)
    publish_stats_and_cs(0, 3, 0)
    epilogue_main(0, 3)
    k.label(role1)
    for j in range(5):
        k(f"""v_add_u32 v{vT}, {64*j}, v{vL}
        v_mul_u32_u24 v{vT+1}, 3277, v{vT}
        v_lshrrev_b32 v{vT+1}, 16, v{vT+1}
        v_mul_u32_u24 v{vT+2}, 20, v{vT+1}
        v_sub_u32 v{vT+2}, v{vT}, v{vT+2}
        v_mul_lo_u32 v{vT+1}, v{vT+1}, s{sST}
        v_lshl_add_u32 v{vD+j}, v{vT+2}, 4, v{vT+1}""")
        if 0 < j < 4:
            k(f"v_subrev_u32 v{vD+j}, {1024*j}, v{vD+j}")
    k(f"""s_lshl_b32 s{sSoStep}, s{sST}, 6
    s_lshl_b32 s{sSoBase}, s{sST}, 4
    s_mul_i32 s{sSoBase}, s{sSoBase}, s{sTW}
    s_add_u32 s{sSoBase}, s{sSoBase}, s{sCO}
    s_mul_i32 s{sM0}, s{sTW}, 5120
    s_add_u32 s{sM0}, s{sM0}, 16384""")
    w_read_addr(16384, 320, 192)
    mainloop(1, 2, STG, 320, 5)
    publish_stats_and_cs(1, 2, 3)
    epilogue_main(1, 2)

    k.label(kv)
    KV_WK, KV_WV = 65536, 65536 + 25600
    kv1 = k.lab("kv1")
    k.srd(sW, P_WK, 25600)
    k.srd(sW2, P_WV, 25600)
    k.srd(sO, P_WS, SZ_KV, WS_KV)
    k(f"s_mov_b32 s{sT1}, s{sKS}")
    k(f"s_cmp_ge_u32 s{sWid}, 4\ns_cbranch_scc1 {kv1}")
    def kv_waddr(base):
        w_read_addr(base, 40, 0)
        k(f"s_mul_i32 s{sT0}, s{sKS}, {64*40}")
        for q in range(4):
            k(f"v_add_u32 v{vWa+q}, s{sT0}, v{vWa+q}")
    a_dma_addr()
    k(f"s_lshl_b32 s{sM0}, s{sTW}, 12")
    kv_waddr(KV_WK)
    mainloop(0, 1, 16384, 40, 4, kvpath=True)
    publish_stats_and_cs(0, 1, 0)
    vMu, vR = vSx, vSx + 1
    cs = [vW[0][0], vW[0][1], vW[0][2], vW[1][0]]
    pk = vW[1][1]
    acc = vAcc[0]
    k(f"""s_lshl_b32 s{sT0}, s{sTW}, 8
    s_add_u32 s{sT0}, s{sT0}, {L_ST}
    v_lshl_add_u32 v{vT}, v{vN}, 3, s{sT0}
    ds_read_b64 {v(vMu,2)}, v{vT}
    v_lshlrev_b32 v{vD}, 4, v{vH}
    v_add_u32 v{vD}, {L_CS}, v{vD}""")
    for j in range(3):
        k(f"ds_read_b128 {v(cs[j],4)}, v{vD} offset:{j*32}")
    k(f"""s_lshl_b32 s{sT0}, s{sRB}, 2
    s_add_u32 s{sT0}, s{sT0}, s{sTW}
    s_mul_i32 s{sT0}, s{sT0}, {KV_TILE}
    v_lshlrev_b32 v{vT+2}, 4, v{vL}
    v_lshlrev_b32 v{vT+3}, 2, v{vN}
    s_waitcnt lgkmcnt(0)""")
    for i in range(12):
        k(f"v_fma_f32 v{acc+i}, -v{vMu}, v{cs[i//4]+i%4}, v{acc+i}")
    for i in range(12):
        k(f"v_mul_f32 v{acc+i}, v{vR}, v{acc+i}")
    for i in range(0, 12, 2):
        k(f"v_cvt_pk_bf16_f32 v{pk+i//2}, v{acc+i}, v{acc+i+1}")
    k(f"""v_permlane32_swap_b32 v{pk}, v{pk+2}
    v_permlane32_swap_b32 v{pk+1}, v{pk+3}
    buffer_store_dwordx4 {v(pk,4)}, v{vT+2}, s[{sO}:{sO+3}], s{sT0} offen offset:{KV_KA}
    s_mov_b64 exec, 0xffffffff
    buffer_store_dword v{pk+4}, v{vT+3}, s[{sO}:{sO+3}], s{sT0} offen offset:{KV_KB}
    buffer_store_dword v{pk+5}, v{vT+3}, s[{sO}:{sO+3}], s{sT0} offen offset:{KV_KB+128}
    s_endpgm""")
    k.label(kv1)
    k(f"v_lshlrev_b32 v{vD}, 4, v{vL}")
    for which, srd, base in ((0, sW, KV_WK), (1, sW2, KV_WV)):
        for i in range(7):
            sk = k.lab("sk")
            k(f"s_mul_i32 s{sT0}, s{sTW}, 7168\ns_add_u32 s{sT0}, s{sT0}, {1024*i}")
            k(f"s_cmp_ge_u32 s{sT0}, 25600\ns_cbranch_scc1 {sk}")
            k(f"s_add_u32 m0, s{sT0}, {base}\ns_nop 0")
            k(f"buffer_load_dwordx4 v{vD}, s[{srd}:{srd+3}], s{sT0} offen lds")
            k.label(sk)
    kv_waddr(KV_WV)
    mainloop(1, 1, 16384, 40, 0, kvpath=True, swap=True)
    publish_stats_and_cs(1, 1, 1)
    st = vW[0][0]
    stregs = [vW[0][0], vW[0][1], vW[0][2], vW[1][0], vW[1][1], vW[1][2], vX[0], vX[1]]
    k(f"""s_lshl_b32 s{sT0}, s{sTW}, 8
    s_add_u32 s{sT0}, s{sT0}, {L_ST}
    v_lshl_add_u32 v{vT}, v{vH}, 5, s{sT0}
    v_lshlrev_b32 v{vT+1}, 2, v{vN}
    v_add_u32 v{vT+1}, {L_CS+128}, v{vT+1}
    ds_read_b32 v{vT+2}, v{vT+1}""")
    for j in range(4):
        for hh in range(2):
            k(f"ds_read_b128 {v(stregs[2*j+hh],4)}, v{vT} offset:{j*64+hh*16}")
    k(f"""s_lshl_b32 s{sT0}, s{sRB}, 2
    s_add_u32 s{sT0}, s{sT0}, s{sTW}
    s_mul_i32 s{sT0}, s{sT0}, {KV_TILE}
    v_mul_u32_u24 v{vT+3}, 336, v{vH}
    v_lshl_add_u32 v{vT+3}, v{vN}, 4, v{vT+3}
    v_cmp_eq_u32 vcc, 20, v{vN}
    s_waitcnt lgkmcnt(0)""")
    pk = vAcc[1]
    for i in range(16):
        r = stregs[i // 2] + 2 * (i % 2)
        k(f"v_fma_f32 v{acc+i}, -v{r}, v{vT+2}, v{acc+i}")
        k(f"v_mul_f32 v{acc+i}, v{r+1}, v{acc+i}")
    for i in range(0, 16, 2):
        k(f"v_cvt_pk_bf16_f32 v{pk+i//2}, v{acc+i}, v{acc+i+1}")
    for i in range(8):
        k(f"v_cndmask_b32 v{pk+i}, v{pk+i}, v{vOnes}, vcc")
    k(f"""s_mov_b32 exec_lo, 0x1fffff
    s_mov_b32 exec_hi, 0x1fffff
    buffer_store_dwordx4 {v(pk,4)}, v{vT+3}, s[{sO}:{sO+3}], s{sT0} offen offset:{KV_V}
    buffer_store_dwordx4 {v(pk+4,4)}, v{vT+3}, s[{sO}:{sO+3}], s{sT0} offen offset:{KV_V+672}""")
    k.label(end)
    k("s_endpgm")
    return k
```

```python
from common import *

def emit_norm(k, sWG, sW, vL, P_WS, sS, vb, lds_base, sync, coh=""):
    sZ, sO, sT, sMask = sS, sS + 4, sS + 8, sS + 14
    a = Alloc(vb)
    raw = [a(8, 4), a(8, 4)]
    f = [a(16, 2), a(16, 2)]
    st = a(4, 2)
    vA, vB = a(), a()
    k.srd(sZ, P_WS, SZ_Z, WS_Z)
    k.srd(sO, P_WS, SZ_Z2F, WS_Z2F)
    k(f"""s_lshl_b32 s{sT}, s{sWG}, 3
    s_lshl_b32 s{sT+1}, s{sW}, 1
    s_add_u32 s{sT}, s{sT}, s{sT+1}
    s_mul_i32 s{sT}, s{sT}, 3456
    s_add_u32 s{sT}, s{sT}, 1728
    s_add_u32 s{sT+2}, s{sT}, 3456
    s_mov_b32 s{sMask}, 0xffff0000
    v_lshlrev_b32 v{vA}, 4, v{vL}""")
    for r in range(2):
        for i in range(4, 8):
            k(f"v_mov_b32 v{raw[r]+i}, 0")
    for r in range(2):
        k(f"buffer_load_dwordx4 {v(raw[r],4)}, v{vA}, s[{sZ}:{sZ+3}], s{sT+2*r} offen")
    k("s_mov_b32 exec_hi, 0xfff")
    for r in range(2):
        k(f"buffer_load_dwordx4 {v(raw[r]+4,4)}, v{vA}, s[{sZ}:{sZ+3}], s{sT+2*r} offen offset:1024")
    k("s_mov_b32 exec_hi, -1")
    k("s_waitcnt vmcnt(0)")
    for r in range(2):
        for i in range(8):
            k(f"v_lshlrev_b32 v{f[r]+2*i}, 16, v{raw[r]+i}\nv_and_b32 v{f[r]+2*i+1}, s{sMask}, v{raw[r]+i}")
    for r in range(2):
        k(f"v_add_f32 v{st+2*r}, v{f[r]}, v{f[r]+1}\nv_mul_f32 v{st+2*r+1}, v{f[r]}, v{f[r]}")
    for i in range(1, 16):
        for r in range(2):
            if i > 1:
                k(f"v_add_f32 v{st+2*r}, v{st+2*r}, v{f[r]+i}")
            k(f"v_fmac_f32 v{st+2*r+1}, v{f[r]+i}, v{f[r]+i}")
    for m in ("row_shr:1", "row_shr:2", "row_shr:4", "row_shr:8"):
        for i in range(4):
            k(f"v_add_f32_dpp v{st+i}, v{st+i}, v{st+i} {m} row_mask:0xf bank_mask:0xf bound_ctrl:0")
    for m in ("row_bcast:15 row_mask:0xa", "row_bcast:31 row_mask:0xc"):
        for i in range(4):
            k(f"v_add_f32_dpp v{st+i}, v{st+i}, v{st+i} {m} bank_mask:0xf")
    for r in range(2):
        k(f"v_mul_f32 v{st+2*r}, {fl(1.0/864)}, v{st+2*r}\nv_mul_f32 v{st+2*r+1}, {fl(1.0/864)}, v{st+2*r+1}")
    for r in range(2):
        k(f"v_fma_f32 v{st+2*r+1}, -v{st+2*r}, v{st+2*r}, v{st+2*r+1}")
    for r in range(2):
        k(f"v_max_f32 v{st+2*r+1}, 0, v{st+2*r+1}")
    for r in range(2):
        k(f"v_add_f32 v{st+2*r+1}, {fl(1e-5)}, v{st+2*r+1}")
    for r in range(2):
        k(f"v_rsq_f32 v{st+2*r+1}, v{st+2*r+1}")
    k("s_nop 0")
    for r in range(2):
        k(f"v_mul_f32 v{st+2*r}, v{st+2*r}, v{st+2*r+1}")
    k("s_nop 0")
    for i in range(4):
        k(f"v_readlane_b32 s{sT+2+i}, v{st+i}, 63")
    k(f"s_mul_i32 s{sT}, s{sW}, 3456\ns_add_u32 s{sT}, s{sT}, {lds_base}\nv_add_u32 v{vB}, s{sT}, v{vA}")
    for r in range(2):
        k(f"v_mov_b32 v{st+2*r}, s{sT+2+2*r}")
    for r in range(2):
        for i in range(16):
            k(f"v_fma_f32 v{f[r]+i}, v{f[r]+i}, s{sT+3+2*r}, -v{st+2*r}")
        for i in range(8):
            k(f"v_cvt_pk_bf16_f32 v{raw[r]+i}, v{f[r]+2*i}, v{f[r]+2*i+1}")
    for r in range(2):
        k(f"ds_write_b128 v{vB}, {v(raw[r],4)} offset:{1728*r}")
    k("s_mov_b32 exec_hi, 0xfff")
    for r in range(2):
        k(f"ds_write_b128 v{vB}, {v(raw[r]+4,4)} offset:{1728*r+1024}")
    k("s_mov_b32 exec_hi, -1")
    k("s_waitcnt lgkmcnt(0)")
    sync()
    k(f"""v_bfe_u32 v{vB}, v{vL}, 2, 2
    v_mul_u32_u24 v{vB}, 1728, v{vB}
    v_lshrrev_b32 v{st}, 4, v{vL}
    v_lshl_add_u32 v{vB}, v{st}, 5, v{vB}
    v_and_b32 v{st}, 3, v{vL}
    v_lshl_add_u32 v{vB}, v{st}, 3, v{vB}
    s_lshl_b32 s{sT}, s{sW}, 7
    s_add_u32 s{sT}, s{sT}, {lds_base}
    v_add_u32 v{vB}, s{sT}, v{vB}""")
    for i in range(4):
        k(f"ds_read_b64_tr_b16 {v(f[0]+4*i,2)}, v{vB} offset:{512*i}")
        k(f"ds_read_b64_tr_b16 {v(f[0]+4*i+2,2)}, v{vB} offset:{512*i+4*1728}")
    k(f"""v_lshrrev_b32 v{st}, 5, v{vL}
    v_lshlrev_b32 v{st}, 17, v{st}
    v_and_b32 v{st+1}, 31, v{vL}
    v_lshl_add_u32 v{st}, v{st+1}, 4, v{st}
    s_lshl_b32 s{sT}, s{sW}, 18
    s_lshl_b32 s{sT+1}, s{sWG}, 9
    s_add_u32 s{sT}, s{sT}, s{sT+1}""")
    for i in range(4):
        k(f"s_waitcnt lgkmcnt({6-2*i})")
        k(f"buffer_store_dwordx4 {v(f[0]+4*i,4)}, v{st}, s[{sO}:{sO+3}], s{sT} offen {coh}")
        if i < 3:
            k(f"s_add_u32 s{sT}, s{sT}, 0x100000")


def gen_k2n():
    k = Kern("k2_norm_kernel", 256, 256, 16384, 72)
    end = k.lab("end")
    k(f"s_cmp_ge_u32 s2, 256\ns_cbranch_scc1 {end}")
    k(f"s_load_dwordx2 s[4:5], s[0:1], {KA_WS}")
    k("v_lshrrev_b32 v2, 6, v0\nv_and_b32 v1, 63, v0\nv_readfirstlane_b32 s3, v2\ns_waitcnt lgkmcnt(0)")
    emit_norm(k, 2, 3, 1, 4, 8, 4, 0, lambda: k("s_barrier"))
    k.label(end)
    k("s_endpgm")
    return k

def emit_repack(k, sKS, sW, vL, P_WO, P_WOUT, P_WS, sS, vb, lds_base, sync):
    sI, sO, sT = sS, sS + 4, sS + 8
    a = Alloc(vb)
    d = a(40, 4)
    vA, vB, vC = a(), a(), a()
    l1 = k.lab("rp1"); l2 = k.lab("rp2")
    k(f"s_cmp_ge_u32 s{sKS}, 20\ns_cbranch_scc1 {l1}")
    k.srd(sI, P_WO, 640*1280)
    k(f"s_mul_i32 s{sT}, s{sKS}, 40960\ns_branch {l2}")
    k.label(l1)
    k.srd(sI, P_WOUT, 864*1280)
    k(f"s_sub_u32 s{sT}, s{sKS}, 20\ns_mul_i32 s{sT}, s{sT}, 40960")
    k.label(l2)
    k.srd(sO, P_WS, SZ_WF, WS_WF)
    k(f"""s_mul_i32 s{sT+1}, s{sW}, 10240
    s_add_u32 s{sT}, s{sT}, s{sT+1}
    s_add_u32 s{sT+1}, s{sT+1}, {lds_base}
    v_lshlrev_b32 v{vA}, 4, v{vL}""")
    for i in range(10):
        if i % 4 == 0:
            k(f"s_add_u32 m0, s{sT+1}, {1024*i}\ns_add_u32 s{sT+2}, s{sT}, {1024*i}")
        k(f"buffer_load_dwordx4 v{vA}, s[{sI}:{sI+3}], s{sT+2} offen offset:{1024*(i%4)} lds")
    k(f"""v_lshrrev_b32 v{vB}, 4, v{vL}
    v_bfe_u32 v{vC}, v{vL}, 2, 2
    v_lshl_add_u32 v{vB}, v{vB}, 3, v{vC}
    v_mul_u32_u24 v{vB}, 1280, v{vB}
    v_and_b32 v{vC}, 3, v{vL}
    v_lshl_add_u32 v{vB}, v{vC}, 3, v{vB}
    s_mul_i32 s{sT}, s{sW}, 320
    s_add_u32 s{sT}, s{sT}, {lds_base}
    v_add_u32 v{vB}, s{sT}, v{vB}
    s_waitcnt vmcnt(0)""")
    sync()
    k(f"s_mul_i32 s{sT}, s{sW}, {2*47*5120}\ns_mul_i32 s{sT+1}, s{sKS}, 5120\ns_add_u32 s{sT}, s{sT}, s{sT+1}")
    for half in range(2):
        for i in range(5*half, 5*half+5):
            k(f"ds_read_b64_tr_b16 {v(d+4*i,2)}, v{vB} offset:{32*i}")
            k(f"ds_read_b64_tr_b16 {v(d+4*i+2,2)}, v{vB} offset:{32*i+4*1280}")
        k("s_waitcnt lgkmcnt(0)")
        for i in range(5*half, 5*half+5):
            u = i % 5
            if u == 4:
                k(f"s_add_u32 s{sT+1}, s{sT}, 4096")
                k(f"buffer_store_dwordx4 {v(d+4*i,4)}, v{vA}, s[{sO}:{sO+3}], s{sT+1} offen")
            else:
                k(f"buffer_store_dwordx4 {v(d+4*i,4)}, v{vA}, s[{sO}:{sO+3}], s{sT} offen offset:{1024*u}")
        if half == 0:
            k(f"s_add_u32 s{sT}, s{sT}, {47*5120}")


def gen_k2w():
    k = Kern("k2_repack_kernel", 47, 256, 40960, 56)
    end = k.lab("end")
    k(f"s_cmp_ge_u32 s2, 47\ns_cbranch_scc1 {end}")
    k(f"s_load_dwordx2 s[4:5], s[0:1], {KA_WS}\ns_load_dwordx2 s[6:7], s[0:1], {KA_WO}\ns_load_dwordx2 s[24:25], s[0:1], {KA_WOUT}")
    k("v_lshrrev_b32 v2, 6, v0\nv_and_b32 v1, 63, v0\nv_readfirstlane_b32 s3, v2\ns_waitcnt lgkmcnt(0)")
    emit_repack(k, 2, 3, 1, 6, 24, 4, 8, 4, 0, lambda: k("s_barrier"))
    k.label(end)
    k("s_endpgm")
    return k

GST = 24576
GNS = 3
def emit_spatial(k, sTB, sFG, sW, vL, P_WSP, P_BSP, P_WS, sS, vb, lds_base, arrive, wait, pre_z=None, coh=""):
    sA, sZ, sO = sS, sS + 4, sS + 8
    sT, sI, sBuf, sSoA, sSoZ, sDelta, sM0A, sM0Z, sMask = sS + 12, sS + 15, sS + 16, sS + 17, sS + 18, sS + 19, sS + 20, sS + 21, sS + 22
    a = Alloc(vb)
    acc = [a(16, 4), a(16, 4)]
    fw = [[a(4, 4), a(4, 4)] for b in range(2)]
    fz = [a(4, 4) for b in range(2)]
    z1 = a(16, 4)
    vD = a(4, 1); vDz = a()
    vWa = a(4, 1); vZa = a()
    vN, vH, vBias = a(), a(), a(2, 2)
    vT = a(4, 2)
    k.srd(sA, P_WSP, 2048*4096)
    k.srd(sO, P_WS, SZ_Z, WS_Z)
    k(f"v_and_b32 v{vN}, 31, v{vL}\nv_lshrrev_b32 v{vH}, 5, v{vL}\ns_mov_b32 s{sMask}, 0xffff0000")
    k(f"v_lshrrev_b32 v{vT}, 3, v{vL}\nv_and_b32 v{vT+1}, 7, v{vL}")
    for p in range(4):
        k(f"""v_add_u32 v{vT+2}, {8*p}, v{vT}
        v_bfe_u32 v{vT+3}, v{vT+2}, 1, 3
        v_xor_b32 v{vT+3}, v{vT+3}, v{vT+1}
        v_lshlrev_b32 v{vT+2}, 12, v{vT+2}
        v_lshl_add_u32 v{vD+p}, v{vT+3}, 4, v{vT+2}""")
        if p:
            k(f"v_subrev_u32 v{vD+p}, {1024*p}, v{vD+p}")
    k(f"""v_lshlrev_b32 v{vDz}, 4, v{vL}
    s_lshl_b32 s{sSoA}, s{sTB}, 2
    s_add_u32 s{sSoA}, s{sSoA}, s{sW}
    s_lshl_b32 s{sSoA}, s{sSoA}, 17
    s_lshl_b32 s{sM0A}, s{sW}, 12
    s_add_u32 s{sM0A}, s{sM0A}, {lds_base}
    s_lshl_b32 s{sM0Z}, s{sW}, 11
    s_add_u32 s{sM0Z}, s{sM0Z}, {lds_base+16384}
    s_lshr_b32 s{sT+1}, s{sW}, 1
    s_lshl_b32 s{sT}, s{sFG}, 1
    s_add_u32 s{sT+1}, s{sT}, s{sT+1}
    s_lshl_b32 s{sSoZ}, s{sT+1}, 17
    s_and_b32 s{sT}, s{sW}, 1
    s_lshl_b32 s{sT+2}, s{sT}, 11
    s_add_u32 s{sSoZ}, s{sSoZ}, s{sT+2}""")
    def dma_a(buf):
        if isinstance(buf, int):
            k(f"s_add_u32 m0, s{sM0A}, {buf*GST}")
        else:
            k(f"s_add_u32 m0, s{sM0A}, {buf}")
        k("s_nop 0")
        for p in range(4):
            k(f"buffer_load_dwordx4 v{vD+p}, s[{sA}:{sA+3}], s{sSoA} offen offset:{1024*p} lds")
        k(f"s_add_u32 s{sSoA}, s{sSoA}, 128")
    def dma_z(buf):
        if isinstance(buf, int):
            k(f"s_add_u32 m0, s{sM0Z}, {buf*GST}")
        else:
            k(f"s_add_u32 m0, s{sM0Z}, {buf}")
        k("s_nop 0")
        for p in range(2):
            k(f"buffer_load_dwordx4 v{vDz}, s[{sZ}:{sZ+3}], s{sSoZ} offen offset:{1024*p} {coh} lds")
        k(f"s_add_u32 s{sSoZ}, s{sSoZ}, 4096")
    k(f"""s_lshl_b32 s{sT+2}, s{sTB}, 7
    s_lshl_b32 s{sDelta}, s{sT}, 6
    s_add_u32 s{sT+2}, s{sT+2}, s{sDelta}
    v_add_u32 v{vT}, s{sT+2}, v{vN}
    v_mul_u32_u24 v{vT+1}, 3456, v{vT}
    v_lshl_add_u32 v{vT+1}, v{vH}, 4, v{vT+1}
    s_lshl_b32 s{sDelta}, s{sT+1}, 6
    s_add_u32 s{sBuf}, s{sDelta}, {32*3456}
    v_lshlrev_b32 v{vT+2}, 1, v{vT}""")
    for i in range(2):
        for jp in range(2):
            k(f"buffer_load_dwordx4 {v(z1+8*i+4*jp,4)}, v{vT+1}, s[{sO}:{sO+3}], s{sDelta if i == 0 else sBuf} offen offset:{32*jp}")
    k.srd(sZ, P_BSP, 4096)
    for i in range(2):
        k(f"buffer_load_ushort v{vBias+i}, v{vT+2}, s[{sZ}:{sZ+3}], 0 offen offset:{64*i}")
    for st in range(GNS):
        dma_a(st)
    k.srd(sZ, P_WS, SZ_Z2F, WS_Z2F)
    k.srd(sO, P_WS, SZ_OUF, WS_OUF)
    k(f"""v_bfe_u32 v{vT+1}, v{vN}, 1, 3
    v_xor_b32 v{vT+1}, v{vT+1}, v{vH}
    s_lshl_b32 s{sT+2}, s{sT}, 13
    s_add_u32 s{sT+2}, s{sT+2}, {lds_base}
    v_lshlrev_b32 v{vT+2}, 7, v{vN}
    v_add_u32 v{vT+2}, s{sT+2}, v{vT+2}""")
    for q in range(4):
        k(f"v_xor_b32 v{vT+3}, {2*q}, v{vT+1}\nv_lshl_add_u32 v{vWa+q}, v{vT+3}, 4, v{vT+2}")
    k(f"""s_lshr_b32 s{sT+2}, s{sW}, 1
    s_lshl_b32 s{sT+2}, s{sT+2}, 12
    s_add_u32 s{sT+2}, s{sT+2}, {lds_base+16384}
    v_add_u32 v{vZa}, s{sT+2}, v{vDz}""")
    for t in range(2):
        for i in range(16):
            k(f"v_mov_b32 v{acc[t]+i}, 0")
    if pre_z:
        pre_z()
    for st in range(GNS):
        dma_z(st)
    def reads(q, b):
        return [f"ds_read_b128 {v(fz[b],4)}, v{vZa} offset:{1024*q}",
                f"ds_read_b128 {v(fw[b][0],4)}, v{vWa+q}",
                f"ds_read_b128 {v(fw[b][1],4)}, v{vWa+q} offset:4096"]
    k(f"s_mov_b32 s{sI}, 0\ns_mov_b32 s{sBuf}, 0")
    k("s_waitcnt vmcnt(4)")
    arrive(); wait()
    for r in reads(0, 0):
        k(r)
    loop = k.lab("gloop"); w0 = k.lab("gw0"); w1 = k.lab("gw1"); w2 = k.lab("gw2"); nod = k.lab("gnod")
    k.align(3)
    k.label(loop)
    for q in range(4):
        b = q % 2
        mf = [f"v_mfma_f32_32x32x16_bf16 {v(acc[t],16)}, {v(fz[b],4)}, {v(fw[b][t],4)}, {v(acc[t],16)}" for t in range(2)]
        k("s_waitcnt lgkmcnt(0)")
        if q < 3:
            for x in interleave(mf, reads(q + 1, 1 - b)):
                k(x)
        else:
            k(f"s_cmp_eq_u32 s{sI}, 0\ns_cbranch_scc1 {w2}\ns_cmp_lt_u32 s{sI}, 30\ns_cbranch_scc1 {w0}\ns_waitcnt vmcnt(0)\ns_branch {w1}")
            k.label(w2)
            k(f"s_waitcnt vmcnt(2)\ns_branch {w1}")
            k.label(w0)
            k("s_waitcnt vmcnt(6)")
            k.label(w1)
            arrive()
            k(mf[0])
            k(f"s_mov_b32 s{sDelta}, {GST}\ns_cmp_eq_u32 s{sBuf}, {(GNS-1)*GST}\ns_cmov_b32 s{sDelta}, {hx(-(GNS-1)*GST)}")
            for i in range(4):
                k(f"v_add_u32 v{vWa+i}, s{sDelta}, v{vWa+i}")
            k(f"v_add_u32 v{vZa}, s{sDelta}, v{vZa}")
            k(mf[1])
            wait()
            for x in reads(0, 0):
                k(x)
            k(f"s_cmp_ge_u32 s{sI}, {32-GNS}\ns_cbranch_scc1 {nod}")
            dma_a(f"s{sBuf}")
            dma_z(f"s{sBuf}")
            k.label(nod)
            k(f"s_add_u32 s{sBuf}, s{sBuf}, s{sDelta}")
    k(f"s_add_u32 s{sI}, s{sI}, 1\ns_cmp_lt_u32 s{sI}, 32\ns_cbranch_scc1 {loop}")
    fin = k.lab("gfin")
    k(f"s_waitcnt lgkmcnt(0)\ns_cmp_eq_u32 s{sT+1}, 27\ns_cbranch_scc1 {fin}")
    k(f"""v_lshrrev_b32 v{vT+1}, 4, v{vT}
    v_mul_u32_u24 v{vT+1}, {47*1024}, v{vT+1}
    v_and_b32 v{vT+2}, 15, v{vT}
    v_lshl_add_u32 v{vT+1}, v{vT+2}, 4, v{vT+1}
    v_lshl_add_u32 v{vT+1}, v{vH}, 8, v{vT+1}
    s_add_u32 s{sT+2}, s{sT+1}, 20
    s_lshl_b32 s{sT+2}, s{sT+2}, 10
    s_add_u32 s{sDelta}, s{sT+2}, {2*47*1024}
    v_lshlrev_b32 v{vBias}, 16, v{vBias}
    v_lshlrev_b32 v{vBias+1}, 16, v{vBias+1}""")
    for i in range(2):
        for jp in range(2):
            b0 = z1 + 8*i + 4*jp
            k(f"v_permlane32_swap_b32 v{b0}, v{b0+2}\nv_permlane32_swap_b32 v{b0+1}, v{b0+3}")
    tmp = fw[0][0]
    for i in range(2):
        for r in range(8):
            zr = z1 + 8*i + r
            a0 = acc[i] + 2*r
            k(f"""v_lshlrev_b32 v{tmp}, 16, v{zr}
            v_and_b32 v{tmp+1}, s{sMask}, v{zr}
            v_add_f32 v{a0}, v{a0}, v{vBias+i}
            v_add_f32 v{a0+1}, v{a0+1}, v{vBias+i}
            v_mul_f32 v{a0}, v{a0}, v{tmp}
            v_mul_f32 v{a0+1}, v{a0+1}, v{tmp+1}
            v_cvt_pk_bf16_f32 v{zr}, v{a0}, v{a0+1}""")
        k("s_nop 1")
        for jp in range(2):
            b0 = z1 + 8*i + 4*jp
            k(f"v_permlane32_swap_b32 v{b0}, v{b0+2}\nv_permlane32_swap_b32 v{b0+1}, v{b0+3}")
        for jp in range(2):
            k(f"buffer_store_dwordx4 {v(z1+8*i+4*jp,4)}, v{vT+1}, s[{sO}:{sO+3}], s{sT+2 if i == 0 else sDelta} offen offset:{512*jp}")
    k.label(fin)
    return a.n


def tile_map_spatial(k, sTB, sFG, sT):
    k(f"""s_and_b32 s{sT}, s2, 7
    s_lshr_b32 s{sT+1}, s2, 3
    s_lshr_b32 s{sTB}, s{sT}, 1
    s_lshl_b32 s{sTB}, s{sTB}, 2
    s_and_b32 s{sFG}, s{sT+1}, 3
    s_add_u32 s{sTB}, s{sTB}, s{sFG}
    s_and_b32 s{sFG}, s{sT}, 1
    s_mul_i32 s{sFG}, s{sFG}, 7
    s_lshr_b32 s{sT}, s{sT+1}, 2
    s_add_u32 s{sFG}, s{sFG}, s{sT}
    s_cmp_ge_u32 s{sT+1}, 28""")


def gen_k2g():
    k = Kern("k2_spatial_kernel", 256, 256, GNS*GST, 104)
    end = k.lab("end")
    k(f"s_load_dwordx2 s[4:5], s[0:1], {KA_WS}\ns_load_dwordx4 s[8:11], s[0:1], {KA_WSP}")
    k("v_lshrrev_b32 v2, 6, v0\nv_and_b32 v1, 63, v0\nv_readfirstlane_b32 s3, v2")
    tile_map_spatial(k, 6, 7, 12)
    k(f"s_cbranch_scc1 {end}\ns_waitcnt lgkmcnt(0)")
    n = emit_spatial(k, 6, 7, 3, 1, 8, 10, 4, 16, 4, 0, lambda: None, lambda: k("s_barrier"))
    assert n <= 104, n
    k.label(end)
    k("s_endpgm")
    return k
```

```python
from common import *

def gen_k3():
    k = Kern("k3_out_kernel", 256, 256, 4*4*5*1024, 256)
    sA, sB, sX, sO = 8, 12, 16, 20
    sTB, sG, sW, sT, sSoA, sSoB = 24, 25, 26, 27, 30, 34
    P_X, P_OUT, P_WS = 36, 38, 42
    a = Alloc(1)
    vL, vA, vXo, vT = a(), a(), a(), a(2, 2)
    xr = a(10, 2)
    acc = a(80, 4)
    NB = 4
    fr = [a(36, 4) for b in range(NB)]
    assert a.n <= 256, a.n
    end = k.lab("end")
    k(f"s_cmp_ge_u32 s2, 256\ns_cbranch_scc1 {end}")
    k(f"s_load_dwordx2 s[{P_X}:{P_X+1}], s[0:1], {KA_X}\ns_load_dwordx2 s[{P_OUT}:{P_OUT+1}], s[0:1], {KA_OUT}\ns_load_dwordx2 s[{P_WS}:{P_WS+1}], s[0:1], {KA_WS}")
    k(f"""v_lshrrev_b32 v{vT}, 6, v0
    v_and_b32 v{vL}, 63, v0
    v_readfirstlane_b32 s{sW}, v{vT}
    v_lshlrev_b32 v{vA}, 4, v{vL}
    s_and_b32 s{sT}, s2, 7
    s_lshr_b32 s{sT+1}, s2, 3
    s_lshr_b32 s{sTB}, s{sT}, 1
    s_lshl_b32 s{sTB}, s{sTB}, 3
    s_and_b32 s{sG}, s{sT+1}, 7
    s_add_u32 s{sTB}, s{sTB}, s{sG}
    s_and_b32 s{sG}, s{sT}, 1
    s_lshl_b32 s{sG}, s{sG}, 2
    s_lshr_b32 s{sT+1}, s{sT+1}, 3
    s_add_u32 s{sG}, s{sG}, s{sT+1}
    s_mul_i32 s{sSoA}, s{sTB}, {4*47}
    s_add_u32 s{sSoA}, s{sSoA}, s{sW}
    s_lshl_b32 s{sSoA}, s{sSoA}, 10
    s_add_u32 s{sSoA+1}, s{sSoA}, {47*1024}
    s_add_u32 s{sSoA+2}, s{sSoA}, {2*47*1024}
    s_add_u32 s{sSoA+3}, s{sSoA}, {3*47*1024}
    s_mul_i32 s{sSoB}, s{sG}, 47
    s_add_u32 s{sSoB}, s{sSoB}, s{sW}
    s_mul_i32 s{sSoB}, s{sSoB}, 5120
    s_add_u32 s{sSoB+1}, s{sSoB}, 4096
    s_waitcnt lgkmcnt(0)""")
    k.srd(sA, P_WS, SZ_OUF, WS_OUF)
    k.srd(sB, P_WS, SZ_WF, WS_WF)
    def loads(step):
        b = fr[step % NB]
        if step == 11:
            k(f"s_cmp_eq_u32 s{sW}, 3\ns_cmov_b32 s{sA+2}, 0\ns_cmov_b32 s{sB+2}, 0")
        for u in range(4):
            k(f"buffer_load_dwordx4 {v(b+16+4*u,4)}, v{vA}, s[{sB}:{sB+3}], s{sSoB} offen offset:{1024*u}")
        k(f"buffer_load_dwordx4 {v(b+32,4)}, v{vA}, s[{sB}:{sB+3}], s{sSoB+1} offen")
        for i in range(4):
            k(f"buffer_load_dwordx4 {v(b+4*i,4)}, v{vA}, s[{sA}:{sA+3}], s{sSoA+i} offen")
        if step < 11:
            for i in range(4):
                k(f"s_add_u32 s{sSoA+i}, s{sSoA+i}, 4096")
            k(f"s_add_u32 s{sSoB}, s{sSoB}, {4*5120}\ns_add_u32 s{sSoB+1}, s{sSoB+1}, {4*5120}")
    for st in range(NB):
        loads(st)
    k.srd(sX, P_X, SZ_Q)
    k.srd(sO, P_OUT, SZ_Q)
    k(f"""s_lshl_b32 s{sT}, s{sTB}, 2
    s_add_u32 s{sT}, s{sT}, s{sW}
    s_mul_i32 s{sT}, s{sT}, {16*1280}
    s_mul_i32 s{sT+1}, s{sG}, 160
    s_add_u32 s{sT}, s{sT}, s{sT+1}
    v_and_b32 v{vXo}, 15, v{vL}
    v_mul_u32_u24 v{vXo}, 1280, v{vXo}
    v_lshrrev_b32 v{vT}, 4, v{vL}
    v_lshl_add_u32 v{vXo}, v{vT}, 3, v{vXo}""")
    for step in range(12):
        b = fr[step % NB]
        newer = min(NB - 1, 11 - step) * 9 + (5 if step >= 9 else 0)
        k(f"s_waitcnt vmcnt({newer})")
        for i in range(4):
            for u in range(5):
                c = acc + 20*i + 4*u
                src = "0" if step == 0 else v(c, 4)
                k(f"v_mfma_f32_16x16x32_bf16 {v(c,4)}, {v(b+16+4*u,4)}, {v(b+4*i,4)}, {src}")
        if step + NB < 12:
            loads(step + NB)
        if step == 8:
            for u in range(5):
                k(f"buffer_load_dwordx2 {v(xr+2*u,2)}, v{vXo}, s[{sX}:{sX+3}], s{sT} offen offset:{32*u}")
    k(f"s_mul_i32 s{sT+1}, s{sW}, 20480\nv_add_u32 v{vT}, s{sT+1}, v{vA}")
    k(f"s_mul_i32 s{sT+1}, s{sW}, 5120\nv_add_u32 v{vT+1}, s{sT+1}, v{vA}")
    k("s_nop 4")
    for i in range(4):
        for u in range(5):
            k(f"ds_write_b128 v{vT}, {v(acc+20*i+4*u,4)} offset:{5120*i+1024*u}")
    k("s_waitcnt lgkmcnt(0)\ns_barrier")
    r = fr[0]
    for w in range(4):
        for u in range(5):
            if w == 2 and u == 0:
                k(f"v_add_u32 v{vT+1}, 40960, v{vT+1}")
            k(f"ds_read_b128 {v(r+20*w+4*u,4)}, v{vT+1} offset:{20480*(w%2)+1024*u}")
    k(f"s_mov_b32 s{sT+2}, 0xffff0000\ns_waitcnt vmcnt(0)")
    for u in range(5):
        for hh in range(2):
            k(f"v_lshlrev_b32 v{acc+4*u+2*hh}, 16, v{xr+2*u+hh}\nv_and_b32 v{acc+4*u+2*hh+1}, s{sT+2}, v{xr+2*u+hh}")
    for w in range(4):
        k(f"s_waitcnt lgkmcnt({15-5*w})")
        for i in range(0, 20, 2):
            k(f"v_pk_add_f32 {v(acc+i,2)}, {v(acc+i,2)}, {v(r+20*w+i,2)}")
    for u in range(5):
        k(f"v_cvt_pk_bf16_f32 v{xr+2*u}, v{acc+4*u}, v{acc+4*u+1}\nv_cvt_pk_bf16_f32 v{xr+2*u+1}, v{acc+4*u+2}, v{acc+4*u+3}")
    for u in range(5):
        k(f"buffer_store_dwordx2 {v(xr+2*u,2)}, v{vXo}, s[{sO}:{sO+3}], s{sT} offen offset:{32*u}")
    k.label(end)
    k("s_endpgm")
    return k
```

```python
import re
import sys

TRANS = ("v_exp_f32", "v_log_f32", "v_rcp_f32", "v_rsq_f32", "v_sqrt_f32", "v_sin_f32", "v_cos_f32", "v_rcp_iflag_f32")


def regs_of(tok):
    tok = tok.strip()
    neg = tok.startswith("-")
    if neg:
        tok = tok[1:]
    m = re.match(r"abs\((.*)\)", tok) or re.match(r"\|(.*)\|", tok)
    if m:
        tok = m.group(1)
    m = re.fullmatch(r"([vsa])\[(\d+):(\d+)\]", tok)
    if m:
        return {(m.group(1), i) for i in range(int(m.group(2)), int(m.group(3)) + 1)}
    m = re.fullmatch(r"([vsa])(\d+)", tok)
    if m:
        return {(m.group(1), int(m.group(2)))}
    if tok in ("vcc", "vcc_lo", "vcc_hi"):
        return {("s", "vcc")}
    if tok in ("exec", "exec_lo", "exec_hi"):
        return {("s", "exec")}
    if tok == "m0":
        return {("s", "m0")}
    return set()


def passes(op):
    if "4x4x4" in op:
        return 2
    if "32x32x4_2b" in op:
        return 16
    if "32x32" in op:
        return 8
    if "16x16" in op:
        return 4
    raise ValueError(op)


class Ins:
    def __init__(self, text, ln):
        self.text = text
        self.ln = ln
        parts = text.split(None, 1)
        self.op = parts[0]
        rest = parts[1] if len(parts) > 1 else ""
        ops = []
        cur = ""
        depth = 0
        for ch in rest:
            if ch == "[":
                depth += 1
            if ch == "]":
                depth -= 1
            if ch == "," and depth == 0:
                ops.append(cur.strip())
                cur = ""
            else:
                cur += ch
        if cur.strip():
            ops.append(cur.strip())
        self.mods = ""
        if ops:
            last = ops[-1].split(None, 1)
            ops[-1] = last[0]
            if len(last) > 1:
                self.mods = last[1]
        self.ops = ops
        op = self.op
        self.is_mfma = op.startswith("v_mfma")
        self.is_valu = op.startswith("v_") and not self.is_mfma
        self.is_trans = any(op.startswith(t) for t in TRANS)
        self.is_vmem = op.startswith(("buffer_", "global_", "flat_"))
        self.is_ds = op.startswith("ds_")
        self.is_salu = op.startswith("s_")
        self.is_dpp = "row_" in self.mods or "quad_perm" in self.mods or "_dpp" in op
        self.w = set()
        self.r = set()
        self.states = 1
        R = [regs_of(o) for o in ops]
        if op == "s_nop":
            self.states = int(ops[0], 0) + 1
        elif self.is_mfma:
            self.w = R[0]
            self.a, self.b, self.c = R[1], R[2], R[3]
            self.r = R[1] | R[2] | R[3]
            self.p = passes(op)
        elif self.is_valu:
            if op.startswith("v_cmp"):
                self.w = R[0]
                self.r = set().union(*R[1:])
            elif op.startswith("v_permlane") and "swap" in op:
                self.w = R[0] | R[1]
                self.r = R[0] | R[1]
            elif op.startswith(("v_add_co", "v_sub_co", "v_addc_co", "v_subb_co")):
                self.w = R[0] | R[1]
                self.r = set().union(*R[2:])
            else:
                self.w = R[0]
                self.r = set().union(*R[1:]) if len(R) > 1 else set()
                if op.startswith(("v_fmac", "v_dot2c", "v_writelane")) or self.is_dpp or "PRESERVE" in self.mods:
                    self.r |= R[0]
        elif self.is_vmem:
            lds = re.search(r"\blds\b", self.mods) is not None
            self.lds = lds
            if "load" in op and not lds:
                self.w = R[0]
                self.r = set().union(*R[1:])
                self.data = set()
            elif lds:
                self.r = set().union(*R) | {("s", "m0")}
                self.data = set()
            elif op.startswith("buffer_inv") or op.startswith("buffer_wb"):
                self.data = set()
            else:
                self.r = set().union(*R)
                if op.startswith("buffer_"):
                    self.data = R[0]
                else:
                    self.data = R[1]
                if "atomic" in op and "sc0" in self.mods:
                    self.w = R[0]
        elif self.is_ds:
            if op.startswith(("ds_read", "ds_bpermute", "ds_permute", "ds_swizzle")) or "_rtn" in op:
                self.w = R[0]
                self.r = set().union(*R[1:])
            else:
                self.r = set().union(*R)
        elif self.is_salu:
            if op.startswith(("s_cmp", "s_cbranch", "s_branch", "s_waitcnt", "s_barrier", "s_endpgm", "s_setprio", "s_sleep", "s_bitcmp")):
                self.r = set().union(*R) if R else set()
            else:
                self.w = R[0] if R else set()
                self.r = set().union(*R[1:]) if len(R) > 1 else set()
                if "saveexec" in op:
                    self.w |= {("s", "exec")}


def need(prod, cons):
    n = 0
    vw = {x for x in prod.w if x[0] in "va"}
    sw = {x for x in prod.w if x[0] == "s"}
    if prod.is_valu:
        if cons.is_mfma and (vw & cons.r):
            n = max(n, 2)
        if prod.is_trans and cons.is_valu and not cons.is_trans and (vw & cons.r):
            n = max(n, 1)
        if prod.is_trans and (cons.is_mfma or cons.is_vmem or cons.is_ds) and (vw & cons.r):
            n = max(n, 1)
        if cons.op.startswith(("v_readlane", "v_readfirstlane")) and (vw & cons.r):
            n = max(n, 1)
        if cons.op.startswith("v_permlane") and (vw & cons.r):
            n = max(n, 2)
        if cons.is_valu and cons.is_dpp and (vw & cons.r):
            n = max(n, 2)
        if sw:
            if (cons.is_valu or cons.is_mfma) and (sw & cons.r):
                n = max(n, 2)
                if cons.op.startswith(("v_readlane", "v_writelane")):
                    n = max(n, 4)
            if cons.is_vmem and (sw & cons.r):
                n = max(n, 5)
        if ("sdwa" in prod.op or ("op_sel" in prod.mods and not prod.op.startswith("v_pk"))) and cons.is_valu and (vw & cons.r):
            n = max(n, 1)
        if prod.op.startswith("v_dot") and (cons.is_valu or cons.is_mfma or cons.is_vmem or cons.is_ds):
            if vw & (cons.r | cons.w):
                if cons.op == prod.op:
                    srcs = set().union(*[regs_of(o) for o in cons.ops[1:3]])
                    if vw & srcs:
                        n = max(n, 3)
                else:
                    n = max(n, 3)
    if prod.is_mfma:
        p = prod.p
        full = {2: 5, 4: 8, 8: 12, 16: 20}[p]
        if cons.is_mfma:
            if prod.w & (cons.a | cons.b):
                n = max(n, full)
            if prod.w & cons.c:
                if prod.w == cons.c and cons.p == p:
                    n = max(n, 2 if p == 2 else 0)
                else:
                    n = max(n, {2: 4, 4: 6, 8: 10, 16: 18}[p])
            elif prod.w & cons.w:
                n = max(n, {2: 4, 4: 6, 8: 10, 16: 18}[p])
        elif cons.is_valu or cons.is_vmem or cons.is_ds:
            if prod.w & (cons.r | cons.w):
                n = max(n, full)
            if cons.is_valu and (prod.c & cons.w):
                n = max(n, {2: 1, 4: 3, 8: 7, 16: 15}[p])
    if prod.is_salu and ("s", "m0") in prod.w and cons.is_vmem and getattr(cons, "lds", False):
        n = max(n, 1)
    if prod.is_vmem and getattr(prod, "data", None) and len(prod.data) >= 3:
        if cons.is_valu and (cons.w & prod.data):
            n = max(n, 2)
        elif cons.w & prod.data:
            n = max(n, 1)
    return n


def lint(text):
    ins = []
    labels = {}
    for ln, line in enumerate(text.splitlines(), 1):
        s = line.split(";")[0].strip()
        if not s:
            continue
        if s.startswith("."):
            continue
        m = re.match(r"^([\w.$]+):\s*(.*)$", s)
        if m:
            labels[m.group(1)] = len(ins)
            s = m.group(2).strip()
            if not s:
                continue
        ins.append(Ins(s, ln))
    n = len(ins)
    succ = [[] for _ in range(n)]
    for i, x in enumerate(ins):
        if x.op == "s_endpgm":
            continue
        if x.op == "s_branch":
            succ[i].append(labels[x.ops[0]])
            continue
        if x.op.startswith("s_cbranch"):
            succ[i].append(labels[x.ops[0]])
        if i + 1 < n:
            succ[i].append(i + 1)
    errs = []
    MAXD = 20
    for i, p in enumerate(ins):
        if not (p.is_valu or p.is_mfma or p.is_vmem or (p.is_salu and ("s", "m0") in p.w)):
            continue
        stack = [(j, 0) for j in succ[i]]
        seen = {}
        while stack:
            j, d = stack.pop()
            if j >= n or d >= MAXD:
                continue
            if seen.get(j, 99) <= d:
                continue
            seen[j] = d
            c = ins[j]
            k = need(p, c)
            if k > d:
                errs.append(f"line {p.ln}: '{p.text}' -> line {c.ln}: '{c.text}' needs {k} has {d}")
            for t in succ[j]:
                stack.append((t, d + c.states))
    return errs


if __name__ == "__main__":
    e = lint(open(sys.argv[1]).read())
    for x in e:
        print(x)
    print(f"{len(e)} hazard findings")
```

```python
import sys
sys.path.insert(0,'gen')
import build, k1, k2parts, k3, attn
build.build([k1.gen_k1(), k2parts.gen_k2n(), k2parts.gen_k2w(), k2parts.gen_k2g(), attn.gen_k2a(), k3.gen_k3()], sys.argv[1] if len(sys.argv)>1 else 'out.s')
```

```python
import sys
sys.path.insert(0,'gen')
import build, k1, k2parts, k3, attn
from common import *
def empty():
    k = Kern("nop_kernel", 256, 256, 0, 8); k("s_endpgm"); return k
ks = [k1.gen_k1(), k2parts.gen_k2n(), k2parts.gen_k2w(), k2parts.gen_k2g(), attn.gen_k2a(), k3.gen_k3()]
e = empty()
build.build(ks+[e], 'v_nop4.s', launches=ks+[e]*4)
build.build(ks+[e], 'v_nop8.s', launches=ks+[e]*8)
build.build(ks, 'v_att2.s', launches=ks[:5]+[ks[4]]+ks[5:])
build.build(ks, 'v_k1x2.s', launches=[ks[0]]+ks)
build.build(ks, 'v_k3x2.s', launches=ks+[ks[5]])
build.build(ks, 'v_gx2.s', launches=ks[:4]+[ks[3]]+ks[4:])
```

```python
from common import *
import os

CH = 8 * KV_TILE
NSLOT = 3
ATT_LDS = NSLOT * CH
MARGIN = 64.0
TRIG = 2.0**48

def emit_attn(k, sTok, sW, vL, P_WS, sS, vb, lds_base, flag_base, pre_publish=None, slot=4):
    sKV, sQ = sS, sS + 4
    sT, sC, sSo, sM0, sDelta, sRet, sMask, sSlot = sS + 8, sS + 11, sS + 12, sS + 13, sS + 14, sS + 15, sS + 16, sS + 17
    sEx = sS + 18
    a = Alloc(vb)
    Sx = [a(16, 4), a(16, 4)]
    O = a(16, 4)
    P = [a(8, 4), a(8, 4)]
    QA = a(4, 4); KA = a(4, 4); V0 = a(4, 4); V1 = a(4, 4)
    QB = a(2, 2); KB = a(2, 2)
    vKa, vKb, vVa, vD, vM, vN, vH, vFa, vFw, vFl = [a() for _ in range(10)]
    vT = a(6, 2)
    k.stamp(0); k.stamp_rt(5)
    if STAMP: k("s_mov_b32 s88, 0")
    k.srd(sKV, P_WS, SZ_KV, WS_KV)
    k.srd(sQ, P_WS, SZ_Q, WS_Q)
    k(f"""v_and_b32 v{vN}, 31, v{vL}
    v_lshrrev_b32 v{vH}, 5, v{vL}
    v_lshlrev_b32 v{vD}, 4, v{vL}
    s_mul_i32 s{sSo}, s{sW}, {KV_TILE}
    s_add_u32 s{sM0}, s{sSo}, {lds_base}
    s_mov_b32 s{sMask}, 0xffff0000
    s_mov_b32 s{sEx}, -1
    s_mov_b32 s{sEx+1}, 0xf""")
    def dma(slot):
        k(f"s_add_u32 m0, s{sM0}, {slot}")
        k("s_nop 0")
        k(f"buffer_load_dwordx4 v{vD}, s[{sKV}:{sKV+3}], s{sSo} offen lds")
        k(f"buffer_load_dwordx4 v{vD}, s[{sKV}:{sKV+3}], s{sSo} offen offset:1024 lds")
        k(f"s_mov_b64 exec, s[{sEx}:{sEx+1}]")
        k(f"buffer_load_dwordx4 v{vD}, s[{sKV}:{sKV+3}], s{sSo} offen offset:2048 lds")
        k(f"s_mov_b64 exec, -1")
        k(f"s_add_u32 s{sSo}, s{sSo}, {CH}")
    dma(0)
    k(f"""s_mul_i32 s{sT}, s{sTok}, 1280
    v_mul_u32_u24 v{vT}, 40, v{vN}
    v_lshl_add_u32 v{vT+1}, v{vH}, 4, v{vT}
    v_lshl_add_u32 v{vT+2}, v{vH}, 2, v{vT}
    buffer_load_dwordx4 {v(QA,4)}, v{vT+1}, s[{sQ}:{sQ+3}], s{sT} offen
    buffer_load_dword v{QB}, v{vT+2}, s[{sQ}:{sQ+3}], s{sT} offen offset:32""")
    dma(CH)
    k(f"""v_add_u32 v{vKa}, {lds_base}, v{vD}
    v_lshlrev_b32 v{vKb}, 2, v{vL}
    v_add_u32 v{vKb}, {lds_base+KV_KB}, v{vKb}
    v_min_u32 v{vVa}, 20, v{vN}
    v_lshlrev_b32 v{vVa}, 4, v{vVa}
    v_mul_u32_u24 v{vT}, 336, v{vH}
    v_add_u32 v{vVa}, v{vVa}, v{vT}
    v_add_u32 v{vVa}, {lds_base+KV_V}, v{vVa}
    v_mov_b32 v{KB+1}, 0x3f803f80
    v_mov_b32 v{QB+1}, 0
    v_and_b32 v{vFa}, 7, v{vL}
    v_lshlrev_b32 v{vFa}, 2, v{vFa}
    v_add_u32 v{vFa}, {flag_base}, v{vFa}
    s_lshl_b32 s{sT}, s{sW}, 2
    s_add_u32 s{sT}, s{sT}, {flag_base}
    v_mov_b32 v{vFw}, s{sT}""")
    for i in range(16):
        k(f"v_mov_b32 v{O+i}, 0")
    for i in range(8):
        k(f"v_mov_b32 v{P[1]+i}, 0")
    for r in (V0, V1):
        for i in range(4):
            k(f"v_mov_b32 v{r+i}, 0")

    def publish(val):
        k(f"v_mov_b32 v{vFl}, {val}")
        k(f"ds_write_b32 v{vFw}, v{vFl}")
    def spin(val):
        l = k.lab("spin"); d = k.lab("spun")
        k.label(l)
        k(f"ds_read_b32 v{vFl}, v{vFa}\ns_waitcnt lgkmcnt(0)\nv_cmp_gt_u32 vcc, {val}, v{vFl}\ns_cbranch_vccz {d}\ns_sleep 1\ns_branch {l}")
        k.label(d)
    def set_m():
        k(f"""v_sub_f32 v{vT}, 0, v{vM}
        v_and_b32 v{vT+1}, s{sMask}, v{vT}
        v_sub_f32 v{vT}, v{vT}, v{vT+1}
        v_and_b32 v{vT+2}, s{sMask}, v{vT}
        v_sub_f32 v{vT}, v{vT}, v{vT+2}
        v_lshrrev_b32 v{vT+1}, 16, v{vT+1}
        v_or_b32 v{vT+1}, v{vT+1}, v{vT+2}
        v_cmp_eq_u32 vcc, 0, v{vH}
        v_lshrrev_b32 v{vT}, 16, v{vT}
        s_nop 0
        v_cndmask_b32 v{QB+1}, v{vT}, v{vT+1}, vcc
        s_nop 1""")
    def qk(S):
        return [f"v_mfma_f32_32x32x16_bf16 {v(S,16)}, {v(KA,4)}, {v(QA,4)}, 0",
                f"v_mfma_f32_32x32x8_bf16 {v(S,16)}, {v(KB,2)}, {v(QB,2)}, {v(S,16)}"]
    def pv(Pp):
        return [f"v_mfma_f32_32x32x16_bf16 {v(O,16)}, {v(V0,4)}, {v(Pp,4)}, {v(O,16)}",
                f"v_mfma_f32_32x32x16_bf16 {v(O,16)}, {v(V1,4)}, {v(Pp+4,4)}, {v(O,16)}"]
    rdK = lambda i: [f"ds_read_b128 {v(KA,4)}, v{vKa} offset:{KV_TILE*i}", f"ds_read_b32 v{KB}, v{vKb} offset:{KV_TILE*i}"]
    rdV = lambda i: [f"ds_read_b128 {v(V0,4)}, v{vVa} offset:{KV_TILE*i}", f"ds_read_b128 {v(V1,4)}, v{vVa} offset:{KV_TILE*i+672}"]
    def maxtree(S, first):
        if first:
            k(f"v_max3_f32 v{vM}, v{S}, v{S+1}, v{S+2}\nv_max_f32 v{vM}, v{vM}, v{S+3}")
            rng = range(4, 16, 2)
        else:
            rng = range(0, 16, 2)
        for i in rng:
            k(f"v_max3_f32 v{vM}, v{vM}, v{S+i}, v{S+i+1}")
    def cross_half_max():
        k(f"v_mov_b32 v{vT}, v{vM}\ns_nop 1\nv_permlane32_swap_b32 v{vM}, v{vT}\nv_max_f32 v{vM}, v{vM}, v{vT}")

    if pre_publish:
        pre_publish()
    k("s_waitcnt vmcnt(3)")
    publish(1)
    spin(1)
    k.stamp(1)
    for t in range(2):
        for x in rdK(t):
            k(x)
        k("s_waitcnt lgkmcnt(0)")
        for x in qk(Sx[t]):
            k(x)
    for x in rdK(0):
        k(x)
    k("s_nop 7\ns_nop 1")
    maxtree(Sx[0], True)
    maxtree(Sx[1], False)
    cross_half_max()
    k(f"v_ceil_f32 v{vM}, v{vM}\nv_add_f32 v{vM}, {fl(MARGIN)}, v{vM}")
    set_m()
    k("s_waitcnt lgkmcnt(0)")
    for x in qk(Sx[0]):
        k(x)
    for x in rdK(1):
        k(x)
    k(f"ds_read_b32 v{vFl}, v{vFa}\nds_read_b32 v{vFl}, v{vFa}")
    k(f"s_mov_b32 s{sC}, 0\ns_mov_b32 s{sSlot}, 0\ns_mov_b64 vcc, 0\ns_nop 4")
    k.stamp(2)
    loop = k.lab("aloop"); rare = k.lab("rare")
    rl = [k.lab(f"rin{i}") for i in range(4)]
    rb = [k.lab(f"rback{i}") for i in range(4)]
    k.align(6)
    k.label(loop)
    for i in range(8):
        S, Sn, Pc, Pp = Sx[i % 2], Sx[1 - i % 2], P[i % 2], P[1 - i % 2]
        if i % 2 == 0:
            k(f"s_cbranch_vccnz {rl[i//2]}" if not os.environ.get("EXP") else "s_nop 0")
            k.label(rb[i // 2])
        if i == 6:
            l = k.lab("x"); d = k.lab("xd")
            k(f"s_waitcnt lgkmcnt(4)\nv_cmp_gt_u32 vcc, s{sT}, v{vFl}\ns_cbranch_vccz {d}")
            spin(f"s{sT}")
            k.label(d)
            nod = k.lab("nod")
            k(f"s_cmp_ge_u32 s{sC}, 6\ns_cbranch_scc1 {nod}")
            dma(f"s{sT+1}")
            k.label(nod)
            k(f"v_add_u32 v{vKa}, s{sDelta}, v{vKa}\nv_add_u32 v{vKb}, s{sDelta}, v{vKb}")
        e = [f"v_exp_f32 v{S+j}, v{S+j}" for j in range(16)]
        c = [f"v_cvt_pk_bf16_f32 v{Pc+j}, v{S+2*j}, v{S+2*j+1}" for j in range(8)]
        m = qk(Sn) + pv(Pp)
        rk = rdK((i + 2) % 8); rv = rdV(i)
        seq = ["s_waitcnt lgkmcnt(2)" if i != 2 else "s_waitcnt lgkmcnt(3)", e[0]]
        if i == 5:
            seq += [m[0], f"ds_read_b32 v{vFl}, v{vFa}", rk[0]]
        else:
            seq += [m[0], rk[0]]
        seq += e[1:5] + [c[0]]
        seq += [m[1], rk[1]] + e[5:7] + [c[1], c[2]]
        if i % 2 == 1:
            seq += [f"v_cmp_lt_f32 vcc, {fl(TRIG)}, v{O+12}"]
        seq += [e[7], e[8], "s_waitcnt lgkmcnt(2)"]
        seq += [m[2], rv[0]] + e[9:11] + [c[3]] + e[11:13] + [c[4]]
        seq += [m[3], rv[1]] + [e[13], c[5]] + e[14:16] + [c[6], c[7]]
        EXP = os.environ.get("EXP", "")
        if "nopv" in EXP: seq = [x for x in seq if x not in (m[2], m[3])]
        if "noqk" in EXP: seq = [x for x in seq if x not in (m[0], m[1])]
        if "noqb" in EXP: seq = [x for x in seq if x != m[1]]
        if "nolds" in EXP: seq = [(x if x not in rk + rv else f"ds_read_b32 v{vT}, v{vFa}") for x in seq]
        if "noexp" in EXP: seq = [x.replace("v_exp_f32", "v_rndne_f32") for x in seq]
        for x in seq:
            k(x)
        if i == 1:
            k(f"s_add_u32 s{sT}, s{sC}, 2\ns_waitcnt vmcnt(0)")
            publish(f"s{sT}")
            k(f"""s_mov_b32 s{sDelta}, {CH}
            s_cmp_eq_u32 s{sSlot}, {2*CH}
            s_cmov_b32 s{sDelta}, {hx(-2*CH)}
            s_sub_u32 s{sT+1}, s{sSlot}, {CH}
            s_cmp_eq_u32 s{sSlot}, 0
            s_cmov_b32 s{sT+1}, {2*CH}""")
    k(f"""v_add_u32 v{vVa}, s{sDelta}, v{vVa}
    s_add_u32 s{sSlot}, s{sSlot}, s{sDelta}
    s_add_u32 s{sC}, s{sC}, 1
    s_cmp_lt_u32 s{sC}, 8
    s_cbranch_scc1 {loop}""")
    k.stamp(3)
    k("s_waitcnt lgkmcnt(0)")
    for x in pv(P[1]):
        k(x)
    fin = k.lab("afin"); slow = k.lab("slow")
    k("s_nop 7\ns_nop 3")
    k(f"v_mov_b32 v{vT}, 0x207")
    k(f"s_mov_b64 s[{sEx}:{sEx+1}], 0")
    for i in list(range(13)):
        k(f"v_cmp_class_f32 vcc, v{O+i}, v{vT}\ns_or_b64 s[{sEx}:{sEx+1}], s[{sEx}:{sEx+1}], vcc")
    if not os.environ.get("EXP"): k(f"s_cbranch_scc1 {slow}")
    k.label(fin)
    k.srd(sQ, P_WS, SZ_OUF, WS_OUF)
    k(f"""v_rcp_f32 v{vT+4}, v{O+12}
    v_mul_u32_u24 v{vT}, 5, v{vN}
    v_add_u32 v{vT}, v{vT}, v{vH}
    v_lshrrev_b32 v{vT+1}, 1, v{vT}
    v_and_b32 v{vT}, 1, v{vT}
    v_lshlrev_b32 v{vT}, 3, v{vT}
    v_lshl_add_u32 v{vT}, v{vT+1}, 8, v{vT}
    s_lshr_b32 s{sT}, s{sTok}, 4
    s_mul_i32 s{sT}, s{sT}, {47*1024}
    s_and_b32 s{sT+1}, s{sTok}, 15
    s_lshl_b32 s{sT+1}, s{sT+1}, 4
    s_add_u32 s{sT}, s{sT}, s{sT+1}""")
    for i in range(12):
        k(f"v_mul_f32 v{O+i}, v{O+i}, v{vT+4}")
    for i in range(6):
        k(f"v_cvt_pk_bf16_f32 v{P[0]+i}, v{O+2*i}, v{O+2*i+1}")
    k(f"""buffer_store_dwordx2 {v(P[0],2)}, v{vT}, s[{sQ}:{sQ+3}], s{sT} offen
    buffer_store_dwordx2 {v(P[0]+2,2)}, v{vT}, s[{sQ}:{sQ+3}], s{sT} offen offset:256
    s_mov_b32 exec_hi, 0
    buffer_store_dwordx2 {v(P[0]+4,2)}, v{vT}, s[{sQ}:{sQ+3}], s{sT} offen offset:512""")
    k.endpgm(P_WS, slot)
    for i in range(4):
        k.label(rl[i])
        k(f"s_mov_b32 s{sRet}, {i}\ns_branch {rare}")
    k.label(rare)
    if STAMP: k("s_add_u32 s88, s88, 1")
    k("s_nop 7\ns_nop 3")
    k(f"""v_frexp_exp_i32_f32 v{vT+3}, v{O+12}
    v_add_u32 v{vT+3}, {int(MARGIN)}, v{vT+3}
    v_max_i32 v{vT+3}, 0, v{vT+3}
    v_cvt_f32_i32 v{vT+4}, v{vT+3}
    v_add_f32 v{vT+5}, v{vM}, v{vT+4}
    v_sub_f32 v{vT+4}, v{vT+5}, v{vM}
    v_mov_b32 v{vM}, v{vT+5}
    v_cvt_i32_f32 v{vT+3}, v{vT+4}
    v_sub_u32 v{vT+3}, 0, v{vT+3}""")
    for i in range(16):
        k(f"v_ldexp_f32 v{O+i}, v{O+i}, v{vT+3}")
    for i in range(16):
        k(f"v_sub_f32 v{Sx[0]+i}, v{Sx[0]+i}, v{vT+4}")
    for i in range(8):
        k(f"""v_lshlrev_b32 v{vT}, 16, v{P[1]+i}
        v_and_b32 v{vT+1}, s{sMask}, v{P[1]+i}
        v_ldexp_f32 v{vT}, v{vT}, v{vT+3}
        v_ldexp_f32 v{vT+1}, v{vT+1}, v{vT+3}
        v_cvt_pk_bf16_f32 v{P[1]+i}, v{vT}, v{vT+1}""")
    set_m()
    for i in range(3):
        k(f"s_cmp_eq_u32 s{sRet}, {i}\ns_cbranch_scc1 {rb[i]}")
    k(f"s_branch {rb[3]}")
    k.label(slow)
    p1 = k.lab("p1"); p2 = k.lab("p2")
    k(f"""v_mov_b32 v{QB+1}, 0
    v_mov_b32 v{vM}, 0xff7fffff
    v_lshlrev_b32 v{vKb}, 2, v{vL}
    v_min_u32 v{vVa}, 20, v{vN}
    v_lshlrev_b32 v{vVa}, 4, v{vVa}
    v_mul_u32_u24 v{vT}, 336, v{vH}
    v_add_u32 v{vVa}, v{vVa}, v{vT}
    s_mov_b32 s{sSo}, 0""")
    def gK():
        k(f"buffer_load_dwordx4 {v(KA,4)}, v{vD}, s[{sKV}:{sKV+3}], s{sSo} offen offset:{KV_KA}")
        k(f"buffer_load_dword v{KB}, v{vKb}, s[{sKV}:{sKV+3}], s{sSo} offen offset:{KV_KB}")
    k.label(p1)
    gK()
    k("s_waitcnt vmcnt(0)")
    for x in qk(Sx[0]):
        k(x)
    k("s_nop 7\ns_nop 3")
    maxtree(Sx[0], False)
    k(f"s_add_u32 s{sSo}, s{sSo}, {KV_TILE}\ns_cmp_lt_u32 s{sSo}, {SZ_KV}\ns_cbranch_scc1 {p1}")
    cross_half_max()
    set_m()
    for i in range(16):
        k(f"v_mov_b32 v{O+i}, 0")
    k(f"s_mov_b32 s{sSo}, 0")
    k.label(p2)
    gK()
    k(f"buffer_load_dwordx4 {v(V0,4)}, v{vVa}, s[{sKV}:{sKV+3}], s{sSo} offen offset:{KV_V}")
    k(f"buffer_load_dwordx4 {v(V1,4)}, v{vVa}, s[{sKV}:{sKV+3}], s{sSo} offen offset:{KV_V+672}")
    k("s_waitcnt vmcnt(0)")
    for x in qk(Sx[0]):
        k(x)
    k("s_nop 7\ns_nop 3")
    for j in range(16):
        k(f"v_exp_f32 v{Sx[0]+j}, v{Sx[0]+j}")
    k("s_nop 0")
    for j in range(8):
        k(f"v_cvt_pk_bf16_f32 v{P[0]+j}, v{Sx[0]+2*j}, v{Sx[0]+2*j+1}")
    k("s_nop 1")
    for x in pv(P[0]):
        k(x)
    k(f"s_add_u32 s{sSo}, s{sSo}, {KV_TILE}\ns_cmp_lt_u32 s{sSo}, {SZ_KV}\ns_cbranch_scc1 {p2}")
    k(f"s_nop 7\ns_nop 3\ns_branch {fin}")
    return a.n


def gen_k2a():
    k = Kern("k2_attn_kernel", 256, 512, ATT_LDS + 256, 104)
    end = k.lab("end")
    k(f"s_cmp_ge_u32 s2, 256\ns_cbranch_scc1 {end}")
    k(f"s_load_dwordx2 s[4:5], s[0:1], {KA_WS}")
    k(f"""v_lshrrev_b32 v2, 6, v0
    v_and_b32 v1, 63, v0
    v_readfirstlane_b32 s3, v2
    v_lshlrev_b32 v2, 2, v1
    v_add_u32 v2, {ATT_LDS}, v2
    v_mov_b32 v3, 0
    ds_write_b32 v2, v3
    s_lshl_b32 s6, s2, 3
    s_add_u32 s6, s6, s3
    s_waitcnt lgkmcnt(0)""")
    n = emit_attn(k, 6, 3, 1, 4, 8, 4, 0, ATT_LDS, pre_publish=lambda: k("s_barrier"))
    assert n <= 104, n
    k.label(end)
    k("s_endpgm")
    return k
```

```python
import struct

S, D, H, DH, F, FH = 2048, 640, 32, 20, 1728, 864
WS_Q   = 0x0
WS_Z   = 0x280000
WS_KV  = 0x940000
KV_TILE = 2624
KV_KA, KV_KB, KV_V = 0, 1024, 1280
WS_Z2F = 0x970000
WS_OUF = 0xCF0000
WS_WF  = 0x12D0000
WS_FLAG = 0x1500000
WS_STAMP = 0x1510000
import os
STAMP = os.environ.get('STAMP', '0') == '1'
SZ_Q, SZ_Z, SZ_KV = 2048*1280, 2048*3456, 64*KV_TILE
SZ_Z2F, SZ_OUF, SZ_WF = 27*128*1024, 128*47*1024, 8*47*5*1024
KA_X, KA_WQ, KA_WK, KA_WV, KA_WO, KA_BX, KA_WIN, KA_WSP, KA_BSP, KA_WOUT, KA_OUT, KA_DBG, KA_WS = [8*i for i in range(13)]

def f2u(x):
    return struct.unpack("<I", struct.pack("<f", x))[0]
def hx(x):
    return "0x%08x" % (x & 0xffffffff)
def fl(x):
    return hx(f2u(x))

def v(i, n=1):
    return f"v{i}" if n == 1 else f"v[{i}:{i+n-1}]"
def s(i, n=1):
    return f"s{i}" if n == 1 else f"s[{i}:{i+n-1}]"

class Kern:
    def __init__(self, name, grid, block, lds, vgprs, sgprs=100):
        self.name, self.grid, self.block, self.lds, self.vgprs, self.sgprs = name, grid, block, lds, vgprs, sgprs
        self.L = []
        self.nlab = 0
    def __call__(self, txt):
        for l in txt.strip("\n").split("\n"):
            l = l.strip()
            if l:
                self.L.append(("" if l.endswith(":") else "    ") + l)
    def c(self, txt):
        self.L.append("    ; " + txt)
    def lab(self, base):
        self.nlab += 1
        return f"L_{self.name[:-7]}_{base}_{self.nlab}"
    def label(self, l):
        self.L.append(l + ":")
    def align(self, n=6):
        self.L.append(f"    .p2align {n}")
    def srd(self, d, base, size, off=0):
        if off:
            self(f"s_add_u32 s{d}, s{base}, {hx(off)}\ns_addc_u32 s{d+1}, s{base+1}, 0")
        else:
            self(f"s_mov_b32 s{d}, s{base}\ns_mov_b32 s{d+1}, s{base+1}")
        self(f"s_mov_b32 s{d+2}, {hx(size)}\ns_mov_b32 s{d+3}, 0x00020000")
    def stamp(self, i):
        if STAMP:
            self(f"s_memtime s[{80+2*i}:{81+2*i}]")
    def stamp_rt(self, i):
        if STAMP:
            self(f"s_memrealtime s[{80+2*i}:{81+2*i}]")
    def endpgm(self, P_WS=None, slot=0):
        if STAMP and P_WS is not None:
            self("s_mov_b64 exec, -1")
            self("s_memtime s[92:93]\ns_memrealtime s[94:95]")
            self(f"s_add_u32 s76, s{P_WS}, {hx(WS_STAMP + slot*0x20000)}\ns_addc_u32 s77, s{P_WS+1}, 0\ns_mov_b32 s78, 0x20000\ns_mov_b32 s79, 0x00020000")
            self("s_waitcnt lgkmcnt(0)")
            self(f"v_lshrrev_b32 v0, 6, v0\ns_mul_i32 s75, s2, {self.block//64}\nv_add_u32 v0, s75, v0\nv_lshlrev_b32 v0, 5, v0")
            for i in range(8):
                self(f"v_mov_b32 v{4+i}, s{80+2*i}")
            self("s_mov_b64 exec, 1")
            self("buffer_store_dwordx4 v[4:7], v0, s[76:79], 0 offen\nbuffer_store_dwordx4 v[8:11], v0, s[76:79], 0 offen offset:16")
        self("s_endpgm")
    def launch_line(self):
        return f"; @launch kernel={self.name} grid=({self.grid},1,1) block=({self.block},1,1) lds={self.lds}"
    def text(self):
        t = f".globl {self.name}\n.p2align 8\n.type {self.name},@function\n{self.name}:\n"
        return t + "\n".join(self.L) + "\n"
    def desc(self):
        acc = (self.vgprs + 3) // 4 * 4
        if acc > 256:
            acc = 256
        return f""".p2align 6
.amdhsa_kernel {self.name}
  .amdhsa_next_free_vgpr {self.vgprs}
  .amdhsa_next_free_sgpr {self.sgprs}
  .amdhsa_accum_offset {acc}
  .amdhsa_group_segment_fixed_size 0
  .amdhsa_kernarg_size 104
  .amdhsa_user_sgpr_count 2
  .amdhsa_user_sgpr_kernarg_segment_ptr 1
  .amdhsa_system_sgpr_workgroup_id_x 1
  .amdhsa_float_denorm_mode_32 3
.end_amdhsa_kernel
"""

class Alloc:
    def __init__(self, start=0):
        self.n = start
    def __call__(self, cnt=1, align=1):
        if cnt >= 2 and align == 1:
            align = 2
        self.n = (self.n + align - 1) // align * align
        r = self.n
        self.n += cnt
        return r

def interleave(prim, fill):
    out = []
    n, m = len(prim), len(fill)
    k = 0
    for i, p in enumerate(prim):
        out.append(p)
        e = (i + 1) * m // n
        out += fill[k:e]
        k = e
    return out
```

```python
from common import *
import math

QSCALE = math.log2(math.e) / math.sqrt(20.0)
GC0 = -2.0 * math.sqrt(2.0 / math.pi) * math.log2(math.e)

STG = 36864
NSTG = 4
L_CS = NSTG * STG
L_ST = L_CS + 5120
K1_LDS = L_ST + 1024
KV_WK, KV_WV = 65536, 65536 + 25600

def gen_k1(rot=False, stc="", pf=False):
    k = Kern("k1_proj_kernel", 256, 768, K1_LDS, 128)
    sX, sW, sO, sW2 = 8, 12, 16, 20
    sRB, sCG, sWid, sTW, sST, sCO = 24, 25, 26, 27, 28, 29
    sI, sKS, sM0, sSoA, sSoB, sBaseA, sBaseB, sStepB, sDelta, sT0, sT1, sMask = range(30, 42)
    P_X, P_WQ, P_WK, P_WV, P_WIN, P_WSP, P_WS = 44, 46, 48, 50, 52, 54, 56
    a = Alloc(1)
    vL, vN, vH = a(), a(), a()
    vXa = a(4, 1); vWa = a(4, 1)
    vT = a(8, 4)
    vOnes = a(2, 2)
    vSx = a(4, 2)
    vX = [a(4, 4), a(4, 4)]
    vW = [[a(4, 4) for u in range(3)] for b in range(2)]
    vAcc = [a(16, 4) for u in range(3)]
    vCs = [a(4, 4) for u in range(3)]
    assert a.n <= 128, a.n
    vD = vX[0]

    end = k.lab("end"); kv = k.lab("kv"); ldr = k.lab("ldr")
    k(f"s_cmp_ge_u32 s2, 256\ns_cbranch_scc1 {end}")
    k.stamp(0); k.stamp_rt(5)
    k(f"s_load_dwordx4 s[{P_X}:{P_X+3}], s[0:1], {KA_X}")
    k(f"s_load_dwordx4 s[{P_WK}:{P_WK+3}], s[0:1], {KA_WK}")
    k(f"s_load_dwordx4 s[{P_WIN}:{P_WIN+3}], s[0:1], {KA_WIN}")
    k(f"s_load_dwordx2 s[{P_WS}:{P_WS+1}], s[0:1], {KA_WS}")
    k(f"""v_lshrrev_b32 v{vT}, 6, v0
    v_and_b32 v{vL}, 63, v0
    v_readfirstlane_b32 s{sWid}, v{vT}
    s_and_b32 s{sT0}, s2, 7
    s_lshr_b32 s{sT1}, s2, 3
    s_lshr_b32 s{sRB}, s{sT0}, 2
    s_lshl_b32 s{sRB}, s{sRB}, 3
    s_and_b32 s{sCG}, s{sT1}, 7
    s_add_u32 s{sRB}, s{sRB}, s{sCG}
    s_and_b32 s{sCG}, s{sT0}, 3
    s_lshl_b32 s{sCG}, s{sCG}, 2
    s_lshr_b32 s{sT1}, s{sT1}, 3
    s_add_u32 s{sCG}, s{sCG}, s{sT1}
    s_and_b32 s{sTW}, s{sWid}, 3
    s_mov_b32 s{sST}, 3456
    s_mul_i32 s{sCO}, s{sCG}, 320
    s_sub_u32 s{sT0}, s{sCO}, 1280
    s_cmp_lt_u32 s{sCG}, 4
    s_cmov_b32 s{sST}, 1280
    s_cselect_b32 s{sCO}, s{sCO}, s{sT0}""")
    if rot:
        k(f"""s_mul_i32 s{sT0}, s2, 6554
        s_lshr_b32 s{sT0}, s{sT0}, 16
        s_mul_i32 s{sT0}, s{sT0}, 10
        s_sub_u32 s{sKS}, s2, s{sT0}""")
    else:
        k(f"s_mov_b32 s{sKS}, 0")
    k(f"s_cmp_ge_u32 s{sWid}, 8\ns_cbranch_scc1 {ldr}")

    k(f"""v_and_b32 v{vN}, 31, v0
    v_bfe_u32 v{vH}, v0, 5, 1
    s_mov_b32 s{sMask}, 0xffff0000
    v_mov_b32 v{vOnes}, 0x3f803f80
    v_mov_b32 v{vOnes+1}, 0x3f803f80""")
    for u in range(3):
        for i in range(16):
            k(f"v_mov_b32 v{vAcc[u]+i}, 0")
        for i in range(4):
            k(f"v_mov_b32 v{vCs[u]+i}, 0")
    for i in range(4):
        k(f"v_mov_b32 v{vSx+i}, 0")
    k(f"""v_bfe_u32 v{vT}, v{vN}, 1, 3
    v_xor_b32 v{vT}, v{vT}, v{vH}
    s_lshl_b32 s{sT0}, s{sTW}, 12
    v_lshlrev_b32 v{vT+1}, 7, v{vN}
    v_add_u32 v{vT+1}, s{sT0}, v{vT+1}""")
    for q in range(4):
        k(f"""s_add_u32 s{sT0}, s{sTW}, {q}
        s_and_b32 s{sT0}, s{sT0}, 3
        s_lshl_b32 s{sT0}, s{sT0}, 1
        v_xor_b32 v{vT+2}, s{sT0}, v{vT}
        v_lshl_add_u32 v{vXa+q}, v{vT+2}, 4, v{vT+1}""")
    k("s_waitcnt lgkmcnt(0)")
    k(f"s_cmp_eq_u32 s{sCG}, 15\ns_cbranch_scc1 {kv}")

    def reads(q, b, nu, wrow):
        r = [f"ds_read_b128 {v(vX[b],4)}, v{vXa+q}"]
        for u in range(nu):
            r.append(f"ds_read_b64_tr_b16 {v(vW[b][u],2)}, v{vWa+q} offset:{u*64}")
            r.append(f"ds_read_b64_tr_b16 {v(vW[b][u]+2,2)}, v{vWa+q} offset:{u*64+4*wrow}")
        return r

    def xstats(b):
        r = []
        for i in range(4):
            x = vX[b] + i
            t0, t1 = vT + 2*(i % 2), vT + 2*(i % 2) + 1
            r += [f"v_lshlrev_b32 v{t0}, 16, v{x}", f"v_and_b32 v{t1}, s{sMask}, v{x}",
                  f"v_add_f32 v{vSx}, v{vSx}, v{t0}", f"v_add_f32 v{vSx+1}, v{vSx+1}, v{t1}",
                  f"v_fmac_f32 v{vSx+2}, v{t0}, v{t0}", f"v_fmac_f32 v{vSx+3}, v{t1}, v{t1}"]
        return r

    def mainloop(role, nu, stgbytes, wrow, kvpath=False, swap=False):
        loop = k.lab("loop")
        k(f"s_mov_b32 s{sI}, 0")
        if role == 1:
            k("s_setprio 1")
        k.stamp(1)
        k("s_barrier")
        k.stamp(2)
        for r in reads(0, 0, nu, wrow):
            k(r)
        k.align(3)
        k.label(loop)
        k(f"s_and_b32 s{sT0}, s{sI}, 3\ns_mov_b32 s{sDelta}, {stgbytes}\ns_cmp_eq_u32 s{sT0}, 3\ns_cmov_b32 s{sDelta}, {hx(-3*stgbytes)}")
        sDW = sDelta
        if kvpath:
            sDW = sM0
            k(f"s_add_u32 s{sKS}, s{sKS}, 1\ns_mov_b32 s{sDW}, {64*wrow}\ns_cmp_eq_u32 s{sKS}, 10\ns_cmov_b32 s{sDW}, {hx(-9*64*wrow)}\ns_cmov_b32 s{sKS}, 0")
        for q in range(4):
            b = q % 2
            mf = []
            for u in range(nu):
                A, B = (vX[b], vW[b][u]) if swap else (vW[b][u], vX[b])
                mf.append(f"v_mfma_f32_32x32x16_bf16 {v(vAcc[u],16)}, {v(A,4)}, {v(B,4)}, {v(vAcc[u],16)}")
            small = []
            if q == 0:
                for hh in range(2):
                    for u in range(nu):
                        small.append(f"v_mfma_f32_4x4x4_16b_bf16 {v(vCs[u],4)}, {v(vOnes,2)}, {v(vW[b][u]+2*hh,2)}, {v(vCs[u],4)}")
                    if nu < 3 and hh == 0:
                        small.append(f"s_nop {2-nu}")
            st = xstats(b) if role == 1 else []
            adv = [f"v_add_u32 v{vXa+q}, s{sDelta}, v{vXa+q}", f"v_add_u32 v{vWa+q}, s{sDW}, v{vWa+q}"]
            k("s_waitcnt lgkmcnt(0)")
            if q == 3:
                k("s_barrier")
            for x in reads((q + 1) % 4, 1 - b, nu, wrow):
                k(x)
            for x in interleave(mf, adv + st) + small:
                k(x)
        k(f"s_add_u32 s{sI}, s{sI}, 1\ns_cmp_lt_u32 s{sI}, 10\ns_cbranch_scc1 {loop}")
        k.stamp(3)

    def w_read_addr(base, wrow, role_off):
        k(f"""v_bfe_u32 v{vT}, v{vL}, 2, 2
        v_lshl_add_u32 v{vT}, v{vH}, 3, v{vT}
        v_mul_u32_u24 v{vT}, {wrow}, v{vT}
        v_bfe_u32 v{vT+1}, v{vL}, 4, 1
        v_lshl_add_u32 v{vT}, v{vT+1}, 5, v{vT}
        v_and_b32 v{vT+1}, 3, v{vL}
        v_lshl_add_u32 v{vT}, v{vT+1}, 3, v{vT}""")
        for q in range(4):
            k(f"""s_add_u32 s{sT0}, s{sTW}, {q}
            s_and_b32 s{sT0}, s{sT0}, 3
            s_mul_i32 s{sT0}, s{sT0}, {16*wrow}
            s_add_u32 s{sT0}, s{sT0}, {base+role_off}
            v_add_u32 v{vWa+q}, s{sT0}, v{vT}""")

    vMu, vR = vSx, vSx + 1
    def ln_fold(role, nu, u0, swap=False):
        k(f"""v_lshlrev_b32 v{vT+4}, 5, v{vN}
        v_lshl_add_u32 v{vT+4}, v{vH}, 4, v{vT+4}
        v_add_u32 v{vT+4}, {L_CS + u0*1024}, v{vT+4}
        s_lshl_b32 s{sT0}, s{sTW}, 2
        v_add_u32 v{vT+5}, s{sT0}, v{vT+4}
        s_lshl_b32 s{sT0}, s{sTW}, 8
        s_add_u32 s{sT0}, s{sT0}, {L_ST}
        v_lshl_add_u32 v{vT+6}, v{vN}, 3, s{sT0}""")
        for u in range(nu):
            k(f"ds_write_b32 v{vT+5}, v{vCs[u]} offset:{u*1024}")
        if role == 1:
            k(f"""v_add_f32 v{vSx}, v{vSx}, v{vSx+1}
            v_add_f32 v{vSx+2}, v{vSx+2}, v{vSx+3}
            v_mov_b32 v{vSx+1}, v{vSx}
            v_mov_b32 v{vSx+3}, v{vSx+2}
            s_nop 1
            v_permlane32_swap_b32 v{vSx}, v{vSx+1}
            v_permlane32_swap_b32 v{vSx+2}, v{vSx+3}
            v_add_f32 v{vSx}, v{vSx}, v{vSx+1}
            v_add_f32 v{vSx+2}, v{vSx+2}, v{vSx+3}
            v_mul_f32 v{vSx}, {fl(1.0/640)}, v{vSx}
            v_mul_f32 v{vSx+2}, {fl(1.0/640)}, v{vSx+2}
            v_fma_f32 v{vSx+2}, -v{vSx}, v{vSx}, v{vSx+2}
            v_max_f32 v{vSx+2}, 0, v{vSx+2}
            v_add_f32 v{vSx+2}, {fl(1e-5)}, v{vSx+2}
            v_rsq_f32 v{vSx+1}, v{vSx+2}
            s_nop 0
            ds_write_b64 v{vT+6}, {v(vSx,2)}""")
        k("s_waitcnt lgkmcnt(0)\ns_barrier")
        k.stamp(4)
        if role == 0:
            k(f"ds_read_b64 {v(vMu,2)}, v{vT+6}")
        for u in range(nu):
            k(f"ds_read_b128 {v(vCs[u],4)}, v{vT+4} offset:{u*1024}")
        k(f"s_waitcnt lgkmcnt({nu})")
        mo = vT
        k(f"""v_and_b32 v{vT+2}, s{sMask}, v{vMu}
        v_sub_f32 v{vT+3}, v{vMu}, v{vT+2}
        v_cvt_pk_bf16_f32 v{mo}, -v{vT+2}, -v{vT+3}
        v_cvt_pk_bf16_f32 v{mo+1}, -v{vT+2}, 0
        s_waitcnt lgkmcnt(0)""")
        for u in range(nu):
            c = vCs[u]
            k(f"""v_add_f32 v{c}, v{c}, v{c+1}
            v_add_f32 v{c+2}, v{c+2}, v{c+3}
            v_add_f32 v{c+2}, v{c}, v{c+2}
            v_and_b32 v{c+3}, s{sMask}, v{c+2}
            v_sub_f32 v{c+2}, v{c+2}, v{c+3}
            v_cvt_pk_bf16_f32 v{c}, v{c+3}, v{c+3}
            v_cvt_pk_bf16_f32 v{c+1}, v{c+2}, 0""")
        k("s_nop 1")
        for u in range(nu):
            A, B = (mo, vCs[u]) if swap else (vCs[u], mo)
            k(f"v_mfma_f32_32x32x8_bf16 {v(vAcc[u],16)}, {v(A,2)}, {v(B,2)}, {v(vAcc[u],16)}")

    isw = k.lab("isw"); wdone = k.lab("wdone"); role1 = k.lab("role1")
    k(f"s_cmp_ge_u32 s{sCG}, 4\ns_cbranch_scc1 {isw}")
    k.srd(sO, P_WS, SZ_Q, WS_Q)
    k(f"s_branch {wdone}")
    k.label(isw)
    k.srd(sO, P_WS, SZ_Z, WS_Z)
    k.label(wdone)
    k(f"s_cmp_ge_u32 s{sWid}, 4\ns_cbranch_scc1 {role1}")

    def epilogue_main(role, nu):
        u0 = 3 * role
        vA, vB, vRi = vT + 2, vT + 4, vT + 6
        vOut = vXa
        tmp = vX[0]
        pks = [vW[0][0], vW[1][0]]
        isq = k.lab("isq"); fin = k.lab("fin")
        k(f"""s_lshl_b32 s{sT0}, s{sRB}, 7
        s_lshl_b32 s{sT1}, s{sTW}, 5
        s_add_u32 s{sT0}, s{sT0}, s{sT1}
        v_add_u32 v{vOut}, s{sT0}, v{vN}
        v_mul_lo_u32 v{vOut}, v{vOut}, s{sST}
        s_add_u32 s{sT0}, s{sCO}, {u0*64}
        v_lshl_add_u32 v{vOut+1}, v{vH}, 4, s{sT0}
        v_add_u32 v{vOut}, v{vOut}, v{vOut+1}""")
        def store_unit(u):
            pk = pks[u % 2]
            k("s_nop 0")
            for jp in range(2):
                b0 = pk + 4*jp
                k(f"v_permlane32_swap_b32 v{b0}, v{b0+2}\nv_permlane32_swap_b32 v{b0+1}, v{b0+3}")
            for jp in range(2):
                k(f"buffer_store_dwordx4 {v(pk+4*jp,4)}, v{vOut}, s[{sO}:{sO+3}], 0 offen offset:{u*64+jp*32} {stc}")
        k(f"s_cmp_lt_u32 s{sCG}, 4\ns_cbranch_scc1 {isq}")
        k(f"""v_mul_f32 v{vA}, {fl(GC0)}, v{vR}
        v_mul_f32 v{vB}, v{vR}, v{vR}
        v_rcp_f32 v{vRi}, v{vR}
        v_mul_f32 v{vB}, v{vB}, v{vA}
        v_mul_f32 v{vB}, {fl(0.044715)}, v{vB}""")
        for u in range(nu):
            if role == 1 and u == 1:
                k(f"s_cmp_eq_u32 s{sCG}, 14\ns_cbranch_scc1 {fin}")
            acc = vAcc[u]; pk = pks[u % 2]
            for g in range(2):
                t = acc + 8*g
                for i in range(0, 8, 2):
                    k(f"v_pk_mul_f32 {v(tmp+i,2)}, {v(t+i,2)}, {v(t+i,2)}")
                for i in range(0, 8, 2):
                    k(f"v_pk_fma_f32 {v(tmp+i,2)}, {v(tmp+i,2)}, {v(vB,2)}, {v(vA,2)} op_sel_hi:[1,0,0]")
                for i in range(0, 8, 2):
                    k(f"v_pk_mul_f32 {v(tmp+i,2)}, {v(tmp+i,2)}, {v(t+i,2)}")
                for i in range(8):
                    k(f"v_exp_f32 v{tmp+i}, v{tmp+i}")
                for i in range(0, 8, 2):
                    k(f"v_pk_fma_f32 {v(tmp+i,2)}, {v(tmp+i,2)}, {v(vRi,2)}, {v(vRi,2)} op_sel_hi:[1,0,0]")
                for i in range(8):
                    k(f"v_rcp_f32 v{tmp+i}, v{tmp+i}")
                for i in range(0, 8, 2):
                    k(f"v_pk_mul_f32 {v(tmp+i,2)}, {v(tmp+i,2)}, {v(t+i,2)}")
                for i in range(0, 8, 2):
                    k(f"v_cvt_pk_bf16_f32 v{pk+4*g+i//2}, v{tmp+i}, v{tmp+i+1}")
            store_unit(u)
        k(f"s_branch {fin}")
        k.label(isq)
        k(f"v_mul_f32 v{vA}, {fl(QSCALE)}, v{vR}\ns_nop 1")
        for u in range(nu):
            acc = vAcc[u]; pk = pks[u % 2]
            for i in range(0, 16, 2):
                k(f"v_pk_mul_f32 {v(acc+i,2)}, {v(acc+i,2)}, {v(vA,2)} op_sel_hi:[1,0]")
            for i in range(0, 16, 2):
                k(f"v_cvt_pk_bf16_f32 v{pk+i//2}, v{acc+i}, v{acc+i+1}")
            store_unit(u)
        k.label(fin)
        k.endpgm(P_WS, 0)

    w_read_addr(16384, 320, 0)
    mainloop(0, 3, STG, 320)
    ln_fold(0, 3, 0)
    epilogue_main(0, 3)
    k.label(role1)
    w_read_addr(16384, 320, 192)
    mainloop(1, 2, STG, 320)
    ln_fold(1, 2, 3)
    epilogue_main(1, 2)

    k.label(kv)
    kv1 = k.lab("kv1")
    k.srd(sO, P_WS, SZ_FLAG, WS_FLAG)
    k(f"v_lshlrev_b32 v{vT}, 4, v0\nbuffer_store_dwordx4 {v(vCs[2],4)}, v{vT}, s[{sO}:{sO+3}], 0 offen")
    k.srd(sO, P_WS, SZ_KV, WS_KV)
    k(f"""s_lshl_b32 s{sT1}, s{sRB}, 2
    s_add_u32 s{sT1}, s{sT1}, s{sTW}
    s_mul_i32 s{sT1}, s{sT1}, {KV_TILE}""")
    k(f"s_cmp_ge_u32 s{sWid}, 4\ns_cbranch_scc1 {kv1}")
    def kv_waddr(base):
        w_read_addr(base, 40, 0)
        k(f"s_mul_i32 s{sT0}, s{sKS}, {64*40}")
        for q in range(4):
            k(f"v_add_u32 v{vWa+q}, s{sT0}, v{vWa+q}")
    kv_waddr(KV_WK)
    mainloop(0, 1, 16384, 40, kvpath=True)
    ln_fold(0, 1, 0)
    pk = vW[1][1]; acc = vAcc[0]
    k(f"v_lshlrev_b32 v{vT+2}, 4, v{vL}\nv_lshlrev_b32 v{vT+3}, 2, v{vN}\ns_nop 7\ns_nop 1")
    for i in range(12):
        k(f"v_mul_f32 v{acc+i}, v{vR}, v{acc+i}")
    for i in range(0, 12, 2):
        k(f"v_cvt_pk_bf16_f32 v{pk+i//2}, v{acc+i}, v{acc+i+1}")
    k(f"""v_permlane32_swap_b32 v{pk}, v{pk+2}
    v_permlane32_swap_b32 v{pk+1}, v{pk+3}
    buffer_store_dwordx4 {v(pk,4)}, v{vT+2}, s[{sO}:{sO+3}], s{sT1} offen offset:{KV_KA}
    s_mov_b64 exec, 0xffffffff
    buffer_store_dword v{pk+4}, v{vT+3}, s[{sO}:{sO+3}], s{sT1} offen offset:{KV_KB}
    buffer_store_dword v{pk+5}, v{vT+3}, s[{sO}:{sO+3}], s{sT1} offen offset:{KV_KB+128}
    s_endpgm""")
    k.label(kv1)
    kv_waddr(KV_WV)
    mainloop(1, 1, 16384, 40, kvpath=True, swap=True)
    ln_fold(1, 1, 1, swap=True)
    stregs = [vW[0][0], vW[0][1], vW[0][2], vW[1][0], vW[1][1], vW[1][2], vX[0], vX[1]]
    k(f"""s_lshl_b32 s{sT0}, s{sTW}, 8
    s_add_u32 s{sT0}, s{sT0}, {L_ST}
    v_lshl_add_u32 v{vT+2}, v{vH}, 5, s{sT0}""")
    for j in range(4):
        for hh in range(2):
            k(f"ds_read_b128 {v(stregs[2*j+hh],4)}, v{vT+2} offset:{j*64+hh*16}")
    k(f"""v_mul_u32_u24 v{vT+3}, 336, v{vH}
    v_lshl_add_u32 v{vT+3}, v{vN}, 4, v{vT+3}
    v_cmp_eq_u32 vcc, 20, v{vN}
    s_waitcnt lgkmcnt(0)""")
    pk = vAcc[1]
    for i in range(16):
        r = stregs[i // 2] + 2 * (i % 2)
        k(f"v_mul_f32 v{acc+i}, v{r+1}, v{acc+i}")
    for i in range(0, 16, 2):
        k(f"v_cvt_pk_bf16_f32 v{pk+i//2}, v{acc+i}, v{acc+i+1}")
    for i in range(8):
        k(f"v_cndmask_b32 v{pk+i}, v{pk+i}, v{vOnes}, vcc")
    k(f"""s_mov_b32 exec_lo, 0x1fffff
    s_mov_b32 exec_hi, 0x1fffff
    buffer_store_dwordx4 {v(pk,4)}, v{vT+3}, s[{sO}:{sO+3}], s{sT1} offen offset:{KV_V}
    buffer_store_dwordx4 {v(pk+4,4)}, v{vT+3}, s[{sO}:{sO+3}], s{sT1} offen offset:{KV_V+672}
    s_endpgm""")

    k.label(ldr)
    lkv = k.lab("lkv"); lw = k.lab("lw"); lwd = k.lab("lwd")
    k("s_setprio 3")
    k(f"v_lshrrev_b32 v{vT}, 3, v{vL}\nv_and_b32 v{vT+1}, 7, v{vL}")
    for p in range(4):
        k(f"""v_add_u32 v{vT+2}, {8*p}, v{vT}
        v_bfe_u32 v{vT+3}, v{vT+2}, 1, 3
        v_xor_b32 v{vT+3}, v{vT+3}, v{vT+1}
        v_mul_u32_u24 v{vT+2}, 1280, v{vT+2}
        v_lshl_add_u32 v{vD+p}, v{vT+3}, 4, v{vT+2}""")
        if p:
            k(f"v_subrev_u32 v{vD+p}, {1024*p}, v{vD+p}")
    k(f"""s_lshl_b32 s{sBaseA}, s{sRB}, 2
    s_add_u32 s{sBaseA}, s{sBaseA}, s{sTW}
    s_mul_i32 s{sBaseA}, s{sBaseA}, {32*1280}
    s_lshl_b32 s{sM0}, s{sTW}, 12
    s_waitcnt lgkmcnt(0)""")
    k.srd(sX, P_X, SZ_Q)
    def dma_a(buf):
        k(f"s_lshl_b32 s{sSoA}, s{sKS}, 7\ns_add_u32 m0, s{sM0}, {buf}\ns_add_u32 s{sSoA}, s{sSoA}, s{sBaseA}")
        for p in range(4):
            k(f"buffer_load_dwordx4 v{vD+p}, s[{sX}:{sX+3}], s{sSoA} offen offset:{1024*p} lds")
    def dma_b(buf):
        k(f"s_mul_i32 s{sSoB}, s{sKS}, s{sStepB}\ns_add_u32 m0, s{sT1}, {buf}\ns_add_u32 s{sSoB}, s{sSoB}, s{sBaseB}")
        for p in range(4):
            k(f"buffer_load_dwordx4 v{vD+4+p}, s[{sW}:{sW+3}], s{sSoB} offen offset:{1024*p} lds")
        k(f"s_add_u32 m0, m0, 4096\ns_nop 0")
        k(f"buffer_load_dwordx4 v{vD+8}, s[{sW}:{sW+3}], s{sSoB} offen lds")
    def adv():
        k(f"s_add_u32 s{sKS}, s{sKS}, 1\ns_cmp_eq_u32 s{sKS}, 10\ns_cmov_b32 s{sKS}, 0")
    def prefetch_wsp():
        if pf:
            k.srd(sW, P_WSP, 2048*4096)
            k(f"""s_and_b32 s{sT0}, s2, 7
            s_lshr_b32 s{sT0}, s{sT0}, 1
            s_lshl_b32 s{sT0}, s{sT0}, 21
            s_lshr_b32 s{sT1}, s2, 3
            s_lshl_b32 s{sT1}, s{sT1}, 2
            s_add_u32 s{sT1}, s{sT1}, s{sTW}
            s_lshl_b32 s{sT1}, s{sT1}, 14
            s_add_u32 s{sT0}, s{sT0}, s{sT1}
            s_add_u32 s{sT1}, s{sT0}, 8192
            v_lshlrev_b32 v{vT}, 7, v{vL}
            buffer_load_dword v{vT+1}, v{vT}, s[{sW}:{sW+3}], s{sT0} offen
            buffer_load_dword v{vT+2}, v{vT}, s[{sW}:{sW+3}], s{sT1} offen""")
    def loader(stg, with_b, first_a_done=False):
        na, nb = 4, (5 if with_b else 0)
        full = lambda st: [(st, "a"), (st, "b")]
        plan = [full(0) + full(1), full(2) + [(3, "a")], [(3, "b")] + full(4)] + [full(i + 3) for i in range(2, 7)] + [[]] * 4
        issued = []
        for i in range(-1, 11):
            if i >= 0:
                if i < 10:
                    last = max(j for j, (st, p) in enumerate(issued) if st == i)
                    newer = sum(na if p == "a" else nb for st, p in issued[last + 1:])
                    k(f"s_waitcnt vmcnt({newer})")
                if i == 9:
                    prefetch_wsp()
                k("s_barrier")
            for st, p in plan[i + 1]:
                if p == "a":
                    if not (st == 0 and first_a_done):
                        dma_a((st % NSTG) * stg)
                else:
                    if with_b:
                        dma_b((st % NSTG) * stg)
                    adv()
                issued.append((st, p))
        k("s_barrier\ns_endpgm")
    k(f"s_cmp_eq_u32 s{sCG}, 15\ns_cbranch_scc1 {lkv}")
    dma_a(0)
    k(f"s_cmp_ge_u32 s{sCG}, 4\ns_cbranch_scc1 {lw}")
    k.srd(sW, P_WQ, 640*1280)
    k(f"s_branch {lwd}")
    k.label(lw)
    k.srd(sW, P_WIN, 640*3456)
    k.label(lwd)
    for j in range(5):
        k(f"""v_add_u32 v{vT}, {64*j}, v{vL}
        v_mul_u32_u24 v{vT+1}, 3277, v{vT}
        v_lshrrev_b32 v{vT+1}, 16, v{vT+1}
        v_mul_u32_u24 v{vT+2}, 20, v{vT+1}
        v_sub_u32 v{vT+2}, v{vT}, v{vT+2}
        v_mul_lo_u32 v{vT+1}, v{vT+1}, s{sST}
        v_lshl_add_u32 v{vD+4+j}, v{vT+2}, 4, v{vT+1}""")
        if 0 < j < 4:
            k(f"v_subrev_u32 v{vD+4+j}, {1024*j}, v{vD+4+j}")
    k(f"""s_lshl_b32 s{sStepB}, s{sST}, 6
    s_lshl_b32 s{sBaseB}, s{sST}, 4
    s_mul_i32 s{sBaseB}, s{sBaseB}, s{sTW}
    s_add_u32 s{sBaseB}, s{sBaseB}, s{sCO}
    s_mul_i32 s{sT1}, s{sTW}, 5120
    s_add_u32 s{sT1}, s{sT1}, 16384""")
    loader(STG, True, first_a_done=True)
    k.label(lkv)
    k.srd(sW, P_WK, 25600)
    k.srd(sW2, P_WV, 25600)
    k(f"v_lshlrev_b32 v{vD+4}, 4, v{vL}")
    for srd, base in ((sW, KV_WK), (sW2, KV_WV)):
        for i in range(7):
            sk = k.lab("sk")
            k(f"s_mul_i32 s{sT0}, s{sTW}, 7168\ns_add_u32 s{sT0}, s{sT0}, {1024*i}")
            k(f"s_cmp_ge_u32 s{sT0}, 25600\ns_cbranch_scc1 {sk}")
            k(f"s_add_u32 m0, s{sT0}, {base}\ns_nop 0")
            k(f"buffer_load_dwordx4 v{vD+4}, s[{srd}:{srd+3}], s{sT0} offen lds")
            k.label(sk)
    loader(16384, False)
    k.label(end)
    k("s_endpgm")
    return k
```

```python
from common import *
from k2parts import emit_norm, emit_repack, tile_map_spatial
from attn import emit_attn, ATT_LDS

L_A = ATT_LDS
L_Z = L_A + 3 * 16384
NZ = 6
L_F = L_Z + NZ * 8192
K2_LDS = L_F + 64

def gen_k2(gprio=3, pat='33333333', pf=False, with_attn=True, with_gemm=True):
    k = Kern("k2_fused_kernel", 256, 768, K2_LDS, 168)
    P_WS, P_WSP, P_BSP, P_WO, P_WOUT = 4, 8, 10, 12, 14
    sWid, sTok = 3, 6
    end = k.lab("end"); gem = k.lab("gem")
    k(f"s_cmp_ge_u32 s2, 256\ns_cbranch_scc1 {end}")
    k(f"s_load_dwordx2 s[{P_WS}:{P_WS+1}], s[0:1], {KA_WS}\ns_load_dwordx4 s[{P_WSP}:{P_WSP+3}], s[0:1], {KA_WSP}")
    k(f"s_load_dwordx2 s[{P_WO}:{P_WO+1}], s[0:1], {KA_WO}\ns_load_dwordx2 s[{P_WOUT}:{P_WOUT+1}], s[0:1], {KA_WOUT}")
    k(f"""v_lshrrev_b32 v2, 6, v0
    v_and_b32 v1, 63, v0
    v_readfirstlane_b32 s{sWid}, v2
    v_and_b32 v2, 15, v0
    v_lshlrev_b32 v2, 2, v2
    v_add_u32 v2, {L_F}, v2
    v_mov_b32 v3, 0
    ds_write_b32 v2, v3
    s_lshl_b32 s{sTok}, s2, 3
    s_add_u32 s{sTok}, s{sTok}, s{sWid}
    s_cmp_ge_u32 s{sWid}, 8
    s_waitcnt lgkmcnt(0)
    s_cbranch_scc1 {gem}""")
    if with_attn:
        n = emit_attn(k, sTok, sWid, 1, P_WS, 16, 4, 0, L_F, pre_publish=lambda: k("s_barrier"))
        assert n <= 168
    else:
        k("s_barrier\ns_endpgm")
    k.label(gem)
    if not with_gemm:
        k("s_barrier\ns_endpgm")
    sW, sTB, sFG = 7, 16, 17
    sS = 20
    sPF = 60
    vL = 1
    vFw, vFa = 2, 3
    k.stamp(0); k.stamp_rt(5)
    if gprio:
        k(f"s_setprio {gprio}")
    k(f"""s_sub_u32 s{sW}, s{sWid}, 8
    s_lshl_b32 s{sTB}, s{sW}, 2
    s_add_u32 s{sTB}, s{sTB}, {L_F+32}
    v_mov_b32 v{vFw}, s{sTB}
    v_and_b32 v{vFa}, 3, v{vL}
    v_lshlrev_b32 v{vFa}, 2, v{vFa}
    v_add_u32 v{vFa}, {L_F+32}, v{vFa}""")
    a = Alloc(4)
    vFl = a()
    vB0 = 8
    def publish(val):
        k(f"v_mov_b32 v{vFl}, {val}\nds_write_b32 v{vFw}, v{vFl}")
    def spin(val):
        l = k.lab("gspin"); d = k.lab("gspun")
        k.label(l)
        k(f"ds_read_b32 v{vFl}, v{vFa}\ns_waitcnt lgkmcnt(0)\nv_cmp_gt_u32 vcc, {val}, v{vFl}\ns_cbranch_vccz {d}\ns_sleep 1\ns_branch {l}")
        k.label(d)
    if pf:
        k.srd(sPF, P_WSP, 2048*4096)
        k(f"""s_and_b32 s{sPF+4}, s2, 7
        s_lshr_b32 s{sPF+4}, s{sPF+4}, 1
        s_lshl_b32 s{sPF+4}, s{sPF+4}, 21
        s_lshr_b32 s{sPF+5}, s2, 3
        s_lshl_b32 s{sPF+5}, s{sPF+5}, 2
        s_add_u32 s{sPF+5}, s{sPF+5}, s{sW}
        s_lshl_b32 s{sPF+5}, s{sPF+5}, 14
        s_add_u32 s{sPF+4}, s{sPF+4}, s{sPF+5}
        s_add_u32 s{sPF+5}, s{sPF+4}, 8192
        v_lshlrev_b32 v5, 7, v{vL}""")
    def pf_issue():
        k("s_barrier")
        if pf:
            k(f"buffer_load_dword v6, v5, s[{sPF}:{sPF+3}], s{sPF+4} offen\nbuffer_load_dword v7, v5, s[{sPF}:{sPF+3}], s{sPF+5} offen")
    def nsync():
        publish(1); spin(1)
    emit_norm(k, 2, sW, vL, P_WS, sS, vB0, L_Z, nsync, coh="sc1", after_issue=pf_issue, nwait=(2 if pf else 0))
    sFl = sS
    w0 = k.lab("w0"); wj = k.lab("wj")
    k("s_waitcnt vmcnt(0)")
    k.srd(sFl, P_WS, 1024, WS_FLAG)
    k(f"s_cmp_eq_u32 s{sW}, 0\ns_cbranch_scc1 {w0}")
    publish(3)
    k(f"s_branch {wj}")
    k.label(w0)
    publish(2); spin(2)
    k(f"""s_lshl_b32 s{sS+4}, s2, 2
    v_mov_b32 v{vB0}, 1
    v_mov_b32 v{vB0+1}, 0
    s_mov_b64 exec, 1
    buffer_store_dword v{vB0}, v{vB0+1}, s[{sFl}:{sFl+3}], s{sS+4} offen sc1
    s_mov_b64 exec, -1""")
    k.label(wj)
    k.stamp(1)
    rep = k.lab("rep")
    tile_map_spatial(k, sTB, sFG, sS + 4)
    k(f"s_cbranch_scc1 {rep}")

    sA, sZ, sO = sS + 4, sS + 8, sS + 12
    sT, sI, sBufA, sBufZ, sSoA, sSoZ, sDA, sDZ, sM0A, sM0Z, sMask, sNeed, sWrZ = [sS + 16 + i for i in (0, 3, 4, 5, 6, 7, 8, 9, 10, 11, 12, 13, 14)]
    a = Alloc(vB0)
    acc = [a(16, 4), a(16, 4)]
    fs = [[[a(4, 4) for j in range(3)] for q in range(2)] for b in range(2)]
    z1 = a(16, 4)
    vD = a(4, 1); vDz = a()
    vWa = a(4, 1); vZa = a()
    vN, vH, vBias, vTok, vOne = a(), a(), a(), a(), a()
    vT = a(4, 4)
    assert a.n <= 168, a.n
    k.srd(sA, P_WSP, 2048*4096)
    k.srd(sO, P_WS, SZ_Z, WS_Z)
    k.srd(sZ, P_BSP, 4096)
    k(f"v_and_b32 v{vN}, 31, v{vL}\nv_lshrrev_b32 v{vH}, 5, v{vL}\ns_mov_b32 s{sMask}, 0xffff0000")
    k(f"v_lshrrev_b32 v{vT}, 3, v{vL}\nv_and_b32 v{vT+1}, 7, v{vL}")
    for p in range(4):
        k(f"""v_add_u32 v{vT+2}, {8*p}, v{vT}
        v_bfe_u32 v{vT+3}, v{vT+2}, 1, 3
        v_xor_b32 v{vT+3}, v{vT+3}, v{vT+1}
        v_lshlrev_b32 v{vT+2}, 12, v{vT+2}
        v_lshl_add_u32 v{vD+p}, v{vT+3}, 4, v{vT+2}""")
        if p:
            k(f"v_subrev_u32 v{vD+p}, {1024*p}, v{vD+p}")
    k(f"""v_lshlrev_b32 v{vDz}, 4, v{vL}
    s_lshl_b32 s{sT}, s{sTB}, 2
    s_add_u32 s{sT}, s{sT}, s{sW}
    s_lshl_b32 s{sSoA}, s{sT}, 17
    s_lshl_b32 s{sT}, s{sT}, 5
    v_add_u32 v{vTok}, s{sT}, v{vN}
    s_lshl_b32 s{sM0A}, s{sW}, 12
    s_add_u32 s{sM0A}, s{sM0A}, {L_A}
    s_lshl_b32 s{sM0Z}, s{sW}, 11
    s_add_u32 s{sM0Z}, s{sM0Z}, {L_Z}
    s_lshr_b32 s{sT+1}, s{sW}, 1
    s_lshl_b32 s{sT}, s{sFG}, 1
    s_add_u32 s{sT+1}, s{sT}, s{sT+1}
    s_lshl_b32 s{sSoZ}, s{sT+1}, 17
    s_and_b32 s{sT}, s{sW}, 1
    s_lshl_b32 s{sT}, s{sT}, 11
    s_add_u32 s{sSoZ}, s{sSoZ}, s{sT}""")
    def dma_a(buf):
        k(f"s_add_u32 m0, s{sM0A}, {buf}\ns_nop 0")
        for p in range(4):
            k(f"buffer_load_dwordx4 v{vD+p}, s[{sA}:{sA+3}], s{sSoA} offen offset:{1024*p} lds")
        k(f"s_add_u32 s{sSoA}, s{sSoA}, 128")
    def dma_z(buf):
        k(f"s_add_u32 m0, s{sM0Z}, {buf}\ns_nop 0")
        for p in range(2):
            k(f"buffer_load_dwordx4 v{vDz}, s[{sZ}:{sZ+3}], s{sSoZ} offen offset:{1024*p} sc1 lds")
        k(f"s_add_u32 s{sSoZ}, s{sSoZ}, 4096")
    for st in range(3):
        dma_a(st * 16384)
    k(f"""v_mul_u32_u24 v{vT+1}, 3456, v{vTok}
    v_lshl_add_u32 v{vT+1}, v{vH}, 4, v{vT+1}
    s_lshl_b32 s{sT}, s{sFG}, 7
    v_lshlrev_b32 v{vT+2}, 1, v{vTok}""")
    for i in range(4):
        k(f"buffer_load_dwordx4 {v(z1+4*i,4)}, v{vT+1}, s[{sO}:{sO+3}], s{sT} offen offset:{32*i}")
    k(f"buffer_load_ushort v{vBias}, v{vT+2}, s[{sZ}:{sZ+3}], 0 offen")
    k.srd(sZ, P_WS, SZ_Z2F, WS_Z2F)
    k.srd(sO, P_WS, SZ_OUF, WS_OUF)
    k(f"""v_bfe_u32 v{vT+1}, v{vN}, 1, 3
    v_xor_b32 v{vT+1}, v{vT+1}, v{vH}
    v_lshlrev_b32 v{vT+2}, 7, v{vN}
    v_add_u32 v{vT+2}, s{sM0A}, v{vT+2}""")
    for q in range(4):
        k(f"v_xor_b32 v{vT+3}, {2*q}, v{vT+1}\nv_lshl_add_u32 v{vWa+q}, v{vT+3}, 4, v{vT+2}")
    k(f"v_add_u32 v{vZa}, {L_Z}, v{vDz}")
    for t in range(2):
        for i in range(16):
            k(f"v_mov_b32 v{acc[t]+i}, 0")
    pl = k.lab("poll"); pd = k.lab("polled"); pn = k.lab("nopoll")
    k(f"s_cmp_lg_u32 s{sW}, 0\ns_cbranch_scc1 {pn}")
    k.label(pl)
    k(f"""buffer_load_dwordx4 {v(vT,4)}, v{vDz}, s[{sFl}:{sFl+3}], 0 offen sc1
    s_waitcnt vmcnt(0)
    v_and_b32 v{vT}, v{vT}, v{vT+1}
    v_and_b32 v{vT+2}, v{vT+2}, v{vT+3}
    v_and_b32 v{vT}, v{vT}, v{vT+2}
    v_cmp_ne_u32 vcc, 1, v{vT}
    s_cbranch_vccz {pd}
    s_sleep 4
    s_branch {pl}""")
    k.label(pd)
    publish(3)
    k.label(pn)
    spin(3)
    k.stamp(2)
    for st in range(NZ - 1):
        dma_z(st * 8192)
    def reads(half, b, ba, bz):
        r = []
        for q in range(2):
            ks = 2 * half + q
            r += [f"ds_read_b128 {v(fs[b][q][0],4)}, v{vWa+ks} offset:{16384*ba}",
                  f"ds_read_b128 {v(fs[b][q][1],4)}, v{vZa} offset:{8192*bz+1024*ks}",
                  f"ds_read_b128 {v(fs[b][q][2],4)}, v{vZa} offset:{8192*bz+1024*ks+4096}"]
        return r
    def mfmas(b):
        return [f"v_mfma_f32_32x32x16_bf16 {v(acc[i],16)}, {v(fs[b][q][1+i],4)}, {v(fs[b][q][0],4)}, {v(acc[i],16)}" for q in range(2) for i in range(2)]
    def la(p): return f"buffer_load_dwordx4 v{vD+p}, s[{sA}:{sA+3}], s{sSoA} offen offset:{1024*p} lds"
    def lz(p): return f"buffer_load_dwordx4 v{vDz}, s[{sZ}:{sZ+3}], s{sSoZ} offen offset:{1024*p} sc1 lds"
    k(f"s_mov_b32 s{sI}, 0\ns_mov_b32 s{sNeed}, 4\nv_mov_b32 v{vOne}, 1")
    k("s_waitcnt vmcnt(4)")
    publish(4); spin(4)
    for r in reads(0, 0, 0, 0):
        k(r)
    loop = k.lab("gloop"); done = k.lab("gdone")
    k(f"s_add_u32 s{sWrZ}, s{sM0Z}, {8192*4}")
    k.align(3)
    first = k.lab("gfirst")
    cur = [gprio]
    def mf(x, i):
        p = int(pat[i])
        if p != gprio:
            return [f"s_setprio {p}", x, f"s_setprio {gprio}"]
        return [x]
    k.label(loop)
    for j in range(6):
        ba, bz = j % 3, j
        ok = k.lab("gok")
        r1 = reads(1, 1, ba, bz)
        m = mfmas(0)
        k(f"ds_read_b32 v{vT}, v{vFa}")
        k("s_waitcnt lgkmcnt(1)")
        mz = f"s_add_u32 m0, s{sM0Z}, {8192*((j+4)%6)}"
        if j == 0:
            sk1 = k.lab("gs1"); sk2 = k.lab("gs2"); sk3 = k.lab("gs3")
            g = lambda x, l: [f"s_cbranch_scc1 {l}", x, l + ":"]
            seq = [f"s_cmp_eq_u32 s{sI}, 0"] + mf(m[0], 0) + r1[0:2] + g(la(3), sk1) + [f"s_mov_b32 m0, s{sWrZ}"] + mf(m[1], 1) + r1[2:4] + g(lz(0), sk2) + mf(m[2], 2) + r1[4:6] + g(lz(1), sk3) + mf(m[3], 3)
            seq += [f"s_cselect_b32 s{sT}, 0, 128", f"s_cselect_b32 s{sT+1}, 0, 4096", f"s_add_u32 s{sSoA}, s{sSoA}, s{sT}", f"s_add_u32 s{sSoZ}, s{sSoZ}, s{sT+1}"]
        else:
            seq = mf(m[0], 0) + r1[0:2] + [la(3), mz] + mf(m[1], 1) + r1[2:4] + [lz(0)] + mf(m[2], 2) + r1[4:6] + [lz(1)] + mf(m[3], 3)
            seq += [f"s_add_u32 s{sSoA}, s{sSoA}, 128", f"s_add_u32 s{sSoZ}, s{sSoZ}, 4096"]
        for x in seq:
            k(x)
        k(f"""s_cmp_ge_u32 s{sI}, 29
        s_cmov_b32 s{sA+2}, 0
        s_cmp_ge_u32 s{sI}, 27
        s_cmov_b32 s{sZ+2}, 0
        s_add_u32 m0, s{sM0A}, {16384*ba}
        s_mov_b64 exec, 1
        s_waitcnt vmcnt(8) lgkmcnt(0)
        ds_add_u32 v{vFw}, v{vOne}
        s_mov_b64 exec, -1
        v_cmp_gt_u32 vcc, s{sNeed}, v{vT}
        s_cbranch_vccz {ok}""")
        spin(f"s{sNeed}")
        k.label(ok)
        r0 = reads(0, 0, (j + 1) % 3, (j + 1) % 6)
        m = mfmas(1)
        seq = mf(m[0], 4) + r0[0:2] + [la(0)] + mf(m[1], 5) + r0[2:4] + [la(1)] + mf(m[2], 6) + r0[4:6] + [la(2)] + mf(m[3], 7)
        seq += [f"s_add_u32 s{sNeed}, s{sNeed}, 1", f"s_add_u32 s{sI}, s{sI}, 1"]
        for x in seq:
            k(x)
        if j == 1:
            k(f"s_cmp_eq_u32 s{sI}, 32\ns_cbranch_scc1 {done}")
    k(f"s_branch {loop}")
    k.label(done)
    k.stamp(3)
    fin = k.lab("gfin")
    k(f"""s_waitcnt lgkmcnt(0)
    v_lshrrev_b32 v{vT+1}, 4, v{vTok}
    v_mul_u32_u24 v{vT+1}, {47*1024}, v{vT+1}
    v_and_b32 v{vT+2}, 15, v{vTok}
    v_lshl_add_u32 v{vT+1}, v{vT+2}, 4, v{vT+1}
    v_lshl_add_u32 v{vT+1}, v{vH}, 8, v{vT+1}
    s_lshl_b32 s{sT}, s{sFG}, 11
    s_add_u32 s{sT}, s{sT}, {20*1024}
    v_lshlrev_b32 v{vBias}, 16, v{vBias}""")
    for i in range(4):
        b0 = z1 + 4*i
        k(f"v_permlane32_swap_b32 v{b0}, v{b0+2}\nv_permlane32_swap_b32 v{b0+1}, v{b0+3}")
    tmp = fs[0][0][0]
    for i in range(2):
        if i == 1:
            k(f"s_cmp_eq_u32 s{sFG}, 13\ns_cbranch_scc1 {fin}")
        for r in range(8):
            zr = z1 + 8*i + r
            a0 = acc[i] + 2*r
            k(f"""v_lshlrev_b32 v{tmp}, 16, v{zr}
            v_and_b32 v{tmp+1}, s{sMask}, v{zr}
            v_add_f32 v{a0}, v{a0}, v{vBias}
            v_add_f32 v{a0+1}, v{a0+1}, v{vBias}
            v_mul_f32 v{a0}, v{a0}, v{tmp}
            v_mul_f32 v{a0+1}, v{a0+1}, v{tmp+1}
            v_cvt_pk_bf16_f32 v{zr}, v{a0}, v{a0+1}""")
        k("s_nop 1")
        for jp in range(2):
            b0 = z1 + 8*i + 4*jp
            k(f"v_permlane32_swap_b32 v{b0}, v{b0+2}\nv_permlane32_swap_b32 v{b0+1}, v{b0+3}")
        for jp in range(2):
            k(f"buffer_store_dwordx4 {v(z1+8*i+4*jp,4)}, v{vT+1}, s[{sO}:{sO+3}], s{sT} offen offset:{1024*i+512*jp}")
    k.label(fin)
    k.endpgm(P_WS, 3)

    k.label(rep)
    sKS, sCnt = sTB, sFG
    rl = k.lab("rl"); rd = k.lab("rd")
    k(f"s_sub_u32 s{sKS}, s2, 224\ns_mov_b32 s{sCnt}, 4")
    k.label(rl)
    def rsync():
        publish(f"s{sCnt}"); spin(f"s{sCnt}")
        k(f"s_add_u32 s{sCnt}, s{sCnt}, 1")
    emit_repack(k, sKS, sW, vL, P_WO, P_WOUT, P_WS, sS + 4, vB0, L_A, rsync)
    k(f"s_add_u32 s{sKS}, s{sKS}, 32\ns_cmp_ge_u32 s{sKS}, 47\ns_cbranch_scc1 {rd}")
    rsync()
    k(f"s_branch {rl}")
    k.label(rd)
    k.endpgm(P_WS, 2)
    k.label(end)
    k("s_endpgm")
    return k
```

```python
from common import *

def emit_norm(k, sWG, sW, vL, P_WS, sS, vb, lds_base, sync, coh="", after_issue=None, nwait=0):
    sZ, sO, sT, sMask = sS, sS + 4, sS + 8, sS + 14
    a = Alloc(vb)
    raw = [a(8, 4), a(8, 4)]
    f = [a(16, 2), a(16, 2)]
    st = a(4, 2)
    vA, vB = a(), a()
    k.srd(sZ, P_WS, SZ_Z, WS_Z)
    k.srd(sO, P_WS, SZ_Z2F, WS_Z2F)
    k(f"""s_lshl_b32 s{sT}, s{sWG}, 3
    s_lshl_b32 s{sT+1}, s{sW}, 1
    s_add_u32 s{sT}, s{sT}, s{sT+1}
    s_mul_i32 s{sT}, s{sT}, 3456
    s_add_u32 s{sT}, s{sT}, 1728
    s_add_u32 s{sT+2}, s{sT}, 3456
    s_mov_b32 s{sMask}, 0xffff0000
    v_lshlrev_b32 v{vA}, 4, v{vL}""")
    for r in range(2):
        for i in range(4, 8):
            k(f"v_mov_b32 v{raw[r]+i}, 0")
    for r in range(2):
        k(f"buffer_load_dwordx4 {v(raw[r],4)}, v{vA}, s[{sZ}:{sZ+3}], s{sT+2*r} offen")
    k("s_mov_b32 exec_hi, 0xfff")
    for r in range(2):
        k(f"buffer_load_dwordx4 {v(raw[r]+4,4)}, v{vA}, s[{sZ}:{sZ+3}], s{sT+2*r} offen offset:1024")
    k("s_mov_b32 exec_hi, -1")
    if after_issue:
        after_issue()
    k(f"s_waitcnt vmcnt({nwait})")
    for r in range(2):
        for i in range(8):
            k(f"v_lshlrev_b32 v{f[r]+2*i}, 16, v{raw[r]+i}\nv_and_b32 v{f[r]+2*i+1}, s{sMask}, v{raw[r]+i}")
    for r in range(2):
        k(f"v_add_f32 v{st+2*r}, v{f[r]}, v{f[r]+1}\nv_mul_f32 v{st+2*r+1}, v{f[r]}, v{f[r]}")
    for i in range(1, 16):
        for r in range(2):
            if i > 1:
                k(f"v_add_f32 v{st+2*r}, v{st+2*r}, v{f[r]+i}")
            k(f"v_fmac_f32 v{st+2*r+1}, v{f[r]+i}, v{f[r]+i}")
    for m in ("row_shr:1", "row_shr:2", "row_shr:4", "row_shr:8"):
        for i in range(4):
            k(f"v_add_f32_dpp v{st+i}, v{st+i}, v{st+i} {m} row_mask:0xf bank_mask:0xf bound_ctrl:0")
    for m in ("row_bcast:15 row_mask:0xa", "row_bcast:31 row_mask:0xc"):
        for i in range(4):
            k(f"v_add_f32_dpp v{st+i}, v{st+i}, v{st+i} {m} bank_mask:0xf")
    for r in range(2):
        k(f"v_mul_f32 v{st+2*r}, {fl(1.0/864)}, v{st+2*r}\nv_mul_f32 v{st+2*r+1}, {fl(1.0/864)}, v{st+2*r+1}")
    for r in range(2):
        k(f"v_fma_f32 v{st+2*r+1}, -v{st+2*r}, v{st+2*r}, v{st+2*r+1}")
    for r in range(2):
        k(f"v_max_f32 v{st+2*r+1}, 0, v{st+2*r+1}")
    for r in range(2):
        k(f"v_add_f32 v{st+2*r+1}, {fl(1e-5)}, v{st+2*r+1}")
    for r in range(2):
        k(f"v_rsq_f32 v{st+2*r+1}, v{st+2*r+1}")
    k("s_nop 0")
    for r in range(2):
        k(f"v_mul_f32 v{st+2*r}, v{st+2*r}, v{st+2*r+1}")
    k("s_nop 0")
    for i in range(4):
        k(f"v_readlane_b32 s{sT+2+i}, v{st+i}, 63")
    k(f"s_mul_i32 s{sT}, s{sW}, 3456\ns_add_u32 s{sT}, s{sT}, {lds_base}\nv_add_u32 v{vB}, s{sT}, v{vA}")
    for r in range(2):
        k(f"v_mov_b32 v{st+2*r}, s{sT+2+2*r}")
    for r in range(2):
        for i in range(16):
            k(f"v_fma_f32 v{f[r]+i}, v{f[r]+i}, s{sT+3+2*r}, -v{st+2*r}")
        for i in range(8):
            k(f"v_cvt_pk_bf16_f32 v{raw[r]+i}, v{f[r]+2*i}, v{f[r]+2*i+1}")
    for r in range(2):
        k(f"ds_write_b128 v{vB}, {v(raw[r],4)} offset:{1728*r}")
    k("s_mov_b32 exec_hi, 0xfff")
    for r in range(2):
        k(f"ds_write_b128 v{vB}, {v(raw[r]+4,4)} offset:{1728*r+1024}")
    k("s_mov_b32 exec_hi, -1")
    k("s_waitcnt lgkmcnt(0)")
    sync()
    k(f"""v_bfe_u32 v{vB}, v{vL}, 2, 2
    v_mul_u32_u24 v{vB}, 1728, v{vB}
    v_lshrrev_b32 v{st}, 4, v{vL}
    v_lshl_add_u32 v{vB}, v{st}, 5, v{vB}
    v_and_b32 v{st}, 3, v{vL}
    v_lshl_add_u32 v{vB}, v{st}, 3, v{vB}
    s_lshl_b32 s{sT}, s{sW}, 7
    s_add_u32 s{sT}, s{sT}, {lds_base}
    v_add_u32 v{vB}, s{sT}, v{vB}""")
    for i in range(4):
        k(f"ds_read_b64_tr_b16 {v(f[0]+4*i,2)}, v{vB} offset:{512*i}")
        k(f"ds_read_b64_tr_b16 {v(f[0]+4*i+2,2)}, v{vB} offset:{512*i+4*1728}")
    k(f"""v_lshrrev_b32 v{st}, 5, v{vL}
    v_lshlrev_b32 v{st}, 17, v{st}
    v_and_b32 v{st+1}, 31, v{vL}
    v_lshl_add_u32 v{st}, v{st+1}, 4, v{st}
    s_lshl_b32 s{sT}, s{sW}, 18
    s_lshl_b32 s{sT+1}, s{sWG}, 9
    s_add_u32 s{sT}, s{sT}, s{sT+1}""")
    for i in range(4):
        k(f"s_waitcnt lgkmcnt({6-2*i})")
        k(f"buffer_store_dwordx4 {v(f[0]+4*i,4)}, v{st}, s[{sO}:{sO+3}], s{sT} offen {coh}")
        if i < 3:
            k(f"s_add_u32 s{sT}, s{sT}, 0x100000")


def gen_k2n():
    k = Kern("k2_norm_kernel", 256, 256, 16384, 72)
    end = k.lab("end")
    k(f"s_cmp_ge_u32 s2, 256\ns_cbranch_scc1 {end}")
    k(f"s_load_dwordx2 s[4:5], s[0:1], {KA_WS}")
    k("v_lshrrev_b32 v2, 6, v0\nv_and_b32 v1, 63, v0\nv_readfirstlane_b32 s3, v2\ns_waitcnt lgkmcnt(0)")
    emit_norm(k, 2, 3, 1, 4, 8, 4, 0, lambda: k("s_barrier"))
    k.label(end)
    k("s_endpgm")
    return k

def emit_repack(k, sKS, sW, vL, P_WO, P_WOUT, P_WS, sS, vb, lds_base, sync):
    sI, sO, sT = sS, sS + 4, sS + 8
    a = Alloc(vb)
    d = a(40, 4)
    vA, vB, vC = a(), a(), a()
    l1 = k.lab("rp1"); l2 = k.lab("rp2")
    k(f"s_cmp_ge_u32 s{sKS}, 20\ns_cbranch_scc1 {l1}")
    k.srd(sI, P_WO, 640*1280)
    k(f"s_mul_i32 s{sT}, s{sKS}, 40960\ns_branch {l2}")
    k.label(l1)
    k.srd(sI, P_WOUT, 864*1280)
    k(f"s_sub_u32 s{sT}, s{sKS}, 20\ns_mul_i32 s{sT}, s{sT}, 40960")
    k.label(l2)
    k.srd(sO, P_WS, SZ_WF, WS_WF)
    k(f"""s_mul_i32 s{sT+1}, s{sW}, 10240
    s_add_u32 s{sT}, s{sT}, s{sT+1}
    s_add_u32 s{sT+1}, s{sT+1}, {lds_base}
    v_lshlrev_b32 v{vA}, 4, v{vL}""")
    for i in range(10):
        if i % 4 == 0:
            k(f"s_add_u32 m0, s{sT+1}, {1024*i}\ns_add_u32 s{sT+2}, s{sT}, {1024*i}")
        k(f"buffer_load_dwordx4 v{vA}, s[{sI}:{sI+3}], s{sT+2} offen offset:{1024*(i%4)} lds")
    k(f"""v_lshrrev_b32 v{vB}, 4, v{vL}
    v_bfe_u32 v{vC}, v{vL}, 2, 2
    v_lshl_add_u32 v{vB}, v{vB}, 3, v{vC}
    v_mul_u32_u24 v{vB}, 1280, v{vB}
    v_and_b32 v{vC}, 3, v{vL}
    v_lshl_add_u32 v{vB}, v{vC}, 3, v{vB}
    s_mul_i32 s{sT}, s{sW}, 320
    s_add_u32 s{sT}, s{sT}, {lds_base}
    v_add_u32 v{vB}, s{sT}, v{vB}
    s_waitcnt vmcnt(0)""")
    sync()
    k(f"s_mul_i32 s{sT}, s{sW}, {2*47*5120}\ns_mul_i32 s{sT+1}, s{sKS}, 5120\ns_add_u32 s{sT}, s{sT}, s{sT+1}")
    for half in range(2):
        for i in range(5*half, 5*half+5):
            k(f"ds_read_b64_tr_b16 {v(d+4*i,2)}, v{vB} offset:{32*i}")
            k(f"ds_read_b64_tr_b16 {v(d+4*i+2,2)}, v{vB} offset:{32*i+4*1280}")
        k("s_waitcnt lgkmcnt(0)")
        for i in range(5*half, 5*half+5):
            u = i % 5
            if u == 4:
                k(f"s_add_u32 s{sT+1}, s{sT}, 4096")
                k(f"buffer_store_dwordx4 {v(d+4*i,4)}, v{vA}, s[{sO}:{sO+3}], s{sT+1} offen")
            else:
                k(f"buffer_store_dwordx4 {v(d+4*i,4)}, v{vA}, s[{sO}:{sO+3}], s{sT} offen offset:{1024*u}")
        if half == 0:
            k(f"s_add_u32 s{sT}, s{sT}, {47*5120}")


def gen_k2w():
    k = Kern("k2_repack_kernel", 47, 256, 40960, 56)
    end = k.lab("end")
    k(f"s_cmp_ge_u32 s2, 47\ns_cbranch_scc1 {end}")
    k(f"s_load_dwordx2 s[4:5], s[0:1], {KA_WS}\ns_load_dwordx2 s[6:7], s[0:1], {KA_WO}\ns_load_dwordx2 s[24:25], s[0:1], {KA_WOUT}")
    k("v_lshrrev_b32 v2, 6, v0\nv_and_b32 v1, 63, v0\nv_readfirstlane_b32 s3, v2\ns_waitcnt lgkmcnt(0)")
    emit_repack(k, 2, 3, 1, 6, 24, 4, 8, 4, 0, lambda: k("s_barrier"))
    k.label(end)
    k("s_endpgm")
    return k

GST = 24576
GNS = 3
def emit_spatial(k, sTB, sFG, sW, vL, P_WSP, P_BSP, P_WS, sS, vb, lds_base, arrive, wait, pre_z=None, coh=""):
    sA, sZ, sO = sS, sS + 4, sS + 8
    sT, sI, sBuf, sSoA, sSoZ, sDelta, sM0A, sM0Z, sMask = sS + 12, sS + 15, sS + 16, sS + 17, sS + 18, sS + 19, sS + 20, sS + 21, sS + 22
    a = Alloc(vb)
    acc = [a(16, 4), a(16, 4)]
    fw = [[a(4, 4), a(4, 4)] for b in range(2)]
    fz = [a(4, 4) for b in range(2)]
    z1 = a(16, 4)
    vD = a(4, 1); vDz = a()
    vWa = a(4, 1); vZa = a()
    vN, vH, vBias = a(), a(), a(2, 2)
    vT = a(4, 2)
    k.stamp(0); k.stamp_rt(5)
    k.srd(sA, P_WSP, 2048*4096)
    k.srd(sO, P_WS, SZ_Z, WS_Z)
    k(f"v_and_b32 v{vN}, 31, v{vL}\nv_lshrrev_b32 v{vH}, 5, v{vL}\ns_mov_b32 s{sMask}, 0xffff0000")
    k(f"v_lshrrev_b32 v{vT}, 3, v{vL}\nv_and_b32 v{vT+1}, 7, v{vL}")
    for p in range(4):
        k(f"""v_add_u32 v{vT+2}, {8*p}, v{vT}
        v_bfe_u32 v{vT+3}, v{vT+2}, 1, 3
        v_xor_b32 v{vT+3}, v{vT+3}, v{vT+1}
        v_lshlrev_b32 v{vT+2}, 12, v{vT+2}
        v_lshl_add_u32 v{vD+p}, v{vT+3}, 4, v{vT+2}""")
        if p:
            k(f"v_subrev_u32 v{vD+p}, {1024*p}, v{vD+p}")
    k(f"""v_lshlrev_b32 v{vDz}, 4, v{vL}
    s_lshl_b32 s{sSoA}, s{sTB}, 2
    s_add_u32 s{sSoA}, s{sSoA}, s{sW}
    s_lshl_b32 s{sSoA}, s{sSoA}, 17
    s_lshl_b32 s{sM0A}, s{sW}, 12
    s_add_u32 s{sM0A}, s{sM0A}, {lds_base}
    s_lshl_b32 s{sM0Z}, s{sW}, 11
    s_add_u32 s{sM0Z}, s{sM0Z}, {lds_base+16384}
    s_lshr_b32 s{sT+1}, s{sW}, 1
    s_lshl_b32 s{sT}, s{sFG}, 1
    s_add_u32 s{sT+1}, s{sT}, s{sT+1}
    s_lshl_b32 s{sSoZ}, s{sT+1}, 17
    s_and_b32 s{sT}, s{sW}, 1
    s_lshl_b32 s{sT+2}, s{sT}, 11
    s_add_u32 s{sSoZ}, s{sSoZ}, s{sT+2}""")
    def dma_a(buf):
        if isinstance(buf, int):
            k(f"s_add_u32 m0, s{sM0A}, {buf*GST}")
        else:
            k(f"s_add_u32 m0, s{sM0A}, {buf}")
        k("s_nop 0")
        for p in range(4):
            k(f"buffer_load_dwordx4 v{vD+p}, s[{sA}:{sA+3}], s{sSoA} offen offset:{1024*p} lds")
        k(f"s_add_u32 s{sSoA}, s{sSoA}, 128")
    def dma_z(buf):
        if isinstance(buf, int):
            k(f"s_add_u32 m0, s{sM0Z}, {buf*GST}")
        else:
            k(f"s_add_u32 m0, s{sM0Z}, {buf}")
        k("s_nop 0")
        for p in range(2):
            k(f"buffer_load_dwordx4 v{vDz}, s[{sZ}:{sZ+3}], s{sSoZ} offen offset:{1024*p} {coh} lds")
        k(f"s_add_u32 s{sSoZ}, s{sSoZ}, 4096")
    k(f"""s_lshl_b32 s{sT+2}, s{sTB}, 7
    s_lshl_b32 s{sDelta}, s{sT}, 6
    s_add_u32 s{sT+2}, s{sT+2}, s{sDelta}
    v_add_u32 v{vT}, s{sT+2}, v{vN}
    v_mul_u32_u24 v{vT+1}, 3456, v{vT}
    v_lshl_add_u32 v{vT+1}, v{vH}, 4, v{vT+1}
    s_lshl_b32 s{sDelta}, s{sT+1}, 6
    s_add_u32 s{sBuf}, s{sDelta}, {32*3456}
    v_lshlrev_b32 v{vT+2}, 1, v{vT}""")
    for i in range(2):
        for jp in range(2):
            k(f"buffer_load_dwordx4 {v(z1+8*i+4*jp,4)}, v{vT+1}, s[{sO}:{sO+3}], s{sDelta if i == 0 else sBuf} offen offset:{32*jp}")
    k.srd(sZ, P_BSP, 4096)
    for i in range(2):
        k(f"buffer_load_ushort v{vBias+i}, v{vT+2}, s[{sZ}:{sZ+3}], 0 offen offset:{64*i}")
    for st in range(GNS):
        dma_a(st)
    k.srd(sZ, P_WS, SZ_Z2F, WS_Z2F)
    k.srd(sO, P_WS, SZ_OUF, WS_OUF)
    k(f"""v_bfe_u32 v{vT+1}, v{vN}, 1, 3
    v_xor_b32 v{vT+1}, v{vT+1}, v{vH}
    s_lshl_b32 s{sT+2}, s{sT}, 13
    s_add_u32 s{sT+2}, s{sT+2}, {lds_base}
    v_lshlrev_b32 v{vT+2}, 7, v{vN}
    v_add_u32 v{vT+2}, s{sT+2}, v{vT+2}""")
    for q in range(4):
        k(f"v_xor_b32 v{vT+3}, {2*q}, v{vT+1}\nv_lshl_add_u32 v{vWa+q}, v{vT+3}, 4, v{vT+2}")
    k(f"""s_lshr_b32 s{sT+2}, s{sW}, 1
    s_lshl_b32 s{sT+2}, s{sT+2}, 12
    s_add_u32 s{sT+2}, s{sT+2}, {lds_base+16384}
    v_add_u32 v{vZa}, s{sT+2}, v{vDz}""")
    for t in range(2):
        for i in range(16):
            k(f"v_mov_b32 v{acc[t]+i}, 0")
    if pre_z:
        pre_z()
    for st in range(GNS):
        dma_z(st)
    def reads(q, b):
        return [f"ds_read_b128 {v(fz[b],4)}, v{vZa} offset:{1024*q}",
                f"ds_read_b128 {v(fw[b][0],4)}, v{vWa+q}",
                f"ds_read_b128 {v(fw[b][1],4)}, v{vWa+q} offset:4096"]
    k(f"s_mov_b32 s{sI}, 0\ns_mov_b32 s{sBuf}, 0")
    k.stamp(1)
    k("s_waitcnt vmcnt(4)")
    arrive(); wait()
    k.stamp(2)
    for r in reads(0, 0):
        k(r)
    loop = k.lab("gloop"); w0 = k.lab("gw0"); w1 = k.lab("gw1"); w2 = k.lab("gw2"); nod = k.lab("gnod")
    k.align(3)
    k.label(loop)
    for q in range(4):
        b = q % 2
        mf = [f"v_mfma_f32_32x32x16_bf16 {v(acc[t],16)}, {v(fz[b],4)}, {v(fw[b][t],4)}, {v(acc[t],16)}" for t in range(2)]
        k("s_waitcnt lgkmcnt(0)")
        if q < 3:
            for x in interleave(mf, reads(q + 1, 1 - b)):
                k(x)
        else:
            k(f"s_cmp_eq_u32 s{sI}, 0\ns_cbranch_scc1 {w2}\ns_cmp_lt_u32 s{sI}, 30\ns_cbranch_scc1 {w0}\ns_waitcnt vmcnt(0)\ns_branch {w1}")
            k.label(w2)
            k(f"s_waitcnt vmcnt(2)\ns_branch {w1}")
            k.label(w0)
            k("s_waitcnt vmcnt(6)")
            k.label(w1)
            arrive()
            k(mf[0])
            k(f"s_mov_b32 s{sDelta}, {GST}\ns_cmp_eq_u32 s{sBuf}, {(GNS-1)*GST}\ns_cmov_b32 s{sDelta}, {hx(-(GNS-1)*GST)}")
            for i in range(4):
                k(f"v_add_u32 v{vWa+i}, s{sDelta}, v{vWa+i}")
            k(f"v_add_u32 v{vZa}, s{sDelta}, v{vZa}")
            k(mf[1])
            wait()
            for x in reads(0, 0):
                k(x)
            k(f"s_cmp_ge_u32 s{sI}, {32-GNS}\ns_cbranch_scc1 {nod}")
            dma_a(f"s{sBuf}")
            dma_z(f"s{sBuf}")
            k.label(nod)
            k(f"s_add_u32 s{sBuf}, s{sBuf}, s{sDelta}")
    k(f"s_add_u32 s{sI}, s{sI}, 1\ns_cmp_lt_u32 s{sI}, 32\ns_cbranch_scc1 {loop}")
    k.stamp(3)
    fin = k.lab("gfin")
    k(f"s_waitcnt lgkmcnt(0)\ns_cmp_eq_u32 s{sT+1}, 27\ns_cbranch_scc1 {fin}")
    k(f"""v_lshrrev_b32 v{vT+1}, 4, v{vT}
    v_mul_u32_u24 v{vT+1}, {47*1024}, v{vT+1}
    v_and_b32 v{vT+2}, 15, v{vT}
    v_lshl_add_u32 v{vT+1}, v{vT+2}, 4, v{vT+1}
    v_lshl_add_u32 v{vT+1}, v{vH}, 8, v{vT+1}
    s_add_u32 s{sT+2}, s{sT+1}, 20
    s_lshl_b32 s{sT+2}, s{sT+2}, 10
    s_add_u32 s{sDelta}, s{sT+2}, {2*47*1024}
    v_lshlrev_b32 v{vBias}, 16, v{vBias}
    v_lshlrev_b32 v{vBias+1}, 16, v{vBias+1}""")
    for i in range(2):
        for jp in range(2):
            b0 = z1 + 8*i + 4*jp
            k(f"v_permlane32_swap_b32 v{b0}, v{b0+2}\nv_permlane32_swap_b32 v{b0+1}, v{b0+3}")
    tmp = fw[0][0]
    for i in range(2):
        for r in range(8):
            zr = z1 + 8*i + r
            a0 = acc[i] + 2*r
            k(f"""v_lshlrev_b32 v{tmp}, 16, v{zr}
            v_and_b32 v{tmp+1}, s{sMask}, v{zr}
            v_add_f32 v{a0}, v{a0}, v{vBias+i}
            v_add_f32 v{a0+1}, v{a0+1}, v{vBias+i}
            v_mul_f32 v{a0}, v{a0}, v{tmp}
            v_mul_f32 v{a0+1}, v{a0+1}, v{tmp+1}
            v_cvt_pk_bf16_f32 v{zr}, v{a0}, v{a0+1}""")
        k("s_nop 1")
        for jp in range(2):
            b0 = z1 + 8*i + 4*jp
            k(f"v_permlane32_swap_b32 v{b0}, v{b0+2}\nv_permlane32_swap_b32 v{b0+1}, v{b0+3}")
        for jp in range(2):
            k(f"buffer_store_dwordx4 {v(z1+8*i+4*jp,4)}, v{vT+1}, s[{sO}:{sO+3}], s{sT+2 if i == 0 else sDelta} offen offset:{512*jp}")
    k.label(fin)
    return a.n


def tile_map_spatial(k, sTB, sFG, sT):
    k(f"""s_and_b32 s{sT}, s2, 7
    s_lshr_b32 s{sT+1}, s2, 3
    s_lshr_b32 s{sTB}, s{sT}, 1
    s_lshl_b32 s{sTB}, s{sTB}, 2
    s_and_b32 s{sFG}, s{sT+1}, 3
    s_add_u32 s{sTB}, s{sTB}, s{sFG}
    s_and_b32 s{sFG}, s{sT}, 1
    s_mul_i32 s{sFG}, s{sFG}, 7
    s_lshr_b32 s{sT}, s{sT+1}, 2
    s_add_u32 s{sFG}, s{sFG}, s{sT}
    s_cmp_ge_u32 s{sT+1}, 28""")


def gen_k2g():
    k = Kern("k2_spatial_kernel", 256, 256, GNS*GST, 104)
    end = k.lab("end")
    k(f"s_load_dwordx2 s[4:5], s[0:1], {KA_WS}\ns_load_dwordx4 s[8:11], s[0:1], {KA_WSP}")
    k("v_lshrrev_b32 v2, 6, v0\nv_and_b32 v1, 63, v0\nv_readfirstlane_b32 s3, v2")
    tile_map_spatial(k, 6, 7, 12)
    k(f"s_cbranch_scc1 {end}\ns_waitcnt lgkmcnt(0)")
    n = emit_spatial(k, 6, 7, 3, 1, 8, 10, 4, 16, 4, 0, lambda: None, lambda: k("s_barrier"))
    assert n <= 104, n
    k.endpgm(4, 3)
    k.label(end)
    k("s_endpgm")
    return k
```

```python
from common import *

def gen_k3():
    k = Kern("k3_out_kernel", 256, 256, 4*4*5*1024, 256)
    sA, sB, sX, sO = 8, 12, 16, 20
    sTB, sG, sW, sT, sSoA, sSoB = 24, 25, 26, 27, 30, 34
    P_X, P_OUT, P_WS = 36, 38, 42
    a = Alloc(1)
    vL, vA, vXo, vT = a(), a(), a(), a(2, 2)
    xr = a(10, 2)
    acc = a(80, 4)
    NB = 4
    fr = [a(36, 4) for b in range(NB)]
    assert a.n <= 256, a.n
    end = k.lab("end")
    k(f"s_cmp_ge_u32 s2, 256\ns_cbranch_scc1 {end}")
    k.stamp(0); k.stamp_rt(5)
    k(f"s_load_dwordx2 s[{P_X}:{P_X+1}], s[0:1], {KA_X}\ns_load_dwordx2 s[{P_OUT}:{P_OUT+1}], s[0:1], {KA_OUT}\ns_load_dwordx2 s[{P_WS}:{P_WS+1}], s[0:1], {KA_WS}")
    k(f"""v_lshrrev_b32 v{vT}, 6, v0
    v_and_b32 v{vL}, 63, v0
    v_readfirstlane_b32 s{sW}, v{vT}
    v_lshlrev_b32 v{vA}, 4, v{vL}
    s_and_b32 s{sT}, s2, 7
    s_lshr_b32 s{sT+1}, s2, 3
    s_lshr_b32 s{sTB}, s{sT}, 1
    s_lshl_b32 s{sTB}, s{sTB}, 3
    s_and_b32 s{sG}, s{sT+1}, 7
    s_add_u32 s{sTB}, s{sTB}, s{sG}
    s_and_b32 s{sG}, s{sT}, 1
    s_lshl_b32 s{sG}, s{sG}, 2
    s_lshr_b32 s{sT+1}, s{sT+1}, 3
    s_add_u32 s{sG}, s{sG}, s{sT+1}
    s_mul_i32 s{sSoA}, s{sTB}, {4*47}
    s_add_u32 s{sSoA}, s{sSoA}, s{sW}
    s_lshl_b32 s{sSoA}, s{sSoA}, 10
    s_add_u32 s{sSoA+1}, s{sSoA}, {47*1024}
    s_add_u32 s{sSoA+2}, s{sSoA}, {2*47*1024}
    s_add_u32 s{sSoA+3}, s{sSoA}, {3*47*1024}
    s_mul_i32 s{sSoB}, s{sG}, 47
    s_add_u32 s{sSoB}, s{sSoB}, s{sW}
    s_mul_i32 s{sSoB}, s{sSoB}, 5120
    s_add_u32 s{sSoB+1}, s{sSoB}, 4096
    s_waitcnt lgkmcnt(0)""")
    k.srd(sA, P_WS, SZ_OUF, WS_OUF)
    k.srd(sB, P_WS, SZ_WF, WS_WF)
    def loads(step):
        b = fr[step % NB]
        if step == 11:
            k(f"s_cmp_eq_u32 s{sW}, 3\ns_cmov_b32 s{sA+2}, 0\ns_cmov_b32 s{sB+2}, 0")
        for u in range(4):
            k(f"buffer_load_dwordx4 {v(b+16+4*u,4)}, v{vA}, s[{sB}:{sB+3}], s{sSoB} offen offset:{1024*u}")
        k(f"buffer_load_dwordx4 {v(b+32,4)}, v{vA}, s[{sB}:{sB+3}], s{sSoB+1} offen")
        for i in range(4):
            k(f"buffer_load_dwordx4 {v(b+4*i,4)}, v{vA}, s[{sA}:{sA+3}], s{sSoA+i} offen")
        if step < 11:
            for i in range(4):
                k(f"s_add_u32 s{sSoA+i}, s{sSoA+i}, 4096")
            k(f"s_add_u32 s{sSoB}, s{sSoB}, {4*5120}\ns_add_u32 s{sSoB+1}, s{sSoB+1}, {4*5120}")
    for st in range(NB):
        loads(st)
    k.srd(sX, P_X, SZ_Q)
    k.srd(sO, P_OUT, SZ_Q)
    k(f"""s_lshl_b32 s{sT}, s{sTB}, 2
    s_add_u32 s{sT}, s{sT}, s{sW}
    s_mul_i32 s{sT}, s{sT}, {16*1280}
    s_mul_i32 s{sT+1}, s{sG}, 160
    s_add_u32 s{sT}, s{sT}, s{sT+1}
    v_and_b32 v{vXo}, 15, v{vL}
    v_mul_u32_u24 v{vXo}, 1280, v{vXo}
    v_lshrrev_b32 v{vT}, 4, v{vL}
    v_lshl_add_u32 v{vXo}, v{vT}, 3, v{vXo}""")
    for step in range(12):
        b = fr[step % NB]
        newer = min(NB - 1, 11 - step) * 9 + (5 if step >= 9 else 0)
        if step == 0: k.stamp(1)
        k(f"s_waitcnt vmcnt({newer})")
        if step == 0: k.stamp(2)
        for i in range(4):
            for u in range(5):
                c = acc + 20*i + 4*u
                src = "0" if step == 0 else v(c, 4)
                k(f"v_mfma_f32_16x16x32_bf16 {v(c,4)}, {v(b+16+4*u,4)}, {v(b+4*i,4)}, {src}")
        if step + NB < 12:
            loads(step + NB)
        if step == 8:
            for u in range(5):
                k(f"buffer_load_dwordx2 {v(xr+2*u,2)}, v{vXo}, s[{sX}:{sX+3}], s{sT} offen offset:{32*u}")
    k.stamp(3)
    k(f"s_mul_i32 s{sT+1}, s{sW}, 20480\nv_add_u32 v{vT}, s{sT+1}, v{vA}")
    k(f"s_mul_i32 s{sT+1}, s{sW}, 5120\nv_add_u32 v{vT+1}, s{sT+1}, v{vA}")
    k("s_nop 4")
    for i in range(4):
        for u in range(5):
            k(f"ds_write_b128 v{vT}, {v(acc+20*i+4*u,4)} offset:{5120*i+1024*u}")
    k("s_waitcnt lgkmcnt(0)\ns_barrier")
    r = fr[0]
    for w in range(4):
        for u in range(5):
            if w == 2 and u == 0:
                k(f"v_add_u32 v{vT+1}, 40960, v{vT+1}")
            k(f"ds_read_b128 {v(r+20*w+4*u,4)}, v{vT+1} offset:{20480*(w%2)+1024*u}")
    k(f"s_mov_b32 s{sT+2}, 0xffff0000\ns_waitcnt vmcnt(0)")
    for u in range(5):
        for hh in range(2):
            k(f"v_lshlrev_b32 v{acc+4*u+2*hh}, 16, v{xr+2*u+hh}\nv_and_b32 v{acc+4*u+2*hh+1}, s{sT+2}, v{xr+2*u+hh}")
    for w in range(4):
        k(f"s_waitcnt lgkmcnt({15-5*w})")
        for i in range(0, 20, 2):
            k(f"v_pk_add_f32 {v(acc+i,2)}, {v(acc+i,2)}, {v(r+20*w+i,2)}")
    for u in range(5):
        k(f"v_cvt_pk_bf16_f32 v{xr+2*u}, v{acc+4*u}, v{acc+4*u+1}\nv_cvt_pk_bf16_f32 v{xr+2*u+1}, v{acc+4*u+2}, v{acc+4*u+3}")
    for u in range(5):
        k(f"buffer_store_dwordx2 {v(xr+2*u,2)}, v{vXo}, s[{sO}:{sO+3}], s{sT} offen offset:{32*u}")
    k.endpgm(P_WS, 5)
    k.label(end)
    k("s_endpgm")
    return k
```

```python
import sys
sys.path.insert(0,'gen')
import build, k1, k2, k3
import json
kw = json.loads(sys.argv[2]) if len(sys.argv)>2 else {}
build.build([k1.gen_k1(**kw.get("k1",{})), k2.gen_k2(**kw.get("k2",{})), k3.gen_k3(**kw.get("k3",{}))], sys.argv[1])
```

```python
from common import *
import os

CH = 8 * KV_TILE
NSLOT = 3
ATT_LDS = NSLOT * CH
MARGIN = 64.0
TRIG = 2.0**48

def emit_attn(k, sTok, sW, vL, P_WS, sS, vb, lds_base, flag_base, pre_publish=None, slot=4, handoff=None, mega=None, budget=None, gset=None):
    CO = 'sc1' if mega else ''
    sKV, sQ = sS, sS + 4
    sT, sC, sSo, sM0, sDelta, sRet, sMask, sSlot = sS + 8, sS + 11, sS + 12, sS + 13, sS + 14, sS + 15, sS + 16, sS + 17
    sEx = sS + 18
    a = Alloc(vb)
    Sx = [a(16, 4), a(16, 4)]
    O = a(16, 4)
    P = [a(8, 4), a(8, 4)]
    QA = a(4, 4); KA = a(4, 4); V0 = a(4, 4); V1 = a(4, 4)
    QB = a(2, 2); KB = a(2, 2)
    vKa, vKb, vVa, vD, vM, vN, vH, vFa, vFw, vFl = [a() for _ in range(10)]
    vT = a(6, 2)
    if not mega:
        k.stamp(0); k.stamp_rt(5)
    if STAMP: k("s_mov_b32 s88, 0")
    k.srd(sKV, P_WS, SZ_KV, WS_KV)
    k.srd(sQ, P_WS, SZ_Q, WS_Q)
    k(f"""v_and_b32 v{vN}, 31, v{vL}
    v_lshrrev_b32 v{vH}, 5, v{vL}
    v_lshlrev_b32 v{vD}, 4, v{vL}
    s_mul_i32 s{sSo}, s{sW}, {KV_TILE}
    s_add_u32 s{sM0}, s{sSo}, {lds_base}
    s_mov_b32 s{sMask}, 0xffff0000
    s_mov_b32 s{sEx}, -1
    s_mov_b32 s{sEx+1}, 0xf""")
    def dma(slot):
        k(f"s_add_u32 m0, s{sM0}, {slot}")
        k("s_nop 0")
        k(f"buffer_load_dwordx4 v{vD}, s[{sKV}:{sKV+3}], s{sSo} offen {CO} lds")
        k(f"buffer_load_dwordx4 v{vD}, s[{sKV}:{sKV+3}], s{sSo} offen offset:1024 {CO} lds")
        k(f"s_mov_b64 exec, s[{sEx}:{sEx+1}]")
        k(f"buffer_load_dwordx4 v{vD}, s[{sKV}:{sKV+3}], s{sSo} offen offset:2048 {CO} lds")
        k(f"s_mov_b64 exec, -1")
        k(f"s_add_u32 s{sSo}, s{sSo}, {CH}")
    if not mega:
        dma(0)
        k(f"""s_mul_i32 s{sT}, s{sTok}, 1280
        v_mul_u32_u24 v{vT}, 40, v{vN}
        v_lshl_add_u32 v{vT+1}, v{vH}, 4, v{vT}
        v_lshl_add_u32 v{vT+2}, v{vH}, 2, v{vT}
        buffer_load_dwordx4 {v(QA,4)}, v{vT+1}, s[{sQ}:{sQ+3}], s{sT} offen
        buffer_load_dword v{QB}, v{vT+2}, s[{sQ}:{sQ+3}], s{sT} offen offset:32""")
        dma(CH)
    k(f"""v_add_u32 v{vKa}, {lds_base}, v{vD}
    v_lshlrev_b32 v{vKb}, 2, v{vL}
    v_add_u32 v{vKb}, {lds_base+KV_KB}, v{vKb}
    v_min_u32 v{vVa}, 20, v{vN}
    v_lshlrev_b32 v{vVa}, 4, v{vVa}
    v_mul_u32_u24 v{vT}, 336, v{vH}
    v_add_u32 v{vVa}, v{vVa}, v{vT}
    v_add_u32 v{vVa}, {lds_base+KV_V}, v{vVa}
    v_mov_b32 v{KB+1}, 0x3f803f80
    v_mov_b32 v{QB+1}, 0
    v_and_b32 v{vFa}, 7, v{vL}
    v_lshlrev_b32 v{vFa}, 2, v{vFa}
    v_add_u32 v{vFa}, {flag_base}, v{vFa}
    s_lshl_b32 s{sT}, s{sW}, 2
    s_add_u32 s{sT}, s{sT}, {flag_base}
    v_mov_b32 v{vFw}, s{sT}""")
    for i in range(16):
        k(f"v_mov_b32 v{O+i}, 0")
    for i in range(8):
        k(f"v_mov_b32 v{P[1]+i}, 0")
    for r in (V0, V1):
        for i in range(4):
            k(f"v_mov_b32 v{r+i}, 0")

    def publish(val):
        k(f"v_mov_b32 v{vFl}, {val}")
        k(f"ds_write_b32 v{vFw}, v{vFl}")
    def spin(val):
        l = k.lab("spin"); d = k.lab("spun")
        k.label(l)
        k(f"ds_read_b32 v{vFl}, v{vFa}\ns_waitcnt lgkmcnt(0)\nv_cmp_gt_u32 vcc, {val}, v{vFl}\ns_cbranch_vccz {d}\ns_sleep 1")
        k(f"s_branch {l}" if budget is None else f"s_sub_u32 s{budget}, s{budget}, 1\ns_cbranch_scc0 {l}")
        k.label(d)
    def set_m():
        k(f"""v_sub_f32 v{vT}, 0, v{vM}
        v_and_b32 v{vT+1}, s{sMask}, v{vT}
        v_sub_f32 v{vT}, v{vT}, v{vT+1}
        v_and_b32 v{vT+2}, s{sMask}, v{vT}
        v_sub_f32 v{vT}, v{vT}, v{vT+2}
        v_lshrrev_b32 v{vT+1}, 16, v{vT+1}
        v_or_b32 v{vT+1}, v{vT+1}, v{vT+2}
        v_cmp_eq_u32 vcc, 0, v{vH}
        v_lshrrev_b32 v{vT}, 16, v{vT}
        s_nop 0
        v_cndmask_b32 v{QB+1}, v{vT}, v{vT+1}, vcc
        s_nop 1""")
    def qk(S):
        return [f"v_mfma_f32_32x32x16_bf16 {v(S,16)}, {v(KA,4)}, {v(QA,4)}, 0",
                f"v_mfma_f32_32x32x8_bf16 {v(S,16)}, {v(KB,2)}, {v(QB,2)}, {v(S,16)}"]
    def pv(Pp):
        return [f"v_mfma_f32_32x32x16_bf16 {v(O,16)}, {v(V0,4)}, {v(Pp,4)}, {v(O,16)}",
                f"v_mfma_f32_32x32x16_bf16 {v(O,16)}, {v(V1,4)}, {v(Pp+4,4)}, {v(O,16)}"]
    rdK = lambda i: [f"ds_read_b128 {v(KA,4)}, v{vKa} offset:{KV_TILE*i}", f"ds_read_b32 v{KB}, v{vKb} offset:{KV_TILE*i}"]
    rdV = lambda i: [f"ds_read_b128 {v(V0,4)}, v{vVa} offset:{KV_TILE*i}", f"ds_read_b128 {v(V1,4)}, v{vVa} offset:{KV_TILE*i+672}"]
    def maxtree(S, first):
        if first:
            k(f"v_max3_f32 v{vM}, v{S}, v{S+1}, v{S+2}\nv_max_f32 v{vM}, v{vM}, v{S+3}")
            rng = range(4, 16, 2)
        else:
            rng = range(0, 16, 2)
        for i in rng:
            k(f"v_max3_f32 v{vM}, v{vM}, v{S+i}, v{S+i+1}")
    def cross_half_max():
        k(f"v_mov_b32 v{vT}, v{vM}\ns_nop 1\nv_permlane32_swap_b32 v{vM}, v{vT}\nv_max_f32 v{vM}, v{vM}, v{vT}")

    if not mega:
        if pre_publish:
            pre_publish()
        k("s_waitcnt vmcnt(3)")
        publish(1)
        spin(1)
    else:
        G = lds_base + 2 * CH
        k(f"""v_lshrrev_b32 v{vT}, 3, v{vL}
        v_and_b32 v{vT+1}, 7, v{vL}
        v_lshlrev_b32 v{vT+1}, 4, v{vT+1}
        v_lshl_add_u32 v{vT}, v{vT}, 9, v{vT+1}
        s_lshr_b32 s{sT}, s{handoff}, 2
        s_mul_i32 s{sT}, s{sT}, 40960
        s_and_b32 s{sT+1}, s{handoff}, 3
        s_lshl_b32 s{sT+1}, s{sT+1}, 7
        s_add_u32 s{sT}, s{sT}, s{sT+1}
        s_lshl_b32 s{sT+1}, s{sW}, 12
        s_add_u32 s{sT}, s{sT}, s{sT+1}
        s_lshl_b32 s{sT+1}, s{sW}, 10
        v_mul_u32_u24 v{vT+2}, 5, v{vN}
        v_lshl_add_u32 v{vT+3}, v{vH}, 1, v{vT+2}""")
        def qaddr(dst, src):
            k(f"""v_lshrrev_b32 v{vT+5}, 1, v{src}
            v_and_b32 v{dst}, 1, v{src}
            v_lshlrev_b32 v{dst}, 3, v{dst}
            v_lshl_add_u32 v{dst}, v{vT+5}, 7, v{dst}""")
        k(f"v_add_u32 v{vT+4}, 1, v{vT+3}\nv_add_u32 v{vT+2}, 4, v{vT+2}")
        qaddr(vT + 3, vT + 3); qaddr(vT + 4, vT + 4); qaddr(vT + 2, vT + 2)
        k(f"""v_lshl_add_u32 v{vT+2}, v{vH}, 2, v{vT+2}
        s_lshl_b32 s{sT+2}, s{sW}, 4
        s_add_u32 s{sT+2}, s{sT+2}, {G}
        v_add_u32 v{vT+2}, s{sT+2}, v{vT+2}
        v_add_u32 v{vT+3}, s{sT+2}, v{vT+3}
        v_add_u32 v{vT+4}, s{sT+2}, v{vT+4}""")
        mega()
        k.stamp(2)
        dma(0)
        nq = k.lab("nq")
        k(f"""s_add_u32 m0, s{sT+1}, {G}
        s_cmp_ge_u32 s{sW}, 2
        buffer_load_dwordx4 v{vT}, s[{sQ}:{sQ+3}], s{sT} offen sc1 lds
        s_cbranch_scc1 {nq}
        s_add_u32 m0, s{sT+1}, {G+8192}
        s_add_u32 s{sT}, s{sT}, 32768
        buffer_load_dwordx4 v{vT}, s[{sQ}:{sQ+3}], s{sT} offen sc1 lds""")
        k.label(nq)
        dma(CH)
        k("s_waitcnt vmcnt(3)")
        publish(1)
        spin(1)
        k(f"ds_read_b64 {v(QA,2)}, v{vT+3}\nds_read_b64 {v(QA+2,2)}, v{vT+4}\nds_read_b32 v{QB}, v{vT+2}")
    k.stamp(1)
    for t in range(2):
        for x in rdK(t):
            k(x)
        k("s_waitcnt lgkmcnt(0)")
        for x in qk(Sx[t]):
            k(x)
    for x in rdK(0):
        k(x)
    k("s_nop 7\ns_nop 1")
    maxtree(Sx[0], True)
    maxtree(Sx[1], False)
    cross_half_max()
    k(f"v_ceil_f32 v{vM}, v{vM}\nv_add_f32 v{vM}, {fl(MARGIN)}, v{vM}")
    set_m()
    k("s_waitcnt lgkmcnt(0)")
    for x in qk(Sx[0]):
        k(x)
    for x in rdK(1):
        k(x)
    k(f"ds_read_b32 v{vFl}, v{vFa}\nds_read_b32 v{vFl}, v{vFa}")
    k(f"s_mov_b32 s{sC}, 0\ns_mov_b32 s{sSlot}, 0\ns_mov_b64 vcc, 0\ns_nop 4")
    if not mega: k.stamp(2)
    loop = k.lab("aloop"); rare = k.lab("rare")
    rl = [k.lab(f"rin{i}") for i in range(4)]
    rb = [k.lab(f"rback{i}") for i in range(4)]
    k.align(6)
    k.label(loop)
    for i in range(8):
        S, Sn, Pc, Pp = Sx[i % 2], Sx[1 - i % 2], P[i % 2], P[1 - i % 2]
        if i % 2 == 0:
            k(f"s_cbranch_vccnz {rl[i//2]}" if not os.environ.get("EXP") else "s_nop 0")
            k.label(rb[i // 2])
        if i == 6:
            l = k.lab("x"); d = k.lab("xd")
            k(f"s_waitcnt lgkmcnt(4)\nv_cmp_gt_u32 vcc, s{sT}, v{vFl}\ns_cbranch_vccz {d}")
            spin(f"s{sT}")
            k.label(d)
            nod = k.lab("nod")
            k(f"s_cmp_ge_u32 s{sC}, 6\ns_cbranch_scc1 {nod}")
            dma(f"s{sT+1}")
            k.label(nod)
            k(f"v_add_u32 v{vKa}, s{sDelta}, v{vKa}\nv_add_u32 v{vKb}, s{sDelta}, v{vKb}")
        e = [f"v_exp_f32 v{S+j}, v{S+j}" for j in range(16)]
        c = [f"v_cvt_pk_bf16_f32 v{Pc+j}, v{S+2*j}, v{S+2*j+1}" for j in range(8)]
        m = qk(Sn) + pv(Pp)
        rk = rdK((i + 2) % 8); rv = rdV(i)
        seq = ["s_waitcnt lgkmcnt(2)" if i != 2 else "s_waitcnt lgkmcnt(3)", e[0]]
        if i == 5:
            seq += [m[0], f"ds_read_b32 v{vFl}, v{vFa}", rk[0]]
        else:
            seq += [m[0], rk[0]]
        seq += e[1:5] + [c[0]]
        seq += [m[1], rk[1]] + e[5:7] + [c[1], c[2]]
        if i % 2 == 1:
            seq += [f"v_cmp_lt_f32 vcc, {fl(TRIG)}, v{O+12}"]
        seq += [e[7], e[8], "s_waitcnt lgkmcnt(2)"]
        seq += [m[2], rv[0]] + e[9:11] + [c[3]] + e[11:13] + [c[4]]
        seq += [m[3], rv[1]] + [e[13], c[5]] + e[14:16] + [c[6], c[7]]
        EXP = os.environ.get("EXP", "")
        if "nopv" in EXP: seq = [x for x in seq if x not in (m[2], m[3])]
        if "noqk" in EXP: seq = [x for x in seq if x not in (m[0], m[1])]
        if "noqb" in EXP: seq = [x for x in seq if x != m[1]]
        if "nolds" in EXP: seq = [(x if x not in rk + rv else f"ds_read_b32 v{vT}, v{vFa}") for x in seq]
        if "noexp" in EXP: seq = [x.replace("v_exp_f32", "v_rndne_f32") for x in seq]
        for x in seq:
            k(x)
        if i == 1:
            k(f"s_add_u32 s{sT}, s{sC}, 2\ns_waitcnt vmcnt(0)")
            publish(f"s{sT}")
            k(f"""s_mov_b32 s{sDelta}, {CH}
            s_cmp_eq_u32 s{sSlot}, {2*CH}
            s_cmov_b32 s{sDelta}, {hx(-2*CH)}
            s_sub_u32 s{sT+1}, s{sSlot}, {CH}
            s_cmp_eq_u32 s{sSlot}, 0
            s_cmov_b32 s{sT+1}, {2*CH}""")
    k(f"""v_add_u32 v{vVa}, s{sDelta}, v{vVa}
    s_add_u32 s{sSlot}, s{sSlot}, s{sDelta}
    s_add_u32 s{sC}, s{sC}, 1
    s_cmp_lt_u32 s{sC}, 8
    s_cbranch_scc1 {loop}""")
    k.stamp(3)
    k("s_waitcnt lgkmcnt(0)")
    for x in pv(P[1]):
        k(x)
    fin = k.lab("afin"); slow = k.lab("slow")
    k("s_nop 7\ns_nop 3")
    k(f"v_mov_b32 v{vT}, 0x207")
    k(f"s_mov_b64 s[{sEx}:{sEx+1}], 0")
    for i in list(range(13)):
        k(f"v_cmp_class_f32 vcc, v{O+i}, v{vT}\ns_or_b64 s[{sEx}:{sEx+1}], s[{sEx}:{sEx+1}], vcc")
    if not os.environ.get("EXP"): k(f"s_cbranch_scc1 {slow}")
    k.label(fin)
    k.srd(sQ, P_WS, SZ_OUF, WS_OUF)
    k(f"""v_rcp_f32 v{vT+4}, v{O+12}
    v_mul_u32_u24 v{vT}, 5, v{vN}
    v_add_u32 v{vT}, v{vT}, v{vH}
    v_lshrrev_b32 v{vT+1}, 1, v{vT}
    v_and_b32 v{vT}, 1, v{vT}
    v_lshlrev_b32 v{vT}, 3, v{vT}""")
    for i in range(12):
        k(f"v_mul_f32 v{O+i}, v{O+i}, v{vT+4}")
    for i in range(6):
        k(f"v_cvt_pk_bf16_f32 v{P[0]+i}, v{O+2*i}, v{O+2*i+1}")
    if handoff is None:
        k(f"""v_lshl_add_u32 v{vT}, v{vT+1}, 8, v{vT}
        s_lshr_b32 s{sT}, s{sTok}, 4
        s_mul_i32 s{sT}, s{sT}, {47*1024}
        s_and_b32 s{sT+1}, s{sTok}, 15
        s_lshl_b32 s{sT+1}, s{sT+1}, 4
        s_add_u32 s{sT}, s{sT}, s{sT+1}
        buffer_store_dwordx2 {v(P[0],2)}, v{vT}, s[{sQ}:{sQ+3}], s{sT} offen
        buffer_store_dwordx2 {v(P[0]+2,2)}, v{vT}, s[{sQ}:{sQ+3}], s{sT} offen offset:256
        s_mov_b32 exec_hi, 0
        buffer_store_dwordx2 {v(P[0]+4,2)}, v{vT}, s[{sQ}:{sQ+3}], s{sT} offen offset:512""")
        k.endpgm(P_WS, slot)
    else:
        G = lds_base + 2 * CH
        last = k.lab("last")
        k(f"""v_lshl_add_u32 v{vT}, v{vT+1}, 7, v{vT}
        s_lshl_b32 s{sT}, s{sW}, 4
        s_add_u32 s{sT}, s{sT}, {G}
        v_add_u32 v{vT}, s{sT}, v{vT}
        ds_write_b64 v{vT}, {v(P[0],2)}
        ds_write_b64 v{vT}, {v(P[0]+2,2)} offset:128
        s_mov_b32 exec_hi, 0
        ds_write_b64 v{vT}, {v(P[0]+4,2)} offset:256
        s_mov_b64 exec, 1
        v_mov_b32 v{vT+2}, {flag_base+48}
        v_mov_b32 v{vT+3}, 1
        s_waitcnt lgkmcnt(0)
        ds_add_rtn_u32 v{vT+3}, v{vT+2}, v{vT+3}
        s_waitcnt lgkmcnt(0)
        v_readfirstlane_b32 s{sT}, v{vT+3}
        s_mov_b64 exec, -1
        s_cmp_eq_u32 s{sT}, 7
        s_cbranch_scc1 {last}""")
        k.endpgm(P_WS, slot)
        k.label(last)
        k(f"v_add_u32 v{vT}, {G}, v{vD}")
        for i in range(10):
            k(f"ds_read_b128 {v(Sx[0]+4*i,4)}, v{vT} offset:{1024*i}")
        k(f"""v_lshrrev_b32 v{vT+1}, 3, v{vL}
        v_and_b32 v{vT+2}, 7, v{vL}
        v_lshlrev_b32 v{vT+2}, 4, v{vT+2}
        v_lshl_add_u32 v{vT+1}, v{vT+1}, 8, v{vT+2}
        s_lshr_b32 s{sT}, s{handoff}, 1
        s_mul_i32 s{sT}, s{sT}, {47*1024}
        s_and_b32 s{sT+1}, s{handoff}, 1
        s_lshl_b32 s{sT+1}, s{sT+1}, 7
        s_add_u32 s{sT}, s{sT}, s{sT+1}""")
        for i in range(10):
            k(f"s_waitcnt lgkmcnt({9-i})")
            k(f"buffer_store_dwordx4 {v(Sx[0]+4*i,4)}, v{vT+1}, s[{sQ}:{sQ+3}], s{sT} offen offset:{2048*(i%2)} sc1")
            if i % 2 == 1:
                k(f"s_add_u32 s{sT}, s{sT}, 4096")
        k(f"s_lshl_b32 s{sT}, s{handoff}, 7\ns_add_u32 s{sT}, s{sT}, {FL_O}\ns_waitcnt vmcnt(0)")
        gset(f"s{sT}", vT + 4, vT + 2)
        k.endpgm(P_WS, slot)
    for i in range(4):
        k.label(rl[i])
        k(f"s_mov_b32 s{sRet}, {i}\ns_branch {rare}")
    k.label(rare)
    if STAMP: k("s_add_u32 s88, s88, 1")
    k("s_nop 7\ns_nop 3")
    k(f"""v_frexp_exp_i32_f32 v{vT+3}, v{O+12}
    v_add_u32 v{vT+3}, {int(MARGIN)}, v{vT+3}
    v_max_i32 v{vT+3}, 0, v{vT+3}
    v_cvt_f32_i32 v{vT+4}, v{vT+3}
    v_add_f32 v{vT+5}, v{vM}, v{vT+4}
    v_sub_f32 v{vT+4}, v{vT+5}, v{vM}
    v_mov_b32 v{vM}, v{vT+5}
    v_cvt_i32_f32 v{vT+3}, v{vT+4}
    v_sub_u32 v{vT+3}, 0, v{vT+3}""")
    for i in range(16):
        k(f"v_ldexp_f32 v{O+i}, v{O+i}, v{vT+3}")
    for i in range(16):
        k(f"v_sub_f32 v{Sx[0]+i}, v{Sx[0]+i}, v{vT+4}")
    for i in range(8):
        k(f"""v_lshlrev_b32 v{vT}, 16, v{P[1]+i}
        v_and_b32 v{vT+1}, s{sMask}, v{P[1]+i}
        v_ldexp_f32 v{vT}, v{vT}, v{vT+3}
        v_ldexp_f32 v{vT+1}, v{vT+1}, v{vT+3}
        v_cvt_pk_bf16_f32 v{P[1]+i}, v{vT}, v{vT+1}""")
    set_m()
    for i in range(3):
        k(f"s_cmp_eq_u32 s{sRet}, {i}\ns_cbranch_scc1 {rb[i]}")
    k(f"s_branch {rb[3]}")
    k.label(slow)
    p1 = k.lab("p1"); p2 = k.lab("p2")
    k(f"""v_mov_b32 v{QB+1}, 0
    v_mov_b32 v{vM}, 0xff7fffff
    v_lshlrev_b32 v{vKb}, 2, v{vL}
    v_min_u32 v{vVa}, 20, v{vN}
    v_lshlrev_b32 v{vVa}, 4, v{vVa}
    v_mul_u32_u24 v{vT}, 336, v{vH}
    v_add_u32 v{vVa}, v{vVa}, v{vT}
    s_mov_b32 s{sSo}, 0""")
    def gK():
        k(f"buffer_load_dwordx4 {v(KA,4)}, v{vD}, s[{sKV}:{sKV+3}], s{sSo} offen offset:{KV_KA} {CO}")
        k(f"buffer_load_dword v{KB}, v{vKb}, s[{sKV}:{sKV+3}], s{sSo} offen offset:{KV_KB} {CO}")
    k.label(p1)
    gK()
    k("s_waitcnt vmcnt(0)")
    for x in qk(Sx[0]):
        k(x)
    k("s_nop 7\ns_nop 3")
    maxtree(Sx[0], False)
    k(f"s_add_u32 s{sSo}, s{sSo}, {KV_TILE}\ns_cmp_lt_u32 s{sSo}, {SZ_KV}\ns_cbranch_scc1 {p1}")
    cross_half_max()
    set_m()
    for i in range(16):
        k(f"v_mov_b32 v{O+i}, 0")
    k(f"s_mov_b32 s{sSo}, 0")
    k.label(p2)
    gK()
    k(f"buffer_load_dwordx4 {v(V0,4)}, v{vVa}, s[{sKV}:{sKV+3}], s{sSo} offen offset:{KV_V} {CO}")
    k(f"buffer_load_dwordx4 {v(V1,4)}, v{vVa}, s[{sKV}:{sKV+3}], s{sSo} offen offset:{KV_V+672} {CO}")
    k("s_waitcnt vmcnt(0)")
    for x in qk(Sx[0]):
        k(x)
    k("s_nop 7\ns_nop 3")
    for j in range(16):
        k(f"v_exp_f32 v{Sx[0]+j}, v{Sx[0]+j}")
    k("s_nop 0")
    for j in range(8):
        k(f"v_cvt_pk_bf16_f32 v{P[0]+j}, v{Sx[0]+2*j}, v{Sx[0]+2*j+1}")
    k("s_nop 1")
    for x in pv(P[0]):
        k(x)
    k(f"s_add_u32 s{sSo}, s{sSo}, {KV_TILE}\ns_cmp_lt_u32 s{sSo}, {SZ_KV}\ns_cbranch_scc1 {p2}")
    k(f"s_nop 7\ns_nop 3\ns_branch {fin}")
    return a.n


def gen_k2a():
    k = Kern("k2_attn_kernel", 256, 512, ATT_LDS + 256, 104)
    end = k.lab("end")
    k(f"s_cmp_ge_u32 s2, 256\ns_cbranch_scc1 {end}")
    k(f"s_load_dwordx2 s[4:5], s[0:1], {KA_WS}")
    k(f"""v_lshrrev_b32 v2, 6, v0
    v_and_b32 v1, 63, v0
    v_readfirstlane_b32 s3, v2
    v_lshlrev_b32 v2, 2, v1
    v_add_u32 v2, {ATT_LDS}, v2
    v_mov_b32 v3, 0
    ds_write_b32 v2, v3
    s_lshl_b32 s6, s2, 3
    s_add_u32 s6, s6, s3
    s_waitcnt lgkmcnt(0)""")
    n = emit_attn(k, 6, 3, 1, 4, 8, 4, 0, ATT_LDS, pre_publish=lambda: k("s_barrier"))
    assert n <= 104, n
    k.label(end)
    k("s_endpgm")
    return k
```

```python
import sys, importlib
sys.path.insert(0, "gen")
from common import *
import lint, fixalign

HDR = open("parallel_sum__grouped_kv_mqa__mixer_gmlp__prompt.s.ref").read().split("; Override launch")[0]

def build(kerns, path, launches=None):
    t = HDR
    import os
    for kk in (launches or kerns):
        ll = kk.launch_line()
        if os.environ.get("SINGLE"):
            ll = ll.replace(f"kernel={kk.name} ", "")
        t += ll + "\n"
    t += '.amdgcn_target "amdgcn-amd-amdhsa--gfx950"\n.text\n'
    nerr = 0
    for kk in kerns:
        kk.L, unf = fixalign.fix(kk.L)
        body = kk.text()
        e = lint.lint(body)
        for x in e:
            print(kk.name, x)
        nerr += len(e)
        t += body
    t += '.section .rodata,"a"\n'
    for kk in kerns:
        t += kk.desc()
    open(path, "w").write(t)
    print("hazard findings:", nerr, " bytes:", len(t))

if __name__ == "__main__":
    import k1
    ks = [k1.gen_k1()]
    build(ks, sys.argv[1] if len(sys.argv) > 1 else "out.s")
```

```python
import struct

S, D, H, DH, F, FH = 2048, 640, 32, 20, 1728, 864
WS_Q   = 0x0
WS_Z   = 0x280000
WS_KV  = 0x940000
KV_TILE = 2624
KV_KA, KV_KB, KV_V = 0, 1024, 1280
WS_Z2F = 0x970000
WS_OUF = 0xCF0000
WS_WF  = 0x12D0000
WS_FLAG = 0x14B0000
FL_X, FL_Q, FL_S, FL_Z, FL_U, FL_O, FL_E, SZ_FLAG = [0x8000 * i for i in range(7)] + [0x30080]
WS_XN = WS_Z
WS_ST = WS_Z + 0x300000
SZ_ST = 16*14*1024
WS_STAMP = 0x1510000
import os
STAMP = os.environ.get('STAMP', '0') == '1'
SZ_Q, SZ_Z, SZ_KV = 2048*1280, 2048*3456, 64*KV_TILE
SZ_Z2F, SZ_OUF, SZ_WF = 27*128*1024, 128*47*1024, 8*47*5*1024
KA_X, KA_WQ, KA_WK, KA_WV, KA_WO, KA_BX, KA_WIN, KA_WSP, KA_BSP, KA_WOUT, KA_OUT, KA_DBG, KA_WS = [8*i for i in range(13)]

def f2u(x):
    return struct.unpack("<I", struct.pack("<f", x))[0]
def hx(x):
    return "0x%08x" % (x & 0xffffffff)
def fl(x):
    return hx(f2u(x))

def v(i, n=1):
    return f"v{i}" if n == 1 else f"v[{i}:{i+n-1}]"
def s(i, n=1):
    return f"s{i}" if n == 1 else f"s[{i}:{i+n-1}]"

class Kern:
    def __init__(self, name, grid, block, lds, vgprs, sgprs=100):
        self.name, self.grid, self.block, self.lds, self.vgprs, self.sgprs = name, grid, block, lds, vgprs, sgprs
        self.L = []
        self.nlab = 0
    def __call__(self, txt):
        for l in txt.strip("\n").split("\n"):
            l = l.strip()
            if l:
                self.L.append(("" if l.endswith(":") else "    ") + l)
    def c(self, txt):
        self.L.append("    ; " + txt)
    def lab(self, base):
        self.nlab += 1
        return f"L_{self.name[:-7]}_{base}_{self.nlab}"
    def label(self, l):
        self.L.append(l + ":")
    def align(self, n=6):
        self.L.append(f"    .p2align {n}")
    def srd(self, d, base, size, off=0):
        if off:
            self(f"s_add_u32 s{d}, s{base}, {hx(off)}\ns_addc_u32 s{d+1}, s{base+1}, 0")
        else:
            self(f"s_mov_b32 s{d}, s{base}\ns_mov_b32 s{d+1}, s{base+1}")
        self(f"s_mov_b32 s{d+2}, {hx(size)}\ns_mov_b32 s{d+3}, 0x00020000")
    def stamp(self, i):
        if STAMP:
            self(f"s_memtime s[{80+2*i}:{81+2*i}]")
    def stamp_rt(self, i):
        if STAMP:
            self(f"s_memrealtime s[{80+2*i}:{81+2*i}]")
    def endpgm(self, P_WS=None, slot=0):
        if STAMP and P_WS is not None:
            self("s_mov_b64 exec, -1")
            self("s_memtime s[92:93]\ns_memrealtime s[94:95]")
            self(f"s_add_u32 s76, s{P_WS}, {hx(WS_STAMP + slot*0x20000)}\ns_addc_u32 s77, s{P_WS+1}, 0\ns_mov_b32 s78, 0x20000\ns_mov_b32 s79, 0x00020000")
            self("s_waitcnt lgkmcnt(0)")
            self(f"v_lshrrev_b32 v0, 6, v0\ns_mul_i32 s75, s2, {self.block//64}\nv_add_u32 v0, s75, v0\nv_lshlrev_b32 v0, 5, v0")
            for i in range(8):
                self(f"v_mov_b32 v{4+i}, s{80+2*i}")
            self("s_mov_b64 exec, 1")
            self("buffer_store_dwordx4 v[4:7], v0, s[76:79], 0 offen\nbuffer_store_dwordx4 v[8:11], v0, s[76:79], 0 offen offset:16")
        self("s_endpgm")
    def launch_line(self):
        return f"; @launch kernel={self.name} grid=({self.grid},1,1) block=({self.block},1,1) lds={self.lds}"
    def text(self):
        t = f".globl {self.name}\n.p2align 8\n.type {self.name},@function\n{self.name}:\n"
        return t + "\n".join(self.L) + "\n"
    def desc(self):
        acc = (self.vgprs + 3) // 4 * 4
        if acc > 256:
            acc = 256
        return f""".p2align 6
.amdhsa_kernel {self.name}
  .amdhsa_next_free_vgpr {self.vgprs}
  .amdhsa_next_free_sgpr {self.sgprs}
  .amdhsa_accum_offset {acc}
  .amdhsa_group_segment_fixed_size 0
  .amdhsa_kernarg_size 104
  .amdhsa_user_sgpr_count 2
  .amdhsa_user_sgpr_kernarg_segment_ptr 1
  .amdhsa_system_sgpr_workgroup_id_x 1
  .amdhsa_float_denorm_mode_32 3
.end_amdhsa_kernel
"""

class Alloc:
    def __init__(self, start=0):
        self.n = start
    def __call__(self, cnt=1, align=1):
        if cnt >= 2 and align == 1:
            align = 2
        self.n = (self.n + align - 1) // align * align
        r = self.n
        self.n += cnt
        return r

def interleave(prim, fill):
    out = []
    n, m = len(prim), len(fill)
    k = 0
    for i, p in enumerate(prim):
        out.append(p)
        e = (i + 1) * m // n
        out += fill[k:e]
        k = e
    return out
```

```python
from common import *

def emit_norm(k, sWG, sW, vL, P_WS, sS, vb, lds_base, sync, coh="", after_issue=None, nwait=0):
    sZ, sO, sT, sMask = sS, sS + 4, sS + 8, sS + 14
    a = Alloc(vb)
    raw = [a(8, 4), a(8, 4)]
    f = [a(16, 2), a(16, 2)]
    st = a(4, 2)
    vA, vB = a(), a()
    k.srd(sZ, P_WS, SZ_Z, WS_Z)
    k.srd(sO, P_WS, SZ_Z2F, WS_Z2F)
    k(f"""s_lshl_b32 s{sT}, s{sWG}, 3
    s_lshl_b32 s{sT+1}, s{sW}, 1
    s_add_u32 s{sT}, s{sT}, s{sT+1}
    s_mul_i32 s{sT}, s{sT}, 3456
    s_add_u32 s{sT}, s{sT}, 1728
    s_add_u32 s{sT+2}, s{sT}, 3456
    s_mov_b32 s{sMask}, 0xffff0000
    v_lshlrev_b32 v{vA}, 4, v{vL}""")
    for r in range(2):
        for i in range(4, 8):
            k(f"v_mov_b32 v{raw[r]+i}, 0")
    for r in range(2):
        k(f"buffer_load_dwordx4 {v(raw[r],4)}, v{vA}, s[{sZ}:{sZ+3}], s{sT+2*r} offen")
    k("s_mov_b32 exec_hi, 0xfff")
    for r in range(2):
        k(f"buffer_load_dwordx4 {v(raw[r]+4,4)}, v{vA}, s[{sZ}:{sZ+3}], s{sT+2*r} offen offset:1024")
    k("s_mov_b32 exec_hi, -1")
    if after_issue:
        after_issue()
    k(f"s_waitcnt vmcnt({nwait})")
    for r in range(2):
        for i in range(8):
            k(f"v_lshlrev_b32 v{f[r]+2*i}, 16, v{raw[r]+i}\nv_and_b32 v{f[r]+2*i+1}, s{sMask}, v{raw[r]+i}")
    for r in range(2):
        k(f"v_add_f32 v{st+2*r}, v{f[r]}, v{f[r]+1}\nv_mul_f32 v{st+2*r+1}, v{f[r]}, v{f[r]}")
    for i in range(1, 16):
        for r in range(2):
            if i > 1:
                k(f"v_add_f32 v{st+2*r}, v{st+2*r}, v{f[r]+i}")
            k(f"v_fmac_f32 v{st+2*r+1}, v{f[r]+i}, v{f[r]+i}")
    for m in ("row_shr:1", "row_shr:2", "row_shr:4", "row_shr:8"):
        for i in range(4):
            k(f"v_add_f32_dpp v{st+i}, v{st+i}, v{st+i} {m} row_mask:0xf bank_mask:0xf bound_ctrl:0")
    for m in ("row_bcast:15 row_mask:0xa", "row_bcast:31 row_mask:0xc"):
        for i in range(4):
            k(f"v_add_f32_dpp v{st+i}, v{st+i}, v{st+i} {m} bank_mask:0xf")
    for r in range(2):
        k(f"v_mul_f32 v{st+2*r}, {fl(1.0/864)}, v{st+2*r}\nv_mul_f32 v{st+2*r+1}, {fl(1.0/864)}, v{st+2*r+1}")
    for r in range(2):
        k(f"v_fma_f32 v{st+2*r+1}, -v{st+2*r}, v{st+2*r}, v{st+2*r+1}")
    for r in range(2):
        k(f"v_max_f32 v{st+2*r+1}, 0, v{st+2*r+1}")
    for r in range(2):
        k(f"v_add_f32 v{st+2*r+1}, {fl(1e-5)}, v{st+2*r+1}")
    for r in range(2):
        k(f"v_rsq_f32 v{st+2*r+1}, v{st+2*r+1}")
    k("s_nop 0")
    for r in range(2):
        k(f"v_mul_f32 v{st+2*r}, v{st+2*r}, v{st+2*r+1}")
    k("s_nop 0")
    for i in range(4):
        k(f"v_readlane_b32 s{sT+2+i}, v{st+i}, 63")
    k(f"s_mul_i32 s{sT}, s{sW}, 3456\ns_add_u32 s{sT}, s{sT}, {lds_base}\nv_add_u32 v{vB}, s{sT}, v{vA}")
    for r in range(2):
        k(f"v_mov_b32 v{st+2*r}, s{sT+2+2*r}")
    for r in range(2):
        for i in range(16):
            k(f"v_fma_f32 v{f[r]+i}, v{f[r]+i}, s{sT+3+2*r}, -v{st+2*r}")
        for i in range(8):
            k(f"v_cvt_pk_bf16_f32 v{raw[r]+i}, v{f[r]+2*i}, v{f[r]+2*i+1}")
    for r in range(2):
        k(f"ds_write_b128 v{vB}, {v(raw[r],4)} offset:{1728*r}")
    k("s_mov_b32 exec_hi, 0xfff")
    for r in range(2):
        k(f"ds_write_b128 v{vB}, {v(raw[r]+4,4)} offset:{1728*r+1024}")
    k("s_mov_b32 exec_hi, -1")
    k("s_waitcnt lgkmcnt(0)")
    sync()
    k(f"""v_bfe_u32 v{vB}, v{vL}, 2, 2
    v_mul_u32_u24 v{vB}, 1728, v{vB}
    v_lshrrev_b32 v{st}, 4, v{vL}
    v_lshl_add_u32 v{vB}, v{st}, 5, v{vB}
    v_and_b32 v{st}, 3, v{vL}
    v_lshl_add_u32 v{vB}, v{st}, 3, v{vB}
    s_lshl_b32 s{sT}, s{sW}, 7
    s_add_u32 s{sT}, s{sT}, {lds_base}
    v_add_u32 v{vB}, s{sT}, v{vB}""")
    for i in range(4):
        k(f"ds_read_b64_tr_b16 {v(f[0]+4*i,2)}, v{vB} offset:{512*i}")
        k(f"ds_read_b64_tr_b16 {v(f[0]+4*i+2,2)}, v{vB} offset:{512*i+4*1728}")
    k(f"""v_lshrrev_b32 v{st}, 5, v{vL}
    v_lshlrev_b32 v{st}, 17, v{st}
    v_and_b32 v{st+1}, 31, v{vL}
    v_lshl_add_u32 v{st}, v{st+1}, 4, v{st}
    s_lshl_b32 s{sT}, s{sW}, 18
    s_lshl_b32 s{sT+1}, s{sWG}, 9
    s_add_u32 s{sT}, s{sT}, s{sT+1}""")
    for i in range(4):
        k(f"s_waitcnt lgkmcnt({6-2*i})")
        k(f"buffer_store_dwordx4 {v(f[0]+4*i,4)}, v{st}, s[{sO}:{sO+3}], s{sT} offen {coh}")
        if i < 3:
            k(f"s_add_u32 s{sT}, s{sT}, 0x100000")


def gen_k2n():
    k = Kern("k2_norm_kernel", 256, 256, 16384, 72)
    end = k.lab("end")
    k(f"s_cmp_ge_u32 s2, 256\ns_cbranch_scc1 {end}")
    k(f"s_load_dwordx2 s[4:5], s[0:1], {KA_WS}")
    k("v_lshrrev_b32 v2, 6, v0\nv_and_b32 v1, 63, v0\nv_readfirstlane_b32 s3, v2\ns_waitcnt lgkmcnt(0)")
    emit_norm(k, 2, 3, 1, 4, 8, 4, 0, lambda: k("s_barrier"))
    k.label(end)
    k("s_endpgm")
    return k

def emit_repack(k, sKS, sW, vL, P_WO, P_WOUT, P_WS, sS, vb, lds_base, sync, coh=''):
    sI, sO, sT = sS, sS + 4, sS + 8
    a = Alloc(vb)
    d = a(40, 4)
    vA, vB, vC = a(), a(), a()
    l1 = k.lab("rp1"); l2 = k.lab("rp2")
    k(f"s_cmp_ge_u32 s{sKS}, 20\ns_cbranch_scc1 {l1}")
    k.srd(sI, P_WO, 640*1280)
    k(f"s_mul_i32 s{sT}, s{sKS}, 40960\ns_branch {l2}")
    k.label(l1)
    k.srd(sI, P_WOUT, 864*1280)
    k(f"s_sub_u32 s{sT}, s{sKS}, 20\ns_mul_i32 s{sT}, s{sT}, 40960")
    k.label(l2)
    k.srd(sO, P_WS, SZ_WF, WS_WF)
    k(f"""s_mul_i32 s{sT+1}, s{sW}, 10240
    s_add_u32 s{sT}, s{sT}, s{sT+1}
    s_add_u32 s{sT+1}, s{sT+1}, {lds_base}
    v_lshlrev_b32 v{vA}, 4, v{vL}""")
    for i in range(10):
        if i % 4 == 0:
            k(f"s_add_u32 m0, s{sT+1}, {1024*i}\ns_add_u32 s{sT+2}, s{sT}, {1024*i}")
        k(f"buffer_load_dwordx4 v{vA}, s[{sI}:{sI+3}], s{sT+2} offen offset:{1024*(i%4)} lds")
    k(f"""v_lshrrev_b32 v{vB}, 4, v{vL}
    v_bfe_u32 v{vC}, v{vL}, 2, 2
    v_lshl_add_u32 v{vB}, v{vB}, 3, v{vC}
    v_mul_u32_u24 v{vB}, 1280, v{vB}
    v_and_b32 v{vC}, 3, v{vL}
    v_lshl_add_u32 v{vB}, v{vC}, 3, v{vB}
    s_mul_i32 s{sT}, s{sW}, 320
    s_add_u32 s{sT}, s{sT}, {lds_base}
    v_add_u32 v{vB}, s{sT}, v{vB}
    s_waitcnt vmcnt(0)""")
    sync()
    k(f"s_mul_i32 s{sT}, s{sW}, {2*47*5120}\ns_mul_i32 s{sT+1}, s{sKS}, 5120\ns_add_u32 s{sT}, s{sT}, s{sT+1}")
    for half in range(2):
        for i in range(5*half, 5*half+5):
            k(f"ds_read_b64_tr_b16 {v(d+4*i,2)}, v{vB} offset:{32*i}")
            k(f"ds_read_b64_tr_b16 {v(d+4*i+2,2)}, v{vB} offset:{32*i+4*1280}")
        k("s_waitcnt lgkmcnt(0)")
        for i in range(5*half, 5*half+5):
            u = i % 5
            if u == 4:
                k(f"s_add_u32 s{sT+1}, s{sT}, 4096")
                k(f"buffer_store_dwordx4 {v(d+4*i,4)}, v{vA}, s[{sO}:{sO+3}], s{sT+1} offen {coh}")
            else:
                k(f"buffer_store_dwordx4 {v(d+4*i,4)}, v{vA}, s[{sO}:{sO+3}], s{sT} offen offset:{1024*u} {coh}")
        if half == 0:
            k(f"s_add_u32 s{sT}, s{sT}, {47*5120}")


def gen_k2w():
    k = Kern("k2_repack_kernel", 47, 256, 40960, 56)
    end = k.lab("end")
    k(f"s_cmp_ge_u32 s2, 47\ns_cbranch_scc1 {end}")
    k(f"s_load_dwordx2 s[4:5], s[0:1], {KA_WS}\ns_load_dwordx2 s[6:7], s[0:1], {KA_WO}\ns_load_dwordx2 s[24:25], s[0:1], {KA_WOUT}")
    k("v_lshrrev_b32 v2, 6, v0\nv_and_b32 v1, 63, v0\nv_readfirstlane_b32 s3, v2\ns_waitcnt lgkmcnt(0)")
    emit_repack(k, 2, 3, 1, 6, 24, 4, 8, 4, 0, lambda: k("s_barrier"))
    k.label(end)
    k("s_endpgm")
    return k

GST = 24576
GNS = 3
def emit_spatial(k, sTB, sFG, sW, vL, P_WSP, P_BSP, P_WS, sS, vb, lds_base, arrive, wait, pre_z=None, coh=""):
    sA, sZ, sO = sS, sS + 4, sS + 8
    sT, sI, sBuf, sSoA, sSoZ, sDelta, sM0A, sM0Z, sMask = sS + 12, sS + 15, sS + 16, sS + 17, sS + 18, sS + 19, sS + 20, sS + 21, sS + 22
    a = Alloc(vb)
    acc = [a(16, 4), a(16, 4)]
    fw = [[a(4, 4), a(4, 4)] for b in range(2)]
    fz = [a(4, 4) for b in range(2)]
    z1 = a(16, 4)
    vD = a(4, 1); vDz = a()
    vWa = a(4, 1); vZa = a()
    vN, vH, vBias = a(), a(), a(2, 2)
    vT = a(4, 2)
    k.stamp(0); k.stamp_rt(5)
    k.srd(sA, P_WSP, 2048*4096)
    k.srd(sO, P_WS, SZ_Z, WS_Z)
    k(f"v_and_b32 v{vN}, 31, v{vL}\nv_lshrrev_b32 v{vH}, 5, v{vL}\ns_mov_b32 s{sMask}, 0xffff0000")
    k(f"v_lshrrev_b32 v{vT}, 3, v{vL}\nv_and_b32 v{vT+1}, 7, v{vL}")
    for p in range(4):
        k(f"""v_add_u32 v{vT+2}, {8*p}, v{vT}
        v_bfe_u32 v{vT+3}, v{vT+2}, 1, 3
        v_xor_b32 v{vT+3}, v{vT+3}, v{vT+1}
        v_lshlrev_b32 v{vT+2}, 12, v{vT+2}
        v_lshl_add_u32 v{vD+p}, v{vT+3}, 4, v{vT+2}""")
        if p:
            k(f"v_subrev_u32 v{vD+p}, {1024*p}, v{vD+p}")
    k(f"""v_lshlrev_b32 v{vDz}, 4, v{vL}
    s_lshl_b32 s{sSoA}, s{sTB}, 2
    s_add_u32 s{sSoA}, s{sSoA}, s{sW}
    s_lshl_b32 s{sSoA}, s{sSoA}, 17
    s_lshl_b32 s{sM0A}, s{sW}, 12
    s_add_u32 s{sM0A}, s{sM0A}, {lds_base}
    s_lshl_b32 s{sM0Z}, s{sW}, 11
    s_add_u32 s{sM0Z}, s{sM0Z}, {lds_base+16384}
    s_lshr_b32 s{sT+1}, s{sW}, 1
    s_lshl_b32 s{sT}, s{sFG}, 1
    s_add_u32 s{sT+1}, s{sT}, s{sT+1}
    s_lshl_b32 s{sSoZ}, s{sT+1}, 17
    s_and_b32 s{sT}, s{sW}, 1
    s_lshl_b32 s{sT+2}, s{sT}, 11
    s_add_u32 s{sSoZ}, s{sSoZ}, s{sT+2}""")
    def dma_a(buf):
        if isinstance(buf, int):
            k(f"s_add_u32 m0, s{sM0A}, {buf*GST}")
        else:
            k(f"s_add_u32 m0, s{sM0A}, {buf}")
        k("s_nop 0")
        for p in range(4):
            k(f"buffer_load_dwordx4 v{vD+p}, s[{sA}:{sA+3}], s{sSoA} offen offset:{1024*p} lds")
        k(f"s_add_u32 s{sSoA}, s{sSoA}, 128")
    def dma_z(buf):
        if isinstance(buf, int):
            k(f"s_add_u32 m0, s{sM0Z}, {buf*GST}")
        else:
            k(f"s_add_u32 m0, s{sM0Z}, {buf}")
        k("s_nop 0")
        for p in range(2):
            k(f"buffer_load_dwordx4 v{vDz}, s[{sZ}:{sZ+3}], s{sSoZ} offen offset:{1024*p} {coh} lds")
        k(f"s_add_u32 s{sSoZ}, s{sSoZ}, 4096")
    k(f"""s_lshl_b32 s{sT+2}, s{sTB}, 7
    s_lshl_b32 s{sDelta}, s{sT}, 6
    s_add_u32 s{sT+2}, s{sT+2}, s{sDelta}
    v_add_u32 v{vT}, s{sT+2}, v{vN}
    v_mul_u32_u24 v{vT+1}, 3456, v{vT}
    v_lshl_add_u32 v{vT+1}, v{vH}, 4, v{vT+1}
    s_lshl_b32 s{sDelta}, s{sT+1}, 6
    s_add_u32 s{sBuf}, s{sDelta}, {32*3456}
    v_lshlrev_b32 v{vT+2}, 1, v{vT}""")
    for i in range(2):
        for jp in range(2):
            k(f"buffer_load_dwordx4 {v(z1+8*i+4*jp,4)}, v{vT+1}, s[{sO}:{sO+3}], s{sDelta if i == 0 else sBuf} offen offset:{32*jp}")
    k.srd(sZ, P_BSP, 4096)
    for i in range(2):
        k(f"buffer_load_ushort v{vBias+i}, v{vT+2}, s[{sZ}:{sZ+3}], 0 offen offset:{64*i}")
    for st in range(GNS):
        dma_a(st)
    k.srd(sZ, P_WS, SZ_Z2F, WS_Z2F)
    k.srd(sO, P_WS, SZ_OUF, WS_OUF)
    k(f"""v_bfe_u32 v{vT+1}, v{vN}, 1, 3
    v_xor_b32 v{vT+1}, v{vT+1}, v{vH}
    s_lshl_b32 s{sT+2}, s{sT}, 13
    s_add_u32 s{sT+2}, s{sT+2}, {lds_base}
    v_lshlrev_b32 v{vT+2}, 7, v{vN}
    v_add_u32 v{vT+2}, s{sT+2}, v{vT+2}""")
    for q in range(4):
        k(f"v_xor_b32 v{vT+3}, {2*q}, v{vT+1}\nv_lshl_add_u32 v{vWa+q}, v{vT+3}, 4, v{vT+2}")
    k(f"""s_lshr_b32 s{sT+2}, s{sW}, 1
    s_lshl_b32 s{sT+2}, s{sT+2}, 12
    s_add_u32 s{sT+2}, s{sT+2}, {lds_base+16384}
    v_add_u32 v{vZa}, s{sT+2}, v{vDz}""")
    for t in range(2):
        for i in range(16):
            k(f"v_mov_b32 v{acc[t]+i}, 0")
    if pre_z:
        pre_z()
    for st in range(GNS):
        dma_z(st)
    def reads(q, b):
        return [f"ds_read_b128 {v(fz[b],4)}, v{vZa} offset:{1024*q}",
                f"ds_read_b128 {v(fw[b][0],4)}, v{vWa+q}",
                f"ds_read_b128 {v(fw[b][1],4)}, v{vWa+q} offset:4096"]
    k(f"s_mov_b32 s{sI}, 0\ns_mov_b32 s{sBuf}, 0")
    k.stamp(1)
    k("s_waitcnt vmcnt(4)")
    arrive(); wait()
    k.stamp(2)
    for r in reads(0, 0):
        k(r)
    loop = k.lab("gloop"); w0 = k.lab("gw0"); w1 = k.lab("gw1"); w2 = k.lab("gw2"); nod = k.lab("gnod")
    k.align(3)
    k.label(loop)
    for q in range(4):
        b = q % 2
        mf = [f"v_mfma_f32_32x32x16_bf16 {v(acc[t],16)}, {v(fz[b],4)}, {v(fw[b][t],4)}, {v(acc[t],16)}" for t in range(2)]
        k("s_waitcnt lgkmcnt(0)")
        if q < 3:
            for x in interleave(mf, reads(q + 1, 1 - b)):
                k(x)
        else:
            k(f"s_cmp_eq_u32 s{sI}, 0\ns_cbranch_scc1 {w2}\ns_cmp_lt_u32 s{sI}, 30\ns_cbranch_scc1 {w0}\ns_waitcnt vmcnt(0)\ns_branch {w1}")
            k.label(w2)
            k(f"s_waitcnt vmcnt(2)\ns_branch {w1}")
            k.label(w0)
            k("s_waitcnt vmcnt(6)")
            k.label(w1)
            arrive()
            k(mf[0])
            k(f"s_mov_b32 s{sDelta}, {GST}\ns_cmp_eq_u32 s{sBuf}, {(GNS-1)*GST}\ns_cmov_b32 s{sDelta}, {hx(-(GNS-1)*GST)}")
            for i in range(4):
                k(f"v_add_u32 v{vWa+i}, s{sDelta}, v{vWa+i}")
            k(f"v_add_u32 v{vZa}, s{sDelta}, v{vZa}")
            k(mf[1])
            wait()
            for x in reads(0, 0):
                k(x)
            k(f"s_cmp_ge_u32 s{sI}, {32-GNS}\ns_cbranch_scc1 {nod}")
            dma_a(f"s{sBuf}")
            dma_z(f"s{sBuf}")
            k.label(nod)
            k(f"s_add_u32 s{sBuf}, s{sBuf}, s{sDelta}")
    k(f"s_add_u32 s{sI}, s{sI}, 1\ns_cmp_lt_u32 s{sI}, 32\ns_cbranch_scc1 {loop}")
    k.stamp(3)
    fin = k.lab("gfin")
    k(f"s_waitcnt lgkmcnt(0)\ns_cmp_eq_u32 s{sT+1}, 27\ns_cbranch_scc1 {fin}")
    k(f"""v_lshrrev_b32 v{vT+1}, 4, v{vT}
    v_mul_u32_u24 v{vT+1}, {47*1024}, v{vT+1}
    v_and_b32 v{vT+2}, 15, v{vT}
    v_lshl_add_u32 v{vT+1}, v{vT+2}, 4, v{vT+1}
    v_lshl_add_u32 v{vT+1}, v{vH}, 8, v{vT+1}
    s_add_u32 s{sT+2}, s{sT+1}, 20
    s_lshl_b32 s{sT+2}, s{sT+2}, 10
    s_add_u32 s{sDelta}, s{sT+2}, {2*47*1024}
    v_lshlrev_b32 v{vBias}, 16, v{vBias}
    v_lshlrev_b32 v{vBias+1}, 16, v{vBias+1}""")
    for i in range(2):
        for jp in range(2):
            b0 = z1 + 8*i + 4*jp
            k(f"v_permlane32_swap_b32 v{b0}, v{b0+2}\nv_permlane32_swap_b32 v{b0+1}, v{b0+3}")
    tmp = fw[0][0]
    for i in range(2):
        for r in range(8):
            zr = z1 + 8*i + r
            a0 = acc[i] + 2*r
            k(f"""v_lshlrev_b32 v{tmp}, 16, v{zr}
            v_and_b32 v{tmp+1}, s{sMask}, v{zr}
            v_add_f32 v{a0}, v{a0}, v{vBias+i}
            v_add_f32 v{a0+1}, v{a0+1}, v{vBias+i}
            v_mul_f32 v{a0}, v{a0}, v{tmp}
            v_mul_f32 v{a0+1}, v{a0+1}, v{tmp+1}
            v_cvt_pk_bf16_f32 v{zr}, v{a0}, v{a0+1}""")
        k("s_nop 1")
        for jp in range(2):
            b0 = z1 + 8*i + 4*jp
            k(f"v_permlane32_swap_b32 v{b0}, v{b0+2}\nv_permlane32_swap_b32 v{b0+1}, v{b0+3}")
        for jp in range(2):
            k(f"buffer_store_dwordx4 {v(z1+8*i+4*jp,4)}, v{vT+1}, s[{sO}:{sO+3}], s{sT+2 if i == 0 else sDelta} offen offset:{512*jp}")
    k.label(fin)
    return a.n


def tile_map_spatial(k, sTB, sFG, sT):
    k(f"""s_and_b32 s{sT}, s2, 7
    s_lshr_b32 s{sT+1}, s2, 3
    s_lshr_b32 s{sTB}, s{sT}, 1
    s_lshl_b32 s{sTB}, s{sTB}, 2
    s_and_b32 s{sFG}, s{sT+1}, 3
    s_add_u32 s{sTB}, s{sTB}, s{sFG}
    s_and_b32 s{sFG}, s{sT}, 1
    s_mul_i32 s{sFG}, s{sFG}, 7
    s_lshr_b32 s{sT}, s{sT+1}, 2
    s_add_u32 s{sFG}, s{sFG}, s{sT}
    s_cmp_ge_u32 s{sT+1}, 28""")


def gen_k2g():
    k = Kern("k2_spatial_kernel", 256, 256, GNS*GST, 104)
    end = k.lab("end")
    k(f"s_load_dwordx2 s[4:5], s[0:1], {KA_WS}\ns_load_dwordx4 s[8:11], s[0:1], {KA_WSP}")
    k("v_lshrrev_b32 v2, 6, v0\nv_and_b32 v1, 63, v0\nv_readfirstlane_b32 s3, v2")
    tile_map_spatial(k, 6, 7, 12)
    k(f"s_cbranch_scc1 {end}\ns_waitcnt lgkmcnt(0)")
    n = emit_spatial(k, 6, 7, 3, 1, 8, 10, 4, 16, 4, 0, lambda: None, lambda: k("s_barrier"))
    assert n <= 104, n
    k.endpgm(4, 3)
    k.label(end)
    k("s_endpgm")
    return k
```

```python
from common import *
import os, math
from k2parts import emit_repack
from attn import emit_attn, ATT_LDS

MX = os.environ.get('MX', '')
SP = os.environ.get('SP', 'p1,p2,p3,p4').split(',')
QSCALE = math.log2(math.e) / math.sqrt(20.0)
GC0 = -2.0 * math.sqrt(2.0 / math.pi) * math.log2(math.e)
GC1 = GC0 * 0.044715

L_A = ATT_LDS
L_Z = L_A + 3 * 16384
L_W = L_A - 4096
L_CS = L_Z + 6 * 8192
L_F = L_CS + 2048
F_G, F_OC, F_XC, F_GO, F_XR, F_AUX = 32, 48, 52, 56, 60, 64
MEGA_LDS = L_F + 128
NAME = "parallel_sum__grouped_kv_mqa__mixer_gmlp__prompt_kernel"

def gen_mega(noatt=False, patz='00000000', pats='00000000', lprio=0, seam=False):
    k = Kern(NAME, 256, 768, MEGA_LDS, 168, sgprs=100)
    P_X, P_WQ, P_WK, P_WV, P_WO = 44, 46, 48, 50, 52
    P_WIN, P_WSP, P_BSP, P_WOUT, P_OUT, P_DBG, P_WS = 56, 58, 60, 62, 64, 66, 68
    sWid, sTok, sBlk, sTB, sFG, sBud = 3, 4, 5, 6, 7, 70
    sNo = 96
    sFl = 72
    vL = 1
    end = k.lab("end"); gem = k.lab("gem")
    k(f"s_cmp_ge_u32 s2, 256\ns_cbranch_scc1 {end}")
    k.stamp(0); k.stamp_rt(5)
    k(f"s_load_dwordx8 s[{P_X}:{P_X+7}], s[0:1], {KA_X}\ns_load_dwordx2 s[{P_WO}:{P_WO+1}], s[0:1], {KA_WO}")
    k(f"s_load_dwordx8 s[{P_WIN}:{P_WIN+7}], s[0:1], {KA_WIN}\ns_load_dwordx4 s[{P_OUT}:{P_OUT+3}], s[0:1], {KA_OUT}\ns_load_dwordx2 s[{P_WS}:{P_WS+1}], s[0:1], {KA_WS}")
    k(f"""v_lshrrev_b32 v2, 6, v0
    v_and_b32 v1, 63, v0
    v_readfirstlane_b32 s{sWid}, v2
    v_and_b32 v2, 31, v0
    v_lshlrev_b32 v2, 2, v2
    v_add_u32 v2, {L_F}, v2
    v_mov_b32 v3, 0
    ds_write_b32 v2, v3
    s_and_b32 s{sTB}, s2, 7
    s_lshl_b32 s{sBlk}, s{sTB}, 5
    s_lshr_b32 s{sTok}, s2, 3
    s_add_u32 s{sBlk}, s{sBlk}, s{sTok}
    s_lshl_b32 s{sTok}, s{sBlk}, 3
    s_add_u32 s{sTok}, s{sTok}, s{sWid}
    s_lshl_b32 s{sTB}, s{sTB}, 1
    s_bfe_u32 s{sFG}, s2, 0x10003
    s_add_u32 s{sTB}, s{sTB}, s{sFG}
    s_lshr_b32 s{sFG}, s2, 4
    s_mov_b32 s{sBud}, 400000
    s_waitcnt lgkmcnt(0)""")
    k.srd(sFl, P_WS, SZ_FLAG, WS_FLAG)
    k(f"s_load_dwordx2 s[{sNo}:{sNo+1}], s[{sFl}:{sFl+1}], {hx(FL_E)}")
    k(f"s_cmp_ge_u32 s{sWid}, 8\ns_cbranch_scc1 {gem}")

    def again(l):
        k(f"s_sub_u32 s{sBud}, s{sBud}, 1\ns_cbranch_scc0 {l}")
    def lds_wait(addr, va, vd, slp=1):
        l = k.lab("lw"); d = k.lab("lwd")
        k(f"v_mov_b32 v{va}, {addr}")
        k.label(l)
        k(f"ds_read_b32 v{vd}, v{va}\ns_waitcnt lgkmcnt(0)\nv_cmp_eq_u32 vcc, 0, v{vd}\ns_cbranch_vccz {d}\ns_sleep {slp}")
        again(l)
        k.label(d)
    def lds_set(addr, va, vd):
        k(f"v_mov_b32 v{va}, {addr}\nv_mov_b32 v{vd}, 1\nds_write_b32 v{va}, v{vd}")
    def gcheck(vd):
        k(f"v_cmp_ne_u64 vcc, s[{sNo}:{sNo+1}], {v(vd,2)}")
    def gload(soff, voff, vd):
        return f"buffer_load_dwordx2 {v(vd,2)}, v{voff}, s[{sFl}:{sFl+3}], {soff} offen sc1"
    def gpoll(soff, voff, vd, mask, slp):
        l = k.lab("pl"); d = k.lab("pd")
        if mask is not None: k(f"s_mov_b64 exec, {hx(mask)}")
        k.label(l)
        k(gload(soff, voff, vd))
        k("s_waitcnt vmcnt(0)")
        gcheck(vd)
        k(f"s_cbranch_vccz {d}\ns_sleep {slp}")
        again(l)
        k.label(d)
        if mask is not None: k("s_mov_b64 exec, -1")
    def gset(soff, va, vd):
        k(f"""v_mov_b32 v{vd}, s{sNo}
        v_mov_b32 v{vd+1}, s{sNo+1}
        v_mov_b32 v{va}, 0
        s_mov_b64 exec, 1
        buffer_store_dwordx2 {v(vd,2)}, v{va}, s[{sFl}:{sFl+3}], {soff} offen sc1
        s_mov_b64 exec, -1""")
    def nonce():
        k(f"s_waitcnt lgkmcnt(0)\ns_add_u32 s{sNo}, s{sNo}, 1")

    sX, sO, sT, sMask = 8, 12, 16, 24
    raw, f, st, vA = 4, 12, 28, 30
    nz = k.lab("nz")
    k.srd(sX, P_X, SZ_Q)
    k(f"s_mul_i32 s{sT}, s{sTok}, 1280\nv_lshlrev_b32 v{vA}, 4, v{vL}\ns_mov_b32 s{sMask}, 0xffff0000")
    for i in range(4, 8):
        k(f"v_mov_b32 v{raw+i}, 0")
    k(f"buffer_load_dwordx4 {v(raw,4)}, v{vA}, s[{sX}:{sX+3}], s{sT} offen")
    k("s_mov_b64 exec, 0xffff")
    k(f"buffer_load_dwordx4 {v(raw+4,4)}, v{vA}, s[{sX}:{sX+3}], s{sT} offen offset:1024")
    k("s_mov_b64 exec, -1")
    k.srd(sO, P_WS, SZ_Q, WS_XN)
    nonce()
    k("s_barrier")
    k("s_waitcnt vmcnt(0)")
    for i in range(8):
        k(f"v_lshlrev_b32 v{f+2*i}, 16, v{raw+i}\nv_and_b32 v{f+2*i+1}, s{sMask}, v{raw+i}")
    k(f"v_add_f32 v{st}, v{f}, v{f+1}\nv_mul_f32 v{st+1}, v{f}, v{f}")
    for i in range(1, 16):
        if i > 1:
            k(f"v_add_f32 v{st}, v{st}, v{f+i}")
        k(f"v_fmac_f32 v{st+1}, v{f+i}, v{f+i}")
    for m in ("row_shr:1", "row_shr:2", "row_shr:4", "row_shr:8"):
        k("s_nop 0")
        for i in range(2):
            k(f"v_add_f32_dpp v{st+i}, v{st+i}, v{st+i} {m} row_mask:0xf bank_mask:0xf bound_ctrl:0")
    for m in ("row_bcast:15 row_mask:0xa", "row_bcast:31 row_mask:0xc"):
        k("s_nop 0")
        for i in range(2):
            k(f"v_add_f32_dpp v{st+i}, v{st+i}, v{st+i} {m} bank_mask:0xf")
    k(f"""v_mul_f32 v{st}, {fl(1.0/640)}, v{st}
    v_mul_f32 v{st+1}, {fl(1.0/640)}, v{st+1}
    v_fma_f32 v{st+1}, -v{st}, v{st}, v{st+1}
    v_max_f32 v{st+1}, 0, v{st+1}
    v_add_f32 v{st+1}, {fl(1e-5)}, v{st+1}
    v_rsq_f32 v{st+1}, v{st+1}
    s_nop 0
    v_mul_f32 v{st}, v{st}, v{st+1}
    s_nop 0
    v_readlane_b32 s{sT+1}, v{st}, 63
    v_readlane_b32 s{sT+2}, v{st+1}, 63
    s_nop 0
    v_mov_b32 v{st}, s{sT+1}""")
    for i in range(16):
        k(f"v_fma_f32 v{f+i}, v{f+i}, s{sT+2}, -v{st}")
    for i in range(8):
        k(f"v_cvt_pk_bf16_f32 v{raw+i}, v{f+2*i}, v{f+2*i+1}")
    if "latest" in MX:
        k("s_sleep 127\ns_sleep 60")
    k(f"buffer_store_dwordx4 {v(raw,4)}, v{vA}, s[{sO}:{sO+3}], s{sT} offen sc1")
    k("s_mov_b64 exec, 0xffff")
    k(f"buffer_store_dwordx4 {v(raw+4,4)}, v{vA}, s[{sO}:{sO+3}], s{sT} offen offset:1024 sc1")
    k("s_mov_b64 exec, -1")
    nw0 = k.lab("nw0"); nl = k.lab("nl")
    k(f"""v_mov_b32 v{f}, {L_F+F_XC}
    v_mov_b32 v{f+1}, 1
    s_mov_b64 exec, 1
    s_waitcnt vmcnt(0)
    ds_add_rtn_u32 v{f+1}, v{f}, v{f+1}
    s_waitcnt lgkmcnt(0)
    v_readfirstlane_b32 s{sT}, v{f+1}
    s_mov_b64 exec, -1
    s_cmp_lg_u32 s{sT}, 7
    s_cbranch_scc1 {nl}
    s_lshl_b32 s{sT}, s{sBlk}, 7""")
    gset(f"s{sT}", f, f + 2)
    k.label(nl)
    def att_wait():
        o = k.lab("aw"); d = k.lab("awd")
        t = 104
        k(f"s_cmp_lg_u32 s{sWid}, 0\ns_cbranch_scc1 {o}")
        k(f"v_lshlrev_b32 v{t}, 7, v{vL}\ns_lshl_b32 s40, s{sTB}, 11")
        gpoll("s40", t, t + 2, 0xffff, 8)
        lds_set(L_F + F_XR, t + 2, t + 3)
        k(f"""s_lshr_b32 s40, s{sBlk}, 4
        s_lshl_b32 s40, s40, 11
        s_add_u32 s40, s40, {FL_Q}
        v_add_u32 v{t}, s40, v{t}
        v_lshlrev_b32 v{t+1}, 11, v{vL}
        v_add_u32 v{t+1}, {FL_Z + 14*128 - 16*2048}, v{t+1}
        v_cmp_gt_u32 vcc, 16, v{vL}
        s_nop 1
        v_cndmask_b32 v{t}, v{t+1}, v{t}, vcc""")
        gpoll("0", t, t + 2, 0xffff03ff, 4)
        lds_set(L_F + F_GO, t + 2, t + 3)
        k(f"s_branch {d}")
        k.label(o)
        lds_wait(L_F + F_GO, t, t + 1, 2)
        k.label(d)
        if noatt: k("s_endpgm")
    n = emit_attn(k, sTok, sWid, vL, P_WS, 8, 4, 0, L_F, handoff=sBlk, mega=att_wait, budget=sBud, gset=gset)
    assert n <= 104, n

    k.label(gem)
    def sp(name):
        if name in SP: k.stamp(1 + SP.index(name))
    sA, sB, sO = 8, 12, 16
    sW, sCnt, sSoA, sBaseA, sSoB, sStepB, sM0A, sM0B, sMask, sNeed, sI = range(20, 31)
    sT = 32
    a = Alloc(2)
    vFw, vFa, vFl, vXw, vXa = a(), a(), a(), a(), a()
    vOne = a()
    acc = [a(16, 4), a(16, 4)]
    fs = [[[a(4, 4) for j in range(3)] for q in range(2)] for b in range(2)]
    z1 = a(16, 4); z2 = a(16, 4)
    vD = a(4, 1); vDb = a(2, 1)
    vWa = a(4, 1); vZa = a(2, 1)
    vN, vH, vBias, vTok = a(), a(), a(), a()
    vOnes = a(2, 2)
    vT = a(16, 4)
    assert a.n <= 168, a.n
    tmp = fs[1][0][0]
    k("s_setprio 3")
    k(f"""s_sub_u32 s{sW}, s{sWid}, 8
    v_lshrrev_b32 v{vT}, 3, v{vL}
    v_and_b32 v{vT+1}, 7, v{vL}
    s_lshl_b32 s{sT}, s{sTB}, 2
    s_add_u32 s{sT}, s{sT}, s{sW}
    s_mul_i32 s{sBaseA}, s{sT}, {32*1280}
    s_lshl_b32 s{sM0A}, s{sW}, 12
    s_add_u32 s{sM0A}, s{sM0A}, {L_A}
    s_lshl_b32 s{sM0B}, s{sW}, 11
    s_add_u32 s{sM0B}, s{sM0B}, {L_Z}""")
    def a_addr(stride):
        k(f"v_lshrrev_b32 v{vT}, 3, v{vL}\nv_and_b32 v{vT+1}, 7, v{vL}")
        for p in range(4):
            k(f"""v_add_u32 v{vT+2}, {8*p}, v{vT}
            v_bfe_u32 v{vT+3}, v{vT+2}, 1, 3
            v_xor_b32 v{vT+3}, v{vT+3}, v{vT+1}
            v_mul_u32_u24 v{vT+2}, {stride}, v{vT+2}
            v_lshl_add_u32 v{vD+p}, v{vT+3}, 4, v{vT+2}""")
            if p:
                k(f"v_subrev_u32 v{vD+p}, {1024*p}, v{vD+p}")
    def b_addr(stride):
        k(f"""v_lshrrev_b32 v{vT}, 3, v{vL}
        v_and_b32 v{vT+1}, 7, v{vL}
        v_bfe_u32 v{vT+2}, v{vL}, 4, 1
        v_lshlrev_b32 v{vT+2}, 2, v{vT+2}
        v_xor_b32 v{vT+1}, v{vT+1}, v{vT+2}
        v_mul_u32_u24 v{vT}, {stride}, v{vT}
        v_lshl_add_u32 v{vDb}, v{vT+1}, 4, v{vT}
        v_add_u32 v{vDb+1}, {8*stride-1024}, v{vDb}""")
    def setup_rest():
        k(f"""s_lshl_b32 s{sT+1}, s{sW}, 2
        s_add_u32 s{sT+2}, s{sT+1}, {L_F+F_G}
        v_mov_b32 v{vFw}, s{sT+2}
        s_add_u32 s{sT+2}, s{sT+1}, {L_F+F_AUX}
        v_mov_b32 v{vXw}, s{sT+2}
        v_and_b32 v{vFa}, 3, v{vL}
        v_lshlrev_b32 v{vFa}, 2, v{vFa}
        v_add_u32 v{vXa}, {L_F+F_AUX}, v{vFa}
        v_add_u32 v{vFa}, {L_F+F_G}, v{vFa}
        v_and_b32 v{vN}, 31, v{vL}
        v_lshrrev_b32 v{vH}, 5, v{vL}
        s_mov_b32 s{sMask}, 0xffff0000
        s_mov_b32 s{sCnt}, 0
        v_mov_b32 v{vOne}, 1
        v_mov_b32 v{vOnes}, 0x3f803f80
        v_mov_b32 v{vOnes+1}, 0x3f803f80
        s_lshl_b32 s{sT+1}, s{sTB}, 7
        s_lshl_b32 s{sT+2}, s{sW}, 5
        s_add_u32 s{sT+1}, s{sT+1}, s{sT+2}
        v_add_u32 v{vTok}, s{sT+1}, v{vN}
        v_bfe_u32 v{vT+1}, v{vN}, 1, 3
        v_xor_b32 v{vT+1}, v{vT+1}, v{vH}
        v_lshlrev_b32 v{vT+2}, 7, v{vN}
        v_add_u32 v{vT+2}, s{sM0A}, v{vT+2}""")
        for q in range(4):
            k(f"v_xor_b32 v{vT+3}, {2*q}, v{vT+1}\nv_lshl_add_u32 v{vWa+q}, v{vT+3}, 4, v{vT+2}")
        for i in range(16):
            k(f"v_mov_b32 v{z1+i}, 0")
        nonce()
    def nat_read_addr(rowb):
        k(f"""v_bfe_u32 v{vT}, v{vL}, 2, 2
        v_lshl_add_u32 v{vT}, v{vH}, 3, v{vT}
        v_mul_u32_u24 v{vT}, {rowb}, v{vT}
        v_bfe_u32 v{vT+1}, v{vL}, 4, 1
        v_lshl_add_u32 v{vT}, v{vT+1}, 5, v{vT}
        v_and_b32 v{vT+1}, 3, v{vL}
        v_lshl_add_u32 v{vT}, v{vT+1}, 3, v{vT}""")
        if rowb == 128:
            k(f"""v_bfe_u32 v{vT+1}, v{vL}, 3, 1
            v_lshl_add_u32 v{vT}, v{vT+1}, 6, v{vT}
            v_xor_b32 v{vT+1}, 64, v{vT}
            v_add_u32 v{vZa}, {L_Z}, v{vT}
            v_add_u32 v{vZa+1}, {L_Z}, v{vT+1}""")
        else:
            k(f"v_add_u32 v{vZa}, {L_Z}, v{vT}\nv_add_u32 v{vZa+1}, {L_Z+4096}, v{vT}")

    def spinw(va, val):
        l = k.lab("gspin"); d = k.lab("gspun")
        k.label(l)
        k(f"ds_read_b32 v{vFl}, v{va}\ns_waitcnt lgkmcnt(0)\nv_cmp_gt_u32 vcc, {val}, v{vFl}\ns_cbranch_vccz {d}\ns_sleep 1")
        again(l)
        k.label(d)
    def gsync():
        k(f"s_add_u32 s{sCnt}, s{sCnt}, 1\nv_mov_b32 v{vFl}, s{sCnt}\nds_write_b32 v{vXw}, v{vFl}")
        spinw(vXa, f"s{sCnt}")
    def set_flag(base, col=None):
        l = k.lab("nf")
        k(f"s_cmp_lg_u32 s{sW}, 0\ns_cbranch_scc1 {l}")
        k(f"s_lshl_b32 s{sT}, s{sTB}, 11\ns_lshl_b32 s{sT+1}, s{sFG}, 7\ns_add_u32 s{sT}, s{sT}, s{sT+1}\ns_add_u32 s{sT}, s{sT}, {base}")
        gset(f"s{sT}", vT, vT + 2)
        k.label(l)

    def att_progress(val, va, slp):
        l = k.lab("ac"); d = k.lab("acd")
        k(f"v_and_b32 v{va}, 7, v{vL}\nv_lshlrev_b32 v{va}, 2, v{va}\nv_add_u32 v{va}, {L_F}, v{va}")
        k.label(l)
        k(f"ds_read_b32 v{vFl}, v{va}\ns_waitcnt lgkmcnt(0)\nv_cmp_gt_u32 vcc, {val}, v{vFl}\ns_cbranch_vccz {d}\ns_sleep {slp}")
        again(l)
        k.label(d)
    vm = []
    def vop(tag, txt):
        vm.append(tag); return txt
    def newer(tags):
        idx = [i for i, t in enumerate(vm) if t in tags]
        return len(vm) - 1 - max(idx) if idx else 63
    cohA = [""]; cohB = [""]
    def la(g, p): return vop(("A", g), f"buffer_load_dwordx4 v{vD+p}, s[{sA}:{sA+3}], s{sSoA} offen offset:{1024*p} {cohA[0]} lds")
    def lb(g, p): return vop(("B", g), f"buffer_load_dwordx4 v{vDb+p}, s[{sB}:{sB+3}], s{sSoB} offen offset:{1024*p} {cohB[0]} lds")
    def issue_a(g):
        k(f"s_add_u32 m0, s{sM0A}, {16384*(g%3)}\ns_nop 0")
        for p in range(4): k(la(g, p))
        k(f"s_add_u32 s{sSoA}, s{sSoA}, 128")
    def issue_b(g):
        k(f"s_add_u32 m0, s{sM0B}, {8192*(g%6)}\ns_nop 0")
        for p in range(2): k(lb(g, p))
        k(f"s_add_u32 s{sSoB}, s{sSoB}, s{sStepB}")
    def reads(ty, half, b, g):
        ba, bz = g % 3, g % 6
        r = []
        for q in range(2):
            ks = 2 * half + q
            r.append(f"ds_read_b128 {v(fs[b][q][0],4)}, v{vWa+ks} offset:{16384*ba}")
            for u in range(2):
                d = fs[b][q][1+u]
                if ty == "frag":
                    r.append(f"ds_read_b128 {v(d,4)}, v{vZa} offset:{8192*bz+1024*ks+4096*u}")
                else:
                    rb = 128 if ty == "nat" else 40
                    r.append(f"ds_read_b64_tr_b16 {v(d,2)}, v{vZa+u} offset:{8192*bz+16*rb*ks}")
                    r.append(f"ds_read_b64_tr_b16 {v(d+2,2)}, v{vZa+u} offset:{8192*bz+16*rb*ks+4*rb}")
        return r
    vSx, vSq, vCs = z1, z1 + 4, [z1 + 8, z1 + 12]
    prio = [3]
    pat = [patz]
    def half(b, hf, zero, stats, kv, rd, dm):
        fast = prio[0] == 3
        n = len(rd)
        cut = [0, n, n, n] if fast else [0, (n + 1) // 2, n, n]
        cur = [3]
        def setp(p):
            if not fast and cur[0] != p:
                k(f"s_setprio {p}"); cur[0] = p
        for q in range(2):
            X = fs[b][q][0]
            for i in range(2):
                j = 2 * q + i
                A_, B_ = (X, fs[b][q][1+i]) if (kv and i == 1) else (fs[b][q][1+i], X)
                c = "0" if (zero and q == 0) else v(acc[i], 16)
                if stats:
                    k(f"v_mfma_f32_4x4x4_16b_bf16 {v(vSx,4)}, {v(vOnes,2)}, {v(X+2*i,2)}, {v(vSx,4)}")
                    k(f"v_mfma_f32_4x4x4_16b_bf16 {v(vSq,4)}, {v(X+2*i,2)}, {v(X+2*i,2)}, {v(vSq,4)}")
                    if i == 1:
                        l = k.lab("cs")
                        k(f"s_cmp_lg_u32 s{sW}, {2*hf+q}\ns_cbranch_scc1 {l}")
                        for hh in range(2):
                            for u in range(2):
                                k(f"v_mfma_f32_4x4x4_16b_bf16 {v(vCs[u],4)}, {v(vOnes,2)}, {v(fs[b][q][1+u]+2*hh,2)}, {v(vCs[u],4)}")
                            if hh == 0: k("s_nop 0")
                        k.label(l)
                setp(int(pat[0][4*hf + j]))
                k(f"v_mfma_f32_32x32x16_bf16 {v(acc[i],16)}, {v(A_,4)}, {v(B_,4)}, {c}")
                if j < 3 and cut[j+1] > cut[j]:
                    setp(3)
                    for x in rd[cut[j]:cut[j+1]]: k(x)
                if dm[j]:
                    setp(prio[0])
                    for f_ in dm[j]: k(f_())
        setp(3)
    def body(g, ty, ty_next, first=False, stats=False, kv=False, doA=True, doB=True, loop=False, tailA=None, tailB=None, strict=False):
        k(f"ds_read_b32 v{vFl}, v{vFa}")
        if doB or tailB: k(f"s_add_u32 m0, s{sM0B}, {8192*((g+4)%6)}")
        if tailB: k(tailB)
        k("s_waitcnt lgkmcnt(1)")
        dm = [[], [], [], []]
        if doB or tailB:
            dm = [[], [lambda: lb(g + 4, 0)], [lambda: lb(g + 4, 1)], []]
        half(0, 0, first, stats, kv, reads(ty, 1, 1, g), dm)
        if doB: k(f"s_add_u32 s{sSoB}, s{sSoB}, s{sStepB}")
        if doA or tailA: k(f"s_add_u32 m0, s{sM0A}, {16384*(g%3)}")
        if tailA: k(tailA)
        n = 8 if loop else min(63, newer({("A", g + 1), ("B", g + 2)}))
        ok = k.lab("gok")
        need = f"s{sNeed}" if loop else str(g + (2 if strict else 1))
        k(f"s_mov_b64 exec, 1\ns_waitcnt vmcnt({n}) lgkmcnt(0)\nds_add_u32 v{vFw}, v{vOne}\ns_mov_b64 exec, -1")
        if not strict:
            k(f"v_cmp_gt_u32 vcc, {need}, v{vFl}\ns_cbranch_vccz {ok}")
        spinw(vFa, need)
        k.label(ok)
        dm = [[], [], [], []]
        if doA or tailA:
            dm = [[lambda p=p: la(g + 3, p)] for p in range(4)]
        half(1, 1, False, stats, kv, reads(ty_next, 0, 0, g + 1) if ty_next else [], dm)
        if doA: k(f"s_add_u32 s{sSoA}, s{sSoA}, 128")
        if loop: k(f"s_add_u32 s{sNeed}, s{sNeed}, 1")
    def hi(): pass
    def lo(): pass
    def prologue(g0, ty, strong=False, aux=False):
        issue_a(g0 + 1); issue_b(g0 + 1); issue_a(g0 + 2); issue_b(g0 + 2); issue_b(g0 + 3)
        k(f"s_waitcnt vmcnt({newer({('A', g0), ('B', g0 + (2 if strong else 0))})})")
        k(f"v_mov_b32 v{vFl}, {g0+1}\nds_write_b32 v{vFw}, v{vFl}")
        if aux: gsync()
        else: spinw(vFa, g0 + 1)
        for r in reads(ty, 0, 0, g0): k(r)
    def src_win(off_const):
        k.srd(sB, P_WIN, 640*3456)
        k(f"""s_mul_i32 s{sSoB}, s{sW}, {16*3456}
        s_lshl_b32 s{sT}, s{sFG}, 7
        s_add_u32 s{sSoB}, s{sSoB}, s{sT}
        s_add_u32 s{sSoB}, s{sSoB}, {off_const}
        s_mov_b32 s{sStepB}, {64*3456}""")
    def ln_fold(kv):
        mu, r = vT + 8, vT + 9
        k(f"""v_lshlrev_b32 v{vT+4}, 5, v{vN}
        v_lshl_add_u32 v{vT+4}, v{vH}, 4, v{vT+4}
        v_add_u32 v{vT+4}, {L_CS}, v{vT+4}
        s_lshl_b32 s{sT}, s{sW}, 2
        v_add_u32 v{vT+5}, s{sT}, v{vT+4}
        v_and_b32 v{vT+6}, 3, v{vL}
        ds_write_b32 v{vT+5}, v{vCs[0]}
        ds_write_b32 v{vT+5}, v{vCs[1]} offset:1024""")
        for i in range(1, 4):
            k(f"v_cmp_eq_u32 vcc, {i}, v{vT+6}\ns_nop 1\nv_cndmask_b32 v{vSq}, v{vSq}, v{vSq+i}, vcc")
        k(f"""v_mov_b32 v{vSq+1}, v{vSq}
        s_waitcnt lgkmcnt(0)""")
        gsync()
        k(f"""ds_read_b128 {v(vCs[0],4)}, v{vT+4}
        ds_read_b128 {v(vCs[1],4)}, v{vT+4} offset:1024
        v_permlane32_swap_b32 v{vSx}, v{vSx+1}
        v_permlane32_swap_b32 v{vSq}, v{vSq+1}
        v_add_f32 v{mu}, v{vSx}, v{vSx+1}
        v_add_f32 v{r}, v{vSq}, v{vSq+1}
        v_mul_f32 v{mu}, {fl(1.0/640)}, v{mu}
        v_mul_f32 v{r}, {fl(1.0/640)}, v{r}
        v_fma_f32 v{r}, -v{mu}, v{mu}, v{r}
        v_max_f32 v{r}, 0, v{r}
        v_add_f32 v{r}, {fl(1e-5)}, v{r}
        v_rsq_f32 v{r}, v{r}
        v_and_b32 v{vT+2}, s{sMask}, v{mu}
        v_sub_f32 v{vT+3}, v{mu}, v{vT+2}
        v_cvt_pk_bf16_f32 v{vT}, -v{vT+2}, -v{vT+3}
        v_cvt_pk_bf16_f32 v{vT+1}, -v{vT+2}, 0
        s_waitcnt lgkmcnt(0)""")
        for u in range(2):
            c = vCs[u]
            k(f"""v_add_f32 v{c}, v{c}, v{c+1}
            v_add_f32 v{c+2}, v{c+2}, v{c+3}
            v_add_f32 v{c+2}, v{c}, v{c+2}
            v_and_b32 v{c+3}, s{sMask}, v{c+2}
            v_sub_f32 v{c+2}, v{c+2}, v{c+3}
            v_cvt_pk_bf16_f32 v{c}, v{c+3}, v{c+3}
            v_cvt_pk_bf16_f32 v{c+1}, v{c+2}, 0""")
        k("s_nop 1")
        for u in range(2):
            A_, B_ = (vT, vCs[u]) if (kv and u == 1) else (vCs[u], vT)
            k(f"v_mfma_f32_32x32x8_bf16 {v(acc[u],16)}, {v(A_,2)}, {v(B_,2)}, {v(acc[u],16)}")
    def swap4(b0):
        k(f"v_permlane32_swap_b32 v{b0}, v{b0+2}\nv_permlane32_swap_b32 v{b0+1}, v{b0+3}")
    def gelu(u, dst, stats):
        t = acc[u]
        for g0 in range(0, 16, 8):
            R = range(g0, g0 + 8)
            for i in R: k(f"v_mul_f32 v{tmp+i-g0}, v{t+i}, v{t+i}")
            for i in R: k(f"v_fmaak_f32 v{tmp+i-g0}, v{vT+12}, v{tmp+i-g0}, {fl(GC0)}")
            for i in R: k(f"v_mul_f32 v{tmp+i-g0}, v{tmp+i-g0}, v{t+i}")
            for i in R: k(f"v_exp_f32 v{tmp+i-g0}, v{tmp+i-g0}")
            for i in R: k(f"v_add_f32 v{tmp+i-g0}, 1.0, v{tmp+i-g0}")
            for i in R: k(f"v_rcp_f32 v{tmp+i-g0}, v{tmp+i-g0}")
            for i in R: k(f"v_mul_f32 v{tmp+i-g0}, v{tmp+i-g0}, v{t+i}")
            for i in range(0, 8, 2): k(f"v_cvt_pk_bf16_f32 v{dst+(g0+i)//2}, v{tmp+i}, v{tmp+i+1}")
            if stats:
                for i in range(8):
                    k(f"v_add_f32 v{vT+10}, v{vT+10}, v{tmp+i}\nv_fmac_f32 v{vT+11}, v{tmp+i}, v{tmp+i}")

    nop1 = k.lab("nop1"); kvp = k.lab("kvp"); rep = k.lab("rep"); b10 = k.lab("b10"); outp = k.lab("outp"); outq = k.lab("outq"); p2s = k.lab("p2s")
    k(f"s_cmp_eq_u32 s{sFG}, 15\ns_cbranch_scc1 {rep}")
    a_addr(1280)
    k(f"s_cmp_eq_u32 s{sFG}, 14\ns_cbranch_scc1 {kvp}\ns_cmp_ge_u32 s{sFG}, 10\ns_cbranch_scc1 {nop1}")

    k.srd(sA, P_X, SZ_Q)
    k(f"s_mov_b32 s{sSoA}, s{sBaseA}")
    issue_a(0)
    b_addr(1280)
    k.srd(sB, P_WQ, 640*1280)
    k(f"s_mul_i32 s{sSoB}, s{sW}, {16*1280}\ns_lshl_b32 s{sT}, s{sFG}, 7\ns_add_u32 s{sSoB}, s{sSoB}, s{sT}\ns_mov_b32 s{sStepB}, {64*1280}")
    issue_b(0)
    setup_rest(); nat_read_addr(128)
    k("s_barrier")
    prologue(0, "nat")
    sp('p1s')
    for g in range(10):
        if g == 6 and seam:
            b_addr(3456); src_win(13 * 128)
        if g == 7 and seam:
            sp('g7')
            lds_wait(L_F + F_XR, vT, vT + 1)
            sp('g7d')
            k.srd(sA, P_WS, SZ_Q, WS_XN)
            k(f"s_mov_b32 s{sSoA}, s{sBaseA}")
            cohA[0] = "sc1"
        sp(f'a{g}')
        body(g, "nat", "nat" if (seam or g < 9) else None, first=(g == 0), stats=True, strict=(g == 0), doA=(seam or g < 7), doB=(seam or g < 6))
    sp('p1l')
    ln_fold(False)
    k.srd(sO, P_WS, SZ_Q, WS_Q)
    k(f"""v_mul_f32 v{vT+9}, {fl(QSCALE)}, v{vT+9}
    v_lshlrev_b32 v{vT+2}, 4, v{vL}
    s_lshl_b32 s{sT}, s{sTB}, 2
    s_add_u32 s{sT}, s{sT}, s{sW}
    s_mul_i32 s{sT}, s{sT}, 10
    s_add_u32 s{sT}, s{sT}, s{sFG}
    s_lshl_b32 s{sT}, s{sT}, 12
    s_nop 1""")
    for u in range(2):
        for i in range(16): k(f"v_mul_f32 v{acc[u]+i}, v{vT+9}, v{acc[u]+i}")
        for i in range(8): k(f"v_cvt_pk_bf16_f32 v{tmp+8*u+i}, v{acc[u]+2*i}, v{acc[u]+2*i+1}")
        k("s_nop 0")
        for jp in range(2): swap4(tmp + 8*u + 4*jp)
        for jp in range(2):
            k(f"buffer_store_dwordx4 {v(tmp+8*u+4*jp,4)}, v{vT+2}, s[{sO}:{sO+3}], s{sT} offen offset:{1024*(2*u+jp)} sc1")
    if seam:
        k("s_waitcnt vmcnt(0)")
        gsync()
        set_flag(FL_Q)
        k(f"s_branch {b10}")
    else:
        b_addr(3456); src_win(13 * 128)
        k("s_waitcnt vmcnt(0)")
        gsync()
        set_flag(FL_Q)
        sp('qf')
        issue_b(10)
        lds_wait(L_F + F_XR, vT, vT + 1)
        k(f"s_branch {p2s}")

    k.label(nop1)
    save = list(vm)
    b_addr(3456); src_win(13 * 128)
    issue_b(10)
    setup_rest(); nat_read_addr(128)
    k("s_barrier")
    lds_wait(L_F + F_XR, vT, vT + 1, 4)
    k.label(p2s)
    cohA[0] = "sc1"
    k.srd(sA, P_WS, SZ_Q, WS_XN)
    k(f"s_mov_b32 s{sSoA}, s{sBaseA}")
    issue_a(10)
    if seam:
        prologue(10, "nat", strong=True)
        vm[:] = save
    else:
        prologue(10, "nat", aux=True)

    k.label(b10)
    sp('p1')
    prio[0] = lprio
    vFg, vSt = vT + 8, tmp
    for g in range(10, 30):
        if g == 16:
            src_win(0)
        if g == 17:
            k(f"s_mov_b32 s{sSoA}, s{sBaseA}")
        if g == 20:
            sp('p2')
            hi()
            s0 = k.lab("s0")
            k(f"v_mov_b32 v{vT+12}, {fl(GC1)}\nv_mov_b32 v{vT+10}, 0\nv_mov_b32 v{vT+11}, 0\ns_nop 7")
            k(f"s_cmp_eq_u32 s{sFG}, 0\ns_cbranch_scc1 {s0}")
            gelu(0, z2, True)
            k.label(s0)
            gelu(1, z2 + 8, True)
            k.srd(sO, P_WS, SZ_ST, WS_ST)
            k(f"""v_mov_b32 v{vT+2}, v{vT+10}
            v_mov_b32 v{vT+3}, v{vT+11}
            s_mul_i32 s{sT}, s{sTB}, 14
            s_add_u32 s{sT}, s{sT}, s{sFG}
            v_permlane32_swap_b32 v{vT+10}, v{vT+2}
            v_permlane32_swap_b32 v{vT+11}, v{vT+3}
            s_lshl_b32 s{sT}, s{sT}, 10
            s_lshl_b32 s{sT+1}, s{sW}, 8
            v_add_f32 v{vT+10}, v{vT+10}, v{vT+2}
            v_add_f32 v{vT+11}, v{vT+11}, v{vT+3}
            v_lshlrev_b32 v{vT+2}, 3, v{vN}
            s_add_u32 s{sT}, s{sT}, s{sT+1}
            s_mov_b32 exec_hi, 0""")
            k(vop("st", f"buffer_store_dwordx2 {v(vT+10,2)}, v{vT+2}, s[{sO}:{sO+3}], s{sT} offen sc1"))
            k("s_mov_b32 exec_hi, -1")
            lo()
        if g == 21:
            sp('e21')
            hi()
            k(f"s_waitcnt vmcnt({newer({'st'})})")
            gsync(); set_flag(FL_S)
            lo()
        if g == 23:
            hi()
            k(f"v_min_u32 v{vT+14}, 13, v{vL}\nv_lshlrev_b32 v{vT+14}, 7, v{vT+14}\ns_lshl_b32 s{sT}, s{sTB}, 11\ns_add_u32 s{sT}, s{sT}, {FL_S}")
            k(vop("pf", gload(f"s{sT}", vT + 14, vFg)))
            lo()
        if g == 24:
            sp('e24')
            hi()
            ok = k.lab("sok")
            k(f"s_waitcnt vmcnt({newer({'pf'})})")
            gcheck(vFg)
            k(f"s_cbranch_vccz {ok}")
            k(f"s_lshl_b32 s{sT}, s{sTB}, 11\ns_add_u32 s{sT}, s{sT}, {FL_S}")
            gpoll(f"s{sT}", vT + 14, vFg, 0x3fff, 4)
            k.label(ok)
            k(f"""v_mul_u32_u24 v{vT+14}, 7168, v{vH}
            v_lshl_add_u32 v{vT+14}, v{vN}, 3, v{vT+14}
            s_mul_i32 s{sT}, s{sTB}, {14*1024}
            s_lshl_b32 s{sT+1}, s{sW}, 8
            s_add_u32 s{sT}, s{sT}, s{sT+1}
            s_add_u32 s{sT+1}, s{sT}, 4096""")
            for i in range(7):
                k(vop("sl", f"buffer_load_dwordx2 {v(z1+2*i,2)}, v{vT+14}, s[{sO}:{sO+3}], s{sT + i//4} offen offset:{1024*(i%4)} sc1"))
            lo()
        if g == 25:
            sp('e25')
            hi()
            sel, D = tmp, tmp + 8
            mur, r = vT + 10, vT + 11
            k(f"v_lshlrev_b32 v{vT+2}, 2, v{vH}\nv_sub_u32 v{vT+2}, v{vN}, v{vT+2}\nv_mov_b32 v{vT+3}, 0x3f80\nv_mov_b32 v{vT+4}, 0x3f800000")
            for e in range(2):
                for q in range(4):
                    f0 = 16*e + 8*(q >> 1) + 2*(q & 1)
                    k(f"""v_cmp_eq_u32 vcc, {f0}, v{vT+2}
                    v_cmp_eq_u32 s[{sT}:{sT+1}], {f0+1}, v{vT+2}
                    s_nop 0
                    v_cndmask_b32 v{sel+4*e+q}, 0, v{vT+3}, vcc
                    v_cndmask_b32 v{sel+4*e+q}, v{sel+4*e+q}, v{vT+4}, s[{sT}:{sT+1}]""")
            k(f"s_waitcnt vmcnt({newer({'sl'})})")
            for i in range(1, 7):
                k(f"v_add_f32 v{z1}, v{z1}, v{z1+2*i}\nv_add_f32 v{z1+1}, v{z1+1}, v{z1+2*i+1}")
            k.srd(sO, P_WS, SZ_Z2F, WS_Z2F)
            k(f"""v_mov_b32 v{z1+2}, v{z1}
            v_mov_b32 v{z1+3}, v{z1+1}
            v_lshlrev_b32 v{vT+2}, 4, v{vL}
            s_lshl_b32 s{sT}, s{sFG}, 18
            v_permlane32_swap_b32 v{z1}, v{z1+2}
            v_permlane32_swap_b32 v{z1+1}, v{z1+3}
            v_add_f32 v{mur}, v{z1}, v{z1+2}
            v_add_f32 v{r}, v{z1+1}, v{z1+3}
            v_mul_f32 v{mur}, {fl(1.0/864)}, v{mur}
            v_mul_f32 v{r}, {fl(1.0/864)}, v{r}
            v_fma_f32 v{r}, -v{mur}, v{mur}, v{r}
            v_max_f32 v{r}, 0, v{r}
            v_add_f32 v{r}, {fl(1e-5)}, v{r}
            v_rsq_f32 v{r}, v{r}
            s_lshl_b32 s{sT+1}, s{sTB}, 13
            s_add_u32 s{sT}, s{sT}, s{sT+1}
            v_mul_f32 v{mur}, v{mur}, v{r}
            s_lshl_b32 s{sT+1}, s{sW}, 11
            s_add_u32 s{sT}, s{sT}, s{sT+1}
            s_sub_u32 s{sT+1}, s{sT}, 0x20000""")
            s1 = k.lab("s1")
            for u in (1, 0):
                if u == 0:
                    k(f"s_cmp_eq_u32 s{sFG}, 0\ns_cbranch_scc1 {s1}")
                zz = z2 + 8*u
                for i in range(8):
                    k(f"""v_lshlrev_b32 v{vT+4}, 16, v{zz+i}
                    v_and_b32 v{vT+5}, s{sMask}, v{zz+i}
                    v_fma_f32 v{vT+4}, v{vT+4}, v{r}, -v{mur}
                    v_fma_f32 v{vT+5}, v{vT+5}, v{r}, -v{mur}
                    v_cvt_pk_bf16_f32 v{zz+i}, v{vT+4}, v{vT+5}""")
                k("s_nop 1")
                k(f"v_mfma_f32_32x32x16_bf16 {v(D,16)}, {v(zz,4)}, {v(sel,4)}, 0")
                k(f"v_mfma_f32_32x32x16_bf16 {v(D,16)}, {v(zz+4,4)}, {v(sel+4,4)}, {v(D,16)}")
                k("s_nop 7\ns_nop 3")
                for i in range(8): k(f"v_cvt_pk_bf16_f32 v{zz+i}, v{D+2*i}, v{D+2*i+1}")
                k("s_nop 0")
                for jp in range(2): swap4(zz + 4*jp)
                for jp in range(2):
                    k(vop("zs", f"buffer_store_dwordx4 {v(zz+4*jp,4)}, v{vT+2}, s[{sO}:{sO+3}], s{sT + 1 - u} offen offset:{1024*jp} sc1"))
            k.label(s1)
            del vm[-2:]
            lo()
        if g == 26:
            sp('e26')
            hi()
            k(f"s_waitcnt vmcnt({newer({'zs'})})")
            gsync(); set_flag(FL_Z)
            lo()
        if g == 27:
            sp('e27')
            hi()
            a_addr(4096)
            k.srd(sA, P_WSP, 2048*4096)
            k(f"s_lshl_b32 s{sSoA}, s{sTB}, 2\ns_add_u32 s{sSoA}, s{sSoA}, s{sW}\ns_lshl_b32 s{sSoA}, s{sSoA}, 17")
            cohA[0] = ""
            k.srd(sB, P_BSP, 4096)
            k(f"v_lshlrev_b32 v{vT+2}, 1, v{vTok}\nv_lshlrev_b32 v{vDb}, 4, v{vL}\nv_lshlrev_b32 v{vDb+1}, 4, v{vL}")
            k(vop("bias", f"buffer_load_ushort v{vBias}, v{vT+2}, s[{sB}:{sB+3}], 0 offen"))
            lo()
        if g == 29:
            k(f"s_lshl_b32 s{sT}, s{sW}, 13\ns_add_u32 s{sT}, s{sT}, {FL_Z}\nv_lshlrev_b32 v{vT+14}, 7, v{vL}")
            k(vop("pz", gload(f"s{sT}", vT + 14, vFg)))
        body(g, "nat", "nat" if g != 29 else None, first=(g in (10, 20)), doB=(g < 26), strict=(g == 10 and not seam))
    sp('p3')
    hi()
    pd = k.lab("zpd")
    k(f"s_waitcnt vmcnt({newer({'pz'})})")
    gcheck(vFg)
    k(f"s_cbranch_vccz {pd}")
    k(f"s_lshl_b32 s{sT}, s{sW}, 13\ns_add_u32 s{sT}, s{sT}, {FL_Z}")
    gpoll(f"s{sT}", vT + 14, vFg, None, 4)
    k.label(pd)
    gsync()
    sp('zr')
    k.srd(sB, P_WS, SZ_Z2F, WS_Z2F)
    k(f"""s_lshr_b32 s{sT+1}, s{sW}, 1
    s_lshl_b32 s{sT}, s{sFG}, 1
    s_add_u32 s{sT+1}, s{sT}, s{sT+1}
    s_lshl_b32 s{sSoB}, s{sT+1}, 17
    s_and_b32 s{sT}, s{sW}, 1
    s_lshl_b32 s{sT}, s{sT}, 11
    s_add_u32 s{sSoB}, s{sSoB}, s{sT}
    s_mov_b32 s{sStepB}, 4096
    v_add_u32 v{vZa}, {L_Z}, v{vDb}""")
    cohB[0] = "sc1"
    k(f"s_setprio {lprio}")
    for g in range(30, 34): issue_b(g)
    k("s_setprio 3")
    pat[0] = pats
    k(f"v_mov_b32 v{vT+12}, {fl(GC1)}")
    gelu(0, z1, False)
    gelu(1, z1 + 8, False)
    for t in range(2):
        for i in range(16): k(f"v_mov_b32 v{acc[t]+i}, 0")
    k(f"s_waitcnt vmcnt(2)\ns_mov_b32 s{sNeed}, 31\ns_mov_b32 s{sI}, 0")
    gsync()
    for r in reads("frag", 0, 0, 30): k(r)
    lo()
    loop = k.lab("gloop")
    sp('l0')
    k.align(3)
    k.label(loop)
    for g in range(30, 36):
        body(g, "frag", "frag", loop=True)
    k(f"s_add_u32 s{sI}, s{sI}, 1\ns_cmp_lt_u32 s{sI}, 4\ns_cbranch_scc1 {loop}")
    sp('l1')
    sG, sWb = sI, sBaseA
    def out_ids():
        k(f"s_lshr_b32 s{sG}, s2, 5\ns_mul_i32 s{sWb}, s{sG}, {47*5120}\ns_add_u32 s{sWb}, s{sWb}, {20*5120 - 1024 - L_A}")
    for g in range(54, 62):
        tA = tB = None
        if g == 58:
            sp('g58')
            out_ids()
            k.srd(sB, P_WS, SZ_WF, WS_WF)
        if g == 59:
            k.srd(sA, P_WS, SZ_WF, WS_WF)
            cohA[0] = "sc1"
            hi()
            for p in range(4): k(f"v_mov_b32 v{vD+p}, v{vDb}")
            lo()
        if g >= 58: tB = f"s_add_u32 s{sSoB}, m0, s{sWb}"
        if g >= 59: tA = f"s_add_u32 s{sSoA}, m0, s{sWb}"
        body(g, "frag", "frag" if g < 61 else None, loop=True, doA=(g < 59), doB=(g < 58), tailA=tA, tailB=tB)
    sp('p4')
    hi()
    fin = k.lab("gfin")
    k.srd(sO, P_WS, SZ_OUF, WS_OUF)
    k(f"""v_lshrrev_b32 v{vT+1}, 4, v{vTok}
    v_mul_u32_u24 v{vT+1}, {47*1024}, v{vT+1}
    v_and_b32 v{vT+2}, 15, v{vTok}
    v_lshl_add_u32 v{vT+1}, v{vT+2}, 4, v{vT+1}
    v_lshl_add_u32 v{vT+1}, v{vH}, 8, v{vT+1}
    s_lshl_b32 s{sT}, s{sFG}, 11
    s_add_u32 s{sT}, s{sT}, {20*1024}
    v_lshlrev_b32 v{vBias}, 16, v{vBias}""")
    for i in range(2):
        if i == 1:
            k(f"s_cmp_eq_u32 s{sFG}, 13\ns_cbranch_scc1 {fin}")
        for r in range(8):
            zr = z1 + 8*i + r
            a0 = acc[i] + 2*r
            k(f"""v_lshlrev_b32 v{tmp}, 16, v{zr}
            v_and_b32 v{tmp+1}, s{sMask}, v{zr}
            v_add_f32 v{a0}, v{a0}, v{vBias}
            v_add_f32 v{a0+1}, v{a0+1}, v{vBias}
            v_mul_f32 v{a0}, v{a0}, v{tmp}
            v_mul_f32 v{a0+1}, v{a0+1}, v{tmp+1}
            v_cvt_pk_bf16_f32 v{zr}, v{a0}, v{a0+1}""")
        k("s_nop 1")
        for jp in range(2): swap4(z1 + 8*i + 4*jp)
        for jp in range(2):
            k(f"buffer_store_dwordx4 {v(z1+8*i+4*jp,4)}, v{vT+1}, s[{sO}:{sO+3}], s{sT} offen offset:{1024*i+512*jp} sc1")
    k.label(fin)
    k("s_waitcnt vmcnt(0)")
    gsync()
    set_flag(FL_U)
    k(f"s_lshl_b32 s{sT}, s{sW}, 12\ns_add_u32 m0, s{sT}, {L_Z}\ns_add_u32 s{sSoB}, m0, s{sWb}")
    for p in range(4):
        k(f"buffer_load_dwordx4 v{vDb}, s[{sB}:{sB+3}], s{sSoB} offen offset:{1024*p} sc1 lds")
    k(f"s_branch {outp}")

    k.label(kvp)
    prio[0] = 3; cohA[0] = ""; cohB[0] = ""
    vm[:] = []
    kw = k.lab("kw"); kwd = k.lab("kwd")
    k.srd(sA, P_X, SZ_Q)
    k(f"s_mov_b32 s{sSoA}, s{sBaseA}")
    issue_a(0)
    k(f"s_cmp_ge_u32 s{sW}, 2\ns_cbranch_scc1 {kw}")
    k.srd(sB, P_WK, 25600)
    k(f"s_branch {kwd}")
    k.label(kw)
    k.srd(sB, P_WV, 25600)
    k.label(kwd)
    k(f"v_lshlrev_b32 v{vDb}, 4, v{vL}\nv_lshlrev_b32 v{vDb+1}, 4, v{vL}\ns_and_b32 s{sSoB}, s{sW}, 1\ns_lshl_b32 s{sSoB}, s{sSoB}, 11\ns_mov_b32 s{sStepB}, 2560")
    issue_b(0)
    setup_rest(); nat_read_addr(40)
    k("s_barrier")
    prologue(0, "kv")
    sp('p1s')
    for g in range(10):
        body(g, "kv", "kv" if g < 9 else None, first=(g == 0), stats=True, kv=True, strict=(g == 0), doA=(g < 7), doB=(g < 6))
    sp('p1l')
    ln_fold(True)
    k.srd(sO, P_WS, SZ_KV, WS_KV)
    k(f"""v_lshl_add_u32 v{vT+2}, v{vN}, 2, s{sM0A}
    ds_write_b32 v{vT+2}, v{vT+9}
    v_lshl_add_u32 v{vT+3}, v{vH}, 4, s{sM0A}
    s_lshl_b32 s{sT}, s{sTB}, 2
    s_add_u32 s{sT}, s{sT}, s{sW}
    s_mul_i32 s{sT}, s{sT}, {KV_TILE}
    s_waitcnt lgkmcnt(0)""")
    for j in range(4):
        k(f"ds_read_b128 {v(z2+4*j,4)}, v{vT+3} offset:{32*j}")
    k(f"""v_lshlrev_b32 v{vT+2}, 4, v{vL}
    v_lshlrev_b32 v{vT+3}, 2, v{vN}
    v_mul_u32_u24 v{vT+4}, 336, v{vH}
    v_lshl_add_u32 v{vT+4}, v{vN}, 4, v{vT+4}
    v_cmp_eq_u32 vcc, 20, v{vN}""")
    for i in range(12): k(f"v_mul_f32 v{acc[0]+i}, v{vT+9}, v{acc[0]+i}")
    for i in range(6): k(f"v_cvt_pk_bf16_f32 v{tmp+i}, v{acc[0]+2*i}, v{acc[0]+2*i+1}")
    k("s_waitcnt lgkmcnt(0)")
    for i in range(16): k(f"v_mul_f32 v{acc[1]+i}, v{z2+i}, v{acc[1]+i}")
    for i in range(8): k(f"v_cvt_pk_bf16_f32 v{tmp+8+i}, v{acc[1]+2*i}, v{acc[1]+2*i+1}")
    for i in range(8): k(f"v_cndmask_b32 v{tmp+8+i}, v{tmp+8+i}, v{vOnes}, vcc")
    swap4(tmp)
    k(f"""buffer_store_dwordx4 {v(tmp,4)}, v{vT+2}, s[{sO}:{sO+3}], s{sT} offen offset:{KV_KA} sc1
    s_mov_b64 exec, 0xffffffff
    buffer_store_dword v{tmp+4}, v{vT+3}, s[{sO}:{sO+3}], s{sT} offen offset:{KV_KB} sc1
    buffer_store_dword v{tmp+5}, v{vT+3}, s[{sO}:{sO+3}], s{sT} offen offset:{KV_KB+128} sc1
    s_mov_b32 exec_lo, 0x1fffff
    s_mov_b32 exec_hi, 0x1fffff
    buffer_store_dwordx4 {v(tmp+8,4)}, v{vT+4}, s[{sO}:{sO+3}], s{sT} offen offset:{KV_V} sc1
    buffer_store_dwordx4 {v(tmp+12,4)}, v{vT+4}, s[{sO}:{sO+3}], s{sT} offen offset:{KV_V+672} sc1
    s_mov_b64 exec, -1""")
    k("s_waitcnt vmcnt(0)")
    gsync()
    set_flag(FL_Z)
    k(f"s_branch {outq}")

    k.label(rep)
    setup_rest()
    k("s_barrier")
    rl = k.lab("rl")
    lds_wait(L_F + F_GO, vT + 5, vT + 6, 8)
    k(f"s_mov_b32 s{sNeed}, s{sTB}")
    k.label(rl)
    emit_repack(k, sNeed, sW, vL, P_WO, P_WOUT, P_WS, 8, acc[0], L_A, gsync, coh="sc1")
    k(f"s_add_u32 s{sNeed}, s{sNeed}, 16\ns_waitcnt vmcnt(0)")
    gsync()
    k(f"s_cmp_lt_u32 s{sNeed}, 47\ns_cbranch_scc1 {rl}")
    set_flag(FL_Z)
    k.label(outq)
    sp('p1')
    k(f"s_setprio {lprio}")
    out_ids()
    k.srd(sB, P_WS, SZ_WF, WS_WF)
    att_progress(8, vT, 32)
    k(f"v_lshlrev_b32 v{vDb}, 4, v{vL}\nv_lshlrev_b32 v{vT}, 11, v{vL}\ns_mov_b32 s{sT}, {FL_Z+15*128}")
    gpoll(f"s{sT}", vT, vT + 2, 0xffff, 16)
    k(f"s_mul_i32 s{sT}, s{sW}, {24*1024}\ns_add_u32 s{sT}, s{sT}, {L_A}")
    for p in range(24):
        if p % 4 == 0:
            k(f"s_add_u32 m0, s{sT}, {1024*p}\ns_add_u32 s{sSoB}, m0, s{sWb}")
        k(f"buffer_load_dwordx4 v{vDb}, s[{sB}:{sB+3}], s{sSoB} offen offset:{1024*(p%4)} sc1 lds")

    k.label(outp)
    sp('outp')
    sWF, sOU, sXo = sB, sA, sO
    sTT, sAo, sXof, sT64 = sSoA, sStepB, sM0A, sM0B
    a = Alloc(8)
    oacc = a(20, 4)
    af = a(80, 4)
    wb = [a(20, 4), a(20, 4)]
    xr = a(10, 2)
    vQ = a(2, 2)
    vA16, vW0, vW1, vXo, vP = a(), a(), a(), a(), a()
    assert a.n <= 168, a.n
    k.srd(sOU, P_WS, SZ_OUF, WS_OUF)
    k.srd(sXo, P_X, SZ_Q)
    k(f"""s_and_b32 s{sT64}, s2, 7
    s_lshl_b32 s{sT64}, s{sT64}, 2
    s_bfe_u32 s{sT}, s2, 0x20003
    s_add_u32 s{sT64}, s{sT64}, s{sT}
    s_lshl_b32 s{sTT}, s{sT64}, 2
    s_add_u32 s{sTT}, s{sTT}, s{sW}
    s_mul_i32 s{sAo}, s{sTT}, {47*1024}
    s_mul_i32 s{sXof}, s{sTT}, {16*1280}
    s_mul_i32 s{sT}, s{sG}, 160
    s_add_u32 s{sXof}, s{sXof}, s{sT}
    v_lshlrev_b32 v{vA16}, 4, v{vL}
    v_add_u32 v{vW0}, {L_W}, v{vA16}
    v_add_u32 v{vW1}, {L_W+51200}, v{vA16}
    v_lshlrev_b32 v{vP}, 7, v{vL}
    v_and_b32 v{vXo}, 15, v{vL}
    v_mul_u32_u24 v{vXo}, 1280, v{vXo}
    v_lshrrev_b32 v{vQ}, 4, v{vL}
    v_lshl_add_u32 v{vXo}, v{vQ}, 3, v{vXo}""")
    k(f"s_setprio {lprio}")
    def wbatch(step0, slot0, npieces):
        per = (npieces + 3) // 4
        k(f"""s_mul_i32 s{sT+1}, s{sG}, {47*5120}
        s_mul_i32 s{sT+2}, s{sW}, {per*1024}
        s_add_u32 s{sT+1}, s{sT+1}, s{sT+2}
        s_add_u32 s{sT+1}, s{sT+1}, {step0*5120}
        s_add_u32 s{sT+2}, s{sT+2}, {L_W + slot0*5120}""")
        sk = None
        for p in range(per):
            if p % 4 == 0:
                k(f"s_add_u32 m0, s{sT+2}, {1024*p}\ns_add_u32 s{sT}, s{sT+1}, {1024*p}")
            if 3 * per + p == npieces:
                sk = k.lab("wsk")
                k(f"s_cmp_eq_u32 s{sW}, 3\ns_cbranch_scc1 {sk}")
            k(f"buffer_load_dwordx4 v{vA16}, s[{sWF}:{sWF+3}], s{sT} offen offset:{1024*(p%4)} sc1 lds")
        if sk: k.label(sk)
    def aload(steps, r0):
        for i, st in enumerate(steps):
            if i % 4 == 0:
                k(f"s_add_u32 s{sT}, s{sAo}, {st*1024}")
            k(f"buffer_load_dwordx4 {v(af+4*(r0+i),4)}, v{vA16}, s[{sOU}:{sOU+3}], s{sT} offen offset:{1024*(i%4)} sc1")
    def wreads(slot, b):
        base, o = (vW0, slot * 5120) if slot < 10 else (vW1, (slot - 10) * 5120)
        return [f"ds_read_b128 {v(wb[b]+4*u,4)}, v{base} offset:{o+1024*u}" for u in range(5)]
    first = [True]
    def compute(slots, r0, vmf=None):
        for x in wreads(slots[0], 0): k(x)
        for i, sl in enumerate(slots):
            b = i % 2
            nxt = wreads(slots[i + 1], 1 - b) if i + 1 < len(slots) else []
            for x in nxt: k(x)
            k(f"s_waitcnt lgkmcnt({len(nxt)})" if vmf is None else f"s_waitcnt vmcnt({vmf(i)}) lgkmcnt({len(nxt)})")
            for u in range(5):
                c = "0" if first[0] else v(oacc+4*u, 4)
                k(f"v_mfma_f32_16x16x32_bf16 {v(oacc+4*u,4)}, {v(wb[b]+4*u,4)}, {v(af+4*(r0+i),4)}, {c}")
            first[0] = False
    def gsync_hi():
        k("s_setprio 3"); gsync(); k(f"s_setprio {lprio}")
    for u in range(5):
        k(f"buffer_load_dwordx2 {v(xr+2*u,2)}, v{vXo}, s[{sXo}:{sXo+3}], s{sXof} offen offset:{32*u}")
    k(f"s_lshr_b32 s{sT+1}, s{sT64}, 1\ns_lshl_b32 s{sT+1}, s{sT+1}, 11\ns_add_u32 s{sT+1}, s{sT+1}, {FL_U}")
    gpoll(f"s{sT+1}", vP, vQ, 0x3fff, 8)
    sp('upoll')
    aload(range(20, 39), 0)
    gsync_hi()
    compute(list(range(1, 9)), 0, vmf=lambda i: 18 - i)
    gsync_hi()
    aload(range(39, 47), 0)
    wbatch(39, 1, 40)
    compute(list(range(9, 20)), 8, vmf=lambda i: 18 + 10 - i)
    k("s_waitcnt vmcnt(0)")
    gsync_hi()
    wbatch(9, 9, 55)
    compute(list(range(1, 9)), 0)
    gsync_hi()
    sp('c3')
    att_progress(8, vQ, 8)
    wbatch(0, 0, 45)
    k("s_waitcnt vmcnt(0)")
    gsync_hi()
    sp('wready')
    k(f"s_lshl_b32 s{sT+1}, s{sT64}, 10\ns_add_u32 s{sT+1}, s{sT+1}, {FL_O}")
    gpoll(f"s{sT+1}", vP, vQ, 0xff, 2)
    sp('opoll')
    k("s_setprio 3")
    aload(range(0, 20), 0)
    compute(list(range(20)), 0, vmf=lambda i: 19 - i)
    sp('odone')
    k.srd(sXo, P_OUT, SZ_Q)
    k(f"s_mov_b32 s{sT}, 0xffff0000")
    t = wb[0]
    for u in range(5):
        for hh in range(2):
            k(f"v_lshlrev_b32 v{t+4*u+2*hh}, 16, v{xr+2*u+hh}\nv_and_b32 v{t+4*u+2*hh+1}, s{sT}, v{xr+2*u+hh}")
    for i in range(20):
        k(f"v_add_f32 v{t+i}, v{t+i}, v{oacc+i}")
    for u in range(5):
        k(f"v_cvt_pk_bf16_f32 v{xr+2*u}, v{t+4*u}, v{t+4*u+1}\nv_cvt_pk_bf16_f32 v{xr+2*u+1}, v{t+4*u+2}, v{t+4*u+3}")
    for u in range(5):
        k(f"buffer_store_dwordx2 {v(xr+2*u,2)}, v{vXo}, s[{sXo}:{sXo+3}], s{sXof} offen offset:{32*u}")
    ne = k.lab("ne")
    k(f"s_or_b32 s{sT}, s2, s{sW}\ns_cbranch_scc1 {ne}\ns_mov_b32 s{sT}, {hx(FL_E)}")
    gset(f"s{sT}", vP, vQ)
    k.label(ne)
    k.endpgm(P_WS, 3)
    k.label(end)
    k("s_endpgm")
    return k
```

```python
import sys, json, os
os.environ["STAMP"] = "1"
sys.path.insert(0,'gen')
import build, mega
from common import *
kw = json.loads(sys.argv[2]) if len(sys.argv)>2 else {}
mode = sys.argv[3] if len(sys.argv) > 3 else "all"
k = mega.gen_mega(**kw)
e = Kern("spin_kernel", 1, 64, 0, 16)
end = e.lab("end")
e(f"s_cmp_ge_u32 s2, 1\ns_cbranch_scc1 {end}")
e(f"s_load_dwordx2 s[4:5], s[0:1], {KA_WS}\ns_waitcnt lgkmcnt(0)")
slot, widx = (3, 8*12+8) if len(sys.argv) <= 4 else (int(sys.argv[4]), int(sys.argv[5]))
off = WS_STAMP + slot*0x20000 + widx*32
e(f"s_add_u32 s4, s4, {hx(off)}\ns_addc_u32 s5, s5, 0\ns_load_dwordx8 s[8:15], s[4:5], 0\ns_memrealtime s[16:17]\ns_memtime s[20:21]\ns_waitcnt lgkmcnt(0)")
if mode == "all":
    e("s_sub_u32 s18, s15, s13")
    l = e.lab("l"); e.label(l)
    e(f"s_memrealtime s[22:23]\ns_waitcnt lgkmcnt(0)\ns_sub_u32 s22, s22, s16\ns_cmp_lt_u32 s22, s18\ns_cbranch_scc1 {l}")
elif mode != "none":
    i = int(mode[1:])
    e(f"s_sub_u32 s18, s{8+i}, s8\ns_mul_hi_u32 s18, s18, {hx((1<<32)//20)}\ns_min_u32 s18, s18, 100000")
    l = e.lab("l"); e.label(l)
    e(f"s_memrealtime s[22:23]\ns_waitcnt lgkmcnt(0)\ns_sub_u32 s22, s22, s16\ns_cmp_lt_u32 s22, s18\ns_cbranch_scc1 {l}")
e.label(end)
e("s_endpgm")
build.build([k, e], sys.argv[1], launches=[k, e])
```

```python
from common import *
import os

CH = 8 * KV_TILE
NSLOT = 3
ATT_LDS = NSLOT * CH
MARGIN = 64.0
TRIG = 2.0**48

def emit_attn(k, sTok, sW, vL, P_WS, sS, vb, lds_base, flag_base, pre_publish=None, slot=4, handoff=None, mega=None, budget=None, gset=None, tb=False, tail=None, yph=1, bal=0):
    CO = 'sc1' if mega else ''
    GT = KV_G if mega else KV_TILE
    sKV, sQ = sS, sS + 4
    sT, sC, sSo, sM0, sDelta, sRet, sMask, sSlot = sS + 8, sS + 11, sS + 12, sS + 13, sS + 14, sS + 15, sS + 16, sS + 17
    sEx = sS + 18
    a = Alloc(vb)
    Sx = [a(16, 4), a(16, 4)]
    O = a(16, 4)
    P = [a(8, 4), a(8, 4)]
    QA = a(4, 4); KA = a(4, 4); V0 = a(4, 4); V1 = a(4, 4)
    QB = a(2, 2); KB = a(2, 2)
    vKa, vKb, vVa, vD, vM, vN, vH, vFa, vFw, vFl = [a() for _ in range(10)]
    vT = a(6, 2)
    vPc, vPw, vPr, vPp = 108, 109, 110, 111
    if not mega:
        k.stamp(0); k.stamp_rt(5)
    if STAMP: k("s_mov_b32 s88, 0")
    k.srd(sKV, P_WS, 64 * GT, WS_KV)
    k.srd(sQ, P_WS, SZ_Q, WS_Q)
    k(f"""v_and_b32 v{vN}, 31, v{vL}
    v_lshrrev_b32 v{vH}, 5, v{vL}
    v_lshlrev_b32 v{vD}, 4, v{vL}
    s_mul_i32 s{sSo}, s{sW}, {KV_TILE}
    s_add_u32 s{sM0}, s{sSo}, {lds_base}
    s_mul_i32 s{sSo}, s{sW}, {GT}
    s_mov_b32 s{sMask}, 0xffff0000
    s_mov_b32 s{sEx}, -1
    s_mov_b32 s{sEx+1}, 0xf""")
    def dma(slot):
        k(f"s_add_u32 m0, s{sM0}, {slot}")
        k("s_nop 0")
        k(f"buffer_load_dwordx4 v{vD}, s[{sKV}:{sKV+3}], s{sSo} offen {CO} lds")
        k(f"buffer_load_dwordx4 v{vD}, s[{sKV}:{sKV+3}], s{sSo} offen offset:1024 {CO} lds")
        k(f"s_mov_b64 exec, s[{sEx}:{sEx+1}]")
        k(f"buffer_load_dwordx4 v{vD}, s[{sKV}:{sKV+3}], s{sSo} offen offset:2048 {CO} lds")
        k(f"s_mov_b64 exec, -1")
        k(f"s_add_u32 s{sSo}, s{sSo}, {8*GT}")
    if not mega:
        dma(0)
        k(f"""s_mul_i32 s{sT}, s{sTok}, 1280
        v_mul_u32_u24 v{vT}, 40, v{vN}
        v_lshl_add_u32 v{vT+1}, v{vH}, 4, v{vT}
        v_lshl_add_u32 v{vT+2}, v{vH}, 2, v{vT}
        buffer_load_dwordx4 {v(QA,4)}, v{vT+1}, s[{sQ}:{sQ+3}], s{sT} offen
        buffer_load_dword v{QB}, v{vT+2}, s[{sQ}:{sQ+3}], s{sT} offen offset:32""")
        dma(CH)
    k(f"""v_add_u32 v{vKa}, {lds_base}, v{vD}
    v_lshlrev_b32 v{vKb}, 2, v{vL}
    v_add_u32 v{vKb}, {lds_base+KV_KB}, v{vKb}
    v_min_u32 v{vVa}, 20, v{vN}
    v_lshlrev_b32 v{vVa}, 4, v{vVa}
    v_mul_u32_u24 v{vT}, 336, v{vH}
    v_add_u32 v{vVa}, v{vVa}, v{vT}
    v_add_u32 v{vVa}, {lds_base+KV_V}, v{vVa}
    v_mov_b32 v{KB+1}, 0x3f803f80
    v_mov_b32 v{QB+1}, 0
    v_and_b32 v{vFa}, 7, v{vL}
    v_lshlrev_b32 v{vFa}, 2, v{vFa}
    v_add_u32 v{vFa}, {flag_base}, v{vFa}
    s_lshl_b32 s{sT}, s{sW}, 2
    s_add_u32 s{sT}, s{sT}, {flag_base}
    v_mov_b32 v{vFw}, s{sT}""")
    if bal:
        k(f"v_add_u32 v{vPw}, 96, v{vFw}\nv_xor_b32 v{vPr}, 16, v{vPw}\nv_mov_b32 v{vPc}, 0")
    for i in range(16):
        k(f"v_mov_b32 v{O+i}, 0")
    for i in range(8):
        k(f"v_mov_b32 v{P[1]+i}, 0")
    for r in (V0, V1):
        for i in range(4):
            k(f"v_mov_b32 v{r+i}, 0")

    def publish(val):
        k(f"v_mov_b32 v{vFl}, {val}")
        k(f"ds_write_b32 v{vFw}, v{vFl}")
    def spin(val):
        l = k.lab("spin"); d = k.lab("spun")
        k.label(l)
        k(f"ds_read_b32 v{vFl}, v{vFa}\ns_waitcnt lgkmcnt(0)\nv_cmp_gt_u32 vcc, {val}, v{vFl}\ns_cbranch_vccz {d}\ns_sleep 1")
        k(f"s_branch {l}" if budget is None else f"s_sub_u32 s{budget}, s{budget}, 1\ns_cbranch_scc0 {l}")
        k.label(d)
    def set_m():
        k(f"""v_sub_f32 v{vT}, 0, v{vM}
        v_and_b32 v{vT+1}, s{sMask}, v{vT}
        v_sub_f32 v{vT}, v{vT}, v{vT+1}
        v_and_b32 v{vT+2}, s{sMask}, v{vT}
        v_sub_f32 v{vT}, v{vT}, v{vT+2}
        v_lshrrev_b32 v{vT+1}, 16, v{vT+1}
        v_or_b32 v{vT+1}, v{vT+1}, v{vT+2}
        v_cmp_eq_u32 vcc, 0, v{vH}
        v_lshrrev_b32 v{vT}, 16, v{vT}
        s_nop 0
        v_cndmask_b32 v{QB+1}, v{vT}, v{vT+1}, vcc
        s_nop 1""")
    def qk(S):
        return [f"v_mfma_f32_32x32x16_bf16 {v(S,16)}, {v(KA,4)}, {v(QA,4)}, 0",
                f"v_mfma_f32_32x32x8_bf16 {v(S,16)}, {v(KB,2)}, {v(QB,2)}, {v(S,16)}"]
    def pv(Pp):
        return [f"v_mfma_f32_32x32x16_bf16 {v(O,16)}, {v(V0,4)}, {v(Pp,4)}, {v(O,16)}",
                f"v_mfma_f32_32x32x16_bf16 {v(O,16)}, {v(V1,4)}, {v(Pp+4,4)}, {v(O,16)}"]
    rdK = lambda i: [f"ds_read_b128 {v(KA,4)}, v{vKa} offset:{KV_TILE*i}", f"ds_read_b32 v{KB}, v{vKb} offset:{KV_TILE*i}"]
    rdV = lambda i: [f"ds_read_b128 {v(V0,4)}, v{vVa} offset:{KV_TILE*i}", f"ds_read_b128 {v(V1,4)}, v{vVa} offset:{KV_TILE*i+672}"]
    def maxtree(S, first):
        if first:
            k(f"v_max3_f32 v{vM}, v{S}, v{S+1}, v{S+2}\nv_max_f32 v{vM}, v{vM}, v{S+3}")
            rng = range(4, 16, 2)
        else:
            rng = range(0, 16, 2)
        for i in rng:
            k(f"v_max3_f32 v{vM}, v{vM}, v{S+i}, v{S+i+1}")
    def cross_half_max():
        k(f"v_mov_b32 v{vT}, v{vM}\ns_nop 1\nv_permlane32_swap_b32 v{vM}, v{vT}\nv_max_f32 v{vM}, v{vM}, v{vT}")

    if not mega:
        if pre_publish:
            pre_publish()
        k("s_waitcnt vmcnt(3)")
        publish(1)
        spin(1)
    else:
        G = lds_base + 2 * CH
        k(f"""v_lshrrev_b32 v{vT}, 3, v{vL}
        v_and_b32 v{vT+1}, 7, v{vL}
        v_lshlrev_b32 v{vT+1}, 4, v{vT+1}
        v_lshl_add_u32 v{vT}, v{vT}, 9, v{vT+1}
        s_lshr_b32 s{sT}, s{handoff}, 2
        s_mul_i32 s{sT}, s{sT}, 40960
        s_and_b32 s{sT+1}, s{handoff}, 3
        s_lshl_b32 s{sT+1}, s{sT+1}, 7
        s_add_u32 s{sT}, s{sT}, s{sT+1}
        s_lshl_b32 s{sT+1}, s{sW}, 12
        s_add_u32 s{sT}, s{sT}, s{sT+1}
        s_lshl_b32 s{sT+1}, s{sW}, 10
        v_mul_u32_u24 v{vT+2}, 5, v{vN}
        v_lshl_add_u32 v{vT+3}, v{vH}, 1, v{vT+2}""")
        def qaddr(dst, src):
            k(f"""v_lshrrev_b32 v{vT+5}, 1, v{src}
            v_and_b32 v{dst}, 1, v{src}
            v_lshlrev_b32 v{dst}, 3, v{dst}
            v_lshl_add_u32 v{dst}, v{vT+5}, 7, v{dst}""")
        k(f"v_add_u32 v{vT+4}, 1, v{vT+3}\nv_add_u32 v{vT+2}, 4, v{vT+2}")
        qaddr(vT + 3, vT + 3); qaddr(vT + 4, vT + 4); qaddr(vT + 2, vT + 2)
        k(f"""v_lshl_add_u32 v{vT+2}, v{vH}, 2, v{vT+2}
        s_lshl_b32 s{sT+2}, s{sW}, 4
        s_add_u32 s{sT+2}, s{sT+2}, {G}
        v_add_u32 v{vT+2}, s{sT+2}, v{vT+2}
        v_add_u32 v{vT+3}, s{sT+2}, v{vT+3}
        v_add_u32 v{vT+4}, s{sT+2}, v{vT+4}""")
        mega(0)
        k.stamp(2)
        dma(0)
        nq = k.lab("nq")
        k(f"""s_add_u32 m0, s{sT+1}, {G}
        s_cmp_ge_u32 s{sW}, 2
        buffer_load_dwordx4 v{vT}, s[{sQ}:{sQ+3}], s{sT} offen sc1 lds
        s_cbranch_scc1 {nq}
        s_add_u32 m0, s{sT+1}, {G+8192}
        s_add_u32 s{sT}, s{sT}, 32768
        buffer_load_dwordx4 v{vT}, s[{sQ}:{sQ+3}], s{sT} offen sc1 lds""")
        k.label(nq)
        dma(CH)
        k("s_waitcnt vmcnt(3)")
        publish(1)
        mega(2)
        spin(1)
        k(f"ds_read_b64 {v(QA,2)}, v{vT+3}\nds_read_b64 {v(QA+2,2)}, v{vT+4}\nds_read_b32 v{QB}, v{vT+2}")
    k.stamp(1)
    for t in range(2):
        for x in rdK(t):
            k(x)
        k("s_waitcnt lgkmcnt(0)")
        for x in qk(Sx[t]):
            k(x)
    for x in rdK(0):
        k(x)
    k("s_nop 7\ns_nop 1")
    maxtree(Sx[0], True)
    maxtree(Sx[1], False)
    cross_half_max()
    k(f"v_ceil_f32 v{vM}, v{vM}\nv_add_f32 v{vM}, {fl(MARGIN)}, v{vM}")
    set_m()
    k("s_waitcnt lgkmcnt(0)")
    for x in qk(Sx[0]):
        k(x)
    for x in rdK(1):
        k(x)
    k(f"ds_read_b32 v{vFl}, v{vFa}\nds_read_b32 v{vFl}, v{vFa}")
    k(f"s_mov_b32 s{sC}, 0\ns_mov_b32 s{sSlot}, 0\ns_mov_b64 vcc, 0\ns_nop 4")
    if not mega: k.stamp(2)
    loop = k.lab("aloop"); rare = k.lab("rare")
    rl = [k.lab(f"rin{i}") for i in range(4)]
    rb = [k.lab(f"rback{i}") for i in range(4)]
    ACC = STAMP and os.environ.get("ACC")
    def t0():
        if ACC: k("s_memtime s[36:37]\ns_waitcnt lgkmcnt(0)")
    def t1(i):
        if ACC: k(f"s_memtime s[38:39]\ns_waitcnt lgkmcnt(0)\ns_sub_u32 s38, s38, s36\ns_add_u32 s{80+2*i}, s{80+2*i}, s38")
    if ACC: k("s_waitcnt lgkmcnt(0)\ns_mov_b32 s82, s80\ns_mov_b32 s84, s80")
    k.align(6)
    k.label(loop)
    if STAMP and os.environ.get("ACH"):
        for si, cc in zip((2, 1), os.environ["ACH"].split(",")):
            l = k.lab("ach")
            k(f"s_cmp_lg_u32 s{sC}, {cc}\ns_cbranch_scc1 {l}")
            k.stamp(si)
            k.label(l)
        k.align(3)
    for i in range(8):
        S, Sn, Pc, Pp = Sx[i % 2], Sx[1 - i % 2], P[i % 2], P[1 - i % 2]
        if i % 2 == 0:
            k(f"s_cbranch_vccnz {rl[i//2]}" if not os.environ.get("EXP") else "s_nop 0")
            k.label(rb[i // 2])
        if i == 6:
            l = k.lab("x"); d = k.lab("xd")
            if ACC == "a": t0()
            k(f"s_waitcnt lgkmcnt(4)\nv_cmp_gt_u32 vcc, s{sT}, v{vFl}\ns_cbranch_vccz {d}")
            if "anosync" not in os.environ.get("MX", ""): spin(f"s{sT}")
            k.label(d)
            if ACC == "a": t1(2)
            t0()
            nod = k.lab("nod")
            k(f"s_cmp_ge_u32 s{sC}, 6\ns_cbranch_scc1 {nod}")
            if "axd" not in os.environ.get("MX", ""): dma(f"s{sT+1}")
            k.label(nod)
            t1(1)
            k(f"v_add_u32 v{vKa}, s{sDelta}, v{vKa}\nv_add_u32 v{vKb}, s{sDelta}, v{vKb}")
        e = [f"v_exp_f32 v{S+j}, v{S+j}" for j in range(16)]
        c = [f"v_cvt_pk_bf16_f32 v{Pc+j}, v{S+2*j}, v{S+2*j+1}" for j in range(8)]
        m = qk(Sn) + pv(Pp)
        rk = rdK((i + 2) % 8); rv = rdV(i)
        seq = ["s_waitcnt lgkmcnt(2)" if i != yph + 1 else "s_waitcnt lgkmcnt(3)", e[0]]
        if i == 5:
            seq += [m[0], f"ds_read_b32 v{vFl}, v{vFa}", rk[0]]
        else:
            seq += [m[0], rk[0]]
        seq += e[1:5] + [c[0]]
        seq += [m[1], rk[1]] + e[5:7] + [c[1], c[2]]
        if i % 2 == 1:
            seq += [f"v_cmp_lt_f32 vcc, {fl(TRIG)}, v{O+12}"]
        seq += [e[7], e[8], "s_waitcnt lgkmcnt(2)"]
        seq += [m[2], rv[0]] + e[9:11] + [c[3]] + e[11:13] + [c[4]]
        seq += [m[3], rv[1]] + [e[13], c[5]] + e[14:16] + [c[6], c[7]]
        if bal and i % bal == 0:
            j = seq.index(m[0])
            seq[j:j] = [f"v_add_u32 v{vPc}, 1, v{vPc}"]
            j = seq.index(rk[0]) + 1
            seq[j:j] = [f"ds_write_b32 v{vPw}, v{vPc}", f"ds_read_b32 v{vPp}, v{vPr}"]
            j = seq.index(m[2]) - 1
            assert seq[j] == "s_waitcnt lgkmcnt(2)"
            seq[j] = "s_waitcnt lgkmcnt(4)"
        if bal and i % bal == 1 % bal:
            lb = k.lab("bal")
            j = seq.index(e[2])
            seq[j:j] = [f"v_cmp_lt_u32 s[{sS+20}:{sS+21}], v{vPp}, v{vPc}"]
            j = seq.index(m[1])
            seq[j:j] = [f"s_cmp_eq_u32 s{sS+20}, 0", "s_setprio 1", f"s_cbranch_scc1 {lb}", "s_setprio 0", lb + ":"]
        EXP = os.environ.get("EXP", "")
        if "nopv" in EXP: seq = [x for x in seq if x not in (m[2], m[3])]
        if "noqk" in EXP: seq = [x for x in seq if x not in (m[0], m[1])]
        if "noqb" in EXP: seq = [x for x in seq if x != m[1]]
        if "nolds" in EXP: seq = [(x if x not in rk + rv else f"ds_read_b32 v{vT}, v{vFa}") for x in seq]
        if "linv" in EXP: seq = [x.replace(f"v{vVa} offset", f"v{vKa} offset") for x in seq]
        if "nokb" in EXP: seq = [(x if x != rk[1] else f"ds_read_b128 v[112:115], v{vKa}") for x in seq]
        if "fix" in EXP:
            import re
            seq = [re.sub(r"offset:\d+", "offset:0", x) if x.startswith("ds_read") else x for x in seq]
        if "noexp" in EXP: seq = [x.replace("v_exp_f32", "v_rndne_f32") for x in seq]
        for x in seq:
            k(x)
        if i == yph:
            if ACC == "b": t0()
            k(f"s_add_u32 s{sT}, s{sC}, 2\ns_waitcnt vmcnt(0)")
            if ACC == "b": t1(2)
            publish(f"s{sT}")
            k(f"""s_mov_b32 s{sDelta}, {CH}
            s_cmp_eq_u32 s{sSlot}, {2*CH}
            s_cmov_b32 s{sDelta}, {hx(-2*CH)}
            s_sub_u32 s{sT+1}, s{sSlot}, {CH}
            s_cmp_eq_u32 s{sSlot}, 0
            s_cmov_b32 s{sT+1}, {2*CH}""")
    k(f"""v_add_u32 v{vVa}, s{sDelta}, v{vVa}
    s_add_u32 s{sSlot}, s{sSlot}, s{sDelta}
    s_add_u32 s{sC}, s{sC}, 1
    s_cmp_lt_u32 s{sC}, 8
    s_cbranch_scc1 {loop}""")
    k.stamp(3)
    k("s_waitcnt lgkmcnt(0)")
    for x in pv(P[1]):
        k(x)
    fin = k.lab("afin"); slow = k.lab("slow")
    k("s_nop 7\ns_nop 3")
    k(f"v_mov_b32 v{vT}, 0x207")
    k(f"s_mov_b64 s[{sEx}:{sEx+1}], 0")
    for i in list(range(13)):
        k(f"v_cmp_class_f32 vcc, v{O+i}, v{vT}\ns_or_b64 s[{sEx}:{sEx+1}], s[{sEx}:{sEx+1}], vcc")
    if not os.environ.get("EXP"): k(f"s_cbranch_scc1 {slow}")
    k.label(fin)
    k.srd(sQ, P_WS, SZ_OUF, WS_OUF)
    k(f"""v_rcp_f32 v{vT+4}, v{O+12}
    v_mul_u32_u24 v{vT}, 5, v{vN}
    v_add_u32 v{vT}, v{vT}, v{vH}
    v_lshrrev_b32 v{vT+1}, 1, v{vT}
    v_and_b32 v{vT}, 1, v{vT}
    v_lshlrev_b32 v{vT}, 3, v{vT}""")
    for i in range(12):
        k(f"v_mul_f32 v{O+i}, v{O+i}, v{vT+4}")
    for i in range(6):
        k(f"v_cvt_pk_bf16_f32 v{P[0]+i}, v{O+2*i}, v{O+2*i+1}")
    if handoff is None:
        k(f"""v_lshl_add_u32 v{vT}, v{vT+1}, 8, v{vT}
        s_lshr_b32 s{sT}, s{sTok}, 4
        s_mul_i32 s{sT}, s{sT}, {47*1024}
        s_and_b32 s{sT+1}, s{sTok}, 15
        s_lshl_b32 s{sT+1}, s{sT+1}, 4
        s_add_u32 s{sT}, s{sT}, s{sT+1}
        buffer_store_dwordx2 {v(P[0],2)}, v{vT}, s[{sQ}:{sQ+3}], s{sT} offen
        buffer_store_dwordx2 {v(P[0]+2,2)}, v{vT}, s[{sQ}:{sQ+3}], s{sT} offen offset:256
        s_mov_b32 exec_hi, 0
        buffer_store_dwordx2 {v(P[0]+4,2)}, v{vT}, s[{sQ}:{sQ+3}], s{sT} offen offset:512""")
        k.endpgm(P_WS, slot)
    else:
        G = lds_base + 2 * CH
        last = k.lab("last")
        k(f"""v_lshl_add_u32 v{vT}, v{vT+1}, 7, v{vT}
        s_lshl_b32 s{sT}, s{sW}, 4
        s_add_u32 s{sT}, s{sT}, {G}
        v_add_u32 v{vT}, s{sT}, v{vT}
        ds_write_b64 v{vT}, {v(P[0],2)}
        ds_write_b64 v{vT}, {v(P[0]+2,2)} offset:128
        s_mov_b32 exec_hi, 0
        ds_write_b64 v{vT}, {v(P[0]+4,2)} offset:256
        s_mov_b64 exec, 1
        v_mov_b32 v{vT+2}, {flag_base+48}
        v_mov_b32 v{vT+3}, 1
        s_waitcnt lgkmcnt(0)
        ds_add_rtn_u32 v{vT+3}, v{vT+2}, v{vT+3}
        s_waitcnt lgkmcnt(0)
        v_readfirstlane_b32 s{sT}, v{vT+3}
        s_mov_b64 exec, -1
        s_cmp_eq_u32 s{sT}, 7
        s_cbranch_scc1 {last}""")
        k.endpgm(P_WS, slot)
        k.label(last)
        if tail: tail(0)
        k(f"v_add_u32 v{vT}, {G}, v{vD}")
        for i in range(10):
            k(f"ds_read_b128 {v(Sx[0]+4*i,4)}, v{vT} offset:{1024*i}")
        k(f"""v_lshrrev_b32 v{vT+1}, 3, v{vL}
        v_and_b32 v{vT+2}, 7, v{vL}
        v_lshlrev_b32 v{vT+2}, 4, v{vT+2}
        v_lshl_add_u32 v{vT+1}, v{vT+1}, 8, v{vT+2}
        s_lshr_b32 s{sT}, s{handoff}, 1
        s_mul_i32 s{sT}, s{sT}, {47*1024}
        s_and_b32 s{sT+1}, s{handoff}, 1
        s_lshl_b32 s{sT+1}, s{sT+1}, 7
        s_add_u32 s{sT}, s{sT}, s{sT+1}""")
        for i in range(10):
            k(f"s_waitcnt lgkmcnt({9-i})")
            k(f"buffer_store_dwordx4 {v(Sx[0]+4*i,4)}, v{vT+1}, s[{sQ}:{sQ+3}], s{sT} offen offset:{2048*(i%2)} sc1")
            if i % 2 == 1:
                k(f"s_add_u32 s{sT}, s{sT}, 4096")
        k(f"s_sub_u32 s{sT+1}, s{sT}, 20480\ns_add_u32 s{sT+2}, s{sT+1}, 16384")
        k(f"s_lshl_b32 s{sT}, s{handoff}, 7\ns_add_u32 s{sT}, s{sT}, {FL_O}\ns_waitcnt vmcnt(0)")
        gset(f"s{sT}", vT + 4, vT + 2)
        if tail: tail(1)
        if tb:
            k(f"""v_lshlrev_b32 v{vT}, 8, v{vL}
            buffer_load_dword v{vT+1}, v{vT}, s[{sQ}:{sQ+3}], s{sT+1} offen sc1
            s_mov_b64 exec, 0xffff
            buffer_load_dword v{vT+1}, v{vT}, s[{sQ}:{sQ+3}], s{sT+2} offen sc1""")
        k.endpgm(P_WS, slot)
    for i in range(4):
        k.label(rl[i])
        k(f"s_mov_b32 s{sRet}, {i}\ns_branch {rare}")
    k.label(rare)
    if STAMP: k("s_add_u32 s88, s88, 1")
    k("s_nop 7\ns_nop 3")
    k(f"""v_frexp_exp_i32_f32 v{vT+3}, v{O+12}
    v_add_u32 v{vT+3}, {int(MARGIN)}, v{vT+3}
    v_max_i32 v{vT+3}, 0, v{vT+3}
    v_cvt_f32_i32 v{vT+4}, v{vT+3}
    v_add_f32 v{vT+5}, v{vM}, v{vT+4}
    v_sub_f32 v{vT+4}, v{vT+5}, v{vM}
    v_mov_b32 v{vM}, v{vT+5}
    v_cvt_i32_f32 v{vT+3}, v{vT+4}
    v_sub_u32 v{vT+3}, 0, v{vT+3}""")
    for i in range(16):
        k(f"v_ldexp_f32 v{O+i}, v{O+i}, v{vT+3}")
    for i in range(16):
        k(f"v_sub_f32 v{Sx[0]+i}, v{Sx[0]+i}, v{vT+4}")
    for i in range(8):
        k(f"""v_lshlrev_b32 v{vT}, 16, v{P[1]+i}
        v_and_b32 v{vT+1}, s{sMask}, v{P[1]+i}
        v_ldexp_f32 v{vT}, v{vT}, v{vT+3}
        v_ldexp_f32 v{vT+1}, v{vT+1}, v{vT+3}
        v_cvt_pk_bf16_f32 v{P[1]+i}, v{vT}, v{vT+1}""")
    set_m()
    for i in range(3):
        k(f"s_cmp_eq_u32 s{sRet}, {i}\ns_cbranch_scc1 {rb[i]}")
    k(f"s_branch {rb[3]}")
    k.label(slow)
    p1 = k.lab("p1"); p2 = k.lab("p2")
    k(f"""v_mov_b32 v{QB+1}, 0
    v_mov_b32 v{vM}, 0xff7fffff
    v_lshlrev_b32 v{vKb}, 2, v{vL}
    v_min_u32 v{vVa}, 20, v{vN}
    v_lshlrev_b32 v{vVa}, 4, v{vVa}
    v_mul_u32_u24 v{vT}, 336, v{vH}
    v_add_u32 v{vVa}, v{vVa}, v{vT}
    s_mov_b32 s{sSo}, 0""")
    def gK():
        k(f"buffer_load_dwordx4 {v(KA,4)}, v{vD}, s[{sKV}:{sKV+3}], s{sSo} offen offset:{KV_KA} {CO}")
        k(f"buffer_load_dword v{KB}, v{vKb}, s[{sKV}:{sKV+3}], s{sSo} offen offset:{KV_KB} {CO}")
    k.label(p1)
    gK()
    k("s_waitcnt vmcnt(0)")
    for x in qk(Sx[0]):
        k(x)
    k("s_nop 7\ns_nop 3")
    maxtree(Sx[0], False)
    k(f"s_add_u32 s{sSo}, s{sSo}, {GT}\ns_cmp_lt_u32 s{sSo}, {64*GT}\ns_cbranch_scc1 {p1}")
    cross_half_max()
    set_m()
    for i in range(16):
        k(f"v_mov_b32 v{O+i}, 0")
    k(f"s_mov_b32 s{sSo}, 0")
    k.label(p2)
    gK()
    k(f"buffer_load_dwordx4 {v(V0,4)}, v{vVa}, s[{sKV}:{sKV+3}], s{sSo} offen offset:{KV_V} {CO}")
    k(f"buffer_load_dwordx4 {v(V1,4)}, v{vVa}, s[{sKV}:{sKV+3}], s{sSo} offen offset:{KV_V+672} {CO}")
    k("s_waitcnt vmcnt(0)")
    for x in qk(Sx[0]):
        k(x)
    k("s_nop 7\ns_nop 3")
    for j in range(16):
        k(f"v_exp_f32 v{Sx[0]+j}, v{Sx[0]+j}")
    k("s_nop 0")
    for j in range(8):
        k(f"v_cvt_pk_bf16_f32 v{P[0]+j}, v{Sx[0]+2*j}, v{Sx[0]+2*j+1}")
    k("s_nop 1")
    for x in pv(P[0]):
        k(x)
    k(f"s_add_u32 s{sSo}, s{sSo}, {GT}\ns_cmp_lt_u32 s{sSo}, {64*GT}\ns_cbranch_scc1 {p2}")
    k(f"s_nop 7\ns_nop 3\ns_branch {fin}")
    return a.n


def gen_k2a():
    k = Kern("k2_attn_kernel", 256, 512, ATT_LDS + 256, 104)
    end = k.lab("end")
    k(f"s_cmp_ge_u32 s2, 256\ns_cbranch_scc1 {end}")
    k(f"s_load_dwordx2 s[4:5], s[0:1], {KA_WS}")
    k(f"""v_lshrrev_b32 v2, 6, v0
    v_and_b32 v1, 63, v0
    v_readfirstlane_b32 s3, v2
    v_lshlrev_b32 v2, 2, v1
    v_add_u32 v2, {ATT_LDS}, v2
    v_mov_b32 v3, 0
    ds_write_b32 v2, v3
    s_lshl_b32 s6, s2, 3
    s_add_u32 s6, s6, s3
    s_waitcnt lgkmcnt(0)""")
    n = emit_attn(k, 6, 3, 1, 4, 8, 4, 0, ATT_LDS, pre_publish=lambda: k("s_barrier"))
    assert n <= 104, n
    k.label(end)
    k("s_endpgm")
    return k
```

```python
import struct

S, D, H, DH, F, FH = 2048, 640, 32, 20, 1728, 864
WS_Q   = 0x0
WS_Z   = 0x280000
WS_KV  = 0x940000
KV_TILE = 2624
KV_KA, KV_KB, KV_V = 0, 1024, 1280
WS_Z2F = 0x970000
WS_OUF = 0xCF0000
WS_WF  = 0x12D0000
WS_FLAG = 0x700000
FL_X, FL_Z, FL_O, FL_Q, FL_U, FL_S, FL_E, SZ_FLAG = 0, 0x10000, 0x18000, 0x20000, 0x40000, 0x60000, 0x80000, 0x80080
FL_W = FL_Q + 0x8000
WS_TAB = 0x600000
WS_MR = 0x14A8000
WS_XN = WS_Z
XN_ST = 1280
SZ_XN = 2048 * XN_ST
KV_G = 2688
SZ_KVG = 64 * KV_G
WS_ST = WS_Z + 0x300000
SZ_ST = 16*14*2048
WS_STAMP = 0x1520000
import os
STAMP = os.environ.get('STAMP', '0') == '1'
SZ_Q, SZ_Z, SZ_KV = 2048*1280, 2048*3456, 64*KV_TILE
SZ_Z2F, SZ_OUF, SZ_WF = 27*128*1024, 128*47*1024, 8*47*5*1024
KA_X, KA_WQ, KA_WK, KA_WV, KA_WO, KA_BX, KA_WIN, KA_WSP, KA_BSP, KA_WOUT, KA_OUT, KA_DBG, KA_WS = [8*i for i in range(13)]

def f2u(x):
    return struct.unpack("<I", struct.pack("<f", x))[0]
def hx(x):
    return "0x%08x" % (x & 0xffffffff)
def fl(x):
    return hx(f2u(x))

def v(i, n=1):
    return f"v{i}" if n == 1 else f"v[{i}:{i+n-1}]"
def s(i, n=1):
    return f"s{i}" if n == 1 else f"s[{i}:{i+n-1}]"

class Kern:
    def __init__(self, name, grid, block, lds, vgprs, sgprs=100):
        self.name, self.grid, self.block, self.lds, self.vgprs, self.sgprs = name, grid, block, lds, vgprs, sgprs
        self.L = []
        self.nlab = 0
    def __call__(self, txt):
        for l in txt.strip("\n").split("\n"):
            l = l.strip()
            if l:
                self.L.append(("" if l.endswith(":") else "    ") + l)
    def c(self, txt):
        self.L.append("    ; " + txt)
    def lab(self, base):
        self.nlab += 1
        return f"L_{self.name[:-7]}_{base}_{self.nlab}"
    def label(self, l):
        self.L.append(l + ":")
    def align(self, n=6):
        self.L.append(f"    .p2align {n}")
    def srd(self, d, base, size, off=0):
        if off:
            self(f"s_add_u32 s{d}, s{base}, {hx(off)}\ns_addc_u32 s{d+1}, s{base+1}, 0")
        else:
            self(f"s_mov_b32 s{d}, s{base}\ns_mov_b32 s{d+1}, s{base+1}")
        self(f"s_mov_b32 s{d+2}, {hx(size)}\ns_mov_b32 s{d+3}, 0x00020000")
    def stamp(self, i):
        if STAMP:
            self(f"{'s_memrealtime' if os.environ.get('RT') else 's_memtime'} s[{80+2*i}:{81+2*i}]")
    def stamp_rt(self, i):
        if STAMP:
            self(f"s_memrealtime s[{80+2*i}:{81+2*i}]")
    def endpgm(self, P_WS=None, slot=0):
        if STAMP and P_WS is not None:
            self("s_mov_b64 exec, -1")
            self(("s_memrealtime" if os.environ.get('RT') else "s_memtime") + " s[92:93]\ns_memrealtime s[94:95]")
            self(f"s_add_u32 s76, s{P_WS}, {hx(WS_STAMP + slot*0x20000)}\ns_addc_u32 s77, s{P_WS+1}, 0\ns_mov_b32 s78, 0x20000\ns_mov_b32 s79, 0x00020000")
            self("s_waitcnt lgkmcnt(0)")
            self(f"v_lshrrev_b32 v0, 6, v0\ns_mul_i32 s75, s2, {self.block//64}\nv_add_u32 v0, s75, v0\nv_lshlrev_b32 v0, 5, v0")
            for i in range(8):
                self(f"v_mov_b32 v{4+i}, s{80+2*i}")
            self("s_mov_b64 exec, 1")
            self("buffer_store_dwordx4 v[4:7], v0, s[76:79], 0 offen\nbuffer_store_dwordx4 v[8:11], v0, s[76:79], 0 offen offset:16")
        self("s_endpgm")
    def launch_line(self):
        return f"; @launch kernel={self.name} grid=({self.grid},1,1) block=({self.block},1,1) lds={self.lds}"
    def text(self):
        t = f".globl {self.name}\n.p2align 8\n.type {self.name},@function\n{self.name}:\n"
        return t + "\n".join(self.L) + "\n"
    def desc(self):
        acc = (self.vgprs + 3) // 4 * 4
        if acc > 256:
            acc = 256
        return f""".p2align 6
.amdhsa_kernel {self.name}
  .amdhsa_next_free_vgpr {self.vgprs}
  .amdhsa_next_free_sgpr {self.sgprs}
  .amdhsa_accum_offset {acc}
  .amdhsa_group_segment_fixed_size 0
  .amdhsa_kernarg_size 104
  .amdhsa_user_sgpr_count 2
  .amdhsa_user_sgpr_kernarg_segment_ptr 1
  .amdhsa_system_sgpr_workgroup_id_x 1
  .amdhsa_float_denorm_mode_32 3
.end_amdhsa_kernel
"""

class Alloc:
    def __init__(self, start=0):
        self.n = start
    def __call__(self, cnt=1, align=1):
        if cnt >= 2 and align == 1:
            align = 2
        self.n = (self.n + align - 1) // align * align
        r = self.n
        self.n += cnt
        return r

def interleave(prim, fill):
    out = []
    n, m = len(prim), len(fill)
    k = 0
    for i, p in enumerate(prim):
        out.append(p)
        e = (i + 1) * m // n
        out += fill[k:e]
        k = e
    return out
```

```python
from common import *
import os, math
from k2parts import emit_repack
from attn import emit_attn, ATT_LDS

MX = os.environ.get('MX', '')
SP = os.environ.get('SP', 'p1,p2,p3,p4').split(',')
QSCALE = math.log2(math.e) / math.sqrt(20.0)
GC0 = -2.0 * math.sqrt(2.0 / math.pi) * math.log2(math.e)
GC1 = GC0 * 0.044715

L_A = ATT_LDS
L_Z = L_A + 3 * 16384
L_W = L_A - 4096
L_CS = L_Z + 6 * 8192
L_F = L_CS + 2048
F_G, F_OC, F_XC, F_GO, F_XR, F_AUX = 32, 48, 52, 56, 60, 64
MEGA_LDS = L_F + 128
NAME = "parallel_sum__grouped_kv_mqa__mixer_gmlp__prompt_kernel"

def gen_mega(noatt=False, patz='00000000', pats='00000000', lprio=0, seam=True, oprio=3, pf='xisw', ntx='', ntw='', repw='g', cpf=True, pslp=4, deep=False, tb=False, wfat=6, rprio=3, yph=1, thr=None, bal=0):
    k = Kern(NAME, 256, 768, MEGA_LDS, 168, sgprs=100)
    P_X, P_WQ, P_WK, P_WV, P_WO = 44, 46, 48, 50, 52
    P_WIN, P_WSP, P_BSP, P_WOUT, P_OUT, P_DBG, P_WS = 56, 58, 60, 62, 64, 66, 68
    sWid, sTok, sBlk, sTB, sFG, sBud = 3, 4, 5, 6, 7, 70
    sNo = 96
    sFl = 72
    vL = 1
    end = k.lab("end"); gem = k.lab("gem")
    k(f"s_cmp_ge_u32 s2, 256\ns_cbranch_scc1 {end}")
    k.stamp(0); k.stamp_rt(5)
    k(f"s_load_dwordx8 s[{P_X}:{P_X+7}], s[0:1], {KA_X}\ns_load_dwordx2 s[{P_WO}:{P_WO+1}], s[0:1], {KA_WO}")
    k(f"s_load_dwordx8 s[{P_WIN}:{P_WIN+7}], s[0:1], {KA_WIN}\ns_load_dwordx4 s[{P_OUT}:{P_OUT+3}], s[0:1], {KA_OUT}\ns_load_dwordx2 s[{P_WS}:{P_WS+1}], s[0:1], {KA_WS}")
    k(f"""v_lshrrev_b32 v2, 6, v0
    v_and_b32 v1, 63, v0
    v_readfirstlane_b32 s{sWid}, v2
    v_and_b32 v2, 31, v0
    v_lshlrev_b32 v2, 2, v2
    v_add_u32 v2, {L_F}, v2
    v_mov_b32 v3, 0
    ds_write_b32 v2, v3
    s_and_b32 s{sTB}, s2, 7
    s_lshl_b32 s{sBlk}, s{sTB}, 5
    s_lshr_b32 s{sTok}, s2, 3
    s_add_u32 s{sBlk}, s{sBlk}, s{sTok}
    s_lshl_b32 s{sTok}, s{sBlk}, 3
    s_add_u32 s{sTok}, s{sTok}, s{sWid}
    s_lshl_b32 s{sTB}, s{sTB}, 1
    s_bfe_u32 s{sFG}, s2, 0x10003
    s_add_u32 s{sTB}, s{sTB}, s{sFG}
    s_lshr_b32 s{sFG}, s2, 4
    s_mov_b32 s{sBud}, 400000
    s_waitcnt lgkmcnt(0)""")
    k.srd(sFl, P_WS, SZ_FLAG, WS_FLAG)
    k(f"s_load_dwordx2 s[{sNo}:{sNo+1}], s[{sFl}:{sFl+1}], {hx(FL_E)}")
    k(f"s_cmp_ge_u32 s{sWid}, 8\ns_cbranch_scc1 {gem}")

    def again(l):
        k(f"s_sub_u32 s{sBud}, s{sBud}, 1\ns_cbranch_scc0 {l}")
    def lds_wait(addr, va, vd, slp=1):
        val = {F_XR: 8, F_GO: 4, F_OC: 10}[addr - L_F]
        l = k.lab("lw"); d = k.lab("lwd")
        k(f"v_mov_b32 v{va}, {addr}")
        k.label(l)
        k(f"ds_read_b32 v{vd}, v{va}\ns_waitcnt lgkmcnt(0)\nv_cmp_gt_u32 vcc, {val}, v{vd}\ns_cbranch_vccz {d}\ns_sleep {slp}")
        again(l)
        k.label(d)
    def lds_set(addr, va, vd):
        k(f"v_mov_b32 v{va}, {addr}\nv_mov_b32 v{vd}, 1\nds_write_b32 v{va}, v{vd}")
    def gcheck(vd):
        k(f"v_cmp_ne_u64 vcc, s[{sNo}:{sNo+1}], {v(vd,2)}")
    def gload(soff, voff, vd):
        return f"buffer_load_dwordx2 {v(vd,2)}, v{voff}, s[{sFl}:{sFl+3}], {soff} offen sc1"
    def gpoll(soff, voff, vd, mask, slp):
        l = k.lab("pl"); d = k.lab("pd")
        if mask is not None: k(f"s_mov_b64 exec, {hx(mask)}")
        k.label(l)
        k(gload(soff, voff, vd))
        k("s_waitcnt vmcnt(0)")
        gcheck(vd)
        k(f"s_cbranch_vccz {d}\ns_sleep {slp}")
        again(l)
        k.label(d)
        if mask is not None: k("s_mov_b64 exec, -1")
    def gset(soff, va, vd):
        k(f"""v_mov_b32 v{vd}, s{sNo}
        v_mov_b32 v{vd+1}, s{sNo+1}
        v_lshlrev_b32 v{va}, 3, v{vL}
        s_mov_b64 exec, 0xffff
        buffer_store_dwordx2 {v(vd,2)}, v{va}, s[{sFl}:{sFl+3}], {soff} offen sc1
        s_mov_b64 exec, -1""")
    def spoll(offs, s0, slp=1):
        l = k.lab("sp"); r = k.lab("spr"); d = k.lab("spd")
        k.label(l)
        for i, (so, im) in enumerate(offs):
            k(f"s_load_dwordx2 s[{s0+2*i}:{s0+2*i+1}], s[{sFl}:{sFl+1}], s{so} offset:{hx(im)} glc")
        k("s_waitcnt lgkmcnt(0)")
        for i in range(len(offs)):
            k(f"s_cmp_eq_u64 s[{s0+2*i}:{s0+2*i+1}], s[{sNo}:{sNo+1}]")
            k(f"s_cbranch_scc0 {r}" if i + 1 < len(offs) else f"s_cbranch_scc1 {d}")
        k.label(r)
        k(f"s_sleep {slp}")
        again(l)
        k.label(d)
    def nonce():
        k(f"s_waitcnt lgkmcnt(0)\ns_add_u32 s{sNo}, s{sNo}, 1")

    sX, sO, sT, sMask = 8, 12, 16, 24
    raw, f, st, vA = 4, 12, 28, 30
    nz = k.lab("nz")
    k.srd(sX, P_X, SZ_Q)
    k(f"s_mul_i32 s{sT}, s{sTok}, 1280\nv_lshlrev_b32 v{vA}, 4, v{vL}\ns_mov_b32 s{sMask}, 0xffff0000")
    for i in range(4, 8):
        k(f"v_mov_b32 v{raw+i}, 0")
    k(f"buffer_load_dwordx4 {v(raw,4)}, v{vA}, s[{sX}:{sX+3}], s{sT} offen {ntx}")
    k("s_mov_b64 exec, 0xffff")
    k(f"buffer_load_dwordx4 {v(raw+4,4)}, v{vA}, s[{sX}:{sX+3}], s{sT} offen offset:1024 {ntx}")
    k("s_mov_b64 exec, -1")
    if 'x' in pf:
        k(f"""s_and_b32 s{sT+1}, s{sTok}, 255
        s_mul_i32 s{sT+2}, s{sT+1}, {25*128}
        v_lshlrev_b32 v{vA+1}, 7, v{vL}
        s_mov_b64 exec, 0x1ffffff""")
        k.srd(sO, P_WQ, 640*1280)
        k(f"buffer_load_dword v{vA+2}, v{vA+1}, s[{sO}:{sO+3}], s{sT+2} offen\ns_lshl_b32 s{sT+1}, s{sT+1}, 7\ns_mov_b64 exec, 1")
        k.srd(sO, P_WK, 25600)
        k(f"buffer_load_dword v{vA+2}, v{vA+1}, s[{sO}:{sO+3}], s{sT+1} offen")
        k.srd(sO, P_WV, 25600)
        k(f"buffer_load_dword v{vA+2}, v{vA+1}, s[{sO}:{sO+3}], s{sT+1} offen\ns_mov_b64 exec, -1")
    k.srd(sO, P_WS, SZ_XN, WS_XN)
    nonce()
    k("s_barrier")
    k("s_waitcnt vmcnt(3)" if 'x' in pf else "s_waitcnt vmcnt(0)")
    for i in range(8):
        k(f"v_lshlrev_b32 v{f+2*i}, 16, v{raw+i}\nv_and_b32 v{f+2*i+1}, s{sMask}, v{raw+i}")
    k(f"v_add_f32 v{st}, v{f}, v{f+1}\nv_mul_f32 v{st+1}, v{f}, v{f}")
    for i in range(1, 16):
        if i > 1:
            k(f"v_add_f32 v{st}, v{st}, v{f+i}")
        k(f"v_fmac_f32 v{st+1}, v{f+i}, v{f+i}")
    for m in ("row_shr:1", "row_shr:2", "row_shr:4", "row_shr:8"):
        k("s_nop 0")
        for i in range(2):
            k(f"v_add_f32_dpp v{st+i}, v{st+i}, v{st+i} {m} row_mask:0xf bank_mask:0xf bound_ctrl:0")
    for m in ("row_bcast:15 row_mask:0xa", "row_bcast:31 row_mask:0xc"):
        k("s_nop 0")
        for i in range(2):
            k(f"v_add_f32_dpp v{st+i}, v{st+i}, v{st+i} {m} bank_mask:0xf")
    k(f"""v_mul_f32 v{st}, {fl(1.0/640)}, v{st}
    v_mul_f32 v{st+1}, {fl(1.0/640)}, v{st+1}
    v_fma_f32 v{st+1}, -v{st}, v{st}, v{st+1}
    v_max_f32 v{st+1}, 0, v{st+1}
    v_add_f32 v{st+1}, {fl(1e-5)}, v{st+1}
    v_rsq_f32 v{st+1}, v{st+1}
    v_readlane_b32 s{sT+3}, v{st}, 63
    v_mul_f32 v{st}, v{st}, v{st+1}
    s_nop 0
    v_readlane_b32 s{sT+1}, v{st}, 63
    v_readlane_b32 s{sT+2}, v{st+1}, 63
    s_nop 0
    v_mov_b32 v{st}, s{sT+1}""")
    for i in range(16):
        k(f"v_fma_f32 v{f+i}, v{f+i}, s{sT+2}, -v{st}")
    for i in range(8):
        k(f"v_cvt_pk_bf16_f32 v{raw+i}, v{f+2*i}, v{f+2*i+1}")
    if "latest" in MX:
        k("s_sleep 127\ns_sleep 60")
    k(f"s_mul_i32 s{sT}, s{sTok}, {XN_ST}")
    k(f"buffer_store_dwordx4 {v(raw,4)}, v{vA}, s[{sO}:{sO+3}], s{sT} offen sc1")
    k(f"s_mov_b64 exec, 0xff0000\nv_mov_b32 v{raw+4}, s{sT+3}\nv_mov_b32 v{raw+5}, s{sT+2}\ns_mov_b64 exec, 0xffffff")
    k(f"buffer_store_dwordx4 {v(raw+4,4)}, v{vA}, s[{sO}:{sO+3}], s{sT} offen offset:1024 sc1")
    k("s_mov_b64 exec, -1")
    nw0 = k.lab("nw0"); nl = k.lab("nl")
    k(f"""v_mov_b32 v{f}, {L_F+F_XC}
    v_mov_b32 v{f+1}, 1
    s_mov_b64 exec, 1
    s_waitcnt vmcnt(0)
    ds_add_rtn_u32 v{f+1}, v{f}, v{f+1}
    s_mov_b64 exec, 0x7ff
    v_lshlrev_b32 v{vA+1}, 7, v{vL}
    {"buffer_load_dword v%d, v%d, s[%d:%d], s%d offen sc1" % (vA+2, vA+1, sO, sO+3, sT) if tb else "s_nop 0"}
    s_waitcnt lgkmcnt(0)
    v_readfirstlane_b32 s{sT}, v{f+1}
    s_mov_b64 exec, -1
    s_cmp_lg_u32 s{sT}, 7
    s_cbranch_scc1 {nl}
    s_lshl_b32 s{sT}, s{sBlk}, 7""")
    gset(f"s{sT}", f, f + 2)
    k.label(nl)
    nx = k.lab("nx")
    k(f"s_cmp_lg_u32 s{sWid}, 0\ns_cbranch_scc1 {nx}\nv_lshlrev_b32 v{f}, 7, v{vL}\ns_lshl_b32 s40, s{sTB}, 11")
    gpoll("s40", f, f + 2, 0xffff, 4)
    k(f"v_mov_b32 v{f}, {L_F+F_XR}\nv_mov_b32 v{f+1}, 8\nds_write_b32 v{f}, v{f+1}")
    k.label(nx)
    def att_wait(step):
        t = 104
        if step == 0:
            k(f"""s_lshl_b32 s40, s{sWid}, 11
            s_add_u32 s40, s40, {FL_Q + 14*128}
            v_lshl_add_u32 v{t}, v{vL}, 14, s40
            s_lshr_b32 s41, s{sBlk}, 2
            s_lshl_b32 s41, s41, 11
            s_lshl_b32 s42, s{sWid}, 7
            s_add_u32 s41, s41, s42
            s_add_u32 s41, s41, {FL_Q}
            s_add_u32 s42, s41, 1024
            s_cmp_lt_u32 s{sWid}, 2
            s_cselect_b32 s42, s42, s41
            v_writelane_b32 v{t}, s41, 8
            v_writelane_b32 v{t}, s42, 9""")
            lds_wait(L_F + F_GO, t + 1, t + 2, 2)
            gpoll("0", t, t + 2, 0x303, pslp)
        elif step == 2:
            gpoll("0", t, t + 2, 0xfc, 2)
    def att_tail(step):
        t = 104
        if step == 0:
            k(f"v_and_b32 v{t}, 15, v{vL}\nv_lshlrev_b32 v{t}, 11, v{t}\ns_mov_b32 s40, {FL_Z+15*128}")
            k(gload("s40", t, t + 2))
        else:
            ok = k.lab("wfok")
            gcheck(t + 2)
            k(f"s_cbranch_vccz {ok}")
            gpoll("s40", t, t + 2, None, 4)
            k.label(ok)
            k.srd(28, P_WS, SZ_WF, WS_WF)
            k(f"s_lshr_b32 s40, s2, 5\ns_mul_i32 s40, s40, {47*5120}\nv_lshlrev_b32 v{t}, 4, v{vL}")
            for p in range(60):
                if p % 4 == 0:
                    k(f"s_mov_b32 m0, {1024*p}")
                    k("s_add_u32 s40, s40, 4096" if p else "s_nop 0")
                k(f"buffer_load_dwordx4 v{t}, s[28:31], s40 offen offset:{1024*(p%4)} sc1 lds")
            k(f"v_mov_b32 v{t}, {L_F+F_OC}\nv_mov_b32 v{t+1}, 10\ns_waitcnt vmcnt(0)\nds_write_b32 v{t}, v{t+1}")
    n = emit_attn(k, sTok, sWid, vL, P_WS, 8, 4, 0, L_F, handoff=sBlk, mega=att_wait, budget=sBud, gset=gset, tb=tb, tail=att_tail, yph=yph, bal=bal)
    assert n <= 104, n

    k.label(gem)
    def sp(name):
        if name in SP: k.stamp(1 + SP.index(name))
    sA, sB, sO = 8, 12, 16
    sW, sCnt, sSoA, sBaseA, sSoB, sStepB, sM0A, sM0B, sMask, sNeed, sI = range(20, 31)
    sT = 32
    a = Alloc(2)
    vFw, vFa, vFl, vXw, vXa = a(), a(), a(), a(), a()
    vOne = a()
    acc = [a(16, 4), a(16, 4)]
    fs = [[[a(4, 4) for j in range(3)] for q in range(2)] for b in range(2)]
    z1 = a(16, 4); z2 = a(16, 4)
    vD = a(4, 1); vDb = a(2, 1)
    vWa = a(4, 1); vZa = a(2, 1)
    vN, vH, vBias, vTok = a(), a(), a(), a()
    vOnes = a(2, 2)
    vT = a(16, 4)
    assert a.n <= 168, a.n
    tmp = fs[1][0][0]
    sp('ka')
    k("s_setprio 3")
    k(f"""s_sub_u32 s{sW}, s{sWid}, 8
    v_lshrrev_b32 v{vT}, 3, v{vL}
    v_and_b32 v{vT+1}, 7, v{vL}
    s_lshl_b32 s{sT}, s{sTB}, 2
    s_add_u32 s{sT}, s{sT}, s{sW}
    s_mul_i32 s{sBaseA}, s{sT}, {32*1280}
    s_lshl_b32 s{sM0A}, s{sW}, 12
    s_add_u32 s{sM0A}, s{sM0A}, {L_A}
    s_lshl_b32 s{sM0B}, s{sW}, 11
    s_add_u32 s{sM0B}, s{sM0B}, {L_Z}""")
    def a_addr(stride):
        k(f"v_lshrrev_b32 v{vT}, 3, v{vL}\nv_and_b32 v{vT+1}, 7, v{vL}")
        for p in range(4):
            k(f"""v_add_u32 v{vT+2}, {8*p}, v{vT}
            v_bfe_u32 v{vT+3}, v{vT+2}, 1, 3
            v_xor_b32 v{vT+3}, v{vT+3}, v{vT+1}
            v_mul_u32_u24 v{vT+2}, {stride}, v{vT+2}
            v_lshl_add_u32 v{vD+p}, v{vT+3}, 4, v{vT+2}""")
            if p:
                k(f"v_subrev_u32 v{vD+p}, {1024*p}, v{vD+p}")
    def b_addr(stride):
        k(f"""v_lshrrev_b32 v{vT}, 3, v{vL}
        v_and_b32 v{vT+1}, 7, v{vL}
        v_bfe_u32 v{vT+2}, v{vL}, 4, 1
        v_lshlrev_b32 v{vT+2}, 2, v{vT+2}
        v_xor_b32 v{vT+1}, v{vT+1}, v{vT+2}
        v_mul_u32_u24 v{vT}, {stride}, v{vT}
        v_lshl_add_u32 v{vDb}, v{vT+1}, 4, v{vT}
        v_add_u32 v{vDb+1}, {8*stride-1024}, v{vDb}""")
    def setup_rest():
        k(f"""s_lshl_b32 s{sT+1}, s{sW}, 2
        s_add_u32 s{sT+2}, s{sT+1}, {L_F+F_G}
        v_mov_b32 v{vFw}, s{sT+2}
        s_add_u32 s{sT+2}, s{sT+1}, {L_F+F_AUX}
        v_mov_b32 v{vXw}, s{sT+2}
        v_and_b32 v{vFa}, 3, v{vL}
        v_lshlrev_b32 v{vFa}, 2, v{vFa}
        v_add_u32 v{vXa}, {L_F+F_AUX}, v{vFa}
        v_add_u32 v{vFa}, {L_F+F_G}, v{vFa}
        v_and_b32 v{vN}, 31, v{vL}
        v_lshrrev_b32 v{vH}, 5, v{vL}
        s_mov_b32 s{sMask}, 0xffff0000
        s_mov_b32 s{sCnt}, 0
        v_mov_b32 v{vOne}, 1
        v_mov_b32 v{vOnes}, 0x3f803f80
        v_mov_b32 v{vOnes+1}, 0x3f803f80
        s_lshl_b32 s{sT+1}, s{sTB}, 7
        s_lshl_b32 s{sT+2}, s{sW}, 5
        s_add_u32 s{sT+1}, s{sT+1}, s{sT+2}
        v_add_u32 v{vTok}, s{sT+1}, v{vN}
        v_bfe_u32 v{vT+1}, v{vN}, 1, 3
        v_xor_b32 v{vT+1}, v{vT+1}, v{vH}
        v_lshlrev_b32 v{vT+2}, 7, v{vN}
        v_add_u32 v{vT+2}, s{sM0A}, v{vT+2}""")
        for q in range(4):
            k(f"v_xor_b32 v{vT+3}, {2*q}, v{vT+1}\nv_lshl_add_u32 v{vWa+q}, v{vT+3}, 4, v{vT+2}")
        for i in range(16):
            k(f"v_mov_b32 v{z1+i}, 0")
        nonce()
    def nat_read_addr(rowb):
        k(f"""v_bfe_u32 v{vT}, v{vL}, 2, 2
        v_lshl_add_u32 v{vT}, v{vH}, 3, v{vT}
        v_mul_u32_u24 v{vT}, {rowb}, v{vT}
        v_bfe_u32 v{vT+1}, v{vL}, 4, 1
        v_lshl_add_u32 v{vT}, v{vT+1}, 5, v{vT}
        v_and_b32 v{vT+1}, 3, v{vL}
        v_lshl_add_u32 v{vT}, v{vT+1}, 3, v{vT}""")
        if rowb == 128:
            k(f"""v_bfe_u32 v{vT+1}, v{vL}, 3, 1
            v_lshl_add_u32 v{vT}, v{vT+1}, 6, v{vT}
            v_xor_b32 v{vT+1}, 64, v{vT}
            v_add_u32 v{vZa}, {L_Z}, v{vT}
            v_add_u32 v{vZa+1}, {L_Z}, v{vT+1}""")
        else:
            k(f"v_add_u32 v{vZa}, {L_Z}, v{vT}\nv_add_u32 v{vZa+1}, {L_Z+4096}, v{vT}")

    def spinw(va, val):
        l = k.lab("gspin"); d = k.lab("gspun")
        k.label(l)
        k(f"ds_read_b32 v{vFl}, v{va}\ns_waitcnt lgkmcnt(0)\nv_cmp_gt_u32 vcc, {val}, v{vFl}\ns_cbranch_vccz {d}\ns_sleep 1")
        again(l)
        k.label(d)
    def gsync():
        k(f"s_add_u32 s{sCnt}, s{sCnt}, 1\nv_mov_b32 v{vFl}, s{sCnt}\nds_write_b32 v{vXw}, v{vFl}")
        spinw(vXa, f"s{sCnt}")
    def set_flag(base, col=None):
        l = k.lab("nf")
        k(f"s_cmp_lg_u32 s{sW}, 0\ns_cbranch_scc1 {l}")
        k(f"s_lshl_b32 s{sT}, s{sTB}, 11\ns_lshl_b32 s{sT+1}, s{sFG}, 7\ns_add_u32 s{sT}, s{sT}, s{sT+1}\ns_add_u32 s{sT}, s{sT}, {base}")
        gset(f"s{sT}", vT, vT + 2)
        k.label(l)

    def ring_free():
        k(f"v_mov_b32 v{vT}, {L_F+F_GO}\ns_mov_b64 exec, 1\nds_add_u32 v{vT}, v{vOne}\ns_mov_b64 exec, -1")
    def set_wflag(base):
        k(f"s_lshl_b32 s{sT}, s{sTB}, 2\ns_add_u32 s{sT}, s{sT}, s{sW}\ns_lshl_b32 s{sT}, s{sT}, 11\ns_lshl_b32 s{sT+1}, s{sFG}, 7\ns_add_u32 s{sT}, s{sT}, s{sT+1}\ns_add_u32 s{sT}, s{sT}, {base}")
        k("s_waitcnt vmcnt(0)")
        gset(f"s{sT}", vT, vT + 2)
    def prefetch():
        if not ('q' in pf or 'i' in pf): return
        k(f"""s_min_u32 s{sT}, s{sFG}, 14
        s_sub_u32 s{sT}, s{sT}, 10
        s_lshl_b32 s{sT+1}, s{sW}, 4
        s_add_u32 s{sT+1}, s{sT+1}, s{sTB}
        s_mul_i32 s{sT+1}, s{sT+1}, 5
        s_add_u32 s{sT+1}, s{sT+1}, s{sT}
        s_lshl_b32 s{sT+1}, s{sT+1}, 13
        v_lshlrev_b32 v{vT+8}, 7, v{vL}""")
        if 'q' in pf:
            k.srd(sO, P_WQ, 640*1280)
            k(f"buffer_load_dword v{vT+9}, v{vT+8}, s[{sO}:{sO+3}], s{sT+1} offen")
        if 'i' in pf:
            k.srd(sO, P_WIN, 640*3456)
            k(f"buffer_load_dword v{vT+10}, v{vT+8}, s[{sO}:{sO+3}], s{sT+1} offen")
    def prefetch_sp():
        if 's' not in pf: return
        att_progress(1, vT + 5, 8)
        k(f"""s_sub_u32 s{sT}, s{sFG}, 14
        s_lshl_b32 s{sT}, s{sT}, 2
        s_add_u32 s{sT}, s{sT}, s{sW}
        s_lshl_b32 s{sT}, s{sT}, 16
        s_lshl_b32 s{sT+1}, s{sTB}, 19
        s_add_u32 s{sT}, s{sT}, s{sT+1}
        v_lshlrev_b32 v{vT+8}, 7, v{vL}""")
        k.srd(sO, P_WSP, 2048*4096)
        for i in range(8):
            k(f"buffer_load_dword v{vT+9}, v{vT+8}, s[{sO}:{sO+3}], s{sT} offen {ntw}\ns_add_u32 s{sT}, s{sT}, 8192")
            if i % 2 == 1: k("s_waitcnt vmcnt(0)")
    def att_progress(val, va, slp):
        l = k.lab("ac"); d = k.lab("acd")
        k(f"v_and_b32 v{va}, 7, v{vL}\nv_lshlrev_b32 v{va}, 2, v{va}\nv_add_u32 v{va}, {L_F}, v{va}")
        k.label(l)
        k(f"ds_read_b32 v{vFl}, v{va}\ns_waitcnt lgkmcnt(0)\nv_cmp_gt_u32 vcc, {val}, v{vFl}\ns_cbranch_vccz {d}\ns_sleep {slp}")
        again(l)
        k.label(d)
    vm = []
    def vop(tag, txt):
        vm.append(tag); return txt
    def newer(tags):
        idx = [i for i, t in enumerate(vm) if t in tags]
        return len(vm) - 1 - max(idx) if idx else 63
    cohA = [ntx]; cohB = [""]
    def la(g, p): return vop(("A", g), f"buffer_load_dwordx4 v{vD+p}, s[{sA}:{sA+3}], s{sSoA} offen offset:{1024*p} {cohA[0]} lds")
    def lb(g, p): return vop(("B", g), f"buffer_load_dwordx4 v{vDb+p}, s[{sB}:{sB+3}], s{sSoB} offen offset:{1024*p} {cohB[0]} lds")
    vWe = z2
    def abuf(g):
        if deep and g in (3, 4, 5, 9):
            e = {3: 0, 4: 1, 5: 2, 9: 0}[g]
            return vWe, 16384 * e, 16384 * e - 49152
        return vWa, 16384 * (g % 3), 16384 * (g % 3)
    def issue_a(g):
        k(f"s_add_u32 m0, s{sM0A}, {hx(abuf(g)[2])}\ns_nop 0")
        for p in range(4): k(la(g, p))
        k(f"s_add_u32 s{sSoA}, s{sSoA}, 128")
    def issue_b(g):
        k(f"s_add_u32 m0, s{sM0B}, {8192*(g%6)}\ns_nop 0")
        for p in range(2): k(lb(g, p))
        k(f"s_add_u32 s{sSoB}, s{sSoB}, s{sStepB}")
    def reads(ty, half, b, g):
        ba, bz = g % 3, g % 6
        r = []
        for q in range(2):
            ks = 2 * half + q
            r.append(f"ds_read_b128 {v(fs[b][q][0],4)}, v{abuf(g)[0]+ks} offset:{abuf(g)[1]}")
            for u in range(2):
                d = fs[b][q][1+u]
                if ty == "frag":
                    r.append(f"ds_read_b128 {v(d,4)}, v{vZa} offset:{8192*bz+1024*ks+4096*u}")
                else:
                    rb = 128 if ty == "nat" else 40
                    r.append(f"ds_read_b64_tr_b16 {v(d,2)}, v{vZa+u} offset:{8192*bz+16*rb*ks}")
                    r.append(f"ds_read_b64_tr_b16 {v(d+2,2)}, v{vZa+u} offset:{8192*bz+16*rb*ks+4*rb}")
        return r
    vSx, vSq, vCs = z1, z1 + 4, [z1 + 8, z1 + 12]
    prio = [3]
    pat = [patz]
    inloop = [False]
    cold = []
    def half(b, hf, zero, stats, kv, rd, dm):
        fast = prio[0] == 3
        n = len(rd)
        cut = [0, n, n, n] if fast else [0, (n + 1) // 2, n, n]
        cur = [3]
        def setp(p):
            if not fast and cur[0] != p:
                k(f"s_setprio {p}"); cur[0] = p
        for q in range(2):
            X = fs[b][q][0]
            for i in range(2):
                j = 2 * q + i
                A_, B_ = (X, fs[b][q][1+i]) if (kv and i == 1) else (fs[b][q][1+i], X)
                c = "0" if (zero and q == 0) else v(acc[i], 16)
                if stats:
                    for u in range(2):
                        k(f"v_mfma_f32_4x4x4_16b_bf16 {v(vCs[u],4)}, {v(vOnes,2)}, {v(fs[b][q][1+u]+2*i,2)}, {v(vCs[u],4)}")
                setp(int(pat[0][4*hf + j]))
                abl = MX if inloop[0] else ""
                k(f"v_mfma_f32_32x32x16_bf16 {v(acc[i],16)}, {v(A_,4)}, {v(B_,4)}, {c}" if "nomf" not in abl else "s_nop 15")
                if "nord" in abl: rd = ["s_nop 0"] * len(rd)
                if "nodma" in abl: dm = [[], [], [], []]
                if j < 3 and cut[j+1] > cut[j]:
                    setp(rprio)
                    for x in rd[cut[j]:cut[j+1]]: k(x)
                if dm[j]:
                    setp(prio[0])
                    for f_ in dm[j]:
                        if thr is not None and not fast: k(f"s_waitcnt vmcnt({thr})")
                        k(f_())
        setp(3)
    def body(g, ty, ty_next, first=False, stats=False, kv=False, doA=True, doB=True, loop=False, tailA=None, tailB=None, strict=False, ahead=3):
        k(f"ds_read_b32 v{vFl}, v{vFa}")
        if doB or tailB: k(f"s_add_u32 m0, s{sM0B}, {8192*((g+4)%6)}")
        if tailB: k(tailB)
        k("s_waitcnt lgkmcnt(1)")
        dm = [[], [], [], []]
        if doB or tailB:
            dm = [[], [lambda: lb(g + 4, 0)], [lambda: lb(g + 4, 1)], []]
        half(0, 0, first, stats, kv, reads(ty, 1, 1, g), dm)
        if doB: k(f"s_add_u32 s{sSoB}, s{sSoB}, s{sStepB}")
        if doA or tailA: k(f"s_add_u32 m0, s{sM0A}, {hx(abuf(g+ahead)[2])}")
        if tailA: k(tailA)
        n = 8 if loop else min(63, newer({("A", g + 1), ("B", g + 2)}))
        if inloop[0] and "nowait" in MX: n = 40
        ok = k.lab("gok")
        need = f"s{sNeed}" if loop else str(g + (2 if strict else 1))
        k(f"s_mov_b64 exec, 1\ns_waitcnt vmcnt({n}) lgkmcnt(0)\nds_add_u32 v{vFw}, v{vOne}\ns_mov_b64 exec, -1")
        if inloop[0] and "nochk" in MX:
            pass
        elif not strict:
            sl = k.lab("gslow")
            k(f"v_cmp_gt_u32 vcc, {need}, v{vFl}\ns_cbranch_vccnz {sl}")
            cold.append((sl, need, ok))
        else:
            spinw(vFa, need)
        k.label(ok)
        dm = [[], [], [], []]
        if doA or tailA:
            dm = [[lambda p=p: la(g + ahead, p)] for p in range(4)]
        half(1, 1, False, stats, kv, reads(ty_next, 0, 0, g + 1) if ty_next else [], dm)
        if doA: k(f"s_add_u32 s{sSoA}, s{sSoA}, 128")
        if loop: k(f"s_add_u32 s{sNeed}, s{sNeed}, 1")
    def hi(): pass
    def lo(): pass
    def prologue(g0, ty, strong=False, aux=False):
        if g0 == 0 and deep:
            for q in range(4): k(f"v_subrev_u32 v{vWe+q}, 49152, v{vWa+q}")
        else:
            issue_a(g0 + 1); issue_b(g0 + 1); issue_a(g0 + 2); issue_b(g0 + 2); issue_b(g0 + 3)
        k(f"s_waitcnt vmcnt({newer({('A', g0), ('B', g0 + (2 if strong else 0))})})")
        k(f"v_mov_b32 v{vFl}, {g0+1}\nds_write_b32 v{vFw}, v{vFl}")
        if aux: gsync()
        else: spinw(vFa, g0 + 1)
        for r in reads(ty, 0, 0, g0): k(r)
    def src_win(off_const):
        k.srd(sB, P_WIN, 640*3456)
        k(f"""s_mul_i32 s{sSoB}, s{sW}, {16*3456}
        s_lshl_b32 s{sT}, s{sFG}, 7
        s_add_u32 s{sSoB}, s{sSoB}, s{sT}
        s_add_u32 s{sSoB}, s{sSoB}, {off_const}
        s_mov_b32 s{sStepB}, {64*3456}""")
    def load_mr():
        lds_wait(L_F + F_XR, vT, vT + 1)
        k.srd(sO, P_WS, SZ_XN, WS_XN)
        k(f"v_mul_u32_u24 v{vT+2}, {XN_ST}, v{vTok}")
        k(vop("mr", f"buffer_load_dwordx2 {v(vT+8,2)}, v{vT+2}, s[{sO}:{sO+3}], 0 offen offset:1280 sc1"))
    def src_xn():
        a_addr(XN_ST)
        k.srd(sA, P_WS, SZ_XN, WS_XN)
        k(f"s_lshl_b32 s{sBaseA}, s{sTB}, 2\ns_add_u32 s{sBaseA}, s{sBaseA}, s{sW}\ns_mul_i32 s{sBaseA}, s{sBaseA}, {32*XN_ST}\ns_mov_b32 s{sSoA}, s{sBaseA}")
    def ln_fold(kv):
        mu, r = vT + 8, vT + 9
        k(f"""s_waitcnt vmcnt({newer({'mr'})})
        v_and_b32 v{vT+2}, s{sMask}, v{mu}
        v_sub_f32 v{vT+3}, v{mu}, v{vT+2}
        v_cvt_pk_bf16_f32 v{vT}, -v{vT+2}, -v{vT+3}
        v_cvt_pk_bf16_f32 v{vT+1}, -v{vT+2}, 0""")
        for u in range(2):
            c = vCs[u]
            k(f"""v_and_b32 v{c+3}, s{sMask}, v{c+2}
            v_sub_f32 v{c+2}, v{c+2}, v{c+3}
            v_cvt_pk_bf16_f32 v{c}, v{c+3}, v{c+3}
            v_cvt_pk_bf16_f32 v{c+1}, v{c+2}, 0""")
        k("s_nop 1")
        for u in range(2):
            A_, B_ = (vT, vCs[u]) if (kv and u == 1) else (vCs[u], vT)
            k(f"v_mfma_f32_32x32x8_bf16 {v(acc[u],16)}, {v(A_,2)}, {v(B_,2)}, {v(acc[u],16)}")
    def swap4(b0):
        k(f"v_permlane32_swap_b32 v{b0}, v{b0+2}\nv_permlane32_swap_b32 v{b0+1}, v{b0+3}")
    def gelu(u, dst, stats):
        t = acc[u]
        for g0 in range(0, 16, 8):
            R = range(g0, g0 + 8)
            for i in R: k(f"v_mul_f32 v{tmp+i-g0}, v{t+i}, v{t+i}")
            for i in R: k(f"v_fmaak_f32 v{tmp+i-g0}, v{vT+12}, v{tmp+i-g0}, {fl(GC0)}")
            for i in R: k(f"v_mul_f32 v{tmp+i-g0}, v{tmp+i-g0}, v{t+i}")
            for i in R: k(f"v_exp_f32 v{tmp+i-g0}, v{tmp+i-g0}")
            for i in R: k(f"v_add_f32 v{tmp+i-g0}, 1.0, v{tmp+i-g0}")
            for i in R: k(f"v_rcp_f32 v{tmp+i-g0}, v{tmp+i-g0}")
            for i in R: k(f"v_mul_f32 v{tmp+i-g0}, v{tmp+i-g0}, v{t+i}")
            for i in range(0, 8, 2): k(f"v_cvt_pk_bf16_f32 v{dst+(g0+i)//2}, v{tmp+i}, v{tmp+i+1}")
            if stats:
                for i in range(8):
                    k(f"v_add_f32 v{vT+10}, v{vT+10}, v{tmp+i}\nv_fmac_f32 v{vT+11}, v{tmp+i}, v{tmp+i}")

    nop1 = k.lab("nop1"); kvp = k.lab("kvp"); rep = k.lab("rep"); b10 = k.lab("b10"); outp = k.lab("outp"); outq = k.lab("outq"); p2s = k.lab("p2s")
    k(f"s_cmp_eq_u32 s{sFG}, 15\ns_cbranch_scc1 {rep}")
    a_addr(1280)
    k(f"s_cmp_eq_u32 s{sFG}, 14\ns_cbranch_scc1 {kvp}\ns_cmp_ge_u32 s{sFG}, 10\ns_cbranch_scc1 {nop1}")

    k.srd(sA, P_X, SZ_Q)
    k(f"s_mov_b32 s{sSoA}, s{sBaseA}")
    issue_a(0)
    b_addr(1280)
    k.srd(sB, P_WQ, 640*1280)
    k(f"s_mul_i32 s{sSoB}, s{sW}, {16*1280}\ns_lshl_b32 s{sT}, s{sFG}, 7\ns_add_u32 s{sSoB}, s{sSoB}, s{sT}\ns_mov_b32 s{sStepB}, {64*1280}")
    issue_b(0)
    sp('d0')
    k("s_barrier")
    if deep:
        for g in range(1, 6): issue_a(g); issue_b(g)
    setup_rest(); nat_read_addr(128)
    sp('bar')
    prologue(0, "nat")
    sp('p1s')
    for g in range(10):
        if g == 6 and seam:
            b_addr(3456); src_win(13 * 128)
        if g == 7 and seam:
            sp('g7')
            load_mr()
            sp('g7d')
            src_xn()
            cohA[0] = "sc1"
        sp(f'a{g}')
        body(g, "nat", "nat" if (seam or g < 9) else None, first=(g == 0), stats=True, strict=(g == 0), doA=(not deep or g < 4 or g >= 7), doB=(not deep or g >= 2), ahead=(6 if (deep and g < 4) else 3))
    sp('p1l')
    ring_free()
    ln_fold(False)
    k.srd(sO, P_WS, SZ_Q, WS_Q)
    k(f"""v_mul_f32 v{vT+9}, {fl(QSCALE)}, v{vT+9}
    v_lshlrev_b32 v{vT+2}, 4, v{vL}
    s_lshl_b32 s{sT}, s{sTB}, 2
    s_add_u32 s{sT}, s{sT}, s{sW}
    s_mul_i32 s{sT}, s{sT}, 10
    s_add_u32 s{sT}, s{sT}, s{sFG}
    s_lshl_b32 s{sT}, s{sT}, 12
    s_nop 1""")
    for u in range(2):
        for i in range(16): k(f"v_mul_f32 v{acc[u]+i}, v{vT+9}, v{acc[u]+i}")
        for i in range(8): k(f"v_cvt_pk_bf16_f32 v{tmp+8*u+i}, v{acc[u]+2*i}, v{acc[u]+2*i+1}")
        k("s_nop 0")
        for jp in range(2): swap4(tmp + 8*u + 4*jp)
        for jp in range(2):
            k(f"buffer_store_dwordx4 {v(tmp+8*u+4*jp,4)}, v{vT+2}, s[{sO}:{sO+3}], s{sT} offen offset:{1024*(2*u+jp)} sc1")
    assert seam
    if seam:
        k(f"s_mov_b32 s{sT+3}, s{sT}")
        set_wflag(FL_Q)
        if tb:
            k(f"v_lshlrev_b32 v{vT+4}, 7, v{vN}\nbuffer_load_dword v{vT+5}, v{vT+4}, s[{sO}:{sO+3}], s{sT+3} offen sc1")
        k(f"s_branch {b10}")
    else:
        b_addr(3456); src_win(13 * 128)
        k("s_waitcnt vmcnt(0)")
        gsync()
        set_flag(FL_Q)
        sp('qf')
        issue_b(10)
        lds_wait(L_F + F_XR, vT, vT + 1)
        k(f"s_branch {p2s}")

    k.label(nop1)
    save = list(vm)
    prefetch()
    b_addr(3456); src_win(13 * 128)
    issue_b(10)
    setup_rest(); nat_read_addr(128)
    k("s_barrier")
    ring_free()
    lds_wait(L_F + F_XR, vT, vT + 1, 4)
    k.label(p2s)
    cohA[0] = "sc1"
    src_xn()
    issue_a(10)
    if seam:
        prologue(10, "nat", strong=True)
        vm[:] = save
    else:
        prologue(10, "nat", aux=True)

    k.label(b10)
    sp('p1')
    prio[0] = lprio
    vFg, vSt = vT + 8, tmp
    for g in range(10, 30):
        if g == 16:
            src_win(0)
        if g == 17:
            k(f"s_mov_b32 s{sSoA}, s{sBaseA}")
        if g == 20:
            sp('p2')
            hi()
            s0 = k.lab("s0")
            k(f"v_mov_b32 v{vT+12}, {fl(GC1)}\nv_mov_b32 v{vT+10}, 0\nv_mov_b32 v{vT+11}, 0\ns_nop 7")
            k(f"s_cmp_eq_u32 s{sFG}, 0\ns_cbranch_scc1 {s0}")
            gelu(0, z2, True)
            k.label(s0)
            gelu(1, z2 + 8, True)
            k.srd(sO, P_WS, SZ_ST, WS_ST)
            k(f"""v_mov_b32 v{vT+2}, v{vT+10}
            v_mov_b32 v{vT+3}, v{vT+11}
            s_mul_i32 s{sT}, s{sTB}, 14
            s_add_u32 s{sT}, s{sT}, s{sFG}
            v_permlane32_swap_b32 v{vT+10}, v{vT+2}
            v_permlane32_swap_b32 v{vT+11}, v{vT+3}
            s_lshl_b32 s{sT}, s{sT}, 10
            s_lshl_b32 s{sT+1}, s{sW}, 8
            v_add_f32 v{vT+10}, v{vT+10}, v{vT+2}
            v_add_f32 v{vT+11}, v{vT+11}, v{vT+3}
            v_lshlrev_b32 v{vT+2}, 3, v{vN}
            s_add_u32 s{sT}, s{sT}, s{sT+1}
            s_mov_b32 exec_hi, 0""")
            k(vop("st", f"buffer_store_dwordx2 {v(vT+10,2)}, v{vT+2}, s[{sO}:{sO+3}], s{sT} offen sc1"))
            k("s_mov_b32 exec_hi, -1")
            lo()
        if g == 21:
            sp('e21')
            hi()
            k(f"s_waitcnt vmcnt({newer({'st'})})")
            gsync(); set_flag(FL_S)
            lo()
        if g == 23:
            hi()
            k(f"v_min_u32 v{vT+14}, 13, v{vL}\nv_lshlrev_b32 v{vT+14}, 7, v{vT+14}\ns_lshl_b32 s{sT}, s{sTB}, 11\ns_add_u32 s{sT}, s{sT}, {FL_S}")
            k(vop("pf", gload(f"s{sT}", vT + 14, vFg)))
            lo()
        if g == 24:
            sp('e24')
            hi()
            ok = k.lab("sok")
            k(f"s_waitcnt vmcnt({newer({'pf'})})")
            gcheck(vFg)
            k(f"s_cbranch_vccz {ok}")
            k(f"s_lshl_b32 s{sT}, s{sTB}, 11\ns_add_u32 s{sT}, s{sT}, {FL_S}")
            gpoll(f"s{sT}", vT + 14, vFg, 0x3fff, 4)
            k.label(ok)
            k(f"""v_mul_u32_u24 v{vT+14}, 7168, v{vH}
            v_lshl_add_u32 v{vT+14}, v{vN}, 3, v{vT+14}
            s_mul_i32 s{sT}, s{sTB}, {14*1024}
            s_lshl_b32 s{sT+1}, s{sW}, 8
            s_add_u32 s{sT}, s{sT}, s{sT+1}
            s_add_u32 s{sT+1}, s{sT}, 4096""")
            for i in range(7):
                k(vop("sl", f"buffer_load_dwordx2 {v(z1+2*i,2)}, v{vT+14}, s[{sO}:{sO+3}], s{sT + i//4} offen offset:{1024*(i%4)} sc1"))
            lo()
        if g == 25:
            sp('e25')
            hi()
            sel, D = tmp, tmp + 8
            mur, r = vT + 10, vT + 11
            k(f"v_lshlrev_b32 v{vT+2}, 2, v{vH}\nv_sub_u32 v{vT+2}, v{vN}, v{vT+2}\nv_mov_b32 v{vT+3}, 0x3f80\nv_mov_b32 v{vT+4}, 0x3f800000")
            for e in range(2):
                for q in range(4):
                    f0 = 16*e + 8*(q >> 1) + 2*(q & 1)
                    k(f"""v_cmp_eq_u32 vcc, {f0}, v{vT+2}
                    v_cmp_eq_u32 s[{sT}:{sT+1}], {f0+1}, v{vT+2}
                    s_nop 0
                    v_cndmask_b32 v{sel+4*e+q}, 0, v{vT+3}, vcc
                    v_cndmask_b32 v{sel+4*e+q}, v{sel+4*e+q}, v{vT+4}, s[{sT}:{sT+1}]""")
            k(f"s_waitcnt vmcnt({newer({'sl'})})")
            for i in range(1, 7):
                k(f"v_add_f32 v{z1}, v{z1}, v{z1+2*i}\nv_add_f32 v{z1+1}, v{z1+1}, v{z1+2*i+1}")
            k.srd(sO, P_WS, SZ_Z2F, WS_Z2F)
            k(f"""v_mov_b32 v{z1+2}, v{z1}
            v_mov_b32 v{z1+3}, v{z1+1}
            v_lshlrev_b32 v{vT+2}, 4, v{vL}
            s_lshl_b32 s{sT}, s{sFG}, 18
            v_permlane32_swap_b32 v{z1}, v{z1+2}
            v_permlane32_swap_b32 v{z1+1}, v{z1+3}
            v_add_f32 v{mur}, v{z1}, v{z1+2}
            v_add_f32 v{r}, v{z1+1}, v{z1+3}
            v_mul_f32 v{mur}, {fl(1.0/864)}, v{mur}
            v_mul_f32 v{r}, {fl(1.0/864)}, v{r}
            v_fma_f32 v{r}, -v{mur}, v{mur}, v{r}
            v_max_f32 v{r}, 0, v{r}
            v_add_f32 v{r}, {fl(1e-5)}, v{r}
            v_rsq_f32 v{r}, v{r}
            s_lshl_b32 s{sT+1}, s{sTB}, 13
            s_add_u32 s{sT}, s{sT}, s{sT+1}
            v_mul_f32 v{mur}, v{mur}, v{r}
            s_lshl_b32 s{sT+1}, s{sW}, 11
            s_add_u32 s{sT}, s{sT}, s{sT+1}
            s_sub_u32 s{sT+1}, s{sT}, 0x20000""")
            s1 = k.lab("s1")
            for u in (1, 0):
                if u == 0:
                    k(f"s_cmp_eq_u32 s{sFG}, 0\ns_cbranch_scc1 {s1}")
                zz = z2 + 8*u
                for i in range(8):
                    k(f"""v_lshlrev_b32 v{vT+4}, 16, v{zz+i}
                    v_and_b32 v{vT+5}, s{sMask}, v{zz+i}
                    v_fma_f32 v{vT+4}, v{vT+4}, v{r}, -v{mur}
                    v_fma_f32 v{vT+5}, v{vT+5}, v{r}, -v{mur}
                    v_cvt_pk_bf16_f32 v{zz+i}, v{vT+4}, v{vT+5}""")
                k("s_nop 1")
                k(f"v_mfma_f32_32x32x16_bf16 {v(D,16)}, {v(zz,4)}, {v(sel,4)}, 0")
                k(f"v_mfma_f32_32x32x16_bf16 {v(D,16)}, {v(zz+4,4)}, {v(sel+4,4)}, {v(D,16)}")
                k("s_nop 7\ns_nop 3")
                for i in range(8): k(f"v_cvt_pk_bf16_f32 v{zz+i}, v{D+2*i}, v{D+2*i+1}")
                k("s_nop 0")
                for jp in range(2): swap4(zz + 4*jp)
                for jp in range(2):
                    k(vop("zs", f"buffer_store_dwordx4 {v(zz+4*jp,4)}, v{vT+2}, s[{sO}:{sO+3}], s{sT + 1 - u} offen offset:{1024*jp} sc1"))
            k.label(s1)
            del vm[-2:]
            lo()
        if g == 26:
            sp('e26')
            hi()
            k(f"s_waitcnt vmcnt({newer({'zs'})})")
            gsync(); set_flag(FL_Z)
            lo()
        if g == 27:
            sp('e27')
            hi()
            a_addr(4096)
            k.srd(sA, P_WSP, 2048*4096)
            k(f"s_lshl_b32 s{sSoA}, s{sTB}, 2\ns_add_u32 s{sSoA}, s{sSoA}, s{sW}\ns_lshl_b32 s{sSoA}, s{sSoA}, 17")
            cohA[0] = ntw
            k.srd(sB, P_BSP, 4096)
            k(f"v_lshlrev_b32 v{vT+2}, 1, v{vTok}\nv_lshlrev_b32 v{vDb}, 4, v{vL}\nv_lshlrev_b32 v{vDb+1}, 4, v{vL}")
            k(vop("bias", f"buffer_load_ushort v{vBias}, v{vT+2}, s[{sB}:{sB+3}], 0 offen"))
            lo()
        if g == 29:
            k(f"s_lshl_b32 s{sT}, s{sW}, 13\ns_add_u32 s{sT}, s{sT}, {FL_Z}\nv_and_b32 v{vT+14}, 15, v{vL}\nv_min_u32 v{vT+14}, 13, v{vT+14}\nv_and_or_b32 v{vT+14}, v{vL}, 48, v{vT+14}\nv_lshlrev_b32 v{vT+14}, 7, v{vT+14}")
            k(vop("pz", gload(f"s{sT}", vT + 14, vFg)))
        body(g, "nat", "nat" if g != 29 else None, first=(g in (10, 20)), doB=(g < 26), strict=(g == 10 and not seam))
    sp('p3')
    hi()
    pd = k.lab("zpd")
    k(f"s_waitcnt vmcnt({newer({'pz'})})")
    gcheck(vFg)
    k(f"s_cbranch_vccz {pd}")
    k(f"s_lshl_b32 s{sT}, s{sW}, 13\ns_add_u32 s{sT}, s{sT}, {FL_Z}")
    gpoll(f"s{sT}", vT + 14, vFg, None, 4)
    k.label(pd)
    gsync()
    sp('zr')
    k.srd(sB, P_WS, SZ_Z2F, WS_Z2F)
    k(f"""s_lshr_b32 s{sT+1}, s{sW}, 1
    s_lshl_b32 s{sT}, s{sFG}, 1
    s_add_u32 s{sT+1}, s{sT}, s{sT+1}
    s_lshl_b32 s{sSoB}, s{sT+1}, 17
    s_and_b32 s{sT}, s{sW}, 1
    s_lshl_b32 s{sT}, s{sT}, 11
    s_add_u32 s{sSoB}, s{sSoB}, s{sT}
    s_mov_b32 s{sStepB}, 4096
    v_add_u32 v{vZa}, {L_Z}, v{vDb}""")
    cohB[0] = "sc1"
    k(f"s_setprio {lprio}")
    for g in range(30, 34): issue_b(g)
    k("s_setprio 3")
    pat[0] = pats
    k(f"v_mov_b32 v{vT+12}, {fl(GC1)}")
    gelu(0, z1, False)
    gelu(1, z1 + 8, False)
    for t in range(2):
        for i in range(16): k(f"v_mov_b32 v{acc[t]+i}, 0")
    k(f"s_waitcnt vmcnt(2)\ns_mov_b32 s{sNeed}, 31\ns_mov_b32 s{sI}, 0")
    gsync()
    for r in reads("frag", 0, 0, 30): k(r)
    lo()
    loop = k.lab("gloop")
    sp('l0')
    if "lin" in MX:
        for p in range(4): k(f"v_mov_b32 v{vD+p}, v{vDb}")
    if "glin" in MX:
        for p in range(4): k(f"v_add_u32 v{vWa+p}, s{sM0A}, v{vDb}")
    if "oob" in MX: k(f"s_mov_b32 s{sA+2}, 0\ns_mov_b32 s{sB+2}, 0")
    if "ooa" in MX: k(f"s_mov_b32 s{sA+2}, 0")
    if "ooz" in MX: k(f"s_mov_b32 s{sB+2}, 0")
    k.align(3)
    k.label(loop)
    inloop[0] = True
    if "nosc" in MX: cohB[0] = ""
    for g in range(30, 36):
        body(g, "frag", "frag", loop=True)
    inloop[0] = False
    k(f"s_add_u32 s{sI}, s{sI}, 1\ns_cmp_lt_u32 s{sI}, 4\ns_cbranch_scc1 {loop}")
    sp('l1')
    sG, sWb = sI, sBaseA
    def out_ids():
        k(f"s_lshr_b32 s{sG}, s2, 5\ns_mul_i32 s{sWb}, s{sG}, {47*5120}\ns_add_u32 s{sWb}, s{sWb}, {20*5120 - 1024 - L_A}")
    for g in range(54, 62):
        tA = tB = None
        if g == 55:
            k(f"v_and_b32 v{vT+14}, 15, v{vL}\nv_lshlrev_b32 v{vT+14}, 11, v{vT+14}\ns_mov_b32 s{sT}, {FL_Z+15*128}")
            k(gload(f"s{sT}", vT + 14, vFg))
        if g == 58:
            wk = k.lab("wok")
            gcheck(vFg)
            k(f"s_cbranch_vccz {wk}\ns_mov_b32 s{sT}, {FL_Z+15*128}")
            gpoll(f"s{sT}", vT + 14, vFg, None, 4)
            k.label(wk)
            sp('g58')
            out_ids()
            k.srd(sB, P_WS, SZ_WF, WS_WF)
        if g == 59:
            k.srd(sA, P_WS, SZ_WF, WS_WF)
            cohA[0] = "sc1"
            hi()
            for p in range(4): k(f"v_mov_b32 v{vD+p}, v{vDb}")
            lo()
        if g >= 58: tB = f"s_add_u32 s{sSoB}, m0, s{sWb}"
        if g >= 59: tA = f"s_add_u32 s{sSoA}, m0, s{sWb}"
        body(g, "frag", "frag" if g < 61 else None, loop=True, doA=(g < 59), doB=(g < 58), tailA=tA, tailB=tB)
    sp('p4')
    hi()
    fin = k.lab("gfin")
    k.srd(sO, P_WS, SZ_OUF, WS_OUF)
    k(f"""v_lshrrev_b32 v{vT+1}, 4, v{vTok}
    v_mul_u32_u24 v{vT+1}, {47*1024}, v{vT+1}
    v_and_b32 v{vT+2}, 15, v{vTok}
    v_lshl_add_u32 v{vT+1}, v{vT+2}, 4, v{vT+1}
    v_lshl_add_u32 v{vT+1}, v{vH}, 8, v{vT+1}
    s_lshl_b32 s{sT}, s{sFG}, 11
    s_add_u32 s{sT}, s{sT}, {20*1024}
    v_lshlrev_b32 v{vBias}, 16, v{vBias}""")
    for i in range(2):
        if i == 1:
            k(f"s_cmp_eq_u32 s{sFG}, 13\ns_cbranch_scc1 {fin}")
        for r in range(8):
            zr = z1 + 8*i + r
            a0 = acc[i] + 2*r
            k(f"""v_lshlrev_b32 v{tmp}, 16, v{zr}
            v_and_b32 v{tmp+1}, s{sMask}, v{zr}
            v_add_f32 v{a0}, v{a0}, v{vBias}
            v_add_f32 v{a0+1}, v{a0+1}, v{vBias}
            v_mul_f32 v{a0}, v{a0}, v{tmp}
            v_mul_f32 v{a0+1}, v{a0+1}, v{tmp+1}
            v_cvt_pk_bf16_f32 v{zr}, v{a0}, v{a0+1}""")
        k("s_nop 1")
        for jp in range(2): swap4(z1 + 8*i + 4*jp)
        for jp in range(2):
            k(f"buffer_store_dwordx4 {v(z1+8*i+4*jp,4)}, v{vT+1}, s[{sO}:{sO+3}], s{sT} offen offset:{1024*i+512*jp} sc1")
    k.label(fin)
    k(f"s_mov_b32 s{sT+3}, s{sT}")
    set_wflag(FL_U)
    if tb:
        k(f"""v_lshrrev_b32 v{vT+4}, 4, v{vTok}
        v_mul_u32_u24 v{vT+4}, {47*1024}, v{vT+4}
        v_and_b32 v{vT+5}, 15, v{vL}
        v_lshl_add_u32 v{vT+4}, v{vT+5}, 7, v{vT+4}
        buffer_load_dword v{z2}, v{vT+4}, s[{sO}:{sO+3}], s{sT+3} offen sc1""")
    spinw(vFa, 63)
    k(f"s_lshl_b32 s{sT}, s{sW}, 12\ns_add_u32 m0, s{sT}, {L_Z}\ns_add_u32 s{sSoB}, m0, s{sWb}")
    for p in range(4):
        k(f"buffer_load_dwordx4 v{vDb}, s[{sB}:{sB+3}], s{sSoB} offen offset:{1024*p} sc1 lds")
    k(f"s_branch {outp}")

    k.label(kvp)
    prio[0] = 3; cohA[0] = ntx; cohB[0] = ""
    vm[:] = []
    kw = k.lab("kw"); kwd = k.lab("kwd")
    k.srd(sA, P_X, SZ_Q)
    k(f"s_mov_b32 s{sSoA}, s{sBaseA}")
    issue_a(0)
    k(f"s_cmp_ge_u32 s{sW}, 2\ns_cbranch_scc1 {kw}")
    k.srd(sB, P_WK, 25600)
    k(f"s_branch {kwd}")
    k.label(kw)
    k.srd(sB, P_WV, 25600)
    k.label(kwd)
    k(f"v_lshlrev_b32 v{vDb}, 4, v{vL}\nv_lshlrev_b32 v{vDb+1}, 4, v{vL}\ns_and_b32 s{sSoB}, s{sW}, 1\ns_lshl_b32 s{sSoB}, s{sSoB}, 11\ns_mov_b32 s{sStepB}, 2560")
    issue_b(0)
    k("s_barrier")
    if deep:
        for g in range(1, 6): issue_a(g); issue_b(g)
    setup_rest(); nat_read_addr(40)
    prologue(0, "kv")
    sp('p1s')
    for g in range(10):
        if g == 8: load_mr()
        body(g, "kv", "kv" if g < 9 else None, first=(g == 0), stats=True, kv=True, strict=(g == 0), doA=(g < (4 if deep else 7)), doB=((2 if deep else 0) <= g < 6), ahead=(6 if deep else 3))
    sp('p1l')
    ring_free()
    ln_fold(True)
    k.srd(sO, P_WS, SZ_KVG, WS_KV)
    k(f"""v_lshl_add_u32 v{vT+2}, v{vN}, 2, s{sM0A}
    ds_write_b32 v{vT+2}, v{vT+9}
    v_lshl_add_u32 v{vT+3}, v{vH}, 4, s{sM0A}
    s_lshl_b32 s{sT}, s{sTB}, 2
    s_add_u32 s{sT}, s{sT}, s{sW}
    s_mul_i32 s{sT}, s{sT}, {KV_G}
    s_waitcnt lgkmcnt(0)""")
    for j in range(4):
        k(f"ds_read_b128 {v(z2+4*j,4)}, v{vT+3} offset:{32*j}")
    k(f"""v_lshlrev_b32 v{vT+2}, 4, v{vL}
    v_lshlrev_b32 v{vT+3}, 2, v{vN}
    v_mul_u32_u24 v{vT+4}, 336, v{vH}
    v_lshl_add_u32 v{vT+4}, v{vN}, 4, v{vT+4}
    v_cmp_eq_u32 vcc, 20, v{vN}""")
    for i in range(12): k(f"v_mul_f32 v{acc[0]+i}, v{vT+9}, v{acc[0]+i}")
    for i in range(6): k(f"v_cvt_pk_bf16_f32 v{tmp+i}, v{acc[0]+2*i}, v{acc[0]+2*i+1}")
    k("s_waitcnt lgkmcnt(0)")
    for i in range(16): k(f"v_mul_f32 v{acc[1]+i}, v{z2+i}, v{acc[1]+i}")
    for i in range(8): k(f"v_cvt_pk_bf16_f32 v{tmp+8+i}, v{acc[1]+2*i}, v{acc[1]+2*i+1}")
    for i in range(8): k(f"v_cndmask_b32 v{tmp+8+i}, v{tmp+8+i}, v{vOnes}, vcc")
    swap4(tmp)
    k(f"""v_add_u32 v{vT+5}, s{sM0A}, v{vT+2}
    v_add_u32 v{vT+3}, s{sM0A}, v{vT+3}
    v_add_u32 v{vT+4}, s{sM0A}, v{vT+4}
    ds_write_b128 v{vT+5}, {v(tmp,4)} offset:{16384+KV_KA}
    s_mov_b64 exec, 0xffffffff
    ds_write_b32 v{vT+3}, v{tmp+4} offset:{16384+KV_KB}
    ds_write_b32 v{vT+3}, v{tmp+5} offset:{16384+KV_KB+128}
    s_mov_b32 exec_lo, 0x1fffff
    s_mov_b32 exec_hi, 0x1fffff
    ds_write_b128 v{vT+4}, {v(tmp+8,4)} offset:{16384+KV_V}
    ds_write_b128 v{vT+4}, {v(tmp+12,4)} offset:{16384+KV_V+672}
    s_mov_b64 exec, -1
    buffer_store_dwordx4 {v(tmp,4)}, v{vT+2}, s[{sO}:{sO+3}], s{sT} offen sc1
    s_waitcnt lgkmcnt(0)
    ds_read_b128 {v(tmp+16,4)}, v{vT+5} offset:{16384+1024}
    ds_read_b128 {v(tmp+20,4)}, v{vT+5} offset:{16384+2048}
    s_waitcnt lgkmcnt(0)
    buffer_store_dwordx4 {v(tmp+16,4)}, v{vT+2}, s[{sO}:{sO+3}], s{sT} offen offset:1024 sc1
    s_mov_b32 exec_hi, 0xff
    buffer_store_dwordx4 {v(tmp+20,4)}, v{vT+2}, s[{sO}:{sO+3}], s{sT} offen offset:2048 sc1
    s_mov_b64 exec, -1""")
    set_wflag(FL_Q)
    gsync()
    k(f"s_branch {outq}")

    k.label(rep)
    prefetch()
    setup_rest()
    k("s_barrier")
    ring_free()
    rl = k.lab("rl")
    if repw == 'x': lds_wait(L_F + F_XR, vT + 5, vT + 6, 8)
    if repw == 'g': att_progress(1, vT + 5, 8)
    k(f"s_mov_b32 s{sNeed}, s{sTB}")
    k.label(rl)
    emit_repack(k, sNeed, sW, vL, P_WO, P_WOUT, P_WS, 8, acc[0], L_A, gsync, coh="sc1")
    k(f"s_add_u32 s{sNeed}, s{sNeed}, 16\ns_waitcnt vmcnt(0)")
    gsync()
    k(f"s_cmp_lt_u32 s{sNeed}, 47\ns_cbranch_scc1 {rl}")
    set_flag(FL_Z)
    k.label(outq)
    sp('p1')
    k(f"s_setprio {lprio}")
    out_ids()
    k.srd(sB, P_WS, SZ_WF, WS_WF)
    prefetch_sp()
    att_progress(wfat, vT, 32)
    k(f"v_lshlrev_b32 v{vDb}, 4, v{vL}\nv_lshlrev_b32 v{vT}, 11, v{vL}\ns_mov_b32 s{sT}, {FL_Z+15*128}")
    gpoll(f"s{sT}", vT, vT + 2, 0xffff, 16)
    if 'w' in pf:
        wl = k.lab("wl")
        k(f"""s_bfe_u32 s{sT}, s2, 0x20003
        s_lshl_b32 s{sT}, s{sT}, 2
        s_add_u32 s{sT}, s{sT}, s{sW}
        s_lshl_b32 s{sT}, s{sT}, 13
        v_lshlrev_b32 v{vT+8}, 7, v{vL}""")
        k.label(wl)
        k(f"""buffer_load_dword v{vT+9}, v{vT+8}, s[{sB}:{sB+3}], s{sT} offen sc1
        s_add_u32 s{sT}, s{sT}, {16*8192}
        s_cmp_lt_u32 s{sT}, {SZ_WF}
        s_waitcnt vmcnt(0)
        s_cbranch_scc1 {wl}""")
    k(f"s_mul_i32 s{sT}, s{sW}, {24*1024}\ns_add_u32 s{sT}, s{sT}, {L_A}")
    for p in range(24):
        if p % 4 == 0:
            k(f"s_add_u32 m0, s{sT}, {1024*p}\ns_add_u32 s{sSoB}, m0, s{sWb}")
        k(f"buffer_load_dwordx4 v{vDb}, s[{sB}:{sB+3}], s{sSoB} offen offset:{1024*(p%4)} sc1 lds")

    k.label(outp)
    sp('outp')
    sWF, sOU, sXo = sB, sA, sO
    sTT, sAo, sXof, sT64 = sSoA, sStepB, sM0A, sM0B
    a = Alloc(8)
    oacc = a(20, 4)
    af = a(80, 4)
    wb = [a(20, 4), a(20, 4)]
    xr = a(10, 2)
    vQ = a(4, 2)
    vA16, vW0, vW1, vXo, vP = a(), a(), a(), a(), a()
    assert a.n <= 168, a.n
    k.srd(sOU, P_WS, SZ_OUF, WS_OUF)
    k.srd(sXo, P_X, SZ_Q)
    k(f"""s_and_b32 s{sT64}, s2, 7
    s_lshl_b32 s{sT64}, s{sT64}, 2
    s_bfe_u32 s{sT}, s2, 0x20003
    s_add_u32 s{sT64}, s{sT64}, s{sT}
    s_lshl_b32 s{sTT}, s{sT64}, 2
    s_add_u32 s{sTT}, s{sTT}, s{sW}
    s_mul_i32 s{sAo}, s{sTT}, {47*1024}
    s_mul_i32 s{sXof}, s{sTT}, {16*1280}
    s_mul_i32 s{sT}, s{sG}, 160
    s_add_u32 s{sXof}, s{sXof}, s{sT}
    v_lshlrev_b32 v{vA16}, 4, v{vL}
    v_add_u32 v{vW0}, {L_W}, v{vA16}
    v_add_u32 v{vW1}, {L_W+51200}, v{vA16}
    v_lshlrev_b32 v{vP}, 7, v{vL}
    v_and_b32 v{vXo}, 15, v{vL}
    v_mul_u32_u24 v{vXo}, 1280, v{vXo}
    v_lshrrev_b32 v{vQ}, 4, v{vL}
    v_lshl_add_u32 v{vXo}, v{vQ}, 3, v{vXo}""")
    k(f"s_setprio {lprio}")
    sWs, sWd = sT + 1, sT + 2
    sU = sNeed
    vm[:] = []
    ld = []
    def lop(tag, txt): ld.append(tag); k(txt)
    def lnewer(tag): return min(15, len(ld) - 1 - max(i for i, t in enumerate(ld) if t == tag))
    def wpieces(step0, lds0, npieces, tag):
        per = npieces // 4
        def setup():
            k(f"""s_mul_i32 s{sWs}, s{sG}, {47*5120}
            s_mul_i32 s{sWd}, s{sW}, {per*1024}
            s_add_u32 s{sWs}, s{sWs}, s{sWd}
            s_add_u32 s{sWs}, s{sWs}, {step0*5120}
            s_add_u32 s{sWd}, s{sWd}, {lds0}""")
        def piece(p):
            if p == 0: setup()
            if p % 4 == 0:
                k(f"s_add_u32 m0, s{sWd}, {1024*p}")
                k(f"s_add_u32 s{sWs}, s{sWs}, 4096" if p else "s_nop 0")
            k(vop(tag, f"buffer_load_dwordx4 v{vA16}, s[{sWF}:{sWF+3}], s{sWs} offen offset:{1024*(p%4)} sc1 lds"))
        return [lambda p=p: piece(p) for p in range(per)]
    def aloads(steps, regs):
        def one(st, r):
            k(f"s_add_u32 s{sT}, s{sAo}, {st*1024}")
            k(vop(("a", st), f"buffer_load_dwordx4 {v(af+4*r,4)}, v{vA16}, s[{sOU}:{sOU+3}], s{sT} offen sc1"))
        return [lambda st=st, r=r: one(st, r) for st, r in zip(steps, regs)]
    def wread(slot, b, u, tag):
        if isinstance(slot, tuple): base, o = vA16, slot[1] * 5120
        else: base, o = (vW0, slot * 5120) if slot < 10 else (vW1, (slot - 10) * 5120)
        lop(tag, f"ds_read_b128 {v(wb[b]+4*u,4)}, v{base} offset:{o+1024*u}")
    first = [True]
    def arrive():
        k(f"s_add_u32 s{sCnt}, s{sCnt}, 1\nv_mov_b32 v{vFl}, s{sCnt}")
        lop("w", f"ds_write_b32 v{vXw}, v{vFl}")
    def peek(): lop("pk", f"ds_read_b32 v{vQ}, v{vXa}")
    def check():
        sl = k.lab("oslow"); ok = k.lab("ook")
        k(f"s_waitcnt lgkmcnt({lnewer('pk')})\nv_cmp_gt_u32 vcc, s{sCnt}, v{vQ}\ns_cbranch_vccnz {sl}")
        k.label(ok)
        cold2.append((sl, ok))
    cold2 = []
    def compute(seq, side, hooks={}):
        for i in range(min(2, len(seq))):
            for u in range(5): wread(seq[i][0], i % 2, u, ("r", i))
        for i, (sl, st, r) in enumerate(seq):
            b = i % 2
            nv = newer({("a", st)})
            k(f"s_waitcnt vmcnt({min(63, nv)}) lgkmcnt({lnewer(('r', i))})")
            if i in hooks: hooks[i]()
            sd = list(side.get(i, []))
            for u in range(5):
                c = "0" if first[0] else v(oacc+4*u, 4)
                k(f"v_mfma_f32_16x16x32_bf16 {v(oacc+4*u,4)}, {v(wb[b]+4*u,4)}, {v(af+4*r,4)}, {c}")
                if i + 2 < len(seq): wread(seq[i + 2][0], b, u, ("r", i + 2))
                if sd and u in ((1, 3, 4, 2, 0)[:len(side.get(i, []))]): sd.pop(0)()
            assert not sd
            first[0] = False
    def deal(em, i0, per):
        return {i0 + j: em[per*j:per*(j+1)] for j in range((len(em) + per - 1) // per)}
    for u in range(5):
        k(f"buffer_load_dwordx2 {v(xr+2*u,2)}, v{vXo}, s[{sXo}:{sXo+3}], s{sXof} offen offset:{32*u}")
    k(f"s_lshr_b32 s{sU}, s{sTT}, 1\ns_lshl_b32 s{sU}, s{sU}, 11\ns_add_u32 s{sU}, s{sU}, {FL_U}")
    k("s_waitcnt vmcnt(0)\ns_setprio 3")
    gsync()
    gpoll(f"s{sU}", vP, vQ, 0x3fff, 2)
    sp('upoll')
    k(f"s_setprio {oprio}")
    k(f"s_lshl_b32 s{sU}, s{sTT}, 8\ns_add_u32 s{sU}, s{sU}, {FL_O}")
    ul = aloads(range(20, 40), range(20))
    for e in ul[:8]: e()
    side = deal(ul[8:], 0, 2)
    side.update(deal(aloads(range(40, 47), range(7)), 8, 4))
    side.update(deal(wpieces(39, L_W + 5120, 40, "b2"), 10, 2))
    def oflag():
        k("s_mov_b64 exec, 3"); k(vop("of", gload(f"s{sU}", vP, vQ + 2))); k("s_mov_b64 exec, -1")
    side[16] = [oflag]
    compute([(1 + i, 20 + i, i) for i in range(19)], side, {7: arrive, 9: peek, 10: check})
    sp('o4')
    k(f"s_waitcnt vmcnt(0)")
    gsync()
    late = k.lab("olate"); join = k.lab("ojoin")
    k("s_mov_b64 exec, 3")
    gcheck(vQ + 2)
    k(f"s_mov_b64 exec, -1\ns_cbranch_vccnz {late}")
    seq3 = [(1 + i, 39 + i, ([19] + list(range(7)))[i]) for i in range(8)]
    oregs = list(range(7, 19)) + [19] + list(range(7))
    save = list(vm)
    em = wpieces(12, L_W + 9 * 5120, 40, "b3") + aloads(range(12), oregs[:12])
    compute(seq3, deal(em, 0, 3))
    k.label(join)
    sp('c3')
    lds_wait(L_F + F_OC, vQ, vQ + 1, 1)
    k("s_setprio 3")
    ld[:] = []
    seq4 = [(("T", i), i, oregs[i]) for i in range(12)] + [(9 + i, 12 + i, oregs[12 + i]) for i in range(8)]
    def b3_arrive():
        k(f"s_waitcnt vmcnt({newer({'b3'})})"); arrive()
    compute(seq4, deal(aloads(range(12, 20), oregs[12:]), 0, 2), {6: b3_arrive, 8: peek, 9: check})
    vm_fast = None
    sp('odone')
    k.srd(sXo, P_OUT, SZ_Q)
    k(f"s_mov_b32 s{sT}, 0xffff0000")
    t = wb[0]
    for u in range(5):
        for hh in range(2):
            k(f"v_lshlrev_b32 v{t+4*u+2*hh}, 16, v{xr+2*u+hh}\nv_and_b32 v{t+4*u+2*hh+1}, s{sT}, v{xr+2*u+hh}")
    for i in range(20):
        k(f"v_add_f32 v{t+i}, v{t+i}, v{oacc+i}")
    for u in range(5):
        k(f"v_cvt_pk_bf16_f32 v{xr+2*u}, v{t+4*u}, v{t+4*u+1}\nv_cvt_pk_bf16_f32 v{xr+2*u+1}, v{t+4*u+2}, v{t+4*u+3}")
    for u in range(5):
        k(f"buffer_store_dwordx2 {v(xr+2*u,2)}, v{vXo}, s[{sXo}:{sXo+3}], s{sXof} offen offset:{32*u}")
    ne = k.lab("ne")
    k(f"s_or_b32 s{sT}, s2, s{sW}\ns_cbranch_scc1 {ne}\ns_mov_b32 s{sT}, {hx(FL_E)}")
    gset(f"s{sT}", vP, vQ)
    k.label(ne)
    k.endpgm(P_WS, 3)
    k.label(late)
    vm[:] = save; ld[:] = []
    compute(seq3, deal(wpieces(12, L_W + 9 * 5120, 40, "b3"), 0, 2))
    gpoll(f"s{sU}", vP, vQ, 0x3, 1)
    for e in aloads(range(12), oregs[:12]): e()
    k(f"s_branch {join}")
    for sl, ok in cold2:
        k.label(sl)
        spinw(vXa, f"s{sCnt}")
        k(f"s_branch {ok}")
    for sl, need, ok in cold:
        k.label(sl)
        spinw(vFa, need)
        k(f"s_branch {ok}")
    k.label(end)
    k("s_endpgm")
    return k
```

```python
import sys, json, os
os.environ["STAMP"] = "1"; os.environ["RT"] = "1"
sys.path.insert(0,'gen')
import build, importlib
from common import *
mega = importlib.import_module(os.environ.get("MOD", "mega2"))
kw = json.loads(sys.argv[2])
slot, col, op = int(sys.argv[3]), int(sys.argv[4]), sys.argv[5]
k = mega.gen_mega(**kw)
e = Kern("spin_kernel", 1, 64, 0, 32)
end = e.lab("end")
e(f"s_cmp_ge_u32 s2, 1\ns_cbranch_scc1 {end}")
e(f"s_load_dwordx2 s[4:5], s[0:1], {KA_WS}\ns_waitcnt lgkmcnt(0)")
e.srd(8, 4, 0x20000, WS_STAMP + slot * 0x20000)
w0 = 8 if slot == 3 else 0
nw = 4 if slot == 3 else 8
e(f"v_mul_u32_u24 v1, {12*32}, v0\nv_mov_b32 v2, -1\nv_mov_b32 v3, {'0' if op != 'min' else '-1'}")
for g in range(3):
    for w in range(nw):
        e(f"s_mov_b32 s12, {(g*64*12 + w0 + w)*32}")
        e(f"buffer_load_dword v4, v1, s[8:11], s12 offen offset:20\nbuffer_load_dword v5, v1, s[8:11], s12 offen offset:{4*col}\ns_waitcnt vmcnt(0)")
        e(f"v_min_u32 v2, v2, v4\nv_{'min' if op == 'min' else 'max'}_u32 v3, v3, v5")
e("s_mov_b32 s14, -1\ns_mov_b32 s15, " + ("-1" if op == "min" else "0"))
for l in range(64):
    e(f"v_readlane_b32 s16, v2, {l}\nv_readlane_b32 s17, v3, {l}\ns_min_u32 s14, s14, s16\ns_{'min' if op == 'min' else 'max'}_u32 s15, s15, s17")
e("s_sub_u32 s18, s15, s14\ns_min_u32 s18, s18, 20000")
if op == "none": e("s_mov_b32 s18, 0")
e("s_memrealtime s[16:17]\ns_waitcnt lgkmcnt(0)")
l = e.lab("l"); e.label(l)
e(f"s_memrealtime s[22:23]\ns_waitcnt lgkmcnt(0)\ns_sub_u32 s22, s22, s16\ns_cmp_lt_u32 s22, s18\ns_cbranch_scc1 {l}")
e.label(end)
e("s_endpgm")
build.build([k, e], sys.argv[1], launches=[k, e])
```

```python
from common import *
import os

CH = 8 * KV_TILE
NSLOT = 3
ATT_LDS = NSLOT * CH
MARGIN = 64.0
TRIG = 2.0**48

def emit_attn(k, sT64, sHG, sW, vL, P_WS, sS, vb, lds_base, flag_base, slot=4, mega=None, budget=None, gset=None, tb=False, tail=None, yph=1, bal=0):
    CO = 'sc1' if mega else ''
    GT = KV_G if mega else KV_TILE
    sKV, sQ = sS, sS + 4
    sT, sC, sSo, sM0, sDelta, sRet, sMask, sSlot = sS + 8, sS + 11, sS + 12, sS + 13, sS + 14, sS + 15, sS + 16, sS + 17
    sEx = sS + 18
    a = Alloc(vb)
    Sx = [a(16, 4), a(16, 4)]
    O = a(16, 4)
    P = [a(8, 4), a(8, 4)]
    QA = a(4, 4); KA = a(4, 4); V0 = a(4, 4); V1 = a(4, 4)
    QB = a(2, 2); KB = a(2, 2)
    vKa, vKb, vVa, vD, vM, vN, vH, vFa, vFw, vFl = [a() for _ in range(10)]
    vT = a(6, 2)
    vPc, vPw, vPr, vPp = 108, 109, 110, 111
    if not mega:
        k.stamp(0); k.stamp_rt(5)
    if STAMP: k("s_mov_b32 s88, 0")
    k.srd(sKV, P_WS, 64 * GT, WS_KV)
    k(f"""v_and_b32 v{vN}, 31, v{vL}
    v_lshrrev_b32 v{vH}, 5, v{vL}
    v_lshlrev_b32 v{vD}, 4, v{vL}
    s_mul_i32 s{sSo}, s{sW}, {KV_TILE}
    s_add_u32 s{sM0}, s{sSo}, {lds_base}
    s_mul_i32 s{sSo}, s{sW}, {GT}
    s_mov_b32 s{sMask}, 0xffff0000
    s_mov_b32 s{sEx}, -1
    s_mov_b32 s{sEx+1}, 0xf""")
    def dma(slot):
        k(f"s_add_u32 m0, s{sM0}, {slot}")
        k("s_nop 0")
        k(f"buffer_load_dwordx4 v{vD}, s[{sKV}:{sKV+3}], s{sSo} offen {CO} lds")
        k(f"buffer_load_dwordx4 v{vD}, s[{sKV}:{sKV+3}], s{sSo} offen offset:1024 {CO} lds")
        k(f"s_mov_b64 exec, s[{sEx}:{sEx+1}]")
        k(f"buffer_load_dwordx4 v{vD}, s[{sKV}:{sKV+3}], s{sSo} offen offset:2048 {CO} lds")
        k(f"s_mov_b64 exec, -1")
        k(f"s_add_u32 s{sSo}, s{sSo}, {8*GT}")
    def first_tile():
        dma(0)
        k(f"s_sub_u32 s{sSo}, s{sSo}, {8*GT}")
    mega(first_tile)
    k.stamp(2)
    k(f"s_add_u32 s{sSo}, s{sSo}, {8*GT}")
    dma(CH)
    k(f"""v_add_u32 v{vKa}, {lds_base}, v{vD}
    v_lshlrev_b32 v{vKb}, 2, v{vL}
    v_add_u32 v{vKb}, {lds_base+KV_KB}, v{vKb}
    v_min_u32 v{vVa}, 20, v{vN}
    v_lshlrev_b32 v{vVa}, 4, v{vVa}
    v_mul_u32_u24 v{vT}, 336, v{vH}
    v_add_u32 v{vVa}, v{vVa}, v{vT}
    v_add_u32 v{vVa}, {lds_base+KV_V}, v{vVa}
    v_mov_b32 v{KB+1}, 0x3f803f80
    v_mov_b32 v{QB+1}, 0
    v_and_b32 v{vFa}, 7, v{vL}
    v_lshlrev_b32 v{vFa}, 2, v{vFa}
    v_add_u32 v{vFa}, {flag_base}, v{vFa}
    s_lshl_b32 s{sT}, s{sW}, 2
    s_add_u32 s{sT}, s{sT}, {flag_base}
    v_mov_b32 v{vFw}, s{sT}""")
    if bal:
        k(f"v_add_u32 v{vPw}, 96, v{vFw}\nv_xor_b32 v{vPr}, 16, v{vPw}\nv_mov_b32 v{vPc}, 0")
    for i in range(16):
        k(f"v_mov_b32 v{O+i}, 0")
    for i in range(8):
        k(f"v_mov_b32 v{P[1]+i}, 0")
    for r in (V0, V1):
        for i in range(4):
            k(f"v_mov_b32 v{r+i}, 0")

    def publish(val):
        k(f"v_mov_b32 v{vFl}, {val}")
        k(f"ds_write_b32 v{vFw}, v{vFl}")
    def spin(val):
        l = k.lab("spin"); d = k.lab("spun")
        k.label(l)
        k(f"ds_read_b32 v{vFl}, v{vFa}\ns_waitcnt lgkmcnt(0)\nv_cmp_gt_u32 vcc, {val}, v{vFl}\ns_cbranch_vccz {d}\ns_sleep 1")
        k(f"s_branch {l}" if budget is None else f"s_sub_u32 s{budget}, s{budget}, 1\ns_cbranch_scc0 {l}")
        k.label(d)
    def set_m():
        k(f"""v_sub_f32 v{vT}, 0, v{vM}
        v_and_b32 v{vT+1}, s{sMask}, v{vT}
        v_sub_f32 v{vT}, v{vT}, v{vT+1}
        v_and_b32 v{vT+2}, s{sMask}, v{vT}
        v_sub_f32 v{vT}, v{vT}, v{vT+2}
        v_lshrrev_b32 v{vT+1}, 16, v{vT+1}
        v_or_b32 v{vT+1}, v{vT+1}, v{vT+2}
        v_cmp_eq_u32 vcc, 0, v{vH}
        v_lshrrev_b32 v{vT}, 16, v{vT}
        s_nop 0
        v_cndmask_b32 v{QB+1}, v{vT}, v{vT+1}, vcc
        s_nop 1""")
    def qk(S):
        return [f"v_mfma_f32_32x32x16_bf16 {v(S,16)}, {v(KA,4)}, {v(QA,4)}, 0",
                f"v_mfma_f32_32x32x8_bf16 {v(S,16)}, {v(KB,2)}, {v(QB,2)}, {v(S,16)}"]
    def pv(Pp):
        return [f"v_mfma_f32_32x32x16_bf16 {v(O,16)}, {v(V0,4)}, {v(Pp,4)}, {v(O,16)}",
                f"v_mfma_f32_32x32x16_bf16 {v(O,16)}, {v(V1,4)}, {v(Pp+4,4)}, {v(O,16)}"]
    rdK = lambda i: [f"ds_read_b128 {v(KA,4)}, v{vKa} offset:{KV_TILE*i}", f"ds_read_b32 v{KB}, v{vKb} offset:{KV_TILE*i}"]
    rdV = lambda i: [f"ds_read_b128 {v(V0,4)}, v{vVa} offset:{KV_TILE*i}", f"ds_read_b128 {v(V1,4)}, v{vVa} offset:{KV_TILE*i+672}"]
    def maxtree(S, first):
        if first:
            k(f"v_max3_f32 v{vM}, v{S}, v{S+1}, v{S+2}\nv_max_f32 v{vM}, v{vM}, v{S+3}")
            rng = range(4, 16, 2)
        else:
            rng = range(0, 16, 2)
        for i in rng:
            k(f"v_max3_f32 v{vM}, v{vM}, v{S+i}, v{S+i+1}")
    def cross_half_max():
        k(f"v_mov_b32 v{vT}, v{vM}\ns_nop 1\nv_permlane32_swap_b32 v{vM}, v{vT}\nv_max_f32 v{vM}, v{vM}, v{vT}")

    G = lds_base + 2 * CH
    k(f"""s_and_b32 s{sT}, s{sW}, 1
    s_mul_i32 s{sT}, s{sT}, {32*192}
    s_lshr_b32 s{sT+1}, s{sW}, 1
    s_mul_i32 s{sT+1}, s{sT+1}, 40
    s_add_u32 s{sT}, s{sT}, s{sT+1}
    s_add_u32 s{sT}, s{sT}, {G}
    v_mul_u32_u24 v{vT}, 192, v{vN}
    v_add_u32 v{vT}, s{sT}, v{vT}
    v_lshl_add_u32 v{vT+1}, v{vH}, 4, v{vT}
    v_lshl_add_u32 v{vT+2}, v{vH}, 2, v{vT}
    s_waitcnt vmcnt(3)""")
    publish(1)
    spin(1)
    k(f"ds_read_b64 {v(QA,2)}, v{vT+1}\nds_read_b64 {v(QA+2,2)}, v{vT+1} offset:8\nds_read_b32 v{QB}, v{vT+2} offset:32")
    k.stamp(1)
    for t in range(2):
        for x in rdK(t):
            k(x)
        k("s_waitcnt lgkmcnt(0)")
        for x in qk(Sx[t]):
            k(x)
    for x in rdK(0):
        k(x)
    k("s_nop 7\ns_nop 1")
    maxtree(Sx[0], True)
    maxtree(Sx[1], False)
    cross_half_max()
    k(f"v_ceil_f32 v{vM}, v{vM}\nv_add_f32 v{vM}, {fl(MARGIN)}, v{vM}")
    set_m()
    k("s_waitcnt lgkmcnt(0)")
    for x in qk(Sx[0]):
        k(x)
    for x in rdK(1):
        k(x)
    k(f"ds_read_b32 v{vFl}, v{vFa}\nds_read_b32 v{vFl}, v{vFa}")
    k(f"s_mov_b32 s{sC}, 0\ns_mov_b32 s{sSlot}, 0\ns_mov_b64 vcc, 0\ns_nop 4")
    if not mega: k.stamp(2)
    loop = k.lab("aloop"); rare = k.lab("rare")
    rl = [k.lab(f"rin{i}") for i in range(4)]
    rb = [k.lab(f"rback{i}") for i in range(4)]
    if "a16" in os.environ.get("EXP", ""):
        for i in range(4): k(f"v_mov_b32 v{112+i}, {fl(-190.0)}")
    ACC = STAMP and os.environ.get("ACC")
    def t0():
        if ACC: k("s_memtime s[36:37]\ns_waitcnt lgkmcnt(0)")
    def t1(i):
        if ACC: k(f"s_memtime s[38:39]\ns_waitcnt lgkmcnt(0)\ns_sub_u32 s38, s38, s36\ns_add_u32 s{80+2*i}, s{80+2*i}, s38")
    if ACC: k("s_waitcnt lgkmcnt(0)\ns_mov_b32 s82, s80\ns_mov_b32 s84, s80")
    k.align(6)
    k.label(loop)
    if STAMP and os.environ.get("ACH"):
        for si, cc in zip((2, 1), os.environ["ACH"].split(",")):
            l = k.lab("ach")
            k(f"s_cmp_lg_u32 s{sC}, {cc}\ns_cbranch_scc1 {l}")
            k.stamp(si)
            k.label(l)
        k.align(3)
    for i in range(8):
        S, Sn, Pc, Pp = Sx[i % 2], Sx[1 - i % 2], P[i % 2], P[1 - i % 2]
        if i % 2 == 0:
            k(f"s_cbranch_vccnz {rl[i//2]}" if not os.environ.get("EXP") else "s_nop 0")
            k.label(rb[i // 2])
        if i == 6:
            l = k.lab("x"); d = k.lab("xd")
            if ACC == "a": t0()
            k(f"s_waitcnt lgkmcnt(4)\nv_cmp_gt_u32 vcc, s{sT}, v{vFl}\ns_cbranch_vccz {d}")
            if "anosync" not in os.environ.get("MX", ""): spin(f"s{sT}")
            k.label(d)
            if ACC == "a": t1(2)
            t0()
            nod = k.lab("nod")
            k(f"s_cmp_ge_u32 s{sC}, 6\ns_cbranch_scc1 {nod}")
            if "axd" not in os.environ.get("MX", ""): dma(f"s{sT+1}")
            k.label(nod)
            t1(1)
            k(f"v_add_u32 v{vKa}, s{sDelta}, v{vKa}\nv_add_u32 v{vKb}, s{sDelta}, v{vKb}")
        e = [f"v_exp_f32 v{S+j}, v{S+j}" for j in range(16)]
        c = [f"v_cvt_pk_bf16_f32 v{Pc+j}, v{S+2*j}, v{S+2*j+1}" for j in range(8)]
        m = qk(Sn) + pv(Pp)
        rk = rdK((i + 2) % 8); rv = rdV(i)
        seq = ["s_waitcnt lgkmcnt(2)" if i != yph + 1 else "s_waitcnt lgkmcnt(3)", e[0]]
        if i == 5:
            seq += [m[0], f"ds_read_b32 v{vFl}, v{vFa}", rk[0]]
        else:
            seq += [m[0], rk[0]]
        seq += e[1:5] + [c[0]]
        seq += [m[1], rk[1]] + e[5:7] + [c[1], c[2]]
        if i % 2 == 1:
            seq += [f"v_cmp_lt_f32 vcc, {fl(TRIG)}, v{O+12}"]
        seq += [e[7], e[8], "s_waitcnt lgkmcnt(2)"]
        seq += [m[2], rv[0]] + e[9:11] + [c[3]] + e[11:13] + [c[4]]
        seq += [m[3], rv[1]] + [e[13], c[5]] + e[14:16] + [c[6], c[7]]
        if bal and i % bal == 0:
            j = seq.index(m[0])
            seq[j:j] = [f"v_add_u32 v{vPc}, 1, v{vPc}"]
            j = seq.index(rk[0]) + 1
            seq[j:j] = [f"ds_write_b32 v{vPw}, v{vPc}", f"ds_read_b32 v{vPp}, v{vPr}"]
            j = seq.index(m[2]) - 1
            assert seq[j] == "s_waitcnt lgkmcnt(2)"
            seq[j] = "s_waitcnt lgkmcnt(4)"
        if bal and i % bal == 1 % bal:
            lb = k.lab("bal")
            j = seq.index(e[2])
            seq[j:j] = [f"v_cmp_lt_u32 s[{sS+20}:{sS+21}], v{vPp}, v{vPc}"]
            j = seq.index(m[1])
            seq[j:j] = [f"s_cmp_eq_u32 s{sS+20}, 0", "s_setprio 1", f"s_cbranch_scc1 {lb}", "s_setprio 0", lb + ":"]
        EXP = os.environ.get("EXP", "")
        if "nopv" in EXP: seq = [x for x in seq if x not in (m[2], m[3])]
        if "noqk" in EXP: seq = [x for x in seq if x not in (m[0], m[1])]
        if "noqb" in EXP: seq = [x for x in seq if x != m[1]]
        if "nolds" in EXP: seq = [(x if x not in rk + rv else f"ds_read_b32 v{vT}, v{vFa}") for x in seq]
        if "linv" in EXP: seq = [x.replace(f"v{vVa} offset", f"v{vKa} offset") for x in seq]
        if "nokb" in EXP: seq = [(x if x != rk[1] else f"ds_read_b128 v[112:115], v{vKa}") for x in seq]
        if "fix" in EXP:
            import re
            seq = [re.sub(r"offset:\d+", "offset:0", x) if x.startswith("ds_read") else x for x in seq]
        if "a16" in EXP:
            q16 = lambda j, A: f"v_mfma_f32_16x16x32_bf16 {v(Sn+4*j,4)}, {v(A,4)}, {v(QA,4)}, v[112:115]"
            p16 = lambda j, A, B: f"v_mfma_f32_16x16x32_bf16 {v(O+4*j,4)}, {v(A,4)}, {v(B,4)}, {v(O+4*j,4)}"
            rep = {m[0]: (q16(0, KA), q16(1, V0)), m[1]: (q16(2, KA), q16(3, V1)), m[2]: (p16(0, V0, Pp), p16(1, V0, Pp + 4)), m[3]: (p16(2, V1, Pp), p16(3, V1, Pp + 4))}
            if "qonly" in EXP: del rep[m[2]], rep[m[3]]
            if "ponly" in EXP: del rep[m[0]], rep[m[1]]
            out = []; pend = None; cnt = 0
            for x in seq:
                if x in rep:
                    out.append(rep[x][0]); pend = rep[x][1]; cnt = 0
                else:
                    out.append(x); cnt += 1
                    if pend and cnt == 3: out.append(pend); pend = None
            seq = out
        if "noexp" in EXP: seq = [x.replace("v_exp_f32", "v_rndne_f32") for x in seq]
        for x in seq:
            k(x)
        if i == yph:
            if ACC == "b": t0()
            k(f"s_add_u32 s{sT}, s{sC}, 2\ns_waitcnt vmcnt(0)")
            if ACC == "b": t1(2)
            publish(f"s{sT}")
            k(f"""s_mov_b32 s{sDelta}, {CH}
            s_cmp_eq_u32 s{sSlot}, {2*CH}
            s_cmov_b32 s{sDelta}, {hx(-2*CH)}
            s_sub_u32 s{sT+1}, s{sSlot}, {CH}
            s_cmp_eq_u32 s{sSlot}, 0
            s_cmov_b32 s{sT+1}, {2*CH}""")
    k(f"""v_add_u32 v{vVa}, s{sDelta}, v{vVa}
    s_add_u32 s{sSlot}, s{sSlot}, s{sDelta}
    s_add_u32 s{sC}, s{sC}, 1
    s_cmp_lt_u32 s{sC}, 8
    s_cbranch_scc1 {loop}""")
    k.stamp(3)
    k("s_waitcnt lgkmcnt(0)")
    for x in pv(P[1]):
        k(x)
    fin = k.lab("afin"); slow = k.lab("slow")
    k("s_nop 7\ns_nop 3")
    k(f"v_mov_b32 v{vT}, 0x207")
    k(f"s_mov_b64 s[{sEx}:{sEx+1}], 0")
    for i in list(range(13)):
        k(f"v_cmp_class_f32 vcc, v{O+i}, v{vT}\ns_or_b64 s[{sEx}:{sEx+1}], s[{sEx}:{sEx+1}], vcc")
    if not os.environ.get("EXP"): k(f"s_cbranch_scc1 {slow}")
    k.label(fin)
    k.srd(sQ, P_WS, SZ_OUF, WS_OUF)
    k(f"""v_rcp_f32 v{vT+4}, v{O+12}
    s_lshr_b32 s{sT}, s{sW}, 1
    s_mul_i32 s{sT}, s{sT}, 5
    v_add_u32 v{vT}, s{sT}, v{vH}
    v_lshrrev_b32 v{vT+1}, 1, v{vT}
    v_and_b32 v{vT}, 1, v{vT}
    v_lshlrev_b32 v{vT}, 3, v{vT}
    v_lshl_add_u32 v{vT}, v{vT+1}, 8, v{vT}
    v_and_b32 v{vT+1}, 15, v{vN}
    v_lshl_add_u32 v{vT}, v{vT+1}, 4, v{vT}
    v_lshrrev_b32 v{vT+1}, 4, v{vN}
    v_mul_u32_u24 v{vT+1}, 2560, v{vT+1}
    s_and_b32 s{sT}, s{sW}, 1
    s_mul_i32 s{sT}, s{sT}, 5120
    s_add_u32 s{sT}, s{sT}, {G}
    v_add3_u32 v{vT}, v{vT}, v{vT+1}, s{sT}""")
    for i in range(12):
        k(f"v_mul_f32 v{O+i}, v{O+i}, v{vT+4}")
    for i in range(6):
        k(f"v_cvt_pk_bf16_f32 v{P[0]+i}, v{O+2*i}, v{O+2*i+1}")
    last = k.lab("last")
    k(f"""ds_write_b64 v{vT}, {v(P[0],2)}
    ds_write_b64 v{vT}, {v(P[0]+2,2)} offset:256
    s_mov_b32 exec_hi, 0
    ds_write_b64 v{vT}, {v(P[0]+4,2)} offset:512
    s_mov_b64 exec, 1
    v_mov_b32 v{vT+2}, {flag_base+48}
    v_mov_b32 v{vT+3}, 1
    s_waitcnt lgkmcnt(0)
    ds_add_rtn_u32 v{vT+3}, v{vT+2}, v{vT+3}
    s_waitcnt lgkmcnt(0)
    v_readfirstlane_b32 s{sT}, v{vT+3}
    s_mov_b64 exec, -1
    s_cmp_eq_u32 s{sT}, 7
    s_cbranch_scc1 {last}""")
    k.endpgm(P_WS, slot)
    k.label(last)
    tail(0)
    k(f"v_add_u32 v{vT}, {G}, v{vD}")
    for i in range(12):
        k(f"ds_read_b128 {v(Sx[0]+4*i,4)}, v{vT} offset:{2560*(i//3)+1024*(i%3)}")
    k(f"s_mul_i32 s{sT}, s{sT64}, {4*47*1024}\ns_mul_i32 s{sT+1}, s{sHG}, 2560\ns_add_u32 s{sT}, s{sT}, s{sT+1}")
    for i in range(12):
        k(f"s_waitcnt lgkmcnt({11-i})")
        if i % 3 == 2: k("s_mov_b32 exec_hi, 0")
        k(f"buffer_store_dwordx4 {v(Sx[0]+4*i,4)}, v{vD}, s[{sQ}:{sQ+3}], s{sT} offen offset:{1024*(i%3)} sc1")
        if i % 3 == 2: k(f"s_mov_b32 exec_hi, -1\ns_add_u32 s{sT}, s{sT}, {47*1024}")
    k(f"s_lshl_b32 s{sT}, s{sT64}, 3\ns_add_u32 s{sT}, s{sT}, s{sHG}\ns_lshl_b32 s{sT}, s{sT}, 7\ns_add_u32 s{sT}, s{sT}, {FL_O}")
    tail(1)
    if gset: gset(f"s{sT}", vT + 4, vT + 2)
    tail(2)
    k.endpgm(P_WS, slot)
    for i in range(4):
        k.label(rl[i])
        k(f"s_mov_b32 s{sRet}, {i}\ns_branch {rare}")
    k.label(rare)
    if STAMP: k("s_add_u32 s88, s88, 1")
    k("s_nop 7\ns_nop 3")
    k(f"""v_frexp_exp_i32_f32 v{vT+3}, v{O+12}
    v_add_u32 v{vT+3}, {int(MARGIN)}, v{vT+3}
    v_max_i32 v{vT+3}, 0, v{vT+3}
    v_cvt_f32_i32 v{vT+4}, v{vT+3}
    v_add_f32 v{vT+5}, v{vM}, v{vT+4}
    v_sub_f32 v{vT+4}, v{vT+5}, v{vM}
    v_mov_b32 v{vM}, v{vT+5}
    v_cvt_i32_f32 v{vT+3}, v{vT+4}
    v_sub_u32 v{vT+3}, 0, v{vT+3}""")
    for i in range(16):
        k(f"v_ldexp_f32 v{O+i}, v{O+i}, v{vT+3}")
    for i in range(16):
        k(f"v_sub_f32 v{Sx[0]+i}, v{Sx[0]+i}, v{vT+4}")
    for i in range(8):
        k(f"""v_lshlrev_b32 v{vT}, 16, v{P[1]+i}
        v_and_b32 v{vT+1}, s{sMask}, v{P[1]+i}
        v_ldexp_f32 v{vT}, v{vT}, v{vT+3}
        v_ldexp_f32 v{vT+1}, v{vT+1}, v{vT+3}
        v_cvt_pk_bf16_f32 v{P[1]+i}, v{vT}, v{vT+1}""")
    set_m()
    for i in range(3):
        k(f"s_cmp_eq_u32 s{sRet}, {i}\ns_cbranch_scc1 {rb[i]}")
    k(f"s_branch {rb[3]}")
    k.label(slow)
    p1 = k.lab("p1"); p2 = k.lab("p2")
    k(f"""v_mov_b32 v{QB+1}, 0
    v_mov_b32 v{vM}, 0xff7fffff
    v_lshlrev_b32 v{vKb}, 2, v{vL}
    v_min_u32 v{vVa}, 20, v{vN}
    v_lshlrev_b32 v{vVa}, 4, v{vVa}
    v_mul_u32_u24 v{vT}, 336, v{vH}
    v_add_u32 v{vVa}, v{vVa}, v{vT}
    s_mov_b32 s{sSo}, 0""")
    def gK():
        k(f"buffer_load_dwordx4 {v(KA,4)}, v{vD}, s[{sKV}:{sKV+3}], s{sSo} offen offset:{KV_KA} {CO}")
        k(f"buffer_load_dword v{KB}, v{vKb}, s[{sKV}:{sKV+3}], s{sSo} offen offset:{KV_KB} {CO}")
    k.label(p1)
    gK()
    k("s_waitcnt vmcnt(0)")
    for x in qk(Sx[0]):
        k(x)
    k("s_nop 7\ns_nop 3")
    maxtree(Sx[0], False)
    k(f"s_add_u32 s{sSo}, s{sSo}, {GT}\ns_cmp_lt_u32 s{sSo}, {64*GT}\ns_cbranch_scc1 {p1}")
    cross_half_max()
    set_m()
    for i in range(16):
        k(f"v_mov_b32 v{O+i}, 0")
    k(f"s_mov_b32 s{sSo}, 0")
    k.label(p2)
    gK()
    k(f"buffer_load_dwordx4 {v(V0,4)}, v{vVa}, s[{sKV}:{sKV+3}], s{sSo} offen offset:{KV_V} {CO}")
    k(f"buffer_load_dwordx4 {v(V1,4)}, v{vVa}, s[{sKV}:{sKV+3}], s{sSo} offen offset:{KV_V+672} {CO}")
    k("s_waitcnt vmcnt(0)")
    for x in qk(Sx[0]):
        k(x)
    k("s_nop 7\ns_nop 3")
    for j in range(16):
        k(f"v_exp_f32 v{Sx[0]+j}, v{Sx[0]+j}")
    k("s_nop 0")
    for j in range(8):
        k(f"v_cvt_pk_bf16_f32 v{P[0]+j}, v{Sx[0]+2*j}, v{Sx[0]+2*j+1}")
    k("s_nop 1")
    for x in pv(P[0]):
        k(x)
    k(f"s_add_u32 s{sSo}, s{sSo}, {GT}\ns_cmp_lt_u32 s{sSo}, {64*GT}\ns_cbranch_scc1 {p2}")
    k(f"s_nop 7\ns_nop 3\ns_branch {fin}")
    return a.n
```

```python
from common import *

def emit_norm(k, sWG, sW, vL, P_WS, sS, vb, lds_base, sync, coh="", after_issue=None, nwait=0):
    sZ, sO, sT, sMask = sS, sS + 4, sS + 8, sS + 14
    a = Alloc(vb)
    raw = [a(8, 4), a(8, 4)]
    f = [a(16, 2), a(16, 2)]
    st = a(4, 2)
    vA, vB = a(), a()
    k.srd(sZ, P_WS, SZ_Z, WS_Z)
    k.srd(sO, P_WS, SZ_Z2F, WS_Z2F)
    k(f"""s_lshl_b32 s{sT}, s{sWG}, 3
    s_lshl_b32 s{sT+1}, s{sW}, 1
    s_add_u32 s{sT}, s{sT}, s{sT+1}
    s_mul_i32 s{sT}, s{sT}, 3456
    s_add_u32 s{sT}, s{sT}, 1728
    s_add_u32 s{sT+2}, s{sT}, 3456
    s_mov_b32 s{sMask}, 0xffff0000
    v_lshlrev_b32 v{vA}, 4, v{vL}""")
    for r in range(2):
        for i in range(4, 8):
            k(f"v_mov_b32 v{raw[r]+i}, 0")
    for r in range(2):
        k(f"buffer_load_dwordx4 {v(raw[r],4)}, v{vA}, s[{sZ}:{sZ+3}], s{sT+2*r} offen")
    k("s_mov_b32 exec_hi, 0xfff")
    for r in range(2):
        k(f"buffer_load_dwordx4 {v(raw[r]+4,4)}, v{vA}, s[{sZ}:{sZ+3}], s{sT+2*r} offen offset:1024")
    k("s_mov_b32 exec_hi, -1")
    if after_issue:
        after_issue()
    k(f"s_waitcnt vmcnt({nwait})")
    for r in range(2):
        for i in range(8):
            k(f"v_lshlrev_b32 v{f[r]+2*i}, 16, v{raw[r]+i}\nv_and_b32 v{f[r]+2*i+1}, s{sMask}, v{raw[r]+i}")
    for r in range(2):
        k(f"v_add_f32 v{st+2*r}, v{f[r]}, v{f[r]+1}\nv_mul_f32 v{st+2*r+1}, v{f[r]}, v{f[r]}")
    for i in range(1, 16):
        for r in range(2):
            if i > 1:
                k(f"v_add_f32 v{st+2*r}, v{st+2*r}, v{f[r]+i}")
            k(f"v_fmac_f32 v{st+2*r+1}, v{f[r]+i}, v{f[r]+i}")
    for m in ("row_shr:1", "row_shr:2", "row_shr:4", "row_shr:8"):
        for i in range(4):
            k(f"v_add_f32_dpp v{st+i}, v{st+i}, v{st+i} {m} row_mask:0xf bank_mask:0xf bound_ctrl:0")
    for m in ("row_bcast:15 row_mask:0xa", "row_bcast:31 row_mask:0xc"):
        for i in range(4):
            k(f"v_add_f32_dpp v{st+i}, v{st+i}, v{st+i} {m} bank_mask:0xf")
    for r in range(2):
        k(f"v_mul_f32 v{st+2*r}, {fl(1.0/864)}, v{st+2*r}\nv_mul_f32 v{st+2*r+1}, {fl(1.0/864)}, v{st+2*r+1}")
    for r in range(2):
        k(f"v_fma_f32 v{st+2*r+1}, -v{st+2*r}, v{st+2*r}, v{st+2*r+1}")
    for r in range(2):
        k(f"v_max_f32 v{st+2*r+1}, 0, v{st+2*r+1}")
    for r in range(2):
        k(f"v_add_f32 v{st+2*r+1}, {fl(1e-5)}, v{st+2*r+1}")
    for r in range(2):
        k(f"v_rsq_f32 v{st+2*r+1}, v{st+2*r+1}")
    k("s_nop 0")
    for r in range(2):
        k(f"v_mul_f32 v{st+2*r}, v{st+2*r}, v{st+2*r+1}")
    k("s_nop 0")
    for i in range(4):
        k(f"v_readlane_b32 s{sT+2+i}, v{st+i}, 63")
    k(f"s_mul_i32 s{sT}, s{sW}, 3456\ns_add_u32 s{sT}, s{sT}, {lds_base}\nv_add_u32 v{vB}, s{sT}, v{vA}")
    for r in range(2):
        k(f"v_mov_b32 v{st+2*r}, s{sT+2+2*r}")
    for r in range(2):
        for i in range(16):
            k(f"v_fma_f32 v{f[r]+i}, v{f[r]+i}, s{sT+3+2*r}, -v{st+2*r}")
        for i in range(8):
            k(f"v_cvt_pk_bf16_f32 v{raw[r]+i}, v{f[r]+2*i}, v{f[r]+2*i+1}")
    for r in range(2):
        k(f"ds_write_b128 v{vB}, {v(raw[r],4)} offset:{1728*r}")
    k("s_mov_b32 exec_hi, 0xfff")
    for r in range(2):
        k(f"ds_write_b128 v{vB}, {v(raw[r]+4,4)} offset:{1728*r+1024}")
    k("s_mov_b32 exec_hi, -1")
    k("s_waitcnt lgkmcnt(0)")
    sync()
    k(f"""v_bfe_u32 v{vB}, v{vL}, 2, 2
    v_mul_u32_u24 v{vB}, 1728, v{vB}
    v_lshrrev_b32 v{st}, 4, v{vL}
    v_lshl_add_u32 v{vB}, v{st}, 5, v{vB}
    v_and_b32 v{st}, 3, v{vL}
    v_lshl_add_u32 v{vB}, v{st}, 3, v{vB}
    s_lshl_b32 s{sT}, s{sW}, 7
    s_add_u32 s{sT}, s{sT}, {lds_base}
    v_add_u32 v{vB}, s{sT}, v{vB}""")
    for i in range(4):
        k(f"ds_read_b64_tr_b16 {v(f[0]+4*i,2)}, v{vB} offset:{512*i}")
        k(f"ds_read_b64_tr_b16 {v(f[0]+4*i+2,2)}, v{vB} offset:{512*i+4*1728}")
    k(f"""v_lshrrev_b32 v{st}, 5, v{vL}
    v_lshlrev_b32 v{st}, 17, v{st}
    v_and_b32 v{st+1}, 31, v{vL}
    v_lshl_add_u32 v{st}, v{st+1}, 4, v{st}
    s_lshl_b32 s{sT}, s{sW}, 18
    s_lshl_b32 s{sT+1}, s{sWG}, 9
    s_add_u32 s{sT}, s{sT}, s{sT+1}""")
    for i in range(4):
        k(f"s_waitcnt lgkmcnt({6-2*i})")
        k(f"buffer_store_dwordx4 {v(f[0]+4*i,4)}, v{st}, s[{sO}:{sO+3}], s{sT} offen {coh}")
        if i < 3:
            k(f"s_add_u32 s{sT}, s{sT}, 0x100000")


def gen_k2n():
    k = Kern("k2_norm_kernel", 256, 256, 16384, 72)
    end = k.lab("end")
    k(f"s_cmp_ge_u32 s2, 256\ns_cbranch_scc1 {end}")
    k(f"s_load_dwordx2 s[4:5], s[0:1], {KA_WS}")
    k("v_lshrrev_b32 v2, 6, v0\nv_and_b32 v1, 63, v0\nv_readfirstlane_b32 s3, v2\ns_waitcnt lgkmcnt(0)")
    emit_norm(k, 2, 3, 1, 4, 8, 4, 0, lambda: k("s_barrier"))
    k.label(end)
    k("s_endpgm")
    return k

def emit_repack(k, sKS, sW, vL, P_WO, P_WOUT, P_WS, sS, vb, lds_base, sync, coh='', rot=False):
    sI, sO, sT = sS, sS + 4, sS + 8
    a = Alloc(vb)
    d = a(40, 4)
    vA, vB, vC = a(), a(), a()
    l1 = k.lab("rp1"); l2 = k.lab("rp2")
    k(f"s_cmp_ge_u32 s{sKS}, 20\ns_cbranch_scc1 {l1}")
    k.srd(sI, P_WO, 640*1280)
    k(f"s_mul_i32 s{sT}, s{sKS}, 40960\ns_branch {l2}")
    k.label(l1)
    k.srd(sI, P_WOUT, 864*1280)
    k(f"s_sub_u32 s{sT}, s{sKS}, 20\ns_mul_i32 s{sT}, s{sT}, 40960")
    k.label(l2)
    k.srd(sO, P_WS, SZ_WF, WS_WF)
    k(f"""s_mul_i32 s{sT+1}, s{sW}, 10240
    s_add_u32 s{sT}, s{sT}, s{sT+1}
    s_add_u32 s{sT+1}, s{sT+1}, {lds_base}
    v_lshlrev_b32 v{vA}, 4, v{vL}""")
    for i in range(10):
        if i % 4 == 0:
            k(f"s_add_u32 m0, s{sT+1}, {1024*i}\ns_add_u32 s{sT+2}, s{sT}, {1024*i}")
        k(f"buffer_load_dwordx4 v{vA}, s[{sI}:{sI+3}], s{sT+2} offen offset:{1024*(i%4)} lds")
    k(f"""v_lshrrev_b32 v{vB}, 4, v{vL}
    v_bfe_u32 v{vC}, v{vL}, 2, 2
    v_lshl_add_u32 v{vB}, v{vB}, 3, v{vC}
    v_mul_u32_u24 v{vB}, 1280, v{vB}
    v_and_b32 v{vC}, 3, v{vL}
    v_lshl_add_u32 v{vB}, v{vC}, 3, v{vB}
    s_mul_i32 s{sT}, s{sW}, 320
    s_add_u32 s{sT}, s{sT}, {lds_base}
    v_add_u32 v{vB}, s{sT}, v{vB}
    s_waitcnt vmcnt(0)""")
    sync()
    for half in range(2):
        k(f"s_lshl_b32 s{sT+2}, s{sW}, 1\ns_add_u32 s{sT+2}, s{sT+2}, {half}")
        if rot:
            r1 = k.lab("rr1"); r2 = k.lab("rr2")
            k(f"""s_cmp_ge_u32 s{sKS}, 20
            s_cbranch_scc1 {r1}
            s_mul_i32 s{sT+1}, s{sT+2}, 5
            s_lshr_b32 s{sT+1}, s{sT+1}, 1
            s_sub_u32 s{sT}, s{sKS}, s{sT+1}
            s_cselect_b32 s{sT+1}, 20, 0
            s_add_u32 s{sT}, s{sT}, s{sT+1}
            s_branch {r2}""")
            k.label(r1)
            k(f"""s_mul_i32 s{sT+1}, s{sT+2}, 27
            s_lshr_b32 s{sT+1}, s{sT+1}, 3
            s_add_u32 s{sT+1}, s{sT+1}, 20
            s_sub_u32 s{sT}, s{sKS}, s{sT+1}
            s_cselect_b32 s{sT+1}, 47, 20
            s_add_u32 s{sT}, s{sT}, s{sT+1}""")
            k.label(r2)
        else:
            k(f"s_mov_b32 s{sT}, s{sKS}")
        k(f"s_mul_i32 s{sT+2}, s{sT+2}, 47\ns_add_u32 s{sT}, s{sT}, s{sT+2}\ns_mul_i32 s{sT}, s{sT}, 5120")
        for i in range(5*half, 5*half+5):
            k(f"ds_read_b64_tr_b16 {v(d+4*i,2)}, v{vB} offset:{32*i}")
            k(f"ds_read_b64_tr_b16 {v(d+4*i+2,2)}, v{vB} offset:{32*i+4*1280}")
        k("s_waitcnt lgkmcnt(0)")
        for i in range(5*half, 5*half+5):
            u = i % 5
            if u == 4:
                k(f"s_add_u32 s{sT+1}, s{sT}, 4096")
                k(f"buffer_store_dwordx4 {v(d+4*i,4)}, v{vA}, s[{sO}:{sO+3}], s{sT+1} offen {coh}")
            else:
                k(f"buffer_store_dwordx4 {v(d+4*i,4)}, v{vA}, s[{sO}:{sO+3}], s{sT} offen offset:{1024*u} {coh}")


def gen_k2w():
    k = Kern("k2_repack_kernel", 47, 256, 40960, 56)
    end = k.lab("end")
    k(f"s_cmp_ge_u32 s2, 47\ns_cbranch_scc1 {end}")
    k(f"s_load_dwordx2 s[4:5], s[0:1], {KA_WS}\ns_load_dwordx2 s[6:7], s[0:1], {KA_WO}\ns_load_dwordx2 s[24:25], s[0:1], {KA_WOUT}")
    k("v_lshrrev_b32 v2, 6, v0\nv_and_b32 v1, 63, v0\nv_readfirstlane_b32 s3, v2\ns_waitcnt lgkmcnt(0)")
    emit_repack(k, 2, 3, 1, 6, 24, 4, 8, 4, 0, lambda: k("s_barrier"))
    k.label(end)
    k("s_endpgm")
    return k

GST = 24576
GNS = 3
def emit_spatial(k, sTB, sFG, sW, vL, P_WSP, P_BSP, P_WS, sS, vb, lds_base, arrive, wait, pre_z=None, coh=""):
    sA, sZ, sO = sS, sS + 4, sS + 8
    sT, sI, sBuf, sSoA, sSoZ, sDelta, sM0A, sM0Z, sMask = sS + 12, sS + 15, sS + 16, sS + 17, sS + 18, sS + 19, sS + 20, sS + 21, sS + 22
    a = Alloc(vb)
    acc = [a(16, 4), a(16, 4)]
    fw = [[a(4, 4), a(4, 4)] for b in range(2)]
    fz = [a(4, 4) for b in range(2)]
    z1 = a(16, 4)
    vD = a(4, 1); vDz = a()
    vWa = a(4, 1); vZa = a()
    vN, vH, vBias = a(), a(), a(2, 2)
    vT = a(4, 2)
    k.stamp(0); k.stamp_rt(5)
    k.srd(sA, P_WSP, 2048*4096)
    k.srd(sO, P_WS, SZ_Z, WS_Z)
    k(f"v_and_b32 v{vN}, 31, v{vL}\nv_lshrrev_b32 v{vH}, 5, v{vL}\ns_mov_b32 s{sMask}, 0xffff0000")
    k(f"v_lshrrev_b32 v{vT}, 3, v{vL}\nv_and_b32 v{vT+1}, 7, v{vL}")
    for p in range(4):
        k(f"""v_add_u32 v{vT+2}, {8*p}, v{vT}
        v_bfe_u32 v{vT+3}, v{vT+2}, 1, 3
        v_xor_b32 v{vT+3}, v{vT+3}, v{vT+1}
        v_lshlrev_b32 v{vT+2}, 12, v{vT+2}
        v_lshl_add_u32 v{vD+p}, v{vT+3}, 4, v{vT+2}""")
        if p:
            k(f"v_subrev_u32 v{vD+p}, {1024*p}, v{vD+p}")
    k(f"""v_lshlrev_b32 v{vDz}, 4, v{vL}
    s_lshl_b32 s{sSoA}, s{sTB}, 2
    s_add_u32 s{sSoA}, s{sSoA}, s{sW}
    s_lshl_b32 s{sSoA}, s{sSoA}, 17
    s_lshl_b32 s{sM0A}, s{sW}, 12
    s_add_u32 s{sM0A}, s{sM0A}, {lds_base}
    s_lshl_b32 s{sM0Z}, s{sW}, 11
    s_add_u32 s{sM0Z}, s{sM0Z}, {lds_base+16384}
    s_lshr_b32 s{sT+1}, s{sW}, 1
    s_lshl_b32 s{sT}, s{sFG}, 1
    s_add_u32 s{sT+1}, s{sT}, s{sT+1}
    s_lshl_b32 s{sSoZ}, s{sT+1}, 17
    s_and_b32 s{sT}, s{sW}, 1
    s_lshl_b32 s{sT+2}, s{sT}, 11
    s_add_u32 s{sSoZ}, s{sSoZ}, s{sT+2}""")
    def dma_a(buf):
        if isinstance(buf, int):
            k(f"s_add_u32 m0, s{sM0A}, {buf*GST}")
        else:
            k(f"s_add_u32 m0, s{sM0A}, {buf}")
        k("s_nop 0")
        for p in range(4):
            k(f"buffer_load_dwordx4 v{vD+p}, s[{sA}:{sA+3}], s{sSoA} offen offset:{1024*p} lds")
        k(f"s_add_u32 s{sSoA}, s{sSoA}, 128")
    def dma_z(buf):
        if isinstance(buf, int):
            k(f"s_add_u32 m0, s{sM0Z}, {buf*GST}")
        else:
            k(f"s_add_u32 m0, s{sM0Z}, {buf}")
        k("s_nop 0")
        for p in range(2):
            k(f"buffer_load_dwordx4 v{vDz}, s[{sZ}:{sZ+3}], s{sSoZ} offen offset:{1024*p} {coh} lds")
        k(f"s_add_u32 s{sSoZ}, s{sSoZ}, 4096")
    k(f"""s_lshl_b32 s{sT+2}, s{sTB}, 7
    s_lshl_b32 s{sDelta}, s{sT}, 6
    s_add_u32 s{sT+2}, s{sT+2}, s{sDelta}
    v_add_u32 v{vT}, s{sT+2}, v{vN}
    v_mul_u32_u24 v{vT+1}, 3456, v{vT}
    v_lshl_add_u32 v{vT+1}, v{vH}, 4, v{vT+1}
    s_lshl_b32 s{sDelta}, s{sT+1}, 6
    s_add_u32 s{sBuf}, s{sDelta}, {32*3456}
    v_lshlrev_b32 v{vT+2}, 1, v{vT}""")
    for i in range(2):
        for jp in range(2):
            k(f"buffer_load_dwordx4 {v(z1+8*i+4*jp,4)}, v{vT+1}, s[{sO}:{sO+3}], s{sDelta if i == 0 else sBuf} offen offset:{32*jp}")
    k.srd(sZ, P_BSP, 4096)
    for i in range(2):
        k(f"buffer_load_ushort v{vBias+i}, v{vT+2}, s[{sZ}:{sZ+3}], 0 offen offset:{64*i}")
    for st in range(GNS):
        dma_a(st)
    k.srd(sZ, P_WS, SZ_Z2F, WS_Z2F)
    k.srd(sO, P_WS, SZ_OUF, WS_OUF)
    k(f"""v_bfe_u32 v{vT+1}, v{vN}, 1, 3
    v_xor_b32 v{vT+1}, v{vT+1}, v{vH}
    s_lshl_b32 s{sT+2}, s{sT}, 13
    s_add_u32 s{sT+2}, s{sT+2}, {lds_base}
    v_lshlrev_b32 v{vT+2}, 7, v{vN}
    v_add_u32 v{vT+2}, s{sT+2}, v{vT+2}""")
    for q in range(4):
        k(f"v_xor_b32 v{vT+3}, {2*q}, v{vT+1}\nv_lshl_add_u32 v{vWa+q}, v{vT+3}, 4, v{vT+2}")
    k(f"""s_lshr_b32 s{sT+2}, s{sW}, 1
    s_lshl_b32 s{sT+2}, s{sT+2}, 12
    s_add_u32 s{sT+2}, s{sT+2}, {lds_base+16384}
    v_add_u32 v{vZa}, s{sT+2}, v{vDz}""")
    for t in range(2):
        for i in range(16):
            k(f"v_mov_b32 v{acc[t]+i}, 0")
    if pre_z:
        pre_z()
    for st in range(GNS):
        dma_z(st)
    def reads(q, b):
        return [f"ds_read_b128 {v(fz[b],4)}, v{vZa} offset:{1024*q}",
                f"ds_read_b128 {v(fw[b][0],4)}, v{vWa+q}",
                f"ds_read_b128 {v(fw[b][1],4)}, v{vWa+q} offset:4096"]
    k(f"s_mov_b32 s{sI}, 0\ns_mov_b32 s{sBuf}, 0")
    k.stamp(1)
    k("s_waitcnt vmcnt(4)")
    arrive(); wait()
    k.stamp(2)
    for r in reads(0, 0):
        k(r)
    loop = k.lab("gloop"); w0 = k.lab("gw0"); w1 = k.lab("gw1"); w2 = k.lab("gw2"); nod = k.lab("gnod")
    k.align(3)
    k.label(loop)
    for q in range(4):
        b = q % 2
        mf = [f"v_mfma_f32_32x32x16_bf16 {v(acc[t],16)}, {v(fz[b],4)}, {v(fw[b][t],4)}, {v(acc[t],16)}" for t in range(2)]
        k("s_waitcnt lgkmcnt(0)")
        if q < 3:
            for x in interleave(mf, reads(q + 1, 1 - b)):
                k(x)
        else:
            k(f"s_cmp_eq_u32 s{sI}, 0\ns_cbranch_scc1 {w2}\ns_cmp_lt_u32 s{sI}, 30\ns_cbranch_scc1 {w0}\ns_waitcnt vmcnt(0)\ns_branch {w1}")
            k.label(w2)
            k(f"s_waitcnt vmcnt(2)\ns_branch {w1}")
            k.label(w0)
            k("s_waitcnt vmcnt(6)")
            k.label(w1)
            arrive()
            k(mf[0])
            k(f"s_mov_b32 s{sDelta}, {GST}\ns_cmp_eq_u32 s{sBuf}, {(GNS-1)*GST}\ns_cmov_b32 s{sDelta}, {hx(-(GNS-1)*GST)}")
            for i in range(4):
                k(f"v_add_u32 v{vWa+i}, s{sDelta}, v{vWa+i}")
            k(f"v_add_u32 v{vZa}, s{sDelta}, v{vZa}")
            k(mf[1])
            wait()
            for x in reads(0, 0):
                k(x)
            k(f"s_cmp_ge_u32 s{sI}, {32-GNS}\ns_cbranch_scc1 {nod}")
            dma_a(f"s{sBuf}")
            dma_z(f"s{sBuf}")
            k.label(nod)
            k(f"s_add_u32 s{sBuf}, s{sBuf}, s{sDelta}")
    k(f"s_add_u32 s{sI}, s{sI}, 1\ns_cmp_lt_u32 s{sI}, 32\ns_cbranch_scc1 {loop}")
    k.stamp(3)
    fin = k.lab("gfin")
    k(f"s_waitcnt lgkmcnt(0)\ns_cmp_eq_u32 s{sT+1}, 27\ns_cbranch_scc1 {fin}")
    k(f"""v_lshrrev_b32 v{vT+1}, 4, v{vT}
    v_mul_u32_u24 v{vT+1}, {47*1024}, v{vT+1}
    v_and_b32 v{vT+2}, 15, v{vT}
    v_lshl_add_u32 v{vT+1}, v{vT+2}, 4, v{vT+1}
    v_lshl_add_u32 v{vT+1}, v{vH}, 8, v{vT+1}
    s_add_u32 s{sT+2}, s{sT+1}, 20
    s_lshl_b32 s{sT+2}, s{sT+2}, 10
    s_add_u32 s{sDelta}, s{sT+2}, {2*47*1024}
    v_lshlrev_b32 v{vBias}, 16, v{vBias}
    v_lshlrev_b32 v{vBias+1}, 16, v{vBias+1}""")
    for i in range(2):
        for jp in range(2):
            b0 = z1 + 8*i + 4*jp
            k(f"v_permlane32_swap_b32 v{b0}, v{b0+2}\nv_permlane32_swap_b32 v{b0+1}, v{b0+3}")
    tmp = fw[0][0]
    for i in range(2):
        for r in range(8):
            zr = z1 + 8*i + r
            a0 = acc[i] + 2*r
            k(f"""v_lshlrev_b32 v{tmp}, 16, v{zr}
            v_and_b32 v{tmp+1}, s{sMask}, v{zr}
            v_add_f32 v{a0}, v{a0}, v{vBias+i}
            v_add_f32 v{a0+1}, v{a0+1}, v{vBias+i}
            v_mul_f32 v{a0}, v{a0}, v{tmp}
            v_mul_f32 v{a0+1}, v{a0+1}, v{tmp+1}
            v_cvt_pk_bf16_f32 v{zr}, v{a0}, v{a0+1}""")
        k("s_nop 1")
        for jp in range(2):
            b0 = z1 + 8*i + 4*jp
            k(f"v_permlane32_swap_b32 v{b0}, v{b0+2}\nv_permlane32_swap_b32 v{b0+1}, v{b0+3}")
        for jp in range(2):
            k(f"buffer_store_dwordx4 {v(z1+8*i+4*jp,4)}, v{vT+1}, s[{sO}:{sO+3}], s{sT+2 if i == 0 else sDelta} offen offset:{512*jp}")
    k.label(fin)
    return a.n


def tile_map_spatial(k, sTB, sFG, sT):
    k(f"""s_and_b32 s{sT}, s2, 7
    s_lshr_b32 s{sT+1}, s2, 3
    s_lshr_b32 s{sTB}, s{sT}, 1
    s_lshl_b32 s{sTB}, s{sTB}, 2
    s_and_b32 s{sFG}, s{sT+1}, 3
    s_add_u32 s{sTB}, s{sTB}, s{sFG}
    s_and_b32 s{sFG}, s{sT}, 1
    s_mul_i32 s{sFG}, s{sFG}, 7
    s_lshr_b32 s{sT}, s{sT+1}, 2
    s_add_u32 s{sFG}, s{sFG}, s{sT}
    s_cmp_ge_u32 s{sT+1}, 28""")


def gen_k2g():
    k = Kern("k2_spatial_kernel", 256, 256, GNS*GST, 104)
    end = k.lab("end")
    k(f"s_load_dwordx2 s[4:5], s[0:1], {KA_WS}\ns_load_dwordx4 s[8:11], s[0:1], {KA_WSP}")
    k("v_lshrrev_b32 v2, 6, v0\nv_and_b32 v1, 63, v0\nv_readfirstlane_b32 s3, v2")
    tile_map_spatial(k, 6, 7, 12)
    k(f"s_cbranch_scc1 {end}\ns_waitcnt lgkmcnt(0)")
    n = emit_spatial(k, 6, 7, 3, 1, 8, 10, 4, 16, 4, 0, lambda: None, lambda: k("s_barrier"))
    assert n <= 104, n
    k.endpgm(4, 3)
    k.label(end)
    k("s_endpgm")
    return k
```

```python
from common import *
import os, math
from k2parts import emit_repack
from attn2 import emit_attn, ATT_LDS, CH

MX = os.environ.get('MX', '')
SP = os.environ.get('SP', 'p1,p2,p3,p4').split(',')
QSCALE = math.log2(math.e) / math.sqrt(20.0)
GC0 = -2.0 * math.sqrt(2.0 / math.pi) * math.log2(math.e)
GC1 = GC0 * 0.044715

L_A = ATT_LDS
L_Z = L_A + 3 * 16384
L_W = L_A - 4096
L_CS = L_Z + 6 * 8192
L_F = L_CS + 2048
F_G, F_OC, F_XC, F_GO, F_XR, F_AUX = 32, 48, 52, 56, 60, 64
MEGA_LDS = L_F + 128
F_QS, F_STS, F_KVS, F_CS = 2 * CH, 2 * CH + 12288, 2 * CH + 12800, 2 * CH + 18176
F_B, F_S = ATT_LDS // 3, 20480
NAME = "parallel_sum__grouped_kv_mqa__mixer_gmlp__prompt_kernel"

def gen_mega(noatt=False, patz='33333333', pats='30303030', lprio=0, seam=True, oprio=3, pf='gis', ntx='', ntw='', repw='g', cpf=True, pslp=4, deep=False, tb=False, wfat=6, rprio=3, yph=1, thr=None, bal=0, ldot=True, xst=6, frot=0, orot=False, tsplit=32, prot=None, sent=False, oc=''):
    k = Kern(NAME, 256, 768, MEGA_LDS, 168, sgprs=100)
    P_X, P_WQ, P_WK, P_WV, P_WO = 44, 46, 48, 50, 52
    P_WIN, P_WSP, P_BSP, P_WOUT, P_OUT, P_DBG, P_WS = 56, 58, 60, 62, 64, 66, 68
    sWid, sTok, sBlk, sTB, sFG, sBud = 3, 4, 5, 6, 7, 70
    sT64, sHG = 98, 99
    sNo = 96
    sFl = 72
    vL = 1
    end = k.lab("end"); gem = k.lab("gem")
    k(f"s_cmp_ge_u32 s2, 256\ns_cbranch_scc1 {end}")
    k.stamp(0); k.stamp_rt(5)
    k(f"s_load_dwordx8 s[{P_X}:{P_X+7}], s[0:1], {KA_X}\ns_load_dwordx2 s[{P_WO}:{P_WO+1}], s[0:1], {KA_WO}")
    k(f"s_load_dwordx8 s[{P_WIN}:{P_WIN+7}], s[0:1], {KA_WIN}\ns_load_dwordx4 s[{P_OUT}:{P_OUT+3}], s[0:1], {KA_OUT}\ns_load_dwordx2 s[{P_WS}:{P_WS+1}], s[0:1], {KA_WS}")
    k(f"""v_lshrrev_b32 v2, 6, v0
    v_and_b32 v1, 63, v0
    v_readfirstlane_b32 s{sWid}, v2
    v_and_b32 v2, 31, v0
    v_lshlrev_b32 v2, 2, v2
    v_add_u32 v2, {L_F}, v2
    v_mov_b32 v3, 0
    ds_write_b32 v2, v3
    s_and_b32 s{sTB}, s2, 7
    s_lshl_b32 s{sBlk}, s{sTB}, 5
    s_lshr_b32 s{sTok}, s2, 3
    s_add_u32 s{sBlk}, s{sBlk}, s{sTok}
    s_lshl_b32 s{sTok}, s{sBlk}, 3
    s_add_u32 s{sTok}, s{sTok}, s{sWid}
    s_lshl_b32 s{sTB}, s{sTB}, 1
    s_bfe_u32 s{sFG}, s2, 0x10003
    s_add_u32 s{sTB}, s{sTB}, s{sFG}
    s_lshr_b32 s{sFG}, s2, 4
    s_and_b32 s{sT64}, s2, 7
    s_lshl_b32 s{sT64}, s{sT64}, 2
    s_bfe_u32 s{sHG}, s2, 0x20003
    s_add_u32 s{sT64}, s{sT64}, s{sHG}
    s_lshr_b32 s{sHG}, s2, 5
    s_mov_b32 s{sBud}, 400000
    s_waitcnt lgkmcnt(0)""")
    k.srd(sFl, P_WS, SZ_FLAG, WS_FLAG)
    k(f"s_load_dwordx2 s[{sNo}:{sNo+1}], s[{sFl}:{sFl+1}], {hx(FL_E)}")
    k(f"s_cmp_ge_u32 s{sWid}, 8\ns_cbranch_scc1 {gem}")

    def again(l):
        k(f"s_sub_u32 s{sBud}, s{sBud}, 1\ns_cbranch_scc0 {l}")
    def lds_wait(addr, va, vd, slp=1):
        val = {F_XR: 8, F_GO: 4, F_OC: 10, F_XC: 1}[addr - L_F]
        l = k.lab("lw"); d = k.lab("lwd")
        k(f"v_mov_b32 v{va}, {addr}")
        k.label(l)
        k(f"ds_read_b32 v{vd}, v{va}\ns_waitcnt lgkmcnt(0)\nv_cmp_gt_u32 vcc, {val}, v{vd}\ns_cbranch_vccz {d}\ns_sleep {slp}")
        again(l)
        k.label(d)
    def lds_set(addr, va, vd):
        k(f"v_mov_b32 v{va}, {addr}\nv_mov_b32 v{vd}, 1\nds_write_b32 v{va}, v{vd}")
    def gcheck(vd):
        k(f"v_cmp_ne_u64 vcc, s[{sNo}:{sNo+1}], {v(vd,2)}")
    def gload(soff, voff, vd):
        return f"buffer_load_dwordx2 {v(vd,2)}, v{voff}, s[{sFl}:{sFl+3}], {soff} offen sc1"
    def gpoll(soff, voff, vd, mask, slp):
        l = k.lab("pl"); d = k.lab("pd")
        if mask is not None: k(f"s_mov_b64 exec, {hx(mask)}")
        k.label(l)
        k(gload(soff, voff, vd))
        k("s_waitcnt vmcnt(0)")
        gcheck(vd)
        k(f"s_cbranch_vccz {d}\ns_sleep {slp}")
        again(l)
        k.label(d)
        if mask is not None: k("s_mov_b64 exec, -1")
    def gset(soff, va, vd):
        k(f"""v_mov_b32 v{vd}, s{sNo}
        v_mov_b32 v{vd+1}, s{sNo+1}
        v_lshlrev_b32 v{va}, 3, v{vL}
        s_mov_b64 exec, 0xffff
        buffer_store_dwordx2 {v(vd,2)}, v{va}, s[{sFl}:{sFl+3}], {soff} offen sc1
        s_mov_b64 exec, -1""")
    def spoll(offs, s0, slp=1):
        l = k.lab("sp"); r = k.lab("spr"); d = k.lab("spd")
        k.label(l)
        for i, (so, im) in enumerate(offs):
            k(f"s_load_dwordx2 s[{s0+2*i}:{s0+2*i+1}], s[{sFl}:{sFl+1}], s{so} offset:{hx(im)} glc")
        k("s_waitcnt lgkmcnt(0)")
        for i in range(len(offs)):
            k(f"s_cmp_eq_u64 s[{s0+2*i}:{s0+2*i+1}], s[{sNo}:{sNo+1}]")
            k(f"s_cbranch_scc0 {r}" if i + 1 < len(offs) else f"s_cbranch_scc1 {d}")
        k.label(r)
        k(f"s_sleep {slp}")
        again(l)
        k.label(d)
    def nonce():
        k(f"s_waitcnt lgkmcnt(0)\ns_add_u32 s{sNo}, s{sNo}, 1")

    sX, sO, sT, sMask = 8, 12, 16, 24
    raw, f, st, vA = 4, 12, 28, 30
    nz = k.lab("nz")
    skipA = k.lab("skipA"); skipG = k.lab("skipG")
    if "skip" in MX: k(f"s_barrier\ns_mov_b32 s27, 1\ns_branch {skipA}")
    k.srd(sX, P_X, SZ_Q)
    k(f"s_mul_i32 s{sT}, s{sTok}, 1280\nv_lshlrev_b32 v{vA}, 4, v{vL}\ns_mov_b32 s{sMask}, 0xffff0000")
    for i in range(4, 8):
        k(f"v_mov_b32 v{raw+i}, 0")
    k(f"buffer_load_dwordx4 {v(raw,4)}, v{vA}, s[{sX}:{sX+3}], s{sT} offen {ntx}")
    k("s_mov_b64 exec, 0xffff")
    k(f"buffer_load_dwordx4 {v(raw+4,4)}, v{vA}, s[{sX}:{sX+3}], s{sT} offen offset:1024 {ntx}")
    k("s_mov_b64 exec, -1")
    def touch(idx, nq):
        k(f"s_mul_i32 s{sT+2}, s{idx}, {nq*128}\ns_lshl_b32 s{sT+3}, s{idx}, 7\ns_mov_b64 exec, {hx((1 << nq) - 1)}")
        k(f"buffer_load_dword v{vA+2}, v{vA+1}, s[28:31], s{sT+2} offen\ns_mov_b64 exec, 1")
        k(f"buffer_load_dword v{vA+2}, v{vA+1}, s[32:35], s{sT+3} offen")
        k(f"buffer_load_dword v{vA+2}, v{vA+1}, s[36:39], s{sT+3} offen\ns_mov_b64 exec, -1")
    k(f"v_lshlrev_b32 v{vA+1}, 7, v{vL}\ns_and_b32 s{sT+1}, s{sTok}, 255")
    k.srd(28, P_WQ, 640*1280); k.srd(32, P_WK, 25600); k.srd(36, P_WV, 25600)
    if 'g' in pf: touch(sTok, 4)
    elif 'x' in pf: touch(sT + 1, 25)
    k.srd(sO, P_WS, SZ_XN, WS_XN)
    nonce()
    if 'g' in pf:
        k("s_waitcnt vmcnt(0)")
        if 'x' in pf: touch(sT + 1, 25)
        if 'b' in pf: k("s_barrier")
    else:
        k("s_waitcnt vmcnt(3)" if 'x' in pf else "s_waitcnt vmcnt(0)")
    for i in range(8):
        k(f"v_lshlrev_b32 v{f+2*i}, 16, v{raw+i}\nv_and_b32 v{f+2*i+1}, s{sMask}, v{raw+i}")
    k(f"v_add_f32 v{st}, v{f}, v{f+1}\nv_mul_f32 v{st+1}, v{f}, v{f}")
    for i in range(1, 16):
        if i > 1:
            k(f"v_add_f32 v{st}, v{st}, v{f+i}")
        k(f"v_fmac_f32 v{st+1}, v{f+i}, v{f+i}")
    for m in ("row_shr:1", "row_shr:2", "row_shr:4", "row_shr:8"):
        k("s_nop 0")
        for i in range(2):
            k(f"v_add_f32_dpp v{st+i}, v{st+i}, v{st+i} {m} row_mask:0xf bank_mask:0xf bound_ctrl:0")
    for m in ("row_bcast:15 row_mask:0xa", "row_bcast:31 row_mask:0xc"):
        k("s_nop 0")
        for i in range(2):
            k(f"v_add_f32_dpp v{st+i}, v{st+i}, v{st+i} {m} bank_mask:0xf")
    k(f"""v_mul_f32 v{st}, {fl(1.0/640)}, v{st}
    v_mul_f32 v{st+1}, {fl(1.0/640)}, v{st+1}
    v_fma_f32 v{st+1}, -v{st}, v{st}, v{st+1}
    v_max_f32 v{st+1}, 0, v{st+1}
    v_add_f32 v{st+1}, {fl(1e-5)}, v{st+1}
    v_rsq_f32 v{st+1}, v{st+1}
    v_readlane_b32 s{sT+3}, v{st}, 63
    v_mul_f32 v{st}, v{st}, v{st+1}
    s_nop 0
    v_readlane_b32 s{sT+1}, v{st}, 63
    v_readlane_b32 s{sT+2}, v{st+1}, 63
    s_nop 0
    v_mov_b32 v{st}, s{sT+1}""")
    for i in range(16):
        k(f"v_fma_f32 v{f+i}, v{f+i}, s{sT+2}, -v{st}")
    for i in range(8):
        k(f"v_cvt_pk_bf16_f32 v{raw+i}, v{f+2*i}, v{f+2*i+1}")
    if "latest" in MX:
        k("s_sleep 127\ns_sleep 60")
    k(f"s_mul_i32 s{sT}, s{sTok}, {XN_ST}")
    k(f"buffer_store_dwordx4 {v(raw,4)}, v{vA}, s[{sO}:{sO+3}], s{sT} offen sc1")
    k(f"s_mov_b64 exec, 0xff0000\nv_mov_b32 v{raw+4}, s{sT+3}\nv_mov_b32 v{raw+5}, s{sT+2}\ns_mov_b64 exec, 0xffffff")
    k(f"buffer_store_dwordx4 {v(raw+4,4)}, v{vA}, s[{sO}:{sO+3}], s{sT} offen offset:1024 sc1")
    k("s_mov_b64 exec, -1")
    if 'i' in pf:
        k.srd(sO, P_WIN, 640*3456)
        k(f"s_mul_i32 s{sT+1}, s{sTok}, {9*128}\nv_lshlrev_b32 v{vA+1}, 7, v{vL}\ns_mov_b64 exec, 0x1ff")
        k(f"buffer_load_dword v{vA+2}, v{vA+1}, s[{sO}:{sO+3}], s{sT+1} offen\ns_mov_b64 exec, -1")
    a = Alloc(36)
    fa = a(16, 4); fc = a(4, 4); fsx = a(4, 4)
    fX = [a(16, 4), a(16, 4)]; fW = [a(16, 4), a(16, 4)]
    fXa = a(4, 1); fWa = a()
    fN, fH = a(), a()
    fO = a(2, 2); fT = a(12, 4); fK = a(2, 2); fKa = a()
    assert a.n <= 168, a.n
    sI, sD, sKd, sB0 = 25, 26, 27, 28
    QS, STS, KVS = F_QS, F_STS, F_KVS
    k(f"""v_and_b32 v{fN}, 31, v{vL}
    v_lshrrev_b32 v{fH}, 5, v{vL}
    v_mov_b32 v{fO}, 0x3f803f80
    v_mov_b32 v{fO+1}, 0x3f803f80
    s_mov_b32 s{sKd}, 0
    s_lshl_b32 s{sT}, s{sWid}, 7
    v_lshl_add_u32 v{fKa}, v{vL}, 10, s{sT}""")
    def f_addr(rowb, woff):
        k(f"""v_bfe_u32 v{fT}, v{fN}, 1, 3
        v_xor_b32 v{fT}, v{fT}, v{fH}
        s_and_b32 s{sT}, s{sWid}, 1
        s_lshl_b32 s{sT}, s{sT}, 12
        s_add_u32 s{sT}, s{sT}, {F_B}
        v_lshl_add_u32 v{fT+1}, v{fN}, 7, s{sT}""")
        for q in range(4):
            k(f"v_xor_b32 v{fT+2}, {2*q}, v{fT}\nv_lshl_add_u32 v{fXa+q}, v{fT+2}, 4, v{fT+1}")
        k(f"""v_bfe_u32 v{fT}, v{vL}, 2, 2
        v_lshl_add_u32 v{fT}, v{fH}, 3, v{fT}
        v_mul_u32_u24 v{fT}, {rowb}, v{fT}
        v_bfe_u32 v{fT+1}, v{vL}, 4, 1
        v_lshl_add_u32 v{fT}, v{fT+1}, 5, v{fT}
        v_and_b32 v{fT+1}, 3, v{vL}
        v_lshl_add_u32 v{fT}, v{fT+1}, 3, v{fT}
        s_add_u32 s{sT}, {woff}, {F_B+8192}
        v_add_u32 v{fWa}, s{sT}, v{fT}""")
        for r in list(range(fa, fa + 16)) + list(range(fc, fc + 4)) + list(range(fsx, fsx + 4)):
            k(f"v_mov_b32 v{r}, 0")
    def f_pass(kind, rowb, first):
        uo = (0, 64, 128) if rowb == 192 else (0, 4096)
        cf = lambda b: fX[0] + 32 * b
        def rd(b):
            r = []
            if kind == 'i': return r
            if kind == 'x':
                for u, o in enumerate(uo):
                    for q in range(2):
                        d = cf(b) + 8*u + 4*q
                        r.append(f"ds_read_b64_tr_b16 {v(d,2)}, v{fWa} offset:{o+16*rowb*q}")
                        r.append(f"ds_read_b64_tr_b16 {v(d+2,2)}, v{fWa} offset:{o+16*rowb*q+4*rowb}")
                return r
            for q in range(4):
                r.append(f"ds_read_b128 {v(fX[b]+4*q,4)}, v{fXa+q}")
                r.append(f"ds_read_b64_tr_b16 {v(fW[b]+4*q,2)}, v{fWa} offset:{16*rowb*q}")
                r.append(f"ds_read_b64_tr_b16 {v(fW[b]+4*q+2,2)}, v{fWa} offset:{16*rowb*q+4*rowb}")
            return r
        def adv():
            if kind == 'i': return
            k(f"s_mov_b32 s{sD}, {F_S}\ns_cmp_eq_u32 s{sI}, 5\ns_cmov_b32 s{sD}, {hx(-5*F_S)}")
            if kind != 'x':
                for q in range(4): k(f"v_add_u32 v{fXa+q}, s{sD}, v{fXa+q}")
            k(f"v_add_u32 v{fWa}, s{sD}, v{fWa}")
        def work(b, r):
            w = []
            if kind in 'ns':
                for q in range(4):
                    X, W = fX[b] + 4*q, fW[b] + 4*q
                    A_, B_ = (X, W) if kind == 's' else (W, X)
                    w.append(f"v_mfma_f32_32x32x16_bf16 {v(fa,16)}, {v(A_,4)}, {v(B_,4)}, {v(fa,16)}")
                for x in interleave(w[:3], r) + w[3:]: k(x)
            elif kind == 'x':
                for x in r: k(x)
                for j in range(4):
                    for u in range(len(uo)):
                        k(f"v_mfma_f32_4x4x4_16b_bf16 {v(fa+4*u,4)}, {v(fO,2)}, {v(cf(b)+8*u+2*j,2)}, {v(fa+4*u,4)}")
                    if len(uo) == 2: k("s_nop 0")
        loop = k.lab("fl"); nb = k.lab("fnb"); e1 = k.lab("fe1"); e2 = k.lab("fe2"); e3 = k.lab("fe3")
        n = len(rd(0))
        k(f"s_mov_b32 s{sI}, 0\ns_barrier")
        for x in rd(0): k(x)
        k.label(loop)
        adv()
        if first:
            k(f"s_cmp_lg_u32 s{sI}, {xst}\ns_cbranch_scc1 {e1}\ns_waitcnt vmcnt({1 if 'i' in pf else 0})")
            k.label(e1)
        k("s_waitcnt lgkmcnt(0)\ns_barrier")
        work(0, rd(1))
        if first and kind == 'x':
            k(f"s_cmp_lg_u32 s{sI}, {xst}\ns_cbranch_scc1 {e2}\ns_cmp_lg_u32 s{sWid}, 7\ns_cbranch_scc1 {e2}\ns_lshl_b32 s{sT}, s{sBlk}, 7")
            gset(f"s{sT}", fT + 4, fT + 6)
            k.label(e2)
        k(f"s_add_u32 s{sI}, s{sI}, 1")
        adv()
        k(f"s_cmp_eq_u32 s{sI}, 9\ns_waitcnt lgkmcnt(0)\ns_cbranch_scc1 {nb}\ns_barrier")
        k.label(nb)
        work(1, rd(0))
        if rowb == 192:
            k(f"s_cmp_lg_u32 s{sI}, 7\ns_cbranch_scc1 {e3}\ns_mov_b32 s{sT}, {FL_Q}\ns_mov_b64 exec, 0xff")
            k(gload(f"s{sT}", fKa, fK))
            k("s_mov_b64 exec, -1")
            k.label(e3)
        k(f"s_add_u32 s{sI}, s{sI}, 1\ns_cmp_lt_u32 s{sI}, 10\ns_cbranch_scc1 {loop}")
        k("s_waitcnt lgkmcnt(0)")
    def kv_try():
        e = k.lab("kt")
        k("s_waitcnt vmcnt(0)\ns_mov_b64 exec, 0xff")
        gcheck(fK)
        k(f"s_mov_b64 exec, -1\ns_cbranch_vccnz {e}\ns_mov_b32 s{sKd}, 1")
        kv_first()
        k.label(e)
    def kv_first():
        k.srd(sB0, P_WS, SZ_KVG, WS_KV)
        k(f"""s_mul_i32 s{sT}, s{sWid}, {KV_G}
        s_mul_i32 m0, s{sWid}, {KV_TILE}
        v_lshlrev_b32 v{fT+8}, 4, v{vL}
        buffer_load_dwordx4 v{fT+8}, s[{sB0}:{sB0+3}], s{sT} offen sc1 lds
        buffer_load_dwordx4 v{fT+8}, s[{sB0}:{sB0+3}], s{sT} offen offset:1024 sc1 lds
        s_mov_b32 exec_hi, 0xf
        buffer_load_dwordx4 v{fT+8}, s[{sB0}:{sB0+3}], s{sT} offen offset:2048 sc1 lds
        s_mov_b64 exec, -1""")
    def f_stats(nu):
        k(f"""s_and_b32 s{sT}, s{sWid}, 1
        s_lshl_b32 s{sT}, s{sT}, 2
        s_add_u32 s{sT}, s{sT}, {F_CS}
        v_lshlrev_b32 v{fT}, 4, v{fN}
        v_lshl_add_u32 v{fT}, v{fH}, 3, v{fT}
        v_add_u32 v{fT}, s{sT}, v{fT}""")
        for u in range(nu): k(f"ds_write_b32 v{fT}, v{fa+4*u} offset:{512*u}")
        k("s_waitcnt lgkmcnt(0)")
    def f_fold(swap):
        k(f"""s_lshr_b32 s{sT}, s{sWid}, 1
        s_lshl_b32 s{sT}, s{sT}, 9
        s_add_u32 s{sT}, s{sT}, {F_CS}
        v_lshlrev_b32 v{fT}, 4, v{fN}
        v_lshl_add_u32 v{fT}, v{fH}, 3, v{fT}
        v_add_u32 v{fT}, s{sT}, v{fT}
        ds_read_b64 {v(fc,2)}, v{fT}
        s_and_b32 s{sT}, s{sWid}, 1
        s_lshl_b32 s{sT}, s{sT}, 7
        s_add_u32 s{sT}, s{sT}, {STS}
        v_lshl_add_u32 v{fT}, v{fN}, 2, s{sT}
        ds_read_b32 v{fT+4}, v{fT}
        ds_read_b32 v{fT+5}, v{fT} offset:256
        s_waitcnt lgkmcnt(2)
        v_add_f32 v{fc+2}, v{fc}, v{fc+1}
        v_and_b32 v{fc+3}, s{sMask}, v{fc+2}
        v_sub_f32 v{fc+2}, v{fc+2}, v{fc+3}
        v_cvt_pk_bf16_f32 v{fc}, v{fc+3}, v{fc+3}
        v_cvt_pk_bf16_f32 v{fc+1}, v{fc+2}, 0
        s_waitcnt lgkmcnt(0)
        v_and_b32 v{fT+2}, s{sMask}, v{fT+4}
        v_sub_f32 v{fT+3}, v{fT+4}, v{fT+2}
        v_cvt_pk_bf16_f32 v{fT+6}, -v{fT+2}, -v{fT+3}
        v_cvt_pk_bf16_f32 v{fT+7}, -v{fT+2}, 0
        s_nop 1""")
        A_, B_ = (fT + 6, fc) if swap else (fc, fT + 6)
        k(f"v_mfma_f32_32x32x8_bf16 {v(fa,16)}, {v(A_,2)}, {v(B_,2)}, {v(fa,16)}")
    qp = k.lab("qp"); kx = k.lab("kx"); ki = k.lab("ki"); kvv = k.lab("kvv"); kj = k.lab("kj"); q1 = k.lab("q1"); q1x = k.lab("q1x"); qe = k.lab("qe"); qj = k.lab("qj"); q2x = k.lab("q2x")
    pk = fX[0]
    k(f"s_cmp_lg_u32 s{sHG}, 7\ns_cbranch_scc1 {q1}")
    k(f"s_lshr_b32 s{sT+1}, s{sWid}, 1\ns_lshl_b32 s{sT+1}, s{sT+1}, 12")
    f_addr(40, f"s{sT+1}")
    k(f"s_and_b32 s{sT+3}, s{sWid}, 1\ns_mul_i32 s{sT+3}, s{sT+3}, {KV_G}\ns_add_u32 s{sT+3}, s{sT+3}, {KVS}")
    k(f"s_cmp_ge_u32 s{sWid}, 6\ns_cbranch_scc1 {kx}\ns_cmp_ge_u32 s{sWid}, 4\ns_cbranch_scc1 {ki}\ns_cmp_ge_u32 s{sWid}, 2\ns_cbranch_scc1 {kvv}")
    f_pass('n', 40, True)
    k("s_barrier")
    f_fold(False)
    k(f"v_lshl_add_u32 v{fT}, v{vL}, 4, s{sT+3}\nv_lshl_add_u32 v{fT+1}, v{fN}, 2, s{sT+3}\ns_nop 7\ns_nop 1")
    for i in range(12): k(f"v_mul_f32 v{fa+i}, v{fT+5}, v{fa+i}")
    for i in range(6): k(f"v_cvt_pk_bf16_f32 v{pk+i}, v{fa+2*i}, v{fa+2*i+1}")
    k(f"""v_permlane32_swap_b32 v{pk}, v{pk+2}
    v_permlane32_swap_b32 v{pk+1}, v{pk+3}
    ds_write_b128 v{fT}, {v(pk,4)} offset:{KV_KA}
    s_mov_b32 exec_hi, 0
    ds_write_b32 v{fT+1}, v{pk+4} offset:{KV_KB}
    ds_write_b32 v{fT+1}, v{pk+5} offset:{KV_KB+128}
    s_mov_b64 exec, -1
    s_branch {kj}""")
    k.label(kvv)
    f_pass('s', 40, True)
    k("s_barrier")
    f_fold(True)
    k(f"v_lshl_add_u32 v{fT}, v{fH}, 4, s{sT}")
    for j in range(4): k(f"ds_read_b128 {v(fW[0]+4*j,4)}, v{fT} offset:{256+32*j}")
    k(f"""v_mul_u32_u24 v{fT+1}, 336, v{fH}
    v_lshl_add_u32 v{fT+1}, v{fN}, 4, v{fT+1}
    v_add_u32 v{fT+1}, s{sT+3}, v{fT+1}
    v_cmp_eq_u32 vcc, 20, v{fN}
    s_nop 3
    s_waitcnt lgkmcnt(0)""")
    for i in range(16): k(f"v_mul_f32 v{fa+i}, v{fW[0]+i}, v{fa+i}")
    for i in range(8): k(f"v_cvt_pk_bf16_f32 v{pk+i}, v{fa+2*i}, v{fa+2*i+1}")
    for i in range(8): k(f"v_cndmask_b32 v{pk+i}, v{pk+i}, v{fO}, vcc")
    k(f"""s_mov_b32 exec_lo, 0x1fffff
    s_mov_b32 exec_hi, 0x1fffff
    ds_write_b128 v{fT+1}, {v(pk,4)} offset:{KV_V}
    ds_write_b128 v{fT+1}, {v(pk+4,4)} offset:{KV_V+672}
    s_mov_b64 exec, -1
    s_branch {kj}""")
    k.label(ki)
    f_pass('i', 40, True)
    k(f"s_barrier\ns_branch {kj}")
    k.label(kx)
    k(f"s_and_b32 s{sT+1}, s{sWid}, 1\ns_mul_i32 s{sT+1}, s{sT+1}, {32*40}")
    f_addr(40, f"s{sT+1}")
    f_pass('x', 40, True)
    f_stats(2)
    k("s_barrier\ns_barrier")
    k.srd(sB0, P_WS, SZ_KVG, WS_KV)
    k(f"v_lshlrev_b32 v{fT+1}, 4, v{vL}\nv_add_u32 v{fT}, s{sT+3}, v{fT+1}")
    for i in range(3): k(f"ds_read_b128 {v(pk+4*i,4)}, v{fT} offset:{1024*i}")
    k(f"""s_lshl_b32 s{sT}, s{sT64}, 1
    s_and_b32 s{sT+1}, s{sWid}, 1
    s_add_u32 s{sT}, s{sT}, s{sT+1}
    s_mul_i32 s{sT+1}, s{sT}, {KV_G}
    s_waitcnt lgkmcnt(0)
    buffer_store_dwordx4 {v(pk,4)}, v{fT+1}, s[{sB0}:{sB0+3}], s{sT+1} offen sc1
    buffer_store_dwordx4 {v(pk+4,4)}, v{fT+1}, s[{sB0}:{sB0+3}], s{sT+1} offen offset:1024 sc1
    s_mov_b32 exec_hi, 0xff
    buffer_store_dwordx4 {v(pk+8,4)}, v{fT+1}, s[{sB0}:{sB0+3}], s{sT+1} offen offset:2048 sc1
    s_mov_b64 exec, -1
    s_lshl_b32 s{sT}, s{sT}, 7
    s_add_u32 s{sT}, s{sT}, {FL_Q}
    s_waitcnt vmcnt(0)""")
    gset(f"s{sT}", fT + 4, fT + 6)
    k("s_barrier")
    k(f"s_and_b32 s{sT+1}, s{sWid}, 1\ns_mul_i32 s{sT+1}, s{sT+1}, {32*192}")
    f_addr(192, f"s{sT+1}")
    f_pass('x', 192, False)
    k(f"s_branch {q2x}")
    k.label(kj)
    k("s_waitcnt lgkmcnt(0)\ns_barrier\ns_barrier")
    k(f"s_lshr_b32 s{sT+1}, s{sWid}, 1\ns_lshl_b32 s{sT+1}, s{sT+1}, 6")
    f_addr(192, f"s{sT+1}")
    f_pass('n', 192, False)
    k(f"s_branch {qe}")
    k.label(q1)
    k(f"""s_lshr_b32 s{sT+1}, s{sWid}, 1
    s_lshl_b32 s{sT+1}, s{sT+1}, 6
    s_and_b32 s{sT+2}, s{sWid}, 1
    s_mul_i32 s{sT+2}, s{sT+2}, {32*192}
    s_cmp_ge_u32 s{sWid}, 6
    s_cselect_b32 s{sT+1}, s{sT+2}, s{sT+1}""")
    f_addr(192, f"s{sT+1}")
    k(f"s_cmp_ge_u32 s{sWid}, 6\ns_cbranch_scc1 {q1x}")
    f_pass('n', 192, True)
    k.label(qe)
    k("s_barrier")
    f_fold(False)
    kv_try()
    k(f"""v_mul_f32 v{fT+5}, {fl(QSCALE)}, v{fT+5}
    s_and_b32 s{sT}, s{sWid}, 1
    s_mul_i32 s{sT}, s{sT}, {32*192}
    s_lshr_b32 s{sT+1}, s{sWid}, 1
    s_lshl_b32 s{sT+1}, s{sT+1}, 6
    s_add_u32 s{sT}, s{sT}, s{sT+1}
    s_add_u32 s{sT}, s{sT}, {QS}
    v_mul_u32_u24 v{fT}, 192, v{fN}
    v_lshl_add_u32 v{fT}, v{fH}, 3, v{fT}
    v_add_u32 v{fT}, s{sT}, v{fT}
    s_nop 1""")
    for i in range(16): k(f"v_mul_f32 v{fa+i}, v{fT+5}, v{fa+i}")
    for i in range(8): k(f"v_cvt_pk_bf16_f32 v{pk+i}, v{fa+2*i}, v{fa+2*i+1}")
    for j in range(4): k(f"ds_write_b64 v{fT}, {v(pk+2*j,2)} offset:{16*j}")
    k(f"s_waitcnt lgkmcnt(0)\ns_branch {qj}")
    k.label(q1x)
    f_pass('x', 192, True)
    k.label(q2x)
    f_stats(3)
    k("s_barrier")
    kv_try()
    k.label(qj)
    k.label(skipA)
    k(f"s_mov_b32 s40, s{sKd}\nv_mov_b32 v104, v{fKa}")
    def att_wait(step):
        t = 104
        d = k.lab("kvd")
        k(f"s_cmp_lg_u32 s40, 0\ns_cbranch_scc1 {d}\ns_mov_b32 s41, {FL_Q}")
        gpoll("s41", t, t + 2, 0xff, pslp)
        step()
        k.label(d)
    def att_tail(step):
        t = 104
        def pieces(p0, p1):
            for p in range(p0, p1):
                if p % 4 == 0:
                    k(f"s_mov_b32 m0, {1024*p}")
                    k("s_add_u32 s40, s40, 4096" if p else "s_nop 0")
                k(f"buffer_load_dwordx4 v{t}, s[28:31], s40 offen offset:{1024*(p%4)} sc1 lds")
        if step == 0:
            k(f"v_and_b32 v{t}, 31, v{vL}\nv_lshlrev_b32 v{t}, 7, v{t}\ns_mov_b32 s40, {FL_W}")
            k(gload("s40", t, t + 2))
            if sent: lds_wait(L_F + F_XC, t + 4, t + 5, 2)
        elif "skip" in MX:
            pass
        elif step == 1:
            ok = k.lab("wfok")
            k("s_waitcnt vmcnt(12)")
            gcheck(t + 2)
            k(f"s_cbranch_vccz {ok}")
            gpoll("s40", t, t + 2, None, 4)
            k.label(ok)
            k.srd(28, P_WS, SZ_WF, WS_WF)
            k(f"s_lshr_b32 s40, s2, 5\ns_mul_i32 s40, s40, {47*5120}\nv_lshlrev_b32 v{t}, 4, v{vL}")
            pieces(0, tsplit)
            if not sent: k(f"s_waitcnt vmcnt({tsplit})")
        else:
            pieces(tsplit, 60)
            k(f"v_mov_b32 v{t}, {L_F+F_OC}\nv_mov_b32 v{t+1}, 10\ns_waitcnt vmcnt(0)\nds_write_b32 v{t}, v{t+1}")
    n = emit_attn(k, sT64, sHG, sWid, vL, P_WS, 8, 4, 0, L_F, mega=att_wait, budget=sBud, gset=(None if sent else gset), tb=tb, tail=att_tail, yph=yph, bal=bal)
    assert n <= 104, n

    k.label(gem)
    def sp(name):
        if name in SP: k.stamp(1 + SP.index(name))
    sA, sB, sO = 8, 12, 16
    sW, sCnt, sSoA, sBaseA, sSoB, sStepB, sM0A, sM0B, sMask, sNeed, sI = range(20, 31)
    sT = 32
    a = Alloc(2)
    vFw, vFa, vFl, vXw, vXa = a(), a(), a(), a(), a()
    vOne = a()
    acc = [a(16, 4), a(16, 4)]
    fs = [[[a(4, 4) for j in range(3)] for q in range(2)] for b in range(2)]
    z1 = a(16, 4); z2 = a(16, 4)
    vD = a(4, 1); vDb = a(2, 1)
    vWa = a(4, 1); vZa = a(2, 1)
    vN, vH, vBias, vTok = a(), a(), a(), a()
    vOnes = a(2, 2)
    vT = a(16, 4)
    assert a.n <= 168, a.n
    tmp = fs[1][0][0]
    sp('ka')
    k("s_setprio 3")
    k(f"""s_sub_u32 s{sW}, s{sWid}, 8
    v_lshrrev_b32 v{vT}, 3, v{vL}
    v_and_b32 v{vT+1}, 7, v{vL}
    s_lshl_b32 s{sT}, s{sTB}, 2
    s_add_u32 s{sT}, s{sT}, s{sW}
    s_mul_i32 s{sBaseA}, s{sT}, {32*1280}
    s_lshl_b32 s{sM0A}, s{sW}, 12
    s_add_u32 s{sM0A}, s{sM0A}, {L_A}
    s_lshl_b32 s{sM0B}, s{sW}, 11
    s_add_u32 s{sM0B}, s{sM0B}, {L_Z}""")
    def a_addr(stride):
        k(f"v_lshrrev_b32 v{vT}, 3, v{vL}\nv_and_b32 v{vT+1}, 7, v{vL}")
        for p in range(4):
            k(f"""v_add_u32 v{vT+2}, {8*p}, v{vT}
            v_bfe_u32 v{vT+3}, v{vT+2}, 1, 3
            v_xor_b32 v{vT+3}, v{vT+3}, v{vT+1}
            v_mul_u32_u24 v{vT+2}, {stride}, v{vT+2}
            v_lshl_add_u32 v{vD+p}, v{vT+3}, 4, v{vT+2}""")
            if p:
                k(f"v_subrev_u32 v{vD+p}, {1024*p}, v{vD+p}")
    def b_addr(stride):
        k(f"""v_lshrrev_b32 v{vT}, 3, v{vL}
        v_and_b32 v{vT+1}, 7, v{vL}
        v_bfe_u32 v{vT+2}, v{vL}, 4, 1
        v_lshlrev_b32 v{vT+2}, 2, v{vT+2}
        v_xor_b32 v{vT+1}, v{vT+1}, v{vT+2}
        v_mul_u32_u24 v{vT}, {stride}, v{vT}
        v_lshl_add_u32 v{vDb}, v{vT+1}, 4, v{vT}
        v_add_u32 v{vDb+1}, {8*stride-1024}, v{vDb}""")
    def setup_rest():
        k(f"""s_lshl_b32 s{sT+1}, s{sW}, 2
        s_add_u32 s{sT+2}, s{sT+1}, {L_F+F_G}
        v_mov_b32 v{vFw}, s{sT+2}
        s_add_u32 s{sT+2}, s{sT+1}, {L_F+F_AUX}
        v_mov_b32 v{vXw}, s{sT+2}
        v_and_b32 v{vFa}, 3, v{vL}
        v_lshlrev_b32 v{vFa}, 2, v{vFa}
        v_add_u32 v{vXa}, {L_F+F_AUX}, v{vFa}
        v_add_u32 v{vFa}, {L_F+F_G}, v{vFa}
        v_and_b32 v{vN}, 31, v{vL}
        v_lshrrev_b32 v{vH}, 5, v{vL}
        s_mov_b32 s{sMask}, 0xffff0000
        s_mov_b32 s{sCnt}, 0
        v_mov_b32 v{vOne}, 1
        v_mov_b32 v{vOnes}, 0x3f803f80
        v_mov_b32 v{vOnes+1}, 0x3f803f80
        s_lshl_b32 s{sT+1}, s{sTB}, 7
        s_lshl_b32 s{sT+2}, s{sW}, 5
        s_add_u32 s{sT+1}, s{sT+1}, s{sT+2}
        v_add_u32 v{vTok}, s{sT+1}, v{vN}
        v_bfe_u32 v{vT+1}, v{vN}, 1, 3
        v_xor_b32 v{vT+1}, v{vT+1}, v{vH}
        v_lshlrev_b32 v{vT+2}, 7, v{vN}
        v_add_u32 v{vT+2}, s{sM0A}, v{vT+2}""")
        for q in range(4):
            k(f"v_xor_b32 v{vT+3}, {2*q}, v{vT+1}\nv_lshl_add_u32 v{vWa+q}, v{vT+3}, 4, v{vT+2}")
        for i in range(16):
            k(f"v_mov_b32 v{z1+i}, 0")
        nonce()
    def nat_read_addr(rowb):
        k(f"""v_bfe_u32 v{vT}, v{vL}, 2, 2
        v_lshl_add_u32 v{vT}, v{vH}, 3, v{vT}
        v_mul_u32_u24 v{vT}, {rowb}, v{vT}
        v_bfe_u32 v{vT+1}, v{vL}, 4, 1
        v_lshl_add_u32 v{vT}, v{vT+1}, 5, v{vT}
        v_and_b32 v{vT+1}, 3, v{vL}
        v_lshl_add_u32 v{vT}, v{vT+1}, 3, v{vT}""")
        if rowb == 128:
            k(f"""v_bfe_u32 v{vT+1}, v{vL}, 3, 1
            v_lshl_add_u32 v{vT}, v{vT+1}, 6, v{vT}
            v_xor_b32 v{vT+1}, 64, v{vT}
            v_add_u32 v{vZa}, {L_Z}, v{vT}
            v_add_u32 v{vZa+1}, {L_Z}, v{vT+1}""")
        else:
            k(f"v_add_u32 v{vZa}, {L_Z}, v{vT}\nv_add_u32 v{vZa+1}, {L_Z+4096}, v{vT}")

    def spinw(va, val):
        l = k.lab("gspin"); d = k.lab("gspun")
        k.label(l)
        k(f"ds_read_b32 v{vFl}, v{va}\ns_waitcnt lgkmcnt(0)\nv_cmp_gt_u32 vcc, {val}, v{vFl}\ns_cbranch_vccz {d}\ns_sleep 1")
        again(l)
        k.label(d)
    def gsync():
        k(f"s_add_u32 s{sCnt}, s{sCnt}, 1\nv_mov_b32 v{vFl}, s{sCnt}\nds_write_b32 v{vXw}, v{vFl}")
        spinw(vXa, f"s{sCnt}")
    def set_flag(base, col=None):
        l = k.lab("nf")
        k(f"s_cmp_lg_u32 s{sW}, 0\ns_cbranch_scc1 {l}")
        k(f"s_lshl_b32 s{sT}, s{sTB}, 11\ns_lshl_b32 s{sT+1}, s{sFG}, 7\ns_add_u32 s{sT}, s{sT}, s{sT+1}\ns_add_u32 s{sT}, s{sT}, {base}")
        gset(f"s{sT}", vT, vT + 2)
        k.label(l)

    def ring_free():
        k(f"v_mov_b32 v{vT}, {L_F+F_GO}\ns_mov_b64 exec, 1\nds_add_u32 v{vT}, v{vOne}\ns_mov_b64 exec, -1")
    def set_wflag(base):
        k(f"s_lshl_b32 s{sT}, s{sTB}, 2\ns_add_u32 s{sT}, s{sT}, s{sW}\ns_lshl_b32 s{sT}, s{sT}, 11\ns_lshl_b32 s{sT+1}, s{sFG}, 7\ns_add_u32 s{sT}, s{sT}, s{sT+1}\ns_add_u32 s{sT}, s{sT}, {base}")
        k("s_waitcnt vmcnt(0)")
        gset(f"s{sT}", vT, vT + 2)
    def prefetch():
        if not ('q' in pf or 'i' in pf): return
        k(f"""s_min_u32 s{sT}, s{sFG}, 14
        s_sub_u32 s{sT}, s{sT}, 10
        s_lshl_b32 s{sT+1}, s{sW}, 4
        s_add_u32 s{sT+1}, s{sT+1}, s{sTB}
        s_mul_i32 s{sT+1}, s{sT+1}, 5
        s_add_u32 s{sT+1}, s{sT+1}, s{sT}
        s_lshl_b32 s{sT+1}, s{sT+1}, 13
        v_lshlrev_b32 v{vT+8}, 7, v{vL}""")
        if 'q' in pf:
            k.srd(sO, P_WQ, 640*1280)
            k(f"buffer_load_dword v{vT+9}, v{vT+8}, s[{sO}:{sO+3}], s{sT+1} offen")
        if 'i' in pf:
            k.srd(sO, P_WIN, 640*3456)
            k(f"buffer_load_dword v{vT+10}, v{vT+8}, s[{sO}:{sO+3}], s{sT+1} offen")
    def prefetch_sp():
        if 's' not in pf: return
        att_progress(1, vT + 5, 8)
        k(f"""s_sub_u32 s{sT}, s{sFG}, 14
        s_lshl_b32 s{sT}, s{sT}, 2
        s_add_u32 s{sT}, s{sT}, s{sW}
        s_lshl_b32 s{sT}, s{sT}, 16
        s_lshl_b32 s{sT+1}, s{sTB}, 19
        s_add_u32 s{sT}, s{sT}, s{sT+1}
        v_lshlrev_b32 v{vT+8}, 7, v{vL}""")
        k.srd(sO, P_WSP, 2048*4096)
        for i in range(8):
            k(f"buffer_load_dword v{vT+9}, v{vT+8}, s[{sO}:{sO+3}], s{sT} offen {ntw}\ns_add_u32 s{sT}, s{sT}, 8192")
            if i % 2 == 1: k("s_waitcnt vmcnt(0)")
    def u_addr():
        k.srd(sO, P_WS, SZ_OUF, WS_OUF)
        k(f"""v_lshrrev_b32 v{vT+1}, 4, v{vTok}
        v_mul_u32_u24 v{vT+1}, {47*1024}, v{vT+1}
        v_and_b32 v{vT+2}, 15, v{vTok}
        v_lshl_add_u32 v{vT+1}, v{vT+2}, 4, v{vT+1}
        v_lshl_add_u32 v{vT+1}, v{vH}, 8, v{vT+1}
        s_lshl_b32 s{sT}, s{sFG}, 11
        s_add_u32 s{sT}, s{sT}, {20*1024}""")
    def poison(with_u):
        pz = vT + 4
        for i in range(4): k(f"v_mov_b32 v{pz+i}, -1")
        if with_u:
            l = k.lab("pu")
            u_addr()
            for i in range(4):
                if i == 2: k(f"s_cmp_eq_u32 s{sFG}, 13\ns_cbranch_scc1 {l}")
                k(f"buffer_store_dwordx4 {v(pz,4)}, v{vT+1}, s[{sO}:{sO+3}], s{sT} offen offset:{512*i} sc1")
            k.label(l)
        else:
            k.srd(sO, P_WS, SZ_OUF, WS_OUF)
        k(f"""s_lshl_b32 s{sT}, s{sT64}, 2
        s_add_u32 s{sT}, s{sT}, s{sW}
        s_mul_i32 s{sT}, s{sT}, {47*1024}
        s_mul_i32 s{sT+1}, s{sHG}, 2560
        s_add_u32 s{sT}, s{sT}, s{sT+1}
        v_lshlrev_b32 v{vT+2}, 4, v{vL}
        buffer_store_dwordx4 {v(pz,4)}, v{vT+2}, s[{sO}:{sO+3}], s{sT} offen sc1
        buffer_store_dwordx4 {v(pz,4)}, v{vT+2}, s[{sO}:{sO+3}], s{sT} offen offset:1024 sc1
        s_mov_b32 exec_hi, 0
        buffer_store_dwordx4 {v(pz,4)}, v{vT+2}, s[{sO}:{sO+3}], s{sT} offen offset:2048 sc1
        s_mov_b32 exec_hi, -1""")
    def poison_done():
        k(f"v_mov_b32 v{vT+4}, {L_F+F_XC}\nds_write_b32 v{vT+4}, v{vOne}")
    def att_progress(val, va, slp):
        l = k.lab("ac"); d = k.lab("acd")
        k(f"v_and_b32 v{va}, 7, v{vL}\nv_lshlrev_b32 v{va}, 2, v{va}\nv_add_u32 v{va}, {L_F}, v{va}")
        k.label(l)
        k(f"ds_read_b32 v{vFl}, v{va}\ns_waitcnt lgkmcnt(0)\nv_cmp_gt_u32 vcc, {val}, v{vFl}\ns_cbranch_vccz {d}\ns_sleep {slp}")
        again(l)
        k.label(d)
    vm = []
    def vop(tag, txt):
        vm.append(tag); return txt
    def newer(tags):
        idx = [i for i, t in enumerate(vm) if t in tags]
        return len(vm) - 1 - max(idx) if idx else 63
    cohA = [ntx]; cohB = [""]
    def la(g, p): return vop(("A", g), f"buffer_load_dwordx4 v{vD+p}, s[{sA}:{sA+3}], s{sSoA} offen offset:{1024*p} {cohA[0]} lds")
    def lb(g, p): return vop(("B", g), f"buffer_load_dwordx4 v{vDb+p}, s[{sB}:{sB+3}], s{sSoB} offen offset:{1024*p} {cohB[0]} lds")
    wrapA = [False]; wrapB = [False]
    def advA():
        if wrapA[0]: k(f"s_add_u32 s37, s37, 128\ns_and_b32 s37, s37, 0xfff\ns_add_u32 s{sSoA}, s38, s37")
        else: k(f"s_add_u32 s{sSoA}, s{sSoA}, 128")
    def advB():
        if wrapB[0]: k(f"s_add_u32 s39, s39, 4096\ns_and_b32 s39, s39, 0x1ffff\ns_add_u32 s{sSoB}, s40, s39")
        else: k(f"s_add_u32 s{sSoB}, s{sSoB}, s{sStepB}")
    vWe = z2
    def abuf(g):
        if deep and g in (3, 4, 5, 9):
            e = {3: 0, 4: 1, 5: 2, 9: 0}[g]
            return vWe, 16384 * e, 16384 * e - 49152
        return vWa, 16384 * (g % 3), 16384 * (g % 3)
    def issue_a(g):
        k(f"s_add_u32 m0, s{sM0A}, {hx(abuf(g)[2])}\ns_nop 0")
        for p in range(4): k(la(g, p))
        k(f"s_add_u32 s{sSoA}, s{sSoA}, 128")
    def issue_b(g):
        k(f"s_add_u32 m0, s{sM0B}, {8192*(g%6)}\ns_nop 0")
        for p in range(2): k(lb(g, p))
        advB()
    def reads(ty, half, b, g):
        ba, bz = g % 3, g % 6
        r = []
        for q in range(2):
            ks = 2 * half + q
            r.append(f"ds_read_b128 {v(fs[b][q][0],4)}, v{abuf(g)[0]+ks} offset:{abuf(g)[1]}")
            for u in range(2):
                d = fs[b][q][1+u]
                if ty == "frag":
                    r.append(f"ds_read_b128 {v(d,4)}, v{vZa} offset:{8192*bz+1024*ks+4096*u}")
                else:
                    rb = 128 if ty == "nat" else 40
                    r.append(f"ds_read_b64_tr_b16 {v(d,2)}, v{vZa+u} offset:{8192*bz+16*rb*ks}")
                    r.append(f"ds_read_b64_tr_b16 {v(d+2,2)}, v{vZa+u} offset:{8192*bz+16*rb*ks+4*rb}")
        return r
    vSx, vSq, vCs = z1, z1 + 4, [z1 + 8, z1 + 12]
    prio = [3]
    pat = [patz]
    inloop = [False]
    cold = []
    def half(b, hf, zero, stats, kv, rd, dm):
        fast = prio[0] == 3
        n = len(rd)
        cut = [0, n, n, n] if fast else [0, (n + 1) // 2, n, n]
        cur = [3]
        def setp(p):
            if not fast and cur[0] != p:
                k(f"s_setprio {p}"); cur[0] = p
        for q in range(2):
            X = fs[b][q][0]
            for i in range(2):
                j = 2 * q + i
                A_, B_ = (X, fs[b][q][1+i]) if (kv and i == 1) else (fs[b][q][1+i], X)
                c = "0" if (zero and q == 0) else v(acc[i], 16)
                if stats:
                    for u in range(2):
                        k(f"v_mfma_f32_4x4x4_16b_bf16 {v(vCs[u],4)}, {v(vOnes,2)}, {v(fs[b][q][1+u]+2*i,2)}, {v(vCs[u],4)}")
                setp(int(pat[0][4*hf + j]))
                abl = MX if (inloop[0] or "all" in MX) else ""
                k(f"v_mfma_f32_32x32x16_bf16 {v(acc[i],16)}, {v(A_,4)}, {v(B_,4)}, {c}" if ("nomf" not in abl and "m16" not in abl) else ("s_nop 15" if "nomf" in abl else f"v_mfma_f32_16x16x32_bf16 {v(acc[i]+8*q,4)}, {v(A_,4)}, {v(B_,4)}, {v(acc[i]+8*q,4)}\nv_mfma_f32_16x16x32_bf16 {v(acc[i]+8*q+4,4)}, {v(fs[b][1-q][1+i],4)}, {v(B_,4)}, {v(acc[i]+8*q+4,4)}"))
                if "nord" in abl: rd = ["s_nop 0"] * len(rd)
                if "nodma" in abl: dm = [[], [], [], []]
                if j < 3 and cut[j+1] > cut[j]:
                    setp(rprio)
                    for x in rd[cut[j]:cut[j+1]]: k(x)
                if dm[j]:
                    setp(prio[0])
                    for f_ in dm[j]:
                        if thr is not None and not fast: k(f"s_waitcnt vmcnt({thr})")
                        k(f_())
        setp(3)
    def body(g, ty, ty_next, first=False, stats=False, kv=False, doA=True, doB=True, loop=False, tailA=None, tailB=None, strict=False, ahead=3):
        k(f"ds_read_b32 v{vFl}, v{vFa}")
        if doB or tailB: k(f"s_add_u32 m0, s{sM0B}, {8192*((g+4)%6)}")
        if tailB: k(tailB)
        k("s_waitcnt lgkmcnt(1)")
        dm = [[], [], [], []]
        if doB or tailB:
            dm = [[], [lambda: lb(g + 4, 0)], [lambda: lb(g + 4, 1)], []]
        half(0, 0, first, stats, kv, reads(ty, 1, 1, g), dm)
        if doB: advB()
        if doA or tailA: k(f"s_add_u32 m0, s{sM0A}, {hx(abuf(g+ahead)[2])}")
        if tailA: k(tailA)
        n = 8 if loop else min(63, newer({("A", g + 1), ("B", g + 2)}))
        if inloop[0] and "nowait" in MX: n = 40
        ok = k.lab("gok")
        need = f"s{sNeed}" if loop else str(g + (2 if strict else 1))
        k(f"s_mov_b64 exec, 1\ns_waitcnt vmcnt({n}) lgkmcnt(0)\nds_add_u32 v{vFw}, v{vOne}\ns_mov_b64 exec, -1")
        if inloop[0] and "nochk" in MX:
            pass
        elif not strict:
            sl = k.lab("gslow")
            k(f"v_cmp_gt_u32 vcc, {need}, v{vFl}\ns_cbranch_vccnz {sl}")
            cold.append((sl, need, ok))
        else:
            spinw(vFa, need)
        k.label(ok)
        dm = [[], [], [], []]
        if doA or tailA:
            dm = [[lambda p=p: la(g + ahead, p)] for p in range(4)]
        half(1, 1, False, stats, kv, reads(ty_next, 0, 0, g + 1) if ty_next else [], dm)
        if doA: advA()
        if loop: k(f"s_add_u32 s{sNeed}, s{sNeed}, 1")
    def hi(): pass
    def lo(): pass
    def prologue(g0, ty, strong=False, aux=False):
        if g0 == 0 and deep:
            for q in range(4): k(f"v_subrev_u32 v{vWe+q}, 49152, v{vWa+q}")
        else:
            issue_a(g0 + 1); issue_b(g0 + 1); issue_a(g0 + 2); issue_b(g0 + 2); issue_b(g0 + 3)
        k(f"s_waitcnt vmcnt({newer({('A', g0), ('B', g0 + (2 if strong else 0))})})")
        k(f"v_mov_b32 v{vFl}, {g0+1}\nds_write_b32 v{vFw}, v{vFl}")
        if aux: gsync()
        else: spinw(vFa, g0 + 1)
        for r in reads(ty, 0, 0, g0): k(r)
    def src_win(off_const):
        k.srd(sB, P_WIN, 640*3456)
        k(f"""s_mul_i32 s{sSoB}, s{sW}, {16*3456}
        s_lshl_b32 s{sT}, s{sFG}, 7
        s_add_u32 s{sSoB}, s{sSoB}, s{sT}
        s_add_u32 s{sSoB}, s{sSoB}, {off_const}
        s_mov_b32 s{sStepB}, {64*3456}""")
    def load_mr():
        lds_wait(L_F + F_XR, vT, vT + 1)
        k.srd(sO, P_WS, SZ_XN, WS_XN)
        k(f"v_mul_u32_u24 v{vT+2}, {XN_ST}, v{vTok}")
        k(vop("mr", f"buffer_load_dwordx2 {v(vT+8,2)}, v{vT+2}, s[{sO}:{sO+3}], 0 offen offset:1280 sc1"))
    def src_xn():
        k.srd(sA, P_WS, SZ_XN, WS_XN)
        k(f"s_lshl_b32 s{sBaseA}, s{sTB}, 2\ns_add_u32 s{sBaseA}, s{sBaseA}, s{sW}\ns_mul_i32 s{sBaseA}, s{sBaseA}, {32*XN_ST}\ns_mov_b32 s{sSoA}, s{sBaseA}")
    def ln_fold(kv):
        mu, r = vT + 8, vT + 9
        k(f"""s_waitcnt vmcnt({newer({'mr'})})
        v_and_b32 v{vT+2}, s{sMask}, v{mu}
        v_sub_f32 v{vT+3}, v{mu}, v{vT+2}
        v_cvt_pk_bf16_f32 v{vT}, -v{vT+2}, -v{vT+3}
        v_cvt_pk_bf16_f32 v{vT+1}, -v{vT+2}, 0""")
        for u in range(2):
            c = vCs[u]
            k(f"""v_and_b32 v{c+3}, s{sMask}, v{c+2}
            v_sub_f32 v{c+2}, v{c+2}, v{c+3}
            v_cvt_pk_bf16_f32 v{c}, v{c+3}, v{c+3}
            v_cvt_pk_bf16_f32 v{c+1}, v{c+2}, 0""")
        k("s_nop 1")
        for u in range(2):
            A_, B_ = (vT, vCs[u]) if (kv and u == 1) else (vCs[u], vT)
            k(f"v_mfma_f32_32x32x8_bf16 {v(acc[u],16)}, {v(A_,2)}, {v(B_,2)}, {v(acc[u],16)}")
    def swap4(b0):
        k(f"v_permlane32_swap_b32 v{b0}, v{b0+2}\nv_permlane32_swap_b32 v{b0+1}, v{b0+3}")
    def gelu(u, dst, stats):
        t = acc[u]
        for g0 in range(0, 16, 8):
            R = range(g0, g0 + 8)
            for i in R: k(f"v_mul_f32 v{tmp+i-g0}, v{t+i}, v{t+i}")
            for i in R: k(f"v_fmaak_f32 v{tmp+i-g0}, v{vT+12}, v{tmp+i-g0}, {fl(GC0)}")
            for i in R: k(f"v_mul_f32 v{tmp+i-g0}, v{tmp+i-g0}, v{t+i}")
            for i in R: k(f"v_exp_f32 v{tmp+i-g0}, v{tmp+i-g0}")
            for i in R: k(f"v_add_f32 v{tmp+i-g0}, 1.0, v{tmp+i-g0}")
            for i in R: k(f"v_rcp_f32 v{tmp+i-g0}, v{tmp+i-g0}")
            for i in R: k(f"v_mul_f32 v{tmp+i-g0}, v{tmp+i-g0}, v{t+i}")
            for i in range(0, 8, 2): k(f"v_cvt_pk_bf16_f32 v{dst+(g0+i)//2}, v{tmp+i}, v{tmp+i+1}")
            if stats:
                for i in range(8):
                    k(f"v_add_f32 v{vT+10}, v{vT+10}, v{tmp+i}\nv_fmac_f32 v{vT+11}, v{tmp+i}, v{tmp+i}")

    rep = k.lab("rep"); b10 = k.lab("b10"); outp = k.lab("outp"); outq = k.lab("outq"); lq = k.lab("lq"); kw = k.lab("kw"); kwd = k.lab("kwd")
    vx, vw = z2, z2 + 2
    k(f"v_lshrrev_b32 v{vT}, 3, v{vL}\nv_and_b32 v{vT+1}, 7, v{vL}")
    for p in range(2):
        k(f"""v_add_u32 v{vT+2}, {8*p}, v{vT}
        v_bfe_u32 v{vT+3}, v{vT+2}, 1, 3
        v_xor_b32 v{vT+3}, v{vT+3}, v{vT+1}
        v_mul_u32_u24 v{vT+2}, 1280, v{vT+2}
        v_lshl_add_u32 v{vx+p}, v{vT+3}, 4, v{vT+2}""")
    k(f"v_subrev_u32 v{vx+1}, 1024, v{vx+1}")
    k.srd(sA, P_X, SZ_Q)
    k(f"""s_lshl_b32 s{sBaseA}, s{sT64}, 2
    s_add_u32 s{sBaseA}, s{sBaseA}, s{sW}
    s_mul_i32 s{sBaseA}, s{sBaseA}, {16*1280}
    s_lshl_b32 s{sNeed}, s{sW}, 11
    s_add_u32 s{sNeed}, s{sNeed}, {F_B}""")
    sKr = 36
    def l_rot():
        if frot: k(f"s_lshr_b32 s{sKr}, s2, 3\ns_mul_i32 s{sKr}, s{sKr}, {frot}\ns_mul_i32 s{sT}, s{sKr}, 6554\ns_lshr_b32 s{sT}, s{sT}, 16\ns_mul_i32 s{sT}, s{sT}, 10\ns_sub_u32 s{sKr}, s{sKr}, s{sT}")
        else: k(f"s_mov_b32 s{sKr}, 0")
    def l_x(g):
        k(f"s_lshl_b32 s{sSoA}, s{sKr}, 7\ns_add_u32 m0, s{sNeed}, {F_S*(g%6)}\ns_add_u32 s{sSoA}, s{sBaseA}, s{sSoA}")
        for p in range(2): k(vop(("A", g), f"buffer_load_dwordx4 v{vx+p}, s[{sA}:{sA+3}], s{sSoA} offen offset:{1024*p} lds"))
    def l_w(g, n):
        k(f"s_mul_i32 s{sSoA}, s{sKr}, s{sStepB}\ns_add_u32 m0, s{sI}, {F_S*(g%6)}\ns_add_u32 s{sSoA}, s{sSoA}, s{sSoB}")
        for p in range(n): k(vop(("A", g), f"buffer_load_dwordx4 v{vw+p}, s[{sB}:{sB+3}], s{sSoA} offen offset:{1024*p} lds"))
        k(f"s_add_u32 s{sKr}, s{sKr}, 1\ns_cmp_eq_u32 s{sKr}, 10\ns_cmov_b32 s{sKr}, 0")
    lx, ls, lt, la_ = fs[0][0][0], fs[1][0][0], fs[1][0][0] + 8, z2 + 6
    def l_pass(n, x0done, mid=None, lead=3, xf=False):
        for g in range(lead):
            if not (g == 0 and x0done): l_x(g)
            l_w(g, n)
        if mid: mid()
        k(f"v_lshl_add_u32 v{la_}, v{vL}, 4, s{sNeed}\nv_add_u32 v{la_+1}, {3*F_S}, v{la_}")
        for i in range(8): k(f"v_mov_b32 v{ls+i}, 0")
        for g in range(10):
            k(f"s_waitcnt vmcnt({newer({('A', g)})})\ns_barrier")
            if g == 0: sp('p1s')
            for p in range(2):
                k(f"ds_read_b128 {v(lx+4*p,4)}, v{la_+(g%6)//3} offset:{F_S*(g%3)+1024*p}")
            if g + lead < 10:
                l_x(g + lead); l_w(g + lead, n)
            if g == 9 and xf:
                k(f"s_lshl_b32 s{sT+3}, s{sTB}, 2\ns_add_u32 s{sT+3}, s{sT+3}, s{sW}\ns_lshl_b32 s{sT+3}, s{sT+3}, 9\nv_lshlrev_b32 v{vT+4}, 7, v{vL}\ns_mov_b64 exec, 0xf")
                k(gload(f"s{sT+3}", vT + 4, vT + 8))
                k("s_mov_b64 exec, -1")
            k("s_waitcnt lgkmcnt(0)")
            if ldot:
                for i in range(8):
                    c = ls + 4*(i // 4) + (i % 2)
                    k(f"v_dot2c_f32_bf16 v{c}, v{vOnes}, v{lx+i}\nv_dot2c_f32_bf16 v{c+2}, v{lx+i}, v{lx+i}")
                if g == 9: k("s_nop 2")
            elif "nost" not in MX:
              for i in range(8):
                t0 = lt + 2*(i % 2); c = ls + 4*(i // 4)
                k(f"""v_lshlrev_b32 v{t0}, 16, v{lx+i}
                v_and_b32 v{t0+1}, s{sMask}, v{lx+i}
                v_add_f32 v{c}, v{c}, v{t0}
                v_add_f32 v{c+1}, v{c+1}, v{t0+1}
                v_fmac_f32 v{c+2}, v{t0}, v{t0}
                v_fmac_f32 v{c+3}, v{t0+1}, v{t0+1}""")
        R = [ls, ls + 2, ls + 4, ls + 6]
        for r in R: k(f"v_add_f32 v{r}, v{r}, v{r+1}")
        for m in ("quad_perm:[1,0,3,2]", "quad_perm:[2,3,0,1]", "row_half_mirror"):
            for r in R: k(f"v_add_f32_dpp v{r}, v{r}, v{r} {m} row_mask:0xf bank_mask:0xf")
        for r in R: k(f"v_mul_f32 v{r}, {fl(1.0/640)}, v{r}")
        for p in range(2):
            mu, q_ = ls + 4*p, ls + 4*p + 2
            k(f"v_fma_f32 v{q_}, -v{mu}, v{mu}, v{q_}\nv_max_f32 v{q_}, 0, v{q_}\nv_add_f32 v{q_}, {fl(1e-5)}, v{q_}\nv_rsq_f32 v{q_}, v{q_}")
        k(f"""s_lshl_b32 s{sT}, s{sW}, 6
        s_add_u32 s{sT}, s{sT}, {F_STS}
        v_lshrrev_b32 v{lt}, 3, v{vL}
        v_lshl_add_u32 v{lt}, v{lt}, 2, s{sT}
        ds_write_b32 v{lt}, v{ls}
        ds_write_b32 v{lt}, v{ls+2} offset:256
        ds_write_b32 v{lt}, v{ls+4} offset:32
        ds_write_b32 v{lt}, v{ls+6} offset:288
        s_waitcnt lgkmcnt(0)""")
    def q_src():
        for p in range(3):
            k(f"""v_add_u32 v{vT}, {64*p}, v{vL}
            v_mul_u32_u24 v{vT+1}, 5462, v{vT}
            v_lshrrev_b32 v{vT+1}, 16, v{vT+1}
            v_mul_u32_u24 v{vT+2}, 12, v{vT+1}
            v_sub_u32 v{vT+2}, v{vT}, v{vT+2}
            v_min_u32 v{vT+2}, 9, v{vT+2}
            v_mul_u32_u24 v{vT+1}, 1280, v{vT+1}
            v_lshl_add_u32 v{vw+p}, v{vT+2}, 4, v{vT+1}""")
            if p: k(f"v_subrev_u32 v{vw+p}, {1024*p}, v{vw+p}")
        k.srd(sB, P_WQ, 640*1280)
        k(f"""s_mul_i32 s{sSoB}, s{sW}, {16*1280}
        s_mul_i32 s{sT}, s{sHG}, 160
        s_add_u32 s{sSoB}, s{sSoB}, s{sT}
        s_mov_b32 s{sStepB}, {64*1280}
        s_mul_i32 s{sI}, s{sW}, 3072
        s_add_u32 s{sI}, s{sI}, {F_B+8192}""")
    if "skip" in MX:
        k(f"s_barrier\ns_cmp_eq_u32 s{sHG}, 7\ns_cbranch_scc1 {end}")
        setup_rest(); a_addr(4096)
        k.srd(sA, P_WSP, 2048*4096)
        k(f"s_lshl_b32 s{sSoA}, s{sTB}, 2\ns_add_u32 s{sSoA}, s{sSoA}, s{sW}\ns_lshl_b32 s{sSoA}, s{sSoA}, 17")
        k(f"v_lshlrev_b32 v{vDb}, 4, v{vL}\nv_lshlrev_b32 v{vDb+1}, 4, v{vL}\nv_mov_b32 v{vFl}, 31\nds_write_b32 v{vFw}, v{vFl}\ns_branch {skipG}")
    early = 'b' not in pf
    sKr = 36
    l_rot()
    if early: l_x(0)
    k(f"s_cmp_eq_u32 s{sHG}, 7\ns_cbranch_scc1 {rep}")
    q_src()
    def mid():
        setup_rest(); nat_read_addr(128); b_addr(3456); a_addr(XN_ST)
    if early: l_pass(3, True, mid, xf=True)
    else:
        mid(); k("s_barrier"); l_pass(3, False, xf=True)
    sp('p1l')
    k("s_barrier")
    src_win(13 * 128)
    issue_b(10)
    src_xn()
    xo = k.lab("xo")
    k("s_waitcnt vmcnt(2)\ns_mov_b64 exec, 0xf")
    gcheck(vT + 8)
    k(f"s_mov_b64 exec, -1\ns_cbranch_vccz {xo}")
    gpoll(f"s{sT+3}", vT + 4, vT + 8, 0xf, 2)
    k.label(xo)
    cohA[0] = "sc1"
    issue_a(10)
    prologue(10, "nat")

    k.label(b10)
    sp('p1')
    prio[0] = lprio
    vFg, vSt = vT + 8, tmp
    for g in range(10, 30):
        if g == 16:
            src_win(0)
        if g == 17:
            k(f"s_mov_b32 s{sSoA}, s{sBaseA}")
        if g == 14 and sent:
            poison(True)
        if g == 20:
            sp('p2')
            hi()
            s0 = k.lab("s0")
            k(f"v_mov_b32 v{vT+12}, {fl(GC1)}\nv_mov_b32 v{vT+10}, 0\nv_mov_b32 v{vT+11}, 0\ns_nop 7")
            k(f"s_cmp_eq_u32 s{sFG}, 0\ns_cbranch_scc1 {s0}")
            gelu(0, z2, True)
            k.label(s0)
            gelu(1, z2 + 8, True)
            k.srd(sO, P_WS, SZ_ST, WS_ST)
            k(f"""v_mov_b32 v{vT+2}, v{vT+10}
            v_mov_b32 v{vT+3}, v{vT+11}
            s_mul_i32 s{sT}, s{sTB}, 14
            s_add_u32 s{sT}, s{sT}, s{sFG}
            v_permlane32_swap_b32 v{vT+10}, v{vT+2}
            v_permlane32_swap_b32 v{vT+11}, v{vT+3}
            s_lshl_b32 s{sT}, s{sT}, 10
            s_lshl_b32 s{sT+1}, s{sW}, 8
            v_add_f32 v{vT+10}, v{vT+10}, v{vT+2}
            v_add_f32 v{vT+11}, v{vT+11}, v{vT+3}
            v_lshlrev_b32 v{vT+2}, 3, v{vN}
            s_add_u32 s{sT}, s{sT}, s{sT+1}
            s_mov_b32 exec_hi, 0""")
            k(vop("st", f"buffer_store_dwordx2 {v(vT+10,2)}, v{vT+2}, s[{sO}:{sO+3}], s{sT} offen sc1"))
            k("s_mov_b32 exec_hi, -1")
            lo()
        if g == 21:
            sp('e21')
            hi()
            k(f"s_waitcnt vmcnt({newer({'st'})})")
            gsync(); set_flag(FL_S)
            if sent: poison_done()
            lo()
        if g == 23:
            hi()
            k(f"v_min_u32 v{vT+14}, 13, v{vL}\nv_lshlrev_b32 v{vT+14}, 7, v{vT+14}\ns_lshl_b32 s{sT}, s{sTB}, 11\ns_add_u32 s{sT}, s{sT}, {FL_S}")
            k(vop("pf", gload(f"s{sT}", vT + 14, vFg)))
            lo()
        if g == 24:
            sp('e24')
            hi()
            ok = k.lab("sok")
            k(f"s_waitcnt vmcnt({newer({'pf'})})")
            gcheck(vFg)
            k(f"s_cbranch_vccz {ok}")
            k(f"s_lshl_b32 s{sT}, s{sTB}, 11\ns_add_u32 s{sT}, s{sT}, {FL_S}")
            gpoll(f"s{sT}", vT + 14, vFg, 0x3fff, 4)
            k.label(ok)
            k(f"""v_mul_u32_u24 v{vT+14}, 7168, v{vH}
            v_lshl_add_u32 v{vT+14}, v{vN}, 3, v{vT+14}
            s_mul_i32 s{sT}, s{sTB}, {14*1024}
            s_lshl_b32 s{sT+1}, s{sW}, 8
            s_add_u32 s{sT}, s{sT}, s{sT+1}
            s_add_u32 s{sT+1}, s{sT}, 4096""")
            for i in range(7):
                k(vop("sl", f"buffer_load_dwordx2 {v(z1+2*i,2)}, v{vT+14}, s[{sO}:{sO+3}], s{sT + i//4} offen offset:{1024*(i%4)} sc1"))
            lo()
        if g == 25:
            sp('e25')
            hi()
            sel, D = tmp, tmp + 8
            mur, r = vT + 10, vT + 11
            k(f"v_lshlrev_b32 v{vT+2}, 2, v{vH}\nv_sub_u32 v{vT+2}, v{vN}, v{vT+2}\nv_mov_b32 v{vT+3}, 0x3f80\nv_mov_b32 v{vT+4}, 0x3f800000")
            for e in range(2):
                for q in range(4):
                    f0 = 16*e + 8*(q >> 1) + 2*(q & 1)
                    k(f"""v_cmp_eq_u32 vcc, {f0}, v{vT+2}
                    v_cmp_eq_u32 s[{sT}:{sT+1}], {f0+1}, v{vT+2}
                    s_nop 0
                    v_cndmask_b32 v{sel+4*e+q}, 0, v{vT+3}, vcc
                    v_cndmask_b32 v{sel+4*e+q}, v{sel+4*e+q}, v{vT+4}, s[{sT}:{sT+1}]""")
            k(f"s_waitcnt vmcnt({newer({'sl'})})")
            for i in range(1, 7):
                k(f"v_add_f32 v{z1}, v{z1}, v{z1+2*i}\nv_add_f32 v{z1+1}, v{z1+1}, v{z1+2*i+1}")
            k.srd(sO, P_WS, SZ_Z2F, WS_Z2F)
            k(f"""v_mov_b32 v{z1+2}, v{z1}
            v_mov_b32 v{z1+3}, v{z1+1}
            v_lshlrev_b32 v{vT+2}, 4, v{vL}
            s_lshl_b32 s{sT}, s{sFG}, 18
            v_permlane32_swap_b32 v{z1}, v{z1+2}
            v_permlane32_swap_b32 v{z1+1}, v{z1+3}
            v_add_f32 v{mur}, v{z1}, v{z1+2}
            v_add_f32 v{r}, v{z1+1}, v{z1+3}
            v_mul_f32 v{mur}, {fl(1.0/864)}, v{mur}
            v_mul_f32 v{r}, {fl(1.0/864)}, v{r}
            v_fma_f32 v{r}, -v{mur}, v{mur}, v{r}
            v_max_f32 v{r}, 0, v{r}
            v_add_f32 v{r}, {fl(1e-5)}, v{r}
            v_rsq_f32 v{r}, v{r}
            s_lshl_b32 s{sT+1}, s{sTB}, 13
            s_add_u32 s{sT}, s{sT}, s{sT+1}
            v_mul_f32 v{mur}, v{mur}, v{r}
            s_lshl_b32 s{sT+1}, s{sW}, 11
            s_add_u32 s{sT}, s{sT}, s{sT+1}
            s_sub_u32 s{sT+1}, s{sT}, 0x20000""")
            s1 = k.lab("s1")
            for u in (1, 0):
                if u == 0:
                    k(f"s_cmp_eq_u32 s{sFG}, 0\ns_cbranch_scc1 {s1}")
                zz = z2 + 8*u
                for i in range(8):
                    k(f"""v_lshlrev_b32 v{vT+4}, 16, v{zz+i}
                    v_and_b32 v{vT+5}, s{sMask}, v{zz+i}
                    v_fma_f32 v{vT+4}, v{vT+4}, v{r}, -v{mur}
                    v_fma_f32 v{vT+5}, v{vT+5}, v{r}, -v{mur}
                    v_cvt_pk_bf16_f32 v{zz+i}, v{vT+4}, v{vT+5}""")
                k("s_nop 1")
                k(f"v_mfma_f32_32x32x16_bf16 {v(D,16)}, {v(zz,4)}, {v(sel,4)}, 0")
                k(f"v_mfma_f32_32x32x16_bf16 {v(D,16)}, {v(zz+4,4)}, {v(sel+4,4)}, {v(D,16)}")
                k("s_nop 7\ns_nop 3")
                for i in range(8): k(f"v_cvt_pk_bf16_f32 v{zz+i}, v{D+2*i}, v{D+2*i+1}")
                k("s_nop 0")
                for jp in range(2): swap4(zz + 4*jp)
                for jp in range(2):
                    k(vop("zs", f"buffer_store_dwordx4 {v(zz+4*jp,4)}, v{vT+2}, s[{sO}:{sO+3}], s{sT + 1 - u} offen offset:{1024*jp} sc1"))
            k.label(s1)
            del vm[-2:]
            lo()
        if g == 26:
            sp('e26')
            hi()
            k(f"s_waitcnt vmcnt({newer({'zs'})})")
            gsync(); set_flag(FL_Z)
            lo()
        if g == 27:
            sp('e27')
            hi()
            a_addr(4096)
            k.srd(sA, P_WSP, 2048*4096)
            k(f"s_lshl_b32 s{sSoA}, s{sTB}, 2\ns_add_u32 s{sSoA}, s{sSoA}, s{sW}\ns_lshl_b32 s{sSoA}, s{sSoA}, 17")
            cohA[0] = ntw
            if prot is not None:
                wrapA[0] = True
                k(f"""s_and_b32 s36, s{sTB}, 1
                s_mul_i32 s36, s36, {prot[0]}
                s_mul_i32 s37, s{sFG}, {prot[1]}
                s_add_u32 s36, s36, s37
                s_and_b32 s36, s36, 31
                s_mov_b32 s38, s{sSoA}
                s_lshl_b32 s37, s36, 7
                s_add_u32 s{sSoA}, s38, s37""")
            k.srd(sB, P_BSP, 4096)
            k(f"v_lshlrev_b32 v{vT+2}, 1, v{vTok}\nv_lshlrev_b32 v{vDb}, 4, v{vL}\nv_lshlrev_b32 v{vDb+1}, 4, v{vL}")
            k(vop("bias", f"buffer_load_ushort v{vBias}, v{vT+2}, s[{sB}:{sB+3}], 0 offen"))
            lo()
        if g == 29:
            k(f"s_lshl_b32 s{sT}, s{sW}, 13\ns_add_u32 s{sT}, s{sT}, {FL_Z}\nv_and_b32 v{vT+14}, 15, v{vL}\nv_min_u32 v{vT+14}, 13, v{vT+14}\nv_and_or_b32 v{vT+14}, v{vL}, 48, v{vT+14}\nv_lshlrev_b32 v{vT+14}, 7, v{vT+14}")
            k(vop("pz", gload(f"s{sT}", vT + 14, vFg)))
        body(g, "nat", "nat" if g != 29 else None, first=(g in (10, 20)), doB=(g < 26), strict=(g == 10))
    sp('p3')
    hi()
    pd = k.lab("zpd")
    k(f"s_waitcnt vmcnt({newer({'pz'})})")
    gcheck(vFg)
    k(f"s_cbranch_vccz {pd}")
    k(f"s_lshl_b32 s{sT}, s{sW}, 13\ns_add_u32 s{sT}, s{sT}, {FL_Z}")
    gpoll(f"s{sT}", vT + 14, vFg, None, 4)
    k.label(pd)
    gsync()
    k.label(skipG)
    sp('zr')
    k.srd(sB, P_WS, SZ_Z2F, WS_Z2F)
    k(f"""s_lshr_b32 s{sT+1}, s{sW}, 1
    s_lshl_b32 s{sT}, s{sFG}, 1
    s_add_u32 s{sT+1}, s{sT}, s{sT+1}
    s_lshl_b32 s{sSoB}, s{sT+1}, 17
    s_and_b32 s{sT}, s{sW}, 1
    s_lshl_b32 s{sT}, s{sT}, 11
    s_add_u32 s{sSoB}, s{sSoB}, s{sT}
    s_mov_b32 s{sStepB}, 4096
    v_add_u32 v{vZa}, {L_Z}, v{vDb}""")
    cohB[0] = "sc1"
    if prot is not None:
        wrapB[0] = True
        k(f"s_mov_b32 s40, s{sSoB}\ns_lshl_b32 s39, s36, 12\ns_add_u32 s{sSoB}, s40, s39")
    k(f"s_setprio {lprio}")
    for g in range(30, 34): issue_b(g)
    k("s_setprio 3")
    pat[0] = pats
    k(f"v_mov_b32 v{vT+12}, {fl(GC1)}")
    gelu(0, z1, False)
    gelu(1, z1 + 8, False)
    for t in range(2):
        for i in range(16): k(f"v_mov_b32 v{acc[t]+i}, 0")
    k(f"s_waitcnt vmcnt(2)\ns_mov_b32 s{sNeed}, 31\ns_mov_b32 s{sI}, 0")
    gsync()
    for r in reads("frag", 0, 0, 30): k(r)
    lo()
    loop = k.lab("gloop")
    sp('l0')
    if "lin" in MX:
        for p in range(4): k(f"v_mov_b32 v{vD+p}, v{vDb}")
    if "glin" in MX:
        for p in range(4): k(f"v_add_u32 v{vWa+p}, s{sM0A}, v{vDb}")
    if "oob" in MX: k(f"s_mov_b32 s{sA+2}, 0\ns_mov_b32 s{sB+2}, 0")
    if "ooa" in MX: k(f"s_mov_b32 s{sA+2}, 0")
    if "ooz" in MX: k(f"s_mov_b32 s{sB+2}, 0")
    k.align(3)
    k.label(loop)
    inloop[0] = True
    if "nosc" in MX: cohB[0] = ""
    for g in range(30, 36):
        body(g, "frag", "frag", loop=True)
    inloop[0] = False
    k(f"s_add_u32 s{sI}, s{sI}, 1\ns_cmp_lt_u32 s{sI}, 4\ns_cbranch_scc1 {loop}")
    sp('l1')
    if "skip" in MX: k.endpgm(P_WS, 3)
    if "nopt" in MX:
        k("s_waitcnt lgkmcnt(0)")
        k.stamp(1); k("s_waitcnt lgkmcnt(0)")
        for i in range(32): k("s_nop 15")
        k.stamp(2); k("s_waitcnt lgkmcnt(0)")
        for i in range(256): k(f"v_add_u32 v{vT}, 1, v{vT}")
        k.stamp(3); k("s_waitcnt lgkmcnt(0)")
        for i in range(32): k(f"ds_read_b32 v{vT}, v{vFa}\ns_waitcnt lgkmcnt(0)")
        k.stamp(4); k("s_waitcnt lgkmcnt(0)")
    sG, sWb = sI, sBaseA
    def out_ids():
        k(f"s_lshr_b32 s{sG}, s2, 5\ns_mul_i32 s{sWb}, s{sG}, {47*5120}\ns_add_u32 s{sWb}, s{sWb}, {20*5120 - 1024 - L_A}")
    for g in range(54, 62):
        tA = tB = None
        if g == 55:
            k(f"v_and_b32 v{vT+14}, 31, v{vL}\nv_lshlrev_b32 v{vT+14}, 7, v{vT+14}\ns_mov_b32 s{sT}, {FL_W}")
            k(gload(f"s{sT}", vT + 14, vFg))
        if g == 58:
            wk = k.lab("wok")
            gcheck(vFg)
            k(f"s_cbranch_vccz {wk}\ns_mov_b32 s{sT}, {FL_W}")
            gpoll(f"s{sT}", vT + 14, vFg, None, 4)
            k.label(wk)
            sp('g58')
            out_ids()
            k.srd(sB, P_WS, SZ_WF, WS_WF)
        if g == 59:
            k.srd(sA, P_WS, SZ_WF, WS_WF)
            cohA[0] = "sc1"
            hi()
            for p in range(4): k(f"v_mov_b32 v{vD+p}, v{vDb}")
            lo()
        if g >= 58: tB = f"s_add_u32 s{sSoB}, m0, s{sWb}"
        if g >= 59: tA = f"s_add_u32 s{sSoA}, m0, s{sWb}"
        body(g, "frag", "frag" if g < 61 else None, loop=True, doA=(g < 59), doB=(g < 58), tailA=tA, tailB=tB)
    sp('p4')
    hi()
    fin = k.lab("gfin")
    def rest_w():
        spinw(vFa, 63)
        k(f"s_lshl_b32 s{sT+1}, s{sW}, 12\ns_add_u32 m0, s{sT+1}, {L_Z}\ns_add_u32 s{sSoB}, m0, s{sWb}")
        for p in range(4):
            k(f"buffer_load_dwordx4 v{vDb}, s[{sB}:{sB+3}], s{sSoB} offen offset:{1024*p} sc1 lds")
    u_addr()
    k(f"v_lshlrev_b32 v{vBias}, 16, v{vBias}")
    for i in range(2):
        if i == 1:
            k(f"s_cmp_eq_u32 s{sFG}, 13\ns_cbranch_scc1 {fin}")
        for r in range(8):
            zr = z1 + 8*i + r
            a0 = acc[i] + 2*r
            k(f"""v_lshlrev_b32 v{tmp}, 16, v{zr}
            v_and_b32 v{tmp+1}, s{sMask}, v{zr}
            v_add_f32 v{a0}, v{a0}, v{vBias}
            v_add_f32 v{a0+1}, v{a0+1}, v{vBias}
            v_mul_f32 v{a0}, v{a0}, v{tmp}
            v_mul_f32 v{a0+1}, v{a0+1}, v{tmp+1}
            v_cvt_pk_bf16_f32 v{zr}, v{a0}, v{a0+1}""")
        if i == 0: rest_w()
        else: k("s_nop 1")
        for jp in range(2): swap4(z1 + 8*i + 4*jp)
        for jp in range(2):
            k(f"buffer_store_dwordx4 {v(z1+8*i+4*jp,4)}, v{vT+1}, s[{sO}:{sO+3}], s{sT} offen offset:{1024*i+512*jp} sc1")
    k.label(fin)
    if not sent: set_wflag(FL_U)
    k(f"s_branch {outp}")

    k.label(rep)
    vm[:] = [("A", 0)] * 2
    k(f"s_cmp_ge_u32 s{sW}, 2\ns_cbranch_scc1 {kw}")
    k.srd(sB, P_WK, 25600)
    k(f"s_branch {kwd}")
    k.label(kw)
    k.srd(sB, P_WV, 25600)
    k.label(kwd)
    k(f"""v_lshlrev_b32 v{vw}, 4, v{vL}
    v_lshlrev_b32 v{vw+1}, 4, v{vL}
    s_and_b32 s{sSoB}, s{sW}, 1
    s_lshl_b32 s{sSoB}, s{sSoB}, 11
    s_mov_b32 s{sStepB}, 2560
    s_add_u32 s{sI}, s{sNeed}, 8192""")
    if early: l_pass(2, True, setup_rest, lead=4)
    else:
        setup_rest(); k("s_barrier"); l_pass(2, False, lead=4)
    sp('p1l')
    q_src()
    k("s_barrier\ns_barrier\ns_barrier")
    l_pass(3, False)
    k("s_barrier")
    rl = k.lab("rl")
    att_progress(1, vT + 5, 8)
    if sent: poison(False)
    k(f"s_mov_b32 s{sNeed}, s{sT64}")
    k.label(rl)
    emit_repack(k, sNeed, sW, vL, P_WO, P_WOUT, P_WS, 8, acc[0], L_A, gsync, coh="sc1", rot=orot)
    k(f"s_add_u32 s{sNeed}, s{sNeed}, 32\ns_waitcnt vmcnt(0)")
    gsync()
    k(f"s_cmp_lt_u32 s{sNeed}, 47\ns_cbranch_scc1 {rl}")
    if sent: poison_done()
    nf = k.lab("nf")
    k(f"s_cmp_lg_u32 s{sW}, 0\ns_cbranch_scc1 {nf}\ns_lshl_b32 s{sT}, s{sT64}, 7\ns_add_u32 s{sT}, s{sT}, {FL_W}")
    gset(f"s{sT}", vT, vT + 2)
    k.label(nf)
    k.label(outq)
    sp('p1')
    k(f"s_setprio {lprio}")
    out_ids()
    k.srd(sB, P_WS, SZ_WF, WS_WF)
    prefetch_sp()
    att_progress(wfat, vT, 32)
    k(f"v_lshlrev_b32 v{vDb}, 4, v{vL}\nv_lshlrev_b32 v{vT}, 7, v{vL}\ns_mov_b32 s{sT}, {FL_W}")
    gpoll(f"s{sT}", vT, vT + 2, 0xffffffff, 16)
    if sent:
        k(f"s_lshl_b32 s{sT}, s{sW}, 13\ns_add_u32 s{sT}, s{sT}, {FL_Z}\nv_and_b32 v{vT}, 15, v{vL}\nv_min_u32 v{vT}, 13, v{vT}\nv_and_or_b32 v{vT}, v{vL}, 48, v{vT}\nv_lshlrev_b32 v{vT}, 7, v{vT}")
        gpoll(f"s{sT}", vT, vT + 2, None, 16)
        gsync()
    if 'w' in pf:
        wl = k.lab("wl")
        k(f"""s_bfe_u32 s{sT}, s2, 0x20003
        s_lshl_b32 s{sT}, s{sT}, 2
        s_add_u32 s{sT}, s{sT}, s{sW}
        s_lshl_b32 s{sT}, s{sT}, 13
        v_lshlrev_b32 v{vT+8}, 7, v{vL}""")
        k.label(wl)
        k(f"""buffer_load_dword v{vT+9}, v{vT+8}, s[{sB}:{sB+3}], s{sT} offen sc1
        s_add_u32 s{sT}, s{sT}, {16*8192}
        s_cmp_lt_u32 s{sT}, {SZ_WF}
        s_waitcnt vmcnt(0)
        s_cbranch_scc1 {wl}""")
    k(f"s_mul_i32 s{sT}, s{sW}, {24*1024}\ns_add_u32 s{sT}, s{sT}, {L_A}")
    for p in range(24):
        if p % 4 == 0:
            k(f"s_add_u32 m0, s{sT}, {1024*p}\ns_add_u32 s{sSoB}, m0, s{sWb}")
        k(f"buffer_load_dwordx4 v{vDb}, s[{sB}:{sB+3}], s{sSoB} offen offset:{1024*(p%4)} sc1 lds")

    k.label(outp)
    sp('outp')
    sWF, sOU, sXo = sB, sA, sO
    sTT, sAo, sXof = sSoA, sStepB, sM0A
    a = Alloc(8)
    oacc = a(20, 4)
    af = a(80, 4)
    wb = [a(20, 4), a(20, 4)]
    xr = a(10, 2)
    vQ = a(4, 2)
    vA16, vW0, vW1, vXo, vP = a(), a(), a(), a(), a()
    assert a.n <= 168, a.n
    k.srd(sOU, P_WS, SZ_OUF, WS_OUF)
    k.srd(sXo, P_X, SZ_Q)
    k(f"""s_lshl_b32 s{sTT}, s{sT64}, 2
    s_add_u32 s{sTT}, s{sTT}, s{sW}
    s_mul_i32 s{sAo}, s{sTT}, {47*1024}
    s_mul_i32 s{sXof}, s{sTT}, {16*1280}
    s_mul_i32 s{sT}, s{sG}, 160
    s_add_u32 s{sXof}, s{sXof}, s{sT}
    v_lshlrev_b32 v{vA16}, 4, v{vL}
    v_add_u32 v{vW0}, {L_W}, v{vA16}
    v_add_u32 v{vW1}, {L_W+51200}, v{vA16}
    v_lshlrev_b32 v{vP}, 7, v{vL}
    v_and_b32 v{vXo}, 15, v{vL}
    v_mul_u32_u24 v{vXo}, 1280, v{vXo}
    v_lshrrev_b32 v{vQ}, 4, v{vL}
    v_lshl_add_u32 v{vXo}, v{vQ}, 3, v{vXo}""")
    k(f"s_setprio {lprio}")
    sWs, sWd = sT + 1, sT + 2
    k(f"s_mul_i32 s37, s{sG}, 5\ns_lshr_b32 s37, s37, 1\ns_mul_i32 s38, s{sG}, 27\ns_lshr_b32 s38, s38, 3")
    sU = sNeed
    vm[:] = []
    ld = []
    def lop(tag, txt): ld.append(tag); k(txt)
    def lnewer(tag): return min(15, len(ld) - 1 - max(i for i, t in enumerate(ld) if t == tag))
    def wpieces(step0, lds0, npieces, tag):
        per = npieces // 4
        def setup():
            k(f"""s_mul_i32 s{sWs}, s{sG}, {47*5120}
            s_mul_i32 s{sWd}, s{sW}, {per*1024}
            s_add_u32 s{sWs}, s{sWs}, s{sWd}
            s_add_u32 s{sWs}, s{sWs}, {step0*5120}
            s_add_u32 s{sWd}, s{sWd}, {lds0}""")
        def piece(p):
            if p == 0: setup()
            if p % 4 == 0:
                k(f"s_add_u32 m0, s{sWd}, {1024*p}")
                k(f"s_add_u32 s{sWs}, s{sWs}, 4096" if p else "s_nop 0")
            k(vop(tag, f"buffer_load_dwordx4 v{vA16}, s[{sWF}:{sWF+3}], s{sWs} offen offset:{1024*(p%4)} sc1 lds"))
        return [lambda p=p: piece(p) for p in range(per)]
    def aloads(steps, regs):
        def one(st, r):
            if orot:
                lo_, n_, sr = (0, 20, 37) if st < 20 else (20, 27, 38)
                k(f"s_add_u32 s{sT}, s{sr}, {st-lo_}\ns_sub_u32 s39, s{sT}, {n_}\ns_cselect_b32 s{sT}, s{sT}, s39\ns_lshl_b32 s{sT}, s{sT}, 10\ns_add_u32 s{sT}, s{sT}, s{sAo}")
                if lo_: k(f"s_add_u32 s{sT}, s{sT}, {lo_*1024}")
            else:
                k(f"s_add_u32 s{sT}, s{sAo}, {st*1024}")
            k(vop(("a", st), f"buffer_load_dwordx4 {v(af+4*r,4)}, v{vA16}, s[{sOU}:{sOU+3}], s{sT} offen sc1"))
        return [lambda st=st, r=r: one(st, r) for st, r in zip(steps, regs)]
    def wread(slot, b, u, tag):
        if isinstance(slot, tuple): base, o = vA16, slot[1] * 5120
        else: base, o = (vW0, slot * 5120) if slot < 10 else (vW1, (slot - 10) * 5120)
        lop(tag, f"ds_read_b128 {v(wb[b]+4*u,4)}, v{base} offset:{o+1024*u}")
    first = [True]
    def arrive():
        k(f"s_add_u32 s{sCnt}, s{sCnt}, 1\nv_mov_b32 v{vFl}, s{sCnt}")
        lop("w", f"ds_write_b32 v{vXw}, v{vFl}")
    def peek(): lop("pk", f"ds_read_b32 v{vQ}, v{vXa}")
    def check():
        sl = k.lab("oslow"); ok = k.lab("ook")
        k(f"s_waitcnt lgkmcnt({lnewer('pk')})\nv_cmp_gt_u32 vcc, s{sCnt}, v{vQ}\ns_cbranch_vccnz {sl}")
        k.label(ok)
        cold2.append((sl, ok))
    cold2 = []; cold3 = []
    def compute(seq, side, hooks={}):
        for i in range(min(2, len(seq))):
            for u in range(5): wread(seq[i][0], i % 2, u, ("r", i))
        for i, (sl, st, r) in enumerate(seq):
            b = i % 2
            nv = newer({("a", st)})
            k(f"s_waitcnt vmcnt({min(63, nv)}) lgkmcnt({lnewer(('r', i))})")
            if sent:
                a0 = af + 4*r
                sl = k.lab("vslow"); ok = k.lab("vok")
                k(f"v_max3_u32 v{vQ+1}, v{a0}, v{a0+1}, v{a0+2}\nv_max_u32 v{vQ+1}, v{vQ+1}, v{a0+3}\nv_cmp_eq_u32 vcc, -1, v{vQ+1}\ns_cbranch_vccnz {sl}")
                k.label(ok)
                cold3.append((sl, ok, st, r))
            if i in hooks: hooks[i]()
            sd = list(side.get(i, []))
            for u in range(5):
                c = "0" if first[0] else v(oacc+4*u, 4)
                k(f"v_mfma_f32_16x16x32_bf16 {v(oacc+4*u,4)}, {v(wb[b]+4*u,4)}, {v(af+4*r,4)}, {c}")
                if i + 2 < len(seq): wread(seq[i + 2][0], b, u, ("r", i + 2))
                if sd and u in ((1, 3, 4, 2, 0)[:len(side.get(i, []))]): sd.pop(0)()
            assert not sd
            first[0] = False
    def deal(em, i0, per):
        return {i0 + j: em[per*j:per*(j+1)] for j in range((len(em) + per - 1) // per)}
    for u in range(5):
        k(f"buffer_load_dwordx2 {v(xr+2*u,2)}, v{vXo}, s[{sXo}:{sXo+3}], s{sXof} offen offset:{32*u}")
    def probe_load(mask, vd, kind):
        k(f"s_mov_b64 exec, {hx(mask)}")
        if sent: k(vop("of", f"buffer_load_dword v{vd}, v{vP}, s[{sOU}:{sOU+3}], s{sU} offen sc1"))
        else: k(vop("of", gload(f"s{sU}", vP, vd)))
        k("s_mov_b64 exec, -1")
    def probe_check(mask, vd):
        k(f"s_mov_b64 exec, {hx(mask)}")
        if sent: k(f"v_cmp_eq_u32 vcc, -1, v{vd}")
        else: gcheck(vd)
        k("s_mov_b64 exec, -1")
    def probe(mask, slp):
        l = k.lab("pb"); d = k.lab("pbd")
        k.label(l)
        probe_load(mask, vQ, 0)
        k("s_waitcnt vmcnt(0)")
        probe_check(mask, vQ)
        k(f"s_cbranch_vccz {d}\ns_sleep {slp}")
        again(l)
        k.label(d)
    k("s_setprio 3")
    if sent:
        k(f"v_lshlrev_b32 v{vP}, 10, v{vL}\ns_add_u32 s{sU}, s{sAo}, {20*1024+1020}")
        probe((1 << 27) - 1, 1)
        gsync()
        k(f"v_mul_u32_u24 v{vP}, 2560, v{vL}\ns_add_u32 s{sU}, s{sAo}, 2556")
    else:
        k(f"s_lshr_b32 s{sU}, s{sTT}, 1\ns_lshl_b32 s{sU}, s{sU}, 11\ns_add_u32 s{sU}, s{sU}, {FL_U}")
        probe(0x3fff, 2)
        gsync()
        k(f"s_lshl_b32 s{sU}, s{sT64}, 10\ns_add_u32 s{sU}, s{sU}, {FL_O}")
    sp('upoll')
    k(f"s_setprio {oprio}")
    ul = aloads(range(20, 40), range(20))
    for e in ul[:8]: e()
    side = deal(ul[8:], 0, 2)
    side.update(deal(aloads(range(40, 47), range(7)), 8, 4))
    side.update(deal(wpieces(39, L_W + 5120, 40, "b2"), 10, 2))
    def oflag():
        probe_load(0xff, vQ + 2, 1)
    side[16] = [oflag]
    compute([(1 + i, 20 + i, i) for i in range(19)], side, {7: arrive, 9: peek, 10: check})
    sp('o4')
    k(f"s_waitcnt vmcnt(0)")
    gsync()
    late = k.lab("olate"); join = k.lab("ojoin")
    probe_check(0xff, vQ + 2)
    k(f"s_cbranch_vccnz {late}")
    seq3 = [(1 + i, 39 + i, ([19] + list(range(7)))[i]) for i in range(8)]
    oregs = list(range(7, 19)) + [19] + list(range(7))
    save = list(vm)
    em = wpieces(12, L_W + 9 * 5120, 40, "b3") + aloads(range(12), oregs[:12])
    compute(seq3, deal(em, 0, 3))
    k.label(join)
    sp('c3')
    lds_wait(L_F + F_OC, vQ, vQ + 1, 1)
    k("s_setprio 3")
    ld[:] = []
    seq4 = [(("T", i), i, oregs[i]) for i in range(12)] + [(9 + i, 12 + i, oregs[12 + i]) for i in range(8)]
    def b3_arrive():
        k(f"s_waitcnt vmcnt({newer({'b3'})})"); arrive()
    compute(seq4, deal(aloads(range(12, 20), oregs[12:]), 0, 2), {6: b3_arrive, 8: peek, 9: check})
    vm_fast = None
    sp('odone')
    k.srd(sXo, P_OUT, SZ_Q)
    k(f"s_mov_b32 s{sT}, 0xffff0000")
    t = wb[0]
    for u in range(5):
        for hh in range(2):
            k(f"v_lshlrev_b32 v{t+4*u+2*hh}, 16, v{xr+2*u+hh}\nv_and_b32 v{t+4*u+2*hh+1}, s{sT}, v{xr+2*u+hh}")
    for i in range(20):
        k(f"v_add_f32 v{t+i}, v{t+i}, v{oacc+i}")
    for u in range(5):
        k(f"v_cvt_pk_bf16_f32 v{xr+2*u}, v{t+4*u}, v{t+4*u+1}\nv_cvt_pk_bf16_f32 v{xr+2*u+1}, v{t+4*u+2}, v{t+4*u+3}")
    for u in range(5):
        k(f"buffer_store_dwordx2 {v(xr+2*u,2)}, v{vXo}, s[{sXo}:{sXo+3}], s{sXof} offen offset:{32*u} {oc}")
    ne = k.lab("ne")
    k(f"s_or_b32 s{sT}, s2, s{sW}\ns_cbranch_scc1 {ne}\ns_mov_b32 s{sT}, {hx(FL_E)}")
    gset(f"s{sT}", vP, vQ)
    k.label(ne)
    k.endpgm(P_WS, 3)
    k.label(late)
    vm[:] = save; ld[:] = []
    compute(seq3, deal(wpieces(12, L_W + 9 * 5120, 40, "b3"), 0, 2))
    probe(0xff, 1)
    for e in aloads(range(12), oregs[:12]): e()
    k(f"s_branch {join}")
    for sl, ok, st, r in cold3:
        a0 = af + 4*r
        k.label(sl)
        k("s_sleep 1")
        aloads([st], [r])[0]()
        k(f"s_waitcnt vmcnt(0)\nv_max3_u32 v{vQ+1}, v{a0}, v{a0+1}, v{a0+2}\nv_max_u32 v{vQ+1}, v{vQ+1}, v{a0+3}\nv_cmp_eq_u32 vcc, -1, v{vQ+1}\ns_cbranch_vccz {ok}")
        again(sl)
        k(f"s_branch {ok}")
    for sl, ok in cold2:
        k.label(sl)
        spinw(vXa, f"s{sCnt}")
        k(f"s_branch {ok}")
    for sl, need, ok in cold:
        k.label(sl)
        spinw(vFa, need)
        k(f"s_branch {ok}")
    k.label(end)
    k("s_endpgm")
    return k
```

```python
from common import *
import os

CH = 8 * KV_TILE
NSLOT = 3
ATT_LDS = NSLOT * CH
MARGIN = 64.0
TRIG = 2.0**48

def emit_attn(k, sT64, sHG, sW, vL, P_WS, sS, vb, lds_base, flag_base, slot=4, mega=None, budget=None, gset=None, tb=False, tail=None, yph=1, bal=0):
    CO = 'sc1' if mega else ''
    GT = KV_G if mega else KV_TILE
    sKV, sQ = sS, sS + 4
    sT, sC, sSo, sM0, sDelta, sRet, sMask, sSlot = sS + 8, sS + 11, sS + 12, sS + 13, sS + 14, sS + 15, sS + 16, sS + 17
    sEx = sS + 18
    a = Alloc(vb)
    Sx = [a(16, 4), a(16, 4)]
    O = a(16, 4)
    P = [a(8, 4), a(8, 4)]
    QA = a(4, 4); KA = a(4, 4); V0 = a(4, 4); V1 = a(4, 4)
    QB = a(2, 2); KB = a(2, 2)
    vKa, vKb, vVa, vD, vM, vN, vH, vFa, vFw, vFl = [a() for _ in range(10)]
    vT = a(6, 2)
    vPc, vPw, vPr, vPp = 108, 109, 110, 111
    if not mega:
        k.stamp(0); k.stamp_rt(5)
    if STAMP: k("s_mov_b32 s88, 0")
    k.srd(sKV, P_WS, 64 * GT, WS_KV)
    k(f"""v_and_b32 v{vN}, 31, v{vL}
    v_lshrrev_b32 v{vH}, 5, v{vL}
    v_lshlrev_b32 v{vD}, 4, v{vL}
    s_mul_i32 s{sSo}, s{sW}, {KV_TILE}
    s_add_u32 s{sM0}, s{sSo}, {lds_base}
    s_mul_i32 s{sSo}, s{sW}, {GT}
    s_mov_b32 s{sMask}, 0xffff0000
    s_mov_b32 s{sEx}, -1
    s_mov_b32 s{sEx+1}, 0xf""")
    def dma(slot):
        k(f"s_add_u32 m0, s{sM0}, {slot}")
        k("s_nop 0")
        k(f"buffer_load_dwordx4 v{vD}, s[{sKV}:{sKV+3}], s{sSo} offen {CO} lds")
        k(f"buffer_load_dwordx4 v{vD}, s[{sKV}:{sKV+3}], s{sSo} offen offset:1024 {CO} lds")
        k(f"buffer_load_dwordx4 v{vD}, s[{sKV}:{sKV+3}], s{sSo} offen offset:{KV_TILE-1024} {CO} lds")
        k(f"s_add_u32 s{sSo}, s{sSo}, {8*GT}")
    def first_tile():
        dma(0)
        k(f"s_sub_u32 s{sSo}, s{sSo}, {8*GT}")
    mega(first_tile)
    k.stamp(2)
    k(f"s_add_u32 s{sSo}, s{sSo}, {8*GT}")
    dma(CH)
    k(f"""v_add_u32 v{vKa}, {lds_base}, v{vD}
    v_lshlrev_b32 v{vKb}, 2, v{vL}
    v_add_u32 v{vKb}, {lds_base+KV_KB}, v{vKb}
    v_min_u32 v{vVa}, 20, v{vN}
    v_lshlrev_b32 v{vVa}, 4, v{vVa}
    v_mul_u32_u24 v{vT}, 336, v{vH}
    v_add_u32 v{vVa}, v{vVa}, v{vT}
    v_add_u32 v{vVa}, {lds_base+KV_V}, v{vVa}
    v_mov_b32 v{KB+1}, 0x3f803f80
    v_mov_b32 v{QB+1}, 0
    v_and_b32 v{vFa}, 7, v{vL}
    v_lshlrev_b32 v{vFa}, 2, v{vFa}
    v_add_u32 v{vFa}, {flag_base}, v{vFa}
    s_lshl_b32 s{sT}, s{sW}, 2
    s_add_u32 s{sT}, s{sT}, {flag_base}
    v_mov_b32 v{vFw}, s{sT}""")
    if bal:
        k(f"v_add_u32 v{vPw}, 96, v{vFw}\nv_xor_b32 v{vPr}, 16, v{vPw}\nv_mov_b32 v{vPc}, 0")
    for i in range(16):
        k(f"v_mov_b32 v{O+i}, 0")
    for i in range(8):
        k(f"v_mov_b32 v{P[1]+i}, 0")
    for r in (V0, V1):
        for i in range(4):
            k(f"v_mov_b32 v{r+i}, 0")

    def publish(val):
        k(f"v_mov_b32 v{vFl}, {val}")
        k(f"ds_write_b32 v{vFw}, v{vFl}")
    def spin(val):
        l = k.lab("spin"); d = k.lab("spun")
        k.label(l)
        k(f"ds_read_b32 v{vFl}, v{vFa}\ns_waitcnt lgkmcnt(0)\nv_cmp_gt_u32 vcc, {val}, v{vFl}\ns_cbranch_vccz {d}\ns_sleep 1")
        k(f"s_branch {l}" if budget is None else f"s_sub_u32 s{budget}, s{budget}, 1\ns_cbranch_scc0 {l}")
        k.label(d)
    def set_m():
        k(f"""v_sub_f32 v{vT}, 0, v{vM}
        v_and_b32 v{vT+1}, s{sMask}, v{vT}
        v_sub_f32 v{vT}, v{vT}, v{vT+1}
        v_and_b32 v{vT+2}, s{sMask}, v{vT}
        v_sub_f32 v{vT}, v{vT}, v{vT+2}
        v_lshrrev_b32 v{vT+1}, 16, v{vT+1}
        v_or_b32 v{vT+1}, v{vT+1}, v{vT+2}
        v_cmp_eq_u32 vcc, 0, v{vH}
        v_lshrrev_b32 v{vT}, 16, v{vT}
        s_nop 0
        v_cndmask_b32 v{QB+1}, v{vT}, v{vT+1}, vcc
        s_nop 1""")
    def qk(S):
        return [f"v_mfma_f32_32x32x16_bf16 {v(S,16)}, {v(KA,4)}, {v(QA,4)}, 0",
                f"v_mfma_f32_32x32x8_bf16 {v(S,16)}, {v(KB,2)}, {v(QB,2)}, {v(S,16)}"]
    def pv(Pp):
        return [f"v_mfma_f32_32x32x16_bf16 {v(O,16)}, {v(V0,4)}, {v(Pp,4)}, {v(O,16)}",
                f"v_mfma_f32_32x32x16_bf16 {v(O,16)}, {v(V1,4)}, {v(Pp+4,4)}, {v(O,16)}"]
    rdK = lambda i: [f"ds_read_b128 {v(KA,4)}, v{vKa} offset:{KV_TILE*i}", f"ds_read_b32 v{KB}, v{vKb} offset:{KV_TILE*i}"]
    rdV = lambda i: [f"ds_read_b128 {v(V0,4)}, v{vVa} offset:{KV_TILE*i}", f"ds_read_b128 {v(V1,4)}, v{vVa} offset:{KV_TILE*i+672}"]
    def maxtree(S, first):
        if first:
            k(f"v_max3_f32 v{vM}, v{S}, v{S+1}, v{S+2}\nv_max_f32 v{vM}, v{vM}, v{S+3}")
            rng = range(4, 16, 2)
        else:
            rng = range(0, 16, 2)
        for i in rng:
            k(f"v_max3_f32 v{vM}, v{vM}, v{S+i}, v{S+i+1}")
    def cross_half_max():
        k(f"v_mov_b32 v{vT}, v{vM}\ns_nop 1\nv_permlane32_swap_b32 v{vM}, v{vT}\nv_max_f32 v{vM}, v{vM}, v{vT}")

    G = lds_base + 2 * CH
    k(f"""s_and_b32 s{sT}, s{sW}, 1
    s_mul_i32 s{sT}, s{sT}, {32*192}
    s_lshr_b32 s{sT+1}, s{sW}, 1
    s_mul_i32 s{sT+1}, s{sT+1}, 40
    s_add_u32 s{sT}, s{sT}, s{sT+1}
    s_add_u32 s{sT}, s{sT}, {G}
    v_mul_u32_u24 v{vT}, 192, v{vN}
    v_add_u32 v{vT}, s{sT}, v{vT}
    v_lshl_add_u32 v{vT+1}, v{vH}, 4, v{vT}
    v_lshl_add_u32 v{vT+2}, v{vH}, 2, v{vT}
    s_waitcnt vmcnt(3)""")
    publish(1)
    spin(1)
    k(f"ds_read_b64 {v(QA,2)}, v{vT+1}\nds_read_b64 {v(QA+2,2)}, v{vT+1} offset:8\nds_read_b32 v{QB}, v{vT+2} offset:32")
    k.stamp(1)
    for t in range(2):
        for x in rdK(t):
            k(x)
        k("s_waitcnt lgkmcnt(0)")
        for x in qk(Sx[t]):
            k(x)
    for x in rdK(0):
        k(x)
    k("s_nop 7\ns_nop 1")
    maxtree(Sx[0], True)
    maxtree(Sx[1], False)
    cross_half_max()
    k(f"v_ceil_f32 v{vM}, v{vM}\nv_add_f32 v{vM}, {fl(MARGIN)}, v{vM}")
    set_m()
    k("s_waitcnt lgkmcnt(0)")
    for x in qk(Sx[0]):
        k(x)
    for x in rdK(1):
        k(x)
    k(f"ds_read_b32 v{vFl}, v{vFa}\nds_read_b32 v{vFl}, v{vFa}")
    k(f"s_mov_b32 s{sC}, 0\ns_mov_b32 s{sSlot}, 0\ns_mov_b64 vcc, 0\ns_nop 4")
    if not mega: k.stamp(2)
    loop = k.lab("aloop"); rare = k.lab("rare")
    rl = [k.lab(f"rin{i}") for i in range(4)]
    rb = [k.lab(f"rback{i}") for i in range(4)]
    if "a16" in os.environ.get("EXP", ""):
        for i in range(4): k(f"v_mov_b32 v{112+i}, {fl(-190.0)}")
    ACC = STAMP and os.environ.get("ACC")
    def t0():
        if ACC: k("s_memtime s[36:37]\ns_waitcnt lgkmcnt(0)")
    def t1(i):
        if ACC: k(f"s_memtime s[38:39]\ns_waitcnt lgkmcnt(0)\ns_sub_u32 s38, s38, s36\ns_add_u32 s{80+2*i}, s{80+2*i}, s38")
    if ACC: k("s_waitcnt lgkmcnt(0)\ns_mov_b32 s82, s80\ns_mov_b32 s84, s80")
    k.align(6)
    k.label(loop)
    if STAMP and os.environ.get("ACH"):
        for si, cc in zip((2, 1), os.environ["ACH"].split(",")):
            l = k.lab("ach")
            k(f"s_cmp_lg_u32 s{sC}, {cc}\ns_cbranch_scc1 {l}")
            k.stamp(si)
            k.label(l)
        k.align(3)
    for i in range(8):
        S, Sn, Pc, Pp = Sx[i % 2], Sx[1 - i % 2], P[i % 2], P[1 - i % 2]
        if i % 2 == 0:
            k(f"s_cbranch_vccnz {rl[i//2]}" if not os.environ.get("EXP") else "s_nop 0")
            k.label(rb[i // 2])
        if i == 6:
            l = k.lab("x"); d = k.lab("xd")
            if ACC == "a": t0()
            k(f"s_waitcnt lgkmcnt(4)\nv_cmp_gt_u32 vcc, s{sT}, v{vFl}\ns_cbranch_vccz {d}")
            if "anosync" not in os.environ.get("MX", ""): spin(f"s{sT}")
            k.label(d)
            if ACC == "a": t1(2)
            t0()
            nod = k.lab("nod")
            k(f"s_cmp_ge_u32 s{sC}, 6\ns_cbranch_scc1 {nod}")
            if "axd" not in os.environ.get("MX", ""): dma(f"s{sT+1}")
            k.label(nod)
            t1(1)
            k(f"v_add_u32 v{vKa}, s{sDelta}, v{vKa}\nv_add_u32 v{vKb}, s{sDelta}, v{vKb}")
        e = [f"v_exp_f32 v{S+j}, v{S+j}" for j in range(16)]
        c = [f"v_cvt_pk_bf16_f32 v{Pc+j}, v{S+2*j}, v{S+2*j+1}" for j in range(8)]
        m = qk(Sn) + pv(Pp)
        rk = rdK((i + 2) % 8); rv = rdV(i)
        seq = ["s_waitcnt lgkmcnt(2)" if i != yph + 1 else "s_waitcnt lgkmcnt(3)", e[0]]
        if i == 5:
            seq += [m[0], f"ds_read_b32 v{vFl}, v{vFa}", rk[0]]
        else:
            seq += [m[0], rk[0]]
        seq += e[1:5] + [c[0]]
        seq += [m[1], rk[1]] + e[5:7] + [c[1], c[2]]
        if i % 2 == 1:
            seq += [f"v_cmp_lt_f32 vcc, {fl(TRIG)}, v{O+12}"]
        seq += [e[7], e[8], "s_waitcnt lgkmcnt(2)"]
        seq += [m[2], rv[0]] + e[9:11] + [c[3]] + e[11:13] + [c[4]]
        seq += [m[3], rv[1]] + [e[13], c[5]] + e[14:16] + [c[6], c[7]]
        if bal and i % bal == 0:
            j = seq.index(m[0])
            seq[j:j] = [f"v_add_u32 v{vPc}, 1, v{vPc}"]
            j = seq.index(rk[0]) + 1
            seq[j:j] = [f"ds_write_b32 v{vPw}, v{vPc}", f"ds_read_b32 v{vPp}, v{vPr}"]
            j = seq.index(m[2]) - 1
            assert seq[j] == "s_waitcnt lgkmcnt(2)"
            seq[j] = "s_waitcnt lgkmcnt(4)"
        if bal and i % bal == 1 % bal:
            lb = k.lab("bal")
            j = seq.index(e[2])
            seq[j:j] = [f"v_cmp_lt_u32 s[{sS+20}:{sS+21}], v{vPp}, v{vPc}"]
            j = seq.index(m[1])
            seq[j:j] = [f"s_cmp_eq_u32 s{sS+20}, 0", "s_setprio 1", f"s_cbranch_scc1 {lb}", "s_setprio 0", lb + ":"]
        EXP = os.environ.get("EXP", "")
        if "nopv" in EXP: seq = [x for x in seq if x not in (m[2], m[3])]
        if "noqk" in EXP: seq = [x for x in seq if x not in (m[0], m[1])]
        if "noqb" in EXP: seq = [x for x in seq if x != m[1]]
        if "nolds" in EXP: seq = [(x if x not in rk + rv else f"ds_read_b32 v{vT}, v{vFa}") for x in seq]
        if "half" in EXP:
            if i % 2 == 0: seq = [x for x in seq if not x.startswith("s_waitcnt")]
            else:
                seq = [x for x in seq if x not in rk + rv]
                j = [n for n, x in enumerate(seq) if x.startswith("s_waitcnt")]
                seq[j[1]] = "s_waitcnt lgkmcnt(0)"
        if "linv" in EXP: seq = [x.replace(f"v{vVa} offset", f"v{vKa} offset") for x in seq]
        if "nokb" in EXP: seq = [(x if x != rk[1] else f"ds_read_b128 v[112:115], v{vKa}") for x in seq]
        if "fix" in EXP:
            import re
            seq = [re.sub(r"offset:\d+", "offset:0", x) if x.startswith("ds_read") else x for x in seq]
        if "a16" in EXP:
            q16 = lambda j, A: f"v_mfma_f32_16x16x32_bf16 {v(Sn+4*j,4)}, {v(A,4)}, {v(QA,4)}, v[112:115]"
            p16 = lambda j, A, B: f"v_mfma_f32_16x16x32_bf16 {v(O+4*j,4)}, {v(A,4)}, {v(B,4)}, {v(O+4*j,4)}"
            rep = {m[0]: (q16(0, KA), q16(1, V0)), m[1]: (q16(2, KA), q16(3, V1)), m[2]: (p16(0, V0, Pp), p16(1, V0, Pp + 4)), m[3]: (p16(2, V1, Pp), p16(3, V1, Pp + 4))}
            if "qonly" in EXP: del rep[m[2]], rep[m[3]]
            if "ponly" in EXP: del rep[m[0]], rep[m[1]]
            out = []; pend = None; cnt = 0
            for x in seq:
                if x in rep:
                    out.append(rep[x][0]); pend = rep[x][1]; cnt = 0
                else:
                    out.append(x); cnt += 1
                    if pend and cnt == 3: out.append(pend); pend = None
            seq = out
        if "noexp" in EXP: seq = [x.replace("v_exp_f32", "v_rndne_f32") for x in seq]
        for x in seq:
            k(x)
        if i == yph:
            if ACC == "b": t0()
            k(f"s_add_u32 s{sT}, s{sC}, 2\ns_waitcnt vmcnt(0)")
            if ACC == "b": t1(2)
            publish(f"s{sT}")
            k(f"""s_mov_b32 s{sDelta}, {CH}
            s_cmp_eq_u32 s{sSlot}, {2*CH}
            s_cmov_b32 s{sDelta}, {hx(-2*CH)}
            s_sub_u32 s{sT+1}, s{sSlot}, {CH}
            s_cmp_eq_u32 s{sSlot}, 0
            s_cmov_b32 s{sT+1}, {2*CH}""")
    k(f"""v_add_u32 v{vVa}, s{sDelta}, v{vVa}
    s_add_u32 s{sSlot}, s{sSlot}, s{sDelta}
    s_add_u32 s{sC}, s{sC}, 1
    s_cmp_lt_u32 s{sC}, 8
    s_cbranch_scc1 {loop}""")
    k.stamp(3)
    k("s_waitcnt lgkmcnt(0)")
    for x in pv(P[1]):
        k(x)
    fin = k.lab("afin"); slow = k.lab("slow")
    k("s_nop 7\ns_nop 3")
    k(f"v_mov_b32 v{vT}, 0x207")
    k(f"s_mov_b64 s[{sEx}:{sEx+1}], 0")
    for i in list(range(13)):
        k(f"v_cmp_class_f32 vcc, v{O+i}, v{vT}\ns_or_b64 s[{sEx}:{sEx+1}], s[{sEx}:{sEx+1}], vcc")
    if not os.environ.get("EXP"): k(f"s_cbranch_scc1 {slow}")
    k.label(fin)
    k.srd(sQ, P_WS, SZ_OUF, WS_OUF)
    k(f"""v_rcp_f32 v{vT+4}, v{O+12}
    s_lshr_b32 s{sT}, s{sW}, 1
    s_mul_i32 s{sT}, s{sT}, 5
    v_add_u32 v{vT}, s{sT}, v{vH}
    v_lshrrev_b32 v{vT+1}, 1, v{vT}
    v_and_b32 v{vT}, 1, v{vT}
    v_lshlrev_b32 v{vT}, 3, v{vT}
    v_lshl_add_u32 v{vT}, v{vT+1}, 8, v{vT}
    v_and_b32 v{vT+1}, 15, v{vN}
    v_lshl_add_u32 v{vT}, v{vT+1}, 4, v{vT}
    v_lshrrev_b32 v{vT+1}, 4, v{vN}
    v_mul_u32_u24 v{vT+1}, 2560, v{vT+1}
    s_and_b32 s{sT}, s{sW}, 1
    s_mul_i32 s{sT}, s{sT}, 5120
    s_add_u32 s{sT}, s{sT}, {G}
    v_add3_u32 v{vT}, v{vT}, v{vT+1}, s{sT}""")
    for i in range(12):
        k(f"v_mul_f32 v{O+i}, v{O+i}, v{vT+4}")
    for i in range(6):
        k(f"v_cvt_pk_bf16_f32 v{P[0]+i}, v{O+2*i}, v{O+2*i+1}")
    last = k.lab("last")
    k(f"""ds_write_b64 v{vT}, {v(P[0],2)}
    ds_write_b64 v{vT}, {v(P[0]+2,2)} offset:256
    s_mov_b32 exec_hi, 0
    ds_write_b64 v{vT}, {v(P[0]+4,2)} offset:512
    s_mov_b64 exec, 1
    v_mov_b32 v{vT+2}, {flag_base+48}
    v_mov_b32 v{vT+3}, 1
    s_waitcnt lgkmcnt(0)
    ds_add_rtn_u32 v{vT+3}, v{vT+2}, v{vT+3}
    s_waitcnt lgkmcnt(0)
    v_readfirstlane_b32 s{sT}, v{vT+3}
    s_mov_b64 exec, -1
    s_cmp_eq_u32 s{sT}, 7
    s_cbranch_scc1 {last}""")
    k.endpgm(P_WS, slot)
    k.label(last)
    tail(0)
    k(f"v_add_u32 v{vT}, {G}, v{vD}")
    for i in range(12):
        k(f"ds_read_b128 {v(Sx[0]+4*i,4)}, v{vT} offset:{2560*(i//3)+1024*(i%3)}")
    k(f"s_mul_i32 s{sT}, s{sT64}, {4*47*1024}\ns_mul_i32 s{sT+1}, s{sHG}, 2560\ns_add_u32 s{sT}, s{sT}, s{sT+1}")
    for i in range(12):
        k(f"s_waitcnt lgkmcnt({11-i})")
        if i % 3 == 2: k("s_mov_b32 exec_hi, 0")
        k(f"buffer_store_dwordx4 {v(Sx[0]+4*i,4)}, v{vD}, s[{sQ}:{sQ+3}], s{sT} offen offset:{1024*(i%3)} sc1")
        if i % 3 == 2: k(f"s_mov_b32 exec_hi, -1\ns_add_u32 s{sT}, s{sT}, {47*1024}")
    k(f"s_lshl_b32 s{sT}, s{sT64}, 3\ns_add_u32 s{sT}, s{sT}, s{sHG}\ns_lshl_b32 s{sT}, s{sT}, 7\ns_add_u32 s{sT}, s{sT}, {FL_O}")
    tail(1)
    if gset: gset(f"s{sT}", vT + 4, vT + 2)
    tail(2)
    k.endpgm(P_WS, slot)
    for i in range(4):
        k.label(rl[i])
        k(f"s_mov_b32 s{sRet}, {i}\ns_branch {rare}")
    k.label(rare)
    if STAMP: k("s_add_u32 s88, s88, 1")
    k("s_nop 7\ns_nop 3")
    k(f"""v_frexp_exp_i32_f32 v{vT+3}, v{O+12}
    v_add_u32 v{vT+3}, {int(MARGIN)}, v{vT+3}
    v_max_i32 v{vT+3}, 0, v{vT+3}
    v_cvt_f32_i32 v{vT+4}, v{vT+3}
    v_add_f32 v{vT+5}, v{vM}, v{vT+4}
    v_sub_f32 v{vT+4}, v{vT+5}, v{vM}
    v_mov_b32 v{vM}, v{vT+5}
    v_cvt_i32_f32 v{vT+3}, v{vT+4}
    v_sub_u32 v{vT+3}, 0, v{vT+3}""")
    for i in range(16):
        k(f"v_ldexp_f32 v{O+i}, v{O+i}, v{vT+3}")
    for i in range(16):
        k(f"v_sub_f32 v{Sx[0]+i}, v{Sx[0]+i}, v{vT+4}")
    for i in range(8):
        k(f"""v_lshlrev_b32 v{vT}, 16, v{P[1]+i}
        v_and_b32 v{vT+1}, s{sMask}, v{P[1]+i}
        v_ldexp_f32 v{vT}, v{vT}, v{vT+3}
        v_ldexp_f32 v{vT+1}, v{vT+1}, v{vT+3}
        v_cvt_pk_bf16_f32 v{P[1]+i}, v{vT}, v{vT+1}""")
    set_m()
    for i in range(3):
        k(f"s_cmp_eq_u32 s{sRet}, {i}\ns_cbranch_scc1 {rb[i]}")
    k(f"s_branch {rb[3]}")
    k.label(slow)
    p1 = k.lab("p1"); p2 = k.lab("p2")
    k(f"""v_mov_b32 v{QB+1}, 0
    v_mov_b32 v{vM}, 0xff7fffff
    v_lshlrev_b32 v{vKb}, 2, v{vL}
    v_min_u32 v{vVa}, 20, v{vN}
    v_lshlrev_b32 v{vVa}, 4, v{vVa}
    v_mul_u32_u24 v{vT}, 336, v{vH}
    v_add_u32 v{vVa}, v{vVa}, v{vT}
    s_mov_b32 s{sSo}, 0""")
    def gK():
        k(f"buffer_load_dwordx4 {v(KA,4)}, v{vD}, s[{sKV}:{sKV+3}], s{sSo} offen offset:{KV_KA} {CO}")
        k(f"buffer_load_dword v{KB}, v{vKb}, s[{sKV}:{sKV+3}], s{sSo} offen offset:{KV_KB} {CO}")
    k.label(p1)
    gK()
    k("s_waitcnt vmcnt(0)")
    for x in qk(Sx[0]):
        k(x)
    k("s_nop 7\ns_nop 3")
    maxtree(Sx[0], False)
    k(f"s_add_u32 s{sSo}, s{sSo}, {GT}\ns_cmp_lt_u32 s{sSo}, {64*GT}\ns_cbranch_scc1 {p1}")
    cross_half_max()
    set_m()
    for i in range(16):
        k(f"v_mov_b32 v{O+i}, 0")
    k(f"s_mov_b32 s{sSo}, 0")
    k.label(p2)
    gK()
    k(f"buffer_load_dwordx4 {v(V0,4)}, v{vVa}, s[{sKV}:{sKV+3}], s{sSo} offen offset:{KV_V} {CO}")
    k(f"buffer_load_dwordx4 {v(V1,4)}, v{vVa}, s[{sKV}:{sKV+3}], s{sSo} offen offset:{KV_V+672} {CO}")
    k("s_waitcnt vmcnt(0)")
    for x in qk(Sx[0]):
        k(x)
    k("s_nop 7\ns_nop 3")
    for j in range(16):
        k(f"v_exp_f32 v{Sx[0]+j}, v{Sx[0]+j}")
    k("s_nop 0")
    for j in range(8):
        k(f"v_cvt_pk_bf16_f32 v{P[0]+j}, v{Sx[0]+2*j}, v{Sx[0]+2*j+1}")
    k("s_nop 1")
    for x in pv(P[0]):
        k(x)
    k(f"s_add_u32 s{sSo}, s{sSo}, {GT}\ns_cmp_lt_u32 s{sSo}, {64*GT}\ns_cbranch_scc1 {p2}")
    k(f"s_nop 7\ns_nop 3\ns_branch {fin}")
    return a.n
```

```python
from common import *
import os

CH = 8 * KV_TILE
NSLOT = 3
ATT_LDS = NSLOT * CH
MARGIN = 64.0
TRIG = 2.0**48

def emit_attn(k, sT64, sHG, sW, vL, P_WS, sS, vb, lds_base, flag_base, slot=4, mega=None, budget=None, gset=None, tb=False, tail=None, yph=1, bal=0):
    GT = KV_G
    sKV, sQ = sS, sS + 4
    sT, sC, sSo, sM0, sDelta, sRet, sMask, sSlot = sS + 8, sS + 11, sS + 12, sS + 13, sS + 14, sS + 15, sS + 16, sS + 17
    sEx = sS + 18
    a = Alloc(vb)
    Sx = [a(16, 4), a(16, 4)]
    O = [a(16, 4), a(16, 4)]
    P = [a(8, 4), a(8, 4)]
    KA = a(4, 4); V0 = a(4, 4); V1 = a(4, 4)
    KB = a(2, 2)
    vKa, vKb, vVa, vD, vN, vH = [a() for _ in range(6)]
    assert a.n <= 104, a.n
    a = Alloc(112)
    QA = [a(4, 4), a(4, 4)]; QB = [a(2, 2), a(2, 2)]
    vM = [a(), a()]
    vFa, vFw, vFl = a(), a(), a()
    vT = a(6, 2)
    assert a.n <= 168
    G = lds_base + 2 * CH
    if STAMP: k("s_mov_b32 s88, 0")
    k.srd(sKV, P_WS, 64 * GT, WS_KV)
    k(f"""v_and_b32 v{vN}, 31, v{vL}
    v_lshrrev_b32 v{vH}, 5, v{vL}
    v_lshlrev_b32 v{vD}, 4, v{vL}
    s_mul_i32 s{sM0}, s{sW}, {KV_TILE}
    s_add_u32 s{sM0}, s{sM0}, {lds_base}
    s_mul_i32 s{sSo}, s{sW}, {GT}
    s_mov_b32 s{sMask}, 0xffff0000""")
    def dma(slot):
        k(f"s_add_u32 m0, s{sM0}, {slot}\ns_nop 0")
        for o in (0, 1024, KV_TILE - 1024):
            k(f"buffer_load_dwordx4 v{vD}, s[{sKV}:{sKV+3}], s{sSo} offen offset:{o} sc1 lds")
        k(f"s_add_u32 s{sSo}, s{sSo}, {8*GT}")
    def first_tile():
        dma(0)
        k(f"s_sub_u32 s{sSo}, s{sSo}, {8*GT}")
    mega(first_tile)
    k.stamp(2)
    k(f"s_add_u32 s{sSo}, s{sSo}, {8*GT}")
    dma(CH)
    def lane_addrs(base):
        k(f"""v_add_u32 v{vKa}, {base}, v{vD}
        v_lshlrev_b32 v{vKb}, 2, v{vL}
        v_add_u32 v{vKb}, {base}, v{vKb}
        v_min_u32 v{vVa}, 20, v{vN}
        v_lshlrev_b32 v{vVa}, 4, v{vVa}
        v_mul_u32_u24 v{vT}, 336, v{vH}
        v_add_u32 v{vVa}, v{vVa}, v{vT}
        v_add_u32 v{vVa}, {base}, v{vVa}""")
    k(f"s_lshr_b32 s{sT+2}, s{sW}, 2\ns_mul_i32 s{sT}, s{sT+2}, {KV_TILE}\ns_add_u32 s{sT}, s{sT}, {lds_base}")
    lane_addrs(f"s{sT}")
    k(f"""v_mov_b32 v{KB+1}, 0x3f803f80
    v_mov_b32 v{QB[0]+1}, 0
    v_mov_b32 v{QB[1]+1}, 0
    v_and_b32 v{vFa}, 7, v{vL}
    v_lshlrev_b32 v{vFa}, 2, v{vFa}
    v_add_u32 v{vFa}, {flag_base}, v{vFa}
    s_lshl_b32 s{sT}, s{sW}, 2
    s_add_u32 s{sT}, s{sT}, {flag_base}
    v_mov_b32 v{vFw}, s{sT}""")
    for r in list(range(O[0], O[0] + 32)) + list(range(P[1], P[1] + 8)) + list(range(V0, V0 + 8)):
        k(f"v_mov_b32 v{r}, 0")

    def publish(val):
        k(f"v_mov_b32 v{vFl}, {val}\nds_write_b32 v{vFw}, v{vFl}")
    def spin(val, va=None):
        l = k.lab("spin"); d = k.lab("spun")
        k.label(l)
        k(f"ds_read_b32 v{vFl}, v{va or vFa}\ns_waitcnt lgkmcnt(0)\nv_cmp_gt_u32 vcc, {val}, v{vFl}\ns_cbranch_vccz {d}\ns_sleep 1")
        k(f"s_sub_u32 s{budget}, s{budget}, 1\ns_cbranch_scc0 {l}")
        k.label(d)
    def set_m(x):
        k(f"""v_sub_f32 v{vT}, 0, v{vM[x]}
        v_and_b32 v{vT+1}, s{sMask}, v{vT}
        v_sub_f32 v{vT}, v{vT}, v{vT+1}
        v_and_b32 v{vT+2}, s{sMask}, v{vT}
        v_sub_f32 v{vT}, v{vT}, v{vT+2}
        v_lshrrev_b32 v{vT+1}, 16, v{vT+1}
        v_or_b32 v{vT+1}, v{vT+1}, v{vT+2}
        v_cmp_eq_u32 vcc, 0, v{vH}
        v_lshrrev_b32 v{vT}, 16, v{vT}
        s_nop 0
        v_cndmask_b32 v{QB[x]+1}, v{vT}, v{vT+1}, vcc
        s_nop 1""")
    def qk(x):
        S = Sx[x]
        return [f"v_mfma_f32_32x32x16_bf16 {v(S,16)}, {v(KA,4)}, {v(QA[x],4)}, 0",
                f"v_mfma_f32_32x32x8_bf16 {v(S,16)}, {v(KB,2)}, {v(QB[x],2)}, {v(S,16)}"]
    def pv(x):
        return [f"v_mfma_f32_32x32x16_bf16 {v(O[x],16)}, {v(V0,4)}, {v(P[x],4)}, {v(O[x],16)}",
                f"v_mfma_f32_32x32x16_bf16 {v(O[x],16)}, {v(V1,4)}, {v(P[x]+4,4)}, {v(O[x],16)}"]
    rdK = lambda j: [f"ds_read_b128 {v(KA,4)}, v{vKa} offset:{2*KV_TILE*j}", f"ds_read_b32 v{KB}, v{vKb} offset:{2*KV_TILE*j+KV_KB}"]
    rdV = lambda j: [f"ds_read_b128 {v(V0,4)}, v{vVa} offset:{2*KV_TILE*j+KV_V}", f"ds_read_b128 {v(V1,4)}, v{vVa} offset:{2*KV_TILE*j+KV_V+672}"]
    def maxtree(x, first):
        S = Sx[x]
        if first:
            k(f"v_max3_f32 v{vM[x]}, v{S}, v{S+1}, v{S+2}\nv_max_f32 v{vM[x]}, v{vM[x]}, v{S+3}")
        for i in range(4 if first else 0, 16, 2):
            k(f"v_max3_f32 v{vM[x]}, v{vM[x]}, v{S+i}, v{S+i+1}")
    def finish_max(margin):
        k(f"v_mov_b32 v{vT}, v{vM[0]}\nv_mov_b32 v{vT+1}, v{vM[1]}\ns_nop 0")
        for x in range(2): k(f"v_permlane32_swap_b32 v{vM[x]}, v{vT+x}")
        for x in range(2):
            k(f"v_max_f32 v{vM[x]}, v{vM[x]}, v{vT+x}\nv_ceil_f32 v{vM[x]}, v{vM[x]}")
            if margin: k(f"v_add_f32 v{vM[x]}, {fl(margin)}, v{vM[x]}")
        set_m(0); set_m(1)

    k(f"""s_and_b32 s{sT}, s{sW}, 1
    s_mul_i32 s{sT}, s{sT}, {32*192}
    s_and_b32 s{sT+1}, s{sW}, 2
    s_add_u32 s{sRet}, s{sT+1}, s{sT+2}
    s_mul_i32 s{sT+1}, s{sRet}, 40
    s_add_u32 s{sT}, s{sT}, {G}
    v_mul_u32_u24 v{vT}, 192, v{vN}
    v_add_u32 v{vT}, s{sT}, v{vT}
    v_lshl_add_u32 v{vT+1}, v{vH}, 4, v{vT}
    v_lshl_add_u32 v{vT+2}, v{vH}, 2, v{vT}
    s_xor_b32 s{sT}, s{sRet}, 1
    s_mul_i32 s{sT}, s{sT}, 40
    v_add_u32 v{vT+3}, s{sT}, v{vT+1}
    v_add_u32 v{vT+4}, s{sT}, v{vT+2}
    v_add_u32 v{vT+1}, s{sT+1}, v{vT+1}
    v_add_u32 v{vT+2}, s{sT+1}, v{vT+2}
    s_waitcnt vmcnt(3)""")
    publish(1)
    spin(1)
    for x in range(2):
        k(f"ds_read_b64 {v(QA[x],2)}, v{vT+1+2*x}\nds_read_b64 {v(QA[x]+2,2)}, v{vT+1+2*x} offset:8\nds_read_b32 v{QB[x]}, v{vT+2+2*x} offset:32")
    k.stamp(1)
    for n, j in enumerate((1, 0)):
        for x in rdK(j): k(x)
        k("s_waitcnt lgkmcnt(0)")
        for x in qk(0) + qk(1): k(x)
        k("s_nop 7\ns_nop 1")
        maxtree(0, n == 0)
        k("s_nop 1")
        maxtree(1, n == 0)
    finish_max(MARGIN)
    for x in qk(0): k(x)
    k(f"s_mov_b32 s{sC}, 0\ns_mov_b32 s{sSlot}, 0\ns_nop 7\ns_nop 1")
    loop = k.lab("aloop")
    ent = {2: 0, 6: 0, 3: 1, 7: 1}
    rl = {i: k.lab(f"rin{i}") for i in ent}
    rb = {i: k.lab(f"rback{i}") for i in ent}
    k.align(6)
    k.label(loop)
    if STAMP and os.environ.get("ACH"):
        for si, cc in zip((2, 1), os.environ["ACH"].split(",")):
            l = k.lab("ach")
            k(f"s_cmp_lg_u32 s{sC}, {cc}\ns_cbranch_scc1 {l}")
            k.stamp(si)
            k.label(l)
        k.align(3)
    xs = k.lab("xs"); xd = k.lab("xd")
    for i in range(8):
        x, j = i % 2, i // 2
        S, Pc = Sx[x], P[x]
        if i in ent:
            k(f"s_cbranch_vccnz {rl[i]}")
            k.label(rb[i])
        if i == 6:
            k(f"v_cmp_gt_u32 vcc, s{sT}, v{vFl}\ns_cbranch_vccnz {xs}")
            k.label(xd)
            nod = k.lab("nod")
            k(f"s_cmp_ge_u32 s{sC}, 6\ns_cbranch_scc1 {nod}")
            dma(f"s{sT+1}")
            k.label(nod)
            k(f"v_add_u32 v{vKa}, s{sDelta}, v{vKa}\nv_add_u32 v{vKb}, s{sDelta}, v{vKb}")
        e = [f"v_exp_f32 v{S+n}, v{S+n}" for n in range(16)]
        c = [f"v_cvt_pk_bf16_f32 v{Pc+n}, v{S+2*n}, v{S+2*n+1}" for n in range(8)]
        m = qk(1 - x) + pv(1 - x)
        R = [[r] for r in rdK((j + 1) % 4) + rdV(j)] if x == 0 else [[], [], [], []]
        if i == 5: R[0] = [f"ds_read_b32 v{vFl}, v{vFa}"]
        seq = (["s_waitcnt lgkmcnt(2)"] if x else []) + [e[0], m[0]] + R[0] + e[1:5] + [c[0]]
        seq += [m[1]] + R[1] + e[5:7] + [c[1], c[2]]
        if i + 1 in ent:
            seq += [f"v_cmp_lt_f32 vcc, {fl(TRIG)}, v{O[1-x]+12}"]
        seq += [e[7], e[8]] + (["s_waitcnt lgkmcnt(0)"] if x else [])
        seq += [m[2]] + R[2] + e[9:11] + [c[3]] + e[11:13] + [c[4]]
        seq += [m[3]] + R[3] + [e[13], c[5]] + e[14:16] + [c[6], c[7]]
        for y in seq: k(y)
        if i == yph:
            assert i % 2 == 1
            k(f"s_add_u32 s{sT}, s{sC}, 2\ns_waitcnt vmcnt(0)")
            publish(f"s{sT}")
            k(f"""s_mov_b32 s{sDelta}, {CH}
            s_cmp_eq_u32 s{sSlot}, {2*CH}
            s_cmov_b32 s{sDelta}, {hx(-2*CH)}
            s_sub_u32 s{sT+1}, s{sSlot}, {CH}
            s_cmp_eq_u32 s{sSlot}, 0
            s_cmov_b32 s{sT+1}, {2*CH}""")
    k(f"""v_add_u32 v{vVa}, s{sDelta}, v{vVa}
    s_add_u32 s{sSlot}, s{sSlot}, s{sDelta}
    s_add_u32 s{sC}, s{sC}, 1
    s_cmp_lt_u32 s{sC}, 8
    s_cbranch_scc1 {loop}""")
    k.stamp(3)
    for y in pv(1): k(y)
    fin = k.lab("afin"); slow = k.lab("slow")
    def area(dst, w):
        k(f"s_mul_i32 s{dst}, s{w}, 3584\ns_add_u32 s{sDelta}, s{dst}, {G + 10240 - 5*3584}\ns_add_u32 s{dst}, s{dst}, {lds_base}\ns_cmp_ge_u32 s{w}, 5\ns_cselect_b32 s{dst}, s{sDelta}, s{dst}")
    area(sT, sW)
    k(f"s_xor_b32 s{sT+2}, s{sW}, 4")
    area(sT + 1, sT + 2)
    k(f"v_maximum3_f32 v{vT}, |v{O[0]}|, |v{O[0]+1}|, |v{O[0]+12}|")
    for i in range(2, 12, 2):
        k(f"v_maximum3_f32 v{vT}, |v{O[0]+i}|, |v{O[0]+i+1}|, v{vT}")
    for i in range(0, 14, 2):
        k(f"v_maximum3_f32 v{vT}, |v{O[1]+i}|, |v{O[1]+i+1}|, v{vT}")
    k(f"v_cmp_ngt_f32 vcc, {fl(2.0**120)}, v{vT}\ns_cbranch_vccnz {slow}")
    k.label(fin)
    k(f"""v_add_u32 v{vT}, s{sT}, v{vD}
    v_mov_b32 v{O[1]+13}, v{vM[1]}
    v_lshlrev_b32 v{vT+2}, 3, v{vL}
    v_add_u32 v{vT+1}, s{sT}, v{vT+2}
    ds_write_b128 v{vT}, {v(O[1],4)}
    ds_write_b128 v{vT}, {v(O[1]+4,4)} offset:1024
    ds_write_b128 v{vT}, {v(O[1]+8,4)} offset:2048
    ds_write_b64 v{vT+1}, {v(O[1]+12,2)} offset:3072
    v_xor_b32 v{vT+3}, 16, v{vFw}
    v_add_u32 v{vT}, s{sT+1}, v{vD}
    v_add_u32 v{vT+1}, s{sT+1}, v{vT+2}
    s_waitcnt lgkmcnt(0)""")
    publish(10)
    k.srd(sQ, P_WS, SZ_OUF, WS_OUF)
    spin(10, vT + 3)
    X = Sx[0]
    k(f"""ds_read_b64 {v(X+12,2)}, v{vT+1} offset:3072
    ds_read_b128 {v(X,4)}, v{vT}
    ds_read_b128 {v(X+4,4)}, v{vT} offset:1024
    ds_read_b128 {v(X+8,4)}, v{vT} offset:2048""")
    k(f"""s_lshr_b32 s{sT}, s{sW}, 2
    s_and_b32 s{sT+1}, s{sW}, 2
    s_add_u32 s{sT}, s{sT}, s{sT+1}
    s_mul_i32 s{sT}, s{sT}, 5
    v_add_u32 v{vT}, s{sT}, v{vH}
    v_lshrrev_b32 v{vT+1}, 1, v{vT}
    v_and_b32 v{vT}, 1, v{vT}
    v_lshlrev_b32 v{vT}, 3, v{vT}
    v_lshl_add_u32 v{vT}, v{vT+1}, 8, v{vT}
    v_and_b32 v{vT+1}, 15, v{vN}
    v_lshl_add_u32 v{vT}, v{vT+1}, 4, v{vT}
    v_lshrrev_b32 v{vT+1}, 4, v{vN}
    v_mul_u32_u24 v{vT+1}, 2560, v{vT+1}
    s_and_b32 s{sT}, s{sW}, 1
    s_mul_i32 s{sT}, s{sT}, 5120
    s_add_u32 s{sT}, s{sT}, {G}
    v_add3_u32 v{vT}, v{vT}, v{vT+1}, s{sT}
    s_waitcnt lgkmcnt(3)
    v_max_f32 v{vT+1}, v{vM[0]}, v{X+13}
    v_sub_f32 v{vT+2}, v{vM[0]}, v{vT+1}
    v_sub_f32 v{vT+3}, v{X+13}, v{vT+1}
    v_cvt_i32_f32 v{vT+2}, v{vT+2}
    v_cvt_i32_f32 v{vT+3}, v{vT+3}
    v_ldexp_f32 v{O[0]+12}, v{O[0]+12}, v{vT+2}
    v_ldexp_f32 v{X+12}, v{X+12}, v{vT+3}
    v_add_f32 v{vT+4}, v{O[0]+12}, v{X+12}
    v_rcp_f32 v{vT+4}, v{vT+4}""")
    for i in range(12): k(f"v_ldexp_f32 v{O[0]+i}, v{O[0]+i}, v{vT+2}")
    k("s_waitcnt lgkmcnt(0)")
    for i in range(12): k(f"v_ldexp_f32 v{X+i}, v{X+i}, v{vT+3}")
    for i in range(12): k(f"v_add_f32 v{X+i}, v{X+i}, v{O[0]+i}")
    for i in range(12): k(f"v_mul_f32 v{X+i}, v{X+i}, v{vT+4}")
    for i in range(6): k(f"v_cvt_pk_bf16_f32 v{P[0]+i}, v{X+2*i}, v{X+2*i+1}")
    last = k.lab("last")
    k(f"""ds_write_b64 v{vT}, {v(P[0],2)}
    ds_write_b64 v{vT}, {v(P[0]+2,2)} offset:256
    s_mov_b32 exec_hi, 0
    ds_write_b64 v{vT}, {v(P[0]+4,2)} offset:512
    s_mov_b64 exec, 1
    v_mov_b32 v{vT+2}, {flag_base+48}
    v_mov_b32 v{vT+3}, 1
    s_waitcnt lgkmcnt(0)
    ds_add_rtn_u32 v{vT+3}, v{vT+2}, v{vT+3}
    s_waitcnt lgkmcnt(0)
    v_readfirstlane_b32 s{sT}, v{vT+3}
    s_mov_b64 exec, -1
    s_cmp_eq_u32 s{sT}, 7
    s_cbranch_scc1 {last}""")
    k.endpgm(P_WS, slot)
    k.label(last)
    tail(0)
    k(f"v_add_u32 v{vT}, {G}, v{vD}")
    for i in range(12):
        k(f"ds_read_b128 {v(Sx[0]+4*i,4)}, v{vT} offset:{2560*(i//3) + (0, 1024, 1536)[i%3]}")
    k(f"s_mul_i32 s{sT}, s{sT64}, {4*47*1024}\ns_mul_i32 s{sT+1}, s{sHG}, 2560\ns_add_u32 s{sT}, s{sT}, s{sT+1}")
    for i in range(12):
        k(f"s_waitcnt lgkmcnt({11-i})")
        k(f"buffer_store_dwordx4 {v(Sx[0]+4*i,4)}, v{vD}, s[{sQ}:{sQ+3}], s{sT} offen offset:{(0, 1024, 1536)[i%3]} sc1")
        if i % 3 == 2: k(f"s_add_u32 s{sT}, s{sT}, {47*1024}")
    k(f"s_lshl_b32 s{sT}, s{sT64}, 3\ns_add_u32 s{sT}, s{sT}, s{sHG}\ns_lshl_b32 s{sT}, s{sT}, 7\ns_add_u32 s{sT}, s{sT}, {FL_O}")
    tail(1)
    if gset: gset(f"s{sT}", vT + 4, vT + 2)
    tail(2)
    k.endpgm(P_WS, slot)
    k.label(xs)
    spin(f"s{sT}")
    k(f"s_branch {xd}")
    for x in range(2):
        rare = k.lab("rare")
        ph = [i for i in ent if ent[i] == x]
        k.label(rl[ph[0]])
        k(f"s_mov_b32 s{sRet}, 0\ns_branch {rare}")
        k.label(rl[ph[1]])
        k(f"s_mov_b32 s{sRet}, 1")
        k.label(rare)
        if STAMP: k("s_add_u32 s88, s88, 1")
        k("s_nop 7\ns_nop 3")
        k(f"""v_frexp_exp_i32_f32 v{vT+3}, v{O[x]+12}
        v_add_u32 v{vT+3}, {int(MARGIN)}, v{vT+3}
        v_max_i32 v{vT+3}, 0, v{vT+3}
        v_cvt_f32_i32 v{vT+4}, v{vT+3}
        v_add_f32 v{vT+5}, v{vM[x]}, v{vT+4}
        v_sub_f32 v{vT+4}, v{vT+5}, v{vM[x]}
        v_mov_b32 v{vM[x]}, v{vT+5}
        v_cvt_i32_f32 v{vT+3}, v{vT+4}
        v_sub_u32 v{vT+3}, 0, v{vT+3}""")
        for i in range(16): k(f"v_ldexp_f32 v{O[x]+i}, v{O[x]+i}, v{vT+3}")
        for i in range(16): k(f"v_sub_f32 v{Sx[x]+i}, v{Sx[x]+i}, v{vT+4}")
        set_m(x)
        k(f"s_cmp_eq_u32 s{sRet}, 0\ns_cbranch_scc1 {rb[ph[0]]}\ns_branch {rb[ph[1]]}")
    k.label(slow)
    p1 = k.lab("p1"); p2 = k.lab("p2")
    lane_addrs("0")
    k(f"""v_mov_b32 v{QB[0]+1}, 0
    v_mov_b32 v{QB[1]+1}, 0
    v_mov_b32 v{vM[0]}, 0xff7fffff
    v_mov_b32 v{vM[1]}, 0xff7fffff
    s_lshr_b32 s{sC}, s{sW}, 2
    s_mul_i32 s{sC}, s{sC}, {GT}
    s_mov_b32 s{sSo}, s{sC}""")
    def gK():
        k(f"buffer_load_dwordx4 {v(KA,4)}, v{vKa}, s[{sKV}:{sKV+3}], s{sSo} offen offset:{KV_KA} sc1")
        k(f"buffer_load_dword v{KB}, v{vKb}, s[{sKV}:{sKV+3}], s{sSo} offen offset:{KV_KB} sc1")
    nxt = lambda l: k(f"s_add_u32 s{sSo}, s{sSo}, {2*GT}\ns_cmp_lt_u32 s{sSo}, {64*GT}\ns_cbranch_scc1 {l}")
    k.label(p1)
    gK()
    k("s_waitcnt vmcnt(0)")
    for y in qk(0) + qk(1): k(y)
    k("s_nop 7\ns_nop 3")
    maxtree(0, False); maxtree(1, False)
    nxt(p1)
    finish_max(0)
    for i in range(32): k(f"v_mov_b32 v{O[0]+i}, 0")
    k(f"s_mov_b32 s{sSo}, s{sC}")
    k.label(p2)
    gK()
    k(f"buffer_load_dwordx4 {v(V0,4)}, v{vVa}, s[{sKV}:{sKV+3}], s{sSo} offen offset:{KV_V} sc1")
    k(f"buffer_load_dwordx4 {v(V1,4)}, v{vVa}, s[{sKV}:{sKV+3}], s{sSo} offen offset:{KV_V+672} sc1")
    k("s_waitcnt vmcnt(0)")
    for y in qk(0) + qk(1): k(y)
    k("s_nop 7\ns_nop 3")
    for n in range(32): k(f"v_exp_f32 v{Sx[0]+n}, v{Sx[0]+n}")
    k("s_nop 0")
    for n in range(16): k(f"v_cvt_pk_bf16_f32 v{P[0]+n}, v{Sx[0]+2*n}, v{Sx[0]+2*n+1}")
    k("s_nop 1")
    for y in pv(0) + pv(1): k(y)
    nxt(p2)
    k(f"s_nop 7\ns_nop 3\ns_branch {fin}")
    return 104
```

```python
from common import *
import os, math
from k2parts import emit_repack
import attn2, attn3
from attn2 import ATT_LDS, CH

MX = os.environ.get('MX', '')
SP = os.environ.get('SP', 'p1,p2,p3,p4').split(',')
QSCALE = math.log2(math.e) / math.sqrt(20.0)
GC0 = -2.0 * math.sqrt(2.0 / math.pi) * math.log2(math.e)
GC1 = GC0 * 0.044715

L_A = ATT_LDS
L_Z = L_A + 3 * 16384
L_W = L_A - 4096
L_CS = L_Z + 6 * 8192
L_F = L_CS + 2048
F_G, F_OC, F_XC, F_GO, F_XR, F_AUX = 32, 48, 52, 56, 60, 64
MEGA_LDS = L_F + 128
F_QS, F_STS, F_KVS, F_CS = 2 * CH, 2 * CH + 12288, 2 * CH + 12800, 2 * CH + 18176
F_B, F_S = ATT_LDS // 3, 20480
NAME = "parallel_sum__grouped_kv_mqa__mixer_gmlp__prompt_kernel"

def gen_mega(noatt=False, patz='33333333', pats='33333333', lprio=0, seam=True, oprio=0, pf='gis', ntx='', ntw='', repw='g', cpf=True, pslp=4, deep=False, tb=False, wfat=6, rprio=3, yph=3, thr=None, bal=0, ldot=True, xst=6, frot=0, orot=False, tsplit=32, prot=None, sent=False, oc='', lq=4, lk=5, xstk=8, bal33=True, noex=True, spe=True, two=True):
    k = Kern(NAME, 256, 768, MEGA_LDS, 168, sgprs=100)
    P_X, P_WQ, P_WK, P_WV, P_WO = 44, 46, 48, 50, 52
    P_WIN, P_WSP, P_BSP, P_WOUT, P_OUT, P_DBG, P_WS = 56, 58, 60, 62, 64, 66, 68
    sWid, sTok, sBlk, sTB, sFG, sBud = 3, 4, 5, 6, 7, 70
    sT64, sHG = 98, 99
    sNo = 96
    sFl = 72
    vL = 1
    end = k.lab("end"); gem = k.lab("gem")
    k(f"s_cmp_ge_u32 s2, 256\ns_cbranch_scc1 {end}")
    k.stamp(0); k.stamp_rt(5)
    k(f"s_load_dwordx8 s[{P_X}:{P_X+7}], s[0:1], {KA_X}\ns_load_dwordx2 s[{P_WO}:{P_WO+1}], s[0:1], {KA_WO}")
    k(f"s_load_dwordx8 s[{P_WIN}:{P_WIN+7}], s[0:1], {KA_WIN}\ns_load_dwordx4 s[{P_OUT}:{P_OUT+3}], s[0:1], {KA_OUT}\ns_load_dwordx2 s[{P_WS}:{P_WS+1}], s[0:1], {KA_WS}")
    k(f"""v_lshrrev_b32 v2, 6, v0
    v_and_b32 v1, 63, v0
    v_readfirstlane_b32 s{sWid}, v2
    v_and_b32 v2, 31, v0
    v_lshlrev_b32 v2, 2, v2
    v_add_u32 v2, {L_F}, v2
    v_mov_b32 v3, 0
    ds_write_b32 v2, v3
    v_and_b32 v2, 3, v0
    v_lshlrev_b32 v2, 8, v2
    v_add_u32 v2, {L_CS}, v2
    ds_write_b32 v2, v3
    s_and_b32 s{sTB}, s2, 7
    s_lshl_b32 s{sBlk}, s{sTB}, 5
    s_lshr_b32 s{sTok}, s2, 3
    s_add_u32 s{sBlk}, s{sBlk}, s{sTok}
    s_lshl_b32 s{sTok}, s{sBlk}, 3
    s_add_u32 s{sTok}, s{sTok}, s{sWid}
    s_lshl_b32 s{sTB}, s{sTB}, 1
    s_bfe_u32 s{sFG}, s2, 0x10003
    s_add_u32 s{sTB}, s{sTB}, s{sFG}
    s_lshr_b32 s{sFG}, s2, 4
    s_and_b32 s{sT64}, s2, 7
    s_lshl_b32 s{sT64}, s{sT64}, 2
    s_bfe_u32 s{sHG}, s2, 0x20003
    s_add_u32 s{sT64}, s{sT64}, s{sHG}
    s_lshr_b32 s{sHG}, s2, 5
    s_mov_b32 s{sBud}, 400000
    s_waitcnt lgkmcnt(0)""")
    k.srd(sFl, P_WS, SZ_FLAG, WS_FLAG)
    k(f"s_load_dwordx2 s[{sNo}:{sNo+1}], s[{sFl}:{sFl+1}], {hx(FL_E)}")
    k(f"s_cmp_ge_u32 s{sWid}, 8\ns_cbranch_scc1 {gem}")

    def again(l):
        k(f"s_sub_u32 s{sBud}, s{sBud}, 1\ns_cbranch_scc0 {l}")
    def lds_wait(addr, va, vd, slp=1):
        val = {F_XR: 8, F_GO: 4, F_OC: 10, F_XC: 1}[addr - L_F]
        l = k.lab("lw"); d = k.lab("lwd")
        k(f"v_mov_b32 v{va}, {addr}")
        k.label(l)
        k(f"ds_read_b32 v{vd}, v{va}\ns_waitcnt lgkmcnt(0)\nv_cmp_gt_u32 vcc, {val}, v{vd}\ns_cbranch_vccz {d}\ns_sleep {slp}")
        again(l)
        k.label(d)
    def lds_set(addr, va, vd):
        k(f"v_mov_b32 v{va}, {addr}\nv_mov_b32 v{vd}, 1\nds_write_b32 v{va}, v{vd}")
    def gcheck(vd):
        k(f"v_cmp_ne_u64 vcc, s[{sNo}:{sNo+1}], {v(vd,2)}")
    def gload(soff, voff, vd):
        return f"buffer_load_dwordx2 {v(vd,2)}, v{voff}, s[{sFl}:{sFl+3}], {soff} offen sc1"
    def gpoll(soff, voff, vd, mask, slp):
        l = k.lab("pl"); d = k.lab("pd")
        if mask is not None: k(f"s_mov_b64 exec, {hx(mask)}")
        k.label(l)
        k(gload(soff, voff, vd))
        k("s_waitcnt vmcnt(0)")
        gcheck(vd)
        k(f"s_cbranch_vccz {d}\ns_sleep {slp}")
        again(l)
        k.label(d)
        if mask is not None: k("s_mov_b64 exec, -1")
    def gset(soff, va, vd):
        k(f"""v_mov_b32 v{vd}, s{sNo}
        v_mov_b32 v{vd+1}, s{sNo+1}
        v_lshlrev_b32 v{va}, 3, v{vL}
        s_mov_b64 exec, 0xffff
        buffer_store_dwordx2 {v(vd,2)}, v{va}, s[{sFl}:{sFl+3}], {soff} offen sc1
        s_mov_b64 exec, -1""")
    def spoll(offs, s0, slp=1):
        l = k.lab("sp"); r = k.lab("spr"); d = k.lab("spd")
        k.label(l)
        for i, (so, im) in enumerate(offs):
            k(f"s_load_dwordx2 s[{s0+2*i}:{s0+2*i+1}], s[{sFl}:{sFl+1}], s{so} offset:{hx(im)} glc")
        k("s_waitcnt lgkmcnt(0)")
        for i in range(len(offs)):
            k(f"s_cmp_eq_u64 s[{s0+2*i}:{s0+2*i+1}], s[{sNo}:{sNo+1}]")
            k(f"s_cbranch_scc0 {r}" if i + 1 < len(offs) else f"s_cbranch_scc1 {d}")
        k.label(r)
        k(f"s_sleep {slp}")
        again(l)
        k.label(d)
    def nonce():
        k(f"s_waitcnt lgkmcnt(0)\ns_add_u32 s{sNo}, s{sNo}, 1")

    sX, sO, sT, sMask = 8, 12, 16, 24
    raw, f, st, vA = 4, 12, 28, 30
    nz = k.lab("nz")
    skipA = k.lab("skipA"); skipG = k.lab("skipG")
    if "skip" in MX and "gonly" in MX:
        k("s_barrier"); k.endpgm(P_WS, 4)
    if "skip" in MX: k(f"s_barrier\ns_mov_b32 s27, 1\ns_branch {skipA}")
    k.srd(sX, P_X, SZ_Q)
    k(f"s_mul_i32 s{sT}, s{sTok}, 1280\nv_lshlrev_b32 v{vA}, 4, v{vL}\ns_mov_b32 s{sMask}, 0xffff0000")
    for i in range(4, 8):
        k(f"v_mov_b32 v{raw+i}, 0")
    k(f"buffer_load_dwordx4 {v(raw,4)}, v{vA}, s[{sX}:{sX+3}], s{sT} offen {ntx}")
    k("s_mov_b64 exec, 0xffff")
    k(f"buffer_load_dwordx4 {v(raw+4,4)}, v{vA}, s[{sX}:{sX+3}], s{sT} offen offset:1024 {ntx}")
    k("s_mov_b64 exec, -1")
    def touch(idx, nq):
        k(f"s_mul_i32 s{sT+2}, s{idx}, {nq*128}\ns_lshl_b32 s{sT+3}, s{idx}, 7\ns_mov_b64 exec, {hx((1 << nq) - 1)}")
        k(f"buffer_load_dword v{vA+2}, v{vA+1}, s[28:31], s{sT+2} offen\ns_mov_b64 exec, 1")
        k(f"buffer_load_dword v{vA+2}, v{vA+1}, s[32:35], s{sT+3} offen")
        k(f"buffer_load_dword v{vA+2}, v{vA+1}, s[36:39], s{sT+3} offen\ns_mov_b64 exec, -1")
    k(f"v_lshlrev_b32 v{vA+1}, 7, v{vL}\ns_and_b32 s{sT+1}, s{sTok}, 255")
    k.srd(28, P_WQ, 640*1280); k.srd(32, P_WK, 25600); k.srd(36, P_WV, 25600)
    if 'g' in pf: touch(sTok, 4)
    elif 'x' in pf: touch(sT + 1, 25)
    k.srd(sO, P_WS, SZ_XN, WS_XN)
    nonce()
    assert not ('g' in pf and 'x' in pf) and 'b' not in pf
    sXt = 20
    def xn_compute():
        k("s_waitcnt vmcnt(3)" if ('x' in pf or 'g' in pf) else "s_waitcnt vmcnt(0)")
        k(f"v_mov_b32 v{st}, 0\nv_mov_b32 v{st+1}, 0\nv_mov_b32 v{vA+3}, 0x3f803f80")
        for i in range(8):
            k(f"v_dot2c_f32_bf16 v{st}, v{vA+3}, v{raw+i}\nv_dot2c_f32_bf16 v{st+1}, v{raw+i}, v{raw+i}")
        un = []
        for i in range(8):
            un += [f"v_lshlrev_b32 v{f+2*i}, 16, v{raw+i}", f"v_and_b32 v{f+2*i+1}, s{sMask}, v{raw+i}"]
        for x in un[:4]: k(x)
        j = 4
        for m in ("row_shr:1", "row_shr:2", "row_shr:4", "row_shr:8"):
            for i in range(2):
                k(f"v_add_f32_dpp v{st+i}, v{st+i}, v{st+i} {m} row_mask:0xf bank_mask:0xf bound_ctrl:0")
            k(un[j]); k(un[j+1]); j += 2
        for m in ("row_bcast:15 row_mask:0xa", "row_bcast:31 row_mask:0xc"):
            for i in range(2):
                k(f"v_add_f32_dpp v{st+i}, v{st+i}, v{st+i} {m} bank_mask:0xf")
            k(un[j]); k(un[j+1]); j += 2
        k(f"""v_mul_f32 v{st}, {fl(1.0/640)}, v{st}
        v_mul_f32 v{st+1}, {fl(1.0/640)}, v{st+1}
        v_fma_f32 v{st+1}, -v{st}, v{st}, v{st+1}
        v_max_f32 v{st+1}, 0, v{st+1}
        v_add_f32 v{st+1}, {fl(1e-5)}, v{st+1}
        v_rsq_f32 v{st+1}, v{st+1}
        s_mul_i32 s{sXt+2}, s{sTok}, {XN_ST}
        v_mul_f32 v{st}, v{st}, v{st+1}
        s_nop 0
        v_readlane_b32 s{sXt}, v{st+1}, 63
        v_readlane_b32 s{sXt+1}, v{st}, 63
        s_nop 1
        v_mov_b32 v{st}, s{sXt+1}""")
        for i in range(0, 16, 2):
            k(f"v_pk_fma_f32 {v(f+i,2)}, {v(f+i,2)}, s[{sXt}:{sXt+1}], {v(st,2)} op_sel_hi:[1,0,0] neg_lo:[0,0,1] neg_hi:[0,0,1]")
        for i in range(8):
            k(f"v_cvt_pk_bf16_f32 v{raw+i}, v{f+2*i}, v{f+2*i+1}")
        k(f"buffer_store_dwordx4 {v(raw,4)}, v{vA}, s[{sO}:{sO+3}], s{sXt+2} offen sc1")
        k("s_mov_b64 exec, 0xffff")
        k(f"buffer_store_dwordx4 {v(raw+4,4)}, v{vA}, s[{sO}:{sO+3}], s{sXt+2} offen offset:1024 sc1")
        if 'i' in pf:
            k.srd(sO, P_WIN, 640*3456)
            k(f"s_mul_i32 s{sXt}, s{sTok}, {9*128}\ns_mov_b64 exec, 0x1ff")
            k(f"buffer_load_dword v{vA+2}, v{vA+1}, s[{sO}:{sO+3}], s{sXt} offen")
        k("s_mov_b64 exec, -1")
    a = Alloc(36)
    fa = a(16, 4); fc = a(4, 4); fsx = a(4, 4)
    fX = [a(16, 4), a(16, 4)]; fW = [a(16, 4), a(16, 4)]
    fXa = a(4, 1); fWa = a()
    fN, fH = a(), a()
    fO = a(2, 2); fT = a(12, 4); fK = a(2, 2); fKa = a()
    assert a.n <= 168, a.n
    sI, sD, sKd, sB0 = 25, 26, 27, 28
    QS, STS, KVS = F_QS, F_STS, F_KVS
    k(f"""v_and_b32 v{fN}, 31, v{vL}
    v_lshrrev_b32 v{fH}, 5, v{vL}
    v_mov_b32 v{fO}, 0x3f803f80
    v_mov_b32 v{fO+1}, 0x3f803f80
    s_mov_b32 s{sKd}, 0
    s_lshl_b32 s{sT}, s{sWid}, 7
    v_lshl_add_u32 v{fKa}, v{vL}, 10, s{sT}""")
    def f_addr(rowb, woff):
        k(f"""v_bfe_u32 v{fT}, v{fN}, 1, 3
        v_xor_b32 v{fT}, v{fT}, v{fH}
        s_and_b32 s{sT}, s{sWid}, 1
        s_lshl_b32 s{sT}, s{sT}, 12
        s_add_u32 s{sT}, s{sT}, {F_B}
        v_lshl_add_u32 v{fT+1}, v{fN}, 7, s{sT}""")
        for q in range(4):
            k(f"v_xor_b32 v{fT+2}, {2*q}, v{fT}\nv_lshl_add_u32 v{fXa+q}, v{fT+2}, 4, v{fT+1}")
        k(f"""v_bfe_u32 v{fT}, v{vL}, 2, 2
        v_lshl_add_u32 v{fT}, v{fH}, 3, v{fT}
        v_mul_u32_u24 v{fT}, {rowb}, v{fT}
        v_bfe_u32 v{fT+1}, v{vL}, 4, 1
        v_lshl_add_u32 v{fT}, v{fT+1}, 5, v{fT}
        v_and_b32 v{fT+1}, 3, v{vL}
        v_lshl_add_u32 v{fT}, v{fT+1}, 3, v{fT}
        s_add_u32 s{sT}, {woff}, {F_B+8192}
        v_add_u32 v{fWa}, s{sT}, v{fT}""")
        for r in list(range(fa, fa + 16)) + list(range(fc, fc + 4)) + list(range(fsx, fsx + 4)):
            k(f"v_mov_b32 v{r}, 0")
    def f_pass(kind, rowb, first):
        uo = (0, 64, 128) if rowb == 192 else (0, 4096)
        xs_ = xst if rowb == 192 else xstk
        cf = lambda b: fX[0] + 32 * b
        def rd(b):
            r = []
            if kind == 'i': return r
            if kind == 'x':
                for u, o in enumerate(uo):
                    for q in range(2):
                        d = cf(b) + 8*u + 4*q
                        r.append(f"ds_read_b64_tr_b16 {v(d,2)}, v{fWa} offset:{o+16*rowb*q}")
                        r.append(f"ds_read_b64_tr_b16 {v(d+2,2)}, v{fWa} offset:{o+16*rowb*q+4*rowb}")
                return r
            for q in range(4):
                r.append(f"ds_read_b128 {v(fX[b]+4*q,4)}, v{fXa+q}")
                r.append(f"ds_read_b64_tr_b16 {v(fW[b]+4*q,2)}, v{fWa} offset:{16*rowb*q}")
                r.append(f"ds_read_b64_tr_b16 {v(fW[b]+4*q+2,2)}, v{fWa} offset:{16*rowb*q+4*rowb}")
            return r
        def adv():
            if kind == 'i': return
            k(f"s_mov_b32 s{sD}, {F_S}\ns_cmp_eq_u32 s{sI}, 5\ns_cmov_b32 s{sD}, {hx(-5*F_S)}")
            if kind != 'x':
                for q in range(4): k(f"v_add_u32 v{fXa+q}, s{sD}, v{fXa+q}")
            k(f"v_add_u32 v{fWa}, s{sD}, v{fWa}")
        def work(b, r):
            w = []
            if kind in 'ns':
                for q in range(4):
                    X, W = fX[b] + 4*q, fW[b] + 4*q
                    A_, B_ = (X, W) if kind == 's' else (W, X)
                    w.append(f"v_mfma_f32_32x32x16_bf16 {v(fa,16)}, {v(A_,4)}, {v(B_,4)}, {v(fa,16)}")
                for x in interleave(w[:3], r) + w[3:]: k(x)
            elif kind == 'x':
                for x in r: k(x)
                for j in range(4):
                    for u in range(len(uo)):
                        k(f"v_mfma_f32_4x4x4_16b_bf16 {v(fa+4*u,4)}, {v(fO,2)}, {v(cf(b)+8*u+2*j,2)}, {v(fa+4*u,4)}")
                    if len(uo) == 2: k("s_nop 0")
        loop = k.lab("fl"); nb = k.lab("fnb"); e1 = k.lab("fe1"); e2 = k.lab("fe2"); e3 = k.lab("fe3")
        n = len(rd(0))
        k(f"s_mov_b32 s{sI}, 0\ns_barrier")
        for x in rd(0): k(x)
        k.label(loop)
        adv()
        if first:
            k(f"s_cmp_lg_u32 s{sI}, {xs_}\ns_cbranch_scc1 {e1}\ns_waitcnt vmcnt({1 if 'i' in pf else 0})")
            k.label(e1)
        k("s_waitcnt lgkmcnt(0)\ns_barrier")
        work(0, rd(1))
        if first and kind == 'x':
            k(f"s_cmp_lg_u32 s{sI}, {xs_}\ns_cbranch_scc1 {e2}\ns_cmp_lg_u32 s{sWid}, 7\ns_cbranch_scc1 {e2}\ns_lshl_b32 s{sT}, s{sBlk}, 7")
            gset(f"s{sT}", fT + 4, fT + 6)
            k.label(e2)
        k(f"s_add_u32 s{sI}, s{sI}, 1")
        adv()
        k(f"s_cmp_eq_u32 s{sI}, 9\ns_waitcnt lgkmcnt(0)\ns_cbranch_scc1 {nb}\ns_barrier")
        k.label(nb)
        work(1, rd(0))
        if rowb == 192:
            k(f"s_cmp_lg_u32 s{sI}, 7\ns_cbranch_scc1 {e3}\ns_mov_b32 s{sT}, {FL_Q}\ns_mov_b64 exec, 0xff")
            k(gload(f"s{sT}", fKa, fK))
            k("s_mov_b64 exec, -1")
            k.label(e3)
        k(f"s_add_u32 s{sI}, s{sI}, 1\ns_cmp_lt_u32 s{sI}, 10\ns_cbranch_scc1 {loop}")
        k("s_waitcnt lgkmcnt(0)")
    def kv_try():
        e = k.lab("kt")
        k("s_waitcnt vmcnt(0)\ns_mov_b64 exec, 0xff")
        gcheck(fK)
        k(f"s_mov_b64 exec, -1\ns_cbranch_vccnz {e}\ns_mov_b32 s{sKd}, 1")
        kv_first()
        k.label(e)
    def kv_first():
        k.srd(sB0, P_WS, SZ_KVG, WS_KV)
        k(f"""s_mul_i32 s{sT}, s{sWid}, {KV_G}
        s_mul_i32 m0, s{sWid}, {KV_TILE}
        v_lshlrev_b32 v{fT+8}, 4, v{vL}
        buffer_load_dwordx4 v{fT+8}, s[{sB0}:{sB0+3}], s{sT} offen sc1 lds
        buffer_load_dwordx4 v{fT+8}, s[{sB0}:{sB0+3}], s{sT} offen offset:1024 sc1 lds
        buffer_load_dwordx4 v{fT+8}, s[{sB0}:{sB0+3}], s{sT} offen offset:{KV_TILE-1024} sc1 lds""")
    def f_stats(nu):
        k(f"""s_and_b32 s{sT}, s{sWid}, 1
        s_lshl_b32 s{sT}, s{sT}, 2
        s_add_u32 s{sT}, s{sT}, {F_CS}
        v_lshlrev_b32 v{fT}, 4, v{fN}
        v_lshl_add_u32 v{fT}, v{fH}, 3, v{fT}
        v_add_u32 v{fT}, s{sT}, v{fT}""")
        for u in range(nu): k(f"ds_write_b32 v{fT}, v{fa+4*u} offset:{512*u}")
        k("s_waitcnt lgkmcnt(0)")
    def f_fold(swap):
        k(f"""s_lshr_b32 s{sT}, s{sWid}, 1
        s_lshl_b32 s{sT}, s{sT}, 9
        s_add_u32 s{sT}, s{sT}, {F_CS}
        v_lshlrev_b32 v{fT}, 4, v{fN}
        v_lshl_add_u32 v{fT}, v{fH}, 3, v{fT}
        v_add_u32 v{fT}, s{sT}, v{fT}
        ds_read_b64 {v(fc,2)}, v{fT}
        s_and_b32 s{sT}, s{sWid}, 1
        s_lshl_b32 s{sT}, s{sT}, 7
        s_add_u32 s{sT}, s{sT}, {STS}
        v_lshl_add_u32 v{fT}, v{fN}, 2, s{sT}
        ds_read_b32 v{fT+4}, v{fT}
        ds_read_b32 v{fT+5}, v{fT} offset:256
        s_waitcnt lgkmcnt(2)
        v_add_f32 v{fc+2}, v{fc}, v{fc+1}
        v_and_b32 v{fc+3}, s{sMask}, v{fc+2}
        v_sub_f32 v{fc+2}, v{fc+2}, v{fc+3}
        v_cvt_pk_bf16_f32 v{fc}, v{fc+3}, v{fc+3}
        v_cvt_pk_bf16_f32 v{fc+1}, v{fc+2}, 0
        s_waitcnt lgkmcnt(0)
        v_and_b32 v{fT+2}, s{sMask}, v{fT+4}
        v_sub_f32 v{fT+3}, v{fT+4}, v{fT+2}
        v_cvt_pk_bf16_f32 v{fT+6}, -v{fT+2}, -v{fT+3}
        v_cvt_pk_bf16_f32 v{fT+7}, -v{fT+2}, 0
        s_nop 1""")
        A_, B_ = (fT + 6, fc) if swap else (fc, fT + 6)
        k(f"v_mfma_f32_32x32x8_bf16 {v(fa,16)}, {v(A_,2)}, {v(B_,2)}, {v(fa,16)}")
    qp = k.lab("qp"); kx = k.lab("kx"); ki = k.lab("ki"); kvv = k.lab("kvv"); kj = k.lab("kj"); q1 = k.lab("q1"); q1x = k.lab("q1x"); qe = k.lab("qe"); qj = k.lab("qj"); q2x = k.lab("q2x")
    pk = fX[0]
    k(f"s_cmp_lg_u32 s{sHG}, 7\ns_cbranch_scc1 {q1}")
    k(f"""s_lshr_b32 s{sT+1}, s{sWid}, 1
    s_lshl_b32 s{sT+1}, s{sT+1}, 12
    s_and_b32 s{sT+3}, s{sWid}, 1
    s_mul_i32 s{sT+2}, s{sT+3}, {32*40}
    s_cmp_ge_u32 s{sWid}, 6
    s_cselect_b32 s{sT+1}, s{sT+2}, s{sT+1}
    s_mul_i32 s{sT+3}, s{sT+3}, {KV_G}
    s_add_u32 s{sT+3}, s{sT+3}, {KVS}""")
    f_addr(40, f"s{sT+1}")
    xn_compute()
    k(f"s_cmp_ge_u32 s{sWid}, 6\ns_cbranch_scc1 {kx}\ns_cmp_ge_u32 s{sWid}, 4\ns_cbranch_scc1 {ki}\ns_cmp_ge_u32 s{sWid}, 2\ns_cbranch_scc1 {kvv}")
    f_pass('n', 40, True)
    k("s_barrier")
    f_fold(False)
    k(f"v_lshl_add_u32 v{fT}, v{vL}, 4, s{sT+3}\nv_lshl_add_u32 v{fT+1}, v{fN}, 2, s{sT+3}\ns_nop 7\ns_nop 1")
    for i in range(12): k(f"v_mul_f32 v{fa+i}, v{fT+5}, v{fa+i}")
    for i in range(6): k(f"v_cvt_pk_bf16_f32 v{pk+i}, v{fa+2*i}, v{fa+2*i+1}")
    k(f"""v_permlane32_swap_b32 v{pk}, v{pk+2}
    v_permlane32_swap_b32 v{pk+1}, v{pk+3}
    ds_write_b128 v{fT}, {v(pk,4)} offset:{KV_KA}
    s_mov_b32 exec_hi, 0
    ds_write_b32 v{fT+1}, v{pk+4} offset:{KV_KB}
    ds_write_b32 v{fT+1}, v{pk+5} offset:{KV_KB+128}
    s_mov_b64 exec, -1
    s_branch {kj}""")
    k.label(kvv)
    f_pass('s', 40, True)
    k("s_barrier")
    f_fold(True)
    k(f"v_lshl_add_u32 v{fT}, v{fH}, 4, s{sT}")
    for j in range(4): k(f"ds_read_b128 {v(fW[0]+4*j,4)}, v{fT} offset:{256+32*j}")
    k(f"""v_mul_u32_u24 v{fT+1}, 336, v{fH}
    v_lshl_add_u32 v{fT+1}, v{fN}, 4, v{fT+1}
    v_add_u32 v{fT+1}, s{sT+3}, v{fT+1}
    v_cmp_eq_u32 vcc, 20, v{fN}
    s_nop 3
    s_waitcnt lgkmcnt(0)""")
    for i in range(16): k(f"v_mul_f32 v{fa+i}, v{fW[0]+i}, v{fa+i}")
    for i in range(8): k(f"v_cvt_pk_bf16_f32 v{pk+i}, v{fa+2*i}, v{fa+2*i+1}")
    for i in range(8): k(f"v_cndmask_b32 v{pk+i}, v{pk+i}, v{fO}, vcc")
    k(f"""s_mov_b32 exec_lo, 0x1fffff
    s_mov_b32 exec_hi, 0x1fffff
    ds_write_b128 v{fT+1}, {v(pk,4)} offset:{KV_V}
    ds_write_b128 v{fT+1}, {v(pk+4,4)} offset:{KV_V+672}
    s_mov_b64 exec, -1
    s_branch {kj}""")
    k.label(ki)
    f_pass('i', 40, True)
    k(f"s_barrier\ns_branch {kj}")
    k.label(kx)
    f_pass('x', 40, True)
    f_stats(2)
    k("s_barrier\ns_barrier")
    k.srd(sB0, P_WS, SZ_KVG, WS_KV)
    k(f"v_lshlrev_b32 v{fT+1}, 4, v{vL}\nv_add_u32 v{fT}, s{sT+3}, v{fT+1}")
    for i in range(3): k(f"ds_read_b128 {v(pk+4*i,4)}, v{fT} offset:{1024*i}")
    k(f"""s_lshl_b32 s{sT}, s{sT64}, 1
    s_and_b32 s{sT+1}, s{sWid}, 1
    s_add_u32 s{sT}, s{sT}, s{sT+1}
    s_mul_i32 s{sT+1}, s{sT}, {KV_G}
    s_waitcnt lgkmcnt(0)
    buffer_store_dwordx4 {v(pk,4)}, v{fT+1}, s[{sB0}:{sB0+3}], s{sT+1} offen sc1
    buffer_store_dwordx4 {v(pk+4,4)}, v{fT+1}, s[{sB0}:{sB0+3}], s{sT+1} offen offset:1024 sc1
    s_mov_b32 exec_hi, 0xff
    buffer_store_dwordx4 {v(pk+8,4)}, v{fT+1}, s[{sB0}:{sB0+3}], s{sT+1} offen offset:2048 sc1
    s_mov_b64 exec, -1
    s_lshl_b32 s{sT}, s{sT}, 7
    s_add_u32 s{sT}, s{sT}, {FL_Q}
    s_waitcnt vmcnt(0)""")
    gset(f"s{sT}", fT + 4, fT + 6)
    k("s_barrier")
    k(f"s_and_b32 s{sT+1}, s{sWid}, 1\ns_mul_i32 s{sT+1}, s{sT+1}, {32*192}")
    f_addr(192, f"s{sT+1}")
    f_pass('x', 192, False)
    k(f"s_branch {q2x}")
    k.label(kj)
    k("s_waitcnt lgkmcnt(0)\ns_barrier\ns_barrier")
    k(f"s_lshr_b32 s{sT+1}, s{sWid}, 1\ns_lshl_b32 s{sT+1}, s{sT+1}, 6")
    f_addr(192, f"s{sT+1}")
    f_pass('n', 192, False)
    k(f"s_branch {qe}")
    k.label(q1)
    k(f"""s_lshr_b32 s{sT+1}, s{sWid}, 1
    s_lshl_b32 s{sT+1}, s{sT+1}, 6
    s_and_b32 s{sT+2}, s{sWid}, 1
    s_mul_i32 s{sT+2}, s{sT+2}, {32*192}
    s_cmp_ge_u32 s{sWid}, 6
    s_cselect_b32 s{sT+1}, s{sT+2}, s{sT+1}""")
    f_addr(192, f"s{sT+1}")
    xn_compute()
    k(f"s_cmp_ge_u32 s{sWid}, 6\ns_cbranch_scc1 {q1x}")
    f_pass('n', 192, True)
    k.label(qe)
    k("s_barrier")
    f_fold(False)
    kv_try()
    k(f"""v_mul_f32 v{fT+5}, {fl(QSCALE)}, v{fT+5}
    s_and_b32 s{sT}, s{sWid}, 1
    s_mul_i32 s{sT}, s{sT}, {32*192}
    s_lshr_b32 s{sT+1}, s{sWid}, 1
    s_lshl_b32 s{sT+1}, s{sT+1}, 6
    s_add_u32 s{sT}, s{sT}, s{sT+1}
    s_add_u32 s{sT}, s{sT}, {QS}
    v_mul_u32_u24 v{fT}, 192, v{fN}
    v_lshl_add_u32 v{fT}, v{fH}, 3, v{fT}
    v_add_u32 v{fT}, s{sT}, v{fT}
    s_nop 1""")
    for i in range(16): k(f"v_mul_f32 v{fa+i}, v{fT+5}, v{fa+i}")
    for i in range(8): k(f"v_cvt_pk_bf16_f32 v{pk+i}, v{fa+2*i}, v{fa+2*i+1}")
    for j in range(4): k(f"ds_write_b64 v{fT}, {v(pk+2*j,2)} offset:{16*j}")
    k(f"s_waitcnt lgkmcnt(0)\ns_branch {qj}")
    k.label(q1x)
    f_pass('x', 192, True)
    k.label(q2x)
    f_stats(3)
    k("s_barrier")
    kv_try()
    k.label(qj)
    k.label(skipA)
    k(f"s_mov_b32 s40, s{sKd}\nv_mov_b32 v104, v{fKa}")
    def att_wait(step):
        t = 104
        d = k.lab("kvd")
        k(f"s_cmp_lg_u32 s40, 0\ns_cbranch_scc1 {d}\ns_mov_b32 s41, {FL_Q}")
        gpoll("s41", t, t + 2, 0xff, pslp)
        step()
        k.label(d)
    def att_tail(step):
        t = 104
        def pieces(p0, p1):
            for p in range(p0, p1):
                if p % 4 == 0:
                    k(f"s_mov_b32 m0, {1024*p}")
                    k("s_add_u32 s40, s40, 4096" if p else "s_nop 0")
                k(f"buffer_load_dwordx4 v{t}, s[28:31], s40 offen offset:{1024*(p%4)} sc1 lds")
        if step == 0:
            k(f"v_and_b32 v{t}, 31, v{vL}\nv_lshlrev_b32 v{t}, 7, v{t}\ns_mov_b32 s40, {FL_W}")
            k(gload("s40", t, t + 2))
            if sent: lds_wait(L_F + F_XC, t + 4, t + 5, 2)
        elif "skip" in MX:
            pass
        elif step == 1:
            ok = k.lab("wfok")
            k("s_waitcnt vmcnt(12)")
            gcheck(t + 2)
            k(f"s_cbranch_vccz {ok}")
            gpoll("s40", t, t + 2, None, 4)
            k.label(ok)
            k.srd(28, P_WS, SZ_WF, WS_WF)
            k(f"s_lshr_b32 s40, s2, 5\ns_mul_i32 s40, s40, {47*5120}\nv_lshlrev_b32 v{t}, 4, v{vL}")
            pieces(0, tsplit)
            if not sent: k(f"s_waitcnt vmcnt({tsplit})")
        else:
            pieces(tsplit, 60)
            k(f"v_mov_b32 v{t}, {L_F+F_OC}\nv_mov_b32 v{t+1}, 10\ns_waitcnt vmcnt(0)\nds_write_b32 v{t}, v{t+1}")
    n = (attn3 if two else attn2).emit_attn(k, sT64, sHG, sWid, vL, P_WS, 8, 4, 0, L_F, mega=att_wait, budget=sBud, gset=(None if sent else gset), tb=tb, tail=att_tail, yph=yph, bal=bal)
    assert n <= 104, n

    k.label(gem)
    def sp(name):
        if name in SP: k.stamp(1 + SP.index(name))
    sA, sB, sO = 8, 12, 16
    sW, sCnt, sSoA, sBaseA, sSoB, sStepB, sM0A, sM0B, sMask, sNeed, sI = range(20, 31)
    sT = 32
    sTb, sM0F, sSoF = 40, 31, 71
    a = Alloc(2)
    vFw, vFa, vFl, vXw, vXa = a(), a(), a(), a(), a()
    vOne = a()
    acc = [a(16, 4), a(16, 4)]
    fs = [[[a(4, 4) for j in range(3)] for q in range(2)] for b in range(2)]
    z1 = a(16, 4); z2 = a(16, 4)
    vD = a(4, 1); vDb = a(2, 1)
    vWa = a(4, 1); vZa = a(2, 1)
    vN, vH, vBias, vTok, vPg = a(), a(), a(), a(), a()
    vOnes = a(2, 2)
    vT = a(16, 4)
    assert a.n <= 168, a.n
    tmp = fs[1][0][0]
    sp('ka')
    k("s_setprio 3")
    k(f"""s_sub_u32 s{sW}, s{sWid}, 8
    v_lshrrev_b32 v{vT}, 3, v{vL}
    v_and_b32 v{vT+1}, 7, v{vL}
    s_lshl_b32 s{sT}, s{sTB}, 2
    s_add_u32 s{sT}, s{sT}, s{sW}
    s_mul_i32 s{sBaseA}, s{sT}, {32*1280}
    s_lshl_b32 s{sM0A}, s{sW}, 12
    s_add_u32 s{sM0A}, s{sM0A}, {L_A}
    s_lshl_b32 s{sM0B}, s{sW}, 11
    s_add_u32 s{sM0B}, s{sM0B}, {L_Z}""")
    def a_addr(stride):
        k(f"v_lshrrev_b32 v{vT}, 3, v{vL}\nv_and_b32 v{vT+1}, 7, v{vL}")
        for p in range(4):
            k(f"""v_add_u32 v{vT+2}, {8*p}, v{vT}
            v_bfe_u32 v{vT+3}, v{vT+2}, 1, 3
            v_xor_b32 v{vT+3}, v{vT+3}, v{vT+1}
            v_mul_u32_u24 v{vT+2}, {stride}, v{vT+2}
            v_lshl_add_u32 v{vD+p}, v{vT+3}, 4, v{vT+2}""")
            if p:
                k(f"v_subrev_u32 v{vD+p}, {1024*p}, v{vD+p}")
    def b_addr(stride):
        k(f"""v_lshrrev_b32 v{vT}, 3, v{vL}
        v_and_b32 v{vT+1}, 7, v{vL}
        v_bfe_u32 v{vT+2}, v{vL}, 4, 1
        v_lshlrev_b32 v{vT+2}, 2, v{vT+2}
        v_xor_b32 v{vT+1}, v{vT+1}, v{vT+2}
        v_mul_u32_u24 v{vT}, {stride}, v{vT}
        v_lshl_add_u32 v{vDb}, v{vT+1}, 4, v{vT}
        v_add_u32 v{vDb+1}, {8*stride-1024}, v{vDb}""")
    def setup_rest():
        k(f"""s_lshl_b32 s{sT+1}, s{sW}, 2
        s_add_u32 s{sT+2}, s{sT+1}, {L_F+F_G}
        v_mov_b32 v{vFw}, s{sT+2}
        s_add_u32 s{sT+2}, s{sT+1}, {L_F+F_AUX}
        v_mov_b32 v{vXw}, s{sT+2}
        v_and_b32 v{vFa}, 3, v{vL}
        v_lshlrev_b32 v{vFa}, 2, v{vFa}
        v_add_u32 v{vXa}, {L_F+F_AUX}, v{vFa}
        v_lshlrev_b32 v{vFa}, 6, v{vFa}
        v_add_u32 v{vFa}, {L_CS}, v{vFa}
        v_mov_b32 v{vPg}, 0
        s_lshl_b32 s{sM0F}, s{sW}, 8
        s_lshl_b32 s{sSoF}, s2, 10
        s_add_u32 s{sSoF}, s{sSoF}, s{sM0F}
        s_add_u32 s{sM0F}, s{sM0F}, {L_CS}
        v_and_b32 v{vN}, 31, v{vL}
        v_lshrrev_b32 v{vH}, 5, v{vL}
        s_mov_b32 s{sMask}, 0xffff0000
        s_mov_b32 s{sCnt}, 0
        v_mov_b32 v{vOne}, 1
        v_mov_b32 v{vOnes}, 0x3f803f80
        v_mov_b32 v{vOnes+1}, 0x3f803f80
        s_lshl_b32 s{sT+1}, s{sTB}, 7
        s_lshl_b32 s{sT+2}, s{sW}, 5
        s_add_u32 s{sT+1}, s{sT+1}, s{sT+2}
        v_add_u32 v{vTok}, s{sT+1}, v{vN}
        v_bfe_u32 v{vT+1}, v{vN}, 1, 3
        v_xor_b32 v{vT+1}, v{vT+1}, v{vH}
        v_lshlrev_b32 v{vT+2}, 7, v{vN}
        v_add_u32 v{vT+2}, s{sM0A}, v{vT+2}""")
        for q in range(4):
            k(f"v_xor_b32 v{vT+3}, {2*q}, v{vT+1}\nv_lshl_add_u32 v{vWa+q}, v{vT+3}, 4, v{vT+2}")
        k.srd(sTb, P_WS, 256*1024, WS_TAB)
        k(f"v_lshlrev_b32 v{vT+1}, 2, v{vL}")
        k(f"buffer_store_dword v{vL}, v{vT+1}, s[{sTb}:{sTb+3}], s{sSoF} offen sc1")
        nonce()
    def nat_read_addr(rowb):
        k(f"""v_bfe_u32 v{vT}, v{vL}, 2, 2
        v_lshl_add_u32 v{vT}, v{vH}, 3, v{vT}
        v_mul_u32_u24 v{vT}, {rowb}, v{vT}
        v_bfe_u32 v{vT+1}, v{vL}, 4, 1
        v_lshl_add_u32 v{vT}, v{vT+1}, 5, v{vT}
        v_and_b32 v{vT+1}, 3, v{vL}
        v_lshl_add_u32 v{vT}, v{vT+1}, 3, v{vT}""")
        if rowb == 128:
            k(f"""v_bfe_u32 v{vT+1}, v{vL}, 3, 1
            v_lshl_add_u32 v{vT}, v{vT+1}, 6, v{vT}
            v_xor_b32 v{vT+1}, 64, v{vT}
            v_add_u32 v{vZa}, {L_Z}, v{vT}
            v_add_u32 v{vZa+1}, {L_Z}, v{vT+1}""")
        else:
            k(f"v_add_u32 v{vZa}, {L_Z}, v{vT}\nv_add_u32 v{vZa+1}, {L_Z+4096}, v{vT}")

    def spinw(va, val):
        l = k.lab("gspin"); d = k.lab("gspun")
        k.label(l)
        k(f"ds_read_b32 v{vFl}, v{va}\ns_waitcnt lgkmcnt(0)\nv_cmp_gt_u32 vcc, {val}, v{vFl}\ns_cbranch_vccz {d}\ns_sleep 1")
        again(l)
        k.label(d)
    def gsync():
        k(f"s_add_u32 s{sCnt}, s{sCnt}, 1\nv_mov_b32 v{vFl}, s{sCnt}\nds_write_b32 v{vXw}, v{vFl}")
        spinw(vXa, f"s{sCnt}")
    def set_flag(base, col=None):
        l = k.lab("nf")
        k(f"s_cmp_lg_u32 s{sW}, 0\ns_cbranch_scc1 {l}")
        k(f"s_lshl_b32 s{sT}, s{sTB}, 11\ns_lshl_b32 s{sT+1}, s{sFG}, 7\ns_add_u32 s{sT}, s{sT}, s{sT+1}\ns_add_u32 s{sT}, s{sT}, {base}")
        gset(f"s{sT}", vT, vT + 2)
        k.label(l)

    def ring_free():
        k(f"v_mov_b32 v{vT}, {L_F+F_GO}\ns_mov_b64 exec, 1\nds_add_u32 v{vT}, v{vOne}\ns_mov_b64 exec, -1")
    def set_wflag(base, n=0):
        k(f"s_lshl_b32 s{sT}, s{sTB}, 2\ns_add_u32 s{sT}, s{sT}, s{sW}\ns_lshl_b32 s{sT}, s{sT}, 11\ns_lshl_b32 s{sT+1}, s{sFG}, 7\ns_add_u32 s{sT}, s{sT}, s{sT+1}\ns_add_u32 s{sT}, s{sT}, {base}")
        k(f"s_waitcnt vmcnt({n})")
        gset(f"s{sT}", vT, vT + 2)
    def prefetch():
        if not ('q' in pf or 'i' in pf): return
        k(f"""s_min_u32 s{sT}, s{sFG}, 14
        s_sub_u32 s{sT}, s{sT}, 10
        s_lshl_b32 s{sT+1}, s{sW}, 4
        s_add_u32 s{sT+1}, s{sT+1}, s{sTB}
        s_mul_i32 s{sT+1}, s{sT+1}, 5
        s_add_u32 s{sT+1}, s{sT+1}, s{sT}
        s_lshl_b32 s{sT+1}, s{sT+1}, 13
        v_lshlrev_b32 v{vT+8}, 7, v{vL}""")
        if 'q' in pf:
            k.srd(sO, P_WQ, 640*1280)
            k(f"buffer_load_dword v{vT+9}, v{vT+8}, s[{sO}:{sO+3}], s{sT+1} offen")
        if 'i' in pf:
            k.srd(sO, P_WIN, 640*3456)
            k(f"buffer_load_dword v{vT+10}, v{vT+8}, s[{sO}:{sO+3}], s{sT+1} offen")
    def prefetch_sp():
        if 's' not in pf: return
        att_progress(1, vT + 5, 8)
        k(f"""s_sub_u32 s{sT}, s{sFG}, 14
        s_lshl_b32 s{sT}, s{sT}, 2
        s_add_u32 s{sT}, s{sT}, s{sW}
        s_lshl_b32 s{sT}, s{sT}, 16
        s_lshl_b32 s{sT+1}, s{sTB}, 19
        s_add_u32 s{sT}, s{sT}, s{sT+1}
        v_lshlrev_b32 v{vT+8}, 7, v{vL}""")
        k.srd(sO, P_WSP, 2048*4096)
        for i in range(8):
            k(f"buffer_load_dword v{vT+9}, v{vT+8}, s[{sO}:{sO+3}], s{sT} offen {ntw}\ns_add_u32 s{sT}, s{sT}, 8192")
            if i % 2 == 1: k("s_waitcnt vmcnt(0)")
    def u_addr():
        k.srd(sO, P_WS, SZ_OUF, WS_OUF)
        k(f"""v_lshrrev_b32 v{vT+1}, 4, v{vTok}
        v_mul_u32_u24 v{vT+1}, {47*1024}, v{vT+1}
        v_and_b32 v{vT+2}, 15, v{vTok}
        v_lshl_add_u32 v{vT+1}, v{vT+2}, 4, v{vT+1}
        v_lshl_add_u32 v{vT+1}, v{vH}, 8, v{vT+1}
        s_lshl_b32 s{sT}, s{sFG}, 11
        s_add_u32 s{sT}, s{sT}, {20*1024}""")
    def poison(with_u):
        pz = vT + 4
        for i in range(4): k(f"v_mov_b32 v{pz+i}, -1")
        if with_u:
            l = k.lab("pu")
            u_addr()
            for i in range(4):
                if i == 2: k(f"s_cmp_eq_u32 s{sFG}, 13\ns_cbranch_scc1 {l}")
                k(f"buffer_store_dwordx4 {v(pz,4)}, v{vT+1}, s[{sO}:{sO+3}], s{sT} offen offset:{512*i} sc1")
            k.label(l)
        else:
            k.srd(sO, P_WS, SZ_OUF, WS_OUF)
        k(f"""s_lshl_b32 s{sT}, s{sT64}, 2
        s_add_u32 s{sT}, s{sT}, s{sW}
        s_mul_i32 s{sT}, s{sT}, {47*1024}
        s_mul_i32 s{sT+1}, s{sHG}, 2560
        s_add_u32 s{sT}, s{sT}, s{sT+1}
        v_lshlrev_b32 v{vT+2}, 4, v{vL}
        buffer_store_dwordx4 {v(pz,4)}, v{vT+2}, s[{sO}:{sO+3}], s{sT} offen sc1
        buffer_store_dwordx4 {v(pz,4)}, v{vT+2}, s[{sO}:{sO+3}], s{sT} offen offset:1024 sc1
        s_mov_b32 exec_hi, 0
        buffer_store_dwordx4 {v(pz,4)}, v{vT+2}, s[{sO}:{sO+3}], s{sT} offen offset:2048 sc1
        s_mov_b32 exec_hi, -1""")
    def poison_done():
        k(f"v_mov_b32 v{vT+4}, {L_F+F_XC}\nds_write_b32 v{vT+4}, v{vOne}")
    def att_progress(val, va, slp):
        l = k.lab("ac"); d = k.lab("acd")
        k(f"v_and_b32 v{va}, 7, v{vL}\nv_lshlrev_b32 v{va}, 2, v{va}\nv_add_u32 v{va}, {L_F}, v{va}")
        k.label(l)
        k(f"ds_read_b32 v{vFl}, v{va}\ns_waitcnt lgkmcnt(0)\nv_cmp_gt_u32 vcc, {val}, v{vFl}\ns_cbranch_vccz {d}\ns_sleep {slp}")
        again(l)
        k.label(d)
    vm = []
    def vop(tag, txt):
        vm.append(tag); return txt
    def newer(tags):
        idx = [i for i, t in enumerate(vm) if t in tags]
        return len(vm) - 1 - max(idx) if idx else 63
    cohA = [ntx]; cohB = [""]
    def la(g, p): return vop(("A", g), f"buffer_load_dwordx4 v{vD+p}, s[{sA}:{sA+3}], s{sSoA} offen offset:{1024*p} {cohA[0]} lds")
    def lb(g, p): return vop(("B", g), f"buffer_load_dwordx4 v{vDb+p}, s[{sB}:{sB+3}], s{sSoB} offen offset:{1024*p} {cohB[0]} lds")
    wrapA = [False]; wrapB = [False]
    def advA():
        if wrapA[0]: k(f"s_add_u32 s37, s37, 128\ns_and_b32 s37, s37, 0xfff\ns_add_u32 s{sSoA}, s38, s37")
        else: k(f"s_add_u32 s{sSoA}, s{sSoA}, 128")
    def advB():
        if wrapB[0]: k(f"s_add_u32 s39, s39, 4096\ns_and_b32 s39, s39, 0x1ffff\ns_add_u32 s{sSoB}, s54, s39")
        else: k(f"s_add_u32 s{sSoB}, s{sSoB}, s{sStepB}")
    vWe = z2
    def abuf(g):
        if deep and g in (3, 4, 5, 9):
            e = {3: 0, 4: 1, 5: 2, 9: 0}[g]
            return vWe, 16384 * e, 16384 * e - 49152
        return vWa, 16384 * (g % 3), 16384 * (g % 3)
    def issue_a(g):
        k(f"s_add_u32 m0, s{sM0A}, {hx(abuf(g)[2])}\ns_nop 0")
        for p in range(4): k(la(g, p))
        k(f"s_add_u32 s{sSoA}, s{sSoA}, 128")
    def issue_b(g):
        k(f"s_add_u32 m0, s{sM0B}, {8192*(g%6)}\ns_nop 0")
        for p in range(2): k(lb(g, p))
        advB()
    def reads(ty, half, b, g):
        ba, bz = g % 3, g % 6
        r = []
        for q in range(2):
            ks = 2 * half + q
            r.append(f"ds_read_b128 {v(fs[b][q][0],4)}, v{abuf(g)[0]+ks} offset:{abuf(g)[1]}")
            for u in range(2):
                d = fs[b][q][1+u]
                if ty == "frag":
                    r.append(f"ds_read_b128 {v(d,4)}, v{vZa} offset:{8192*bz+1024*ks+4096*u}")
                else:
                    rb = 128 if ty == "nat" else 40
                    r.append(f"ds_read_b64_tr_b16 {v(d,2)}, v{vZa+u} offset:{8192*bz+16*rb*ks}")
                    r.append(f"ds_read_b64_tr_b16 {v(d+2,2)}, v{vZa+u} offset:{8192*bz+16*rb*ks+4*rb}")
        return r
    vSx, vSq, vCs = z1, z1 + 4, [z1 + 8, z1 + 12]
    prio = [3]
    pat = [patz]
    inloop = [False]
    carry = [False]
    cold = []
    def half(b, hf, zero, stats, kv, rd, dm):
        fast = prio[0] == 3
        n = len(rd)
        cut = [0, n, n, n] if fast else [0, (n + 1) // 2, n, n]
        cur = [3]
        def setp(p):
            if not fast and cur[0] != p:
                k(f"s_setprio {p}"); cur[0] = p
        for q in range(2):
            X = fs[b][q][0]
            for i in range(2):
                j = 2 * q + i
                A_, B_ = (X, fs[b][q][1+i]) if (kv and i == 1) else (fs[b][q][1+i], X)
                c = "0" if (zero and q == 0) else v(acc[i], 16)
                if stats:
                    for u in range(2):
                        k(f"v_mfma_f32_4x4x4_16b_bf16 {v(vCs[u],4)}, {v(vOnes,2)}, {v(fs[b][q][1+u]+2*i,2)}, {v(vCs[u],4)}")
                setp(int(pat[0][4*hf + j]))
                abl = MX if (inloop[0] or "all" in MX) else ""
                k(f"v_mfma_f32_32x32x16_bf16 {v(acc[i],16)}, {v(A_,4)}, {v(B_,4)}, {c}" if ("nomf" not in abl and "m16" not in abl) else ("s_nop 15" if "nomf" in abl else f"v_mfma_f32_16x16x32_bf16 {v(acc[i]+8*q,4)}, {v(A_,4)}, {v(B_,4)}, {v(acc[i]+8*q,4)}\nv_mfma_f32_16x16x32_bf16 {v(acc[i]+8*q+4,4)}, {v(fs[b][1-q][1+i],4)}, {v(B_,4)}, {v(acc[i]+8*q+4,4)}"))
                if "nord" in abl: rd = ["s_nop 0"] * len(rd)
                if "nodma" in abl: dm = [[], [], [], []]
                if j < 3 and cut[j+1] > cut[j]:
                    setp(rprio)
                    for x in rd[cut[j]:cut[j+1]]: k(x)
                if dm[j]:
                    setp(prio[0])
                    for f_ in dm[j]:
                        if thr is not None and not fast: k(f"s_waitcnt vmcnt({thr})")
                        k(f_())
        setp(3)
    def lf():
        return "\n".join([f"s_mov_b32 m0, s{sM0F}", f"s_add_u32 s{sSoF}, s{sSoF}, 4",
                          vop("F", f"buffer_load_dword v{vPg}, s[{sTb}:{sTb+3}], s{sSoF} offen lds")])
    def body(g, ty, ty_next, first=False, doA=True, doB=True, loop=False, dyn=False, tailA=None, tailB=None, cout=True):
        cin = carry[0]
        k("s_waitcnt lgkmcnt(0)")
        dm = [[], [], [], []]
        def a3():
            k(la(g + 2, 3)); advA(); return "s_nop 0"
        if cin: dm = [[lambda: la(g + 2, 2)], [a3], [], []]
        half(0, 0, first, False, False, reads(ty, 1, 1, g) + [f"ds_read_b32 v{vFl}, v{vFa}"], dm)
        if doB or tailB: k(f"s_add_u32 m0, s{sM0B}, {8192*((g+4)%6)}")
        if tailB: k(tailB)
        n = 7 if loop else min(63, newer({("A", g + 1)}))
        ok = k.lab("gok"); sl = k.lab("gslow")
        need = f"s{sNeed}" if (loop or dyn) else str(g - 2)
        k(f"s_waitcnt vmcnt({n}) lgkmcnt(0)\nv_cmp_gt_u32 vcc, {need}, v{vFl}\ns_cbranch_vccnz {sl}")
        cold.append((sl, need, ok))
        k.label(ok)
        def mark():
            if doB: advB()
            k(lf())
            t = []
            if doA or tailA: t.append(f"s_add_u32 m0, s{sM0A}, {16384*(g%3)}")
            if tailA: t.append(tailA)
            return "\n".join(t) or "s_nop 0"
        dm = [[], [mark], [], []]
        if doB or tailB: dm = [[lambda: lb(g + 4, 0)], [lambda: lb(g + 4, 1), mark], [], []]
        cout = cout and doA
        if doA or tailA:
            dm[2] = [lambda: la(g + 3, 0)] + ([] if cout else [lambda: la(g + 3, 1)])
            dm[3] = [lambda: la(g + 3, 1)] if cout else [lambda: la(g + 3, 2), lambda: la(g + 3, 3)]
        half(1, 1, False, False, False, reads(ty_next, 0, 0, g + 1) if ty_next else [], dm)
        if doA and not cout: advA()
        carry[0] = cout
        if loop or dyn: k(f"s_add_u32 s{sNeed}, s{sNeed}, 1")
    def hi(): pass
    def lo(): pass
    def prologue(g0, ty):
        k(f"s_add_u32 s{sSoF}, s{sSoF}, {4*(g0-4)}")
        k(lf())
        issue_b(g0 + 1); k(lf()); issue_a(g0 + 1); issue_b(g0 + 2); issue_b(g0 + 3); k(lf()); issue_a(g0 + 2)
        k(f"s_waitcnt vmcnt({newer({('A', g0)})})")
        spinw(vFa, g0 - 3)
        for r in reads(ty, 0, 0, g0): k(r)
    def src_win(off_const):
        k.srd(sB, P_WIN, 640*3456)
        k(f"""s_mul_i32 s{sSoB}, s{sW}, {16*3456}
        s_lshl_b32 s{sT}, s{sFG}, 7
        s_add_u32 s{sSoB}, s{sSoB}, s{sT}
        s_add_u32 s{sSoB}, s{sSoB}, {off_const}
        s_mov_b32 s{sStepB}, {64*3456}""")
    def load_mr():
        lds_wait(L_F + F_XR, vT, vT + 1)
        k.srd(sO, P_WS, SZ_XN, WS_XN)
        k(f"v_mul_u32_u24 v{vT+2}, {XN_ST}, v{vTok}")
        k(vop("mr", f"buffer_load_dwordx2 {v(vT+8,2)}, v{vT+2}, s[{sO}:{sO+3}], 0 offen offset:1280 sc1"))
    def src_xn():
        k.srd(sA, P_WS, SZ_XN, WS_XN)
        k(f"s_lshl_b32 s{sBaseA}, s{sTB}, 2\ns_add_u32 s{sBaseA}, s{sBaseA}, s{sW}\ns_mul_i32 s{sBaseA}, s{sBaseA}, {32*XN_ST}\ns_mov_b32 s{sSoA}, s{sBaseA}")
    def ln_fold(kv):
        mu, r = vT + 8, vT + 9
        k(f"""s_waitcnt vmcnt({newer({'mr'})})
        v_and_b32 v{vT+2}, s{sMask}, v{mu}
        v_sub_f32 v{vT+3}, v{mu}, v{vT+2}
        v_cvt_pk_bf16_f32 v{vT}, -v{vT+2}, -v{vT+3}
        v_cvt_pk_bf16_f32 v{vT+1}, -v{vT+2}, 0""")
        for u in range(2):
            c = vCs[u]
            k(f"""v_and_b32 v{c+3}, s{sMask}, v{c+2}
            v_sub_f32 v{c+2}, v{c+2}, v{c+3}
            v_cvt_pk_bf16_f32 v{c}, v{c+3}, v{c+3}
            v_cvt_pk_bf16_f32 v{c+1}, v{c+2}, 0""")
        k("s_nop 1")
        for u in range(2):
            A_, B_ = (vT, vCs[u]) if (kv and u == 1) else (vCs[u], vT)
            k(f"v_mfma_f32_32x32x8_bf16 {v(acc[u],16)}, {v(A_,2)}, {v(B_,2)}, {v(acc[u],16)}")
    def swap4(b0):
        k(f"v_permlane32_swap_b32 v{b0}, v{b0+2}\nv_permlane32_swap_b32 v{b0+1}, v{b0+3}")
    def gelu(u, dst, stats):
        t = acc[u]
        for g0 in range(0, 16, 8):
            R = range(g0, g0 + 8)
            for i in R: k(f"v_mul_f32 v{tmp+i-g0}, v{t+i}, v{t+i}")
            for i in R: k(f"v_fmaak_f32 v{tmp+i-g0}, v{vT+12}, v{tmp+i-g0}, {fl(GC0)}")
            for i in R: k(f"v_mul_f32 v{tmp+i-g0}, v{tmp+i-g0}, v{t+i}")
            for i in R: k(f"v_exp_f32 v{tmp+i-g0}, v{tmp+i-g0}")
            for i in R: k(f"v_add_f32 v{tmp+i-g0}, 1.0, v{tmp+i-g0}")
            for i in R: k(f"v_rcp_f32 v{tmp+i-g0}, v{tmp+i-g0}")
            for i in R: k(f"v_mul_f32 v{tmp+i-g0}, v{tmp+i-g0}, v{t+i}")
            for i in range(0, 8, 2): k(f"v_cvt_pk_bf16_f32 v{dst+(g0+i)//2}, v{tmp+i}, v{tmp+i+1}")
            if stats:
                for i in range(8):
                    k(f"v_add_f32 v{vT+10}, v{vT+10}, v{tmp+i}\nv_fmac_f32 v{vT+11}, v{tmp+i}, v{tmp+i}")

    rep = k.lab("rep"); b10 = k.lab("b10"); outp = k.lab("outp"); outq = k.lab("outq"); kw = k.lab("kw"); kwd = k.lab("kwd")
    vx, vw = z2, z2 + 2
    k(f"v_lshrrev_b32 v{vT}, 3, v{vL}\nv_and_b32 v{vT+1}, 7, v{vL}")
    for p in range(2):
        k(f"""v_add_u32 v{vT+2}, {8*p}, v{vT}
        v_bfe_u32 v{vT+3}, v{vT+2}, 1, 3
        v_xor_b32 v{vT+3}, v{vT+3}, v{vT+1}
        v_mul_u32_u24 v{vT+2}, 1280, v{vT+2}
        v_lshl_add_u32 v{vx+p}, v{vT+3}, 4, v{vT+2}""")
    k(f"v_subrev_u32 v{vx+1}, 1024, v{vx+1}")
    k.srd(sA, P_X, SZ_Q)
    k(f"""s_lshl_b32 s{sBaseA}, s{sT64}, 2
    s_add_u32 s{sBaseA}, s{sBaseA}, s{sW}
    s_mul_i32 s{sBaseA}, s{sBaseA}, {16*1280}
    s_lshl_b32 s{sNeed}, s{sW}, 11
    s_add_u32 s{sNeed}, s{sNeed}, {F_B}""")
    sKr = 36
    def l_rot():
        if frot: k(f"s_lshr_b32 s{sKr}, s2, 3\ns_mul_i32 s{sKr}, s{sKr}, {frot}\ns_mul_i32 s{sT}, s{sKr}, 6554\ns_lshr_b32 s{sT}, s{sT}, 16\ns_mul_i32 s{sT}, s{sT}, 10\ns_sub_u32 s{sKr}, s{sKr}, s{sT}")
        else: k(f"s_mov_b32 s{sKr}, 0")
    def l_x(g):
        k(f"s_lshl_b32 s{sSoA}, s{sKr}, 7\ns_add_u32 m0, s{sNeed}, {F_S*(g%6)}\ns_add_u32 s{sSoA}, s{sBaseA}, s{sSoA}")
        for p in range(2): k(vop(("A", g), f"buffer_load_dwordx4 v{vx+p}, s[{sA}:{sA+3}], s{sSoA} offen offset:{1024*p} lds"))
    def l_w(g, n):
        k(f"s_mul_i32 s{sSoA}, s{sKr}, s{sStepB}\ns_add_u32 m0, s{sI}, {F_S*(g%6)}\ns_add_u32 s{sSoA}, s{sSoA}, s{sSoB}")
        for p in range(n): k(vop(("A", g), f"buffer_load_dwordx4 v{vw+p}, s[{sB}:{sB+3}], s{sSoA} offen offset:{1024*p} lds"))
        k(f"s_add_u32 s{sKr}, s{sKr}, 1\ns_cmp_eq_u32 s{sKr}, 10\ns_cmov_b32 s{sKr}, 0")
    lx, ls, lt, la_ = fs[0][0][0], fs[1][0][0], fs[1][0][0] + 8, z2 + 6
    def l_pass(n, x0done, mid=None, lead=3, xf=False):
        for g in range(lead):
            if not (g == 0 and x0done): l_x(g)
            l_w(g, n)
        if mid: mid()
        k(f"v_lshl_add_u32 v{la_}, v{vL}, 4, s{sNeed}\nv_add_u32 v{la_+1}, {3*F_S}, v{la_}")
        for i in range(8): k(f"v_mov_b32 v{ls+i}, 0")
        for g in range(10):
            k(f"s_waitcnt vmcnt({newer({('A', g)})})")
            if g == 0: sp('land0')
            k("s_barrier")
            if g == 0: sp('p1s')
            for p in range(2):
                k(f"ds_read_b128 {v(lx+4*p,4)}, v{la_+(g%6)//3} offset:{F_S*(g%3)+1024*p}")
            if g + lead < 10:
                l_x(g + lead); l_w(g + lead, n)
            if g == 9 and xf:
                k(f"s_lshl_b32 s{sT+3}, s{sTB}, 2\ns_add_u32 s{sT+3}, s{sT+3}, s{sW}\ns_lshl_b32 s{sT+3}, s{sT+3}, 9\nv_lshlrev_b32 v{vT+4}, 7, v{vL}\ns_mov_b64 exec, 0xf")
                k(gload(f"s{sT+3}", vT + 4, vT + 8))
                k("s_mov_b64 exec, -1")
            k("s_waitcnt lgkmcnt(0)")
            if ldot:
                for i in range(8):
                    c = ls + 4*(i // 4) + (i % 2)
                    k(f"v_dot2c_f32_bf16 v{c}, v{vOnes}, v{lx+i}\nv_dot2c_f32_bf16 v{c+2}, v{lx+i}, v{lx+i}")
                if g == 9: k("s_nop 2")
            elif "nost" not in MX:
              for i in range(8):
                t0 = lt + 2*(i % 2); c = ls + 4*(i // 4)
                k(f"""v_lshlrev_b32 v{t0}, 16, v{lx+i}
                v_and_b32 v{t0+1}, s{sMask}, v{lx+i}
                v_add_f32 v{c}, v{c}, v{t0}
                v_add_f32 v{c+1}, v{c+1}, v{t0+1}
                v_fmac_f32 v{c+2}, v{t0}, v{t0}
                v_fmac_f32 v{c+3}, v{t0+1}, v{t0+1}""")
        R = [ls, ls + 2, ls + 4, ls + 6]
        for r in R: k(f"v_add_f32 v{r}, v{r}, v{r+1}")
        for m in ("quad_perm:[1,0,3,2]", "quad_perm:[2,3,0,1]", "row_half_mirror"):
            for r in R: k(f"v_add_f32_dpp v{r}, v{r}, v{r} {m} row_mask:0xf bank_mask:0xf")
        for r in R: k(f"v_mul_f32 v{r}, {fl(1.0/640)}, v{r}")
        for p in range(2):
            mu, q_ = ls + 4*p, ls + 4*p + 2
            k(f"v_fma_f32 v{q_}, -v{mu}, v{mu}, v{q_}\nv_max_f32 v{q_}, 0, v{q_}\nv_add_f32 v{q_}, {fl(1e-5)}, v{q_}\nv_rsq_f32 v{q_}, v{q_}")
        k(f"""s_lshl_b32 s{sT}, s{sW}, 6
        s_add_u32 s{sT}, s{sT}, {F_STS}
        v_lshrrev_b32 v{lt}, 3, v{vL}
        v_lshl_add_u32 v{lt}, v{lt}, 2, s{sT}
        ds_write_b32 v{lt}, v{ls}
        ds_write_b32 v{lt}, v{ls+2} offset:256
        ds_write_b32 v{lt}, v{ls+4} offset:32
        ds_write_b32 v{lt}, v{ls+6} offset:288
        s_waitcnt lgkmcnt(0)""")
    def q_src():
        for p in range(3):
            k(f"""v_add_u32 v{vT}, {64*p}, v{vL}
            v_mul_u32_u24 v{vT+1}, 5462, v{vT}
            v_lshrrev_b32 v{vT+1}, 16, v{vT+1}
            v_mul_u32_u24 v{vT+2}, 12, v{vT+1}
            v_sub_u32 v{vT+2}, v{vT}, v{vT+2}
            v_min_u32 v{vT+2}, 9, v{vT+2}
            v_mul_u32_u24 v{vT+1}, 1280, v{vT+1}
            v_lshl_add_u32 v{vw+p}, v{vT+2}, 4, v{vT+1}""")
            if p: k(f"v_subrev_u32 v{vw+p}, {1024*p}, v{vw+p}")
        k.srd(sB, P_WQ, 640*1280)
        k(f"""s_mul_i32 s{sSoB}, s{sW}, {16*1280}
        s_mul_i32 s{sT}, s{sHG}, 160
        s_add_u32 s{sSoB}, s{sSoB}, s{sT}
        s_mov_b32 s{sStepB}, {64*1280}
        s_mul_i32 s{sI}, s{sW}, 3072
        s_add_u32 s{sI}, s{sI}, {F_B+8192}""")
    if "skip" in MX:
        k(f"s_barrier\ns_cmp_eq_u32 s{sHG}, 7\ns_cbranch_scc1 {end}")
        setup_rest(); a_addr(4096)
        k.srd(sA, P_WSP, 2048*4096)
        k(f"s_lshl_b32 s{sSoA}, s{sTB}, 2\ns_add_u32 s{sSoA}, s{sSoA}, s{sW}\ns_lshl_b32 s{sSoA}, s{sSoA}, 17")
        k(f"v_lshlrev_b32 v{vDb}, 4, v{vL}\nv_lshlrev_b32 v{vDb+1}, 4, v{vL}\ns_add_u32 s{sSoF}, s{sSoF}, {4*28}\ns_waitcnt vmcnt(0)")
        k(lf()); k(f"s_branch {skipG}")
    early = 'b' not in pf
    sKr = 36
    l_rot()
    if early: l_x(0)
    k(f"s_cmp_eq_u32 s{sHG}, 7\ns_cbranch_scc1 {rep}")
    q_src()
    def mid():
        setup_rest(); nat_read_addr(128); b_addr(3456); a_addr(XN_ST)
    if early: l_pass(3, True, mid, xf=True, lead=lq)
    else:
        mid(); k("s_barrier"); l_pass(3, False, xf=True)
    sp('p1l')
    k("s_barrier")
    src_win(13 * 128)
    issue_b(10)
    src_xn()
    xo = k.lab("xo")
    k("s_waitcnt vmcnt(2)\ns_mov_b64 exec, 0xf")
    gcheck(vT + 8)
    k(f"s_mov_b64 exec, -1\ns_cbranch_vccz {xo}")
    gpoll(f"s{sT+3}", vT + 4, vT + 8, 0xf, 2)
    k.label(xo)
    cohA[0] = "sc1"
    issue_a(10)
    prologue(10, "nat")

    k.label(b10)
    sp('p1')
    prio[0] = lprio
    vFg, vSt = vT + 8, tmp
    for g in range(10, 30):
        if g == 16:
            src_win(0)
        if g == 17:
            k(f"s_mov_b32 s{sSoA}, s{sBaseA}")
        if g == 14 and sent:
            poison(True)
        if g == 20:
            sp('p2')
            hi()
            s0 = k.lab("s0")
            k(f"v_mov_b32 v{vT+12}, {fl(GC1)}\nv_mov_b32 v{vT+10}, 0\nv_mov_b32 v{vT+11}, 0\ns_nop 7")
            k(f"s_cmp_eq_u32 s{sFG}, 0\ns_cbranch_scc1 {s0}")
            gelu(0, z2, True)
            k.label(s0)
            gelu(1, z2 + 8, True)
            k.srd(sO, P_WS, SZ_ST, WS_ST)
            k(f"""v_mov_b32 v{vT+2}, v{vT+10}
            v_mov_b32 v{vT+3}, v{vT+11}
            s_mul_i32 s{sT}, s{sTB}, 14
            s_add_u32 s{sT}, s{sT}, s{sFG}
            v_permlane32_swap_b32 v{vT+10}, v{vT+2}
            v_permlane32_swap_b32 v{vT+11}, v{vT+3}
            s_lshl_b32 s{sT}, s{sT}, 10
            s_lshl_b32 s{sT+1}, s{sW}, 8
            v_add_f32 v{vT+10}, v{vT+10}, v{vT+2}
            v_add_f32 v{vT+11}, v{vT+11}, v{vT+3}
            v_lshlrev_b32 v{vT+2}, 3, v{vN}
            s_add_u32 s{sT}, s{sT}, s{sT+1}
            s_mov_b32 exec_hi, 0""")
            k(vop("st", f"buffer_store_dwordx2 {v(vT+10,2)}, v{vT+2}, s[{sO}:{sO+3}], s{sT} offen sc1"))
            k("s_mov_b32 exec_hi, -1")
            lo()
        if g == 21:
            sp('e21')
            hi()
            k(f"s_waitcnt vmcnt({newer({'st'})})")
            gsync(); set_flag(FL_S)
            if sent: poison_done()
            lo()
        if g == 23:
            hi()
            k(f"v_min_u32 v{vT+14}, 13, v{vL}\nv_lshlrev_b32 v{vT+14}, 7, v{vT+14}\ns_lshl_b32 s{sT}, s{sTB}, 11\ns_add_u32 s{sT}, s{sT}, {FL_S}")
            k(vop("pf", gload(f"s{sT}", vT + 14, vFg)))
            lo()
        if g == 24:
            sp('e24')
            hi()
            ok = k.lab("sok")
            k(f"s_waitcnt vmcnt({newer({'pf'})})")
            gcheck(vFg)
            k(f"s_cbranch_vccz {ok}")
            k(f"s_lshl_b32 s{sT}, s{sTB}, 11\ns_add_u32 s{sT}, s{sT}, {FL_S}")
            gpoll(f"s{sT}", vT + 14, vFg, 0x3fff, 4)
            k.label(ok)
            k(f"""v_mul_u32_u24 v{vT+14}, 7168, v{vH}
            v_lshl_add_u32 v{vT+14}, v{vN}, 3, v{vT+14}
            s_mul_i32 s{sT}, s{sTB}, {14*1024}
            s_lshl_b32 s{sT+1}, s{sW}, 8
            s_add_u32 s{sT}, s{sT}, s{sT+1}
            s_add_u32 s{sT+1}, s{sT}, 4096""")
            for i in range(7):
                k(vop("sl", f"buffer_load_dwordx2 {v(z1+2*i,2)}, v{vT+14}, s[{sO}:{sO+3}], s{sT + i//4} offen offset:{1024*(i%4)} sc1"))
            lo()
        if g == 25:
            sp('e25')
            hi()
            sel, D = tmp, tmp + 8
            mur, r = vT + 10, vT + 11
            k(f"v_lshlrev_b32 v{vT+2}, 2, v{vH}\nv_sub_u32 v{vT+2}, v{vN}, v{vT+2}\nv_mov_b32 v{vT+3}, 0x3f80\nv_mov_b32 v{vT+4}, 0x3f800000")
            for e in range(2):
                for q in range(4):
                    f0 = 16*e + 8*(q >> 1) + 2*(q & 1)
                    k(f"""v_cmp_eq_u32 vcc, {f0}, v{vT+2}
                    v_cmp_eq_u32 s[{sT}:{sT+1}], {f0+1}, v{vT+2}
                    s_nop 0
                    v_cndmask_b32 v{sel+4*e+q}, 0, v{vT+3}, vcc
                    v_cndmask_b32 v{sel+4*e+q}, v{sel+4*e+q}, v{vT+4}, s[{sT}:{sT+1}]""")
            k(f"s_waitcnt vmcnt({newer({'sl'})})")
            for i in range(1, 7):
                k(f"v_add_f32 v{z1}, v{z1}, v{z1+2*i}\nv_add_f32 v{z1+1}, v{z1+1}, v{z1+2*i+1}")
            k.srd(sO, P_WS, SZ_Z2F, WS_Z2F)
            k(f"""v_mov_b32 v{z1+2}, v{z1}
            v_mov_b32 v{z1+3}, v{z1+1}
            v_lshlrev_b32 v{vT+2}, 4, v{vL}
            s_lshl_b32 s{sT}, s{sFG}, 18
            v_permlane32_swap_b32 v{z1}, v{z1+2}
            v_permlane32_swap_b32 v{z1+1}, v{z1+3}
            v_add_f32 v{mur}, v{z1}, v{z1+2}
            v_add_f32 v{r}, v{z1+1}, v{z1+3}
            v_mul_f32 v{mur}, {fl(1.0/864)}, v{mur}
            v_mul_f32 v{r}, {fl(1.0/864)}, v{r}
            v_fma_f32 v{r}, -v{mur}, v{mur}, v{r}
            v_max_f32 v{r}, 0, v{r}
            v_add_f32 v{r}, {fl(1e-5)}, v{r}
            v_rsq_f32 v{r}, v{r}
            s_lshl_b32 s{sT+1}, s{sTB}, 13
            s_add_u32 s{sT}, s{sT}, s{sT+1}
            v_mul_f32 v{mur}, v{mur}, v{r}
            s_lshl_b32 s{sT+1}, s{sW}, 11
            s_add_u32 s{sT}, s{sT}, s{sT+1}
            s_sub_u32 s{sT+1}, s{sT}, 0x20000""")
            s1 = k.lab("s1")
            for u in (1, 0):
                if u == 0:
                    k(f"s_cmp_eq_u32 s{sFG}, 0\ns_cbranch_scc1 {s1}")
                zz = z2 + 8*u
                for i in range(8):
                    k(f"""v_lshlrev_b32 v{vT+4}, 16, v{zz+i}
                    v_and_b32 v{vT+5}, s{sMask}, v{zz+i}
                    v_fma_f32 v{vT+4}, v{vT+4}, v{r}, -v{mur}
                    v_fma_f32 v{vT+5}, v{vT+5}, v{r}, -v{mur}
                    v_cvt_pk_bf16_f32 v{zz+i}, v{vT+4}, v{vT+5}""")
                k("s_nop 1")
                k(f"v_mfma_f32_32x32x16_bf16 {v(D,16)}, {v(zz,4)}, {v(sel,4)}, 0")
                k(f"v_mfma_f32_32x32x16_bf16 {v(D,16)}, {v(zz+4,4)}, {v(sel+4,4)}, {v(D,16)}")
                k("s_nop 7\ns_nop 3")
                for i in range(8): k(f"v_cvt_pk_bf16_f32 v{zz+i}, v{D+2*i}, v{D+2*i+1}")
                k("s_nop 0")
                for jp in range(2): swap4(zz + 4*jp)
                for jp in range(2):
                    k(vop("zs", f"buffer_store_dwordx4 {v(zz+4*jp,4)}, v{vT+2}, s[{sO}:{sO+3}], s{sT + 1 - u} offen offset:{1024*jp} sc1"))
            k.label(s1)
            del vm[-2:]
            lo()
        if g == 26:
            sp('e26')
            hi()
            k(f"s_waitcnt vmcnt({newer({'zs'})})")
            gsync(); set_flag(FL_Z)
            lo()
        if g == 27:
            sp('e27')
            hi()
            a_addr(4096)
            k.srd(sA, P_WSP, 2048*4096)
            k(f"s_lshl_b32 s{sSoA}, s{sTB}, 2\ns_add_u32 s{sSoA}, s{sSoA}, s{sW}\ns_lshl_b32 s{sSoA}, s{sSoA}, 17")
            cohA[0] = ntw
            if prot is not None:
                wrapA[0] = True
                k(f"""s_and_b32 s36, s{sTB}, 1
                s_mul_i32 s36, s36, {prot[0]}
                s_mul_i32 s37, s{sFG}, {prot[1]}
                s_add_u32 s36, s36, s37
                s_and_b32 s36, s36, 31
                s_mov_b32 s38, s{sSoA}
                s_lshl_b32 s37, s36, 7
                s_add_u32 s{sSoA}, s38, s37""")
            k.srd(sB, P_BSP, 4096)
            k(f"v_lshlrev_b32 v{vT+2}, 1, v{vTok}\nv_lshlrev_b32 v{vDb}, 4, v{vL}\nv_lshlrev_b32 v{vDb+1}, 4, v{vL}")
            k(vop("bias", f"buffer_load_ushort v{vBias}, v{vT+2}, s[{sB}:{sB+3}], 0 offen"))
            lo()
        if g == 29:
            k(f"s_lshl_b32 s{sT}, s{sW}, 13\ns_add_u32 s{sT}, s{sT}, {FL_Z}\nv_and_b32 v{vT+14}, 15, v{vL}\nv_min_u32 v{vT+14}, 13, v{vT+14}\nv_and_or_b32 v{vT+14}, v{vL}, 48, v{vT+14}\nv_lshlrev_b32 v{vT+14}, 7, v{vT+14}")
            k(vop("pz", gload(f"s{sT}", vT + 14, vFg)))
        body(g, "nat", "nat" if g != 29 else None, first=(g in (10, 20)), doB=(g < 26), cout=(g not in (16, 26)))
    sp('p3')
    hi()
    pd = k.lab("zpd")
    k(f"s_waitcnt vmcnt({newer({'pz'})})")
    gcheck(vFg)
    k(f"s_cbranch_vccz {pd}")
    k(f"s_lshl_b32 s{sT}, s{sW}, 13\ns_add_u32 s{sT}, s{sT}, {FL_Z}")
    gpoll(f"s{sT}", vT + 14, vFg, None, 4)
    k.label(pd)
    gsync()
    k.label(skipG)
    sp('zr')
    k.srd(sB, P_WS, SZ_Z2F, WS_Z2F)
    k(f"""s_lshr_b32 s{sT+1}, s{sW}, 1
    s_lshl_b32 s{sT}, s{sFG}, 1
    s_add_u32 s{sT+1}, s{sT}, s{sT+1}
    s_lshl_b32 s{sSoB}, s{sT+1}, 17
    s_and_b32 s{sT}, s{sW}, 1
    s_lshl_b32 s{sT}, s{sT}, 11
    s_add_u32 s{sSoB}, s{sSoB}, s{sT}
    s_mov_b32 s{sStepB}, 4096
    v_add_u32 v{vZa}, {L_Z}, v{vDb}""")
    cohB[0] = "sc1"
    if prot is not None:
        wrapB[0] = True
        k(f"s_mov_b32 s54, s{sSoB}\ns_lshl_b32 s39, s36, 12\ns_add_u32 s{sSoB}, s54, s39")
    k(f"s_setprio {lprio}")
    for g in range(30, 34): issue_b(g)
    k("s_setprio 3")
    pat[0] = pats
    k(f"v_mov_b32 v{vT+12}, {fl(GC1)}")
    gelu(0, z1, False)
    gelu(1, z1 + 8, False)
    for t in range(2):
        for i in range(16): k(f"v_mov_b32 v{acc[t]+i}, 0")
    k(f"s_waitcnt vmcnt(2)\ns_mov_b32 s{sNeed}, 28\ns_mov_b32 s{sI}, 0\ns_add_u32 m0, s{sM0A}, {16384*(29%3)}")
    gsync()
    for r in reads("frag", 0, 0, 30): k(r)
    lo()
    loop = k.lab("gloop")
    sp('l0')
    if "lin" in MX:
        for p in range(4): k(f"v_mov_b32 v{vD+p}, v{vDb}")
    if "glin" in MX:
        for p in range(4): k(f"v_add_u32 v{vWa+p}, s{sM0A}, v{vDb}")
    if "oob" in MX: k(f"s_mov_b32 s{sA+2}, 0\ns_mov_b32 s{sB+2}, 0")
    if "ooa" in MX: k(f"s_mov_b32 s{sA+2}, 0")
    if "ooz" in MX: k(f"s_mov_b32 s{sB+2}, 0")
    k.align(3)
    k.label(loop)
    inloop[0] = True
    if "nosc" in MX: cohB[0] = ""
    for g in range(30, 36):
        body(g, "frag", "frag", loop=True)
    inloop[0] = False
    k(f"s_add_u32 s{sI}, s{sI}, 1\ns_cmp_lt_u32 s{sI}, 4\ns_cbranch_scc1 {loop}")
    sp('l1')
    if "skip" in MX: k.endpgm(P_WS, 3)
    if "nopt" in MX:
        k("s_waitcnt lgkmcnt(0)")
        k.stamp(1); k("s_waitcnt lgkmcnt(0)")
        for i in range(32): k("s_nop 15")
        k.stamp(2); k("s_waitcnt lgkmcnt(0)")
        for i in range(256): k(f"v_add_u32 v{vT}, 1, v{vT}")
        k.stamp(3); k("s_waitcnt lgkmcnt(0)")
        for i in range(32): k(f"ds_read_b32 v{vT}, v{vFa}\ns_waitcnt lgkmcnt(0)")
        k.stamp(4); k("s_waitcnt lgkmcnt(0)")
    sG, sWb = sI, sBaseA
    def out_ids():
        k(f"s_lshr_b32 s{sG}, s2, 5\ns_mul_i32 s{sWb}, s{sG}, {47*5120}\ns_add_u32 s{sWb}, s{sWb}, {20*5120 - 1024 - L_A}")
    vm[:] = [((t[0], t[1] + 18) if isinstance(t, tuple) else t) for t in vm]
    for g in range(54, 62):
        tA = tB = None
        if g == 55:
            k(f"v_and_b32 v{vT+14}, 31, v{vL}\nv_lshlrev_b32 v{vT+14}, 7, v{vT+14}\ns_mov_b32 s{sT}, {FL_W}")
            k(gload(f"s{sT}", vT + 14, vFg))
        if g == 58:
            wk = k.lab("wok")
            gcheck(vFg)
            k(f"s_cbranch_vccz {wk}\ns_mov_b32 s{sT}, {FL_W}")
            gpoll(f"s{sT}", vT + 14, vFg, None, 4)
            k.label(wk)
            sp('g58')
            out_ids()
            k.srd(sB, P_WS, SZ_WF, WS_WF)
        if g == 59:
            k.srd(sA, P_WS, SZ_WF, WS_WF)
            cohA[0] = "sc1"
            hi()
            for p in range(4): k(f"v_mov_b32 v{vD+p}, v{vDb}")
            lo()
        if g >= 58: tB = f"s_add_u32 s{sSoB}, m0, s{sWb}"
        if g >= 59: tA = f"s_add_u32 s{sSoA}, m0, s{sWb}"
        body(g, "frag", "frag" if g < 61 else None, dyn=True, doA=(g < 59), doB=(g < 58), tailA=tA, tailB=tB, cout=(g < 58))
    sp('p4')
    hi()
    fin = k.lab("gfin")
    def rest_w():
        gsync()
        k(f"s_lshl_b32 s{sT+1}, s{sW}, 12\ns_add_u32 m0, s{sT+1}, {L_Z}\ns_add_u32 s{sSoB}, m0, s{sWb}")
        for p in range(4):
            k(f"buffer_load_dwordx4 v{vDb}, s[{sB}:{sB+3}], s{sSoB} offen offset:{1024*p} sc1 lds")
    u_addr()
    k(f"v_lshlrev_b32 v{vBias}, 16, v{vBias}")
    for i in range(2):
        if i == 1:
            k(f"s_cmp_eq_u32 s{sFG}, 13\ns_cbranch_scc1 {fin}")
        for r in range(8):
            zr = z1 + 8*i + r
            a0 = acc[i] + 2*r
            k(f"""v_lshlrev_b32 v{tmp}, 16, v{zr}
            v_and_b32 v{tmp+1}, s{sMask}, v{zr}
            v_add_f32 v{a0}, v{a0}, v{vBias}
            v_add_f32 v{a0+1}, v{a0+1}, v{vBias}
            v_mul_f32 v{a0}, v{a0}, v{tmp}
            v_mul_f32 v{a0+1}, v{a0+1}, v{tmp+1}
            v_cvt_pk_bf16_f32 v{zr}, v{a0}, v{a0+1}""")
        k("s_nop 1")
        for jp in range(2): swap4(z1 + 8*i + 4*jp)
        for jp in range(2):
            k(f"buffer_store_dwordx4 {v(z1+8*i+4*jp,4)}, v{vT+1}, s[{sO}:{sO+3}], s{sT} offen offset:{1024*i+512*jp} sc1")
    k.label(fin)
    rest_w()
    if not sent: set_wflag(FL_U, 4)
    k(f"s_branch {outp}")

    k.label(rep)
    vm[:] = [("A", 0)] * 2
    k(f"s_cmp_ge_u32 s{sW}, 2\ns_cbranch_scc1 {kw}")
    k.srd(sB, P_WK, 25600)
    k(f"s_branch {kwd}")
    k.label(kw)
    k.srd(sB, P_WV, 25600)
    k.label(kwd)
    k(f"""v_lshlrev_b32 v{vw}, 4, v{vL}
    v_lshlrev_b32 v{vw+1}, 4, v{vL}
    s_and_b32 s{sSoB}, s{sW}, 1
    s_lshl_b32 s{sSoB}, s{sSoB}, 11
    s_mov_b32 s{sStepB}, 2560
    s_add_u32 s{sI}, s{sNeed}, 8192""")
    if early: l_pass(2, True, setup_rest, lead=lk)
    else:
        setup_rest(); k("s_barrier"); l_pass(2, False, lead=4)
    sp('p1l')
    q_src()
    k("s_barrier\ns_barrier\ns_barrier")
    l_pass(3, False)
    k("s_barrier")
    rl = k.lab("rl")
    att_progress(1, vT + 5, 8)
    if spe: prefetch_sp()
    if sent: poison(False)
    k(f"s_mov_b32 s{sNeed}, s{sT64}")
    k.label(rl)
    emit_repack(k, sNeed, sW, vL, P_WO, P_WOUT, P_WS, 8, acc[0], L_A, gsync, coh="sc1", rot=orot)
    k(f"s_add_u32 s{sNeed}, s{sNeed}, 32\ns_waitcnt vmcnt(0)")
    gsync()
    k(f"s_cmp_lt_u32 s{sNeed}, 47\ns_cbranch_scc1 {rl}")
    if sent: poison_done()
    nf = k.lab("nf")
    k(f"s_cmp_lg_u32 s{sW}, 0\ns_cbranch_scc1 {nf}\ns_lshl_b32 s{sT}, s{sT64}, 7\ns_add_u32 s{sT}, s{sT}, {FL_W}")
    gset(f"s{sT}", vT, vT + 2)
    k.label(nf)
    k.label(outq)
    sp('p1')
    k(f"s_setprio {lprio}")
    out_ids()
    k.srd(sB, P_WS, SZ_WF, WS_WF)
    if not spe: prefetch_sp()
    att_progress(wfat, vT, 32)
    k(f"v_lshlrev_b32 v{vDb}, 4, v{vL}\nv_lshlrev_b32 v{vT}, 7, v{vL}\ns_mov_b32 s{sT}, {FL_W}")
    gpoll(f"s{sT}", vT, vT + 2, 0xffffffff, 16)
    if sent:
        k(f"s_lshl_b32 s{sT}, s{sW}, 13\ns_add_u32 s{sT}, s{sT}, {FL_Z}\nv_and_b32 v{vT}, 15, v{vL}\nv_min_u32 v{vT}, 13, v{vT}\nv_and_or_b32 v{vT}, v{vL}, 48, v{vT}\nv_lshlrev_b32 v{vT}, 7, v{vT}")
        gpoll(f"s{sT}", vT, vT + 2, None, 16)
        gsync()
    if 'w' in pf:
        wl = k.lab("wl")
        k(f"""s_bfe_u32 s{sT}, s2, 0x20003
        s_lshl_b32 s{sT}, s{sT}, 2
        s_add_u32 s{sT}, s{sT}, s{sW}
        s_lshl_b32 s{sT}, s{sT}, 13
        v_lshlrev_b32 v{vT+8}, 7, v{vL}""")
        k.label(wl)
        k(f"""buffer_load_dword v{vT+9}, v{vT+8}, s[{sB}:{sB+3}], s{sT} offen sc1
        s_add_u32 s{sT}, s{sT}, {16*8192}
        s_cmp_lt_u32 s{sT}, {SZ_WF}
        s_waitcnt vmcnt(0)
        s_cbranch_scc1 {wl}""")
    k(f"s_mul_i32 s{sT}, s{sW}, {24*1024}\ns_add_u32 s{sT}, s{sT}, {L_A}")
    for p in range(24):
        if p % 4 == 0:
            k(f"s_add_u32 m0, s{sT}, {1024*p}\ns_add_u32 s{sSoB}, m0, s{sWb}")
        k(f"buffer_load_dwordx4 v{vDb}, s[{sB}:{sB+3}], s{sSoB} offen offset:{1024*(p%4)} sc1 lds")

    k.label(outp)
    sp('outp')
    sWF, sOU, sXo = sB, sA, sO
    sTT, sAo, sXof = sSoA, sStepB, sM0A
    a = Alloc(8)
    oacc = a(20, 4)
    af = a(80, 4)
    wb = [a(20, 4), a(20, 4)]
    xr = a(10, 2)
    vQ = a(4, 2)
    vA16, vW0, vW1, vXo, vP = a(), a(), a(), a(), a()
    assert a.n <= 168, a.n
    k.srd(sOU, P_WS, SZ_OUF, WS_OUF)
    k.srd(sXo, P_X, SZ_Q)
    k(f"""s_lshl_b32 s{sTT}, s{sT64}, 2
    s_add_u32 s{sTT}, s{sTT}, s{sW}
    s_mul_i32 s{sAo}, s{sTT}, {47*1024}
    s_mul_i32 s{sXof}, s{sTT}, {16*1280}
    s_mul_i32 s{sT}, s{sG}, 160
    s_add_u32 s{sXof}, s{sXof}, s{sT}
    v_lshlrev_b32 v{vA16}, 4, v{vL}
    v_add_u32 v{vW0}, {L_W}, v{vA16}
    v_add_u32 v{vW1}, {L_W+51200}, v{vA16}
    v_lshlrev_b32 v{vP}, 7, v{vL}
    v_and_b32 v{vXo}, 15, v{vL}
    v_mul_u32_u24 v{vXo}, 1280, v{vXo}
    v_lshrrev_b32 v{vQ}, 4, v{vL}
    v_lshl_add_u32 v{vXo}, v{vQ}, 3, v{vXo}""")
    k(f"s_setprio {lprio}")
    sWs, sWd = sT + 1, sT + 2
    k(f"s_mul_i32 s37, s{sG}, 5\ns_lshr_b32 s37, s37, 1\ns_mul_i32 s38, s{sG}, 27\ns_lshr_b32 s38, s38, 3")
    sU = sNeed
    vm[:] = []
    ld = []
    def lop(tag, txt): ld.append(tag); k(txt)
    def lnewer(tag): return min(15, len(ld) - 1 - max(i for i, t in enumerate(ld) if t == tag))
    def wpieces(step0, lds0, npieces, tag):
        per = npieces // 4
        def setup():
            k(f"""s_mul_i32 s{sWs}, s{sG}, {47*5120}
            s_mul_i32 s{sWd}, s{sW}, {per*1024}
            s_add_u32 s{sWs}, s{sWs}, s{sWd}
            s_add_u32 s{sWs}, s{sWs}, {step0*5120}
            s_add_u32 s{sWd}, s{sWd}, {lds0}""")
        def piece(p):
            if p == 0: setup()
            if p % 4 == 0:
                k(f"s_add_u32 m0, s{sWd}, {1024*p}")
                k(f"s_add_u32 s{sWs}, s{sWs}, 4096" if p else "s_nop 0")
            k(vop(tag, f"buffer_load_dwordx4 v{vA16}, s[{sWF}:{sWF+3}], s{sWs} offen offset:{1024*(p%4)} sc1 lds"))
        return [lambda p=p: piece(p) for p in range(per)]
    def aloads(steps, regs):
        def one(st, r):
            if orot:
                lo_, n_, sr = (0, 20, 37) if st < 20 else (20, 27, 38)
                k(f"s_add_u32 s{sT}, s{sr}, {st-lo_}\ns_sub_u32 s39, s{sT}, {n_}\ns_cselect_b32 s{sT}, s{sT}, s39\ns_lshl_b32 s{sT}, s{sT}, 10\ns_add_u32 s{sT}, s{sT}, s{sAo}")
                if lo_: k(f"s_add_u32 s{sT}, s{sT}, {lo_*1024}")
            else:
                k(f"s_add_u32 s{sT}, s{sAo}, {st*1024}")
            k(vop(("a", st), f"buffer_load_dwordx4 {v(af+4*r,4)}, v{vA16}, s[{sOU}:{sOU+3}], s{sT} offen sc1"))
        return [lambda st=st, r=r: one(st, r) for st, r in zip(steps, regs)]
    def wread(slot, b, u, tag):
        if isinstance(slot, tuple): base, o = vA16, slot[1] * 5120
        else: base, o = (vW0, slot * 5120) if slot < 10 else (vW1, (slot - 10) * 5120)
        lop(tag, f"ds_read_b128 {v(wb[b]+4*u,4)}, v{base} offset:{o+1024*u}")
    first = [True]
    def arrive():
        k(f"s_add_u32 s{sCnt}, s{sCnt}, 1\nv_mov_b32 v{vFl}, s{sCnt}")
        lop("w", f"ds_write_b32 v{vXw}, v{vFl}")
    def peek(): lop("pk", f"ds_read_b32 v{vQ}, v{vXa}")
    def check():
        sl = k.lab("oslow"); ok = k.lab("ook")
        k(f"s_waitcnt lgkmcnt({lnewer('pk')})\nv_cmp_gt_u32 vcc, s{sCnt}, v{vQ}\ns_cbranch_vccnz {sl}")
        k.label(ok)
        cold2.append((sl, ok))
    cold2 = []; cold3 = []
    def compute(seq, side, hooks={}):
        for i in range(min(2, len(seq))):
            for u in range(5): wread(seq[i][0], i % 2, u, ("r", i))
        for i, (sl, st, r) in enumerate(seq):
            b = i % 2
            nv = newer({("a", st)})
            k(f"s_waitcnt vmcnt({min(63, nv)}) lgkmcnt({lnewer(('r', i))})")
            if sent:
                a0 = af + 4*r
                sl = k.lab("vslow"); ok = k.lab("vok")
                k(f"v_max3_u32 v{vQ+1}, v{a0}, v{a0+1}, v{a0+2}\nv_max_u32 v{vQ+1}, v{vQ+1}, v{a0+3}\nv_cmp_eq_u32 vcc, -1, v{vQ+1}\ns_cbranch_vccnz {sl}")
                k.label(ok)
                cold3.append((sl, ok, st, r))
            if i in hooks: hooks[i]()
            sd = list(side.get(i, []))
            for u in range(5):
                c = "0" if first[0] else v(oacc+4*u, 4)
                k(f"v_mfma_f32_16x16x32_bf16 {v(oacc+4*u,4)}, {v(wb[b]+4*u,4)}, {v(af+4*r,4)}, {c}")
                if i + 2 < len(seq): wread(seq[i + 2][0], b, u, ("r", i + 2))
                if sd and u in ((1, 3, 4, 2, 0)[:len(side.get(i, []))]): sd.pop(0)()
            assert not sd
            first[0] = False
    def deal(em, i0, per):
        return {i0 + j: em[per*j:per*(j+1)] for j in range((len(em) + per - 1) // per)}
    for u in range(5):
        k(f"buffer_load_dwordx2 {v(xr+2*u,2)}, v{vXo}, s[{sXo}:{sXo+3}], s{sXof} offen offset:{32*u}")
    def probe_load(mask, vd, kind):
        k(f"s_mov_b64 exec, {hx(mask)}")
        if sent: k(vop("of", f"buffer_load_dword v{vd}, v{vP}, s[{sOU}:{sOU+3}], s{sU} offen sc1"))
        else: k(vop("of", gload(f"s{sU}", vP, vd)))
        k("s_mov_b64 exec, -1")
    def probe_check(mask, vd):
        k(f"s_mov_b64 exec, {hx(mask)}")
        if sent: k(f"v_cmp_eq_u32 vcc, -1, v{vd}")
        else: gcheck(vd)
        k("s_mov_b64 exec, -1")
    def probe(mask, slp):
        l = k.lab("pb"); d = k.lab("pbd")
        k.label(l)
        probe_load(mask, vQ, 0)
        k("s_waitcnt vmcnt(0)")
        probe_check(mask, vQ)
        k(f"s_cbranch_vccz {d}\ns_sleep {slp}")
        again(l)
        k.label(d)
    k("s_setprio 3")
    if sent:
        k(f"v_lshlrev_b32 v{vP}, 10, v{vL}\ns_add_u32 s{sU}, s{sAo}, {20*1024+1020}")
        probe((1 << 27) - 1, 1)
        gsync()
        k(f"v_mul_u32_u24 v{vP}, 2560, v{vL}\ns_add_u32 s{sU}, s{sAo}, 2556")
    else:
        k(f"s_lshr_b32 s{sU}, s{sTT}, 1\ns_lshl_b32 s{sU}, s{sU}, 11\ns_add_u32 s{sU}, s{sU}, {FL_U}")
        probe(0x3fff, 2)
        gsync()
        k(f"s_lshl_b32 s{sU}, s{sT64}, 10\ns_add_u32 s{sU}, s{sU}, {FL_O}")
    sp('upoll')
    k(f"s_setprio {oprio}")
    ul = aloads(range(20, 40), range(20))
    for e in ul[:8]: e()
    side = deal(ul[8:], 0, 2)
    side.update(deal(aloads(range(40, 47), range(7)), 8, 4))
    side.update(deal(wpieces(39, L_W + 5120, 40, "b2"), 10, 2))
    def oflag():
        probe_load(0xff, vQ + 2, 1)
    side[16] = [oflag]
    compute([(1 + i, 20 + i, i) for i in range(19)], side, {7: arrive, 9: peek, 10: check})
    sp('o4')
    k(f"s_waitcnt vmcnt(0)")
    gsync()
    late = k.lab("olate"); join = k.lab("ojoin")
    probe_check(0xff, vQ + 2)
    k(f"s_cbranch_vccnz {late}")
    seq3 = [(1 + i, 39 + i, ([19] + list(range(7)))[i]) for i in range(8)]
    oregs = list(range(7, 19)) + [19] + list(range(7))
    save = list(vm)
    em = wpieces(12, L_W + 9 * 5120, 40, "b3") + aloads(range(12), oregs[:12])
    compute(seq3, deal(em, 0, 3))
    k.label(join)
    sp('c3')
    lds_wait(L_F + F_OC, vQ, vQ + 1, 1)
    k("s_setprio 3")
    ld[:] = []
    seq4 = [(("T", i), i, oregs[i]) for i in range(12)] + [(9 + i, 12 + i, oregs[12 + i]) for i in range(8)]
    def b3_arrive():
        k(f"s_waitcnt vmcnt({newer({'b3'})})"); arrive()
    compute(seq4, deal(aloads(range(12, 20), oregs[12:]), 0, 2), {6: b3_arrive, 8: peek, 9: check})
    vm_fast = None
    sp('odone')
    k.srd(sXo, P_OUT, SZ_Q)
    k(f"s_mov_b32 s{sT}, 0xffff0000")
    t = wb[0]
    for u in range(5):
        for hh in range(2):
            k(f"v_lshlrev_b32 v{t+4*u+2*hh}, 16, v{xr+2*u+hh}\nv_and_b32 v{t+4*u+2*hh+1}, s{sT}, v{xr+2*u+hh}")
    for i in range(20):
        k(f"v_add_f32 v{t+i}, v{t+i}, v{oacc+i}")
    for u in range(5):
        k(f"v_cvt_pk_bf16_f32 v{xr+2*u}, v{t+4*u}, v{t+4*u+1}\nv_cvt_pk_bf16_f32 v{xr+2*u+1}, v{t+4*u+2}, v{t+4*u+3}")
    for u in range(5):
        k(f"buffer_store_dwordx2 {v(xr+2*u,2)}, v{vXo}, s[{sXo}:{sXo+3}], s{sXof} offen offset:{32*u} {oc}")
    ne = k.lab("ne")
    k(f"s_or_b32 s{sT}, s2, s{sW}\ns_cbranch_scc1 {ne}\ns_mov_b32 s{sT}, {hx(FL_E)}")
    gset(f"s{sT}", vP, vQ)
    k.label(ne)
    k.endpgm(P_WS, 3)
    k.label(late)
    vm[:] = save; ld[:] = []
    compute(seq3, deal(wpieces(12, L_W + 9 * 5120, 40, "b3"), 0, 2))
    probe(0xff, 1)
    for e in aloads(range(12), oregs[:12]): e()
    k(f"s_branch {join}")
    for sl, ok, st, r in cold3:
        a0 = af + 4*r
        k.label(sl)
        k("s_sleep 1")
        aloads([st], [r])[0]()
        k(f"s_waitcnt vmcnt(0)\nv_max3_u32 v{vQ+1}, v{a0}, v{a0+1}, v{a0+2}\nv_max_u32 v{vQ+1}, v{vQ+1}, v{a0+3}\nv_cmp_eq_u32 vcc, -1, v{vQ+1}\ns_cbranch_vccz {ok}")
        again(sl)
        k(f"s_branch {ok}")
    for sl, ok in cold2:
        k.label(sl)
        spinw(vXa, f"s{sCnt}")
        k(f"s_branch {ok}")
    for sl, need, ok in cold:
        k.label(sl)
        spinw(vFa, need)
        k(f"s_branch {ok}")
    k.label(end)
    k("s_endpgm")
    return k
```

```python
from common import *
import os

CH = 8 * KV_TILE
NSLOT = 3
ATT_LDS = NSLOT * CH
MARGIN = 100.0
TRIG = 2.0**12

def emit_attn(k, sT64, sHG, sW, vL, P_WS, sS, vb, lds_base, flag_base, slot=4, mega=None, budget=None, gset=None, tb=False, tail=None, yph=1, bal=0):
    GT = KV_G
    sKV, sQ = sS, sS + 4
    sT, sC, sSo, sM0, sDelta, sRet, sMask, sSlot = sS + 8, sS + 11, sS + 12, sS + 13, sS + 14, sS + 15, sS + 16, sS + 17
    sEx = sS + 18
    a = Alloc(vb)
    Sx = [a(16, 4), a(16, 4)]
    O = [a(16, 4), a(16, 4)]
    P = [a(8, 4), a(8, 4)]
    KA = a(4, 4); V0 = a(4, 4); V1 = a(4, 4)
    KB = a(2, 2)
    vKa, vKb, vVa, vD, vN, vH = [a() for _ in range(6)]
    assert a.n <= 104, a.n
    a = Alloc(112)
    QA = [a(4, 4), a(4, 4)]; QB = [a(2, 2), a(2, 2)]
    vM = [a(), a()]
    vFa, vFw, vFl = a(), a(), a()
    vT = a(6, 2)
    assert a.n <= 168
    G = lds_base + 2 * CH
    if STAMP: k("s_mov_b32 s88, 0")
    k.srd(sKV, P_WS, 64 * GT, WS_KV)
    k(f"""v_and_b32 v{vN}, 31, v{vL}
    v_lshrrev_b32 v{vH}, 5, v{vL}
    v_lshlrev_b32 v{vD}, 4, v{vL}
    s_mul_i32 s{sM0}, s{sW}, {KV_TILE}
    s_add_u32 s{sM0}, s{sM0}, {lds_base}
    s_mul_i32 s{sSo}, s{sW}, {GT}
    s_mov_b32 s{sMask}, 0xffff0000""")
    def dma(slot):
        k(f"s_add_u32 m0, s{sM0}, {slot}\ns_nop 0")
        for o in (0, 1024, KV_TILE - 1024):
            k(f"buffer_load_dwordx4 v{vD}, s[{sKV}:{sKV+3}], s{sSo} offen offset:{o} sc1 lds")
        k(f"s_add_u32 s{sSo}, s{sSo}, {8*GT}")
    def first_tile():
        dma(0)
        k(f"s_sub_u32 s{sSo}, s{sSo}, {8*GT}")
    mega(first_tile)
    k.stamp(2)
    k(f"s_add_u32 s{sSo}, s{sSo}, {8*GT}")
    dma(CH)
    def lane_addrs(base):
        k(f"""v_add_u32 v{vKa}, {base}, v{vD}
        v_lshlrev_b32 v{vKb}, 2, v{vL}
        v_add_u32 v{vKb}, {base}, v{vKb}
        v_min_u32 v{vVa}, 20, v{vN}
        v_lshlrev_b32 v{vVa}, 4, v{vVa}
        v_mul_u32_u24 v{vT}, 336, v{vH}
        v_add_u32 v{vVa}, v{vVa}, v{vT}
        v_add_u32 v{vVa}, {base}, v{vVa}""")
    k(f"s_lshr_b32 s{sT+2}, s{sW}, 2\ns_mul_i32 s{sT}, s{sT+2}, {KV_TILE}\ns_add_u32 s{sT}, s{sT}, {lds_base}")
    lane_addrs(f"s{sT}")
    k(f"""v_mov_b32 v{KB+1}, 0x3f803f80
    v_mov_b32 v{QB[0]+1}, 0
    v_mov_b32 v{QB[1]+1}, 0
    v_and_b32 v{vFa}, 7, v{vL}
    v_lshlrev_b32 v{vFa}, 2, v{vFa}
    v_add_u32 v{vFa}, {flag_base}, v{vFa}
    s_lshl_b32 s{sT}, s{sW}, 2
    s_add_u32 s{sT}, s{sT}, {flag_base}
    v_mov_b32 v{vFw}, s{sT}""")
    for r in range(P[1], P[1] + 8):
        k(f"v_mov_b32 v{r}, 0")
    k(f"v_mov_b32 v{V1+1}, 0x3f803f80")

    def publish(val):
        k(f"v_mov_b32 v{vFl}, {val}\nds_write_b32 v{vFw}, v{vFl}")
    def spin(val, va=None):
        l = k.lab("spin"); d = k.lab("spun")
        k.label(l)
        k(f"ds_read_b32 v{vFl}, v{va or vFa}\ns_waitcnt lgkmcnt(0)\nv_cmp_gt_u32 vcc, {val}, v{vFl}\ns_cbranch_vccz {d}\ns_sleep 1")
        k(f"s_sub_u32 s{budget}, s{budget}, 1\ns_cbranch_scc0 {l}")
        k.label(d)
    def set_m(x):
        k(f"""v_sub_f32 v{vT}, 0, v{vM[x]}
        v_and_b32 v{vT+1}, s{sMask}, v{vT}
        v_sub_f32 v{vT}, v{vT}, v{vT+1}
        v_and_b32 v{vT+2}, s{sMask}, v{vT}
        v_sub_f32 v{vT}, v{vT}, v{vT+2}
        v_lshrrev_b32 v{vT+1}, 16, v{vT+1}
        v_or_b32 v{vT+1}, v{vT+1}, v{vT+2}
        v_cmp_eq_u32 vcc, 0, v{vH}
        v_lshrrev_b32 v{vT}, 16, v{vT}
        s_nop 0
        v_cndmask_b32 v{QB[x]+1}, v{vT}, v{vT+1}, vcc
        s_nop 1""")
    def qk(x):
        S = Sx[x]
        return [f"v_mfma_f32_32x32x16_bf16 {v(S,16)}, {v(KA,4)}, {v(QA[x],4)}, 0",
                f"v_mfma_f32_32x32x8_bf16 {v(S,16)}, {v(KB,2)}, {v(QB[x],2)}, {v(S,16)}"]
    def pv(x):
        return [f"v_mfma_f32_32x32x16_bf16 {v(O[x],16)}, {v(V0,4)}, {v(P[x],4)}, {v(O[x],16)}",
                f"v_mfma_f32_32x32x16_bf16 {v(O[x],16)}, {v(V1,4)}, {v(P[x]+4,4)}, {v(O[x],16)}"]
    rdK = lambda j: [f"ds_read_b128 {v(KA,4)}, v{vKa} offset:{2*KV_TILE*j}", f"ds_read_b32 v{KB}, v{vKb} offset:{2*KV_TILE*j+KV_KB}"]
    rdV = lambda j: [f"ds_read_b128 {v(V0,4)}, v{vVa} offset:{2*KV_TILE*j+KV_V}", f"ds_read_b128 {v(V1,4)}, v{vVa} offset:{2*KV_TILE*j+KV_V+672}"]
    def maxtree(x, first, S=None):
        S = Sx[x] if S is None else S
        if first:
            k(f"v_max3_f32 v{vM[x]}, v{S}, v{S+1}, v{S+2}\nv_max_f32 v{vM[x]}, v{vM[x]}, v{S+3}")
        for i in range(4 if first else 0, 16, 2):
            k(f"v_max3_f32 v{vM[x]}, v{vM[x]}, v{S+i}, v{S+i+1}")
    def finish_max(margin):
        k(f"v_mov_b32 v{vT}, v{vM[0]}\nv_mov_b32 v{vT+1}, v{vM[1]}\ns_nop 0")
        for x in range(2): k(f"v_permlane32_swap_b32 v{vM[x]}, v{vT+x}")
        for x in range(2):
            k(f"v_max_f32 v{vM[x]}, v{vM[x]}, v{vT+x}\nv_ceil_f32 v{vM[x]}, v{vM[x]}")
            if margin: k(f"v_add_f32 v{vM[x]}, {fl(margin)}, v{vM[x]}")
        set_m(0); set_m(1)

    k(f"""s_and_b32 s{sT}, s{sW}, 1
    s_mul_i32 s{sT}, s{sT}, {32*192}
    s_and_b32 s{sT+1}, s{sW}, 2
    s_add_u32 s{sRet}, s{sT+1}, s{sT+2}
    s_mul_i32 s{sT+1}, s{sRet}, 40
    s_add_u32 s{sT}, s{sT}, {G}
    v_mul_u32_u24 v{vT}, 192, v{vN}
    v_add_u32 v{vT}, s{sT}, v{vT}
    v_lshl_add_u32 v{vT+1}, v{vH}, 4, v{vT}
    v_lshl_add_u32 v{vT+2}, v{vH}, 2, v{vT}
    s_xor_b32 s{sT}, s{sRet}, 1
    s_mul_i32 s{sT}, s{sT}, 40
    v_add_u32 v{vT+3}, s{sT}, v{vT+1}
    v_add_u32 v{vT+4}, s{sT}, v{vT+2}
    v_add_u32 v{vT+1}, s{sT+1}, v{vT+1}
    v_add_u32 v{vT+2}, s{sT+1}, v{vT+2}
    s_waitcnt vmcnt(3)""")
    publish(1)
    spin(1)
    for x in range(2):
        k(f"ds_read_b64 {v(QA[x],2)}, v{vT+1+2*x}\nds_read_b64 {v(QA[x]+2,2)}, v{vT+1+2*x} offset:8\nds_read_b32 v{QB[x]}, v{vT+2+2*x} offset:32")
    k.stamp(1)
    kb = [(V0, V1), (KA, KB)]
    sb = [O, Sx]
    order = (3, 2, 1, 0)
    def rdk(n): k(f"ds_read_b128 {v(kb[n%2][0],4)}, v{vKa} offset:{2*KV_TILE*order[n]}\nds_read_b32 v{kb[n%2][1]}, v{vKb} offset:{2*KV_TILE*order[n]+KV_KB}")
    rdk(0); rdk(1)
    for n in range(5):
        mf = []
        if n < 4:
            k(f"s_waitcnt lgkmcnt({2 if n < 3 else 0})")
            for x in range(2):
                D = sb[n % 2][x]
                mf += [f"v_mfma_f32_32x32x16_bf16 {v(D,16)}, {v(kb[n%2][0],4)}, {v(QA[x],4)}, 0",
                       f"v_mfma_f32_32x32x8_bf16 {v(D,16)}, {v(kb[n%2][1],2)}, {v(QB[x],2)}, {v(D,16)}"]
            for y in mf: k(y)
            if n < 2: rdk(n + 2)
        else:
            for r in list(range(O[0], O[0] + 32)) + list(range(V0, V0 + 8)):
                k(f"v_mov_b32 v{r}, 0")
        if n > 0:
            if n == 1 or n == 2 or n == 3: k("s_nop 5")
            maxtree(0, n == 1, sb[(n - 1) % 2][0]); maxtree(1, n == 1, sb[(n - 1) % 2][1])
    finish_max(MARGIN)
    for x in qk(0): k(x)
    k(f"s_mov_b32 s{sC}, 0\ns_mov_b32 s{sSlot}, 0\ns_nop 7\ns_nop 1")
    loop = k.lab("aloop")
    ent = {2: 0, 6: 0, 3: 1, 7: 1}
    rl = {i: k.lab(f"rin{i}") for i in ent}
    rb = {i: k.lab(f"rback{i}") for i in ent}
    k.align(6)
    k.label(loop)
    if STAMP and os.environ.get("ACH"):
        for si, cc in zip((2, 1), os.environ["ACH"].split(",")):
            l = k.lab("ach")
            k(f"s_cmp_lg_u32 s{sC}, {cc}\ns_cbranch_scc1 {l}")
            k.stamp(si)
            k.label(l)
        k.align(3)
    xs = k.lab("xs"); xd = k.lab("xd")
    for i in range(8):
        x, j = i % 2, i // 2
        S, Pc = Sx[x], P[x]
        if i in ent:
            k(f"s_cbranch_vccnz {rl[i]}")
            k.label(rb[i])
        if i == 6:
            k(f"v_cmp_gt_u32 vcc, s{sT}, v{vFl}\ns_cbranch_vccnz {xs}")
            k.label(xd)
            nod = k.lab("nod")
            k(f"s_cmp_ge_u32 s{sC}, 6\ns_cbranch_scc1 {nod}")
            dma(f"s{sT+1}")
            k.label(nod)
            k(f"v_add_u32 v{vKa}, s{sDelta}, v{vKa}\nv_add_u32 v{vKb}, s{sDelta}, v{vKb}")
        e = [f"v_exp_f32 v{S+n}, v{S+n}" for n in range(16)]
        c = [f"v_cvt_pk_bf16_f32 v{Pc+n}, v{S+2*n}, v{S+2*n+1}" for n in range(8)]
        m = qk(1 - x) + pv(1 - x)
        R = [[r] for r in rdK((j + 1) % 4) + rdV(j)] if x == 0 else [[], [], [], []]
        if i == 5: R[0] = [f"ds_read_b32 v{vFl}, v{vFa}"]
        seq = (["s_waitcnt lgkmcnt(2)"] if x else []) + [e[0], m[0]] + R[0] + e[1:5] + [c[0]]
        seq += [m[1]] + R[1] + e[5:7] + [c[1], c[2]]
        if i + 1 in ent:
            seq += [f"v_cmp_lt_f32 vcc, {fl(TRIG)}, v{O[1-x]+12}"]
        seq += [e[7], e[8]] + (["s_waitcnt lgkmcnt(0)"] if x else [])
        seq += [m[2]] + R[2] + e[9:11] + [c[3]] + e[11:13] + [c[4]]
        seq += [m[3]] + R[3] + [e[13], c[5]] + e[14:16] + [c[6], c[7]]
        for y in seq: k(y)
        if i == yph:
            assert i % 2 == 1
            k(f"s_add_u32 s{sT}, s{sC}, 2\ns_waitcnt vmcnt(0)")
            publish(f"s{sT}")
            k(f"""s_mov_b32 s{sDelta}, {CH}
            s_cmp_eq_u32 s{sSlot}, {2*CH}
            s_cmov_b32 s{sDelta}, {hx(-2*CH)}
            s_sub_u32 s{sT+1}, s{sSlot}, {CH}
            s_cmp_eq_u32 s{sSlot}, 0
            s_cmov_b32 s{sT+1}, {2*CH}""")
    k(f"""v_add_u32 v{vVa}, s{sDelta}, v{vVa}
    s_add_u32 s{sSlot}, s{sSlot}, s{sDelta}
    s_add_u32 s{sC}, s{sC}, 1
    s_cmp_lt_u32 s{sC}, 8
    s_cbranch_scc1 {loop}""")
    k.stamp(3)
    for y in pv(1): k(y)
    fin = k.lab("afin"); slow = k.lab("slow")
    def area(dst, w):
        k(f"s_mul_i32 s{dst}, s{w}, 3584\ns_add_u32 s{sDelta}, s{dst}, {G + 10240 - 5*3584}\ns_add_u32 s{dst}, s{dst}, {lds_base}\ns_cmp_ge_u32 s{w}, 5\ns_cselect_b32 s{dst}, s{sDelta}, s{dst}")
    area(sT, sW)
    k(f"s_xor_b32 s{sT+2}, s{sW}, 4")
    area(sT + 1, sT + 2)
    for x in range(2):
        k(f"v_maximum3_f32 v{vT+x}, |v{O[x]}|, |v{O[x]+1}|, |v{O[x]+2}|\nv_maximum3_f32 v{vT+x}, |v{O[x]+3}|, v{vT+x}, v{vT+x}")
        for i in range(4, 12, 2):
            k(f"v_maximum3_f32 v{vT+x}, |v{O[x]+i}|, |v{O[x]+i+1}|, v{vT+x}")
    k(f"""v_min_f32 v{vT+2}, v{vT}, v{vT+1}
    v_maximum3_f32 v{vT}, v{vT}, v{vT+1}, v{O[0]+12}
    v_cmp_gt_f32 vcc, {fl(2.0**-110)}, v{vT+2}
    v_maximum3_f32 v{vT}, v{vT}, v{vT}, v{O[1]+12}
    s_cbranch_vccnz {slow}
    v_cmp_ngt_f32 vcc, {fl(2.0**120)}, v{vT}
    s_cbranch_vccnz {slow}""")
    k.label(fin)
    k(f"""v_add_u32 v{vT}, s{sT}, v{vD}
    v_mov_b32 v{O[1]+13}, v{vM[1]}
    v_lshlrev_b32 v{vT+2}, 3, v{vL}
    v_add_u32 v{vT+1}, s{sT}, v{vT+2}
    ds_write_b128 v{vT}, {v(O[1],4)}
    ds_write_b128 v{vT}, {v(O[1]+4,4)} offset:1024
    ds_write_b128 v{vT}, {v(O[1]+8,4)} offset:2048
    ds_write_b64 v{vT+1}, {v(O[1]+12,2)} offset:3072
    v_xor_b32 v{vT+3}, 16, v{vFw}
    v_add_u32 v{vT}, s{sT+1}, v{vD}
    v_add_u32 v{vT+1}, s{sT+1}, v{vT+2}
    s_waitcnt lgkmcnt(0)""")
    if os.environ.get('AT'): k.stamp(2)
    publish(10)
    k.srd(sQ, P_WS, SZ_OUF, WS_OUF)
    spin(10, vT + 3)
    X = Sx[0]
    k(f"""ds_read_b64 {v(X+12,2)}, v{vT+1} offset:3072
    ds_read_b128 {v(X,4)}, v{vT}
    ds_read_b128 {v(X+4,4)}, v{vT} offset:1024
    ds_read_b128 {v(X+8,4)}, v{vT} offset:2048""")
    k(f"""s_lshr_b32 s{sT}, s{sW}, 2
    s_and_b32 s{sT+1}, s{sW}, 2
    s_add_u32 s{sT}, s{sT}, s{sT+1}
    s_mul_i32 s{sT}, s{sT}, 5
    v_add_u32 v{vT}, s{sT}, v{vH}
    v_lshrrev_b32 v{vT+1}, 1, v{vT}
    v_and_b32 v{vT}, 1, v{vT}
    v_lshlrev_b32 v{vT}, 3, v{vT}
    v_lshl_add_u32 v{vT}, v{vT+1}, 8, v{vT}
    v_and_b32 v{vT+1}, 15, v{vN}
    v_lshl_add_u32 v{vT}, v{vT+1}, 4, v{vT}
    v_lshrrev_b32 v{vT+1}, 4, v{vN}
    v_mul_u32_u24 v{vT+1}, 2560, v{vT+1}
    s_and_b32 s{sT}, s{sW}, 1
    s_mul_i32 s{sT}, s{sT}, 5120
    s_add_u32 s{sT}, s{sT}, {G}
    v_add3_u32 v{vT}, v{vT}, v{vT+1}, s{sT}
    s_waitcnt lgkmcnt(3)
    v_max_f32 v{vT+1}, v{vM[0]}, v{X+13}
    v_sub_f32 v{vT+2}, v{vM[0]}, v{vT+1}
    v_sub_f32 v{vT+3}, v{X+13}, v{vT+1}
    v_cvt_i32_f32 v{vT+2}, v{vT+2}
    v_cvt_i32_f32 v{vT+3}, v{vT+3}
    v_ldexp_f32 v{O[0]+12}, v{O[0]+12}, v{vT+2}
    v_ldexp_f32 v{X+12}, v{X+12}, v{vT+3}
    v_add_f32 v{vT+4}, v{O[0]+12}, v{X+12}
    v_rcp_f32 v{vT+4}, v{vT+4}""")
    for i in range(12): k(f"v_ldexp_f32 v{O[0]+i}, v{O[0]+i}, v{vT+2}")
    k("s_waitcnt lgkmcnt(0)")
    for i in range(12): k(f"v_ldexp_f32 v{X+i}, v{X+i}, v{vT+3}")
    for i in range(12): k(f"v_add_f32 v{X+i}, v{X+i}, v{O[0]+i}")
    for i in range(12): k(f"v_mul_f32 v{X+i}, v{X+i}, v{vT+4}")
    for i in range(6): k(f"v_cvt_pk_bf16_f32 v{P[0]+i}, v{X+2*i}, v{X+2*i+1}")
    last = k.lab("last")
    k(f"""ds_write_b64 v{vT}, {v(P[0],2)}
    ds_write_b64 v{vT}, {v(P[0]+2,2)} offset:256
    s_mov_b32 exec_hi, 0
    ds_write_b64 v{vT}, {v(P[0]+4,2)} offset:512
    s_mov_b64 exec, 1
    v_mov_b32 v{vT+2}, {flag_base+48}
    v_mov_b32 v{vT+3}, 1
    s_waitcnt lgkmcnt(0)
    ds_add_rtn_u32 v{vT+3}, v{vT+2}, v{vT+3}
    s_waitcnt lgkmcnt(0)
    v_readfirstlane_b32 s{sT}, v{vT+3}
    s_mov_b64 exec, -1
    s_cmp_eq_u32 s{sT}, 7
    s_cbranch_scc1 {last}""")
    k.endpgm(P_WS, slot)
    k.label(last)
    if os.environ.get('AT'): k.stamp(1)
    tail(0)
    k(f"v_add_u32 v{vT}, {G}, v{vD}")
    for i in range(12):
        k(f"ds_read_b128 {v(Sx[0]+4*i,4)}, v{vT} offset:{2560*(i//3) + (0, 1024, 1536)[i%3]}")
    k(f"s_mul_i32 s{sT}, s{sT64}, {4*47*1024}\ns_mul_i32 s{sT+1}, s{sHG}, 2560\ns_add_u32 s{sT}, s{sT}, s{sT+1}")
    for i in range(12):
        k(f"s_waitcnt lgkmcnt({11-i})")
        k(f"buffer_store_dwordx4 {v(Sx[0]+4*i,4)}, v{vD}, s[{sQ}:{sQ+3}], s{sT} offen offset:{(0, 1024, 1536)[i%3]} sc1")
        if i % 3 == 2: k(f"s_add_u32 s{sT}, s{sT}, {47*1024}")
    k(f"s_lshl_b32 s{sT}, s{sT64}, 3\ns_add_u32 s{sT}, s{sT}, s{sHG}\ns_lshl_b32 s{sT}, s{sT}, 7\ns_add_u32 s{sT}, s{sT}, {FL_O}")
    tail(1)
    if gset: gset(f"s{sT}", vT + 4, vT + 2)
    if os.environ.get('AT'): k.stamp(3)
    tail(2)
    k.endpgm(P_WS, slot)
    k.label(xs)
    spin(f"s{sT}")
    k(f"s_branch {xd}")
    for x in range(2):
        rare = k.lab("rare")
        ph = [i for i in ent if ent[i] == x]
        k.label(rl[ph[0]])
        k(f"s_mov_b32 s{sRet}, 0\ns_branch {rare}")
        k.label(rl[ph[1]])
        k(f"s_mov_b32 s{sRet}, 1")
        k.label(rare)
        if STAMP: k("s_add_u32 s88, s88, 1")
        k("s_nop 7\ns_nop 3")
        k(f"""v_frexp_exp_i32_f32 v{vT+3}, v{O[x]+12}
        v_add_u32 v{vT+3}, {int(MARGIN)}, v{vT+3}
        v_max_i32 v{vT+3}, 0, v{vT+3}
        v_cvt_f32_i32 v{vT+4}, v{vT+3}
        v_add_f32 v{vT+5}, v{vM[x]}, v{vT+4}
        v_sub_f32 v{vT+4}, v{vT+5}, v{vM[x]}
        v_mov_b32 v{vM[x]}, v{vT+5}
        v_cvt_i32_f32 v{vT+3}, v{vT+4}
        v_sub_u32 v{vT+3}, 0, v{vT+3}""")
        for i in range(16): k(f"v_ldexp_f32 v{O[x]+i}, v{O[x]+i}, v{vT+3}")
        for i in range(16): k(f"v_sub_f32 v{Sx[x]+i}, v{Sx[x]+i}, v{vT+4}")
        set_m(x)
        k(f"s_cmp_eq_u32 s{sRet}, 0\ns_cbranch_scc1 {rb[ph[0]]}\ns_branch {rb[ph[1]]}")
    k.label(slow)
    p1 = k.lab("p1"); p2 = k.lab("p2")
    lane_addrs("0")
    k(f"""v_mov_b32 v{QB[0]+1}, 0
    v_mov_b32 v{QB[1]+1}, 0
    v_mov_b32 v{vM[0]}, 0xff7fffff
    v_mov_b32 v{vM[1]}, 0xff7fffff
    s_lshr_b32 s{sC}, s{sW}, 2
    s_mul_i32 s{sC}, s{sC}, {GT}
    s_mov_b32 s{sSo}, s{sC}""")
    def gK():
        k(f"buffer_load_dwordx4 {v(KA,4)}, v{vKa}, s[{sKV}:{sKV+3}], s{sSo} offen offset:{KV_KA} sc1")
        k(f"buffer_load_dword v{KB}, v{vKb}, s[{sKV}:{sKV+3}], s{sSo} offen offset:{KV_KB} sc1")
    nxt = lambda l: k(f"s_add_u32 s{sSo}, s{sSo}, {2*GT}\ns_cmp_lt_u32 s{sSo}, {64*GT}\ns_cbranch_scc1 {l}")
    k.label(p1)
    gK()
    k("s_waitcnt vmcnt(0)")
    for y in qk(0) + qk(1): k(y)
    k("s_nop 7\ns_nop 3")
    maxtree(0, False); maxtree(1, False)
    nxt(p1)
    finish_max(0)
    for i in range(32): k(f"v_mov_b32 v{O[0]+i}, 0")
    k(f"s_mov_b32 s{sSo}, s{sC}")
    k.label(p2)
    gK()
    k(f"buffer_load_dwordx4 {v(V0,4)}, v{vVa}, s[{sKV}:{sKV+3}], s{sSo} offen offset:{KV_V} sc1")
    k(f"buffer_load_dwordx4 {v(V1,4)}, v{vVa}, s[{sKV}:{sKV+3}], s{sSo} offen offset:{KV_V+672} sc1")
    k("s_waitcnt vmcnt(0)")
    for y in qk(0) + qk(1): k(y)
    k("s_nop 7\ns_nop 3")
    for n in range(32): k(f"v_exp_f32 v{Sx[0]+n}, v{Sx[0]+n}")
    k("s_nop 0")
    for n in range(16): k(f"v_cvt_pk_bf16_f32 v{P[0]+n}, v{Sx[0]+2*n}, v{Sx[0]+2*n+1}")
    k("s_nop 1")
    for y in pv(0) + pv(1): k(y)
    nxt(p2)
    k(f"s_nop 7\ns_nop 3\ns_branch {fin}")
    return 104
```

```python
from common import *
import os, math
from k2parts import emit_repack
import attn2, attn3
from attn2 import ATT_LDS, CH

MX = os.environ.get('MX', '')
SP = os.environ.get('SP', 'p1,p2,p3,p4').split(',')
QSCALE = math.log2(math.e) / math.sqrt(20.0)
GC0 = -2.0 * math.sqrt(2.0 / math.pi) * math.log2(math.e)
GC1 = GC0 * 0.044715

L_A = ATT_LDS
L_Z = L_A + 3 * 16384
L_W = L_A - 4096
L_CS = L_Z + 6 * 8192
L_F = L_CS + 2048
F_G, F_OC, F_XC, F_GO, F_XR, F_AUX = 32, 48, 52, 56, 60, 64
MEGA_LDS = L_F + 128
F_QS, F_STS, F_KVS, F_CS = 2 * CH, 2 * CH + 12288, 2 * CH + 12800, 2 * CH + 18176
F_B, F_S = ATT_LDS // 3, 20480
NAME = "parallel_sum__grouped_kv_mqa__mixer_gmlp__prompt_kernel"

def gen_mega(noatt=False, patz='33333333', pats='33033303', lprio=0, seam=True, oprio=0, pf='gis', ntx='', ntw='', repw='g', cpf=True, pslp=1, deep=False, tb=False, wfat=6, rprio=3, yph=3, thr=None, bal=0, ldot=True, xst=6, frot=0, orot=False, tsplit=32, prot=None, sent=False, oc='', lq=4, lk=5, xstk=8, bal33=True, noex=True, spe=True, two=True, ev=(22, 23, 24, 25, 28, 29), zpf=0, kvq=True, so=False):
    k = Kern(NAME, 256, 768, MEGA_LDS, 168, sgprs=100)
    P_X, P_WQ, P_WK, P_WV, P_WO = 44, 46, 48, 50, 52
    P_WIN, P_WSP, P_BSP, P_WOUT, P_OUT, P_DBG, P_WS = 56, 58, 60, 62, 64, 66, 68
    sWid, sTok, sBlk, sTB, sFG, sBud = 3, 4, 5, 6, 7, 70
    sT64, sHG = 98, 99
    sNo = 96
    sFl = 72
    vL = 1
    end = k.lab("end"); gem = k.lab("gem")
    k(f"s_cmp_ge_u32 s2, 256\ns_cbranch_scc1 {end}")
    k.stamp(0); k.stamp_rt(5)
    k(f"s_load_dwordx8 s[{P_X}:{P_X+7}], s[0:1], {KA_X}\ns_load_dwordx2 s[{P_WO}:{P_WO+1}], s[0:1], {KA_WO}")
    k(f"s_load_dwordx8 s[{P_WIN}:{P_WIN+7}], s[0:1], {KA_WIN}\ns_load_dwordx4 s[{P_OUT}:{P_OUT+3}], s[0:1], {KA_OUT}\ns_load_dwordx2 s[{P_WS}:{P_WS+1}], s[0:1], {KA_WS}")
    k(f"""v_lshrrev_b32 v2, 6, v0
    v_and_b32 v1, 63, v0
    v_readfirstlane_b32 s{sWid}, v2
    v_and_b32 v2, 31, v0
    v_lshlrev_b32 v2, 2, v2
    v_add_u32 v2, {L_F}, v2
    v_mov_b32 v3, 0
    ds_write_b32 v2, v3
    v_and_b32 v2, 3, v0
    v_lshlrev_b32 v2, 8, v2
    v_add_u32 v2, {L_CS}, v2
    ds_write_b32 v2, v3
    s_and_b32 s{sTB}, s2, 7
    s_lshl_b32 s{sBlk}, s{sTB}, 5
    s_lshr_b32 s{sTok}, s2, 3
    s_add_u32 s{sBlk}, s{sBlk}, s{sTok}
    s_lshl_b32 s{sTok}, s{sBlk}, 3
    s_add_u32 s{sTok}, s{sTok}, s{sWid}
    s_lshl_b32 s{sTB}, s{sTB}, 1
    s_bfe_u32 s{sFG}, s2, 0x10003
    s_add_u32 s{sTB}, s{sTB}, s{sFG}
    s_lshr_b32 s{sFG}, s2, 4
    s_and_b32 s{sT64}, s2, 7
    s_lshl_b32 s{sT64}, s{sT64}, 2
    s_bfe_u32 s{sHG}, s2, 0x20003
    s_add_u32 s{sT64}, s{sT64}, s{sHG}
    s_lshr_b32 s{sHG}, s2, 5
    s_mov_b32 s{sBud}, 400000
    s_waitcnt lgkmcnt(0)""")
    k.srd(sFl, P_WS, SZ_FLAG, WS_FLAG)
    k(f"s_load_dwordx2 s[{sNo}:{sNo+1}], s[{sFl}:{sFl+1}], {hx(FL_E)}")
    k(f"s_cmp_ge_u32 s{sWid}, 8\ns_cbranch_scc1 {gem}")

    def again(l):
        k(f"s_sub_u32 s{sBud}, s{sBud}, 1\ns_cbranch_scc0 {l}")
    def lds_wait(addr, va, vd, slp=1):
        val = {F_XR: 8, F_GO: 4, F_OC: 10, F_XC: 1}[addr - L_F]
        l = k.lab("lw"); d = k.lab("lwd")
        k(f"v_mov_b32 v{va}, {addr}")
        k.label(l)
        k(f"ds_read_b32 v{vd}, v{va}\ns_waitcnt lgkmcnt(0)\nv_cmp_gt_u32 vcc, {val}, v{vd}\ns_cbranch_vccz {d}\ns_sleep {slp}")
        again(l)
        k.label(d)
    def lds_set(addr, va, vd):
        k(f"v_mov_b32 v{va}, {addr}\nv_mov_b32 v{vd}, 1\nds_write_b32 v{va}, v{vd}")
    def gcheck(vd):
        k(f"v_cmp_ne_u64 vcc, s[{sNo}:{sNo+1}], {v(vd,2)}")
    def gload(soff, voff, vd):
        return f"buffer_load_dwordx2 {v(vd,2)}, v{voff}, s[{sFl}:{sFl+3}], {soff} offen sc1"
    def gpoll(soff, voff, vd, mask, slp):
        l = k.lab("pl"); d = k.lab("pd")
        if mask is not None: k(f"s_mov_b64 exec, {hx(mask)}")
        k.label(l)
        k(gload(soff, voff, vd))
        k("s_waitcnt vmcnt(0)")
        gcheck(vd)
        k(f"s_cbranch_vccz {d}\ns_sleep {slp}")
        again(l)
        k.label(d)
        if mask is not None: k("s_mov_b64 exec, -1")
    def gset(soff, va, vd):
        k(f"""v_mov_b32 v{vd}, s{sNo}
        v_mov_b32 v{vd+1}, s{sNo+1}
        v_lshlrev_b32 v{va}, 3, v{vL}
        s_mov_b64 exec, 0xffff
        buffer_store_dwordx2 {v(vd,2)}, v{va}, s[{sFl}:{sFl+3}], {soff} offen sc1
        s_mov_b64 exec, -1""")
    def spoll(offs, s0, slp=1):
        l = k.lab("sp"); r = k.lab("spr"); d = k.lab("spd")
        k.label(l)
        for i, (so, im) in enumerate(offs):
            k(f"s_load_dwordx2 s[{s0+2*i}:{s0+2*i+1}], s[{sFl}:{sFl+1}], s{so} offset:{hx(im)} glc")
        k("s_waitcnt lgkmcnt(0)")
        for i in range(len(offs)):
            k(f"s_cmp_eq_u64 s[{s0+2*i}:{s0+2*i+1}], s[{sNo}:{sNo+1}]")
            k(f"s_cbranch_scc0 {r}" if i + 1 < len(offs) else f"s_cbranch_scc1 {d}")
        k.label(r)
        k(f"s_sleep {slp}")
        again(l)
        k.label(d)
    def nonce():
        k(f"s_waitcnt lgkmcnt(0)\ns_add_u32 s{sNo}, s{sNo}, 1")

    sX, sO, sT, sMask = 8, 12, 16, 24
    raw, f, st, vA = 4, 12, 28, 30
    nz = k.lab("nz")
    skipA = k.lab("skipA"); skipG = k.lab("skipG")
    if "skip" in MX and "gonly" in MX:
        k("s_barrier"); k.endpgm(P_WS, 4)
    if "skip" in MX: k(f"s_barrier\ns_mov_b32 s27, 1\ns_branch {skipA}")
    k.srd(sX, P_X, SZ_Q)
    k(f"s_mul_i32 s{sT}, s{sTok}, 1280\nv_lshlrev_b32 v{vA}, 4, v{vL}\ns_mov_b32 s{sMask}, 0xffff0000")
    for i in range(4, 8):
        k(f"v_mov_b32 v{raw+i}, 0")
    k(f"buffer_load_dwordx4 {v(raw,4)}, v{vA}, s[{sX}:{sX+3}], s{sT} offen {ntx}")
    k("s_mov_b64 exec, 0xffff")
    k(f"buffer_load_dwordx4 {v(raw+4,4)}, v{vA}, s[{sX}:{sX+3}], s{sT} offen offset:1024 {ntx}")
    k("s_mov_b64 exec, -1")
    def touch(idx, nq):
        k(f"s_mul_i32 s{sT+2}, s{idx}, {nq*128}\ns_lshl_b32 s{sT+3}, s{idx}, 7\ns_mov_b64 exec, {hx((1 << nq) - 1)}")
        k(f"buffer_load_dword v{vA+2}, v{vA+1}, s[28:31], s{sT+2} offen\ns_mov_b64 exec, 1")
        k(f"buffer_load_dword v{vA+2}, v{vA+1}, s[32:35], s{sT+3} offen")
        k(f"buffer_load_dword v{vA+2}, v{vA+1}, s[36:39], s{sT+3} offen\ns_mov_b64 exec, -1")
    k(f"v_lshlrev_b32 v{vA+1}, 7, v{vL}\ns_and_b32 s{sT+1}, s{sTok}, 255")
    k.srd(28, P_WQ, 640*1280); k.srd(32, P_WK, 25600); k.srd(36, P_WV, 25600)
    if 'g' in pf and kvq:
        k(f"s_lshl_b32 s{sT+1}, s2, 3\ns_add_u32 s{sT+1}, s{sT+1}, s{sWid}")
        touch(sT + 1, 4)
    elif 'g' in pf: touch(sTok, 4)
    elif 'x' in pf: touch(sT + 1, 25)
    k.srd(sO, P_WS, SZ_XN, WS_XN)
    nonce()
    assert not ('g' in pf and 'x' in pf) and 'b' not in pf
    sXt = 20
    def xn_compute(kvg=False):
        k("s_waitcnt vmcnt(3)" if ('x' in pf or 'g' in pf) else "s_waitcnt vmcnt(0)")
        k(f"v_mov_b32 v{st}, 0\nv_mov_b32 v{st+1}, 0\nv_mov_b32 v{vA+3}, 0x3f803f80")
        for i in range(8):
            k(f"v_dot2c_f32_bf16 v{st}, v{vA+3}, v{raw+i}\nv_dot2c_f32_bf16 v{st+1}, v{raw+i}, v{raw+i}")
        un = []
        for i in range(8):
            un += [f"v_lshlrev_b32 v{f+2*i}, 16, v{raw+i}", f"v_and_b32 v{f+2*i+1}, s{sMask}, v{raw+i}"]
        for x in un[:4]: k(x)
        j = 4
        for m in ("row_shr:1", "row_shr:2", "row_shr:4", "row_shr:8"):
            for i in range(2):
                k(f"v_add_f32_dpp v{st+i}, v{st+i}, v{st+i} {m} row_mask:0xf bank_mask:0xf bound_ctrl:0")
            k(un[j]); k(un[j+1]); j += 2
        for m in ("row_bcast:15 row_mask:0xa", "row_bcast:31 row_mask:0xc"):
            for i in range(2):
                k(f"v_add_f32_dpp v{st+i}, v{st+i}, v{st+i} {m} bank_mask:0xf")
            k(un[j]); k(un[j+1]); j += 2
        k(f"""v_mul_f32 v{st}, {fl(1.0/640)}, v{st}
        v_mul_f32 v{st+1}, {fl(1.0/640)}, v{st+1}
        v_fma_f32 v{st+1}, -v{st}, v{st}, v{st+1}
        v_max_f32 v{st+1}, 0, v{st+1}
        v_add_f32 v{st+1}, {fl(1e-5)}, v{st+1}
        v_rsq_f32 v{st+1}, v{st+1}
        s_mul_i32 s{sXt+2}, s{sTok}, {XN_ST}
        v_mul_f32 v{st}, v{st}, v{st+1}
        s_nop 0
        v_readlane_b32 s{sXt}, v{st+1}, 63
        v_readlane_b32 s{sXt+1}, v{st}, 63
        s_nop 1
        v_mov_b32 v{st}, s{sXt+1}""")
        for i in range(0, 16, 2):
            k(f"v_pk_fma_f32 {v(f+i,2)}, {v(f+i,2)}, s[{sXt}:{sXt+1}], {v(st,2)} op_sel_hi:[1,0,0] neg_lo:[0,0,1] neg_hi:[0,0,1]")
        for i in range(8):
            k(f"v_cvt_pk_bf16_f32 v{raw+i}, v{f+2*i}, v{f+2*i+1}")
        k(f"buffer_store_dwordx4 {v(raw,4)}, v{vA}, s[{sO}:{sO+3}], s{sXt+2} offen sc1")
        k("s_mov_b64 exec, 0xffff")
        k(f"buffer_store_dwordx4 {v(raw+4,4)}, v{vA}, s[{sO}:{sO+3}], s{sXt+2} offen offset:1024 sc1")
        if 'i' in pf and kvq and not kvg:
            k.srd(sO, P_WIN, 640*3456)
            k(f"s_lshl_b32 s{sXt}, s2, 3\ns_add_u32 s{sXt}, s{sXt}, s{sWid}\ns_mul_i32 s{sXt}, s{sXt}, {10*128}\ns_mov_b64 exec, 0x3ff")
            k(f"buffer_load_dword v{vA+2}, v{vA+1}, s[{sO}:{sO+3}], s{sXt} offen")
        elif 'i' in pf and not kvq:
            k.srd(sO, P_WIN, 640*3456)
            k(f"s_mul_i32 s{sXt}, s{sTok}, {9*128}\ns_mov_b64 exec, 0x1ff")
            k(f"buffer_load_dword v{vA+2}, v{vA+1}, s[{sO}:{sO+3}], s{sXt} offen")
        k("s_mov_b64 exec, -1")
    a = Alloc(36)
    fa = a(16, 4); fc = a(4, 4); fsx = a(4, 4)
    fX = [a(16, 4), a(16, 4)]; fW = [a(16, 4), a(16, 4)]
    fXa = a(4, 1); fWa = a()
    fN, fH = a(), a()
    fO = a(2, 2); fT = a(12, 4); fK = a(2, 2); fKa = a()
    assert a.n <= 168, a.n
    sI, sD, sKd, sB0 = 25, 26, 27, 28
    QS, STS, KVS = F_QS, F_STS, F_KVS
    k(f"""v_and_b32 v{fN}, 31, v{vL}
    v_lshrrev_b32 v{fH}, 5, v{vL}
    v_mov_b32 v{fO}, 0x3f803f80
    v_mov_b32 v{fO+1}, 0x3f803f80
    s_mov_b32 s{sKd}, 0
    s_lshl_b32 s{sT}, s{sWid}, 7
    v_lshl_add_u32 v{fKa}, v{vL}, 10, s{sT}""")
    def f_addr(rowb, woff):
        k(f"""v_bfe_u32 v{fT}, v{fN}, 1, 3
        v_xor_b32 v{fT}, v{fT}, v{fH}
        s_and_b32 s{sT}, s{sWid}, 1
        s_lshl_b32 s{sT}, s{sT}, 12
        s_add_u32 s{sT}, s{sT}, {F_B}
        v_lshl_add_u32 v{fT+1}, v{fN}, 7, s{sT}""")
        for q in range(4):
            k(f"v_xor_b32 v{fT+2}, {2*q}, v{fT}\nv_lshl_add_u32 v{fXa+q}, v{fT+2}, 4, v{fT+1}")
        k(f"""v_bfe_u32 v{fT}, v{vL}, 2, 2
        v_lshl_add_u32 v{fT}, v{fH}, 3, v{fT}
        v_mul_u32_u24 v{fT}, {rowb}, v{fT}
        v_bfe_u32 v{fT+1}, v{vL}, 4, 1
        v_lshl_add_u32 v{fT}, v{fT+1}, 5, v{fT}
        v_and_b32 v{fT+1}, 3, v{vL}
        v_lshl_add_u32 v{fT}, v{fT+1}, 3, v{fT}
        s_add_u32 s{sT}, {woff}, {F_B+8192}
        v_add_u32 v{fWa}, s{sT}, v{fT}""")
        for r in list(range(fa, fa + 16)) + list(range(fc, fc + 4)) + list(range(fsx, fsx + 4)):
            k(f"v_mov_b32 v{r}, 0")
    def f_pass(kind, rowb, first):
        uo = (0, 64, 128) if rowb == 192 else (0, 4096)
        xs_ = xst if rowb == 192 else xstk
        cf = lambda b: fX[0] + 32 * b
        def rd(b):
            r = []
            if kind == 'i': return r
            if kind == 'x':
                for u, o in enumerate(uo):
                    for q in range(2):
                        d = cf(b) + 8*u + 4*q
                        r.append(f"ds_read_b64_tr_b16 {v(d,2)}, v{fWa} offset:{o+16*rowb*q}")
                        r.append(f"ds_read_b64_tr_b16 {v(d+2,2)}, v{fWa} offset:{o+16*rowb*q+4*rowb}")
                return r
            for q in range(4):
                r.append(f"ds_read_b128 {v(fX[b]+4*q,4)}, v{fXa+q}")
                r.append(f"ds_read_b64_tr_b16 {v(fW[b]+4*q,2)}, v{fWa} offset:{16*rowb*q}")
                r.append(f"ds_read_b64_tr_b16 {v(fW[b]+4*q+2,2)}, v{fWa} offset:{16*rowb*q+4*rowb}")
            return r
        def adv():
            if kind == 'i': return
            k(f"s_mov_b32 s{sD}, {F_S}\ns_cmp_eq_u32 s{sI}, 5\ns_cmov_b32 s{sD}, {hx(-5*F_S)}")
            if kind != 'x':
                for q in range(4): k(f"v_add_u32 v{fXa+q}, s{sD}, v{fXa+q}")
            k(f"v_add_u32 v{fWa}, s{sD}, v{fWa}")
        def work(b, r):
            w = []
            if kind in 'ns':
                for q in range(4):
                    X, W = fX[b] + 4*q, fW[b] + 4*q
                    A_, B_ = (X, W) if kind == 's' else (W, X)
                    w.append(f"v_mfma_f32_32x32x16_bf16 {v(fa,16)}, {v(A_,4)}, {v(B_,4)}, {v(fa,16)}")
                for x in interleave(w[:3], r) + w[3:]: k(x)
            elif kind == 'x':
                for x in r: k(x)
                for j in range(4):
                    for u in range(len(uo)):
                        k(f"v_mfma_f32_4x4x4_16b_bf16 {v(fa+4*u,4)}, {v(fO,2)}, {v(cf(b)+8*u+2*j,2)}, {v(fa+4*u,4)}")
                    if len(uo) == 2: k("s_nop 0")
        loop = k.lab("fl"); nb = k.lab("fnb"); e1 = k.lab("fe1"); e2 = k.lab("fe2"); e3 = k.lab("fe3")
        n = len(rd(0))
        k(f"s_mov_b32 s{sI}, 0\ns_barrier")
        for x in rd(0): k(x)
        k.label(loop)
        adv()
        if first:
            k(f"s_cmp_lg_u32 s{sI}, {xs_}\ns_cbranch_scc1 {e1}\ns_waitcnt vmcnt({1 if ('i' in pf and not (kvq and rowb == 40)) else 0})")
            k.label(e1)
        k("s_waitcnt lgkmcnt(0)\ns_barrier")
        work(0, rd(1))
        if first and kind == 'x':
            k(f"s_cmp_lg_u32 s{sI}, {xs_}\ns_cbranch_scc1 {e2}\ns_cmp_lg_u32 s{sWid}, 7\ns_cbranch_scc1 {e2}\ns_lshl_b32 s{sT}, s{sBlk}, 7")
            gset(f"s{sT}", fT + 4, fT + 6)
            k.label(e2)
        k(f"s_add_u32 s{sI}, s{sI}, 1")
        adv()
        k(f"s_cmp_eq_u32 s{sI}, 9\ns_waitcnt lgkmcnt(0)\ns_cbranch_scc1 {nb}\ns_barrier")
        k.label(nb)
        work(1, rd(0))
        if rowb == 192:
            k(f"s_cmp_lg_u32 s{sI}, 7\ns_cbranch_scc1 {e3}\ns_mov_b32 s{sT}, {FL_Q}\ns_mov_b64 exec, 0xff")
            k(gload(f"s{sT}", fKa, fK))
            k("s_mov_b64 exec, -1")
            k.label(e3)
        k(f"s_add_u32 s{sI}, s{sI}, 1\ns_cmp_lt_u32 s{sI}, 10\ns_cbranch_scc1 {loop}")
        k("s_waitcnt lgkmcnt(0)")
    def kv_try():
        e = k.lab("kt")
        k("s_waitcnt vmcnt(0)\ns_mov_b64 exec, 0xff")
        gcheck(fK)
        k(f"s_mov_b64 exec, -1\ns_cbranch_vccnz {e}\ns_mov_b32 s{sKd}, 1")
        kv_first()
        k.label(e)
    def kv_first():
        k.srd(sB0, P_WS, SZ_KVG, WS_KV)
        k(f"""s_mul_i32 s{sT}, s{sWid}, {KV_G}
        s_mul_i32 m0, s{sWid}, {KV_TILE}
        v_lshlrev_b32 v{fT+8}, 4, v{vL}
        buffer_load_dwordx4 v{fT+8}, s[{sB0}:{sB0+3}], s{sT} offen sc1 lds
        buffer_load_dwordx4 v{fT+8}, s[{sB0}:{sB0+3}], s{sT} offen offset:1024 sc1 lds
        buffer_load_dwordx4 v{fT+8}, s[{sB0}:{sB0+3}], s{sT} offen offset:{KV_TILE-1024} sc1 lds""")
    def f_stats(nu):
        k(f"""s_and_b32 s{sT}, s{sWid}, 1
        s_lshl_b32 s{sT}, s{sT}, 2
        s_add_u32 s{sT}, s{sT}, {F_CS}
        v_lshlrev_b32 v{fT}, 4, v{fN}
        v_lshl_add_u32 v{fT}, v{fH}, 3, v{fT}
        v_add_u32 v{fT}, s{sT}, v{fT}""")
        for u in range(nu): k(f"ds_write_b32 v{fT}, v{fa+4*u} offset:{512*u}")
        k("s_waitcnt lgkmcnt(0)")
    def f_fold(swap):
        k(f"""s_lshr_b32 s{sT}, s{sWid}, 1
        s_lshl_b32 s{sT}, s{sT}, 9
        s_add_u32 s{sT}, s{sT}, {F_CS}
        v_lshlrev_b32 v{fT}, 4, v{fN}
        v_lshl_add_u32 v{fT}, v{fH}, 3, v{fT}
        v_add_u32 v{fT}, s{sT}, v{fT}
        ds_read_b64 {v(fc,2)}, v{fT}
        s_and_b32 s{sT}, s{sWid}, 1
        s_lshl_b32 s{sT}, s{sT}, 7
        s_add_u32 s{sT}, s{sT}, {STS}
        v_lshl_add_u32 v{fT}, v{fN}, 2, s{sT}
        ds_read_b32 v{fT+4}, v{fT}
        ds_read_b32 v{fT+5}, v{fT} offset:256
        s_waitcnt lgkmcnt(2)
        v_add_f32 v{fc+2}, v{fc}, v{fc+1}
        v_and_b32 v{fc+3}, s{sMask}, v{fc+2}
        v_sub_f32 v{fc+2}, v{fc+2}, v{fc+3}
        v_cvt_pk_bf16_f32 v{fc}, v{fc+3}, v{fc+3}
        v_cvt_pk_bf16_f32 v{fc+1}, v{fc+2}, 0
        s_waitcnt lgkmcnt(0)
        v_and_b32 v{fT+2}, s{sMask}, v{fT+4}
        v_sub_f32 v{fT+3}, v{fT+4}, v{fT+2}
        v_cvt_pk_bf16_f32 v{fT+6}, -v{fT+2}, -v{fT+3}
        v_cvt_pk_bf16_f32 v{fT+7}, -v{fT+2}, 0
        s_nop 1""")
        A_, B_ = (fT + 6, fc) if swap else (fc, fT + 6)
        k(f"v_mfma_f32_32x32x8_bf16 {v(fa,16)}, {v(A_,2)}, {v(B_,2)}, {v(fa,16)}")
    qp = k.lab("qp"); kx = k.lab("kx"); ki = k.lab("ki"); kvv = k.lab("kvv"); kj = k.lab("kj"); q1 = k.lab("q1"); q1x = k.lab("q1x"); qe = k.lab("qe"); qj = k.lab("qj"); q2x = k.lab("q2x")
    pk = fX[0]
    k(f"s_cmp_lg_u32 s{sHG}, 7\ns_cbranch_scc1 {q1}")
    k(f"""s_lshr_b32 s{sT+1}, s{sWid}, 1
    s_lshl_b32 s{sT+1}, s{sT+1}, 12
    s_and_b32 s{sT+3}, s{sWid}, 1
    s_mul_i32 s{sT+2}, s{sT+3}, {32*40}
    s_cmp_ge_u32 s{sWid}, 6
    s_cselect_b32 s{sT+1}, s{sT+2}, s{sT+1}
    s_mul_i32 s{sT+3}, s{sT+3}, {KV_G}
    s_add_u32 s{sT+3}, s{sT+3}, {KVS}""")
    f_addr(40, f"s{sT+1}")
    xn_compute(True)
    k(f"s_cmp_ge_u32 s{sWid}, 6\ns_cbranch_scc1 {kx}\ns_cmp_ge_u32 s{sWid}, 4\ns_cbranch_scc1 {ki}\ns_cmp_ge_u32 s{sWid}, 2\ns_cbranch_scc1 {kvv}")
    f_pass('n', 40, True)
    k("s_barrier")
    f_fold(False)
    k(f"v_lshl_add_u32 v{fT}, v{vL}, 4, s{sT+3}\nv_lshl_add_u32 v{fT+1}, v{fN}, 2, s{sT+3}\ns_nop 7\ns_nop 1")
    for i in range(12): k(f"v_mul_f32 v{fa+i}, v{fT+5}, v{fa+i}")
    for i in range(6): k(f"v_cvt_pk_bf16_f32 v{pk+i}, v{fa+2*i}, v{fa+2*i+1}")
    k(f"""v_permlane32_swap_b32 v{pk}, v{pk+2}
    v_permlane32_swap_b32 v{pk+1}, v{pk+3}
    ds_write_b128 v{fT}, {v(pk,4)} offset:{KV_KA}
    s_mov_b32 exec_hi, 0
    ds_write_b32 v{fT+1}, v{pk+4} offset:{KV_KB}
    ds_write_b32 v{fT+1}, v{pk+5} offset:{KV_KB+128}
    s_mov_b64 exec, -1
    s_branch {kj}""")
    k.label(kvv)
    f_pass('s', 40, True)
    k("s_barrier")
    f_fold(True)
    k(f"v_lshl_add_u32 v{fT}, v{fH}, 4, s{sT}")
    for j in range(4): k(f"ds_read_b128 {v(fW[0]+4*j,4)}, v{fT} offset:{256+32*j}")
    k(f"""v_mul_u32_u24 v{fT+1}, 336, v{fH}
    v_lshl_add_u32 v{fT+1}, v{fN}, 4, v{fT+1}
    v_add_u32 v{fT+1}, s{sT+3}, v{fT+1}
    v_cmp_eq_u32 vcc, 20, v{fN}
    s_nop 3
    s_waitcnt lgkmcnt(0)""")
    for i in range(16): k(f"v_mul_f32 v{fa+i}, v{fW[0]+i}, v{fa+i}")
    for i in range(8): k(f"v_cvt_pk_bf16_f32 v{pk+i}, v{fa+2*i}, v{fa+2*i+1}")
    for i in range(8): k(f"v_cndmask_b32 v{pk+i}, v{pk+i}, v{fO}, vcc")
    k(f"""s_mov_b32 exec_lo, 0x1fffff
    s_mov_b32 exec_hi, 0x1fffff
    ds_write_b128 v{fT+1}, {v(pk,4)} offset:{KV_V}
    ds_write_b128 v{fT+1}, {v(pk+4,4)} offset:{KV_V+672}
    s_mov_b64 exec, -1
    s_branch {kj}""")
    k.label(ki)
    f_pass('i', 40, True)
    k(f"s_barrier\ns_branch {kj}")
    k.label(kx)
    f_pass('x', 40, True)
    f_stats(2)
    k("s_barrier\ns_barrier")
    k.srd(sB0, P_WS, SZ_KVG, WS_KV)
    k(f"v_lshlrev_b32 v{fT+1}, 4, v{vL}\nv_add_u32 v{fT}, s{sT+3}, v{fT+1}")
    for i in range(3): k(f"ds_read_b128 {v(pk+4*i,4)}, v{fT} offset:{1024*i}")
    k(f"""s_lshl_b32 s{sT}, s{sT64}, 1
    s_and_b32 s{sT+1}, s{sWid}, 1
    s_add_u32 s{sT}, s{sT}, s{sT+1}
    s_mul_i32 s{sT+1}, s{sT}, {KV_G}
    s_waitcnt lgkmcnt(0)
    buffer_store_dwordx4 {v(pk,4)}, v{fT+1}, s[{sB0}:{sB0+3}], s{sT+1} offen sc1
    buffer_store_dwordx4 {v(pk+4,4)}, v{fT+1}, s[{sB0}:{sB0+3}], s{sT+1} offen offset:1024 sc1
    s_mov_b32 exec_hi, 0xff
    buffer_store_dwordx4 {v(pk+8,4)}, v{fT+1}, s[{sB0}:{sB0+3}], s{sT+1} offen offset:2048 sc1
    s_mov_b64 exec, -1
    s_lshl_b32 s{sT}, s{sT}, 7
    s_add_u32 s{sT}, s{sT}, {FL_Q}
    s_waitcnt vmcnt(0)""")
    gset(f"s{sT}", fT + 4, fT + 6)
    k("s_barrier")
    k(f"s_and_b32 s{sT+1}, s{sWid}, 1\ns_mul_i32 s{sT+1}, s{sT+1}, {32*192}")
    f_addr(192, f"s{sT+1}")
    f_pass('x', 192, False)
    k(f"s_branch {q2x}")
    k.label(kj)
    k("s_waitcnt lgkmcnt(0)\ns_barrier\ns_barrier")
    k(f"s_lshr_b32 s{sT+1}, s{sWid}, 1\ns_lshl_b32 s{sT+1}, s{sT+1}, 6")
    f_addr(192, f"s{sT+1}")
    f_pass('n', 192, False)
    k(f"s_branch {qe}")
    k.label(q1)
    k(f"""s_lshr_b32 s{sT+1}, s{sWid}, 1
    s_lshl_b32 s{sT+1}, s{sT+1}, 6
    s_and_b32 s{sT+2}, s{sWid}, 1
    s_mul_i32 s{sT+2}, s{sT+2}, {32*192}
    s_cmp_ge_u32 s{sWid}, 6
    s_cselect_b32 s{sT+1}, s{sT+2}, s{sT+1}""")
    f_addr(192, f"s{sT+1}")
    xn_compute()
    k(f"s_cmp_ge_u32 s{sWid}, 6\ns_cbranch_scc1 {q1x}")
    f_pass('n', 192, True)
    k.label(qe)
    k("s_barrier")
    f_fold(False)
    kv_try()
    k(f"""v_mul_f32 v{fT+5}, {fl(QSCALE)}, v{fT+5}
    s_and_b32 s{sT}, s{sWid}, 1
    s_mul_i32 s{sT}, s{sT}, {32*192}
    s_lshr_b32 s{sT+1}, s{sWid}, 1
    s_lshl_b32 s{sT+1}, s{sT+1}, 6
    s_add_u32 s{sT}, s{sT}, s{sT+1}
    s_add_u32 s{sT}, s{sT}, {QS}
    v_mul_u32_u24 v{fT}, 192, v{fN}
    v_lshl_add_u32 v{fT}, v{fH}, 3, v{fT}
    v_add_u32 v{fT}, s{sT}, v{fT}
    s_nop 1""")
    for i in range(16): k(f"v_mul_f32 v{fa+i}, v{fT+5}, v{fa+i}")
    for i in range(8): k(f"v_cvt_pk_bf16_f32 v{pk+i}, v{fa+2*i}, v{fa+2*i+1}")
    for j in range(4): k(f"ds_write_b64 v{fT}, {v(pk+2*j,2)} offset:{16*j}")
    k(f"s_waitcnt lgkmcnt(0)\ns_branch {qj}")
    k.label(q1x)
    f_pass('x', 192, True)
    k.label(q2x)
    f_stats(3)
    k("s_barrier")
    kv_try()
    k.label(qj)
    k.label(skipA)
    k(f"s_mov_b32 s40, s{sKd}\nv_mov_b32 v104, v{fKa}")
    def att_wait(step):
        t = 104
        d = k.lab("kvd")
        k(f"s_cmp_lg_u32 s40, 0\ns_cbranch_scc1 {d}\ns_mov_b32 s41, {FL_Q}")
        gpoll("s41", t, t + 2, 0xff, pslp)
        step()
        k.label(d)
    def att_tail(step):
        t = 104
        def pieces(p0, p1):
            for p in range(p0, p1):
                if p % 4 == 0:
                    k(f"s_mov_b32 m0, {1024*p}")
                    k("s_add_u32 s40, s40, 4096" if p else "s_nop 0")
                k(f"buffer_load_dwordx4 v{t}, s[28:31], s40 offen offset:{1024*(p%4)} sc1 lds")
        if step == 0:
            k(f"v_and_b32 v{t}, 31, v{vL}\nv_lshlrev_b32 v{t}, 7, v{t}\ns_mov_b32 s40, {FL_W}")
            k(gload("s40", t, t + 2))
            if so: lds_wait(L_F + F_XC, t + 4, t + 5, 2)
        elif "skip" in MX:
            pass
        elif step == 1:
            ok = k.lab("wfok")
            k("s_waitcnt vmcnt(12)")
            gcheck(t + 2)
            k(f"s_cbranch_vccz {ok}")
            gpoll("s40", t, t + 2, None, 4)
            k.label(ok)
            k.srd(28, P_WS, SZ_WF, WS_WF)
            k(f"s_lshr_b32 s40, s2, 5\ns_mul_i32 s40, s40, {47*5120}\nv_lshlrev_b32 v{t}, 4, v{vL}")
            pieces(0, tsplit)
            if not so: k(f"s_waitcnt vmcnt({tsplit})")
        else:
            pieces(tsplit, 60)
            k(f"v_mov_b32 v{t}, {L_F+F_OC}\nv_mov_b32 v{t+1}, 10\ns_waitcnt vmcnt(0)\nds_write_b32 v{t}, v{t+1}")
    n = (attn3 if two else attn2).emit_attn(k, sT64, sHG, sWid, vL, P_WS, 8, 4, 0, L_F, mega=att_wait, budget=sBud, gset=(None if so else gset), tb=tb, tail=att_tail, yph=yph, bal=bal)
    assert n <= 104, n

    k.label(gem)
    def sp(name):
        if name in SP: k.stamp(1 + SP.index(name))
    sA, sB, sO = 8, 12, 16
    sW, sCnt, sSoA, sBaseA, sSoB, sStepB, sM0A, sM0B, sMask, sNeed, sI = range(20, 31)
    sT = 32
    sTb, sM0F, sSoF = 40, 31, 71
    a = Alloc(2)
    vFw, vFa, vFl, vXw, vXa = a(), a(), a(), a(), a()
    vOne = a()
    acc = [a(16, 4), a(16, 4)]
    fs = [[[a(4, 4) for j in range(3)] for q in range(2)] for b in range(2)]
    z1 = a(16, 4); z2 = a(16, 4)
    vD = a(4, 1); vDb = a(2, 1)
    vWa = a(4, 1); vZa = a(2, 1)
    vN, vH, vBias, vTok, vPg, vZf = a(), a(), a(), a(), a(), a()
    vOnes = a(2, 2)
    vT = a(16, 4)
    assert a.n <= 168, a.n
    tmp = fs[1][0][0]
    sp('ka')
    k("s_setprio 3")
    k(f"""s_sub_u32 s{sW}, s{sWid}, 8
    v_lshrrev_b32 v{vT}, 3, v{vL}
    v_and_b32 v{vT+1}, 7, v{vL}
    s_lshl_b32 s{sT}, s{sTB}, 2
    s_add_u32 s{sT}, s{sT}, s{sW}
    s_mul_i32 s{sBaseA}, s{sT}, {32*1280}
    s_lshl_b32 s{sM0A}, s{sW}, 12
    s_add_u32 s{sM0A}, s{sM0A}, {L_A}
    s_lshl_b32 s{sM0B}, s{sW}, 11
    s_add_u32 s{sM0B}, s{sM0B}, {L_Z}""")
    def a_addr(stride):
        k(f"v_lshrrev_b32 v{vT}, 3, v{vL}\nv_and_b32 v{vT+1}, 7, v{vL}")
        for p in range(4):
            k(f"""v_add_u32 v{vT+2}, {8*p}, v{vT}
            v_bfe_u32 v{vT+3}, v{vT+2}, 1, 3
            v_xor_b32 v{vT+3}, v{vT+3}, v{vT+1}
            v_mul_u32_u24 v{vT+2}, {stride}, v{vT+2}
            v_lshl_add_u32 v{vD+p}, v{vT+3}, 4, v{vT+2}""")
            if p:
                k(f"v_subrev_u32 v{vD+p}, {1024*p}, v{vD+p}")
    def b_addr(stride):
        k(f"""v_lshrrev_b32 v{vT}, 3, v{vL}
        v_and_b32 v{vT+1}, 7, v{vL}
        v_bfe_u32 v{vT+2}, v{vL}, 4, 1
        v_lshlrev_b32 v{vT+2}, 2, v{vT+2}
        v_xor_b32 v{vT+1}, v{vT+1}, v{vT+2}
        v_mul_u32_u24 v{vT}, {stride}, v{vT}
        v_lshl_add_u32 v{vDb}, v{vT+1}, 4, v{vT}
        v_add_u32 v{vDb+1}, {8*stride-1024}, v{vDb}""")
    def setup_rest():
        k(f"""s_lshl_b32 s{sT+1}, s{sW}, 2
        s_add_u32 s{sT+2}, s{sT+1}, {L_F+F_G}
        v_mov_b32 v{vFw}, s{sT+2}
        s_add_u32 s{sT+2}, s{sT+1}, {L_F+F_AUX}
        v_mov_b32 v{vXw}, s{sT+2}
        v_and_b32 v{vFa}, 3, v{vL}
        v_lshlrev_b32 v{vFa}, 2, v{vFa}
        v_add_u32 v{vXa}, {L_F+F_AUX}, v{vFa}
        v_lshlrev_b32 v{vFa}, 6, v{vFa}
        v_add_u32 v{vFa}, {L_CS}, v{vFa}
        v_mov_b32 v{vPg}, 0
        s_lshl_b32 s{sM0F}, s{sW}, 8
        s_lshl_b32 s{sSoF}, s2, 10
        s_add_u32 s{sSoF}, s{sSoF}, s{sM0F}
        s_add_u32 s{sM0F}, s{sM0F}, {L_CS}
        v_and_b32 v{vN}, 31, v{vL}
        v_lshrrev_b32 v{vH}, 5, v{vL}
        s_mov_b32 s{sMask}, 0xffff0000
        s_mov_b32 s{sCnt}, 0
        v_mov_b32 v{vOne}, 1
        v_mov_b32 v{vOnes}, 0x3f803f80
        v_mov_b32 v{vOnes+1}, 0x3f803f80
        s_lshl_b32 s{sT+1}, s{sTB}, 7
        s_lshl_b32 s{sT+2}, s{sW}, 5
        s_add_u32 s{sT+1}, s{sT+1}, s{sT+2}
        v_add_u32 v{vTok}, s{sT+1}, v{vN}
        v_bfe_u32 v{vT+1}, v{vN}, 1, 3
        v_xor_b32 v{vT+1}, v{vT+1}, v{vH}
        v_lshlrev_b32 v{vT+2}, 7, v{vN}
        v_add_u32 v{vT+2}, s{sM0A}, v{vT+2}""")
        for q in range(4):
            k(f"v_xor_b32 v{vT+3}, {2*q}, v{vT+1}\nv_lshl_add_u32 v{vWa+q}, v{vT+3}, 4, v{vT+2}")
        k.srd(sTb, P_WS, 256*1024, WS_TAB)
        k(f"v_lshlrev_b32 v{vT+1}, 2, v{vL}")
        k(f"buffer_store_dword v{vL}, v{vT+1}, s[{sTb}:{sTb+3}], s{sSoF} offen sc1")
        nonce()
    def nat_read_addr(rowb):
        k(f"""v_bfe_u32 v{vT}, v{vL}, 2, 2
        v_lshl_add_u32 v{vT}, v{vH}, 3, v{vT}
        v_mul_u32_u24 v{vT}, {rowb}, v{vT}
        v_bfe_u32 v{vT+1}, v{vL}, 4, 1
        v_lshl_add_u32 v{vT}, v{vT+1}, 5, v{vT}
        v_and_b32 v{vT+1}, 3, v{vL}
        v_lshl_add_u32 v{vT}, v{vT+1}, 3, v{vT}""")
        if rowb == 128:
            k(f"""v_bfe_u32 v{vT+1}, v{vL}, 3, 1
            v_lshl_add_u32 v{vT}, v{vT+1}, 6, v{vT}
            v_xor_b32 v{vT+1}, 64, v{vT}
            v_add_u32 v{vZa}, {L_Z}, v{vT}
            v_add_u32 v{vZa+1}, {L_Z}, v{vT+1}""")
        else:
            k(f"v_add_u32 v{vZa}, {L_Z}, v{vT}\nv_add_u32 v{vZa+1}, {L_Z+4096}, v{vT}")

    def spinw(va, val):
        l = k.lab("gspin"); d = k.lab("gspun")
        k.label(l)
        k(f"ds_read_b32 v{vFl}, v{va}\ns_waitcnt lgkmcnt(0)\nv_cmp_gt_u32 vcc, {val}, v{vFl}\ns_cbranch_vccz {d}\ns_sleep 1")
        again(l)
        k.label(d)
    def gsync():
        k(f"s_add_u32 s{sCnt}, s{sCnt}, 1\nv_mov_b32 v{vFl}, s{sCnt}\nds_write_b32 v{vXw}, v{vFl}")
        spinw(vXa, f"s{sCnt}")
    def set_flag(base, col=None):
        l = k.lab("nf")
        k(f"s_cmp_lg_u32 s{sW}, 0\ns_cbranch_scc1 {l}")
        k(f"s_lshl_b32 s{sT}, s{sTB}, 11\ns_lshl_b32 s{sT+1}, s{sFG}, 7\ns_add_u32 s{sT}, s{sT}, s{sT+1}\ns_add_u32 s{sT}, s{sT}, {base}")
        gset(f"s{sT}", vT, vT + 2)
        k.label(l)

    def ring_free():
        k(f"v_mov_b32 v{vT}, {L_F+F_GO}\ns_mov_b64 exec, 1\nds_add_u32 v{vT}, v{vOne}\ns_mov_b64 exec, -1")
    def set_wflag(base, n=0):
        k(f"s_lshl_b32 s{sT}, s{sTB}, 2\ns_add_u32 s{sT}, s{sT}, s{sW}\ns_lshl_b32 s{sT}, s{sT}, 11\ns_lshl_b32 s{sT+1}, s{sFG}, 7\ns_add_u32 s{sT}, s{sT}, s{sT+1}\ns_add_u32 s{sT}, s{sT}, {base}")
        k(f"s_waitcnt vmcnt({n})")
        gset(f"s{sT}", vT, vT + 2)
    def prefetch():
        if not ('q' in pf or 'i' in pf): return
        k(f"""s_min_u32 s{sT}, s{sFG}, 14
        s_sub_u32 s{sT}, s{sT}, 10
        s_lshl_b32 s{sT+1}, s{sW}, 4
        s_add_u32 s{sT+1}, s{sT+1}, s{sTB}
        s_mul_i32 s{sT+1}, s{sT+1}, 5
        s_add_u32 s{sT+1}, s{sT+1}, s{sT}
        s_lshl_b32 s{sT+1}, s{sT+1}, 13
        v_lshlrev_b32 v{vT+8}, 7, v{vL}""")
        if 'q' in pf:
            k.srd(sO, P_WQ, 640*1280)
            k(f"buffer_load_dword v{vT+9}, v{vT+8}, s[{sO}:{sO+3}], s{sT+1} offen")
        if 'i' in pf:
            k.srd(sO, P_WIN, 640*3456)
            k(f"buffer_load_dword v{vT+10}, v{vT+8}, s[{sO}:{sO+3}], s{sT+1} offen")
    def prefetch_sp():
        if 's' not in pf: return
        att_progress(1, vT + 5, 8)
        k(f"""s_sub_u32 s{sT}, s{sFG}, 14
        s_lshl_b32 s{sT}, s{sT}, 2
        s_add_u32 s{sT}, s{sT}, s{sW}
        s_lshl_b32 s{sT}, s{sT}, 16
        s_lshl_b32 s{sT+1}, s{sTB}, 19
        s_add_u32 s{sT}, s{sT}, s{sT+1}
        v_lshlrev_b32 v{vT+8}, 7, v{vL}""")
        k.srd(sO, P_WSP, 2048*4096)
        for i in range(8):
            k(f"buffer_load_dword v{vT+9}, v{vT+8}, s[{sO}:{sO+3}], s{sT} offen {ntw}\ns_add_u32 s{sT}, s{sT}, 8192")
            if i % 2 == 1: k("s_waitcnt vmcnt(0)")
    def u_addr():
        k.srd(sO, P_WS, SZ_OUF, WS_OUF)
        k(f"""v_lshrrev_b32 v{vT+1}, 4, v{vTok}
        v_mul_u32_u24 v{vT+1}, {47*1024}, v{vT+1}
        v_and_b32 v{vT+2}, 15, v{vTok}
        v_lshl_add_u32 v{vT+1}, v{vT+2}, 4, v{vT+1}
        v_lshl_add_u32 v{vT+1}, v{vH}, 8, v{vT+1}
        s_lshl_b32 s{sT}, s{sFG}, 11
        s_add_u32 s{sT}, s{sT}, {20*1024}""")
    def poison(with_u):
        pz = vT + 4
        for i in range(4): k(f"v_mov_b32 v{pz+i}, -1")
        if with_u:
            l = k.lab("pu")
            u_addr()
            for i in range(4):
                if i == 2: k(f"s_cmp_eq_u32 s{sFG}, 13\ns_cbranch_scc1 {l}")
                k(f"buffer_store_dwordx4 {v(pz,4)}, v{vT+1}, s[{sO}:{sO+3}], s{sT} offen offset:{512*i} sc1")
            k.label(l)
        else:
            k.srd(sO, P_WS, SZ_OUF, WS_OUF)
        k(f"""s_lshl_b32 s{sT}, s{sT64}, 2
        s_add_u32 s{sT}, s{sT}, s{sW}
        s_mul_i32 s{sT}, s{sT}, {47*1024}
        s_mul_i32 s{sT+1}, s{sHG}, 2560
        s_add_u32 s{sT}, s{sT}, s{sT+1}
        v_lshlrev_b32 v{vT+2}, 4, v{vL}
        buffer_store_dwordx4 {v(pz,4)}, v{vT+2}, s[{sO}:{sO+3}], s{sT} offen sc1
        buffer_store_dwordx4 {v(pz,4)}, v{vT+2}, s[{sO}:{sO+3}], s{sT} offen offset:1024 sc1
        s_mov_b32 exec_hi, 0
        buffer_store_dwordx4 {v(pz,4)}, v{vT+2}, s[{sO}:{sO+3}], s{sT} offen offset:2048 sc1
        s_mov_b32 exec_hi, -1""")
    def poison_done():
        k(f"v_mov_b32 v{vT+4}, {L_F+F_XC}\nds_write_b32 v{vT+4}, v{vOne}")
    def att_progress(val, va, slp):
        l = k.lab("ac"); d = k.lab("acd")
        k(f"v_and_b32 v{va}, 7, v{vL}\nv_lshlrev_b32 v{va}, 2, v{va}\nv_add_u32 v{va}, {L_F}, v{va}")
        k.label(l)
        k(f"ds_read_b32 v{vFl}, v{va}\ns_waitcnt lgkmcnt(0)\nv_cmp_gt_u32 vcc, {val}, v{vFl}\ns_cbranch_vccz {d}\ns_sleep {slp}")
        again(l)
        k.label(d)
    vm = []
    def vop(tag, txt):
        vm.append(tag); return txt
    def newer(tags):
        idx = [i for i, t in enumerate(vm) if t in tags]
        return len(vm) - 1 - max(idx) if idx else 63
    cohA = [ntx]; cohB = [""]
    def la(g, p): return vop(("A", g), f"buffer_load_dwordx4 v{vD+p}, s[{sA}:{sA+3}], s{sSoA} offen offset:{1024*p} {cohA[0]} lds")
    def lb(g, p): return vop(("B", g), f"buffer_load_dwordx4 v{vDb+p}, s[{sB}:{sB+3}], s{sSoB} offen offset:{1024*p} {cohB[0]} lds")
    wrapA = [False]; wrapB = [False]
    def advA():
        if wrapA[0]: k(f"s_add_u32 s37, s37, 128\ns_and_b32 s37, s37, 0xfff\ns_add_u32 s{sSoA}, s38, s37")
        else: k(f"s_add_u32 s{sSoA}, s{sSoA}, 128")
    def advB():
        if wrapB[0]: k(f"s_add_u32 s39, s39, 4096\ns_and_b32 s39, s39, 0x1ffff\ns_add_u32 s{sSoB}, s54, s39")
        else: k(f"s_add_u32 s{sSoB}, s{sSoB}, s{sStepB}")
    vWe = z2
    def abuf(g):
        if deep and g in (3, 4, 5, 9):
            e = {3: 0, 4: 1, 5: 2, 9: 0}[g]
            return vWe, 16384 * e, 16384 * e - 49152
        return vWa, 16384 * (g % 3), 16384 * (g % 3)
    def issue_a(g):
        k(f"s_add_u32 m0, s{sM0A}, {hx(abuf(g)[2])}\ns_nop 0")
        for p in range(4): k(la(g, p))
        k(f"s_add_u32 s{sSoA}, s{sSoA}, 128")
    def issue_b(g):
        k(f"s_add_u32 m0, s{sM0B}, {8192*(g%6)}\ns_nop 0")
        for p in range(2): k(lb(g, p))
        advB()
    def reads(ty, half, b, g):
        ba, bz = g % 3, g % 6
        r = []
        for q in range(2):
            ks = 2 * half + q
            r.append(f"ds_read_b128 {v(fs[b][q][0],4)}, v{abuf(g)[0]+ks} offset:{abuf(g)[1]}")
            for u in range(2):
                d = fs[b][q][1+u]
                if ty == "frag":
                    r.append(f"ds_read_b128 {v(d,4)}, v{vZf} offset:{8192*bz+1024*ks+4096*u}")
                else:
                    rb = 128 if ty == "nat" else 40
                    r.append(f"ds_read_b64_tr_b16 {v(d,2)}, v{vZa+u} offset:{8192*bz+16*rb*ks}")
                    r.append(f"ds_read_b64_tr_b16 {v(d+2,2)}, v{vZa+u} offset:{8192*bz+16*rb*ks+4*rb}")
        return r
    vSx, vSq, vCs = z1, z1 + 4, [z1 + 8, z1 + 12]
    prio = [3]
    pat = [patz]
    inloop = [False]
    carry = [False]
    cold = []
    cacc = [acc]
    def half(b, hf, zero, stats, kv, rd, dm, ex=()):
        fast = prio[0] == 3
        n = len(rd)
        cut = [0, n, n, n] if fast else [0, (n + 1) // 2, n, n]
        cur = [3]
        def setp(p):
            if not fast and cur[0] != p:
                k(f"s_setprio {p}"); cur[0] = p
        for q in range(2):
            X = fs[b][q][0]
            for i in range(2):
                j = 2 * q + i
                A_, B_ = (X, fs[b][q][1+i]) if (kv and i == 1) else (fs[b][q][1+i], X)
                c = "0" if (zero and q == 0) else v(cacc[0][i], 16)
                if stats:
                    for u in range(2):
                        k(f"v_mfma_f32_4x4x4_16b_bf16 {v(vCs[u],4)}, {v(vOnes,2)}, {v(fs[b][q][1+u]+2*i,2)}, {v(vCs[u],4)}")
                setp(int(pat[0][4*hf + j]))
                abl = MX if (inloop[0] or "all" in MX) else ""
                k(f"v_mfma_f32_32x32x16_bf16 {v(cacc[0][i],16)}, {v(A_,4)}, {v(B_,4)}, {c}" if ("nomf" not in abl and "m16" not in abl) else ("s_nop 15" if "nomf" in abl else f"v_mfma_f32_16x16x32_bf16 {v(cacc[0][i]+8*q,4)}, {v(A_,4)}, {v(B_,4)}, {v(cacc[0][i]+8*q,4)}\nv_mfma_f32_16x16x32_bf16 {v(cacc[0][i]+8*q+4,4)}, {v(fs[b][1-q][1+i],4)}, {v(B_,4)}, {v(cacc[0][i]+8*q+4,4)}"))
                if "nord" in abl: rd = ["s_nop 0"] * len(rd)
                if "nodma" in abl: dm = [[], [], [], []]
                if j < 3 and cut[j+1] > cut[j]:
                    setp(rprio)
                    for x in rd[cut[j]:cut[j+1]]: k(x)
                if ex:
                    setp(3)
                    for x in ex[len(ex)*j//4:len(ex)*(j+1)//4]: k(x)
                if dm[j]:
                    setp(prio[0])
                    for f_ in dm[j]:
                        if thr is not None and not fast: k(f"s_waitcnt vmcnt({thr})")
                        k(f_())
        setp(3)
    def lf():
        return "\n".join([f"s_mov_b32 m0, s{sM0F}", f"s_add_u32 s{sSoF}, s{sSoF}, 4",
                          vop("F", f"buffer_load_dword v{vPg}, s[{sTb}:{sTb+3}], s{sSoF} offen lds")])
    def body(g, ty, ty_next, first=False, doA=True, doB=True, loop=False, dyn=False, tailA=None, tailB=None, cout=True, ex=(), needp=0):
        cin = carry[0]
        k("s_waitcnt lgkmcnt(0)")
        dm = [[], [], [], []]
        def a3():
            k(la(g + 2, 3)); advA(); return "s_nop 0"
        if cin: dm = [[lambda: la(g + 2, 2)], [a3], [], []]
        half(0, 0, first, False, False, reads(ty, 1, 1, g) + [f"ds_read_b32 v{vFl}, v{vFa}"], dm, ex[:len(ex)//2])
        if doB or tailB: k(f"s_add_u32 m0, s{sM0B}, {8192*((g+4)%6)}")
        if tailB: k(tailB)
        n = 7 if loop else min(63, newer({("A", g + 1)}))
        ok = k.lab("gok"); sl = k.lab("gslow")
        need = f"s{sNeed}" if (loop or dyn) else str(g - 2 + needp)
        acct = "acct" in MX and loop
        if acct: k("s_waitcnt lgkmcnt(0)\ns_memtime s[36:37]\ns_waitcnt lgkmcnt(0)")
        k(f"s_waitcnt vmcnt({n}) lgkmcnt(0)")
        if acct: k("s_memtime s[38:39]\ns_waitcnt lgkmcnt(0)\ns_sub_u32 s36, s38, s36\ns_add_u32 s82, s82, s36")
        k(f"v_cmp_gt_u32 vcc, {need}, v{vFl}\ns_cbranch_vccnz {sl}")
        cold.append((sl, need, ok))
        k.label(ok)
        if acct: k("s_memtime s[36:37]\ns_waitcnt lgkmcnt(0)\ns_sub_u32 s36, s36, s38\ns_add_u32 s84, s84, s36")
        def mark():
            if doB: advB()
            if not (ev[5] < 30 and g == ev[5] - 1): k(lf())
            t = []
            if doA or tailA: t.append(f"s_add_u32 m0, s{sM0A}, {16384*(g%3)}")
            if tailA: t.append(tailA)
            return "\n".join(t) or "s_nop 0"
        dm = [[], [mark], [], []]
        if doB or tailB: dm = [[lambda: lb(g + 4, 0)], [lambda: lb(g + 4, 1), mark], [], []]
        cout = cout and doA
        if doA or tailA:
            dm[2] = [lambda: la(g + 3, 0)] + ([] if cout else [lambda: la(g + 3, 1)])
            dm[3] = [lambda: la(g + 3, 1)] if cout else [lambda: la(g + 3, 2), lambda: la(g + 3, 3)]
        half(1, 1, False, False, False, reads(ty_next, 0, 0, g + 1) if ty_next else [], dm, ex[len(ex)//2:])
        if doA and not cout: advA()
        carry[0] = cout
        if loop or dyn: k(f"s_add_u32 s{sNeed}, s{sNeed}, 1")
    def hi(): pass
    def lo(): pass
    def prologue(g0, ty):
        k(f"s_add_u32 s{sSoF}, s{sSoF}, {4*(g0-4)}")
        k(lf())
        issue_b(g0 + 1); k(lf()); issue_a(g0 + 1); issue_b(g0 + 2); issue_b(g0 + 3); k(lf()); issue_a(g0 + 2)
        k(f"s_waitcnt vmcnt({newer({('A', g0)})})")
        spinw(vFa, g0 - 3)
        for r in reads(ty, 0, 0, g0): k(r)
    def src_win(off_const):
        k.srd(sB, P_WIN, 640*3456)
        k(f"""s_mul_i32 s{sSoB}, s{sW}, {16*3456}
        s_lshl_b32 s{sT}, s{sFG}, 7
        s_add_u32 s{sSoB}, s{sSoB}, s{sT}
        s_add_u32 s{sSoB}, s{sSoB}, {off_const}
        s_mov_b32 s{sStepB}, {64*3456}""")
    def load_mr():
        lds_wait(L_F + F_XR, vT, vT + 1)
        k.srd(sO, P_WS, SZ_XN, WS_XN)
        k(f"v_mul_u32_u24 v{vT+2}, {XN_ST}, v{vTok}")
        k(vop("mr", f"buffer_load_dwordx2 {v(vT+8,2)}, v{vT+2}, s[{sO}:{sO+3}], 0 offen offset:1280 sc1"))
    def src_xn():
        k.srd(sA, P_WS, SZ_XN, WS_XN)
        k(f"s_lshl_b32 s{sBaseA}, s{sTB}, 2\ns_add_u32 s{sBaseA}, s{sBaseA}, s{sW}\ns_mul_i32 s{sBaseA}, s{sBaseA}, {32*XN_ST}\ns_mov_b32 s{sSoA}, s{sBaseA}")
    def ln_fold(kv):
        mu, r = vT + 8, vT + 9
        k(f"""s_waitcnt vmcnt({newer({'mr'})})
        v_and_b32 v{vT+2}, s{sMask}, v{mu}
        v_sub_f32 v{vT+3}, v{mu}, v{vT+2}
        v_cvt_pk_bf16_f32 v{vT}, -v{vT+2}, -v{vT+3}
        v_cvt_pk_bf16_f32 v{vT+1}, -v{vT+2}, 0""")
        for u in range(2):
            c = vCs[u]
            k(f"""v_and_b32 v{c+3}, s{sMask}, v{c+2}
            v_sub_f32 v{c+2}, v{c+2}, v{c+3}
            v_cvt_pk_bf16_f32 v{c}, v{c+3}, v{c+3}
            v_cvt_pk_bf16_f32 v{c+1}, v{c+2}, 0""")
        k("s_nop 1")
        for u in range(2):
            A_, B_ = (vT, vCs[u]) if (kv and u == 1) else (vCs[u], vT)
            k(f"v_mfma_f32_32x32x8_bf16 {v(acc[u],16)}, {v(A_,2)}, {v(B_,2)}, {v(acc[u],16)}")
    def swap4(b0):
        k(f"v_permlane32_swap_b32 v{b0}, v{b0+2}\nv_permlane32_swap_b32 v{b0+1}, v{b0+3}")
    def gelu(u, dst, stats):
        t = acc[u]
        for g0 in range(0, 16, 8):
            R = range(g0, g0 + 8)
            for i in R: k(f"v_mul_f32 v{tmp+i-g0}, v{t+i}, v{t+i}")
            for i in R: k(f"v_fmaak_f32 v{tmp+i-g0}, v{vT+12}, v{tmp+i-g0}, {fl(GC0)}")
            for i in R: k(f"v_mul_f32 v{tmp+i-g0}, v{tmp+i-g0}, v{t+i}")
            for i in R: k(f"v_exp_f32 v{tmp+i-g0}, v{tmp+i-g0}")
            for i in R: k(f"v_add_f32 v{tmp+i-g0}, 1.0, v{tmp+i-g0}")
            for i in R: k(f"v_rcp_f32 v{tmp+i-g0}, v{tmp+i-g0}")
            for i in R: k(f"v_mul_f32 v{tmp+i-g0}, v{tmp+i-g0}, v{t+i}")
            for i in range(0, 8, 2): k(f"v_cvt_pk_bf16_f32 v{dst+(g0+i)//2}, v{tmp+i}, v{tmp+i+1}")
            if stats:
                for i in range(8):
                    k(f"v_add_f32 v{vT+10}, v{vT+10}, v{tmp+i}\nv_fmac_f32 v{vT+11}, v{tmp+i}, v{tmp+i}")

    rep = k.lab("rep"); b10 = k.lab("b10"); outp = k.lab("outp"); outq = k.lab("outq"); kw = k.lab("kw"); kwd = k.lab("kwd")
    vx, vw = z2, z2 + 2
    k(f"v_lshrrev_b32 v{vT}, 3, v{vL}\nv_and_b32 v{vT+1}, 7, v{vL}")
    for p in range(2):
        k(f"""v_add_u32 v{vT+2}, {8*p}, v{vT}
        v_bfe_u32 v{vT+3}, v{vT+2}, 1, 3
        v_xor_b32 v{vT+3}, v{vT+3}, v{vT+1}
        v_mul_u32_u24 v{vT+2}, 1280, v{vT+2}
        v_lshl_add_u32 v{vx+p}, v{vT+3}, 4, v{vT+2}""")
    k(f"v_subrev_u32 v{vx+1}, 1024, v{vx+1}")
    k.srd(sA, P_X, SZ_Q)
    k(f"""s_lshl_b32 s{sBaseA}, s{sT64}, 2
    s_add_u32 s{sBaseA}, s{sBaseA}, s{sW}
    s_mul_i32 s{sBaseA}, s{sBaseA}, {16*1280}
    s_lshl_b32 s{sNeed}, s{sW}, 11
    s_add_u32 s{sNeed}, s{sNeed}, {F_B}""")
    sKr = 36
    def l_rot():
        if frot: k(f"s_lshr_b32 s{sKr}, s2, 3\ns_mul_i32 s{sKr}, s{sKr}, {frot}\ns_mul_i32 s{sT}, s{sKr}, 6554\ns_lshr_b32 s{sT}, s{sT}, 16\ns_mul_i32 s{sT}, s{sT}, 10\ns_sub_u32 s{sKr}, s{sKr}, s{sT}")
        else: k(f"s_mov_b32 s{sKr}, 0")
    def l_x(g):
        k(f"s_lshl_b32 s{sSoA}, s{sKr}, 7\ns_add_u32 m0, s{sNeed}, {F_S*(g%6)}\ns_add_u32 s{sSoA}, s{sBaseA}, s{sSoA}")
        for p in range(2): k(vop(("A", g), f"buffer_load_dwordx4 v{vx+p}, s[{sA}:{sA+3}], s{sSoA} offen offset:{1024*p} lds"))
    def l_w(g, n):
        k(f"s_mul_i32 s{sSoA}, s{sKr}, s{sStepB}\ns_add_u32 m0, s{sI}, {F_S*(g%6)}\ns_add_u32 s{sSoA}, s{sSoA}, s{sSoB}")
        for p in range(n): k(vop(("A", g), f"buffer_load_dwordx4 v{vw+p}, s[{sB}:{sB+3}], s{sSoA} offen offset:{1024*p} lds"))
        k(f"s_add_u32 s{sKr}, s{sKr}, 1\ns_cmp_eq_u32 s{sKr}, 10\ns_cmov_b32 s{sKr}, 0")
    lx, ls, lt, la_ = fs[0][0][0], fs[1][0][0], fs[1][0][0] + 8, z2 + 6
    def l_pass(n, x0done, mid=None, lead=3, xf=False):
        for g in range(lead):
            if not (g == 0 and x0done): l_x(g)
            l_w(g, n)
        if mid: mid()
        k(f"v_lshl_add_u32 v{la_}, v{vL}, 4, s{sNeed}\nv_add_u32 v{la_+1}, {3*F_S}, v{la_}")
        for i in range(8): k(f"v_mov_b32 v{ls+i}, 0")
        for g in range(10):
            k(f"s_waitcnt vmcnt({newer({('A', g)})})")
            if g == 0: sp('land0')
            k("s_barrier")
            if g == 0: sp('p1s')
            for p in range(2):
                k(f"ds_read_b128 {v(lx+4*p,4)}, v{la_+(g%6)//3} offset:{F_S*(g%3)+1024*p}")
            if g + lead < 10:
                l_x(g + lead); l_w(g + lead, n)
            if g == 9 and xf:
                k(f"s_lshl_b32 s{sT+3}, s{sTB}, 2\ns_add_u32 s{sT+3}, s{sT+3}, s{sW}\ns_lshl_b32 s{sT+3}, s{sT+3}, 9\nv_lshlrev_b32 v{vT+4}, 7, v{vL}\ns_mov_b64 exec, 0xf")
                k(gload(f"s{sT+3}", vT + 4, vT + 8))
                k("s_mov_b64 exec, -1")
            k("s_waitcnt lgkmcnt(0)")
            if ldot:
                for i in range(8):
                    c = ls + 4*(i // 4) + (i % 2)
                    k(f"v_dot2c_f32_bf16 v{c}, v{vOnes}, v{lx+i}\nv_dot2c_f32_bf16 v{c+2}, v{lx+i}, v{lx+i}")
                if g == 9: k("s_nop 2")
            elif "nost" not in MX:
              for i in range(8):
                t0 = lt + 2*(i % 2); c = ls + 4*(i // 4)
                k(f"""v_lshlrev_b32 v{t0}, 16, v{lx+i}
                v_and_b32 v{t0+1}, s{sMask}, v{lx+i}
                v_add_f32 v{c}, v{c}, v{t0}
                v_add_f32 v{c+1}, v{c+1}, v{t0+1}
                v_fmac_f32 v{c+2}, v{t0}, v{t0}
                v_fmac_f32 v{c+3}, v{t0+1}, v{t0+1}""")
        R = [ls, ls + 2, ls + 4, ls + 6]
        for r in R: k(f"v_add_f32 v{r}, v{r}, v{r+1}")
        for m in ("quad_perm:[1,0,3,2]", "quad_perm:[2,3,0,1]", "row_half_mirror"):
            for r in R: k(f"v_add_f32_dpp v{r}, v{r}, v{r} {m} row_mask:0xf bank_mask:0xf")
        for r in R: k(f"v_mul_f32 v{r}, {fl(1.0/640)}, v{r}")
        for p in range(2):
            mu, q_ = ls + 4*p, ls + 4*p + 2
            k(f"v_fma_f32 v{q_}, -v{mu}, v{mu}, v{q_}\nv_max_f32 v{q_}, 0, v{q_}\nv_add_f32 v{q_}, {fl(1e-5)}, v{q_}\nv_rsq_f32 v{q_}, v{q_}")
        k(f"""s_lshl_b32 s{sT}, s{sW}, 6
        s_add_u32 s{sT}, s{sT}, {F_STS}
        v_lshrrev_b32 v{lt}, 3, v{vL}
        v_lshl_add_u32 v{lt}, v{lt}, 2, s{sT}
        ds_write_b32 v{lt}, v{ls}
        ds_write_b32 v{lt}, v{ls+2} offset:256
        ds_write_b32 v{lt}, v{ls+4} offset:32
        ds_write_b32 v{lt}, v{ls+6} offset:288
        s_waitcnt lgkmcnt(0)""")
    def q_src():
        for p in range(3):
            k(f"""v_add_u32 v{vT}, {64*p}, v{vL}
            v_mul_u32_u24 v{vT+1}, 5462, v{vT}
            v_lshrrev_b32 v{vT+1}, 16, v{vT+1}
            v_mul_u32_u24 v{vT+2}, 12, v{vT+1}
            v_sub_u32 v{vT+2}, v{vT}, v{vT+2}
            v_min_u32 v{vT+2}, 9, v{vT+2}
            v_mul_u32_u24 v{vT+1}, 1280, v{vT+1}
            v_lshl_add_u32 v{vw+p}, v{vT+2}, 4, v{vT+1}""")
            if p: k(f"v_subrev_u32 v{vw+p}, {1024*p}, v{vw+p}")
        k.srd(sB, P_WQ, 640*1280)
        k(f"""s_mul_i32 s{sSoB}, s{sW}, {16*1280}
        s_mul_i32 s{sT}, s{sHG}, 160
        s_add_u32 s{sSoB}, s{sSoB}, s{sT}
        s_mov_b32 s{sStepB}, {64*1280}
        s_mul_i32 s{sI}, s{sW}, 3072
        s_add_u32 s{sI}, s{sI}, {F_B+8192}""")
    if "skip" in MX:
        k(f"s_barrier\ns_cmp_eq_u32 s{sHG}, 7\ns_cbranch_scc1 {end}")
        setup_rest(); a_addr(4096)
        k.srd(sA, P_WSP, 2048*4096)
        k(f"s_lshl_b32 s{sSoA}, s{sTB}, 2\ns_add_u32 s{sSoA}, s{sSoA}, s{sW}\ns_lshl_b32 s{sSoA}, s{sSoA}, 17")
        k(f"v_lshlrev_b32 v{vDb}, 4, v{vL}\nv_lshlrev_b32 v{vDb+1}, 4, v{vL}\ns_add_u32 s{sSoF}, s{sSoF}, {4*28}\ns_waitcnt vmcnt(0)")
        k(lf()); k(f"s_branch {skipG}")
    early = 'b' not in pf
    sKr = 36
    l_rot()
    if early: l_x(0)
    k(f"s_cmp_eq_u32 s{sHG}, 7\ns_cbranch_scc1 {rep}")
    q_src()
    def mid():
        setup_rest(); nat_read_addr(128); b_addr(3456); a_addr(XN_ST)
    if early: l_pass(3, True, mid, xf=True, lead=lq)
    else:
        mid(); k("s_barrier"); l_pass(3, False, xf=True)
    sp('p1l')
    k("s_barrier")
    src_win(13 * 128)
    issue_b(10)
    src_xn()
    xo = k.lab("xo")
    k("s_waitcnt vmcnt(2)\ns_mov_b64 exec, 0xf")
    gcheck(vT + 8)
    k(f"s_mov_b64 exec, -1\ns_cbranch_vccz {xo}")
    gpoll(f"s{sT+3}", vT + 4, vT + 8, 0xf, 2)
    k.label(xo)
    cohA[0] = "sc1"
    issue_a(10)
    prologue(10, "nat")

    k.label(b10)
    sp('p1')
    prio[0] = lprio
    vFg, vSt = vT + 8, tmp
    def z_ready():
        pd = k.lab("zpd")
        k(f"s_waitcnt vmcnt({newer({'pz'})})")
        gcheck(vFg)
        k(f"s_cbranch_vccz {pd}")
        k(f"s_lshl_b32 s{sT}, s{sW}, 13\ns_add_u32 s{sT}, s{sT}, {FL_Z}")
        gpoll(f"s{sT}", vT + 14, vFg, None, 4)
        k.label(pd)
        gsync()
        sp('zr')
        k.srd(sB, P_WS, SZ_Z2F, WS_Z2F)
        k(f"""s_lshr_b32 s{sT+1}, s{sW}, 1
        s_lshl_b32 s{sT}, s{sFG}, 1
        s_add_u32 s{sT+1}, s{sT}, s{sT+1}
        s_lshl_b32 s{sSoB}, s{sT+1}, 17
        s_and_b32 s{sT}, s{sW}, 1
        s_lshl_b32 s{sT}, s{sT}, 11
        s_add_u32 s{sSoB}, s{sSoB}, s{sT}
        s_mov_b32 s{sStepB}, 4096
        v_add_u32 v{vZf}, {L_Z}, v{vDb}""")
        cohB[0] = "sc1"
        k(f"s_setprio {lprio}")
        for g in range(30, ev[5] + 4): issue_b(g)
        if ev[5] < 30: k(lf())
        k("s_setprio 3")
    for g in range(10, 30):
        if g == 16:
            src_win(0)
        if g == 17:
            k(f"s_mov_b32 s{sSoA}, s{sBaseA}")
        if g == 14 and so:
            poison(False)
        if g == 20:
            sp('p2')
            hi()
            s0 = k.lab("s0")
            k(f"v_mov_b32 v{vT+12}, {fl(GC1)}\nv_mov_b32 v{vT+10}, 0\nv_mov_b32 v{vT+11}, 0\ns_nop 7")
            k(f"s_cmp_eq_u32 s{sFG}, 0\ns_cbranch_scc1 {s0}")
            gelu(0, z2, True)
            k.label(s0)
            gelu(1, z2 + 8, True)
            k.srd(sO, P_WS, SZ_ST, WS_ST)
            k(f"""v_mov_b32 v{vT+2}, v{vT+10}
            v_mov_b32 v{vT+3}, v{vT+11}
            s_mul_i32 s{sT}, s{sTB}, 14
            s_add_u32 s{sT}, s{sT}, s{sFG}
            v_permlane32_swap_b32 v{vT+10}, v{vT+2}
            v_permlane32_swap_b32 v{vT+11}, v{vT+3}
            s_lshl_b32 s{sT}, s{sT}, 10
            s_lshl_b32 s{sT+1}, s{sW}, 8
            v_add_f32 v{vT+10}, v{vT+10}, v{vT+2}
            v_add_f32 v{vT+11}, v{vT+11}, v{vT+3}
            v_lshlrev_b32 v{vT+2}, 3, v{vN}
            s_add_u32 s{sT}, s{sT}, s{sT+1}
            s_mov_b32 exec_hi, 0""")
            k(vop("st", f"buffer_store_dwordx2 {v(vT+10,2)}, v{vT+2}, s[{sO}:{sO+3}], s{sT} offen sc1"))
            k("s_mov_b32 exec_hi, -1")
            lo()
        if g == 21:
            sp('e21')
            hi()
            assert not sent
            set_wflag(FL_S, newer({'st'}))
            lo()
        if g == ev[0]:
            hi()
            k(f"v_min_u32 v{vT+14}, 13, v{vL}\nv_lshlrev_b32 v{vT+14}, 7, v{vT+14}\ns_lshl_b32 s{sT}, s{sTB}, 2\ns_add_u32 s{sT}, s{sT}, s{sW}\ns_lshl_b32 s{sT}, s{sT}, 11\ns_add_u32 s{sT}, s{sT}, {FL_S}")
            k(vop("pf", gload(f"s{sT}", vT + 14, vFg)))
            lo()
        if g == ev[1]:
            sp('e24')
            hi()
            ok = k.lab("sok")
            k(f"s_waitcnt vmcnt({newer({'pf'})})")
            gcheck(vFg)
            k(f"s_cbranch_vccz {ok}")
            k(f"s_lshl_b32 s{sT}, s{sTB}, 2\ns_add_u32 s{sT}, s{sT}, s{sW}\ns_lshl_b32 s{sT}, s{sT}, 11\ns_add_u32 s{sT}, s{sT}, {FL_S}")
            gpoll(f"s{sT}", vT + 14, vFg, 0x3fff, 4)
            k.label(ok)
            k(f"""v_mul_u32_u24 v{vT+14}, 7168, v{vH}
            v_lshl_add_u32 v{vT+14}, v{vN}, 3, v{vT+14}
            s_mul_i32 s{sT}, s{sTB}, {14*1024}
            s_lshl_b32 s{sT+1}, s{sW}, 8
            s_add_u32 s{sT}, s{sT}, s{sT+1}
            s_add_u32 s{sT+1}, s{sT}, 4096""")
            for i in range(7):
                k(vop("sl", f"buffer_load_dwordx2 {v(z1+2*i,2)}, v{vT+14}, s[{sO}:{sO+3}], s{sT + i//4} offen offset:{1024*(i%4)} sc1"))
            lo()
        if g == ev[2]:
            sp('e25')
            hi()
            sel, D = tmp, tmp + 8
            mur, r = vT + 10, vT + 11
            k(f"v_lshlrev_b32 v{vT+2}, 2, v{vH}\nv_sub_u32 v{vT+2}, v{vN}, v{vT+2}\nv_mov_b32 v{vT+3}, 0x3f80\nv_mov_b32 v{vT+4}, 0x3f800000")
            for e in range(2):
                for q in range(4):
                    f0 = 16*e + 8*(q >> 1) + 2*(q & 1)
                    k(f"""v_cmp_eq_u32 vcc, {f0}, v{vT+2}
                    v_cmp_eq_u32 s[{sT}:{sT+1}], {f0+1}, v{vT+2}
                    s_nop 0
                    v_cndmask_b32 v{sel+4*e+q}, 0, v{vT+3}, vcc
                    v_cndmask_b32 v{sel+4*e+q}, v{sel+4*e+q}, v{vT+4}, s[{sT}:{sT+1}]""")
            k(f"s_waitcnt vmcnt({newer({'sl'})})")
            for i in range(1, 7):
                k(f"v_add_f32 v{z1}, v{z1}, v{z1+2*i}\nv_add_f32 v{z1+1}, v{z1+1}, v{z1+2*i+1}")
            k.srd(sO, P_WS, SZ_Z2F, WS_Z2F)
            k(f"""v_mov_b32 v{z1+2}, v{z1}
            v_mov_b32 v{z1+3}, v{z1+1}
            v_lshlrev_b32 v{vT+2}, 4, v{vL}
            s_lshl_b32 s{sT}, s{sFG}, 18
            v_permlane32_swap_b32 v{z1}, v{z1+2}
            v_permlane32_swap_b32 v{z1+1}, v{z1+3}
            v_add_f32 v{mur}, v{z1}, v{z1+2}
            v_add_f32 v{r}, v{z1+1}, v{z1+3}
            v_mul_f32 v{mur}, {fl(1.0/864)}, v{mur}
            v_mul_f32 v{r}, {fl(1.0/864)}, v{r}
            v_fma_f32 v{r}, -v{mur}, v{mur}, v{r}
            v_max_f32 v{r}, 0, v{r}
            v_add_f32 v{r}, {fl(1e-5)}, v{r}
            v_rsq_f32 v{r}, v{r}
            s_lshl_b32 s{sT+1}, s{sTB}, 13
            s_add_u32 s{sT}, s{sT}, s{sT+1}
            v_mul_f32 v{mur}, v{mur}, v{r}
            s_lshl_b32 s{sT+1}, s{sW}, 11
            s_add_u32 s{sT}, s{sT}, s{sT+1}
            s_sub_u32 s{sT+1}, s{sT}, 0x20000""")
            s1 = k.lab("s1")
            for u in (1, 0):
                if u == 0:
                    k(f"s_cmp_eq_u32 s{sFG}, 0\ns_cbranch_scc1 {s1}")
                zz = z2 + 8*u
                for i in range(8):
                    k(f"""v_lshlrev_b32 v{vT+4}, 16, v{zz+i}
                    v_and_b32 v{vT+5}, s{sMask}, v{zz+i}
                    v_fma_f32 v{vT+4}, v{vT+4}, v{r}, -v{mur}
                    v_fma_f32 v{vT+5}, v{vT+5}, v{r}, -v{mur}
                    v_cvt_pk_bf16_f32 v{zz+i}, v{vT+4}, v{vT+5}""")
                k("s_nop 1")
                k(f"v_mfma_f32_32x32x16_bf16 {v(D,16)}, {v(zz,4)}, {v(sel,4)}, 0")
                k(f"v_mfma_f32_32x32x16_bf16 {v(D,16)}, {v(zz+4,4)}, {v(sel+4,4)}, {v(D,16)}")
                k("s_nop 7\ns_nop 3")
                for i in range(8): k(f"v_cvt_pk_bf16_f32 v{zz+i}, v{D+2*i}, v{D+2*i+1}")
                k("s_nop 0")
                for jp in range(2): swap4(zz + 4*jp)
                for jp in range(2):
                    k(vop("zs", f"buffer_store_dwordx4 {v(zz+4*jp,4)}, v{vT+2}, s[{sO}:{sO+3}], s{sT + 1 - u} offen offset:{1024*jp} sc1"))
            k.label(s1)
            del vm[-2:]
            lo()
        if g == ev[3]:
            sp('e26')
            hi()
            k(f"s_waitcnt vmcnt({newer({'zs'})})")
            gsync(); set_flag(FL_Z)
            if so: poison_done()
            lo()
        if g == 27:
            sp('e27')
            hi()
            a_addr(4096)
            k.srd(sA, P_WSP, 2048*4096)
            k(f"s_lshl_b32 s{sSoA}, s{sTB}, 2\ns_add_u32 s{sSoA}, s{sSoA}, s{sW}\ns_lshl_b32 s{sSoA}, s{sSoA}, 17")
            cohA[0] = ntw
            if prot is not None:
                wrapA[0] = True
                k(f"""s_and_b32 s36, s{sTB}, 1
                s_mul_i32 s36, s36, {prot[0]}
                s_mul_i32 s37, s{sFG}, {prot[1]}
                s_add_u32 s36, s36, s37
                s_and_b32 s36, s36, 31
                s_mov_b32 s38, s{sSoA}
                s_lshl_b32 s37, s36, 7
                s_add_u32 s{sSoA}, s38, s37""")
            k.srd(sB, P_BSP, 4096)
            k(f"v_lshlrev_b32 v{vT+2}, 1, v{vTok}\nv_lshlrev_b32 v{vDb}, 4, v{vL}\nv_lshlrev_b32 v{vDb+1}, 4, v{vL}")
            k(vop("bias", f"buffer_load_ushort v{vBias}, v{vT+2}, s[{sB}:{sB+3}], 0 offen"))
            lo()
        if g == ev[4]:
            k(f"s_lshl_b32 s{sT}, s{sW}, 13\ns_add_u32 s{sT}, s{sT}, {FL_Z}\nv_and_b32 v{vT+14}, 15, v{vL}\nv_min_u32 v{vT+14}, 13, v{vT+14}\nv_and_or_b32 v{vT+14}, v{vL}, 48, v{vT+14}\nv_lshlrev_b32 v{vT+14}, 7, v{vT+14}")
            k(vop("pz", gload(f"s{sT}", vT + 14, vFg)))
        if g == ev[5]:
            z_ready()
        body(g, "nat", "nat" if g != 29 else ("frag" if ev[5] < 30 else None), first=(g in (10, 20)), doB=(g < 26 or g >= ev[5]), cout=(g not in (16, 26, ev[5] - 1)),
             needp=((ev[5] - 28) if (g == 29 and ev[5] < 30) else 0))
    sp('p3')
    k.label(skipG)
    if ev[5] == 30:
        z_ready()
        k("s_waitcnt vmcnt(2)")
        gsync()
        for r in reads("frag", 0, 0, 30): k(r)
    pat[0] = pats
    cacc[0] = [z1, z2]
    body(30, "frag", "frag", first=True, needp=max(0, ev[5] - 29) if ev[5] < 30 else 0)
    body(31, "frag", "frag")
    k(f"s_mov_b32 s{sNeed}, 30\ns_mov_b32 s{sI}, 0")
    loop = k.lab("gloop")
    sp('l0')
    if "acct" in MX: k("s_waitcnt lgkmcnt(0)\ns_mov_b32 s82, s80\ns_mov_b32 s84, s80")
    if "lin" in MX:
        for p in range(4): k(f"v_mov_b32 v{vD+p}, v{vDb}")
    if "glin" in MX:
        for p in range(4): k(f"v_add_u32 v{vWa+p}, s{sM0A}, v{vDb}")
    if "oob" in MX: k(f"s_mov_b32 s{sA+2}, 0\ns_mov_b32 s{sB+2}, 0")
    if "ooa" in MX: k(f"s_mov_b32 s{sA+2}, 0")
    if "ooz" in MX: k(f"s_mov_b32 s{sB+2}, 0")
    k.align(3)
    k.label(loop)
    inloop[0] = True
    if "nosc" in MX: cohB[0] = ""
    for g in range(32, 38):
        body(g, "frag", "frag", loop=True)
    inloop[0] = False
    k(f"s_add_u32 s{sI}, s{sI}, 1\ns_cmp_lt_u32 s{sI}, 3\ns_cbranch_scc1 {loop}")
    sp('l1')
    if "skip" in MX: k.endpgm(P_WS, 3)
    if "nopt" in MX:
        k("s_waitcnt lgkmcnt(0)")
        k.stamp(1); k("s_waitcnt lgkmcnt(0)")
        for i in range(32): k("s_nop 15")
        k.stamp(2); k("s_waitcnt lgkmcnt(0)")
        for i in range(256): k(f"v_add_u32 v{vT}, 1, v{vT}")
        k.stamp(3); k("s_waitcnt lgkmcnt(0)")
        for i in range(32): k(f"ds_read_b32 v{vT}, v{vFa}\ns_waitcnt lgkmcnt(0)")
        k.stamp(4); k("s_waitcnt lgkmcnt(0)")
    sG, sWb = sI, sBaseA
    def out_ids():
        k(f"s_lshr_b32 s{sG}, s2, 5\ns_mul_i32 s{sWb}, s{sG}, {47*5120}\ns_add_u32 s{sWb}, s{sWb}, {20*5120 - 1024 - L_A}")
    vm[:] = [((t[0], t[1] + 12) if isinstance(t, tuple) else t) for t in vm]
    def gelu4(r0):
        t = vT
        R = range(4)
        o = [f"v_mul_f32 v{t+i}, v{r0+i}, v{r0+i}" for i in R] + [f"v_fmaak_f32 v{t+i}, v{vT+12}, v{t+i}, {fl(GC0)}" for i in R]
        o += [f"v_mul_f32 v{t+i}, v{t+i}, v{r0+i}" for i in R] + [f"v_exp_f32 v{t+i}, v{t+i}" for i in R]
        o += [f"v_add_f32 v{t+i}, 1.0, v{t+i}" for i in R] + [f"v_rcp_f32 v{t+i}, v{t+i}" for i in R]
        return o + [f"v_mul_f32 v{r0+i}, v{t+i}, v{r0+i}" for i in R]
    for g in range(50, 62):
        tA = tB = None
        if g == 55:
            k(f"v_and_b32 v{vT+14}, 31, v{vL}\nv_lshlrev_b32 v{vT+14}, 7, v{vT+14}\ns_mov_b32 s{sT}, {FL_W}")
            k(gload(f"s{sT}", vT + 14, vFg))
        if g == 58:
            wk = k.lab("wok")
            gcheck(vFg)
            k(f"s_cbranch_vccz {wk}\ns_mov_b32 s{sT}, {FL_W}")
            gpoll(f"s{sT}", vT + 14, vFg, None, 4)
            k.label(wk)
            sp('g58')
            out_ids()
            k.srd(sB, P_WS, SZ_WF, WS_WF)
        if g == 59:
            k.srd(sA, P_WS, SZ_WF, WS_WF)
            cohA[0] = "sc1"
            hi()
            for p in range(4): k(f"v_mov_b32 v{vD+p}, v{vDb}")
            lo()
        if g >= 58: tB = f"s_add_u32 s{sSoB}, m0, s{sWb}"
        if g >= 59: tA = f"s_add_u32 s{sSoA}, m0, s{sWb}"
        body(g, "frag", "frag" if g < 61 else None, dyn=True, doA=(g < 59), doB=(g < 58), tailA=tA, tailB=tB, cout=(g < 58), ex=(gelu4(acc[0] + 4*(g - 50)) if g < 58 else ()))
    sp('p4')
    hi()
    fin = k.lab("gfin")
    def rest_w():
        gsync()
        k(f"s_lshl_b32 s{sT+1}, s{sW}, 12\ns_add_u32 m0, s{sT+1}, {L_Z}\ns_add_u32 s{sSoB}, m0, s{sWb}")
        for p in range(4):
            k(f"buffer_load_dwordx4 v{vDb}, s[{sB}:{sB+3}], s{sSoB} offen offset:{1024*p} sc1 lds")
    u_addr()
    k(f"v_lshlrev_b32 v{vBias}, 16, v{vBias}")
    for i in range(2):
        if i == 1:
            k(f"s_cmp_eq_u32 s{sFG}, 13\ns_cbranch_scc1 {fin}")
        ga = cacc[0][i]
        for r in range(16): k(f"v_add_f32 v{ga+r}, v{ga+r}, v{vBias}")
        for r in range(16): k(f"v_mul_f32 v{ga+r}, v{ga+r}, v{acc[i]+r}")
        for r in range(8): k(f"v_cvt_pk_bf16_f32 v{tmp+8*i+r}, v{ga+2*r}, v{ga+2*r+1}")
        k("s_nop 0")
        for jp in range(2): swap4(tmp + 8*i + 4*jp)
        for jp in range(2):
            k(f"buffer_store_dwordx4 {v(tmp+8*i+4*jp,4)}, v{vT+1}, s[{sO}:{sO+3}], s{sT} offen offset:{1024*i+512*jp} sc1")
    k.label(fin)
    sp('ust')
    rest_w()
    sp('urw')
    if not sent: set_wflag(FL_U, 4)
    sp('ufl')
    k(f"s_branch {outp}")

    k.label(rep)
    vm[:] = [("A", 0)] * 2
    k(f"s_cmp_ge_u32 s{sW}, 2\ns_cbranch_scc1 {kw}")
    k.srd(sB, P_WK, 25600)
    k(f"s_branch {kwd}")
    k.label(kw)
    k.srd(sB, P_WV, 25600)
    k.label(kwd)
    k(f"""v_lshlrev_b32 v{vw}, 4, v{vL}
    v_lshlrev_b32 v{vw+1}, 4, v{vL}
    s_and_b32 s{sSoB}, s{sW}, 1
    s_lshl_b32 s{sSoB}, s{sSoB}, 9
    s_mov_b32 s{sStepB}, 2560
    s_lshr_b32 s{sI}, s{sW}, 1
    s_lshl_b32 s{sI}, s{sI}, 12
    s_add_u32 s{sI}, s{sI}, s{sSoB}
    s_add_u32 s{sI}, s{sI}, {F_B+8192}""")
    if early: l_pass(2, True, setup_rest, lead=lk)
    else:
        setup_rest(); k("s_barrier"); l_pass(2, False, lead=4)
    sp('p1l')
    q_src()
    k("s_barrier\ns_barrier\ns_barrier")
    l_pass(3, False)
    k("s_barrier")
    rl = k.lab("rl")
    att_progress(1, vT + 5, 8)
    if spe: prefetch_sp()
    if so: poison(False)
    k(f"s_mov_b32 s{sNeed}, s{sT64}")
    k.label(rl)
    emit_repack(k, sNeed, sW, vL, P_WO, P_WOUT, P_WS, 8, acc[0], L_A, gsync, coh="sc1", rot=orot)
    k(f"s_add_u32 s{sNeed}, s{sNeed}, 32\ns_waitcnt vmcnt(0)")
    gsync()
    k(f"s_cmp_lt_u32 s{sNeed}, 47\ns_cbranch_scc1 {rl}")
    if so: poison_done()
    nf = k.lab("nf")
    k(f"s_cmp_lg_u32 s{sW}, 0\ns_cbranch_scc1 {nf}\ns_lshl_b32 s{sT}, s{sT64}, 7\ns_add_u32 s{sT}, s{sT}, {FL_W}")
    gset(f"s{sT}", vT, vT + 2)
    k.label(nf)
    k.label(outq)
    sp('p1')
    k(f"s_setprio {lprio}")
    out_ids()
    k.srd(sB, P_WS, SZ_WF, WS_WF)
    if not spe: prefetch_sp()
    if zpf:
        k(f"s_lshl_b32 s{sT}, s{sW}, 13\ns_add_u32 s{sT}, s{sT}, {FL_Z}\nv_and_b32 v{vT}, 15, v{vL}\nv_min_u32 v{vT}, 13, v{vT}\nv_and_or_b32 v{vT}, v{vL}, 48, v{vT}\nv_lshlrev_b32 v{vT}, 7, v{vT}")
        gpoll(f"s{sT}", vT, vT + 2, None, 16)
        gsync()
        zl = k.lab("zl")
        k.srd(sO, P_WS, SZ_Z2F, WS_Z2F)
        k(f"s_bfe_u32 s{sT}, s2, 0x20003\ns_lshl_b32 s{sT}, s{sT}, 2\ns_add_u32 s{sT}, s{sT}, s{sW}\nv_lshlrev_b32 v{vT+8}, 7, v{vL}")
        k.label(zl)
        k(f"""s_mul_i32 s{sT+1}, s{sT}, 2428
        s_lshr_b32 s{sT+1}, s{sT+1}, 16
        s_mul_i32 s{sT+2}, s{sT+1}, 27
        s_sub_u32 s{sT+2}, s{sT}, s{sT+2}
        s_lshl_b32 s{sT+2}, s{sT+2}, 17
        s_add_u32 s{sT+1}, s{sT+1}, {16 - zpf}
        s_lshl_b32 s{sT+1}, s{sT+1}, 13
        s_add_u32 s{sT+1}, s{sT+1}, s{sT+2}
        buffer_load_dword v{vT+9}, v{vT+8}, s[{sO}:{sO+3}], s{sT+1} offen sc1
        s_add_u32 s{sT}, s{sT}, 16
        s_cmp_lt_u32 s{sT}, {27 * zpf}
        s_waitcnt vmcnt(1)
        s_cbranch_scc1 {zl}""")
    att_progress(wfat, vT, 32)
    k(f"v_lshlrev_b32 v{vDb}, 4, v{vL}\nv_lshlrev_b32 v{vT}, 7, v{vL}\ns_mov_b32 s{sT}, {FL_W}")
    gpoll(f"s{sT}", vT, vT + 2, 0xffffffff, 16)
    if so:
        k(f"s_lshl_b32 s{sT}, s{sW}, 13\ns_add_u32 s{sT}, s{sT}, {FL_Z}\nv_and_b32 v{vT}, 15, v{vL}\nv_min_u32 v{vT}, 13, v{vT}\nv_and_or_b32 v{vT}, v{vL}, 48, v{vT}\nv_lshlrev_b32 v{vT}, 7, v{vT}")
        gpoll(f"s{sT}", vT, vT + 2, None, 16)
        gsync()
    if 'w' in pf:
        wl = k.lab("wl")
        k(f"""s_bfe_u32 s{sT}, s2, 0x20003
        s_lshl_b32 s{sT}, s{sT}, 2
        s_add_u32 s{sT}, s{sT}, s{sW}
        s_lshl_b32 s{sT}, s{sT}, 13
        v_lshlrev_b32 v{vT+8}, 7, v{vL}""")
        k.label(wl)
        k(f"""buffer_load_dword v{vT+9}, v{vT+8}, s[{sB}:{sB+3}], s{sT} offen sc1
        s_add_u32 s{sT}, s{sT}, {16*8192}
        s_cmp_lt_u32 s{sT}, {SZ_WF}
        s_waitcnt vmcnt(0)
        s_cbranch_scc1 {wl}""")
    k(f"s_mul_i32 s{sT}, s{sW}, {24*1024}\ns_add_u32 s{sT}, s{sT}, {L_A}")
    for p in range(24):
        if p % 4 == 0:
            k(f"s_add_u32 m0, s{sT}, {1024*p}\ns_add_u32 s{sSoB}, m0, s{sWb}")
        k(f"buffer_load_dwordx4 v{vDb}, s[{sB}:{sB+3}], s{sSoB} offen offset:{1024*(p%4)} sc1 lds")

    k.label(outp)
    sp('outp')
    sWF, sOU, sXo = sB, sA, sO
    sTT, sAo, sXof = sSoA, sStepB, sM0A
    a = Alloc(8)
    oacc = a(20, 4)
    af = a(80, 4)
    wb = [a(20, 4), a(20, 4)]
    xr = a(10, 2)
    vQ = a(4, 2)
    vA16, vW0, vW1, vXo, vP = a(), a(), a(), a(), a()
    assert a.n <= 168, a.n
    k.srd(sOU, P_WS, SZ_OUF, WS_OUF)
    k.srd(sXo, P_X, SZ_Q)
    k(f"""s_lshl_b32 s{sTT}, s{sT64}, 2
    s_add_u32 s{sTT}, s{sTT}, s{sW}
    s_mul_i32 s{sAo}, s{sTT}, {47*1024}
    s_mul_i32 s{sXof}, s{sTT}, {16*1280}
    s_mul_i32 s{sT}, s{sG}, 160
    s_add_u32 s{sXof}, s{sXof}, s{sT}
    v_lshlrev_b32 v{vA16}, 4, v{vL}
    v_add_u32 v{vW0}, {L_W}, v{vA16}
    v_add_u32 v{vW1}, {L_W+51200}, v{vA16}
    v_lshlrev_b32 v{vP}, 7, v{vL}
    v_and_b32 v{vXo}, 15, v{vL}
    v_mul_u32_u24 v{vXo}, 1280, v{vXo}
    v_lshrrev_b32 v{vQ}, 4, v{vL}
    v_lshl_add_u32 v{vXo}, v{vQ}, 3, v{vXo}""")
    k(f"s_setprio {lprio}")
    sWs, sWd = sT + 1, sT + 2
    k(f"s_mul_i32 s37, s{sG}, 5\ns_lshr_b32 s37, s37, 1\ns_mul_i32 s38, s{sG}, 27\ns_lshr_b32 s38, s38, 3")
    sU = sNeed
    vm[:] = []
    ld = []
    def lop(tag, txt): ld.append(tag); k(txt)
    def lnewer(tag): return min(15, len(ld) - 1 - max(i for i, t in enumerate(ld) if t == tag))
    def wpieces(step0, lds0, npieces, tag):
        per = npieces // 4
        def setup():
            k(f"""s_mul_i32 s{sWs}, s{sG}, {47*5120}
            s_mul_i32 s{sWd}, s{sW}, {per*1024}
            s_add_u32 s{sWs}, s{sWs}, s{sWd}
            s_add_u32 s{sWs}, s{sWs}, {step0*5120}
            s_add_u32 s{sWd}, s{sWd}, {lds0}""")
        def piece(p):
            if p == 0: setup()
            if p % 4 == 0:
                k(f"s_add_u32 m0, s{sWd}, {1024*p}")
                k(f"s_add_u32 s{sWs}, s{sWs}, 4096" if p else "s_nop 0")
            k(vop(tag, f"buffer_load_dwordx4 v{vA16}, s[{sWF}:{sWF+3}], s{sWs} offen offset:{1024*(p%4)} sc1 lds"))
        return [lambda p=p: piece(p) for p in range(per)]
    def aloads(steps, regs):
        def one(st, r):
            if orot:
                lo_, n_, sr = (0, 20, 37) if st < 20 else (20, 27, 38)
                k(f"s_add_u32 s{sT}, s{sr}, {st-lo_}\ns_sub_u32 s39, s{sT}, {n_}\ns_cselect_b32 s{sT}, s{sT}, s39\ns_lshl_b32 s{sT}, s{sT}, 10\ns_add_u32 s{sT}, s{sT}, s{sAo}")
                if lo_: k(f"s_add_u32 s{sT}, s{sT}, {lo_*1024}")
            else:
                k(f"s_add_u32 s{sT}, s{sAo}, {st*1024}")
            k(vop(("a", st), f"buffer_load_dwordx4 {v(af+4*r,4)}, v{vA16}, s[{sOU}:{sOU+3}], s{sT} offen sc1"))
        return [lambda st=st, r=r: one(st, r) for st, r in zip(steps, regs)]
    def wread(slot, b, u, tag):
        if isinstance(slot, tuple): base, o = vA16, slot[1] * 5120
        else: base, o = (vW0, slot * 5120) if slot < 10 else (vW1, (slot - 10) * 5120)
        lop(tag, f"ds_read_b128 {v(wb[b]+4*u,4)}, v{base} offset:{o+1024*u}")
    first = [True]
    def arrive():
        k(f"s_add_u32 s{sCnt}, s{sCnt}, 1\nv_mov_b32 v{vFl}, s{sCnt}")
        lop("w", f"ds_write_b32 v{vXw}, v{vFl}")
    def peek(): lop("pk", f"ds_read_b32 v{vQ}, v{vXa}")
    def check():
        sl = k.lab("oslow"); ok = k.lab("ook")
        k(f"s_waitcnt lgkmcnt({lnewer('pk')})\nv_cmp_gt_u32 vcc, s{sCnt}, v{vQ}\ns_cbranch_vccnz {sl}")
        k.label(ok)
        cold2.append((sl, ok))
    cold2 = []; cold3 = []
    def compute(seq, side, hooks={}):
        for i in range(min(2, len(seq))):
            for u in range(5): wread(seq[i][0], i % 2, u, ("r", i))
        for i, (sl, st, r) in enumerate(seq):
            b = i % 2
            nv = newer({("a", st)})
            k(f"s_waitcnt vmcnt({min(63, nv)}) lgkmcnt({lnewer(('r', i))})")
            if so and st < 20:
                a0 = af + 4*r
                sl = k.lab("vslow"); ok = k.lab("vok")
                k(f"v_max3_u32 v{vQ+1}, v{a0}, v{a0+1}, v{a0+2}\nv_max_u32 v{vQ+1}, v{vQ+1}, v{a0+3}\nv_cmp_eq_u32 vcc, -1, v{vQ+1}\ns_cbranch_vccnz {sl}")
                k.label(ok)
                cold3.append((sl, ok, st, r))
            if i in hooks: hooks[i]()
            sd = list(side.get(i, []))
            for u in range(5):
                c = "0" if first[0] else v(oacc+4*u, 4)
                k(f"v_mfma_f32_16x16x32_bf16 {v(oacc+4*u,4)}, {v(wb[b]+4*u,4)}, {v(af+4*r,4)}, {c}")
                if i + 2 < len(seq): wread(seq[i + 2][0], b, u, ("r", i + 2))
                if sd and u in ((1, 3, 4, 2, 0)[:len(side.get(i, []))]): sd.pop(0)()
            assert not sd
            first[0] = False
    def deal(em, i0, per):
        return {i0 + j: em[per*j:per*(j+1)] for j in range((len(em) + per - 1) // per)}
    for u in range(5):
        k(f"buffer_load_dwordx2 {v(xr+2*u,2)}, v{vXo}, s[{sXo}:{sXo+3}], s{sXof} offen offset:{32*u}")
    smode = [False]
    def probe_load(mask, vd, kind):
        k(f"s_mov_b64 exec, {hx(mask)}")
        if smode[0]: k(vop("of", f"buffer_load_dword v{vd}, v{vP}, s[{sOU}:{sOU+3}], s{sU} offen sc1"))
        else: k(vop("of", gload(f"s{sU}", vP, vd)))
        k("s_mov_b64 exec, -1")
    def probe_check(mask, vd):
        k(f"s_mov_b64 exec, {hx(mask)}")
        if smode[0]: k(f"v_cmp_eq_u32 vcc, -1, v{vd}")
        else: gcheck(vd)
        k("s_mov_b64 exec, -1")
    def probe(mask, slp):
        l = k.lab("pb"); d = k.lab("pbd")
        k.label(l)
        probe_load(mask, vQ, 0)
        k("s_waitcnt vmcnt(0)")
        probe_check(mask, vQ)
        k(f"s_cbranch_vccz {d}\ns_sleep {slp}")
        again(l)
        k.label(d)
    k("s_setprio 3")
    if sent:
        k(f"v_lshlrev_b32 v{vP}, 10, v{vL}\ns_add_u32 s{sU}, s{sAo}, {20*1024+1020}")
        probe((1 << 27) - 1, 1)
        gsync()
        k(f"v_mul_u32_u24 v{vP}, 2560, v{vL}\ns_add_u32 s{sU}, s{sAo}, 2556")
    else:
        k(f"s_lshr_b32 s{sU}, s{sTT}, 1\ns_lshl_b32 s{sU}, s{sU}, 11\ns_add_u32 s{sU}, s{sU}, {FL_U}")
        probe(0x3fff, 2)
        sp('upr')
        gsync()
        if so:
            k(f"v_mul_u32_u24 v{vP}, 2560, v{vL}\ns_add_u32 s{sU}, s{sAo}, 2556")
            smode[0] = True
        else:
            k(f"s_lshl_b32 s{sU}, s{sT64}, 10\ns_add_u32 s{sU}, s{sU}, {FL_O}")
    sp('upoll')
    k(f"s_setprio {oprio}")
    ul = aloads(range(20, 40), range(20))
    for e in ul[:8]: e()
    side = deal(ul[8:], 0, 2)
    side.update(deal(aloads(range(40, 47), range(7)), 8, 4))
    side.update(deal(wpieces(39, L_W + 5120, 40, "b2"), 10, 2))
    def oflag():
        probe_load(0xff, vQ + 2, 1)
    side[16] = [oflag]
    compute([(1 + i, 20 + i, i) for i in range(19)], side, {7: arrive, 9: peek, 10: check})
    sp('o4')
    k(f"s_waitcnt vmcnt(0)")
    gsync()
    late = k.lab("olate"); join = k.lab("ojoin")
    probe_check(0xff, vQ + 2)
    k(f"s_cbranch_vccnz {late}")
    seq3 = [(1 + i, 39 + i, ([19] + list(range(7)))[i]) for i in range(8)]
    oregs = list(range(7, 19)) + [19] + list(range(7))
    save = list(vm)
    em = wpieces(12, L_W + 9 * 5120, 40, "b3") + aloads(range(12), oregs[:12])
    compute(seq3, deal(em, 0, 3))
    k.label(join)
    sp('c3')
    lds_wait(L_F + F_OC, vQ, vQ + 1, 1)
    k("s_setprio 3")
    ld[:] = []
    seq4 = [(("T", i), i, oregs[i]) for i in range(12)] + [(9 + i, 12 + i, oregs[12 + i]) for i in range(8)]
    def b3_arrive():
        k(f"s_waitcnt vmcnt({newer({'b3'})})"); arrive()
    compute(seq4, deal(aloads(range(12, 20), oregs[12:]), 0, 2), {6: b3_arrive, 8: peek, 9: check})
    vm_fast = None
    sp('odone')
    k.srd(sXo, P_OUT, SZ_Q)
    k(f"s_mov_b32 s{sT}, 0xffff0000")
    t = wb[0]
    for u in range(5):
        for hh in range(2):
            k(f"v_lshlrev_b32 v{t+4*u+2*hh}, 16, v{xr+2*u+hh}\nv_and_b32 v{t+4*u+2*hh+1}, s{sT}, v{xr+2*u+hh}")
    for i in range(20):
        k(f"v_add_f32 v{t+i}, v{t+i}, v{oacc+i}")
    for u in range(5):
        k(f"v_cvt_pk_bf16_f32 v{xr+2*u}, v{t+4*u}, v{t+4*u+1}\nv_cvt_pk_bf16_f32 v{xr+2*u+1}, v{t+4*u+2}, v{t+4*u+3}")
    for u in range(5):
        k(f"buffer_store_dwordx2 {v(xr+2*u,2)}, v{vXo}, s[{sXo}:{sXo+3}], s{sXof} offen offset:{32*u} {oc}")
    ne = k.lab("ne")
    k(f"s_or_b32 s{sT}, s2, s{sW}\ns_cbranch_scc1 {ne}\ns_mov_b32 s{sT}, {hx(FL_E)}")
    gset(f"s{sT}", vP, vQ)
    k.label(ne)
    k.endpgm(P_WS, 3)
    k.label(late)
    vm[:] = save; ld[:] = []
    compute(seq3, deal(wpieces(12, L_W + 9 * 5120, 40, "b3"), 0, 2))
    probe(0xff, 1)
    for e in aloads(range(12), oregs[:12]): e()
    k(f"s_branch {join}")
    for sl, ok, st, r in cold3:
        a0 = af + 4*r
        k.label(sl)
        k("s_sleep 1")
        aloads([st], [r])[0]()
        k(f"s_waitcnt vmcnt(0)\nv_max3_u32 v{vQ+1}, v{a0}, v{a0+1}, v{a0+2}\nv_max_u32 v{vQ+1}, v{vQ+1}, v{a0+3}\nv_cmp_eq_u32 vcc, -1, v{vQ+1}\ns_cbranch_vccz {ok}")
        again(sl)
        k(f"s_branch {ok}")
    for sl, ok in cold2:
        k.label(sl)
        spinw(vXa, f"s{sCnt}")
        k(f"s_branch {ok}")
    for sl, need, ok in cold:
        k.label(sl)
        spinw(vFa, need)
        k(f"s_branch {ok}")
    k.label(end)
    k("s_endpgm")
    return k
```

```python
from common import *
import os, math
from k2parts import emit_repack
import attn2, attn3
from attn2 import ATT_LDS, CH

MX = os.environ.get('MX', '')
SP = os.environ.get('SP', 'p1,p2,p3,p4').split(',')
QSCALE = math.log2(math.e) / math.sqrt(20.0)
GC0 = -2.0 * math.sqrt(2.0 / math.pi) * math.log2(math.e)
GC1 = GC0 * 0.044715

L_A = ATT_LDS
L_Z = L_A + 3 * 16384
L_W = L_A - 4096
L_CS = L_Z + 6 * 8192
L_F = L_CS + 2048
F_G, F_OC, F_XC, F_GO, F_XR, F_AUX = 32, 48, 52, 56, 60, 64
MEGA_LDS = L_F + 128
F_QS, F_STS, F_KVS, F_CS = 2 * CH, 2 * CH + 12288, 2 * CH + 12800, 2 * CH + 18176
F_B, F_S = ATT_LDS // 3, 20480
NAME = "parallel_sum__grouped_kv_mqa__mixer_gmlp__prompt_kernel"

def gen_mega(noatt=False, patz='33333333', pats='33333333', lprio=0, seam=True, oprio=0, pf='gis', ntx='', ntw='', repw='g', cpf=True, pslp=1, deep=False, tb=False, wfat=6, rprio=3, yph=3, thr=None, bal=0, ldot=True, xst=6, frot=0, orot=False, tsplit=32, prot=None, sent=False, oc='', lq=4, lk=5, xstk=8, bal33=True, noex=True, spe=True, two=True, ev=(22, 23, 24, 25, 28, 29), zpf=0, kvq=True, so=False):
    k = Kern(NAME, 256, 768, MEGA_LDS, 168, sgprs=100)
    P_X, P_WQ, P_WK, P_WV, P_WO = 44, 46, 48, 50, 52
    P_WIN, P_WSP, P_BSP, P_WOUT, P_OUT, P_DBG, P_WS = 56, 58, 60, 62, 64, 66, 68
    sWid, sTok, sBlk, sTB, sFG, sBud = 3, 4, 5, 6, 7, 70
    sT64, sHG = 98, 99
    sNo = 96
    sFl = 72
    vL = 1
    end = k.lab("end"); gem = k.lab("gem")
    k(f"s_cmp_ge_u32 s2, 256\ns_cbranch_scc1 {end}")
    k.stamp(0); k.stamp_rt(5)
    k(f"s_load_dwordx8 s[{P_X}:{P_X+7}], s[0:1], {KA_X}\ns_load_dwordx2 s[{P_WO}:{P_WO+1}], s[0:1], {KA_WO}")
    k(f"s_load_dwordx8 s[{P_WIN}:{P_WIN+7}], s[0:1], {KA_WIN}\ns_load_dwordx4 s[{P_OUT}:{P_OUT+3}], s[0:1], {KA_OUT}\ns_load_dwordx2 s[{P_WS}:{P_WS+1}], s[0:1], {KA_WS}")
    k(f"""v_lshrrev_b32 v2, 6, v0
    v_and_b32 v1, 63, v0
    v_readfirstlane_b32 s{sWid}, v2
    v_and_b32 v2, 31, v0
    v_lshlrev_b32 v2, 2, v2
    v_add_u32 v2, {L_F}, v2
    v_mov_b32 v3, 0
    ds_write_b32 v2, v3
    v_and_b32 v2, 3, v0
    v_lshlrev_b32 v2, 8, v2
    v_add_u32 v2, {L_CS}, v2
    ds_write_b32 v2, v3
    s_and_b32 s{sTB}, s2, 7
    s_lshl_b32 s{sBlk}, s{sTB}, 5
    s_lshr_b32 s{sTok}, s2, 3
    s_add_u32 s{sBlk}, s{sBlk}, s{sTok}
    s_lshl_b32 s{sTok}, s{sBlk}, 3
    s_add_u32 s{sTok}, s{sTok}, s{sWid}
    s_lshl_b32 s{sTB}, s{sTB}, 1
    s_bfe_u32 s{sFG}, s2, 0x10003
    s_add_u32 s{sTB}, s{sTB}, s{sFG}
    s_lshr_b32 s{sFG}, s2, 4
    s_and_b32 s{sT64}, s2, 7
    s_lshl_b32 s{sT64}, s{sT64}, 2
    s_bfe_u32 s{sHG}, s2, 0x20003
    s_add_u32 s{sT64}, s{sT64}, s{sHG}
    s_lshr_b32 s{sHG}, s2, 5
    s_mov_b32 s{sBud}, 400000
    s_waitcnt lgkmcnt(0)""")
    k.srd(sFl, P_WS, SZ_FLAG, WS_FLAG)
    k(f"s_load_dwordx2 s[{sNo}:{sNo+1}], s[{sFl}:{sFl+1}], {hx(FL_E)}")
    k(f"s_cmp_ge_u32 s{sWid}, 8\ns_cbranch_scc1 {gem}")

    def again(l):
        k(f"s_sub_u32 s{sBud}, s{sBud}, 1\ns_cbranch_scc0 {l}")
    def lds_wait(addr, va, vd, slp=1):
        val = {F_XR: 8, F_GO: 4, F_OC: 10, F_XC: 1}[addr - L_F]
        l = k.lab("lw"); d = k.lab("lwd")
        k(f"v_mov_b32 v{va}, {addr}")
        k.label(l)
        k(f"ds_read_b32 v{vd}, v{va}\ns_waitcnt lgkmcnt(0)\nv_cmp_gt_u32 vcc, {val}, v{vd}\ns_cbranch_vccz {d}\ns_sleep {slp}")
        again(l)
        k.label(d)
    def lds_set(addr, va, vd):
        k(f"v_mov_b32 v{va}, {addr}\nv_mov_b32 v{vd}, 1\nds_write_b32 v{va}, v{vd}")
    def gcheck(vd):
        k(f"v_cmp_ne_u64 vcc, s[{sNo}:{sNo+1}], {v(vd,2)}")
    def gload(soff, voff, vd):
        return f"buffer_load_dwordx2 {v(vd,2)}, v{voff}, s[{sFl}:{sFl+3}], {soff} offen sc1"
    def gpoll(soff, voff, vd, mask, slp):
        l = k.lab("pl"); d = k.lab("pd")
        if mask is not None: k(f"s_mov_b64 exec, {hx(mask)}")
        k.label(l)
        k(gload(soff, voff, vd))
        k("s_waitcnt vmcnt(0)")
        gcheck(vd)
        k(f"s_cbranch_vccz {d}\ns_sleep {slp}")
        again(l)
        k.label(d)
        if mask is not None: k("s_mov_b64 exec, -1")
    def gset(soff, va, vd):
        k(f"""v_mov_b32 v{vd}, s{sNo}
        v_mov_b32 v{vd+1}, s{sNo+1}
        v_lshlrev_b32 v{va}, 3, v{vL}
        s_mov_b64 exec, 0xffff
        buffer_store_dwordx2 {v(vd,2)}, v{va}, s[{sFl}:{sFl+3}], {soff} offen sc1
        s_mov_b64 exec, -1""")
    def spoll(offs, s0, slp=1):
        l = k.lab("sp"); r = k.lab("spr"); d = k.lab("spd")
        k.label(l)
        for i, (so, im) in enumerate(offs):
            k(f"s_load_dwordx2 s[{s0+2*i}:{s0+2*i+1}], s[{sFl}:{sFl+1}], s{so} offset:{hx(im)} glc")
        k("s_waitcnt lgkmcnt(0)")
        for i in range(len(offs)):
            k(f"s_cmp_eq_u64 s[{s0+2*i}:{s0+2*i+1}], s[{sNo}:{sNo+1}]")
            k(f"s_cbranch_scc0 {r}" if i + 1 < len(offs) else f"s_cbranch_scc1 {d}")
        k.label(r)
        k(f"s_sleep {slp}")
        again(l)
        k.label(d)
    def nonce():
        k(f"s_waitcnt lgkmcnt(0)\ns_add_u32 s{sNo}, s{sNo}, 1")

    sX, sO, sT, sMask = 8, 12, 16, 24
    raw, f, st, vA = 4, 12, 28, 30
    nz = k.lab("nz")
    skipA = k.lab("skipA"); skipG = k.lab("skipG")
    if "skip" in MX and "gonly" in MX:
        k("s_barrier"); k.endpgm(P_WS, 4)
    if "skip" in MX: k(f"s_barrier\ns_mov_b32 s27, 1\ns_branch {skipA}")
    k.srd(sX, P_X, SZ_Q)
    k(f"s_mul_i32 s{sT}, s{sTok}, 1280\nv_lshlrev_b32 v{vA}, 4, v{vL}\ns_mov_b32 s{sMask}, 0xffff0000")
    for i in range(4, 8):
        k(f"v_mov_b32 v{raw+i}, 0")
    k(f"buffer_load_dwordx4 {v(raw,4)}, v{vA}, s[{sX}:{sX+3}], s{sT} offen {ntx}")
    k("s_mov_b64 exec, 0xffff")
    k(f"buffer_load_dwordx4 {v(raw+4,4)}, v{vA}, s[{sX}:{sX+3}], s{sT} offen offset:1024 {ntx}")
    k("s_mov_b64 exec, -1")
    def touch(idx, nq):
        k(f"s_mul_i32 s{sT+2}, s{idx}, {nq*128}\ns_lshl_b32 s{sT+3}, s{idx}, 7\ns_mov_b64 exec, {hx((1 << nq) - 1)}")
        k(f"buffer_load_dword v{vA+2}, v{vA+1}, s[28:31], s{sT+2} offen\ns_mov_b64 exec, 1")
        k(f"buffer_load_dword v{vA+2}, v{vA+1}, s[32:35], s{sT+3} offen")
        k(f"buffer_load_dword v{vA+2}, v{vA+1}, s[36:39], s{sT+3} offen\ns_mov_b64 exec, -1")
    k(f"v_lshlrev_b32 v{vA+1}, 7, v{vL}\ns_and_b32 s{sT+1}, s{sTok}, 255")
    k.srd(28, P_WQ, 640*1280); k.srd(32, P_WK, 25600); k.srd(36, P_WV, 25600)
    if 'g' in pf and kvq:
        k(f"s_lshl_b32 s{sT+1}, s2, 3\ns_add_u32 s{sT+1}, s{sT+1}, s{sWid}")
        touch(sT + 1, 4)
    elif 'g' in pf: touch(sTok, 4)
    elif 'x' in pf: touch(sT + 1, 25)
    k.srd(sO, P_WS, SZ_XN, WS_XN)
    nonce()
    assert not ('g' in pf and 'x' in pf) and 'b' not in pf
    sXt = 20
    def xn_compute(kvg=False):
        k("s_waitcnt vmcnt(3)" if ('x' in pf or 'g' in pf) else "s_waitcnt vmcnt(0)")
        k(f"v_mov_b32 v{st}, 0\nv_mov_b32 v{st+1}, 0\nv_mov_b32 v{vA+3}, 0x3f803f80")
        for i in range(8):
            k(f"v_dot2c_f32_bf16 v{st}, v{vA+3}, v{raw+i}\nv_dot2c_f32_bf16 v{st+1}, v{raw+i}, v{raw+i}")
        un = []
        for i in range(8):
            un += [f"v_lshlrev_b32 v{f+2*i}, 16, v{raw+i}", f"v_and_b32 v{f+2*i+1}, s{sMask}, v{raw+i}"]
        for x in un[:4]: k(x)
        j = 4
        for m in ("row_shr:1", "row_shr:2", "row_shr:4", "row_shr:8"):
            for i in range(2):
                k(f"v_add_f32_dpp v{st+i}, v{st+i}, v{st+i} {m} row_mask:0xf bank_mask:0xf bound_ctrl:0")
            k(un[j]); k(un[j+1]); j += 2
        for m in ("row_bcast:15 row_mask:0xa", "row_bcast:31 row_mask:0xc"):
            for i in range(2):
                k(f"v_add_f32_dpp v{st+i}, v{st+i}, v{st+i} {m} bank_mask:0xf")
            k(un[j]); k(un[j+1]); j += 2
        k(f"""v_mul_f32 v{st}, {fl(1.0/640)}, v{st}
        v_mul_f32 v{st+1}, {fl(1.0/640)}, v{st+1}
        v_fma_f32 v{st+1}, -v{st}, v{st}, v{st+1}
        v_max_f32 v{st+1}, 0, v{st+1}
        v_add_f32 v{st+1}, {fl(1e-5)}, v{st+1}
        v_rsq_f32 v{st+1}, v{st+1}
        s_mul_i32 s{sXt+2}, s{sTok}, {XN_ST}
        v_mul_f32 v{st}, v{st}, v{st+1}
        s_nop 0
        v_readlane_b32 s{sXt}, v{st+1}, 63
        v_readlane_b32 s{sXt+1}, v{st}, 63
        s_nop 1
        v_mov_b32 v{st}, s{sXt+1}""")
        for i in range(0, 16, 2):
            k(f"v_pk_fma_f32 {v(f+i,2)}, {v(f+i,2)}, s[{sXt}:{sXt+1}], {v(st,2)} op_sel_hi:[1,0,0] neg_lo:[0,0,1] neg_hi:[0,0,1]")
        for i in range(8):
            k(f"v_cvt_pk_bf16_f32 v{raw+i}, v{f+2*i}, v{f+2*i+1}")
        k(f"buffer_store_dwordx4 {v(raw,4)}, v{vA}, s[{sO}:{sO+3}], s{sXt+2} offen sc1")
        k("s_mov_b64 exec, 0xffff")
        k(f"buffer_store_dwordx4 {v(raw+4,4)}, v{vA}, s[{sO}:{sO+3}], s{sXt+2} offen offset:1024 sc1")
        if 'i' in pf and kvq and not kvg:
            k.srd(sO, P_WIN, 640*3456)
            k(f"s_lshl_b32 s{sXt}, s2, 3\ns_add_u32 s{sXt}, s{sXt}, s{sWid}\ns_mul_i32 s{sXt}, s{sXt}, {10*128}\ns_mov_b64 exec, 0x3ff")
            k(f"buffer_load_dword v{vA+2}, v{vA+1}, s[{sO}:{sO+3}], s{sXt} offen")
        elif 'i' in pf and not kvq:
            k.srd(sO, P_WIN, 640*3456)
            k(f"s_mul_i32 s{sXt}, s{sTok}, {9*128}\ns_mov_b64 exec, 0x1ff")
            k(f"buffer_load_dword v{vA+2}, v{vA+1}, s[{sO}:{sO+3}], s{sXt} offen")
        k("s_mov_b64 exec, -1")
    a = Alloc(36)
    fa = a(16, 4); fc = a(4, 4); fsx = a(4, 4)
    fX = [a(16, 4), a(16, 4)]; fW = [a(16, 4), a(16, 4)]
    fXa = a(4, 1); fWa = a()
    fN, fH = a(), a()
    fO = a(2, 2); fT = a(12, 4); fK = a(2, 2); fKa = a()
    assert a.n <= 168, a.n
    sI, sD, sKd, sB0 = 25, 26, 27, 28
    QS, STS, KVS = F_QS, F_STS, F_KVS
    k(f"""v_and_b32 v{fN}, 31, v{vL}
    v_lshrrev_b32 v{fH}, 5, v{vL}
    v_mov_b32 v{fO}, 0x3f803f80
    v_mov_b32 v{fO+1}, 0x3f803f80
    s_mov_b32 s{sKd}, 0
    s_lshl_b32 s{sT}, s{sWid}, 7
    v_lshl_add_u32 v{fKa}, v{vL}, 10, s{sT}""")
    def f_addr(rowb, woff):
        k(f"""v_bfe_u32 v{fT}, v{fN}, 1, 3
        v_xor_b32 v{fT}, v{fT}, v{fH}
        s_and_b32 s{sT}, s{sWid}, 1
        s_lshl_b32 s{sT}, s{sT}, 12
        s_add_u32 s{sT}, s{sT}, {F_B}
        v_lshl_add_u32 v{fT+1}, v{fN}, 7, s{sT}""")
        for q in range(4):
            k(f"v_xor_b32 v{fT+2}, {2*q}, v{fT}\nv_lshl_add_u32 v{fXa+q}, v{fT+2}, 4, v{fT+1}")
        k(f"""v_bfe_u32 v{fT}, v{vL}, 2, 2
        v_lshl_add_u32 v{fT}, v{fH}, 3, v{fT}
        v_mul_u32_u24 v{fT}, {rowb}, v{fT}
        v_bfe_u32 v{fT+1}, v{vL}, 4, 1
        v_lshl_add_u32 v{fT}, v{fT+1}, 5, v{fT}
        v_and_b32 v{fT+1}, 3, v{vL}
        v_lshl_add_u32 v{fT}, v{fT+1}, 3, v{fT}
        s_add_u32 s{sT}, {woff}, {F_B+8192}
        v_add_u32 v{fWa}, s{sT}, v{fT}""")
        for r in list(range(fa, fa + 16)) + list(range(fc, fc + 4)) + list(range(fsx, fsx + 4)):
            k(f"v_mov_b32 v{r}, 0")
    def f_pass(kind, rowb, first):
        uo = (0, 64, 128) if rowb == 192 else (0, 4096)
        xs_ = xst if rowb == 192 else xstk
        cf = lambda b: fX[0] + 32 * b
        def rd(b):
            r = []
            if kind == 'i': return r
            if kind == 'x':
                for u, o in enumerate(uo):
                    for q in range(2):
                        d = cf(b) + 8*u + 4*q
                        r.append(f"ds_read_b64_tr_b16 {v(d,2)}, v{fWa} offset:{o+16*rowb*q}")
                        r.append(f"ds_read_b64_tr_b16 {v(d+2,2)}, v{fWa} offset:{o+16*rowb*q+4*rowb}")
                return r
            for q in range(4):
                r.append(f"ds_read_b128 {v(fX[b]+4*q,4)}, v{fXa+q}")
                r.append(f"ds_read_b64_tr_b16 {v(fW[b]+4*q,2)}, v{fWa} offset:{16*rowb*q}")
                r.append(f"ds_read_b64_tr_b16 {v(fW[b]+4*q+2,2)}, v{fWa} offset:{16*rowb*q+4*rowb}")
            return r
        def adv():
            if kind == 'i': return
            k(f"s_mov_b32 s{sD}, {F_S}\ns_cmp_eq_u32 s{sI}, 5\ns_cmov_b32 s{sD}, {hx(-5*F_S)}")
            if kind != 'x':
                for q in range(4): k(f"v_add_u32 v{fXa+q}, s{sD}, v{fXa+q}")
            k(f"v_add_u32 v{fWa}, s{sD}, v{fWa}")
        def work(b, r):
            w = []
            if kind in 'ns':
                for q in range(4):
                    X, W = fX[b] + 4*q, fW[b] + 4*q
                    A_, B_ = (X, W) if kind == 's' else (W, X)
                    w.append(f"v_mfma_f32_32x32x16_bf16 {v(fa,16)}, {v(A_,4)}, {v(B_,4)}, {v(fa,16)}")
                for x in interleave(w[:3], r) + w[3:]: k(x)
            elif kind == 'x':
                for x in r: k(x)
                for j in range(4):
                    for u in range(len(uo)):
                        k(f"v_mfma_f32_4x4x4_16b_bf16 {v(fa+4*u,4)}, {v(fO,2)}, {v(cf(b)+8*u+2*j,2)}, {v(fa+4*u,4)}")
                    if len(uo) == 2: k("s_nop 0")
        loop = k.lab("fl"); nb = k.lab("fnb"); e1 = k.lab("fe1"); e2 = k.lab("fe2"); e3 = k.lab("fe3")
        n = len(rd(0))
        k(f"s_mov_b32 s{sI}, 0\ns_barrier")
        for x in rd(0): k(x)
        k.label(loop)
        adv()
        if first:
            k(f"s_cmp_lg_u32 s{sI}, {xs_}\ns_cbranch_scc1 {e1}\ns_waitcnt vmcnt({1 if ('i' in pf and not (kvq and rowb == 40)) else 0})")
            k.label(e1)
        k("s_waitcnt lgkmcnt(0)\ns_barrier")
        work(0, rd(1))
        if first and kind == 'x':
            k(f"s_cmp_lg_u32 s{sI}, {xs_}\ns_cbranch_scc1 {e2}\ns_cmp_lg_u32 s{sWid}, 7\ns_cbranch_scc1 {e2}\ns_lshl_b32 s{sT}, s{sBlk}, 7")
            gset(f"s{sT}", fT + 4, fT + 6)
            k.label(e2)
        k(f"s_add_u32 s{sI}, s{sI}, 1")
        adv()
        k(f"s_cmp_eq_u32 s{sI}, 9\ns_waitcnt lgkmcnt(0)\ns_cbranch_scc1 {nb}\ns_barrier")
        k.label(nb)
        work(1, rd(0))
        if rowb == 192:
            k(f"s_cmp_lg_u32 s{sI}, 7\ns_cbranch_scc1 {e3}\ns_mov_b32 s{sT}, {FL_Q}\ns_mov_b64 exec, 0xff")
            k(gload(f"s{sT}", fKa, fK))
            k("s_mov_b64 exec, -1")
            k.label(e3)
        k(f"s_add_u32 s{sI}, s{sI}, 1\ns_cmp_lt_u32 s{sI}, 10\ns_cbranch_scc1 {loop}")
        k("s_waitcnt lgkmcnt(0)")
    def kv_try():
        e = k.lab("kt")
        k("s_waitcnt vmcnt(0)\ns_mov_b64 exec, 0xff")
        gcheck(fK)
        k(f"s_mov_b64 exec, -1\ns_cbranch_vccnz {e}\ns_mov_b32 s{sKd}, 1")
        kv_first()
        k.label(e)
    def kv_first():
        k.srd(sB0, P_WS, SZ_KVG, WS_KV)
        k(f"""s_mul_i32 s{sT}, s{sWid}, {KV_G}
        s_mul_i32 m0, s{sWid}, {KV_TILE}
        v_lshlrev_b32 v{fT+8}, 4, v{vL}
        buffer_load_dwordx4 v{fT+8}, s[{sB0}:{sB0+3}], s{sT} offen sc1 lds
        buffer_load_dwordx4 v{fT+8}, s[{sB0}:{sB0+3}], s{sT} offen offset:1024 sc1 lds
        buffer_load_dwordx4 v{fT+8}, s[{sB0}:{sB0+3}], s{sT} offen offset:{KV_TILE-1024} sc1 lds""")
    def f_stats(nu):
        k(f"""s_and_b32 s{sT}, s{sWid}, 1
        s_lshl_b32 s{sT}, s{sT}, 2
        s_add_u32 s{sT}, s{sT}, {F_CS}
        v_lshlrev_b32 v{fT}, 4, v{fN}
        v_lshl_add_u32 v{fT}, v{fH}, 3, v{fT}
        v_add_u32 v{fT}, s{sT}, v{fT}""")
        for u in range(nu): k(f"ds_write_b32 v{fT}, v{fa+4*u} offset:{512*u}")
        k("s_waitcnt lgkmcnt(0)")
    def f_fold(swap):
        k(f"""s_lshr_b32 s{sT}, s{sWid}, 1
        s_lshl_b32 s{sT}, s{sT}, 9
        s_add_u32 s{sT}, s{sT}, {F_CS}
        v_lshlrev_b32 v{fT}, 4, v{fN}
        v_lshl_add_u32 v{fT}, v{fH}, 3, v{fT}
        v_add_u32 v{fT}, s{sT}, v{fT}
        ds_read_b64 {v(fc,2)}, v{fT}
        s_and_b32 s{sT}, s{sWid}, 1
        s_lshl_b32 s{sT}, s{sT}, 7
        s_add_u32 s{sT}, s{sT}, {STS}
        v_lshl_add_u32 v{fT}, v{fN}, 2, s{sT}
        ds_read_b32 v{fT+4}, v{fT}
        ds_read_b32 v{fT+5}, v{fT} offset:256
        s_waitcnt lgkmcnt(2)
        v_add_f32 v{fc+2}, v{fc}, v{fc+1}
        v_and_b32 v{fc+3}, s{sMask}, v{fc+2}
        v_sub_f32 v{fc+2}, v{fc+2}, v{fc+3}
        v_cvt_pk_bf16_f32 v{fc}, v{fc+3}, v{fc+3}
        v_cvt_pk_bf16_f32 v{fc+1}, v{fc+2}, 0
        s_waitcnt lgkmcnt(0)
        v_and_b32 v{fT+2}, s{sMask}, v{fT+4}
        v_sub_f32 v{fT+3}, v{fT+4}, v{fT+2}
        v_cvt_pk_bf16_f32 v{fT+6}, -v{fT+2}, -v{fT+3}
        v_cvt_pk_bf16_f32 v{fT+7}, -v{fT+2}, 0
        s_nop 1""")
        A_, B_ = (fT + 6, fc) if swap else (fc, fT + 6)
        k(f"v_mfma_f32_32x32x8_bf16 {v(fa,16)}, {v(A_,2)}, {v(B_,2)}, {v(fa,16)}")
    qp = k.lab("qp"); kx = k.lab("kx"); ki = k.lab("ki"); kvv = k.lab("kvv"); kj = k.lab("kj"); q1 = k.lab("q1"); q1x = k.lab("q1x"); qe = k.lab("qe"); qj = k.lab("qj"); q2x = k.lab("q2x")
    pk = fX[0]
    k(f"s_cmp_lg_u32 s{sHG}, 7\ns_cbranch_scc1 {q1}")
    k(f"""s_lshr_b32 s{sT+1}, s{sWid}, 1
    s_lshl_b32 s{sT+1}, s{sT+1}, 12
    s_and_b32 s{sT+3}, s{sWid}, 1
    s_mul_i32 s{sT+2}, s{sT+3}, {32*40}
    s_cmp_ge_u32 s{sWid}, 6
    s_cselect_b32 s{sT+1}, s{sT+2}, s{sT+1}
    s_mul_i32 s{sT+3}, s{sT+3}, {KV_G}
    s_add_u32 s{sT+3}, s{sT+3}, {KVS}""")
    f_addr(40, f"s{sT+1}")
    xn_compute(True)
    k(f"s_cmp_ge_u32 s{sWid}, 6\ns_cbranch_scc1 {kx}\ns_cmp_ge_u32 s{sWid}, 4\ns_cbranch_scc1 {ki}\ns_cmp_ge_u32 s{sWid}, 2\ns_cbranch_scc1 {kvv}")
    f_pass('n', 40, True)
    k("s_barrier")
    f_fold(False)
    k(f"v_lshl_add_u32 v{fT}, v{vL}, 4, s{sT+3}\nv_lshl_add_u32 v{fT+1}, v{fN}, 2, s{sT+3}\ns_nop 7\ns_nop 1")
    for i in range(12): k(f"v_mul_f32 v{fa+i}, v{fT+5}, v{fa+i}")
    for i in range(6): k(f"v_cvt_pk_bf16_f32 v{pk+i}, v{fa+2*i}, v{fa+2*i+1}")
    k(f"""v_permlane32_swap_b32 v{pk}, v{pk+2}
    v_permlane32_swap_b32 v{pk+1}, v{pk+3}
    ds_write_b128 v{fT}, {v(pk,4)} offset:{KV_KA}
    s_mov_b32 exec_hi, 0
    ds_write_b32 v{fT+1}, v{pk+4} offset:{KV_KB}
    ds_write_b32 v{fT+1}, v{pk+5} offset:{KV_KB+128}
    s_mov_b64 exec, -1
    s_branch {kj}""")
    k.label(kvv)
    f_pass('s', 40, True)
    k("s_barrier")
    f_fold(True)
    k(f"v_lshl_add_u32 v{fT}, v{fH}, 4, s{sT}")
    for j in range(4): k(f"ds_read_b128 {v(fW[0]+4*j,4)}, v{fT} offset:{256+32*j}")
    k(f"""v_mul_u32_u24 v{fT+1}, 336, v{fH}
    v_lshl_add_u32 v{fT+1}, v{fN}, 4, v{fT+1}
    v_add_u32 v{fT+1}, s{sT+3}, v{fT+1}
    v_cmp_eq_u32 vcc, 20, v{fN}
    s_nop 3
    s_waitcnt lgkmcnt(0)""")
    for i in range(16): k(f"v_mul_f32 v{fa+i}, v{fW[0]+i}, v{fa+i}")
    for i in range(8): k(f"v_cvt_pk_bf16_f32 v{pk+i}, v{fa+2*i}, v{fa+2*i+1}")
    for i in range(8): k(f"v_cndmask_b32 v{pk+i}, v{pk+i}, v{fO}, vcc")
    k(f"""s_mov_b32 exec_lo, 0x1fffff
    s_mov_b32 exec_hi, 0x1fffff
    ds_write_b128 v{fT+1}, {v(pk,4)} offset:{KV_V}
    ds_write_b128 v{fT+1}, {v(pk+4,4)} offset:{KV_V+672}
    s_mov_b64 exec, -1
    s_branch {kj}""")
    k.label(ki)
    f_pass('i', 40, True)
    k(f"s_barrier\ns_branch {kj}")
    k.label(kx)
    f_pass('x', 40, True)
    f_stats(2)
    k("s_barrier\ns_barrier")
    k.srd(sB0, P_WS, SZ_KVG, WS_KV)
    k(f"v_lshlrev_b32 v{fT+1}, 4, v{vL}\nv_add_u32 v{fT}, s{sT+3}, v{fT+1}")
    for i in range(3): k(f"ds_read_b128 {v(pk+4*i,4)}, v{fT} offset:{1024*i}")
    k(f"""s_lshl_b32 s{sT}, s{sT64}, 1
    s_and_b32 s{sT+1}, s{sWid}, 1
    s_add_u32 s{sT}, s{sT}, s{sT+1}
    s_mul_i32 s{sT+1}, s{sT}, {KV_G}
    s_waitcnt lgkmcnt(0)
    buffer_store_dwordx4 {v(pk,4)}, v{fT+1}, s[{sB0}:{sB0+3}], s{sT+1} offen sc1
    buffer_store_dwordx4 {v(pk+4,4)}, v{fT+1}, s[{sB0}:{sB0+3}], s{sT+1} offen offset:1024 sc1
    s_mov_b32 exec_hi, 0xff
    buffer_store_dwordx4 {v(pk+8,4)}, v{fT+1}, s[{sB0}:{sB0+3}], s{sT+1} offen offset:2048 sc1
    s_mov_b64 exec, -1
    s_lshl_b32 s{sT}, s{sT}, 7
    s_add_u32 s{sT}, s{sT}, {FL_Q}
    s_waitcnt vmcnt(0)""")
    gset(f"s{sT}", fT + 4, fT + 6)
    k("s_barrier")
    k(f"s_and_b32 s{sT+1}, s{sWid}, 1\ns_mul_i32 s{sT+1}, s{sT+1}, {32*192}")
    f_addr(192, f"s{sT+1}")
    f_pass('x', 192, False)
    k(f"s_branch {q2x}")
    k.label(kj)
    k("s_waitcnt lgkmcnt(0)\ns_barrier\ns_barrier")
    k(f"s_lshr_b32 s{sT+1}, s{sWid}, 1\ns_lshl_b32 s{sT+1}, s{sT+1}, 6")
    f_addr(192, f"s{sT+1}")
    f_pass('n', 192, False)
    k(f"s_branch {qe}")
    k.label(q1)
    k(f"""s_lshr_b32 s{sT+1}, s{sWid}, 1
    s_lshl_b32 s{sT+1}, s{sT+1}, 6
    s_and_b32 s{sT+2}, s{sWid}, 1
    s_mul_i32 s{sT+2}, s{sT+2}, {32*192}
    s_cmp_ge_u32 s{sWid}, 6
    s_cselect_b32 s{sT+1}, s{sT+2}, s{sT+1}""")
    f_addr(192, f"s{sT+1}")
    xn_compute()
    k(f"s_cmp_ge_u32 s{sWid}, 6\ns_cbranch_scc1 {q1x}")
    f_pass('n', 192, True)
    k.label(qe)
    k("s_barrier")
    f_fold(False)
    kv_try()
    k(f"""v_mul_f32 v{fT+5}, {fl(QSCALE)}, v{fT+5}
    s_and_b32 s{sT}, s{sWid}, 1
    s_mul_i32 s{sT}, s{sT}, {32*192}
    s_lshr_b32 s{sT+1}, s{sWid}, 1
    s_lshl_b32 s{sT+1}, s{sT+1}, 6
    s_add_u32 s{sT}, s{sT}, s{sT+1}
    s_add_u32 s{sT}, s{sT}, {QS}
    v_mul_u32_u24 v{fT}, 192, v{fN}
    v_lshl_add_u32 v{fT}, v{fH}, 3, v{fT}
    v_add_u32 v{fT}, s{sT}, v{fT}
    s_nop 1""")
    for i in range(16): k(f"v_mul_f32 v{fa+i}, v{fT+5}, v{fa+i}")
    for i in range(8): k(f"v_cvt_pk_bf16_f32 v{pk+i}, v{fa+2*i}, v{fa+2*i+1}")
    for j in range(4): k(f"ds_write_b64 v{fT}, {v(pk+2*j,2)} offset:{16*j}")
    k(f"s_waitcnt lgkmcnt(0)\ns_branch {qj}")
    k.label(q1x)
    f_pass('x', 192, True)
    k.label(q2x)
    f_stats(3)
    k("s_barrier")
    kv_try()
    k.label(qj)
    k.label(skipA)
    k(f"s_mov_b32 s40, s{sKd}\nv_mov_b32 v104, v{fKa}")
    def att_wait(step):
        t = 104
        d = k.lab("kvd")
        k(f"s_cmp_lg_u32 s40, 0\ns_cbranch_scc1 {d}\ns_mov_b32 s41, {FL_Q}")
        gpoll("s41", t, t + 2, 0xff, pslp)
        step()
        k.label(d)
    def att_tail(step):
        t = 104
        def pieces(p0, p1):
            for p in range(p0, p1):
                if p % 4 == 0:
                    k(f"s_mov_b32 m0, {1024*p}")
                    k("s_add_u32 s40, s40, 4096" if p else "s_nop 0")
                k(f"buffer_load_dwordx4 v{t}, s[28:31], s40 offen offset:{1024*(p%4)} sc1 lds")
        if step == 0:
            k(f"v_and_b32 v{t}, 31, v{vL}\nv_lshlrev_b32 v{t}, 7, v{t}\ns_mov_b32 s40, {FL_W}")
            k(gload("s40", t, t + 2))
            if so: lds_wait(L_F + F_XC, t + 4, t + 5, 2)
        elif "skip" in MX:
            pass
        elif step == 1:
            ok = k.lab("wfok")
            k("s_waitcnt vmcnt(12)")
            gcheck(t + 2)
            k(f"s_cbranch_vccz {ok}")
            gpoll("s40", t, t + 2, None, 4)
            k.label(ok)
            k.srd(28, P_WS, SZ_WF, WS_WF)
            k(f"s_lshr_b32 s40, s2, 5\ns_mul_i32 s40, s40, {47*5120}\nv_lshlrev_b32 v{t}, 4, v{vL}")
            pieces(0, tsplit)
            if not so: k(f"s_waitcnt vmcnt({tsplit})")
        else:
            pieces(tsplit, 60)
            k(f"v_mov_b32 v{t}, {L_F+F_OC}\nv_mov_b32 v{t+1}, 10\ns_waitcnt vmcnt(0)\nds_write_b32 v{t}, v{t+1}")
    n = (attn3 if two else attn2).emit_attn(k, sT64, sHG, sWid, vL, P_WS, 8, 4, 0, L_F, mega=att_wait, budget=sBud, gset=(None if so else gset), tb=tb, tail=att_tail, yph=yph, bal=bal)
    assert n <= 104, n

    k.label(gem)
    def sp(name):
        if name in SP: k.stamp(1 + SP.index(name))
    sA, sB, sO = 8, 12, 16
    sW, sCnt, sSoA, sBaseA, sSoB, sStepB, sM0A, sM0B, sMask, sNeed, sI = range(20, 31)
    sT = 32
    sTb, sM0F, sSoF = 40, 31, 71
    a = Alloc(2)
    vFw, vFa, vFl, vXw, vXa = a(), a(), a(), a(), a()
    vOne = a()
    acc = [a(16, 4), a(16, 4)]
    fs = [[[a(4, 4) for j in range(3)] for q in range(2)] for b in range(2)]
    z1 = a(16, 4); z2 = a(16, 4)
    vD = a(4, 1); vDb = a(2, 1)
    vWa = a(2, 1); vZa = a(4, 1)
    vN, vH, vBias, vBias1, vTok, vPg, vZf = a(), a(), a(), a(), a(), a(), a()
    vOnes = a(2, 2)
    vT = a(16, 4)
    assert a.n <= 168, a.n
    tmp = fs[1][0][0]
    sp('ka')
    k("s_setprio 3")
    k(f"""s_sub_u32 s{sW}, s{sWid}, 8
    v_lshrrev_b32 v{vT}, 3, v{vL}
    v_and_b32 v{vT+1}, 7, v{vL}
    s_lshl_b32 s{sT}, s{sTB}, 2
    s_add_u32 s{sT}, s{sT}, s{sW}
    s_mul_i32 s{sBaseA}, s{sT}, {32*1280}
    s_lshl_b32 s{sM0A}, s{sW}, 12
    s_add_u32 s{sM0A}, s{sM0A}, {L_A}
    s_lshl_b32 s{sM0B}, s{sW}, 11
    s_add_u32 s{sM0B}, s{sM0B}, {L_Z}""")
    def a_addr(stride):
        k(f"v_lshrrev_b32 v{vT}, 3, v{vL}\nv_and_b32 v{vT+1}, 7, v{vL}")
        for p in range(4):
            k(f"""v_add_u32 v{vT+2}, {8*p}, v{vT}
            v_bfe_u32 v{vT+3}, v{vT+2}, 1, 3
            v_xor_b32 v{vT+3}, v{vT+3}, v{vT+1}
            v_mul_u32_u24 v{vT+2}, {stride}, v{vT+2}
            v_lshl_add_u32 v{vD+p}, v{vT+3}, 4, v{vT+2}""")
            if p:
                k(f"v_subrev_u32 v{vD+p}, {1024*p}, v{vD+p}")
    def b_addr(stride):
        k(f"""v_lshrrev_b32 v{vT}, 3, v{vL}
        v_and_b32 v{vT+1}, 7, v{vL}
        v_bfe_u32 v{vT+2}, v{vL}, 4, 1
        v_lshlrev_b32 v{vT+2}, 1, v{vT+2}
        v_xor_b32 v{vT+1}, v{vT+1}, v{vT+2}
        v_mul_u32_u24 v{vT}, {stride}, v{vT}
        v_lshl_add_u32 v{vDb}, v{vT+1}, 4, v{vT}
        v_xor_b32 v{vT+1}, 4, v{vT+1}
        v_lshl_add_u32 v{vDb+1}, v{vT+1}, 4, v{vT}
        v_add_u32 v{vDb+1}, {8*stride-1024}, v{vDb+1}""")
    def setup_rest():
        k(f"""s_lshl_b32 s{sT+1}, s{sW}, 2
        s_add_u32 s{sT+2}, s{sT+1}, {L_F+F_G}
        v_mov_b32 v{vFw}, s{sT+2}
        s_add_u32 s{sT+2}, s{sT+1}, {L_F+F_AUX}
        v_mov_b32 v{vXw}, s{sT+2}
        v_and_b32 v{vFa}, 3, v{vL}
        v_lshlrev_b32 v{vFa}, 2, v{vFa}
        v_add_u32 v{vXa}, {L_F+F_AUX}, v{vFa}
        v_lshlrev_b32 v{vFa}, 6, v{vFa}
        v_add_u32 v{vFa}, {L_CS}, v{vFa}
        v_mov_b32 v{vPg}, 0
        s_lshl_b32 s{sM0F}, s{sW}, 8
        s_lshl_b32 s{sSoF}, s2, 10
        s_add_u32 s{sSoF}, s{sSoF}, s{sM0F}
        s_add_u32 s{sM0F}, s{sM0F}, {L_CS}
        v_and_b32 v{vN}, 31, v{vL}
        v_lshrrev_b32 v{vH}, 5, v{vL}
        s_mov_b32 s{sMask}, 0xffff0000
        s_mov_b32 s{sCnt}, 0
        v_mov_b32 v{vOne}, 1
        v_mov_b32 v{vOnes}, 0x3f803f80
        v_mov_b32 v{vOnes+1}, 0x3f803f80
        s_lshl_b32 s{sT+1}, s{sTB}, 7
        s_lshl_b32 s{sT+2}, s{sW}, 5
        s_add_u32 s{sT+1}, s{sT+1}, s{sT+2}
        v_add_u32 v{vTok}, s{sT+1}, v{vN}
        v_bfe_u32 v{vT+1}, v{vL}, 1, 3
        v_lshrrev_b32 v{vT+2}, 4, v{vL}
        v_xor_b32 v{vT+1}, v{vT+1}, v{vT+2}
        v_and_b32 v{vT+2}, 15, v{vL}
        v_lshlrev_b32 v{vT+2}, 7, v{vT+2}
        v_add_u32 v{vT+2}, s{sM0A}, v{vT+2}
        v_lshl_add_u32 v{vWa}, v{vT+1}, 4, v{vT+2}
        v_xor_b32 v{vT+1}, 4, v{vT+1}
        v_lshl_add_u32 v{vWa+1}, v{vT+1}, 4, v{vT+2}""")
        k.srd(sTb, P_WS, 256*1024, WS_TAB)
        k(f"v_lshlrev_b32 v{vT+1}, 2, v{vL}")
        k(f"buffer_store_dword v{vL}, v{vT+1}, s[{sTb}:{sTb+3}], s{sSoF} offen sc1")
        nonce()
    def nat_read_addr(rowb):
        k(f"""v_bfe_u32 v{vT}, v{vL}, 2, 2
        v_lshrrev_b32 v{vT+1}, 4, v{vL}
        v_lshl_add_u32 v{vT}, v{vT+1}, 3, v{vT}
        v_lshlrev_b32 v{vT}, 7, v{vT}
        v_and_b32 v{vT+1}, 3, v{vL}
        v_lshl_add_u32 v{vT}, v{vT+1}, 3, v{vT}
        v_add_u32 v{vT}, {L_Z}, v{vT}
        v_bfe_u32 v{vT+1}, v{vL}, 3, 2""")
        for fm in range(4):
            k(f"v_xor_b32 v{vT+2}, {fm}, v{vT+1}\nv_lshl_add_u32 v{vZa+fm}, v{vT+2}, 5, v{vT}")

    def spinw(va, val):
        l = k.lab("gspin"); d = k.lab("gspun")
        k.label(l)
        k(f"ds_read_b32 v{vFl}, v{va}\ns_waitcnt lgkmcnt(0)\nv_cmp_gt_u32 vcc, {val}, v{vFl}\ns_cbranch_vccz {d}\ns_sleep 1")
        again(l)
        k.label(d)
    def gsync():
        k(f"s_add_u32 s{sCnt}, s{sCnt}, 1\nv_mov_b32 v{vFl}, s{sCnt}\nds_write_b32 v{vXw}, v{vFl}")
        spinw(vXa, f"s{sCnt}")
    def set_flag(base, col=None):
        l = k.lab("nf")
        k(f"s_cmp_lg_u32 s{sW}, 0\ns_cbranch_scc1 {l}")
        k(f"s_lshl_b32 s{sT}, s{sTB}, 11\ns_lshl_b32 s{sT+1}, s{sFG}, 7\ns_add_u32 s{sT}, s{sT}, s{sT+1}\ns_add_u32 s{sT}, s{sT}, {base}")
        gset(f"s{sT}", vT, vT + 2)
        k.label(l)

    def ring_free():
        k(f"v_mov_b32 v{vT}, {L_F+F_GO}\ns_mov_b64 exec, 1\nds_add_u32 v{vT}, v{vOne}\ns_mov_b64 exec, -1")
    def set_wflag(base, n=0):
        k(f"s_lshl_b32 s{sT}, s{sTB}, 2\ns_add_u32 s{sT}, s{sT}, s{sW}\ns_lshl_b32 s{sT}, s{sT}, 11\ns_lshl_b32 s{sT+1}, s{sFG}, 7\ns_add_u32 s{sT}, s{sT}, s{sT+1}\ns_add_u32 s{sT}, s{sT}, {base}")
        k(f"s_waitcnt vmcnt({n})")
        gset(f"s{sT}", vT, vT + 2)
    def prefetch():
        if not ('q' in pf or 'i' in pf): return
        k(f"""s_min_u32 s{sT}, s{sFG}, 14
        s_sub_u32 s{sT}, s{sT}, 10
        s_lshl_b32 s{sT+1}, s{sW}, 4
        s_add_u32 s{sT+1}, s{sT+1}, s{sTB}
        s_mul_i32 s{sT+1}, s{sT+1}, 5
        s_add_u32 s{sT+1}, s{sT+1}, s{sT}
        s_lshl_b32 s{sT+1}, s{sT+1}, 13
        v_lshlrev_b32 v{vT+8}, 7, v{vL}""")
        if 'q' in pf:
            k.srd(sO, P_WQ, 640*1280)
            k(f"buffer_load_dword v{vT+9}, v{vT+8}, s[{sO}:{sO+3}], s{sT+1} offen")
        if 'i' in pf:
            k.srd(sO, P_WIN, 640*3456)
            k(f"buffer_load_dword v{vT+10}, v{vT+8}, s[{sO}:{sO+3}], s{sT+1} offen")
    def prefetch_sp():
        if 's' not in pf: return
        att_progress(1, vT + 5, 8)
        k(f"""s_sub_u32 s{sT}, s{sFG}, 14
        s_lshl_b32 s{sT}, s{sT}, 2
        s_add_u32 s{sT}, s{sT}, s{sW}
        s_lshl_b32 s{sT}, s{sT}, 16
        s_lshl_b32 s{sT+1}, s{sTB}, 19
        s_add_u32 s{sT}, s{sT}, s{sT+1}
        v_lshlrev_b32 v{vT+8}, 7, v{vL}""")
        k.srd(sO, P_WSP, 2048*4096)
        for i in range(8):
            k(f"buffer_load_dword v{vT+9}, v{vT+8}, s[{sO}:{sO+3}], s{sT} offen {ntw}\ns_add_u32 s{sT}, s{sT}, 8192")
            if i % 2 == 1: k("s_waitcnt vmcnt(0)")
    def u_addr():
        k.srd(sO, P_WS, SZ_OUF, WS_OUF)
        k(f"""v_lshrrev_b32 v{vT+1}, 4, v{vTok}
        v_mul_u32_u24 v{vT+1}, {47*1024}, v{vT+1}
        v_and_b32 v{vT+2}, 15, v{vTok}
        v_lshl_add_u32 v{vT+1}, v{vT+2}, 4, v{vT+1}
        v_lshl_add_u32 v{vT+1}, v{vH}, 8, v{vT+1}
        s_lshl_b32 s{sT}, s{sFG}, 11
        s_add_u32 s{sT}, s{sT}, {20*1024}""")
    def poison(with_u):
        pz = vT + 4
        for i in range(4): k(f"v_mov_b32 v{pz+i}, -1")
        if with_u:
            l = k.lab("pu")
            u_addr()
            for i in range(4):
                if i == 2: k(f"s_cmp_eq_u32 s{sFG}, 13\ns_cbranch_scc1 {l}")
                k(f"buffer_store_dwordx4 {v(pz,4)}, v{vT+1}, s[{sO}:{sO+3}], s{sT} offen offset:{512*i} sc1")
            k.label(l)
        else:
            k.srd(sO, P_WS, SZ_OUF, WS_OUF)
        k(f"""s_lshl_b32 s{sT}, s{sT64}, 2
        s_add_u32 s{sT}, s{sT}, s{sW}
        s_mul_i32 s{sT}, s{sT}, {47*1024}
        s_mul_i32 s{sT+1}, s{sHG}, 2560
        s_add_u32 s{sT}, s{sT}, s{sT+1}
        v_lshlrev_b32 v{vT+2}, 4, v{vL}
        buffer_store_dwordx4 {v(pz,4)}, v{vT+2}, s[{sO}:{sO+3}], s{sT} offen sc1
        buffer_store_dwordx4 {v(pz,4)}, v{vT+2}, s[{sO}:{sO+3}], s{sT} offen offset:1024 sc1
        s_mov_b32 exec_hi, 0
        buffer_store_dwordx4 {v(pz,4)}, v{vT+2}, s[{sO}:{sO+3}], s{sT} offen offset:2048 sc1
        s_mov_b32 exec_hi, -1""")
    def poison_done():
        k(f"v_mov_b32 v{vT+4}, {L_F+F_XC}\nds_write_b32 v{vT+4}, v{vOne}")
    def att_progress(val, va, slp):
        l = k.lab("ac"); d = k.lab("acd")
        k(f"v_and_b32 v{va}, 7, v{vL}\nv_lshlrev_b32 v{va}, 2, v{va}\nv_add_u32 v{va}, {L_F}, v{va}")
        k.label(l)
        k(f"ds_read_b32 v{vFl}, v{va}\ns_waitcnt lgkmcnt(0)\nv_cmp_gt_u32 vcc, {val}, v{vFl}\ns_cbranch_vccz {d}\ns_sleep {slp}")
        again(l)
        k.label(d)
    vm = []
    def vop(tag, txt):
        vm.append(tag); return txt
    def newer(tags):
        idx = [i for i, t in enumerate(vm) if t in tags]
        return len(vm) - 1 - max(idx) if idx else 63
    cohA = [ntx]; cohB = [""]
    def la(g, p): return vop(("A", g), f"buffer_load_dwordx4 v{vD+p}, s[{sA}:{sA+3}], s{sSoA} offen offset:{1024*p} {cohA[0]} lds")
    def lb(g, p): return vop(("B", g), f"buffer_load_dwordx4 v{vDb+p}, s[{sB}:{sB+3}], s{sSoB} offen offset:{1024*p} {cohB[0]} lds")
    wrapA = [False]; wrapB = [False]
    def advA():
        if wrapA[0]: k(f"s_add_u32 s37, s37, 128\ns_and_b32 s37, s37, 0xfff\ns_add_u32 s{sSoA}, s38, s37")
        else: k(f"s_add_u32 s{sSoA}, s{sSoA}, 128")
    def advB():
        if wrapB[0]: k(f"s_add_u32 s39, s39, 4096\ns_and_b32 s39, s39, 0x1ffff\ns_add_u32 s{sSoB}, s54, s39")
        else: k(f"s_add_u32 s{sSoB}, s{sSoB}, s{sStepB}")
    vWe = z2
    def abuf(g):
        if deep and g in (3, 4, 5, 9):
            e = {3: 0, 4: 1, 5: 2, 9: 0}[g]
            return vWe, 16384 * e, 16384 * e - 49152
        return vWa, 16384 * (g % 3), 16384 * (g % 3)
    def issue_a(g):
        k(f"s_add_u32 m0, s{sM0A}, {hx(abuf(g)[2])}\ns_nop 0")
        for p in range(4): k(la(g, p))
        k(f"s_add_u32 s{sSoA}, s{sSoA}, 128")
    def issue_b(g):
        k(f"s_add_u32 m0, s{sM0B}, {8192*(g%6)}\ns_nop 0")
        for p in range(2): k(lb(g, p))
        advB()
    FR = lambda b, i: fs[b][0][0] + 4 * i
    def reads(ty, half, b, g):
        ba, bz = g % 3, g % 6
        r = [f"ds_read_b128 {v(FR(b,tn),4)}, v{vWa+half} offset:{16384*ba+2048*tn}" for tn in range(2)]
        for fm in range(4):
            d = FR(b, 2 + fm)
            if ty == "frag":
                r.append(f"ds_read_b128 {v(d,4)}, v{vZf} offset:{8192*bz+2048*fm+1024*half}")
            else:
                r.append(f"ds_read_b64_tr_b16 {v(d,2)}, v{vZa+fm} offset:{8192*bz+4096*half}")
                r.append(f"ds_read_b64_tr_b16 {v(d+2,2)}, v{vZa+fm} offset:{8192*bz+4096*half+512}")
        return r
    vSx, vSq, vCs = z1, z1 + 4, [z1 + 8, z1 + 12]
    prio = [3]
    pat = [patz]
    inloop = [False]
    carry = [False]
    cold = []
    cacc = [acc]
    def half(b, hf, zero, stats, kv, rd, dm, ex=()):
        fast = prio[0] == 3
        n = len(rd)
        cut = [0, n, n, n] if fast else [0, (n + 1) // 2, n, n]
        cur = [3]
        def setp(p):
            if not fast and cur[0] != p:
                k(f"s_setprio {p}"); cur[0] = p
        for j in range(4):
            if True:
                setp(int(pat[0][4*hf + j]))
                abl = MX if (inloop[0] or "all" in MX) else ""
                for tn in range(2):
                    d = cacc[0][j >> 1] + 8*tn + 4*(j & 1)
                    k(f"v_mfma_f32_16x16x32_bf16 {v(d,4)}, {v(FR(b,2+j),4)}, {v(FR(b,tn),4)}, {'0' if zero else v(d,4)}")
                if "nord" in abl: rd = ["s_nop 0"] * len(rd)
                if "nodma" in abl: dm = [[], [], [], []]
                if j < 3 and cut[j+1] > cut[j]:
                    setp(rprio)
                    for x in rd[cut[j]:cut[j+1]]: k(x)
                if ex:
                    setp(3)
                    for x in ex[len(ex)*j//4:len(ex)*(j+1)//4]: k(x)
                if dm[j]:
                    setp(prio[0])
                    for f_ in dm[j]:
                        if thr is not None and not fast: k(f"s_waitcnt vmcnt({thr})")
                        k(f_())
        setp(3)
    def lf():
        return "\n".join([f"s_mov_b32 m0, s{sM0F}", f"s_add_u32 s{sSoF}, s{sSoF}, 4",
                          vop("F", f"buffer_load_dword v{vPg}, s[{sTb}:{sTb+3}], s{sSoF} offen lds")])
    def body(g, ty, ty_next, first=False, doA=True, doB=True, loop=False, dyn=False, tailA=None, tailB=None, cout=True, ex=(), needp=0):
        cin = carry[0]
        k("s_waitcnt lgkmcnt(0)")
        dm = [[], [], [], []]
        def a3():
            k(la(g + 2, 3)); advA(); return "s_nop 0"
        if cin: dm = [[lambda: la(g + 2, 2)], [a3], [], []]
        half(0, 0, first, False, False, reads(ty, 1, 1, g) + [f"ds_read_b32 v{vFl}, v{vFa}"], dm, ex[:len(ex)//2])
        if doB or tailB: k(f"s_add_u32 m0, s{sM0B}, {8192*((g+4)%6)}")
        if tailB: k(tailB)
        n = 7 if loop else min(63, newer({("A", g + 1)}))
        ok = k.lab("gok"); sl = k.lab("gslow")
        need = f"s{sNeed}" if (loop or dyn) else str(g - 2 + needp)
        acct = "acct" in MX and loop
        if acct: k("s_waitcnt lgkmcnt(0)\ns_memtime s[36:37]\ns_waitcnt lgkmcnt(0)")
        k(f"s_waitcnt vmcnt({n}) lgkmcnt(0)")
        if acct: k("s_memtime s[38:39]\ns_waitcnt lgkmcnt(0)\ns_sub_u32 s36, s38, s36\ns_add_u32 s82, s82, s36")
        k(f"v_cmp_gt_u32 vcc, {need}, v{vFl}\ns_cbranch_vccnz {sl}")
        cold.append((sl, need, ok))
        k.label(ok)
        if acct: k("s_memtime s[36:37]\ns_waitcnt lgkmcnt(0)\ns_sub_u32 s36, s36, s38\ns_add_u32 s84, s84, s36")
        def mark():
            if doB: advB()
            if not (ev[5] < 30 and g == ev[5] - 1): k(lf())
            t = []
            if doA or tailA: t.append(f"s_add_u32 m0, s{sM0A}, {16384*(g%3)}")
            if tailA: t.append(tailA)
            return "\n".join(t) or "s_nop 0"
        dm = [[], [mark], [], []]
        if doB or tailB: dm = [[lambda: lb(g + 4, 0)], [lambda: lb(g + 4, 1), mark], [], []]
        cout = cout and doA
        if doA or tailA:
            dm[2] = [lambda: la(g + 3, 0)] + ([] if cout else [lambda: la(g + 3, 1)])
            dm[3] = [lambda: la(g + 3, 1)] if cout else [lambda: la(g + 3, 2), lambda: la(g + 3, 3)]
        half(1, 1, False, False, False, reads(ty_next, 0, 0, g + 1) if ty_next else [], dm, ex[len(ex)//2:])
        if doA and not cout: advA()
        carry[0] = cout
        if loop or dyn: k(f"s_add_u32 s{sNeed}, s{sNeed}, 1")
    def hi(): pass
    def lo(): pass
    def prologue(g0, ty):
        k(f"s_add_u32 s{sSoF}, s{sSoF}, {4*(g0-4)}")
        k(lf())
        issue_b(g0 + 1); k(lf()); issue_a(g0 + 1); issue_b(g0 + 2); issue_b(g0 + 3); k(lf()); issue_a(g0 + 2)
        k(f"s_waitcnt vmcnt({newer({('A', g0)})})")
        spinw(vFa, g0 - 3)
        for r in reads(ty, 0, 0, g0): k(r)
    def src_win(off_const):
        k.srd(sB, P_WIN, 640*3456)
        k(f"""s_mul_i32 s{sSoB}, s{sW}, {16*3456}
        s_lshl_b32 s{sT}, s{sFG}, 7
        s_add_u32 s{sSoB}, s{sSoB}, s{sT}
        s_add_u32 s{sSoB}, s{sSoB}, {off_const}
        s_mov_b32 s{sStepB}, {64*3456}""")
    def load_mr():
        lds_wait(L_F + F_XR, vT, vT + 1)
        k.srd(sO, P_WS, SZ_XN, WS_XN)
        k(f"v_mul_u32_u24 v{vT+2}, {XN_ST}, v{vTok}")
        k(vop("mr", f"buffer_load_dwordx2 {v(vT+8,2)}, v{vT+2}, s[{sO}:{sO+3}], 0 offen offset:1280 sc1"))
    def src_xn():
        k.srd(sA, P_WS, SZ_XN, WS_XN)
        k(f"s_lshl_b32 s{sBaseA}, s{sTB}, 2\ns_add_u32 s{sBaseA}, s{sBaseA}, s{sW}\ns_mul_i32 s{sBaseA}, s{sBaseA}, {32*XN_ST}\ns_mov_b32 s{sSoA}, s{sBaseA}")
    def ln_fold(kv):
        mu, r = vT + 8, vT + 9
        k(f"""s_waitcnt vmcnt({newer({'mr'})})
        v_and_b32 v{vT+2}, s{sMask}, v{mu}
        v_sub_f32 v{vT+3}, v{mu}, v{vT+2}
        v_cvt_pk_bf16_f32 v{vT}, -v{vT+2}, -v{vT+3}
        v_cvt_pk_bf16_f32 v{vT+1}, -v{vT+2}, 0""")
        for u in range(2):
            c = vCs[u]
            k(f"""v_and_b32 v{c+3}, s{sMask}, v{c+2}
            v_sub_f32 v{c+2}, v{c+2}, v{c+3}
            v_cvt_pk_bf16_f32 v{c}, v{c+3}, v{c+3}
            v_cvt_pk_bf16_f32 v{c+1}, v{c+2}, 0""")
        k("s_nop 1")
        for u in range(2):
            A_, B_ = (vT, vCs[u]) if (kv and u == 1) else (vCs[u], vT)
            k(f"v_mfma_f32_32x32x8_bf16 {v(acc[u],16)}, {v(A_,2)}, {v(B_,2)}, {v(acc[u],16)}")
    def swap4(b0):
        k(f"v_permlane32_swap_b32 v{b0}, v{b0+2}\nv_permlane32_swap_b32 v{b0+1}, v{b0+3}")
    def swap44(*bs):
        for b0 in bs: k(f"v_permlane32_swap_b32 v{b0}, v{b0+2}\nv_permlane32_swap_b32 v{b0+1}, v{b0+3}")
        for b0 in bs: k(f"v_permlane16_swap_b32 v{b0}, v{b0+2}\nv_permlane16_swap_b32 v{b0+1}, v{b0+3}")
    def gelu(u, dst, stats):
        t = acc[u]
        for g0 in range(0, 16, 8):
            R = range(g0, g0 + 8)
            for i in R: k(f"v_mul_f32 v{tmp+i-g0}, v{t+i}, v{t+i}")
            for i in R: k(f"v_fmaak_f32 v{tmp+i-g0}, v{vT+12}, v{tmp+i-g0}, {fl(GC0)}")
            for i in R: k(f"v_mul_f32 v{tmp+i-g0}, v{tmp+i-g0}, v{t+i}")
            for i in R: k(f"v_exp_f32 v{tmp+i-g0}, v{tmp+i-g0}")
            for i in R: k(f"v_add_f32 v{tmp+i-g0}, 1.0, v{tmp+i-g0}")
            for i in R: k(f"v_rcp_f32 v{tmp+i-g0}, v{tmp+i-g0}")
            for i in R: k(f"v_mul_f32 v{tmp+i-g0}, v{tmp+i-g0}, v{t+i}")
            for i in range(0, 8, 2): k(f"v_cvt_pk_bf16_f32 v{dst+(g0+i)//2}, v{tmp+i}, v{tmp+i+1}")
            if stats:
                c = vT + 10 if g0 == 0 else vT + 6
                for i in range(8):
                    k(f"v_add_f32 v{c}, v{c}, v{tmp+i}\nv_fmac_f32 v{c+1}, v{tmp+i}, v{tmp+i}")

    rep = k.lab("rep"); b10 = k.lab("b10"); outp = k.lab("outp"); outq = k.lab("outq"); kw = k.lab("kw"); kwd = k.lab("kwd")
    vx, vw = z2, z2 + 2
    k(f"v_lshrrev_b32 v{vT}, 3, v{vL}\nv_and_b32 v{vT+1}, 7, v{vL}")
    for p in range(2):
        k(f"""v_add_u32 v{vT+2}, {8*p}, v{vT}
        v_bfe_u32 v{vT+3}, v{vT+2}, 1, 3
        v_xor_b32 v{vT+3}, v{vT+3}, v{vT+1}
        v_mul_u32_u24 v{vT+2}, 1280, v{vT+2}
        v_lshl_add_u32 v{vx+p}, v{vT+3}, 4, v{vT+2}""")
    k(f"v_subrev_u32 v{vx+1}, 1024, v{vx+1}")
    k.srd(sA, P_X, SZ_Q)
    k(f"""s_lshl_b32 s{sBaseA}, s{sT64}, 2
    s_add_u32 s{sBaseA}, s{sBaseA}, s{sW}
    s_mul_i32 s{sBaseA}, s{sBaseA}, {16*1280}
    s_lshl_b32 s{sNeed}, s{sW}, 11
    s_add_u32 s{sNeed}, s{sNeed}, {F_B}""")
    sKr = 36
    def l_rot():
        if frot: k(f"s_lshr_b32 s{sKr}, s2, 3\ns_mul_i32 s{sKr}, s{sKr}, {frot}\ns_mul_i32 s{sT}, s{sKr}, 6554\ns_lshr_b32 s{sT}, s{sT}, 16\ns_mul_i32 s{sT}, s{sT}, 10\ns_sub_u32 s{sKr}, s{sKr}, s{sT}")
        else: k(f"s_mov_b32 s{sKr}, 0")
    def l_x(g):
        k(f"s_lshl_b32 s{sSoA}, s{sKr}, 7\ns_add_u32 m0, s{sNeed}, {F_S*(g%6)}\ns_add_u32 s{sSoA}, s{sBaseA}, s{sSoA}")
        for p in range(2): k(vop(("A", g), f"buffer_load_dwordx4 v{vx+p}, s[{sA}:{sA+3}], s{sSoA} offen offset:{1024*p} lds"))
    def l_w(g, n):
        k(f"s_mul_i32 s{sSoA}, s{sKr}, s{sStepB}\ns_add_u32 m0, s{sI}, {F_S*(g%6)}\ns_add_u32 s{sSoA}, s{sSoA}, s{sSoB}")
        for p in range(n): k(vop(("A", g), f"buffer_load_dwordx4 v{vw+p}, s[{sB}:{sB+3}], s{sSoA} offen offset:{1024*p} lds"))
        k(f"s_add_u32 s{sKr}, s{sKr}, 1\ns_cmp_eq_u32 s{sKr}, 10\ns_cmov_b32 s{sKr}, 0")
    lx, ls, lt, la_ = fs[0][0][0], fs[1][0][0], fs[1][0][0] + 8, z2 + 6
    def l_pass(n, x0done, mid=None, lead=3, xf=False):
        for g in range(lead):
            if not (g == 0 and x0done): l_x(g)
            l_w(g, n)
        if mid: mid()
        k(f"v_lshl_add_u32 v{la_}, v{vL}, 4, s{sNeed}\nv_add_u32 v{la_+1}, {3*F_S}, v{la_}")
        for i in range(8): k(f"v_mov_b32 v{ls+i}, 0")
        for g in range(10):
            k(f"s_waitcnt vmcnt({newer({('A', g)})})")
            if g == 0: sp('land0')
            k("s_barrier")
            if g == 0: sp('p1s')
            for p in range(2):
                k(f"ds_read_b128 {v(lx+4*p,4)}, v{la_+(g%6)//3} offset:{F_S*(g%3)+1024*p}")
            if g + lead < 10:
                l_x(g + lead); l_w(g + lead, n)
            if g == 9 and xf:
                k(f"s_lshl_b32 s{sT+3}, s{sTB}, 2\ns_add_u32 s{sT+3}, s{sT+3}, s{sW}\ns_lshl_b32 s{sT+3}, s{sT+3}, 9\nv_lshlrev_b32 v{vT+4}, 7, v{vL}\ns_mov_b64 exec, 0xf")
                k(gload(f"s{sT+3}", vT + 4, vT + 8))
                k("s_mov_b64 exec, -1")
            k("s_waitcnt lgkmcnt(0)")
            if ldot:
                for i in range(8):
                    c = ls + 4*(i // 4) + (i % 2)
                    k(f"v_dot2c_f32_bf16 v{c}, v{vOnes}, v{lx+i}\nv_dot2c_f32_bf16 v{c+2}, v{lx+i}, v{lx+i}")
                if g == 9: k("s_nop 2")
            elif "nost" not in MX:
              for i in range(8):
                t0 = lt + 2*(i % 2); c = ls + 4*(i // 4)
                k(f"""v_lshlrev_b32 v{t0}, 16, v{lx+i}
                v_and_b32 v{t0+1}, s{sMask}, v{lx+i}
                v_add_f32 v{c}, v{c}, v{t0}
                v_add_f32 v{c+1}, v{c+1}, v{t0+1}
                v_fmac_f32 v{c+2}, v{t0}, v{t0}
                v_fmac_f32 v{c+3}, v{t0+1}, v{t0+1}""")
        R = [ls, ls + 2, ls + 4, ls + 6]
        for r in R: k(f"v_add_f32 v{r}, v{r}, v{r+1}")
        for m in ("quad_perm:[1,0,3,2]", "quad_perm:[2,3,0,1]", "row_half_mirror"):
            for r in R: k(f"v_add_f32_dpp v{r}, v{r}, v{r} {m} row_mask:0xf bank_mask:0xf")
        for r in R: k(f"v_mul_f32 v{r}, {fl(1.0/640)}, v{r}")
        for p in range(2):
            mu, q_ = ls + 4*p, ls + 4*p + 2
            k(f"v_fma_f32 v{q_}, -v{mu}, v{mu}, v{q_}\nv_max_f32 v{q_}, 0, v{q_}\nv_add_f32 v{q_}, {fl(1e-5)}, v{q_}\nv_rsq_f32 v{q_}, v{q_}")
        k(f"""s_lshl_b32 s{sT}, s{sW}, 6
        s_add_u32 s{sT}, s{sT}, {F_STS}
        v_lshrrev_b32 v{lt}, 3, v{vL}
        v_lshl_add_u32 v{lt}, v{lt}, 2, s{sT}
        ds_write_b32 v{lt}, v{ls}
        ds_write_b32 v{lt}, v{ls+2} offset:256
        ds_write_b32 v{lt}, v{ls+4} offset:32
        ds_write_b32 v{lt}, v{ls+6} offset:288
        s_waitcnt lgkmcnt(0)""")
    def q_src():
        for p in range(3):
            k(f"""v_add_u32 v{vT}, {64*p}, v{vL}
            v_mul_u32_u24 v{vT+1}, 5462, v{vT}
            v_lshrrev_b32 v{vT+1}, 16, v{vT+1}
            v_mul_u32_u24 v{vT+2}, 12, v{vT+1}
            v_sub_u32 v{vT+2}, v{vT}, v{vT+2}
            v_min_u32 v{vT+2}, 9, v{vT+2}
            v_mul_u32_u24 v{vT+1}, 1280, v{vT+1}
            v_lshl_add_u32 v{vw+p}, v{vT+2}, 4, v{vT+1}""")
            if p: k(f"v_subrev_u32 v{vw+p}, {1024*p}, v{vw+p}")
        k.srd(sB, P_WQ, 640*1280)
        k(f"""s_mul_i32 s{sSoB}, s{sW}, {16*1280}
        s_mul_i32 s{sT}, s{sHG}, 160
        s_add_u32 s{sSoB}, s{sSoB}, s{sT}
        s_mov_b32 s{sStepB}, {64*1280}
        s_mul_i32 s{sI}, s{sW}, 3072
        s_add_u32 s{sI}, s{sI}, {F_B+8192}""")
    if "skip" in MX:
        k(f"s_barrier\ns_cmp_eq_u32 s{sHG}, 7\ns_cbranch_scc1 {end}")
        setup_rest(); a_addr(4096)
        k.srd(sA, P_WSP, 2048*4096)
        k(f"s_lshl_b32 s{sSoA}, s{sTB}, 2\ns_add_u32 s{sSoA}, s{sSoA}, s{sW}\ns_lshl_b32 s{sSoA}, s{sSoA}, 17")
        k(f"v_lshlrev_b32 v{vDb}, 4, v{vL}\nv_lshlrev_b32 v{vDb+1}, 4, v{vL}\ns_add_u32 s{sSoF}, s{sSoF}, {4*28}\ns_waitcnt vmcnt(0)")
        k(lf()); k(f"s_branch {skipG}")
    early = 'b' not in pf
    sKr = 36
    l_rot()
    if early: l_x(0)
    k(f"s_cmp_eq_u32 s{sHG}, 7\ns_cbranch_scc1 {rep}")
    q_src()
    def mid():
        setup_rest(); nat_read_addr(128); b_addr(3456); a_addr(XN_ST)
    if early: l_pass(3, True, mid, xf=True, lead=lq)
    else:
        mid(); k("s_barrier"); l_pass(3, False, xf=True)
    sp('p1l')
    k("s_barrier")
    src_win(13 * 128)
    issue_b(10)
    src_xn()
    xo = k.lab("xo")
    k("s_waitcnt vmcnt(2)\ns_mov_b64 exec, 0xf")
    gcheck(vT + 8)
    k(f"s_mov_b64 exec, -1\ns_cbranch_vccz {xo}")
    gpoll(f"s{sT+3}", vT + 4, vT + 8, 0xf, 2)
    k.label(xo)
    cohA[0] = "sc1"
    issue_a(10)
    prologue(10, "nat")

    k.label(b10)
    sp('p1')
    prio[0] = lprio
    vFg, vSt = vT + 8, tmp
    def z_ready():
        pd = k.lab("zpd")
        k(f"s_waitcnt vmcnt({newer({'pz'})})")
        gcheck(vFg)
        k(f"s_cbranch_vccz {pd}")
        k(f"s_lshl_b32 s{sT}, s{sW}, 13\ns_add_u32 s{sT}, s{sT}, {FL_Z}")
        gpoll(f"s{sT}", vT + 14, vFg, None, 4)
        k.label(pd)
        gsync()
        sp('zr')
        k.srd(sB, P_WS, SZ_Z2F, WS_Z2F)
        k(f"""s_lshl_b32 s{sT}, s{sFG}, 2
        s_add_u32 s{sT}, s{sT}, s{sW}
        s_lshl_b32 s{sSoB}, s{sT}, 16
        s_mov_b32 s{sStepB}, 2048
        v_add_u32 v{vZf}, {L_Z}, v{vDb}""")
        cohB[0] = "sc1"
        k(f"s_setprio {lprio}")
        for g in range(30, ev[5] + 4): issue_b(g)
        if ev[5] < 30: k(lf())
        k("s_setprio 3")
    for g in range(10, 30):
        if g == 16:
            src_win(0)
        if g == 17:
            k(f"s_mov_b32 s{sSoA}, s{sBaseA}")
        if g == 14 and so:
            poison(False)
        if g == 20:
            sp('p2')
            hi()
            s0 = k.lab("s0")
            k(f"v_mov_b32 v{vT+12}, {fl(GC1)}\nv_mov_b32 v{vT+10}, 0\nv_mov_b32 v{vT+11}, 0\nv_mov_b32 v{vT+6}, 0\nv_mov_b32 v{vT+7}, 0\ns_nop 1")
            k(f"s_cmp_eq_u32 s{sFG}, 0\ns_cbranch_scc1 {s0}")
            gelu(0, z2, True)
            k.label(s0)
            gelu(1, z2 + 8, True)
            k.srd(sO, P_WS, SZ_ST, WS_ST)
            k(f"""v_permlane16_swap_b32 v{vT+10}, v{vT+6}
            v_permlane16_swap_b32 v{vT+11}, v{vT+7}
            v_add_f32 v{vT+10}, v{vT+10}, v{vT+6}
            v_add_f32 v{vT+11}, v{vT+11}, v{vT+7}
            v_mov_b32 v{vT+2}, v{vT+10}
            v_mov_b32 v{vT+3}, v{vT+11}
            s_mul_i32 s{sT}, s{sTB}, 14
            s_add_u32 s{sT}, s{sT}, s{sFG}
            v_permlane32_swap_b32 v{vT+10}, v{vT+2}
            v_permlane32_swap_b32 v{vT+11}, v{vT+3}
            s_lshl_b32 s{sT}, s{sT}, 10
            s_lshl_b32 s{sT+1}, s{sW}, 8
            v_add_f32 v{vT+10}, v{vT+10}, v{vT+2}
            v_add_f32 v{vT+11}, v{vT+11}, v{vT+3}
            v_lshlrev_b32 v{vT+2}, 3, v{vN}
            s_add_u32 s{sT}, s{sT}, s{sT+1}
            s_mov_b32 exec_hi, 0""")
            k(vop("st", f"buffer_store_dwordx2 {v(vT+10,2)}, v{vT+2}, s[{sO}:{sO+3}], s{sT} offen sc1"))
            k("s_mov_b32 exec_hi, -1")
            lo()
        if g == 21:
            sp('e21')
            hi()
            assert not sent
            set_wflag(FL_S, newer({'st'}))
            lo()
        if g == ev[0]:
            hi()
            k(f"v_min_u32 v{vT+14}, 13, v{vL}\nv_lshlrev_b32 v{vT+14}, 7, v{vT+14}\ns_lshl_b32 s{sT}, s{sTB}, 2\ns_add_u32 s{sT}, s{sT}, s{sW}\ns_lshl_b32 s{sT}, s{sT}, 11\ns_add_u32 s{sT}, s{sT}, {FL_S}")
            k(vop("pf", gload(f"s{sT}", vT + 14, vFg)))
            lo()
        if g == ev[1]:
            sp('e24')
            hi()
            ok = k.lab("sok")
            k(f"s_waitcnt vmcnt({newer({'pf'})})")
            gcheck(vFg)
            k(f"s_cbranch_vccz {ok}")
            k(f"s_lshl_b32 s{sT}, s{sTB}, 2\ns_add_u32 s{sT}, s{sT}, s{sW}\ns_lshl_b32 s{sT}, s{sT}, 11\ns_add_u32 s{sT}, s{sT}, {FL_S}")
            gpoll(f"s{sT}", vT + 14, vFg, 0x3fff, 4)
            k.label(ok)
            k(f"""v_mul_u32_u24 v{vT+14}, 7168, v{vH}
            v_lshl_add_u32 v{vT+14}, v{vN}, 3, v{vT+14}
            s_mul_i32 s{sT}, s{sTB}, {14*1024}
            s_lshl_b32 s{sT+1}, s{sW}, 8
            s_add_u32 s{sT}, s{sT}, s{sT+1}
            s_add_u32 s{sT+1}, s{sT}, 4096""")
            for i in range(7):
                k(vop("sl", f"buffer_load_dwordx2 {v(z1+2*i,2)}, v{vT+14}, s[{sO}:{sO+3}], s{sT + i//4} offen offset:{1024*(i%4)} sc1"))
            lo()
        if g == ev[2]:
            sp('e25')
            hi()
            sel, D = tmp, tmp + 8
            mur, r = vT + 10, vT + 11
            k(f"""v_and_b32 v{vT+2}, 15, v{vL}
            v_lshrrev_b32 v{vT+3}, 4, v{vL}
            v_lshlrev_b32 v{vT+3}, 2, v{vT+3}
            v_sub_u32 v{vT+2}, v{vT+2}, v{vT+3}
            v_mov_b32 v{vT+3}, 0x3f80
            v_mov_b32 v{vT+4}, 0x3f800000""")
            for q in (0, 1, 4, 5): k(f"v_mov_b32 v{sel+q}, 0")
            for q in range(2):
                k(f"""v_cmp_eq_u32 vcc, {2*q}, v{vT+2}
                v_cmp_eq_u32 s[{sT}:{sT+1}], {2*q+1}, v{vT+2}
                s_nop 0
                v_cndmask_b32 v{sel+2+q}, 0, v{vT+3}, vcc
                v_cndmask_b32 v{sel+2+q}, v{sel+2+q}, v{vT+4}, s[{sT}:{sT+1}]""")
            k(f"s_waitcnt vmcnt({newer({'sl'})})")
            for i in range(1, 7):
                k(f"v_add_f32 v{z1}, v{z1}, v{z1+2*i}\nv_add_f32 v{z1+1}, v{z1+1}, v{z1+2*i+1}")
            k.srd(sO, P_WS, SZ_Z2F, WS_Z2F)
            k(f"""v_mov_b32 v{z1+2}, v{z1}
            v_mov_b32 v{z1+3}, v{z1+1}
            v_lshlrev_b32 v{vT+2}, 4, v{vL}
            s_lshl_b32 s{sT}, s{sFG}, 18
            v_permlane32_swap_b32 v{z1}, v{z1+2}
            v_permlane32_swap_b32 v{z1+1}, v{z1+3}
            v_add_f32 v{mur}, v{z1}, v{z1+2}
            v_add_f32 v{r}, v{z1+1}, v{z1+3}
            v_mul_f32 v{mur}, {fl(1.0/864)}, v{mur}
            v_mul_f32 v{r}, {fl(1.0/864)}, v{r}
            v_fma_f32 v{r}, -v{mur}, v{mur}, v{r}
            v_max_f32 v{r}, 0, v{r}
            v_add_f32 v{r}, {fl(1e-5)}, v{r}
            v_rsq_f32 v{r}, v{r}
            s_lshl_b32 s{sT+1}, s{sTB}, 12
            s_add_u32 s{sT}, s{sT}, s{sT+1}
            v_mul_f32 v{mur}, v{mur}, v{r}
            v_mov_b32 v{vT+7}, v{r}
            v_mov_b32 v{vT+6}, v{mur}
            s_lshl_b32 s{sT+1}, s{sW}, 10
            s_add_u32 s{sT}, s{sT}, s{sT+1}
            v_permlane16_swap_b32 v{r}, v{vT+7}
            v_permlane16_swap_b32 v{mur}, v{vT+6}""")
            s1 = k.lab("s1")
            for u in (1, 0):
                if u == 0:
                    k(f"s_cmp_eq_u32 s{sFG}, 0\ns_cbranch_scc1 {s1}\ns_sub_u32 s{sT}, s{sT}, 0x20000")
                k(f"s_add_u32 s{sT+1}, s{sT}, 0x10000")
                zz = z2 + 8*u
                for i in range(8):
                    m_, r_ = (mur, r) if i < 4 else (vT + 6, vT + 7)
                    k(f"""v_lshlrev_b32 v{vT+4}, 16, v{zz+i}
                    v_and_b32 v{vT+5}, s{sMask}, v{zz+i}
                    v_fma_f32 v{vT+4}, v{vT+4}, v{r_}, -v{m_}
                    v_fma_f32 v{vT+5}, v{vT+5}, v{r_}, -v{m_}
                    v_cvt_pk_bf16_f32 v{zz+i}, v{vT+4}, v{vT+5}""")
                k("s_nop 1")
                for c in range(2):
                    for tn in range(2):
                        k(f"v_mfma_f32_16x16x32_bf16 {v(D+8*c+4*tn,4)}, {v(zz+4*tn,4)}, {v(sel+2-2*c,4)}, 0")
                k("s_nop 4")
                for i in range(8): k(f"v_cvt_pk_bf16_f32 v{zz+i}, v{D+2*i}, v{D+2*i+1}")
                k("s_nop 0")
                swap44(zz, zz + 4)
                for c in range(2):
                    k(vop("zs", f"buffer_store_dwordx4 {v(zz+4*c,4)}, v{vT+2}, s[{sO}:{sO+3}], s{sT + c} offen sc1"))
            k.label(s1)
            del vm[-2:]
            lo()
        if g == ev[3]:
            sp('e26')
            hi()
            k(f"s_waitcnt vmcnt({newer({'zs'})})")
            gsync(); set_flag(FL_Z)
            if so: poison_done()
            lo()
        if g == 27:
            sp('e27')
            hi()
            a_addr(4096)
            k.srd(sA, P_WSP, 2048*4096)
            k(f"s_lshl_b32 s{sSoA}, s{sTB}, 2\ns_add_u32 s{sSoA}, s{sSoA}, s{sW}\ns_lshl_b32 s{sSoA}, s{sSoA}, 17")
            cohA[0] = ntw
            if prot is not None:
                wrapA[0] = True
                k(f"""s_and_b32 s36, s{sTB}, 1
                s_mul_i32 s36, s36, {prot[0]}
                s_mul_i32 s37, s{sFG}, {prot[1]}
                s_add_u32 s36, s36, s37
                s_and_b32 s36, s36, 31
                s_mov_b32 s38, s{sSoA}
                s_lshl_b32 s37, s36, 7
                s_add_u32 s{sSoA}, s38, s37""")
            k.srd(sB, P_BSP, 4096)
            k(f"v_lshlrev_b32 v{vT+2}, 1, v{vTok}\nv_lshlrev_b32 v{vDb}, 4, v{vL}\nv_lshlrev_b32 v{vDb+1}, 4, v{vL}")
            k(vop("bias", f"buffer_load_ushort v{vBias}, v{vT+2}, s[{sB}:{sB+3}], 0 offen"))
            lo()
        if g == ev[4]:
            k(f"s_lshl_b32 s{sT}, s{sW}, 13\ns_add_u32 s{sT}, s{sT}, {FL_Z}\nv_and_b32 v{vT+14}, 15, v{vL}\nv_min_u32 v{vT+14}, 13, v{vT+14}\nv_and_or_b32 v{vT+14}, v{vL}, 48, v{vT+14}\nv_lshlrev_b32 v{vT+14}, 7, v{vT+14}")
            k(vop("pz", gload(f"s{sT}", vT + 14, vFg)))
        if g == ev[5]:
            z_ready()
        body(g, "nat", "nat" if g != 29 else ("frag" if ev[5] < 30 else None), first=(g in (10, 20)), doB=(g < 26 or g >= ev[5]), cout=(g not in (16, 26, ev[5] - 1)),
             needp=((ev[5] - 28) if (g == 29 and ev[5] < 30) else 0))
    sp('p3')
    k.label(skipG)
    if ev[5] == 30:
        z_ready()
        k("s_waitcnt vmcnt(2)")
        gsync()
        for r in reads("frag", 0, 0, 30): k(r)
    pat[0] = pats
    cacc[0] = [z1, z2]
    body(30, "frag", "frag", first=True, needp=max(0, ev[5] - 29) if ev[5] < 30 else 0)
    body(31, "frag", "frag")
    k(f"s_mov_b32 s{sNeed}, 30\ns_mov_b32 s{sI}, 0")
    loop = k.lab("gloop")
    sp('l0')
    if "acct" in MX: k("s_waitcnt lgkmcnt(0)\ns_mov_b32 s82, s80\ns_mov_b32 s84, s80")
    if "lin" in MX:
        for p in range(4): k(f"v_mov_b32 v{vD+p}, v{vDb}")
    if "glin" in MX:
        for p in range(4): k(f"v_add_u32 v{vWa+p}, s{sM0A}, v{vDb}")
    if "oob" in MX: k(f"s_mov_b32 s{sA+2}, 0\ns_mov_b32 s{sB+2}, 0")
    if "ooa" in MX: k(f"s_mov_b32 s{sA+2}, 0")
    if "ooz" in MX: k(f"s_mov_b32 s{sB+2}, 0")
    k.align(3)
    k.label(loop)
    inloop[0] = True
    if "nosc" in MX: cohB[0] = ""
    for g in range(32, 38):
        body(g, "frag", "frag", loop=True)
    inloop[0] = False
    k(f"s_add_u32 s{sI}, s{sI}, 1\ns_cmp_lt_u32 s{sI}, 3\ns_cbranch_scc1 {loop}")
    sp('l1')
    if "skip" in MX: k.endpgm(P_WS, 3)
    if "nopt" in MX:
        k("s_waitcnt lgkmcnt(0)")
        k.stamp(1); k("s_waitcnt lgkmcnt(0)")
        for i in range(32): k("s_nop 15")
        k.stamp(2); k("s_waitcnt lgkmcnt(0)")
        for i in range(256): k(f"v_add_u32 v{vT}, 1, v{vT}")
        k.stamp(3); k("s_waitcnt lgkmcnt(0)")
        for i in range(32): k(f"ds_read_b32 v{vT}, v{vFa}\ns_waitcnt lgkmcnt(0)")
        k.stamp(4); k("s_waitcnt lgkmcnt(0)")
    sG, sWb = sI, sBaseA
    def out_ids():
        k(f"s_lshr_b32 s{sG}, s2, 5\ns_mul_i32 s{sWb}, s{sG}, {47*5120}\ns_add_u32 s{sWb}, s{sWb}, {20*5120 - 1024 - L_A}")
    vm[:] = [((t[0], t[1] + 12) if isinstance(t, tuple) else t) for t in vm]
    def gelu4(r0):
        t = vT
        R = range(4)
        o = [f"v_mul_f32 v{t+i}, v{r0+i}, v{r0+i}" for i in R] + [f"v_fmaak_f32 v{t+i}, v{vT+12}, v{t+i}, {fl(GC0)}" for i in R]
        o += [f"v_mul_f32 v{t+i}, v{t+i}, v{r0+i}" for i in R] + [f"v_exp_f32 v{t+i}, v{t+i}" for i in R]
        o += [f"v_add_f32 v{t+i}, 1.0, v{t+i}" for i in R] + [f"v_rcp_f32 v{t+i}, v{t+i}" for i in R]
        return o + [f"v_mul_f32 v{r0+i}, v{t+i}, v{r0+i}" for i in R]
    for g in range(50, 62):
        tA = tB = None
        if g == 55:
            k(f"v_and_b32 v{vT+14}, 31, v{vL}\nv_lshlrev_b32 v{vT+14}, 7, v{vT+14}\ns_mov_b32 s{sT}, {FL_W}")
            k(gload(f"s{sT}", vT + 14, vFg))
        if g == 58:
            wk = k.lab("wok")
            gcheck(vFg)
            k(f"s_cbranch_vccz {wk}\ns_mov_b32 s{sT}, {FL_W}")
            gpoll(f"s{sT}", vT + 14, vFg, None, 4)
            k.label(wk)
            sp('g58')
            out_ids()
            k.srd(sB, P_WS, SZ_WF, WS_WF)
        if g == 59:
            k.srd(sA, P_WS, SZ_WF, WS_WF)
            cohA[0] = "sc1"
            hi()
            for p in range(4): k(f"v_mov_b32 v{vD+p}, v{vDb}")
            lo()
        if g >= 58: tB = f"s_add_u32 s{sSoB}, m0, s{sWb}"
        if g >= 59: tA = f"s_add_u32 s{sSoA}, m0, s{sWb}"
        body(g, "frag", "frag" if g < 61 else None, dyn=True, doA=(g < 59), doB=(g < 58), tailA=tA, tailB=tB, cout=(g < 58), ex=(gelu4(acc[0] + 4*(g - 50)) if g < 58 else ()))
    sp('p4')
    hi()
    fin = k.lab("gfin")
    def rest_w():
        gsync()
        k(f"s_lshl_b32 s{sT+1}, s{sW}, 12\ns_add_u32 m0, s{sT+1}, {L_Z}\ns_add_u32 s{sSoB}, m0, s{sWb}")
        for p in range(4):
            k(f"buffer_load_dwordx4 v{vDb}, s[{sB}:{sB+3}], s{sSoB} offen offset:{1024*p} sc1 lds")
    k.srd(sO, P_WS, SZ_OUF, WS_OUF)
    k(f"""v_lshlrev_b32 v{vBias}, 16, v{vBias}
    s_lshl_b32 s{sT}, s{sTB}, 2
    s_add_u32 s{sT}, s{sT}, s{sW}
    v_mov_b32 v{vBias1}, v{vBias}
    s_mul_i32 s{sT}, s{sT}, {2*47*1024}
    s_lshl_b32 s{sT+1}, s{sFG}, 11
    s_add_u32 s{sT}, s{sT}, s{sT+1}
    v_permlane16_swap_b32 v{vBias}, v{vBias1}
    s_add_u32 s{sT}, s{sT}, {20*1024}
    s_add_u32 s{sT+1}, s{sT}, {47*1024}""")
    for i in range(2):
        if i == 1:
            k(f"s_cmp_eq_u32 s{sFG}, 13\ns_cbranch_scc1 {fin}")
        ga = cacc[0][i]
        for r in range(16): k(f"v_add_f32 v{ga+r}, v{ga+r}, v{vBias if r < 8 else vBias1}")
        for r in range(16): k(f"v_mul_f32 v{ga+r}, v{ga+r}, v{acc[i]+r}")
        for r in range(8): k(f"v_cvt_pk_bf16_f32 v{tmp+8*i+r}, v{ga+2*r}, v{ga+2*r+1}")
        k("s_nop 0")
        swap44(tmp + 8*i, tmp + 8*i + 4)
        for tn in range(2):
            k(f"buffer_store_dwordx4 {v(tmp+8*i+4*tn,4)}, v{vDb}, s[{sO}:{sO+3}], s{sT+tn} offen offset:{1024*i} sc1")
    k.label(fin)
    sp('ust')
    rest_w()
    sp('urw')
    if not sent: set_wflag(FL_U, 4)
    sp('ufl')
    k(f"s_branch {outp}")

    k.label(rep)
    vm[:] = [("A", 0)] * 2
    k(f"s_cmp_ge_u32 s{sW}, 2\ns_cbranch_scc1 {kw}")
    k.srd(sB, P_WK, 25600)
    k(f"s_branch {kwd}")
    k.label(kw)
    k.srd(sB, P_WV, 25600)
    k.label(kwd)
    k(f"""v_lshlrev_b32 v{vw}, 4, v{vL}
    v_lshlrev_b32 v{vw+1}, 4, v{vL}
    s_and_b32 s{sSoB}, s{sW}, 1
    s_lshl_b32 s{sSoB}, s{sSoB}, 9
    s_mov_b32 s{sStepB}, 2560
    s_lshr_b32 s{sI}, s{sW}, 1
    s_lshl_b32 s{sI}, s{sI}, 12
    s_add_u32 s{sI}, s{sI}, s{sSoB}
    s_add_u32 s{sI}, s{sI}, {F_B+8192}""")
    if early: l_pass(2, True, setup_rest, lead=lk)
    else:
        setup_rest(); k("s_barrier"); l_pass(2, False, lead=4)
    sp('p1l')
    q_src()
    k("s_barrier\ns_barrier\ns_barrier")
    l_pass(3, False)
    k("s_barrier")
    rl = k.lab("rl")
    att_progress(1, vT + 5, 8)
    if spe: prefetch_sp()
    if so: poison(False)
    k(f"s_mov_b32 s{sNeed}, s{sT64}")
    k.label(rl)
    emit_repack(k, sNeed, sW, vL, P_WO, P_WOUT, P_WS, 8, acc[0], L_A, gsync, coh="sc1", rot=orot)
    k(f"s_add_u32 s{sNeed}, s{sNeed}, 32\ns_waitcnt vmcnt(0)")
    gsync()
    k(f"s_cmp_lt_u32 s{sNeed}, 47\ns_cbranch_scc1 {rl}")
    if so: poison_done()
    nf = k.lab("nf")
    k(f"s_cmp_lg_u32 s{sW}, 0\ns_cbranch_scc1 {nf}\ns_lshl_b32 s{sT}, s{sT64}, 7\ns_add_u32 s{sT}, s{sT}, {FL_W}")
    gset(f"s{sT}", vT, vT + 2)
    k.label(nf)
    k.label(outq)
    sp('p1')
    k(f"s_setprio {lprio}")
    out_ids()
    k.srd(sB, P_WS, SZ_WF, WS_WF)
    if not spe: prefetch_sp()
    if zpf:
        k(f"s_lshl_b32 s{sT}, s{sW}, 13\ns_add_u32 s{sT}, s{sT}, {FL_Z}\nv_and_b32 v{vT}, 15, v{vL}\nv_min_u32 v{vT}, 13, v{vT}\nv_and_or_b32 v{vT}, v{vL}, 48, v{vT}\nv_lshlrev_b32 v{vT}, 7, v{vT}")
        gpoll(f"s{sT}", vT, vT + 2, None, 16)
        gsync()
        zl = k.lab("zl")
        k.srd(sO, P_WS, SZ_Z2F, WS_Z2F)
        k(f"s_bfe_u32 s{sT}, s2, 0x20003\ns_lshl_b32 s{sT}, s{sT}, 2\ns_add_u32 s{sT}, s{sT}, s{sW}\nv_lshlrev_b32 v{vT+8}, 7, v{vL}")
        k.label(zl)
        k(f"""s_mul_i32 s{sT+1}, s{sT}, 2428
        s_lshr_b32 s{sT+1}, s{sT+1}, 16
        s_mul_i32 s{sT+2}, s{sT+1}, 27
        s_sub_u32 s{sT+2}, s{sT}, s{sT+2}
        s_lshl_b32 s{sT+2}, s{sT+2}, 17
        s_add_u32 s{sT+1}, s{sT+1}, {16 - zpf}
        s_lshl_b32 s{sT+1}, s{sT+1}, 13
        s_add_u32 s{sT+1}, s{sT+1}, s{sT+2}
        buffer_load_dword v{vT+9}, v{vT+8}, s[{sO}:{sO+3}], s{sT+1} offen sc1
        s_add_u32 s{sT}, s{sT}, 16
        s_cmp_lt_u32 s{sT}, {27 * zpf}
        s_waitcnt vmcnt(1)
        s_cbranch_scc1 {zl}""")
    att_progress(wfat, vT, 32)
    k(f"v_lshlrev_b32 v{vDb}, 4, v{vL}\nv_lshlrev_b32 v{vT}, 7, v{vL}\ns_mov_b32 s{sT}, {FL_W}")
    gpoll(f"s{sT}", vT, vT + 2, 0xffffffff, 16)
    if so:
        k(f"s_lshl_b32 s{sT}, s{sW}, 13\ns_add_u32 s{sT}, s{sT}, {FL_Z}\nv_and_b32 v{vT}, 15, v{vL}\nv_min_u32 v{vT}, 13, v{vT}\nv_and_or_b32 v{vT}, v{vL}, 48, v{vT}\nv_lshlrev_b32 v{vT}, 7, v{vT}")
        gpoll(f"s{sT}", vT, vT + 2, None, 16)
        gsync()
    if 'w' in pf:
        wl = k.lab("wl")
        k(f"""s_bfe_u32 s{sT}, s2, 0x20003
        s_lshl_b32 s{sT}, s{sT}, 2
        s_add_u32 s{sT}, s{sT}, s{sW}
        s_lshl_b32 s{sT}, s{sT}, 13
        v_lshlrev_b32 v{vT+8}, 7, v{vL}""")
        k.label(wl)
        k(f"""buffer_load_dword v{vT+9}, v{vT+8}, s[{sB}:{sB+3}], s{sT} offen sc1
        s_add_u32 s{sT}, s{sT}, {16*8192}
        s_cmp_lt_u32 s{sT}, {SZ_WF}
        s_waitcnt vmcnt(0)
        s_cbranch_scc1 {wl}""")
    k(f"s_mul_i32 s{sT}, s{sW}, {24*1024}\ns_add_u32 s{sT}, s{sT}, {L_A}")
    for p in range(24):
        if p % 4 == 0:
            k(f"s_add_u32 m0, s{sT}, {1024*p}\ns_add_u32 s{sSoB}, m0, s{sWb}")
        k(f"buffer_load_dwordx4 v{vDb}, s[{sB}:{sB+3}], s{sSoB} offen offset:{1024*(p%4)} sc1 lds")

    k.label(outp)
    sp('outp')
    sWF, sOU, sXo = sB, sA, sO
    sTT, sAo, sXof = sSoA, sStepB, sM0A
    a = Alloc(8)
    oacc = a(20, 4)
    af = a(80, 4)
    wb = [a(20, 4), a(20, 4)]
    xr = a(10, 2)
    vQ = a(4, 2)
    vA16, vW0, vW1, vXo, vP = a(), a(), a(), a(), a()
    assert a.n <= 168, a.n
    k.srd(sOU, P_WS, SZ_OUF, WS_OUF)
    k.srd(sXo, P_X, SZ_Q)
    k(f"""s_lshl_b32 s{sTT}, s{sT64}, 2
    s_add_u32 s{sTT}, s{sTT}, s{sW}
    s_mul_i32 s{sAo}, s{sTT}, {47*1024}
    s_mul_i32 s{sXof}, s{sTT}, {16*1280}
    s_mul_i32 s{sT}, s{sG}, 160
    s_add_u32 s{sXof}, s{sXof}, s{sT}
    v_lshlrev_b32 v{vA16}, 4, v{vL}
    v_add_u32 v{vW0}, {L_W}, v{vA16}
    v_add_u32 v{vW1}, {L_W+51200}, v{vA16}
    v_lshlrev_b32 v{vP}, 7, v{vL}
    v_and_b32 v{vXo}, 15, v{vL}
    v_mul_u32_u24 v{vXo}, 1280, v{vXo}
    v_lshrrev_b32 v{vQ}, 4, v{vL}
    v_lshl_add_u32 v{vXo}, v{vQ}, 3, v{vXo}""")
    k(f"s_setprio {lprio}")
    sWs, sWd = sT + 1, sT + 2
    k(f"s_mul_i32 s37, s{sG}, 5\ns_lshr_b32 s37, s37, 1\ns_mul_i32 s38, s{sG}, 27\ns_lshr_b32 s38, s38, 3")
    sU = sNeed
    vm[:] = []
    ld = []
    def lop(tag, txt): ld.append(tag); k(txt)
    def lnewer(tag): return min(15, len(ld) - 1 - max(i for i, t in enumerate(ld) if t == tag))
    def wpieces(step0, lds0, npieces, tag):
        per = npieces // 4
        def setup():
            k(f"""s_mul_i32 s{sWs}, s{sG}, {47*5120}
            s_mul_i32 s{sWd}, s{sW}, {per*1024}
            s_add_u32 s{sWs}, s{sWs}, s{sWd}
            s_add_u32 s{sWs}, s{sWs}, {step0*5120}
            s_add_u32 s{sWd}, s{sWd}, {lds0}""")
        def piece(p):
            if p == 0: setup()
            if p % 4 == 0:
                k(f"s_add_u32 m0, s{sWd}, {1024*p}")
                k(f"s_add_u32 s{sWs}, s{sWs}, 4096" if p else "s_nop 0")
            k(vop(tag, f"buffer_load_dwordx4 v{vA16}, s[{sWF}:{sWF+3}], s{sWs} offen offset:{1024*(p%4)} sc1 lds"))
        return [lambda p=p: piece(p) for p in range(per)]
    def aloads(steps, regs):
        def one(st, r):
            if orot:
                lo_, n_, sr = (0, 20, 37) if st < 20 else (20, 27, 38)
                k(f"s_add_u32 s{sT}, s{sr}, {st-lo_}\ns_sub_u32 s39, s{sT}, {n_}\ns_cselect_b32 s{sT}, s{sT}, s39\ns_lshl_b32 s{sT}, s{sT}, 10\ns_add_u32 s{sT}, s{sT}, s{sAo}")
                if lo_: k(f"s_add_u32 s{sT}, s{sT}, {lo_*1024}")
            else:
                k(f"s_add_u32 s{sT}, s{sAo}, {st*1024}")
            k(vop(("a", st), f"buffer_load_dwordx4 {v(af+4*r,4)}, v{vA16}, s[{sOU}:{sOU+3}], s{sT} offen sc1"))
        return [lambda st=st, r=r: one(st, r) for st, r in zip(steps, regs)]
    def wread(slot, b, u, tag):
        if isinstance(slot, tuple): base, o = vA16, slot[1] * 5120
        else: base, o = (vW0, slot * 5120) if slot < 10 else (vW1, (slot - 10) * 5120)
        lop(tag, f"ds_read_b128 {v(wb[b]+4*u,4)}, v{base} offset:{o+1024*u}")
    first = [True]
    def arrive():
        k(f"s_add_u32 s{sCnt}, s{sCnt}, 1\nv_mov_b32 v{vFl}, s{sCnt}")
        lop("w", f"ds_write_b32 v{vXw}, v{vFl}")
    def peek(): lop("pk", f"ds_read_b32 v{vQ}, v{vXa}")
    def check():
        sl = k.lab("oslow"); ok = k.lab("ook")
        k(f"s_waitcnt lgkmcnt({lnewer('pk')})\nv_cmp_gt_u32 vcc, s{sCnt}, v{vQ}\ns_cbranch_vccnz {sl}")
        k.label(ok)
        cold2.append((sl, ok))
    cold2 = []; cold3 = []
    def compute(seq, side, hooks={}):
        for i in range(min(2, len(seq))):
            for u in range(5): wread(seq[i][0], i % 2, u, ("r", i))
        for i, (sl, st, r) in enumerate(seq):
            b = i % 2
            nv = newer({("a", st)})
            k(f"s_waitcnt vmcnt({min(63, nv)}) lgkmcnt({lnewer(('r', i))})")
            if so and st < 20:
                a0 = af + 4*r
                sl = k.lab("vslow"); ok = k.lab("vok")
                k(f"v_max3_u32 v{vQ+1}, v{a0}, v{a0+1}, v{a0+2}\nv_max_u32 v{vQ+1}, v{vQ+1}, v{a0+3}\nv_cmp_eq_u32 vcc, -1, v{vQ+1}\ns_cbranch_vccnz {sl}")
                k.label(ok)
                cold3.append((sl, ok, st, r))
            if i in hooks: hooks[i]()
            sd = list(side.get(i, []))
            for u in range(5):
                c = "0" if first[0] else v(oacc+4*u, 4)
                k(f"v_mfma_f32_16x16x32_bf16 {v(oacc+4*u,4)}, {v(wb[b]+4*u,4)}, {v(af+4*r,4)}, {c}")
                if i + 2 < len(seq): wread(seq[i + 2][0], b, u, ("r", i + 2))
                if sd and u in ((1, 3, 4, 2, 0)[:len(side.get(i, []))]): sd.pop(0)()
            assert not sd
            first[0] = False
    def deal(em, i0, per):
        return {i0 + j: em[per*j:per*(j+1)] for j in range((len(em) + per - 1) // per)}
    for u in range(5):
        k(f"buffer_load_dwordx2 {v(xr+2*u,2)}, v{vXo}, s[{sXo}:{sXo+3}], s{sXof} offen offset:{32*u}")
    smode = [False]
    def probe_load(mask, vd, kind):
        k(f"s_mov_b64 exec, {hx(mask)}")
        if smode[0]: k(vop("of", f"buffer_load_dword v{vd}, v{vP}, s[{sOU}:{sOU+3}], s{sU} offen sc1"))
        else: k(vop("of", gload(f"s{sU}", vP, vd)))
        k("s_mov_b64 exec, -1")
    def probe_check(mask, vd):
        k(f"s_mov_b64 exec, {hx(mask)}")
        if smode[0]: k(f"v_cmp_eq_u32 vcc, -1, v{vd}")
        else: gcheck(vd)
        k("s_mov_b64 exec, -1")
    def probe(mask, slp):
        l = k.lab("pb"); d = k.lab("pbd")
        k.label(l)
        probe_load(mask, vQ, 0)
        k("s_waitcnt vmcnt(0)")
        probe_check(mask, vQ)
        k(f"s_cbranch_vccz {d}\ns_sleep {slp}")
        again(l)
        k.label(d)
    k("s_setprio 3")
    if sent:
        k(f"v_lshlrev_b32 v{vP}, 10, v{vL}\ns_add_u32 s{sU}, s{sAo}, {20*1024+1020}")
        probe((1 << 27) - 1, 1)
        gsync()
        k(f"v_mul_u32_u24 v{vP}, 2560, v{vL}\ns_add_u32 s{sU}, s{sAo}, 2556")
    else:
        k(f"s_lshr_b32 s{sU}, s{sTT}, 1\ns_lshl_b32 s{sU}, s{sU}, 11\ns_add_u32 s{sU}, s{sU}, {FL_U}")
        probe(0x3fff, 2)
        sp('upr')
        gsync()
        if so:
            k(f"v_mul_u32_u24 v{vP}, 2560, v{vL}\ns_add_u32 s{sU}, s{sAo}, 2556")
            smode[0] = True
        else:
            k(f"s_lshl_b32 s{sU}, s{sT64}, 10\ns_add_u32 s{sU}, s{sU}, {FL_O}")
    sp('upoll')
    k(f"s_setprio {oprio}")
    ul = aloads(range(20, 40), range(20))
    for e in ul[:8]: e()
    side = deal(ul[8:], 0, 2)
    side.update(deal(aloads(range(40, 47), range(7)), 8, 4))
    side.update(deal(wpieces(39, L_W + 5120, 40, "b2"), 10, 2))
    def oflag():
        probe_load(0xff, vQ + 2, 1)
    side[16] = [oflag]
    compute([(1 + i, 20 + i, i) for i in range(19)], side, {7: arrive, 9: peek, 10: check})
    sp('o4')
    k(f"s_waitcnt vmcnt(0)")
    gsync()
    late = k.lab("olate"); join = k.lab("ojoin")
    probe_check(0xff, vQ + 2)
    k(f"s_cbranch_vccnz {late}")
    seq3 = [(1 + i, 39 + i, ([19] + list(range(7)))[i]) for i in range(8)]
    oregs = list(range(7, 19)) + [19] + list(range(7))
    save = list(vm)
    em = wpieces(12, L_W + 9 * 5120, 40, "b3") + aloads(range(12), oregs[:12])
    compute(seq3, deal(em, 0, 3))
    k.label(join)
    sp('c3')
    lds_wait(L_F + F_OC, vQ, vQ + 1, 1)
    k("s_setprio 3")
    ld[:] = []
    seq4 = [(("T", i), i, oregs[i]) for i in range(12)] + [(9 + i, 12 + i, oregs[12 + i]) for i in range(8)]
    def b3_arrive():
        k(f"s_waitcnt vmcnt({newer({'b3'})})"); arrive()
    compute(seq4, deal(aloads(range(12, 20), oregs[12:]), 0, 2), {6: b3_arrive, 8: peek, 9: check})
    vm_fast = None
    sp('odone')
    k.srd(sXo, P_OUT, SZ_Q)
    k(f"s_mov_b32 s{sT}, 0xffff0000")
    t = wb[0]
    for u in range(5):
        for hh in range(2):
            k(f"v_lshlrev_b32 v{t+4*u+2*hh}, 16, v{xr+2*u+hh}\nv_and_b32 v{t+4*u+2*hh+1}, s{sT}, v{xr+2*u+hh}")
    for i in range(20):
        k(f"v_add_f32 v{t+i}, v{t+i}, v{oacc+i}")
    for u in range(5):
        k(f"v_cvt_pk_bf16_f32 v{xr+2*u}, v{t+4*u}, v{t+4*u+1}\nv_cvt_pk_bf16_f32 v{xr+2*u+1}, v{t+4*u+2}, v{t+4*u+3}")
    for u in range(5):
        k(f"buffer_store_dwordx2 {v(xr+2*u,2)}, v{vXo}, s[{sXo}:{sXo+3}], s{sXof} offen offset:{32*u} {oc}")
    ne = k.lab("ne")
    k(f"s_or_b32 s{sT}, s2, s{sW}\ns_cbranch_scc1 {ne}\ns_mov_b32 s{sT}, {hx(FL_E)}")
    gset(f"s{sT}", vP, vQ)
    k.label(ne)
    k.endpgm(P_WS, 3)
    k.label(late)
    vm[:] = save; ld[:] = []
    compute(seq3, deal(wpieces(12, L_W + 9 * 5120, 40, "b3"), 0, 2))
    probe(0xff, 1)
    for e in aloads(range(12), oregs[:12]): e()
    k(f"s_branch {join}")
    for sl, ok, st, r in cold3:
        a0 = af + 4*r
        k.label(sl)
        k("s_sleep 1")
        aloads([st], [r])[0]()
        k(f"s_waitcnt vmcnt(0)\nv_max3_u32 v{vQ+1}, v{a0}, v{a0+1}, v{a0+2}\nv_max_u32 v{vQ+1}, v{vQ+1}, v{a0+3}\nv_cmp_eq_u32 vcc, -1, v{vQ+1}\ns_cbranch_vccz {ok}")
        again(sl)
        k(f"s_branch {ok}")
    for sl, ok in cold2:
        k.label(sl)
        spinw(vXa, f"s{sCnt}")
        k(f"s_branch {ok}")
    for sl, need, ok in cold:
        k.label(sl)
        spinw(vFa, need)
        k(f"s_branch {ok}")
    k.label(end)
    k("s_endpgm")
    return k
```

```python
from common import *
import os, math
from k2parts import emit_repack
import attn2, attn3
from attn2 import ATT_LDS, CH

MX = os.environ.get('MX', '')
SP = os.environ.get('SP', 'p1,p2,p3,p4').split(',')
QSCALE = math.log2(math.e) / math.sqrt(20.0)
GC0 = -2.0 * math.sqrt(2.0 / math.pi) * math.log2(math.e)
GC1 = GC0 * 0.044715

L_A = ATT_LDS
L_Z = L_A + 3 * 16384
L_W = L_A - 4096
L_CS = L_Z + 6 * 8192
L_F = L_CS + 2048
F_G, F_OC, F_XC, F_GO, F_XR, F_AUX = 32, 48, 52, 56, 60, 64
MEGA_LDS = L_F + 128
F_QS, F_STS, F_KVS, F_CS = 2 * CH, 2 * CH + 12288, 2 * CH + 12800, 2 * CH + 18176
F_B, F_S = ATT_LDS // 3, 20480
NAME = "parallel_sum__grouped_kv_mqa__mixer_gmlp__prompt_kernel"

def gen_mega(noatt=False, patz='33333333', pats='33333333', lprio=0, seam=True, oprio=0, pf='gis', ntx='', ntw='', repw='g', cpf=True, pslp=1, deep=False, tb=False, wfat=6, rprio=3, yph=3, thr=None, bal=0, ldot=True, xst=6, frot=0, orot=False, tsplit=32, prot=None, sent=False, oc='', lq=4, lk=5, xstk=8, bal33=True, noex=True, spe=True, two=True, ev=(22, 23, 24, 25, 28, 29), zpf=0, kvq=True, so=False, pkv=0):
    k = Kern(NAME, 256, 768, MEGA_LDS, 168, sgprs=100)
    P_X, P_WQ, P_WK, P_WV, P_WO = 44, 46, 48, 50, 52
    P_WIN, P_WSP, P_BSP, P_WOUT, P_OUT, P_DBG, P_WS = 56, 58, 60, 62, 64, 66, 68
    sWid, sTok, sBlk, sTB, sFG, sBud = 3, 4, 5, 6, 7, 70
    sT64, sHG = 98, 99
    sNo = 96
    sFl = 72
    vL = 1
    end = k.lab("end"); gem = k.lab("gem")
    k(f"s_cmp_ge_u32 s2, 256\ns_cbranch_scc1 {end}")
    k.stamp(0); k.stamp_rt(5)
    k(f"s_load_dwordx8 s[{P_X}:{P_X+7}], s[0:1], {KA_X}\ns_load_dwordx2 s[{P_WO}:{P_WO+1}], s[0:1], {KA_WO}")
    k(f"s_load_dwordx8 s[{P_WIN}:{P_WIN+7}], s[0:1], {KA_WIN}\ns_load_dwordx4 s[{P_OUT}:{P_OUT+3}], s[0:1], {KA_OUT}\ns_load_dwordx2 s[{P_WS}:{P_WS+1}], s[0:1], {KA_WS}")
    k(f"""v_lshrrev_b32 v2, 6, v0
    v_and_b32 v1, 63, v0
    v_readfirstlane_b32 s{sWid}, v2
    v_and_b32 v2, 31, v0
    v_lshlrev_b32 v2, 2, v2
    v_add_u32 v2, {L_F}, v2
    v_mov_b32 v3, 0
    ds_write_b32 v2, v3
    v_and_b32 v2, 3, v0
    v_lshlrev_b32 v2, 8, v2
    v_add_u32 v2, {L_CS}, v2
    ds_write_b32 v2, v3
    s_and_b32 s{sTB}, s2, 7
    s_lshl_b32 s{sBlk}, s{sTB}, 5
    s_lshr_b32 s{sTok}, s2, 3
    s_add_u32 s{sBlk}, s{sBlk}, s{sTok}
    s_lshl_b32 s{sTok}, s{sBlk}, 3
    s_add_u32 s{sTok}, s{sTok}, s{sWid}
    s_lshl_b32 s{sTB}, s{sTB}, 1
    s_bfe_u32 s{sFG}, s2, 0x10003
    s_add_u32 s{sTB}, s{sTB}, s{sFG}
    s_lshr_b32 s{sFG}, s2, 4
    s_and_b32 s{sT64}, s2, 7
    s_lshl_b32 s{sT64}, s{sT64}, 2
    s_bfe_u32 s{sHG}, s2, 0x20003
    s_add_u32 s{sT64}, s{sT64}, s{sHG}
    s_lshr_b32 s{sHG}, s2, 5
    s_mov_b32 s{sBud}, 400000
    s_waitcnt lgkmcnt(0)""")
    k.srd(sFl, P_WS, SZ_FLAG, WS_FLAG)
    k(f"s_load_dwordx2 s[{sNo}:{sNo+1}], s[{sFl}:{sFl+1}], {hx(FL_E)}")
    k(f"s_cmp_ge_u32 s{sWid}, 8\ns_cbranch_scc1 {gem}")

    def again(l):
        k(f"s_sub_u32 s{sBud}, s{sBud}, 1\ns_cbranch_scc0 {l}")
    def lds_wait(addr, va, vd, slp=1):
        val = {F_XR: 8, F_GO: 4, F_OC: 10, F_XC: 1}[addr - L_F]
        l = k.lab("lw"); d = k.lab("lwd")
        k(f"v_mov_b32 v{va}, {addr}")
        k.label(l)
        k(f"ds_read_b32 v{vd}, v{va}\ns_waitcnt lgkmcnt(0)\nv_cmp_gt_u32 vcc, {val}, v{vd}\ns_cbranch_vccz {d}\ns_sleep {slp}")
        again(l)
        k.label(d)
    def lds_set(addr, va, vd):
        k(f"v_mov_b32 v{va}, {addr}\nv_mov_b32 v{vd}, 1\nds_write_b32 v{va}, v{vd}")
    def gcheck(vd):
        k(f"v_cmp_ne_u64 vcc, s[{sNo}:{sNo+1}], {v(vd,2)}")
    def gload(soff, voff, vd):
        return f"buffer_load_dwordx2 {v(vd,2)}, v{voff}, s[{sFl}:{sFl+3}], {soff} offen sc1"
    def gpoll(soff, voff, vd, mask, slp):
        l = k.lab("pl"); d = k.lab("pd")
        if mask is not None: k(f"s_mov_b64 exec, {hx(mask)}")
        k.label(l)
        k(gload(soff, voff, vd))
        k("s_waitcnt vmcnt(0)")
        gcheck(vd)
        k(f"s_cbranch_vccz {d}\ns_sleep {slp}")
        again(l)
        k.label(d)
        if mask is not None: k("s_mov_b64 exec, -1")
    def gset(soff, va, vd):
        k(f"""v_mov_b32 v{vd}, s{sNo}
        v_mov_b32 v{vd+1}, s{sNo+1}
        v_lshlrev_b32 v{va}, 3, v{vL}
        s_mov_b64 exec, 0xffff
        buffer_store_dwordx2 {v(vd,2)}, v{va}, s[{sFl}:{sFl+3}], {soff} offen sc1
        s_mov_b64 exec, -1""")
    def spoll(offs, s0, slp=1):
        l = k.lab("sp"); r = k.lab("spr"); d = k.lab("spd")
        k.label(l)
        for i, (so, im) in enumerate(offs):
            k(f"s_load_dwordx2 s[{s0+2*i}:{s0+2*i+1}], s[{sFl}:{sFl+1}], s{so} offset:{hx(im)} glc")
        k("s_waitcnt lgkmcnt(0)")
        for i in range(len(offs)):
            k(f"s_cmp_eq_u64 s[{s0+2*i}:{s0+2*i+1}], s[{sNo}:{sNo+1}]")
            k(f"s_cbranch_scc0 {r}" if i + 1 < len(offs) else f"s_cbranch_scc1 {d}")
        k.label(r)
        k(f"s_sleep {slp}")
        again(l)
        k.label(d)
    def nonce():
        k(f"s_waitcnt lgkmcnt(0)\ns_add_u32 s{sNo}, s{sNo}, 1")

    sX, sO, sT, sMask = 8, 12, 16, 24
    raw, f, st, vA = 4, 12, 28, 30
    nz = k.lab("nz")
    skipA = k.lab("skipA"); skipG = k.lab("skipG")
    if "skip" in MX and "gonly" in MX:
        k("s_barrier"); k.endpgm(P_WS, 4)
    if "skip" in MX: k(f"s_barrier\ns_mov_b32 s27, 1\ns_branch {skipA}")
    k.srd(sX, P_X, SZ_Q)
    k(f"s_mul_i32 s{sT}, s{sTok}, 1280\nv_lshlrev_b32 v{vA}, 4, v{vL}\ns_mov_b32 s{sMask}, 0xffff0000")
    for i in range(4, 8):
        k(f"v_mov_b32 v{raw+i}, 0")
    k(f"buffer_load_dwordx4 {v(raw,4)}, v{vA}, s[{sX}:{sX+3}], s{sT} offen {ntx}")
    k("s_mov_b64 exec, 0xffff")
    k(f"buffer_load_dwordx4 {v(raw+4,4)}, v{vA}, s[{sX}:{sX+3}], s{sT} offen offset:1024 {ntx}")
    k("s_mov_b64 exec, -1")
    def touch(idx, nq):
        k(f"s_mul_i32 s{sT+2}, s{idx}, {nq*128}\ns_lshl_b32 s{sT+3}, s{idx}, 7\ns_mov_b64 exec, {hx((1 << nq) - 1)}")
        k(f"buffer_load_dword v{vA+2}, v{vA+1}, s[28:31], s{sT+2} offen\ns_mov_b64 exec, 1")
        k(f"buffer_load_dword v{vA+2}, v{vA+1}, s[32:35], s{sT+3} offen")
        k(f"buffer_load_dword v{vA+2}, v{vA+1}, s[36:39], s{sT+3} offen\ns_mov_b64 exec, -1")
    k(f"v_lshlrev_b32 v{vA+1}, 7, v{vL}\ns_and_b32 s{sT+1}, s{sTok}, 255")
    k.srd(28, P_WQ, 640*1280); k.srd(32, P_WK, 25600); k.srd(36, P_WV, 25600)
    if 'g' in pf and kvq:
        k(f"s_lshl_b32 s{sT+1}, s2, 3\ns_add_u32 s{sT+1}, s{sT+1}, s{sWid}")
        touch(sT + 1, 4)
    elif 'g' in pf: touch(sTok, 4)
    elif 'x' in pf: touch(sT + 1, 25)
    k.srd(sO, P_WS, SZ_XN, WS_XN)
    nonce()
    assert not ('g' in pf and 'x' in pf) and 'b' not in pf
    sXt = 20
    def xn_compute(kvg=False):
        k("s_waitcnt vmcnt(3)" if ('x' in pf or 'g' in pf) else "s_waitcnt vmcnt(0)")
        for i in range(8):
            k(f"v_lshlrev_b32 v{f+2*i}, 16, v{raw+i}\nv_and_b32 v{f+2*i+1}, s{sMask}, v{raw+i}")
        k(f"v_add_f32 v{st}, v{f}, v{f+1}\nv_mul_f32 v{st+1}, v{f}, v{f}")
        for i in range(1, 16):
            if i > 1: k(f"v_add_f32 v{st}, v{st}, v{f+i}")
            k(f"v_fmac_f32 v{st+1}, v{f+i}, v{f+i}")
        for m in ("row_shr:1", "row_shr:2", "row_shr:4", "row_shr:8"):
            k("s_nop 0")
            for i in range(2):
                k(f"v_add_f32_dpp v{st+i}, v{st+i}, v{st+i} {m} row_mask:0xf bank_mask:0xf bound_ctrl:0")
        for m in ("row_bcast:15 row_mask:0xa", "row_bcast:31 row_mask:0xc"):
            k("s_nop 0")
            for i in range(2):
                k(f"v_add_f32_dpp v{st+i}, v{st+i}, v{st+i} {m} bank_mask:0xf")
        k(f"""v_mul_f32 v{st}, {fl(1.0/640)}, v{st}
        v_mul_f32 v{st+1}, {fl(1.0/640)}, v{st+1}
        v_fma_f32 v{st+1}, -v{st}, v{st}, v{st+1}
        v_max_f32 v{st+1}, 0, v{st+1}
        v_add_f32 v{st+1}, {fl(1e-5)}, v{st+1}
        v_rsq_f32 v{st+1}, v{st+1}
        s_mul_i32 s{sXt+2}, s{sTok}, {XN_ST}
        v_mul_f32 v{st}, v{st}, v{st+1}
        s_nop 0
        v_readlane_b32 s{sXt}, v{st+1}, 63
        v_readlane_b32 s{sXt+1}, v{st}, 63
        s_nop 1
        v_mov_b32 v{st}, s{sXt+1}""")
        for i in range(16):
            k(f"v_fma_f32 v{f+i}, v{f+i}, s{sXt}, -v{st}")
        for i in range(8):
            k(f"v_cvt_pk_bf16_f32 v{raw+i}, v{f+2*i}, v{f+2*i+1}")
        k(f"buffer_store_dwordx4 {v(raw,4)}, v{vA}, s[{sO}:{sO+3}], s{sXt+2} offen sc1")
        k("s_mov_b64 exec, 0xffff")
        k(f"buffer_store_dwordx4 {v(raw+4,4)}, v{vA}, s[{sO}:{sO+3}], s{sXt+2} offen offset:1024 sc1")
        if 'i' in pf and kvq and not kvg:
            k.srd(sO, P_WIN, 640*3456)
            k(f"s_lshl_b32 s{sXt}, s2, 3\ns_add_u32 s{sXt}, s{sXt}, s{sWid}\ns_mul_i32 s{sXt}, s{sXt}, {10*128}\ns_mov_b64 exec, 0x3ff")
            k(f"buffer_load_dword v{vA+2}, v{vA+1}, s[{sO}:{sO+3}], s{sXt} offen")
        elif 'i' in pf and not kvq:
            k.srd(sO, P_WIN, 640*3456)
            k(f"s_mul_i32 s{sXt}, s{sTok}, {9*128}\ns_mov_b64 exec, 0x1ff")
            k(f"buffer_load_dword v{vA+2}, v{vA+1}, s[{sO}:{sO+3}], s{sXt} offen")
        k("s_mov_b64 exec, -1")
    a = Alloc(36)
    fa = a(16, 4); fc = a(4, 4); fsx = a(4, 4)
    fX = [a(16, 4), a(16, 4)]; fW = [a(16, 4), a(16, 4)]
    fXa = a(4, 1); fWa = a()
    fN, fH = a(), a()
    fO = a(2, 2); fT = a(12, 4); fK = a(2, 2); fKa = a()
    assert a.n <= 168, a.n
    sI, sD, sKd, sB0 = 25, 26, 27, 28
    QS, STS, KVS = F_QS, F_STS, F_KVS
    k(f"""v_and_b32 v{fN}, 31, v{vL}
    v_lshrrev_b32 v{fH}, 5, v{vL}
    v_mov_b32 v{fO}, 0x3f803f80
    v_mov_b32 v{fO+1}, 0x3f803f80
    s_mov_b32 s{sKd}, 0
    s_lshl_b32 s{sT}, s{sWid}, 7
    v_lshl_add_u32 v{fKa}, v{vL}, 10, s{sT}""")
    def f_addr(rowb, woff):
        k(f"""v_bfe_u32 v{fT}, v{fN}, 1, 3
        v_xor_b32 v{fT}, v{fT}, v{fH}
        s_and_b32 s{sT}, s{sWid}, 1
        s_lshl_b32 s{sT}, s{sT}, 12
        s_add_u32 s{sT}, s{sT}, {F_B}
        v_lshl_add_u32 v{fT+1}, v{fN}, 7, s{sT}""")
        for q in range(4):
            k(f"v_xor_b32 v{fT+2}, {2*q}, v{fT}\nv_lshl_add_u32 v{fXa+q}, v{fT+2}, 4, v{fT+1}")
        k(f"""v_bfe_u32 v{fT}, v{vL}, 2, 2
        v_lshl_add_u32 v{fT}, v{fH}, 3, v{fT}
        v_mul_u32_u24 v{fT}, {rowb}, v{fT}
        v_bfe_u32 v{fT+1}, v{vL}, 4, 1
        v_lshl_add_u32 v{fT}, v{fT+1}, 5, v{fT}
        v_and_b32 v{fT+1}, 3, v{vL}
        v_lshl_add_u32 v{fT}, v{fT+1}, 3, v{fT}
        s_add_u32 s{sT}, {woff}, {F_B+8192}
        v_add_u32 v{fWa}, s{sT}, v{fT}""")
        for r in list(range(fa, fa + 16)) + list(range(fc, fc + 4)) + list(range(fsx, fsx + 4)):
            k(f"v_mov_b32 v{r}, 0")
    def f_pass(kind, rowb, first):
        uo = (0, 64, 128) if rowb == 192 else (0, 4096)
        xs_ = xst if rowb == 192 else xstk
        cf = lambda b: fX[0] + 32 * b
        def rd(b):
            r = []
            if kind == 'i': return r
            if kind == 'x':
                for u, o in enumerate(uo):
                    for q in range(2):
                        d = cf(b) + 8*u + 4*q
                        r.append(f"ds_read_b64_tr_b16 {v(d,2)}, v{fWa} offset:{o+16*rowb*q}")
                        r.append(f"ds_read_b64_tr_b16 {v(d+2,2)}, v{fWa} offset:{o+16*rowb*q+4*rowb}")
                return r
            for q in range(4):
                r.append(f"ds_read_b128 {v(fX[b]+4*q,4)}, v{fXa+q}")
                r.append(f"ds_read_b64_tr_b16 {v(fW[b]+4*q,2)}, v{fWa} offset:{16*rowb*q}")
                r.append(f"ds_read_b64_tr_b16 {v(fW[b]+4*q+2,2)}, v{fWa} offset:{16*rowb*q+4*rowb}")
            return r
        def adv():
            if kind == 'i': return
            k(f"s_mov_b32 s{sD}, {F_S}\ns_cmp_eq_u32 s{sI}, 5\ns_cmov_b32 s{sD}, {hx(-5*F_S)}")
            if kind != 'x':
                for q in range(4): k(f"v_add_u32 v{fXa+q}, s{sD}, v{fXa+q}")
            k(f"v_add_u32 v{fWa}, s{sD}, v{fWa}")
        def work(b, r):
            w = []
            if kind in 'ns':
                for q in range(4):
                    X, W = fX[b] + 4*q, fW[b] + 4*q
                    A_, B_ = (X, W) if kind == 's' else (W, X)
                    w.append(f"v_mfma_f32_32x32x16_bf16 {v(fa,16)}, {v(A_,4)}, {v(B_,4)}, {v(fa,16)}")
                for x in interleave(w[:3], r) + w[3:]: k(x)
            elif kind == 'x':
                for x in r: k(x)
                for j in range(4):
                    for u in range(len(uo)):
                        k(f"v_mfma_f32_4x4x4_16b_bf16 {v(fa+4*u,4)}, {v(fO,2)}, {v(cf(b)+8*u+2*j,2)}, {v(fa+4*u,4)}")
                    if len(uo) == 2: k("s_nop 0")
        loop = k.lab("fl"); nb = k.lab("fnb"); e1 = k.lab("fe1"); e2 = k.lab("fe2"); e3 = k.lab("fe3")
        n = len(rd(0))
        k(f"s_mov_b32 s{sI}, 0\ns_barrier")
        for x in rd(0): k(x)
        k.label(loop)
        adv()
        if first:
            k(f"s_cmp_lg_u32 s{sI}, {xs_}\ns_cbranch_scc1 {e1}\ns_waitcnt vmcnt({1 if ('i' in pf and not (kvq and rowb == 40)) else 0})")
            k.label(e1)
        k("s_waitcnt lgkmcnt(0)\ns_barrier")
        work(0, rd(1))
        if first and kind == 'x':
            k(f"s_cmp_lg_u32 s{sI}, {xs_}\ns_cbranch_scc1 {e2}\ns_cmp_lg_u32 s{sWid}, 7\ns_cbranch_scc1 {e2}\ns_lshl_b32 s{sT}, s{sBlk}, 7")
            gset(f"s{sT}", fT + 4, fT + 6)
            k.label(e2)
        k(f"s_add_u32 s{sI}, s{sI}, 1")
        adv()
        k(f"s_cmp_eq_u32 s{sI}, 9\ns_waitcnt lgkmcnt(0)\ns_cbranch_scc1 {nb}\ns_barrier")
        k.label(nb)
        work(1, rd(0))
        if rowb == 192:
            k(f"s_cmp_lg_u32 s{sI}, 7\ns_cbranch_scc1 {e3}\ns_mov_b32 s{sT}, {FL_Q}\ns_mov_b64 exec, 0xff")
            k(gload(f"s{sT}", fKa, fK))
            k("s_mov_b64 exec, -1")
            k.label(e3)
        k(f"s_add_u32 s{sI}, s{sI}, 1\ns_cmp_lt_u32 s{sI}, 10\ns_cbranch_scc1 {loop}")
        k("s_waitcnt lgkmcnt(0)")
    def kv_try():
        e = k.lab("kt")
        k("s_waitcnt vmcnt(0)\ns_mov_b64 exec, 0xff")
        gcheck(fK)
        k(f"s_mov_b64 exec, -1\ns_cbranch_vccnz {e}\ns_mov_b32 s{sKd}, 1")
        kv_first()
        k.label(e)
    def kv_first():
        k.srd(sB0, P_WS, SZ_KVG, WS_KV)
        k(f"""s_mul_i32 s{sT}, s{sWid}, {KV_G}
        s_mul_i32 m0, s{sWid}, {KV_TILE}
        v_lshlrev_b32 v{fT+8}, 4, v{vL}
        buffer_load_dwordx4 v{fT+8}, s[{sB0}:{sB0+3}], s{sT} offen sc1 lds
        buffer_load_dwordx4 v{fT+8}, s[{sB0}:{sB0+3}], s{sT} offen offset:1024 sc1 lds
        buffer_load_dwordx4 v{fT+8}, s[{sB0}:{sB0+3}], s{sT} offen offset:{KV_TILE-1024} sc1 lds""")
    def f_stats(nu):
        k(f"""s_and_b32 s{sT}, s{sWid}, 1
        s_lshl_b32 s{sT}, s{sT}, 2
        s_add_u32 s{sT}, s{sT}, {F_CS}
        v_lshlrev_b32 v{fT}, 4, v{fN}
        v_lshl_add_u32 v{fT}, v{fH}, 3, v{fT}
        v_add_u32 v{fT}, s{sT}, v{fT}""")
        for u in range(nu): k(f"ds_write_b32 v{fT}, v{fa+4*u} offset:{512*u}")
        k("s_waitcnt lgkmcnt(0)")
    def f_fold(swap):
        k(f"""s_lshr_b32 s{sT}, s{sWid}, 1
        s_lshl_b32 s{sT}, s{sT}, 9
        s_add_u32 s{sT}, s{sT}, {F_CS}
        v_lshlrev_b32 v{fT}, 4, v{fN}
        v_lshl_add_u32 v{fT}, v{fH}, 3, v{fT}
        v_add_u32 v{fT}, s{sT}, v{fT}
        ds_read_b64 {v(fc,2)}, v{fT}
        s_and_b32 s{sT}, s{sWid}, 1
        s_lshl_b32 s{sT}, s{sT}, 7
        s_add_u32 s{sT}, s{sT}, {STS}
        v_lshl_add_u32 v{fT}, v{fN}, 2, s{sT}
        ds_read_b32 v{fT+4}, v{fT}
        ds_read_b32 v{fT+5}, v{fT} offset:256
        s_waitcnt lgkmcnt(2)
        v_add_f32 v{fc+2}, v{fc}, v{fc+1}
        v_and_b32 v{fc+3}, s{sMask}, v{fc+2}
        v_sub_f32 v{fc+2}, v{fc+2}, v{fc+3}
        v_cvt_pk_bf16_f32 v{fc}, v{fc+3}, v{fc+3}
        v_cvt_pk_bf16_f32 v{fc+1}, v{fc+2}, 0
        s_waitcnt lgkmcnt(0)
        v_and_b32 v{fT+2}, s{sMask}, v{fT+4}
        v_sub_f32 v{fT+3}, v{fT+4}, v{fT+2}
        v_cvt_pk_bf16_f32 v{fT+6}, -v{fT+2}, -v{fT+3}
        v_cvt_pk_bf16_f32 v{fT+7}, -v{fT+2}, 0
        s_nop 1""")
        A_, B_ = (fT + 6, fc) if swap else (fc, fT + 6)
        k(f"v_mfma_f32_32x32x8_bf16 {v(fa,16)}, {v(A_,2)}, {v(B_,2)}, {v(fa,16)}")
    qp = k.lab("qp"); kx = k.lab("kx"); ki = k.lab("ki"); kvv = k.lab("kvv"); kj = k.lab("kj"); q1 = k.lab("q1"); q1x = k.lab("q1x"); qe = k.lab("qe"); qj = k.lab("qj"); q2x = k.lab("q2x")
    pk = fX[0]
    k(f"s_cmp_lg_u32 s{sHG}, 7\ns_cbranch_scc1 {q1}")
    k(f"""s_lshr_b32 s{sT+1}, s{sWid}, 1
    s_lshl_b32 s{sT+1}, s{sT+1}, 12
    s_and_b32 s{sT+3}, s{sWid}, 1
    s_mul_i32 s{sT+2}, s{sT+3}, {32*40}
    s_cmp_ge_u32 s{sWid}, 6
    s_cselect_b32 s{sT+1}, s{sT+2}, s{sT+1}
    s_mul_i32 s{sT+3}, s{sT+3}, {KV_G}
    s_add_u32 s{sT+3}, s{sT+3}, {KVS}""")
    f_addr(40, f"s{sT+1}")
    xn_compute(True)
    k(f"s_cmp_ge_u32 s{sWid}, 6\ns_cbranch_scc1 {kx}\ns_cmp_ge_u32 s{sWid}, 4\ns_cbranch_scc1 {ki}\ns_cmp_ge_u32 s{sWid}, 2\ns_cbranch_scc1 {kvv}")
    f_pass('n', 40, True)
    k("s_barrier")
    f_fold(False)
    k(f"v_lshl_add_u32 v{fT}, v{vL}, 4, s{sT+3}\nv_lshl_add_u32 v{fT+1}, v{fN}, 2, s{sT+3}\ns_nop 7\ns_nop 1")
    for i in range(12): k(f"v_mul_f32 v{fa+i}, v{fT+5}, v{fa+i}")
    for i in range(6): k(f"v_cvt_pk_bf16_f32 v{pk+i}, v{fa+2*i}, v{fa+2*i+1}")
    k(f"""v_permlane32_swap_b32 v{pk}, v{pk+2}
    v_permlane32_swap_b32 v{pk+1}, v{pk+3}
    ds_write_b128 v{fT}, {v(pk,4)} offset:{KV_KA}
    s_mov_b32 exec_hi, 0
    ds_write_b32 v{fT+1}, v{pk+4} offset:{KV_KB}
    ds_write_b32 v{fT+1}, v{pk+5} offset:{KV_KB+128}
    s_mov_b64 exec, -1
    s_branch {kj}""")
    k.label(kvv)
    f_pass('s', 40, True)
    k("s_barrier")
    f_fold(True)
    k(f"v_lshl_add_u32 v{fT}, v{fH}, 4, s{sT}")
    for j in range(4): k(f"ds_read_b128 {v(fW[0]+4*j,4)}, v{fT} offset:{256+32*j}")
    k(f"""v_mul_u32_u24 v{fT+1}, 336, v{fH}
    v_lshl_add_u32 v{fT+1}, v{fN}, 4, v{fT+1}
    v_add_u32 v{fT+1}, s{sT+3}, v{fT+1}
    v_cmp_eq_u32 vcc, 20, v{fN}
    s_nop 3
    s_waitcnt lgkmcnt(0)""")
    for i in range(16): k(f"v_mul_f32 v{fa+i}, v{fW[0]+i}, v{fa+i}")
    for i in range(8): k(f"v_cvt_pk_bf16_f32 v{pk+i}, v{fa+2*i}, v{fa+2*i+1}")
    for i in range(8): k(f"v_cndmask_b32 v{pk+i}, v{pk+i}, v{fO}, vcc")
    k(f"""s_mov_b32 exec_lo, 0x1fffff
    s_mov_b32 exec_hi, 0x1fffff
    ds_write_b128 v{fT+1}, {v(pk,4)} offset:{KV_V}
    ds_write_b128 v{fT+1}, {v(pk+4,4)} offset:{KV_V+672}
    s_mov_b64 exec, -1
    s_branch {kj}""")
    k.label(ki)
    f_pass('i', 40, True)
    k(f"s_barrier\ns_branch {kj}")
    k.label(kx)
    f_pass('x', 40, True)
    f_stats(2)
    k("s_barrier\ns_barrier")
    k.srd(sB0, P_WS, SZ_KVG, WS_KV)
    k(f"v_lshlrev_b32 v{fT+1}, 4, v{vL}\nv_add_u32 v{fT}, s{sT+3}, v{fT+1}")
    for i in range(3): k(f"ds_read_b128 {v(pk+4*i,4)}, v{fT} offset:{1024*i}")
    k(f"""s_lshl_b32 s{sT}, s{sT64}, 1
    s_and_b32 s{sT+1}, s{sWid}, 1
    s_add_u32 s{sT}, s{sT}, s{sT+1}
    s_mul_i32 s{sT+1}, s{sT}, {KV_G}
    s_waitcnt lgkmcnt(0)
    buffer_store_dwordx4 {v(pk,4)}, v{fT+1}, s[{sB0}:{sB0+3}], s{sT+1} offen sc1
    buffer_store_dwordx4 {v(pk+4,4)}, v{fT+1}, s[{sB0}:{sB0+3}], s{sT+1} offen offset:1024 sc1
    s_mov_b32 exec_hi, 0xff
    buffer_store_dwordx4 {v(pk+8,4)}, v{fT+1}, s[{sB0}:{sB0+3}], s{sT+1} offen offset:2048 sc1
    s_mov_b64 exec, -1
    s_lshl_b32 s{sT}, s{sT}, 7
    s_add_u32 s{sT}, s{sT}, {FL_Q}
    s_waitcnt vmcnt(0)""")
    gset(f"s{sT}", fT + 4, fT + 6)
    k("s_barrier")
    k(f"s_and_b32 s{sT+1}, s{sWid}, 1\ns_mul_i32 s{sT+1}, s{sT+1}, {32*192}")
    f_addr(192, f"s{sT+1}")
    f_pass('x', 192, False)
    k(f"s_branch {q2x}")
    k.label(kj)
    k("s_waitcnt lgkmcnt(0)\ns_barrier\ns_barrier")
    k(f"s_lshr_b32 s{sT+1}, s{sWid}, 1\ns_lshl_b32 s{sT+1}, s{sT+1}, 6")
    f_addr(192, f"s{sT+1}")
    f_pass('n', 192, False)
    k(f"s_branch {qe}")
    k.label(q1)
    k(f"""s_lshr_b32 s{sT+1}, s{sWid}, 1
    s_lshl_b32 s{sT+1}, s{sT+1}, 6
    s_and_b32 s{sT+2}, s{sWid}, 1
    s_mul_i32 s{sT+2}, s{sT+2}, {32*192}
    s_cmp_ge_u32 s{sWid}, 6
    s_cselect_b32 s{sT+1}, s{sT+2}, s{sT+1}""")
    f_addr(192, f"s{sT+1}")
    xn_compute()
    k(f"s_cmp_ge_u32 s{sWid}, 6\ns_cbranch_scc1 {q1x}")
    f_pass('n', 192, True)
    k.label(qe)
    k("s_barrier")
    f_fold(False)
    kv_try()
    k(f"""v_mul_f32 v{fT+5}, {fl(QSCALE)}, v{fT+5}
    s_and_b32 s{sT}, s{sWid}, 1
    s_mul_i32 s{sT}, s{sT}, {32*192}
    s_lshr_b32 s{sT+1}, s{sWid}, 1
    s_lshl_b32 s{sT+1}, s{sT+1}, 6
    s_add_u32 s{sT}, s{sT}, s{sT+1}
    s_add_u32 s{sT}, s{sT}, {QS}
    v_mul_u32_u24 v{fT}, 192, v{fN}
    v_lshl_add_u32 v{fT}, v{fH}, 3, v{fT}
    v_add_u32 v{fT}, s{sT}, v{fT}
    s_nop 1""")
    for i in range(16): k(f"v_mul_f32 v{fa+i}, v{fT+5}, v{fa+i}")
    for i in range(8): k(f"v_cvt_pk_bf16_f32 v{pk+i}, v{fa+2*i}, v{fa+2*i+1}")
    for j in range(4): k(f"ds_write_b64 v{fT}, {v(pk+2*j,2)} offset:{16*j}")
    k(f"s_waitcnt lgkmcnt(0)\ns_branch {qj}")
    k.label(q1x)
    f_pass('x', 192, True)
    k.label(q2x)
    f_stats(3)
    k("s_barrier")
    kv_try()
    k.label(qj)
    k.label(skipA)
    k(f"s_mov_b32 s40, s{sKd}\nv_mov_b32 v104, v{fKa}")
    def att_wait(step):
        t = 104
        d = k.lab("kvd")
        k(f"s_cmp_lg_u32 s40, 0\ns_cbranch_scc1 {d}\ns_mov_b32 s41, {FL_Q}")
        gpoll("s41", t, t + 2, 0xff, pslp)
        step()
        k.label(d)
    def att_tail(step):
        t = 104
        def pieces(p0, p1):
            for p in range(p0, p1):
                if p % 4 == 0:
                    k(f"s_mov_b32 m0, {1024*p}")
                    k("s_add_u32 s40, s40, 4096" if p else "s_nop 0")
                k(f"buffer_load_dwordx4 v{t}, s[28:31], s40 offen offset:{1024*(p%4)} sc1 lds")
        if step == 0:
            k(f"v_and_b32 v{t}, 31, v{vL}\nv_lshlrev_b32 v{t}, 7, v{t}\ns_mov_b32 s40, {FL_W}")
            k(gload("s40", t, t + 2))
            if so: lds_wait(L_F + F_XC, t + 4, t + 5, 2)
        elif "skip" in MX:
            pass
        elif step == 1:
            ok = k.lab("wfok")
            k("s_waitcnt vmcnt(12)")
            gcheck(t + 2)
            k(f"s_cbranch_vccz {ok}")
            gpoll("s40", t, t + 2, None, 4)
            k.label(ok)
            k.srd(28, P_WS, SZ_WF, WS_WF)
            k(f"s_lshr_b32 s40, s2, 5\ns_mul_i32 s40, s40, {47*5120}\nv_lshlrev_b32 v{t}, 4, v{vL}")
            pieces(0, tsplit)
            if not so: k(f"s_waitcnt vmcnt({tsplit})")
        else:
            pieces(tsplit, 60)
            k(f"v_mov_b32 v{t}, {L_F+F_OC}\nv_mov_b32 v{t+1}, 10\ns_waitcnt vmcnt(0)\nds_write_b32 v{t}, v{t+1}")
    n = (attn3 if two else attn2).emit_attn(k, sT64, sHG, sWid, vL, P_WS, 8, 4, 0, L_F, mega=att_wait, budget=sBud, gset=(None if so else gset), tb=tb, tail=att_tail, yph=yph, bal=bal)
    assert n <= 104, n

    k.label(gem)
    def sp(name):
        if name in SP: k.stamp(1 + SP.index(name))
    sA, sB, sO = 8, 12, 16
    sW, sCnt, sSoA, sBaseA, sSoB, sStepB, sM0A, sM0B, sMask, sNeed, sI = range(20, 31)
    sT = 32
    sTb, sM0F, sSoF = 40, 31, 71
    a = Alloc(2)
    vFw, vFa, vFl, vXw, vXa = a(), a(), a(), a(), a()
    vOne = a()
    acc = [a(16, 4), a(16, 4)]
    fs = [[[a(4, 4) for j in range(3)] for q in range(2)] for b in range(2)]
    z1 = a(16, 4); z2 = a(16, 4)
    vD = a(4, 1); vDb = a(2, 1)
    vWa = a(2, 1); vZa = a(4, 1)
    vBias = a(2, 2); vBias1 = vBias + 1
    vN, vH, vTok, vPg, vZf = a(), a(), a(), a(), a()
    vOnes = a(2, 2)
    vT = a(16, 4)
    assert a.n <= 168, a.n
    tmp = fs[1][0][0]
    sp('ka')
    k("s_setprio 3")
    k(f"""s_sub_u32 s{sW}, s{sWid}, 8
    v_lshrrev_b32 v{vT}, 3, v{vL}
    v_and_b32 v{vT+1}, 7, v{vL}
    s_lshl_b32 s{sT}, s{sTB}, 2
    s_add_u32 s{sT}, s{sT}, s{sW}
    s_mul_i32 s{sBaseA}, s{sT}, {32*1280}
    s_lshl_b32 s{sM0A}, s{sW}, 12
    s_add_u32 s{sM0A}, s{sM0A}, {L_A}
    s_lshl_b32 s{sM0B}, s{sW}, 11
    s_add_u32 s{sM0B}, s{sM0B}, {L_Z}""")
    def a_addr(stride):
        k(f"v_lshrrev_b32 v{vT}, 3, v{vL}\nv_and_b32 v{vT+1}, 7, v{vL}")
        for p in range(4):
            k(f"""v_add_u32 v{vT+2}, {8*p}, v{vT}
            v_bfe_u32 v{vT+3}, v{vT+2}, 1, 3
            v_xor_b32 v{vT+3}, v{vT+3}, v{vT+1}
            v_mul_u32_u24 v{vT+2}, {stride}, v{vT+2}
            v_lshl_add_u32 v{vD+p}, v{vT+3}, 4, v{vT+2}""")
            if p:
                k(f"v_subrev_u32 v{vD+p}, {1024*p}, v{vD+p}")
    def b_addr(stride):
        k(f"""v_lshrrev_b32 v{vT}, 3, v{vL}
        v_and_b32 v{vT+1}, 7, v{vL}
        v_bfe_u32 v{vT+2}, v{vL}, 4, 1
        v_lshlrev_b32 v{vT+2}, 1, v{vT+2}
        v_xor_b32 v{vT+1}, v{vT+1}, v{vT+2}
        v_mul_u32_u24 v{vT}, {stride}, v{vT}
        v_lshl_add_u32 v{vDb}, v{vT+1}, 4, v{vT}
        v_xor_b32 v{vT+1}, 4, v{vT+1}
        v_lshl_add_u32 v{vDb+1}, v{vT+1}, 4, v{vT}
        v_add_u32 v{vDb+1}, {8*stride-1024}, v{vDb+1}""")
    def setup_rest():
        k(f"""s_lshl_b32 s{sT+1}, s{sW}, 2
        s_add_u32 s{sT+2}, s{sT+1}, {L_F+F_G}
        v_mov_b32 v{vFw}, s{sT+2}
        s_add_u32 s{sT+2}, s{sT+1}, {L_F+F_AUX}
        v_mov_b32 v{vXw}, s{sT+2}
        v_and_b32 v{vFa}, 3, v{vL}
        v_lshlrev_b32 v{vFa}, 2, v{vFa}
        v_add_u32 v{vXa}, {L_F+F_AUX}, v{vFa}
        v_lshlrev_b32 v{vFa}, 6, v{vFa}
        v_add_u32 v{vFa}, {L_CS}, v{vFa}
        v_mov_b32 v{vPg}, 0
        s_lshl_b32 s{sM0F}, s{sW}, 8
        s_lshl_b32 s{sSoF}, s2, 10
        s_add_u32 s{sSoF}, s{sSoF}, s{sM0F}
        s_add_u32 s{sM0F}, s{sM0F}, {L_CS}
        v_and_b32 v{vN}, 31, v{vL}
        v_lshrrev_b32 v{vH}, 5, v{vL}
        s_mov_b32 s{sMask}, 0xffff0000
        s_mov_b32 s{sCnt}, 0
        v_mov_b32 v{vOne}, 1
        v_mov_b32 v{vOnes}, 0x3f803f80
        v_mov_b32 v{vOnes+1}, 0x3f803f80
        s_lshl_b32 s{sT+1}, s{sTB}, 7
        s_lshl_b32 s{sT+2}, s{sW}, 5
        s_add_u32 s{sT+1}, s{sT+1}, s{sT+2}
        v_add_u32 v{vTok}, s{sT+1}, v{vN}
        v_bfe_u32 v{vT+1}, v{vL}, 1, 3
        v_lshrrev_b32 v{vT+2}, 4, v{vL}
        v_xor_b32 v{vT+1}, v{vT+1}, v{vT+2}
        v_and_b32 v{vT+2}, 15, v{vL}
        v_lshlrev_b32 v{vT+2}, 7, v{vT+2}
        v_add_u32 v{vT+2}, s{sM0A}, v{vT+2}
        v_lshl_add_u32 v{vWa}, v{vT+1}, 4, v{vT+2}
        v_xor_b32 v{vT+1}, 4, v{vT+1}
        v_lshl_add_u32 v{vWa+1}, v{vT+1}, 4, v{vT+2}""")
        k.srd(sTb, P_WS, 256*1024, WS_TAB)
        k(f"v_lshlrev_b32 v{vT+1}, 2, v{vL}")
        k(f"buffer_store_dword v{vL}, v{vT+1}, s[{sTb}:{sTb+3}], s{sSoF} offen sc1")
        nonce()
    def nat_read_addr(rowb):
        k(f"""v_bfe_u32 v{vT}, v{vL}, 2, 2
        v_lshrrev_b32 v{vT+1}, 4, v{vL}
        v_lshl_add_u32 v{vT}, v{vT+1}, 3, v{vT}
        v_lshlrev_b32 v{vT}, 7, v{vT}
        v_and_b32 v{vT+1}, 3, v{vL}
        v_lshl_add_u32 v{vT}, v{vT+1}, 3, v{vT}
        v_add_u32 v{vT}, {L_Z}, v{vT}
        v_bfe_u32 v{vT+1}, v{vL}, 3, 2""")
        for fm in range(4):
            k(f"v_xor_b32 v{vT+2}, {fm}, v{vT+1}\nv_lshl_add_u32 v{vZa+fm}, v{vT+2}, 5, v{vT}")

    def spinw(va, val):
        l = k.lab("gspin"); d = k.lab("gspun")
        k.label(l)
        k(f"ds_read_b32 v{vFl}, v{va}\ns_waitcnt lgkmcnt(0)\nv_cmp_gt_u32 vcc, {val}, v{vFl}\ns_cbranch_vccz {d}\ns_sleep 1")
        again(l)
        k.label(d)
    def gsync():
        k(f"s_add_u32 s{sCnt}, s{sCnt}, 1\nv_mov_b32 v{vFl}, s{sCnt}\nds_write_b32 v{vXw}, v{vFl}")
        spinw(vXa, f"s{sCnt}")
    def set_flag(base, col=None):
        l = k.lab("nf")
        k(f"s_cmp_lg_u32 s{sW}, 0\ns_cbranch_scc1 {l}")
        k(f"s_lshl_b32 s{sT}, s{sTB}, 11\ns_lshl_b32 s{sT+1}, s{sFG}, 7\ns_add_u32 s{sT}, s{sT}, s{sT+1}\ns_add_u32 s{sT}, s{sT}, {base}")
        gset(f"s{sT}", vT, vT + 2)
        k.label(l)

    def ring_free():
        k(f"v_mov_b32 v{vT}, {L_F+F_GO}\ns_mov_b64 exec, 1\nds_add_u32 v{vT}, v{vOne}\ns_mov_b64 exec, -1")
    def set_wflag(base, n=0):
        k(f"s_lshl_b32 s{sT}, s{sTB}, 2\ns_add_u32 s{sT}, s{sT}, s{sW}\ns_lshl_b32 s{sT}, s{sT}, 11\ns_lshl_b32 s{sT+1}, s{sFG}, 7\ns_add_u32 s{sT}, s{sT}, s{sT+1}\ns_add_u32 s{sT}, s{sT}, {base}")
        k(f"s_waitcnt vmcnt({n})")
        gset(f"s{sT}", vT, vT + 2)
    def prefetch():
        if not ('q' in pf or 'i' in pf): return
        k(f"""s_min_u32 s{sT}, s{sFG}, 14
        s_sub_u32 s{sT}, s{sT}, 10
        s_lshl_b32 s{sT+1}, s{sW}, 4
        s_add_u32 s{sT+1}, s{sT+1}, s{sTB}
        s_mul_i32 s{sT+1}, s{sT+1}, 5
        s_add_u32 s{sT+1}, s{sT+1}, s{sT}
        s_lshl_b32 s{sT+1}, s{sT+1}, 13
        v_lshlrev_b32 v{vT+8}, 7, v{vL}""")
        if 'q' in pf:
            k.srd(sO, P_WQ, 640*1280)
            k(f"buffer_load_dword v{vT+9}, v{vT+8}, s[{sO}:{sO+3}], s{sT+1} offen")
        if 'i' in pf:
            k.srd(sO, P_WIN, 640*3456)
            k(f"buffer_load_dword v{vT+10}, v{vT+8}, s[{sO}:{sO+3}], s{sT+1} offen")
    def prefetch_sp():
        if 's' not in pf: return
        att_progress(1, vT + 5, 8)
        k(f"""s_sub_u32 s{sT}, s{sFG}, 14
        s_lshl_b32 s{sT}, s{sT}, 2
        s_add_u32 s{sT}, s{sT}, s{sW}
        s_lshl_b32 s{sT}, s{sT}, 16
        s_lshl_b32 s{sT+1}, s{sTB}, 19
        s_add_u32 s{sT}, s{sT}, s{sT+1}
        v_lshlrev_b32 v{vT+8}, 7, v{vL}""")
        k.srd(sO, P_WSP, 2048*4096)
        for i in range(8):
            k(f"buffer_load_dword v{vT+9}, v{vT+8}, s[{sO}:{sO+3}], s{sT} offen {ntw}\ns_add_u32 s{sT}, s{sT}, 8192")
            if i % 2 == 1: k("s_waitcnt vmcnt(0)")
    def u_addr():
        k.srd(sO, P_WS, SZ_OUF, WS_OUF)
        k(f"""v_lshrrev_b32 v{vT+1}, 4, v{vTok}
        v_mul_u32_u24 v{vT+1}, {47*1024}, v{vT+1}
        v_and_b32 v{vT+2}, 15, v{vTok}
        v_lshl_add_u32 v{vT+1}, v{vT+2}, 4, v{vT+1}
        v_lshl_add_u32 v{vT+1}, v{vH}, 8, v{vT+1}
        s_lshl_b32 s{sT}, s{sFG}, 11
        s_add_u32 s{sT}, s{sT}, {20*1024}""")
    def poison(with_u):
        pz = vT + 4
        for i in range(4): k(f"v_mov_b32 v{pz+i}, -1")
        if with_u:
            l = k.lab("pu")
            u_addr()
            for i in range(4):
                if i == 2: k(f"s_cmp_eq_u32 s{sFG}, 13\ns_cbranch_scc1 {l}")
                k(f"buffer_store_dwordx4 {v(pz,4)}, v{vT+1}, s[{sO}:{sO+3}], s{sT} offen offset:{512*i} sc1")
            k.label(l)
        else:
            k.srd(sO, P_WS, SZ_OUF, WS_OUF)
        k(f"""s_lshl_b32 s{sT}, s{sT64}, 2
        s_add_u32 s{sT}, s{sT}, s{sW}
        s_mul_i32 s{sT}, s{sT}, {47*1024}
        s_mul_i32 s{sT+1}, s{sHG}, 2560
        s_add_u32 s{sT}, s{sT}, s{sT+1}
        v_lshlrev_b32 v{vT+2}, 4, v{vL}
        buffer_store_dwordx4 {v(pz,4)}, v{vT+2}, s[{sO}:{sO+3}], s{sT} offen sc1
        buffer_store_dwordx4 {v(pz,4)}, v{vT+2}, s[{sO}:{sO+3}], s{sT} offen offset:1024 sc1
        s_mov_b32 exec_hi, 0
        buffer_store_dwordx4 {v(pz,4)}, v{vT+2}, s[{sO}:{sO+3}], s{sT} offen offset:2048 sc1
        s_mov_b32 exec_hi, -1""")
    def poison_done():
        k(f"v_mov_b32 v{vT+4}, {L_F+F_XC}\nds_write_b32 v{vT+4}, v{vOne}")
    def att_progress(val, va, slp):
        l = k.lab("ac"); d = k.lab("acd")
        k(f"v_and_b32 v{va}, 7, v{vL}\nv_lshlrev_b32 v{va}, 2, v{va}\nv_add_u32 v{va}, {L_F}, v{va}")
        k.label(l)
        k(f"ds_read_b32 v{vFl}, v{va}\ns_waitcnt lgkmcnt(0)\nv_cmp_gt_u32 vcc, {val}, v{vFl}\ns_cbranch_vccz {d}\ns_sleep {slp}")
        again(l)
        k.label(d)
    vm = []
    def vop(tag, txt):
        vm.append(tag); return txt
    def newer(tags):
        idx = [i for i, t in enumerate(vm) if t in tags]
        return len(vm) - 1 - max(idx) if idx else 63
    cohA = [ntx]; cohB = [""]
    def la(g, p): return vop(("A", g), f"buffer_load_dwordx4 v{vD+p}, s[{sA}:{sA+3}], s{sSoA} offen offset:{1024*p} {cohA[0]} lds")
    def lb(g, p): return vop(("B", g), f"buffer_load_dwordx4 v{vDb+p}, s[{sB}:{sB+3}], s{sSoB} offen offset:{1024*p} {cohB[0]} lds")
    wrapA = [False]; wrapB = [False]
    def advA():
        if wrapA[0]: k(f"s_add_u32 s37, s37, 128\ns_and_b32 s37, s37, 0xfff\ns_add_u32 s{sSoA}, s38, s37")
        else: k(f"s_add_u32 s{sSoA}, s{sSoA}, 128")
    def advB():
        if wrapB[0]: k(f"s_add_u32 s39, s39, 4096\ns_and_b32 s39, s39, 0x1ffff\ns_add_u32 s{sSoB}, s54, s39")
        else: k(f"s_add_u32 s{sSoB}, s{sSoB}, s{sStepB}")
    vWe = z2
    def abuf(g):
        if deep and g in (3, 4, 5, 9):
            e = {3: 0, 4: 1, 5: 2, 9: 0}[g]
            return vWe, 16384 * e, 16384 * e - 49152
        return vWa, 16384 * (g % 3), 16384 * (g % 3)
    def issue_a(g):
        k(f"s_add_u32 m0, s{sM0A}, {hx(abuf(g)[2])}\ns_nop 0")
        for p in range(4): k(la(g, p))
        k(f"s_add_u32 s{sSoA}, s{sSoA}, 128")
    def issue_b(g):
        k(f"s_add_u32 m0, s{sM0B}, {8192*(g%6)}\ns_nop 0")
        for p in range(2): k(lb(g, p))
        advB()
    FR = lambda b, i: fs[b][0][0] + 4 * i
    def reads(ty, half, b, g):
        ba, bz = g % 3, g % 6
        r = [f"ds_read_b128 {v(FR(b,tn),4)}, v{vWa+half} offset:{16384*ba+2048*tn}" for tn in range(2)]
        for fm in range(4):
            d = FR(b, 2 + fm)
            if ty == "frag":
                r.append(f"ds_read_b128 {v(d,4)}, v{vZf} offset:{8192*bz+2048*fm+1024*half}")
            else:
                r.append(f"ds_read_b64_tr_b16 {v(d,2)}, v{vZa+fm} offset:{8192*bz+4096*half}")
                r.append(f"ds_read_b64_tr_b16 {v(d+2,2)}, v{vZa+fm} offset:{8192*bz+4096*half+512}")
        return r
    vSx, vSq, vCs = z1, z1 + 4, [z1 + 8, z1 + 12]
    prio = [3]
    pat = [patz]
    inloop = [False]
    carry = [False]
    cold = []
    cacc = [acc]
    def half(b, hf, zero, stats, kv, rd, dm, ex=()):
        fast = prio[0] == 3
        n = len(rd)
        cut = [0, n, n, n] if fast else [0, (n + 1) // 2, n, n]
        cur = [3]
        def setp(p):
            if not fast and cur[0] != p:
                k(f"s_setprio {p}"); cur[0] = p
        for j in range(4):
            if True:
                setp(int(pat[0][4*hf + j]))
                abl = MX if (inloop[0] or "all" in MX) else ""
                for tn in range(2):
                    d = cacc[0][j >> 1] + 8*tn + 4*(j & 1)
                    k(f"v_mfma_f32_16x16x32_bf16 {v(d,4)}, {v(FR(b,2+j),4)}, {v(FR(b,tn),4)}, {'0' if zero else v(d,4)}")
                if "nord" in abl: rd = ["s_nop 0"] * len(rd)
                if "nodma" in abl: dm = [[], [], [], []]
                if j < 3 and cut[j+1] > cut[j]:
                    setp(rprio)
                    for x in rd[cut[j]:cut[j+1]]: k(x)
                if ex:
                    setp(3)
                    for x in ex[len(ex)*j//4:len(ex)*(j+1)//4]: k(x)
                if dm[j]:
                    setp(prio[0])
                    for f_ in dm[j]:
                        if thr is not None and not fast: k(f"s_waitcnt vmcnt({thr})")
                        k(f_())
        setp(3)
    def lf():
        return "\n".join([f"s_mov_b32 m0, s{sM0F}", f"s_add_u32 s{sSoF}, s{sSoF}, 4",
                          vop("F", f"buffer_load_dword v{vPg}, s[{sTb}:{sTb+3}], s{sSoF} offen lds")])
    def body(g, ty, ty_next, first=False, doA=True, doB=True, loop=False, dyn=False, tailA=None, tailB=None, cout=True, ex=(), needp=0):
        cin = carry[0]
        k("s_waitcnt lgkmcnt(0)")
        dm = [[], [], [], []]
        def a3():
            k(la(g + 2, 3)); advA(); return "s_nop 0"
        if cin: dm = [[lambda: la(g + 2, 2)], [a3], [], []]
        half(0, 0, first, False, False, reads(ty, 1, 1, g) + [f"ds_read_b32 v{vFl}, v{vFa}"], dm, ex[:len(ex)//2])
        if doB or tailB: k(f"s_add_u32 m0, s{sM0B}, {8192*((g+4)%6)}")
        if tailB: k(tailB)
        n = 7 if loop else min(63, newer({("A", g + 1)}))
        ok = k.lab("gok"); sl = k.lab("gslow")
        need = f"s{sNeed}" if (loop or dyn) else str(g - 2 + needp)
        acct = "acct" in MX and loop
        if acct: k("s_waitcnt lgkmcnt(0)\ns_memtime s[36:37]\ns_waitcnt lgkmcnt(0)")
        k(f"s_waitcnt vmcnt({n}) lgkmcnt(0)")
        if acct: k("s_memtime s[38:39]\ns_waitcnt lgkmcnt(0)\ns_sub_u32 s36, s38, s36\ns_add_u32 s82, s82, s36")
        k(f"v_cmp_gt_u32 vcc, {need}, v{vFl}\ns_cbranch_vccnz {sl}")
        cold.append((sl, need, ok))
        k.label(ok)
        if acct: k("s_memtime s[36:37]\ns_waitcnt lgkmcnt(0)\ns_sub_u32 s36, s36, s38\ns_add_u32 s84, s84, s36")
        def mark():
            if doB: advB()
            if not (ev[5] < 30 and g == ev[5] - 1): k(lf())
            t = []
            if doA or tailA: t.append(f"s_add_u32 m0, s{sM0A}, {16384*(g%3)}")
            if tailA: t.append(tailA)
            return "\n".join(t) or "s_nop 0"
        dm = [[], [mark], [], []]
        if doB or tailB: dm = [[lambda: lb(g + 4, 0)], [lambda: lb(g + 4, 1), mark], [], []]
        cout = cout and doA
        if doA or tailA:
            dm[2] = [lambda: la(g + 3, 0)] + ([] if cout else [lambda: la(g + 3, 1)])
            dm[3] = [lambda: la(g + 3, 1)] if cout else [lambda: la(g + 3, 2), lambda: la(g + 3, 3)]
        half(1, 1, False, False, False, reads(ty_next, 0, 0, g + 1) if ty_next else [], dm, ex[len(ex)//2:])
        if doA and not cout: advA()
        carry[0] = cout
        if loop or dyn: k(f"s_add_u32 s{sNeed}, s{sNeed}, 1")
    def hi(): pass
    def lo(): pass
    def prologue(g0, ty):
        k(f"s_add_u32 s{sSoF}, s{sSoF}, {4*(g0-4)}")
        k(lf())
        issue_b(g0 + 1); k(lf()); issue_a(g0 + 1); issue_b(g0 + 2); issue_b(g0 + 3); k(lf()); issue_a(g0 + 2)
        k(f"s_waitcnt vmcnt({newer({('A', g0)})})")
        spinw(vFa, g0 - 3)
        for r in reads(ty, 0, 0, g0): k(r)
    def src_win(off_const):
        k.srd(sB, P_WIN, 640*3456)
        k(f"""s_mul_i32 s{sSoB}, s{sW}, {16*3456}
        s_lshl_b32 s{sT}, s{sFG}, 7
        s_add_u32 s{sSoB}, s{sSoB}, s{sT}
        s_add_u32 s{sSoB}, s{sSoB}, {off_const}
        s_mov_b32 s{sStepB}, {64*3456}""")
    def load_mr():
        lds_wait(L_F + F_XR, vT, vT + 1)
        k.srd(sO, P_WS, SZ_XN, WS_XN)
        k(f"v_mul_u32_u24 v{vT+2}, {XN_ST}, v{vTok}")
        k(vop("mr", f"buffer_load_dwordx2 {v(vT+8,2)}, v{vT+2}, s[{sO}:{sO+3}], 0 offen offset:1280 sc1"))
    def src_xn():
        k.srd(sA, P_WS, SZ_XN, WS_XN)
        k(f"s_lshl_b32 s{sBaseA}, s{sTB}, 2\ns_add_u32 s{sBaseA}, s{sBaseA}, s{sW}\ns_mul_i32 s{sBaseA}, s{sBaseA}, {32*XN_ST}\ns_mov_b32 s{sSoA}, s{sBaseA}")
    def ln_fold(kv):
        mu, r = vT + 8, vT + 9
        k(f"""s_waitcnt vmcnt({newer({'mr'})})
        v_and_b32 v{vT+2}, s{sMask}, v{mu}
        v_sub_f32 v{vT+3}, v{mu}, v{vT+2}
        v_cvt_pk_bf16_f32 v{vT}, -v{vT+2}, -v{vT+3}
        v_cvt_pk_bf16_f32 v{vT+1}, -v{vT+2}, 0""")
        for u in range(2):
            c = vCs[u]
            k(f"""v_and_b32 v{c+3}, s{sMask}, v{c+2}
            v_sub_f32 v{c+2}, v{c+2}, v{c+3}
            v_cvt_pk_bf16_f32 v{c}, v{c+3}, v{c+3}
            v_cvt_pk_bf16_f32 v{c+1}, v{c+2}, 0""")
        k("s_nop 1")
        for u in range(2):
            A_, B_ = (vT, vCs[u]) if (kv and u == 1) else (vCs[u], vT)
            k(f"v_mfma_f32_32x32x8_bf16 {v(acc[u],16)}, {v(A_,2)}, {v(B_,2)}, {v(acc[u],16)}")
    def swap4(b0):
        k(f"v_permlane32_swap_b32 v{b0}, v{b0+2}\nv_permlane32_swap_b32 v{b0+1}, v{b0+3}")
    def swap44(*bs):
        for b0 in bs: k(f"v_permlane32_swap_b32 v{b0}, v{b0+2}\nv_permlane32_swap_b32 v{b0+1}, v{b0+3}")
        for b0 in bs: k(f"v_permlane16_swap_b32 v{b0}, v{b0+2}\nv_permlane16_swap_b32 v{b0+1}, v{b0+3}")
    def gelu(u, dst, stats):
        t = acc[u]
        if pkv & 1:
            E = range(0, 16, 2)
            for i in E: k(f"v_pk_mul_f32 {v(tmp+i,2)}, {v(t+i,2)}, {v(t+i,2)}")
            for i in E: k(f"v_pk_fma_f32 {v(tmp+i,2)}, {v(tmp+i,2)}, {v(vT+12,2)}, {v(vT+12,2)} op_sel:[0,0,1] op_sel_hi:[1,0,1]")
            for i in E: k(f"v_pk_mul_f32 {v(tmp+i,2)}, {v(tmp+i,2)}, {v(t+i,2)}")
            for i in range(16): k(f"v_exp_f32 v{tmp+i}, v{tmp+i}")
            for i in E: k(f"v_pk_add_f32 {v(tmp+i,2)}, {v(tmp+i,2)}, 1.0 op_sel_hi:[1,0]")
            for i in range(16): k(f"v_rcp_f32 v{tmp+i}, v{tmp+i}")
            for i in E: k(f"v_pk_mul_f32 {v(tmp+i,2)}, {v(tmp+i,2)}, {v(t+i,2)}")
            for i in E: k(f"v_cvt_pk_bf16_f32 v{dst+i//2}, v{tmp+i}, v{tmp+i+1}")
            for i in range(8):
                c = vT + 10 if i < 4 else vT + 6
                k(f"v_dot2c_f32_bf16 v{c}, v{vOnes}, v{dst+i}\nv_dot2c_f32_bf16 v{c+1}, v{dst+i}, v{dst+i}")
            return
        for g0 in range(0, 16, 8):
            R = range(g0, g0 + 8)
            for i in R: k(f"v_mul_f32 v{tmp+i-g0}, v{t+i}, v{t+i}")
            for i in R: k(f"v_fmaak_f32 v{tmp+i-g0}, v{vT+12}, v{tmp+i-g0}, {fl(GC0)}")
            for i in R: k(f"v_mul_f32 v{tmp+i-g0}, v{tmp+i-g0}, v{t+i}")
            for i in R: k(f"v_exp_f32 v{tmp+i-g0}, v{tmp+i-g0}")
            for i in R: k(f"v_add_f32 v{tmp+i-g0}, 1.0, v{tmp+i-g0}")
            for i in R: k(f"v_rcp_f32 v{tmp+i-g0}, v{tmp+i-g0}")
            for i in R: k(f"v_mul_f32 v{tmp+i-g0}, v{tmp+i-g0}, v{t+i}")
            for i in range(0, 8, 2): k(f"v_cvt_pk_bf16_f32 v{dst+(g0+i)//2}, v{tmp+i}, v{tmp+i+1}")
            if stats:
                c = vT + 10 if g0 == 0 else vT + 6
                for i in range(8):
                    k(f"v_add_f32 v{c}, v{c}, v{tmp+i}\nv_fmac_f32 v{c+1}, v{tmp+i}, v{tmp+i}")

    rep = k.lab("rep"); b10 = k.lab("b10"); outp = k.lab("outp"); outq = k.lab("outq"); kw = k.lab("kw"); kwd = k.lab("kwd")
    vx, vw = z2, z2 + 2
    k(f"v_lshrrev_b32 v{vT}, 3, v{vL}\nv_and_b32 v{vT+1}, 7, v{vL}")
    for p in range(2):
        k(f"""v_add_u32 v{vT+2}, {8*p}, v{vT}
        v_bfe_u32 v{vT+3}, v{vT+2}, 1, 3
        v_xor_b32 v{vT+3}, v{vT+3}, v{vT+1}
        v_mul_u32_u24 v{vT+2}, 1280, v{vT+2}
        v_lshl_add_u32 v{vx+p}, v{vT+3}, 4, v{vT+2}""")
    k(f"v_subrev_u32 v{vx+1}, 1024, v{vx+1}")
    k.srd(sA, P_X, SZ_Q)
    k(f"""s_lshl_b32 s{sBaseA}, s{sT64}, 2
    s_add_u32 s{sBaseA}, s{sBaseA}, s{sW}
    s_mul_i32 s{sBaseA}, s{sBaseA}, {16*1280}
    s_lshl_b32 s{sNeed}, s{sW}, 11
    s_add_u32 s{sNeed}, s{sNeed}, {F_B}""")
    sKr = 36
    def l_rot():
        if frot: k(f"s_lshr_b32 s{sKr}, s2, 3\ns_mul_i32 s{sKr}, s{sKr}, {frot}\ns_mul_i32 s{sT}, s{sKr}, 6554\ns_lshr_b32 s{sT}, s{sT}, 16\ns_mul_i32 s{sT}, s{sT}, 10\ns_sub_u32 s{sKr}, s{sKr}, s{sT}")
        else: k(f"s_mov_b32 s{sKr}, 0")
    def l_x(g):
        k(f"s_lshl_b32 s{sSoA}, s{sKr}, 7\ns_add_u32 m0, s{sNeed}, {F_S*(g%6)}\ns_add_u32 s{sSoA}, s{sBaseA}, s{sSoA}")
        for p in range(2): k(vop(("A", g), f"buffer_load_dwordx4 v{vx+p}, s[{sA}:{sA+3}], s{sSoA} offen offset:{1024*p} lds"))
    def l_w(g, n):
        k(f"s_mul_i32 s{sSoA}, s{sKr}, s{sStepB}\ns_add_u32 m0, s{sI}, {F_S*(g%6)}\ns_add_u32 s{sSoA}, s{sSoA}, s{sSoB}")
        for p in range(n): k(vop(("A", g), f"buffer_load_dwordx4 v{vw+p}, s[{sB}:{sB+3}], s{sSoA} offen offset:{1024*p} lds"))
        k(f"s_add_u32 s{sKr}, s{sKr}, 1\ns_cmp_eq_u32 s{sKr}, 10\ns_cmov_b32 s{sKr}, 0")
    lx, ls, lt, la_ = fs[0][0][0], fs[1][0][0], fs[1][0][0] + 16, z2 + 6
    def l_pass(n, x0done, mid=None, lead=3, xf=False):
        for g in range(lead):
            if not (g == 0 and x0done): l_x(g)
            l_w(g, n)
        if mid: mid()
        k(f"v_lshl_add_u32 v{la_}, v{vL}, 4, s{sNeed}\nv_add_u32 v{la_+1}, {3*F_S}, v{la_}")
        for i in range(16): k(f"v_mov_b32 v{ls+i}, 0")
        for g in range(10):
            k(f"s_waitcnt vmcnt({newer({('A', g)})})")
            if g == 0: sp('land0')
            k("s_barrier")
            if g == 0: sp('p1s')
            for p in range(2):
                k(f"ds_read_b128 {v(lx+4*p,4)}, v{la_+(g%6)//3} offset:{F_S*(g%3)+1024*p}")
            if g + lead < 10:
                l_x(g + lead); l_w(g + lead, n)
            if g == 9 and xf:
                k(f"s_lshl_b32 s{sT+3}, s{sTB}, 2\ns_add_u32 s{sT+3}, s{sT+3}, s{sW}\ns_lshl_b32 s{sT+3}, s{sT+3}, 9\nv_lshlrev_b32 v{vT+4}, 7, v{vL}\ns_mov_b64 exec, 0xf")
                k(gload(f"s{sT+3}", vT + 4, vT + 8))
                k("s_mov_b64 exec, -1")
            k("s_waitcnt lgkmcnt(0)")
            for hh in range(2):
                for p in range(2):
                    X = lx + 4*p + 2*hh
                    k(f"v_mfma_f32_4x4x4_16b_bf16 {v(ls+8*p,4)}, {v(vOnes,2)}, {v(X,2)}, {v(ls+8*p,4)}")
                    k(f"v_mfma_f32_4x4x4_16b_bf16 {v(ls+8*p+4,4)}, {v(X,2)}, {v(X,2)}, {v(ls+8*p+4,4)}")
        k(f"v_and_b32 v{lt}, 3, v{vL}\ns_nop 2")
        for i in range(1, 4):
            k(f"v_cmp_eq_u32 vcc, {i}, v{lt}\ns_nop 1")
            for p in range(2): k(f"v_cndmask_b32 v{ls+8*p+4}, v{ls+8*p+4}, v{ls+8*p+4+i}, vcc")
        R = [ls, ls + 8, ls + 4, ls + 12]
        for m in ("quad_perm:[1,0,3,2]", "quad_perm:[2,3,0,1]", "row_half_mirror"):
            for r in R: k(f"v_add_f32_dpp v{r}, v{r}, v{r} {m} row_mask:0xf bank_mask:0xf")
        for r in R: k(f"v_mul_f32 v{r}, {fl(1.0/640)}, v{r}")
        for p in range(2):
            mu, q_ = ls + 8*p, ls + 8*p + 4
            k(f"v_fma_f32 v{q_}, -v{mu}, v{mu}, v{q_}\nv_max_f32 v{q_}, 0, v{q_}\nv_add_f32 v{q_}, {fl(1e-5)}, v{q_}\nv_rsq_f32 v{q_}, v{q_}")
        k(f"""s_lshl_b32 s{sT}, s{sW}, 6
        s_add_u32 s{sT}, s{sT}, {F_STS}
        v_lshrrev_b32 v{lt}, 3, v{vL}
        v_lshl_add_u32 v{lt}, v{lt}, 2, s{sT}
        ds_write_b32 v{lt}, v{ls}
        ds_write_b32 v{lt}, v{ls+4} offset:256
        ds_write_b32 v{lt}, v{ls+8} offset:32
        ds_write_b32 v{lt}, v{ls+12} offset:288
        s_waitcnt lgkmcnt(0)""")
    def q_src():
        for p in range(3):
            k(f"""v_add_u32 v{vT}, {64*p}, v{vL}
            v_mul_u32_u24 v{vT+1}, 5462, v{vT}
            v_lshrrev_b32 v{vT+1}, 16, v{vT+1}
            v_mul_u32_u24 v{vT+2}, 12, v{vT+1}
            v_sub_u32 v{vT+2}, v{vT}, v{vT+2}
            v_min_u32 v{vT+2}, 9, v{vT+2}
            v_mul_u32_u24 v{vT+1}, 1280, v{vT+1}
            v_lshl_add_u32 v{vw+p}, v{vT+2}, 4, v{vT+1}""")
            if p: k(f"v_subrev_u32 v{vw+p}, {1024*p}, v{vw+p}")
        k.srd(sB, P_WQ, 640*1280)
        k(f"""s_mul_i32 s{sSoB}, s{sW}, {16*1280}
        s_mul_i32 s{sT}, s{sHG}, 160
        s_add_u32 s{sSoB}, s{sSoB}, s{sT}
        s_mov_b32 s{sStepB}, {64*1280}
        s_mul_i32 s{sI}, s{sW}, 3072
        s_add_u32 s{sI}, s{sI}, {F_B+8192}""")
    if "skip" in MX:
        k(f"s_barrier\ns_cmp_eq_u32 s{sHG}, 7\ns_cbranch_scc1 {end}")
        setup_rest(); a_addr(4096)
        k.srd(sA, P_WSP, 2048*4096)
        k(f"s_lshl_b32 s{sSoA}, s{sTB}, 2\ns_add_u32 s{sSoA}, s{sSoA}, s{sW}\ns_lshl_b32 s{sSoA}, s{sSoA}, 17")
        k(f"v_lshlrev_b32 v{vDb}, 4, v{vL}\nv_lshlrev_b32 v{vDb+1}, 4, v{vL}\ns_add_u32 s{sSoF}, s{sSoF}, {4*28}\ns_waitcnt vmcnt(0)")
        k(lf()); k(f"s_branch {skipG}")
    early = 'b' not in pf
    sKr = 36
    l_rot()
    if early: l_x(0)
    k(f"s_cmp_eq_u32 s{sHG}, 7\ns_cbranch_scc1 {rep}")
    q_src()
    def mid():
        setup_rest(); nat_read_addr(128); b_addr(3456); a_addr(XN_ST)
    if early: l_pass(3, True, mid, xf=True, lead=lq)
    else:
        mid(); k("s_barrier"); l_pass(3, False, xf=True)
    sp('p1l')
    k("s_barrier")
    src_win(13 * 128)
    issue_b(10)
    src_xn()
    xo = k.lab("xo")
    k("s_waitcnt vmcnt(2)\ns_mov_b64 exec, 0xf")
    gcheck(vT + 8)
    k(f"s_mov_b64 exec, -1\ns_cbranch_vccz {xo}")
    gpoll(f"s{sT+3}", vT + 4, vT + 8, 0xf, 2)
    k.label(xo)
    cohA[0] = "sc1"
    issue_a(10)
    prologue(10, "nat")

    k.label(b10)
    sp('p1')
    prio[0] = lprio
    vFg, vSt = vT + 8, tmp
    def z_ready():
        pd = k.lab("zpd")
        sp('zc')
        k(f"s_waitcnt vmcnt({newer({'pz'})})")
        gcheck(vFg)
        k(f"s_cbranch_vccz {pd}")
        k(f"s_lshl_b32 s{sT}, s{sW}, 13\ns_add_u32 s{sT}, s{sT}, {FL_Z}")
        gpoll(f"s{sT}", vT + 14, vFg, None, 4)
        k.label(pd)
        gsync()
        sp('zr')
        k.srd(sB, P_WS, SZ_Z2F, WS_Z2F)
        k(f"""s_lshl_b32 s{sT}, s{sFG}, 2
        s_add_u32 s{sT}, s{sT}, s{sW}
        s_lshl_b32 s{sSoB}, s{sT}, 16
        s_mov_b32 s{sStepB}, 2048
        v_add_u32 v{vZf}, {L_Z}, v{vDb}""")
        cohB[0] = "sc1"
        k(f"s_setprio {lprio}")
        for g in range(30, ev[5] + 4): issue_b(g)
        if ev[5] < 30: k(lf())
        k("s_setprio 3")
    for g in range(10, 30):
        if g == 16:
            src_win(0)
        if g == 17:
            k(f"s_mov_b32 s{sSoA}, s{sBaseA}")
        if g == 14 and so:
            poison(False)
        if g == 20:
            sp('p2')
            hi()
            s0 = k.lab("s0")
            k(f"v_mov_b32 v{vT+12}, {fl(GC1)}\nv_mov_b32 v{vT+13}, {fl(GC0)}\nv_mov_b32 v{vT+10}, 0\nv_mov_b32 v{vT+11}, 0\nv_mov_b32 v{vT+6}, 0\nv_mov_b32 v{vT+7}, 0\ns_nop 1")
            k(f"s_cmp_eq_u32 s{sFG}, 0\ns_cbranch_scc1 {s0}")
            gelu(0, z2, True)
            k.label(s0)
            gelu(1, z2 + 8, True)
            k.srd(sO, P_WS, SZ_ST, WS_ST)
            k(f"""v_permlane16_swap_b32 v{vT+10}, v{vT+6}
            v_permlane16_swap_b32 v{vT+11}, v{vT+7}
            v_add_f32 v{vT+10}, v{vT+10}, v{vT+6}
            v_add_f32 v{vT+11}, v{vT+11}, v{vT+7}
            v_mov_b32 v{vT+2}, v{vT+10}
            v_mov_b32 v{vT+3}, v{vT+11}
            s_mul_i32 s{sT}, s{sTB}, 14
            s_add_u32 s{sT}, s{sT}, s{sFG}
            v_permlane32_swap_b32 v{vT+10}, v{vT+2}
            v_permlane32_swap_b32 v{vT+11}, v{vT+3}
            s_lshl_b32 s{sT}, s{sT}, 10
            s_lshl_b32 s{sT+1}, s{sW}, 8
            v_add_f32 v{vT+10}, v{vT+10}, v{vT+2}
            v_add_f32 v{vT+11}, v{vT+11}, v{vT+3}
            v_lshlrev_b32 v{vT+2}, 3, v{vN}
            s_add_u32 s{sT}, s{sT}, s{sT+1}
            s_mov_b32 exec_hi, 0""")
            k(vop("st", f"buffer_store_dwordx2 {v(vT+10,2)}, v{vT+2}, s[{sO}:{sO+3}], s{sT} offen sc1"))
            k("s_mov_b32 exec_hi, -1")
            lo()
        if g == 21:
            sp('e21')
            hi()
            assert not sent
            set_wflag(FL_S, newer({'st'}))
            sp('sf')
            lo()
        if g == ev[0]:
            hi()
            k(f"v_min_u32 v{vT+14}, 13, v{vL}\nv_lshlrev_b32 v{vT+14}, 7, v{vT+14}\ns_lshl_b32 s{sT}, s{sTB}, 2\ns_add_u32 s{sT}, s{sT}, s{sW}\ns_lshl_b32 s{sT}, s{sT}, 11\ns_add_u32 s{sT}, s{sT}, {FL_S}")
            k(vop("pf", gload(f"s{sT}", vT + 14, vFg)))
            lo()
        if g == ev[1]:
            sp('e24')
            hi()
            ok = k.lab("sok")
            k(f"s_waitcnt vmcnt({newer({'pf'})})")
            gcheck(vFg)
            k(f"s_cbranch_vccz {ok}")
            k(f"s_lshl_b32 s{sT}, s{sTB}, 2\ns_add_u32 s{sT}, s{sT}, s{sW}\ns_lshl_b32 s{sT}, s{sT}, 11\ns_add_u32 s{sT}, s{sT}, {FL_S}")
            gpoll(f"s{sT}", vT + 14, vFg, 0x3fff, 4)
            k.label(ok)
            sp('sok')
            k(f"""v_mul_u32_u24 v{vT+14}, 7168, v{vH}
            v_lshl_add_u32 v{vT+14}, v{vN}, 3, v{vT+14}
            s_mul_i32 s{sT}, s{sTB}, {14*1024}
            s_lshl_b32 s{sT+1}, s{sW}, 8
            s_add_u32 s{sT}, s{sT}, s{sT+1}
            s_add_u32 s{sT+1}, s{sT}, 4096""")
            for i in range(7):
                k(vop("sl", f"buffer_load_dwordx2 {v(z1+2*i,2)}, v{vT+14}, s[{sO}:{sO+3}], s{sT + i//4} offen offset:{1024*(i%4)} sc1"))
            lo()
        if g == ev[2]:
            sp('e25')
            hi()
            sel, D = tmp, tmp + 8
            mur, r = vT + 10, vT + 11
            k(f"""v_and_b32 v{vT+2}, 15, v{vL}
            v_lshrrev_b32 v{vT+3}, 4, v{vL}
            v_lshlrev_b32 v{vT+3}, 2, v{vT+3}
            v_sub_u32 v{vT+2}, v{vT+2}, v{vT+3}
            v_mov_b32 v{vT+3}, 0x3f80
            v_mov_b32 v{vT+4}, 0x3f800000""")
            for q in (0, 1, 4, 5): k(f"v_mov_b32 v{sel+q}, 0")
            for q in range(2):
                k(f"""v_cmp_eq_u32 vcc, {2*q}, v{vT+2}
                v_cmp_eq_u32 s[{sT}:{sT+1}], {2*q+1}, v{vT+2}
                s_nop 0
                v_cndmask_b32 v{sel+2+q}, 0, v{vT+3}, vcc
                v_cndmask_b32 v{sel+2+q}, v{sel+2+q}, v{vT+4}, s[{sT}:{sT+1}]""")
            k(f"s_waitcnt vmcnt({newer({'sl'})})")
            for i in range(1, 7):
                k(f"v_add_f32 v{z1}, v{z1}, v{z1+2*i}\nv_add_f32 v{z1+1}, v{z1+1}, v{z1+2*i+1}")
            k.srd(sO, P_WS, SZ_Z2F, WS_Z2F)
            k(f"""v_mov_b32 v{z1+2}, v{z1}
            v_mov_b32 v{z1+3}, v{z1+1}
            v_lshlrev_b32 v{vT+2}, 4, v{vL}
            s_lshl_b32 s{sT}, s{sFG}, 18
            v_permlane32_swap_b32 v{z1}, v{z1+2}
            v_permlane32_swap_b32 v{z1+1}, v{z1+3}
            v_add_f32 v{mur}, v{z1}, v{z1+2}
            v_add_f32 v{r}, v{z1+1}, v{z1+3}
            v_mul_f32 v{mur}, {fl(1.0/864)}, v{mur}
            v_mul_f32 v{r}, {fl(1.0/864)}, v{r}
            v_fma_f32 v{r}, -v{mur}, v{mur}, v{r}
            v_max_f32 v{r}, 0, v{r}
            v_add_f32 v{r}, {fl(1e-5)}, v{r}
            v_rsq_f32 v{r}, v{r}
            s_lshl_b32 s{sT+1}, s{sTB}, 12
            s_add_u32 s{sT}, s{sT}, s{sT+1}
            v_mul_f32 v{mur}, v{mur}, v{r}
            v_mov_b32 v{vT+7}, v{r}
            v_mov_b32 v{vT+6}, v{mur}
            s_lshl_b32 s{sT+1}, s{sW}, 10
            s_add_u32 s{sT}, s{sT}, s{sT+1}
            v_permlane16_swap_b32 v{r}, v{vT+7}
            v_permlane16_swap_b32 v{mur}, v{vT+6}""")
            s1 = k.lab("s1")
            for u in (1, 0):
                if u == 0:
                    k(f"s_cmp_eq_u32 s{sFG}, 0\ns_cbranch_scc1 {s1}\ns_sub_u32 s{sT}, s{sT}, 0x20000")
                k(f"s_add_u32 s{sT+1}, s{sT}, 0x10000")
                zz = z2 + 8*u
                for i in range(8):
                    m_, r_ = (mur, r) if i < 4 else (vT + 6, vT + 7)
                    k(f"""v_lshlrev_b32 v{vT+4}, 16, v{zz+i}
                    v_and_b32 v{vT+5}, s{sMask}, v{zz+i}
                    v_fma_f32 v{vT+4}, v{vT+4}, v{r_}, -v{m_}
                    v_fma_f32 v{vT+5}, v{vT+5}, v{r_}, -v{m_}
                    v_cvt_pk_bf16_f32 v{zz+i}, v{vT+4}, v{vT+5}""")
                k("s_nop 1")
                for c in range(2):
                    for tn in range(2):
                        k(f"v_mfma_f32_16x16x32_bf16 {v(D+8*c+4*tn,4)}, {v(zz+4*tn,4)}, {v(sel+2-2*c,4)}, 0")
                k("s_nop 4")
                for i in range(8): k(f"v_cvt_pk_bf16_f32 v{zz+i}, v{D+2*i}, v{D+2*i+1}")
                k("s_nop 0")
                swap44(zz, zz + 4)
                for c in range(2):
                    k(vop("zs", f"buffer_store_dwordx4 {v(zz+4*c,4)}, v{vT+2}, s[{sO}:{sO+3}], s{sT + c} offen sc1"))
            k.label(s1)
            del vm[-2:]
            lo()
        if g == ev[3]:
            sp('e26')
            hi()
            k(f"s_waitcnt vmcnt({newer({'zs'})})")
            sp('za')
            gsync(); set_flag(FL_Z)
            sp('zf')
            if so: poison_done()
            lo()
        if g == 27:
            sp('e27')
            hi()
            a_addr(4096)
            k.srd(sA, P_WSP, 2048*4096)
            k(f"s_lshl_b32 s{sSoA}, s{sTB}, 2\ns_add_u32 s{sSoA}, s{sSoA}, s{sW}\ns_lshl_b32 s{sSoA}, s{sSoA}, 17")
            cohA[0] = ntw
            if prot is not None:
                wrapA[0] = True
                k(f"""s_and_b32 s36, s{sTB}, 1
                s_mul_i32 s36, s36, {prot[0]}
                s_mul_i32 s37, s{sFG}, {prot[1]}
                s_add_u32 s36, s36, s37
                s_and_b32 s36, s36, 31
                s_mov_b32 s38, s{sSoA}
                s_lshl_b32 s37, s36, 7
                s_add_u32 s{sSoA}, s38, s37""")
            k.srd(sB, P_BSP, 4096)
            k(f"v_lshlrev_b32 v{vT+2}, 1, v{vTok}\nv_lshlrev_b32 v{vDb}, 4, v{vL}\nv_lshlrev_b32 v{vDb+1}, 4, v{vL}")
            k(vop("bias", f"buffer_load_ushort v{vBias}, v{vT+2}, s[{sB}:{sB+3}], 0 offen"))
            lo()
        if g == ev[4]:
            k(f"s_lshl_b32 s{sT}, s{sW}, 13\ns_add_u32 s{sT}, s{sT}, {FL_Z}\nv_and_b32 v{vT+14}, 15, v{vL}\nv_min_u32 v{vT+14}, 13, v{vT+14}\nv_and_or_b32 v{vT+14}, v{vL}, 48, v{vT+14}\nv_lshlrev_b32 v{vT+14}, 7, v{vT+14}")
            k(vop("pz", gload(f"s{sT}", vT + 14, vFg)))
        if g == ev[5]:
            z_ready()
        body(g, "nat", "nat" if g != 29 else ("frag" if ev[5] < 30 else None), first=(g in (10, 20)), doB=(g < 26 or g >= ev[5]), cout=(g not in (16, 26, ev[5] - 1)),
             needp=((ev[5] - 28) if (g == 29 and ev[5] < 30) else 0))
    sp('p3')
    k.label(skipG)
    if ev[5] == 30:
        z_ready()
        k("s_waitcnt vmcnt(2)")
        gsync()
        for r in reads("frag", 0, 0, 30): k(r)
    pat[0] = pats
    cacc[0] = [z1, z2]
    body(30, "frag", "frag", first=True, needp=max(0, ev[5] - 29) if ev[5] < 30 else 0)
    body(31, "frag", "frag")
    k(f"s_mov_b32 s{sNeed}, 30\ns_mov_b32 s{sI}, 0")
    loop = k.lab("gloop")
    sp('l0')
    if "acct" in MX: k("s_waitcnt lgkmcnt(0)\ns_mov_b32 s82, s80\ns_mov_b32 s84, s80")
    if "lin" in MX:
        for p in range(4): k(f"v_mov_b32 v{vD+p}, v{vDb}")
    if "glin" in MX:
        for p in range(4): k(f"v_add_u32 v{vWa+p}, s{sM0A}, v{vDb}")
    if "oob" in MX: k(f"s_mov_b32 s{sA+2}, 0\ns_mov_b32 s{sB+2}, 0")
    if "ooa" in MX: k(f"s_mov_b32 s{sA+2}, 0")
    if "ooz" in MX: k(f"s_mov_b32 s{sB+2}, 0")
    k.align(3)
    k.label(loop)
    inloop[0] = True
    if "nosc" in MX: cohB[0] = ""
    for g in range(32, 38):
        body(g, "frag", "frag", loop=True)
    inloop[0] = False
    k(f"s_add_u32 s{sI}, s{sI}, 1\ns_cmp_lt_u32 s{sI}, 3\ns_cbranch_scc1 {loop}")
    sp('l1')
    if "skip" in MX: k.endpgm(P_WS, 3)
    if "nopt" in MX:
        k("s_waitcnt lgkmcnt(0)")
        k.stamp(1); k("s_waitcnt lgkmcnt(0)")
        for i in range(32): k("s_nop 15")
        k.stamp(2); k("s_waitcnt lgkmcnt(0)")
        for i in range(256): k(f"v_add_u32 v{vT}, 1, v{vT}")
        k.stamp(3); k("s_waitcnt lgkmcnt(0)")
        for i in range(32): k(f"ds_read_b32 v{vT}, v{vFa}\ns_waitcnt lgkmcnt(0)")
        k.stamp(4); k("s_waitcnt lgkmcnt(0)")
    sG, sWb = sI, sBaseA
    def out_ids():
        k(f"s_lshr_b32 s{sG}, s2, 5\ns_mul_i32 s{sWb}, s{sG}, {47*5120}\ns_add_u32 s{sWb}, s{sWb}, {20*5120 - 1024 - L_A}")
    vm[:] = [((t[0], t[1] + 12) if isinstance(t, tuple) else t) for t in vm]
    def gelu4(r0):
        t = vT
        R = range(4)
        o = [f"v_mul_f32 v{t+i}, v{r0+i}, v{r0+i}" for i in R] + [f"v_fmaak_f32 v{t+i}, v{vT+12}, v{t+i}, {fl(GC0)}" for i in R]
        o += [f"v_mul_f32 v{t+i}, v{t+i}, v{r0+i}" for i in R] + [f"v_exp_f32 v{t+i}, v{t+i}" for i in R]
        o += [f"v_add_f32 v{t+i}, 1.0, v{t+i}" for i in R] + [f"v_rcp_f32 v{t+i}, v{t+i}" for i in R]
        return o + [f"v_mul_f32 v{r0+i}, v{t+i}, v{r0+i}" for i in R]
    for g in range(50, 62):
        tA = tB = None
        if g == 55:
            k(f"v_and_b32 v{vT+14}, 31, v{vL}\nv_lshlrev_b32 v{vT+14}, 7, v{vT+14}\ns_mov_b32 s{sT}, {FL_W}")
            k(gload(f"s{sT}", vT + 14, vFg))
        if g == 58:
            wk = k.lab("wok")
            gcheck(vFg)
            k(f"s_cbranch_vccz {wk}\ns_mov_b32 s{sT}, {FL_W}")
            gpoll(f"s{sT}", vT + 14, vFg, None, 4)
            k.label(wk)
            sp('g58')
            out_ids()
            k.srd(sB, P_WS, SZ_WF, WS_WF)
        if g == 59:
            k.srd(sA, P_WS, SZ_WF, WS_WF)
            cohA[0] = "sc1"
            hi()
            for p in range(4): k(f"v_mov_b32 v{vD+p}, v{vDb}")
            lo()
        if g >= 58: tB = f"s_add_u32 s{sSoB}, m0, s{sWb}"
        if g >= 59: tA = f"s_add_u32 s{sSoA}, m0, s{sWb}"
        body(g, "frag", "frag" if g < 61 else None, dyn=True, doA=(g < 59), doB=(g < 58), tailA=tA, tailB=tB, cout=(g < 58), ex=(gelu4(acc[0] + 4*(g - 50)) if g < 58 else ()))
    sp('p4')
    hi()
    fin = k.lab("gfin")
    def rest_w():
        gsync()
        k(f"s_lshl_b32 s{sT+1}, s{sW}, 12\ns_add_u32 m0, s{sT+1}, {L_Z}\ns_add_u32 s{sSoB}, m0, s{sWb}")
        for p in range(4):
            k(f"buffer_load_dwordx4 v{vDb}, s[{sB}:{sB+3}], s{sSoB} offen offset:{1024*p} sc1 lds")
    k.srd(sO, P_WS, SZ_OUF, WS_OUF)
    k(f"""v_lshlrev_b32 v{vBias}, 16, v{vBias}
    s_lshl_b32 s{sT}, s{sTB}, 2
    s_add_u32 s{sT}, s{sT}, s{sW}
    v_mov_b32 v{vBias1}, v{vBias}
    s_mul_i32 s{sT}, s{sT}, {2*47*1024}
    s_lshl_b32 s{sT+1}, s{sFG}, 11
    s_add_u32 s{sT}, s{sT}, s{sT+1}
    v_permlane16_swap_b32 v{vBias}, v{vBias1}
    s_add_u32 s{sT}, s{sT}, {20*1024}
    s_add_u32 s{sT+1}, s{sT}, {47*1024}""")
    for i in range(2):
        if i == 1:
            k(f"s_cmp_eq_u32 s{sFG}, 13\ns_cbranch_scc1 {fin}")
        ga = cacc[0][i]
        if pkv & 2:
            if pkv & 4: k('s_nop 7')
            for r in range(0, 16, 2): k(f"v_pk_add_f32 {v(ga+r,2)}, {v(ga+r,2)}, {v(vBias,2)} " + ("op_sel_hi:[1,0]" if r < 8 else "op_sel:[0,1] op_sel_hi:[1,1]"))
            for r in range(0, 16, 2): k(f"v_pk_mul_f32 {v(ga+r,2)}, {v(ga+r,2)}, {v(acc[i]+r,2)}")
        else:
            for r in range(16): k(f"v_add_f32 v{ga+r}, v{ga+r}, v{vBias if r < 8 else vBias1}")
            for r in range(16): k(f"v_mul_f32 v{ga+r}, v{ga+r}, v{acc[i]+r}")
        for r in range(8): k(f"v_cvt_pk_bf16_f32 v{tmp+8*i+r}, v{ga+2*r}, v{ga+2*r+1}")
        k("s_nop 0")
        swap44(tmp + 8*i, tmp + 8*i + 4)
        for tn in range(2):
            k(f"buffer_store_dwordx4 {v(tmp+8*i+4*tn,4)}, v{vDb}, s[{sO}:{sO+3}], s{sT+tn} offen offset:{1024*i} sc1")
    k.label(fin)
    sp('ust')
    rest_w()
    sp('urw')
    if not sent: set_wflag(FL_U, 4)
    sp('ufl')
    k(f"s_branch {outp}")

    k.label(rep)
    vm[:] = [("A", 0)] * 2
    k(f"s_cmp_ge_u32 s{sW}, 2\ns_cbranch_scc1 {kw}")
    k.srd(sB, P_WK, 25600)
    k(f"s_branch {kwd}")
    k.label(kw)
    k.srd(sB, P_WV, 25600)
    k.label(kwd)
    k(f"""v_lshlrev_b32 v{vw}, 4, v{vL}
    v_lshlrev_b32 v{vw+1}, 4, v{vL}
    s_and_b32 s{sSoB}, s{sW}, 1
    s_lshl_b32 s{sSoB}, s{sSoB}, 9
    s_mov_b32 s{sStepB}, 2560
    s_lshr_b32 s{sI}, s{sW}, 1
    s_lshl_b32 s{sI}, s{sI}, 12
    s_add_u32 s{sI}, s{sI}, s{sSoB}
    s_add_u32 s{sI}, s{sI}, {F_B+8192}""")
    if early: l_pass(2, True, setup_rest, lead=lk)
    else:
        setup_rest(); k("s_barrier"); l_pass(2, False, lead=4)
    sp('p1l')
    q_src()
    k("s_barrier\ns_barrier\ns_barrier")
    l_pass(3, False)
    k("s_barrier")
    rl = k.lab("rl")
    att_progress(1, vT + 5, 8)
    if spe: prefetch_sp()
    if so: poison(False)
    k(f"s_mov_b32 s{sNeed}, s{sT64}")
    k.label(rl)
    emit_repack(k, sNeed, sW, vL, P_WO, P_WOUT, P_WS, 8, acc[0], L_A, gsync, coh="sc1", rot=orot)
    k(f"s_add_u32 s{sNeed}, s{sNeed}, 32\ns_waitcnt vmcnt(0)")
    gsync()
    k(f"s_cmp_lt_u32 s{sNeed}, 47\ns_cbranch_scc1 {rl}")
    if so: poison_done()
    nf = k.lab("nf")
    k(f"s_cmp_lg_u32 s{sW}, 0\ns_cbranch_scc1 {nf}\ns_lshl_b32 s{sT}, s{sT64}, 7\ns_add_u32 s{sT}, s{sT}, {FL_W}")
    gset(f"s{sT}", vT, vT + 2)
    k.label(nf)
    k.label(outq)
    sp('p1')
    k(f"s_setprio {lprio}")
    out_ids()
    k.srd(sB, P_WS, SZ_WF, WS_WF)
    if not spe: prefetch_sp()
    if zpf:
        k(f"s_lshl_b32 s{sT}, s{sW}, 13\ns_add_u32 s{sT}, s{sT}, {FL_Z}\nv_and_b32 v{vT}, 15, v{vL}\nv_min_u32 v{vT}, 13, v{vT}\nv_and_or_b32 v{vT}, v{vL}, 48, v{vT}\nv_lshlrev_b32 v{vT}, 7, v{vT}")
        gpoll(f"s{sT}", vT, vT + 2, None, 16)
        gsync()
        zl = k.lab("zl")
        k.srd(sO, P_WS, SZ_Z2F, WS_Z2F)
        k(f"s_bfe_u32 s{sT}, s2, 0x20003\ns_lshl_b32 s{sT}, s{sT}, 2\ns_add_u32 s{sT}, s{sT}, s{sW}\nv_lshlrev_b32 v{vT+8}, 7, v{vL}")
        k.label(zl)
        k(f"""s_mul_i32 s{sT+1}, s{sT}, 2428
        s_lshr_b32 s{sT+1}, s{sT+1}, 16
        s_mul_i32 s{sT+2}, s{sT+1}, 27
        s_sub_u32 s{sT+2}, s{sT}, s{sT+2}
        s_lshl_b32 s{sT+2}, s{sT+2}, 17
        s_add_u32 s{sT+1}, s{sT+1}, {16 - zpf}
        s_lshl_b32 s{sT+1}, s{sT+1}, 13
        s_add_u32 s{sT+1}, s{sT+1}, s{sT+2}
        buffer_load_dword v{vT+9}, v{vT+8}, s[{sO}:{sO+3}], s{sT+1} offen sc1
        s_add_u32 s{sT}, s{sT}, 16
        s_cmp_lt_u32 s{sT}, {27 * zpf}
        s_waitcnt vmcnt(1)
        s_cbranch_scc1 {zl}""")
    att_progress(wfat, vT, 32)
    k(f"v_lshlrev_b32 v{vDb}, 4, v{vL}\nv_lshlrev_b32 v{vT}, 7, v{vL}\ns_mov_b32 s{sT}, {FL_W}")
    gpoll(f"s{sT}", vT, vT + 2, 0xffffffff, 16)
    if so:
        k(f"s_lshl_b32 s{sT}, s{sW}, 13\ns_add_u32 s{sT}, s{sT}, {FL_Z}\nv_and_b32 v{vT}, 15, v{vL}\nv_min_u32 v{vT}, 13, v{vT}\nv_and_or_b32 v{vT}, v{vL}, 48, v{vT}\nv_lshlrev_b32 v{vT}, 7, v{vT}")
        gpoll(f"s{sT}", vT, vT + 2, None, 16)
        gsync()
    if 'w' in pf:
        wl = k.lab("wl")
        k(f"""s_bfe_u32 s{sT}, s2, 0x20003
        s_lshl_b32 s{sT}, s{sT}, 2
        s_add_u32 s{sT}, s{sT}, s{sW}
        s_lshl_b32 s{sT}, s{sT}, 13
        v_lshlrev_b32 v{vT+8}, 7, v{vL}""")
        k.label(wl)
        k(f"""buffer_load_dword v{vT+9}, v{vT+8}, s[{sB}:{sB+3}], s{sT} offen sc1
        s_add_u32 s{sT}, s{sT}, {16*8192}
        s_cmp_lt_u32 s{sT}, {SZ_WF}
        s_waitcnt vmcnt(0)
        s_cbranch_scc1 {wl}""")
    k(f"s_mul_i32 s{sT}, s{sW}, {24*1024}\ns_add_u32 s{sT}, s{sT}, {L_A}")
    for p in range(24):
        if p % 4 == 0:
            k(f"s_add_u32 m0, s{sT}, {1024*p}\ns_add_u32 s{sSoB}, m0, s{sWb}")
        k(f"buffer_load_dwordx4 v{vDb}, s[{sB}:{sB+3}], s{sSoB} offen offset:{1024*(p%4)} sc1 lds")

    k.label(outp)
    sp('outp')
    sWF, sOU, sXo = sB, sA, sO
    sTT, sAo, sXof = sSoA, sStepB, sM0A
    a = Alloc(8)
    oacc = a(20, 4)
    af = a(80, 4)
    wb = [a(20, 4), a(20, 4)]
    xr = a(10, 2)
    vQ = a(4, 2)
    vA16, vW0, vW1, vXo, vP = a(), a(), a(), a(), a()
    assert a.n <= 168, a.n
    k.srd(sOU, P_WS, SZ_OUF, WS_OUF)
    k.srd(sXo, P_X, SZ_Q)
    k(f"""s_lshl_b32 s{sTT}, s{sT64}, 2
    s_add_u32 s{sTT}, s{sTT}, s{sW}
    s_mul_i32 s{sAo}, s{sTT}, {47*1024}
    s_mul_i32 s{sXof}, s{sTT}, {16*1280}
    s_mul_i32 s{sT}, s{sG}, 160
    s_add_u32 s{sXof}, s{sXof}, s{sT}
    v_lshlrev_b32 v{vA16}, 4, v{vL}
    v_add_u32 v{vW0}, {L_W}, v{vA16}
    v_add_u32 v{vW1}, {L_W+51200}, v{vA16}
    v_lshlrev_b32 v{vP}, 7, v{vL}
    v_and_b32 v{vXo}, 15, v{vL}
    v_mul_u32_u24 v{vXo}, 1280, v{vXo}
    v_lshrrev_b32 v{vQ}, 4, v{vL}
    v_lshl_add_u32 v{vXo}, v{vQ}, 3, v{vXo}""")
    k(f"s_setprio {lprio}")
    sWs, sWd = sT + 1, sT + 2
    k(f"s_mul_i32 s37, s{sG}, 5\ns_lshr_b32 s37, s37, 1\ns_mul_i32 s38, s{sG}, 27\ns_lshr_b32 s38, s38, 3")
    sU = sNeed
    vm[:] = []
    ld = []
    def lop(tag, txt): ld.append(tag); k(txt)
    def lnewer(tag): return min(15, len(ld) - 1 - max(i for i, t in enumerate(ld) if t == tag))
    def wpieces(step0, lds0, npieces, tag):
        per = npieces // 4
        def setup():
            k(f"""s_mul_i32 s{sWs}, s{sG}, {47*5120}
            s_mul_i32 s{sWd}, s{sW}, {per*1024}
            s_add_u32 s{sWs}, s{sWs}, s{sWd}
            s_add_u32 s{sWs}, s{sWs}, {step0*5120}
            s_add_u32 s{sWd}, s{sWd}, {lds0}""")
        def piece(p):
            if p == 0: setup()
            if p % 4 == 0:
                k(f"s_add_u32 m0, s{sWd}, {1024*p}")
                k(f"s_add_u32 s{sWs}, s{sWs}, 4096" if p else "s_nop 0")
            k(vop(tag, f"buffer_load_dwordx4 v{vA16}, s[{sWF}:{sWF+3}], s{sWs} offen offset:{1024*(p%4)} sc1 lds"))
        return [lambda p=p: piece(p) for p in range(per)]
    def aloads(steps, regs):
        def one(st, r):
            if orot:
                lo_, n_, sr = (0, 20, 37) if st < 20 else (20, 27, 38)
                k(f"s_add_u32 s{sT}, s{sr}, {st-lo_}\ns_sub_u32 s39, s{sT}, {n_}\ns_cselect_b32 s{sT}, s{sT}, s39\ns_lshl_b32 s{sT}, s{sT}, 10\ns_add_u32 s{sT}, s{sT}, s{sAo}")
                if lo_: k(f"s_add_u32 s{sT}, s{sT}, {lo_*1024}")
            else:
                k(f"s_add_u32 s{sT}, s{sAo}, {st*1024}")
            k(vop(("a", st), f"buffer_load_dwordx4 {v(af+4*r,4)}, v{vA16}, s[{sOU}:{sOU+3}], s{sT} offen sc1"))
        return [lambda st=st, r=r: one(st, r) for st, r in zip(steps, regs)]
    def wread(slot, b, u, tag):
        if isinstance(slot, tuple): base, o = vA16, slot[1] * 5120
        else: base, o = (vW0, slot * 5120) if slot < 10 else (vW1, (slot - 10) * 5120)
        lop(tag, f"ds_read_b128 {v(wb[b]+4*u,4)}, v{base} offset:{o+1024*u}")
    first = [True]
    def arrive():
        k(f"s_add_u32 s{sCnt}, s{sCnt}, 1\nv_mov_b32 v{vFl}, s{sCnt}")
        lop("w", f"ds_write_b32 v{vXw}, v{vFl}")
    def peek(): lop("pk", f"ds_read_b32 v{vQ}, v{vXa}")
    def check():
        sl = k.lab("oslow"); ok = k.lab("ook")
        k(f"s_waitcnt lgkmcnt({lnewer('pk')})\nv_cmp_gt_u32 vcc, s{sCnt}, v{vQ}\ns_cbranch_vccnz {sl}")
        k.label(ok)
        cold2.append((sl, ok))
    cold2 = []; cold3 = []
    def compute(seq, side, hooks={}):
        for i in range(min(2, len(seq))):
            for u in range(5): wread(seq[i][0], i % 2, u, ("r", i))
        for i, (sl, st, r) in enumerate(seq):
            b = i % 2
            nv = newer({("a", st)})
            k(f"s_waitcnt vmcnt({min(63, nv)}) lgkmcnt({lnewer(('r', i))})")
            if so and st < 20:
                a0 = af + 4*r
                sl = k.lab("vslow"); ok = k.lab("vok")
                k(f"v_max3_u32 v{vQ+1}, v{a0}, v{a0+1}, v{a0+2}\nv_max_u32 v{vQ+1}, v{vQ+1}, v{a0+3}\nv_cmp_eq_u32 vcc, -1, v{vQ+1}\ns_cbranch_vccnz {sl}")
                k.label(ok)
                cold3.append((sl, ok, st, r))
            if i in hooks: hooks[i]()
            sd = list(side.get(i, []))
            for u in range(5):
                c = "0" if first[0] else v(oacc+4*u, 4)
                k(f"v_mfma_f32_16x16x32_bf16 {v(oacc+4*u,4)}, {v(wb[b]+4*u,4)}, {v(af+4*r,4)}, {c}")
                if i + 2 < len(seq): wread(seq[i + 2][0], b, u, ("r", i + 2))
                if sd and u in ((1, 3, 4, 2, 0)[:len(side.get(i, []))]): sd.pop(0)()
            assert not sd
            first[0] = False
    def deal(em, i0, per):
        return {i0 + j: em[per*j:per*(j+1)] for j in range((len(em) + per - 1) // per)}
    for u in range(5):
        k(f"buffer_load_dwordx2 {v(xr+2*u,2)}, v{vXo}, s[{sXo}:{sXo+3}], s{sXof} offen offset:{32*u}")
    smode = [False]
    def probe_load(mask, vd, kind):
        k(f"s_mov_b64 exec, {hx(mask)}")
        if smode[0]: k(vop("of", f"buffer_load_dword v{vd}, v{vP}, s[{sOU}:{sOU+3}], s{sU} offen sc1"))
        else: k(vop("of", gload(f"s{sU}", vP, vd)))
        k("s_mov_b64 exec, -1")
    def probe_check(mask, vd):
        k(f"s_mov_b64 exec, {hx(mask)}")
        if smode[0]: k(f"v_cmp_eq_u32 vcc, -1, v{vd}")
        else: gcheck(vd)
        k("s_mov_b64 exec, -1")
    def probe(mask, slp):
        l = k.lab("pb"); d = k.lab("pbd")
        k.label(l)
        probe_load(mask, vQ, 0)
        k("s_waitcnt vmcnt(0)")
        probe_check(mask, vQ)
        k(f"s_cbranch_vccz {d}\ns_sleep {slp}")
        again(l)
        k.label(d)
    k("s_setprio 3")
    if sent:
        k(f"v_lshlrev_b32 v{vP}, 10, v{vL}\ns_add_u32 s{sU}, s{sAo}, {20*1024+1020}")
        probe((1 << 27) - 1, 1)
        gsync()
        k(f"v_mul_u32_u24 v{vP}, 2560, v{vL}\ns_add_u32 s{sU}, s{sAo}, 2556")
    else:
        k(f"s_lshr_b32 s{sU}, s{sTT}, 1\ns_lshl_b32 s{sU}, s{sU}, 11\ns_add_u32 s{sU}, s{sU}, {FL_U}")
        probe(0x3fff, 2)
        sp('upr')
        gsync()
        if so:
            k(f"v_mul_u32_u24 v{vP}, 2560, v{vL}\ns_add_u32 s{sU}, s{sAo}, 2556")
            smode[0] = True
        else:
            k(f"s_lshl_b32 s{sU}, s{sT64}, 10\ns_add_u32 s{sU}, s{sU}, {FL_O}")
    sp('upoll')
    k(f"s_setprio {oprio}")
    ul = aloads(range(20, 40), range(20))
    for e in ul[:8]: e()
    side = deal(ul[8:], 0, 2)
    side.update(deal(aloads(range(40, 47), range(7)), 8, 4))
    side.update(deal(wpieces(39, L_W + 5120, 40, "b2"), 10, 2))
    def oflag():
        probe_load(0xff, vQ + 2, 1)
    side[16] = [oflag]
    compute([(1 + i, 20 + i, i) for i in range(19)], side, {7: arrive, 9: peek, 10: check})
    sp('o4')
    k(f"s_waitcnt vmcnt(0)")
    gsync()
    late = k.lab("olate"); join = k.lab("ojoin")
    probe_check(0xff, vQ + 2)
    k(f"s_cbranch_vccnz {late}")
    seq3 = [(1 + i, 39 + i, ([19] + list(range(7)))[i]) for i in range(8)]
    oregs = list(range(7, 19)) + [19] + list(range(7))
    save = list(vm)
    em = wpieces(12, L_W + 9 * 5120, 40, "b3") + aloads(range(12), oregs[:12])
    compute(seq3, deal(em, 0, 3))
    k.label(join)
    sp('c3')
    lds_wait(L_F + F_OC, vQ, vQ + 1, 1)
    k("s_setprio 3")
    ld[:] = []
    seq4 = [(("T", i), i, oregs[i]) for i in range(12)] + [(9 + i, 12 + i, oregs[12 + i]) for i in range(8)]
    def b3_arrive():
        k(f"s_waitcnt vmcnt({newer({'b3'})})"); arrive()
    compute(seq4, deal(aloads(range(12, 20), oregs[12:]), 0, 2), {6: b3_arrive, 8: peek, 9: check})
    vm_fast = None
    sp('odone')
    k.srd(sXo, P_OUT, SZ_Q)
    k(f"s_mov_b32 s{sT}, 0xffff0000")
    t = wb[0]
    for u in range(5):
        for hh in range(2):
            k(f"v_lshlrev_b32 v{t+4*u+2*hh}, 16, v{xr+2*u+hh}\nv_and_b32 v{t+4*u+2*hh+1}, s{sT}, v{xr+2*u+hh}")
    for i in range(20):
        k(f"v_add_f32 v{t+i}, v{t+i}, v{oacc+i}")
    for u in range(5):
        k(f"v_cvt_pk_bf16_f32 v{xr+2*u}, v{t+4*u}, v{t+4*u+1}\nv_cvt_pk_bf16_f32 v{xr+2*u+1}, v{t+4*u+2}, v{t+4*u+3}")
    for u in range(5):
        k(f"buffer_store_dwordx2 {v(xr+2*u,2)}, v{vXo}, s[{sXo}:{sXo+3}], s{sXof} offen offset:{32*u} {oc}")
    ne = k.lab("ne")
    k(f"s_or_b32 s{sT}, s2, s{sW}\ns_cbranch_scc1 {ne}\ns_mov_b32 s{sT}, {hx(FL_E)}")
    gset(f"s{sT}", vP, vQ)
    k.label(ne)
    k.endpgm(P_WS, 3)
    k.label(late)
    vm[:] = save; ld[:] = []
    compute(seq3, deal(wpieces(12, L_W + 9 * 5120, 40, "b3"), 0, 2))
    probe(0xff, 1)
    for e in aloads(range(12), oregs[:12]): e()
    k(f"s_branch {join}")
    for sl, ok, st, r in cold3:
        a0 = af + 4*r
        k.label(sl)
        k("s_sleep 1")
        aloads([st], [r])[0]()
        k(f"s_waitcnt vmcnt(0)\nv_max3_u32 v{vQ+1}, v{a0}, v{a0+1}, v{a0+2}\nv_max_u32 v{vQ+1}, v{vQ+1}, v{a0+3}\nv_cmp_eq_u32 vcc, -1, v{vQ+1}\ns_cbranch_vccz {ok}")
        again(sl)
        k(f"s_branch {ok}")
    for sl, ok in cold2:
        k.label(sl)
        spinw(vXa, f"s{sCnt}")
        k(f"s_branch {ok}")
    for sl, need, ok in cold:
        k.label(sl)
        spinw(vFa, need)
        k(f"s_branch {ok}")
    k.label(end)
    k("s_endpgm")
    return k
```

```python
from common import *
import os, math
from k2parts import emit_repack
import attn2, attn3
from attn2 import ATT_LDS, CH

MX = os.environ.get('MX', '')
SP = os.environ.get('SP', 'p1,p2,p3,p4').split(',')
QSCALE = math.log2(math.e) / math.sqrt(20.0)
GC0 = -2.0 * math.sqrt(2.0 / math.pi) * math.log2(math.e)
GC1 = GC0 * 0.044715

L_A = ATT_LDS
L_Z = L_A + 3 * 16384
L_W = L_A - 4096
L_CS = L_Z + 6 * 8192
L_F = L_CS + 2048
F_G, F_OC, F_XC, F_GO, F_XR, F_AUX = 32, 48, 52, 56, 60, 64
MEGA_LDS = L_F + 128
F_QS, F_STS, F_KVS, F_CS = 2 * CH, 2 * CH + 12288, 2 * CH + 12800, 2 * CH + 18176
F_B, F_S = ATT_LDS // 3, 20480
NAME = "parallel_sum__grouped_kv_mqa__mixer_gmlp__prompt_kernel"

def gen_mega(noatt=False, patz='33333333', pats='33333333', lprio=0, seam=True, oprio=0, pf='gis', ntx='', ntw='', repw='g', cpf=True, pslp=1, deep=False, tb=False, wfat=6, rprio=3, yph=3, thr=None, bal=0, ldot=True, xst=6, frot=0, orot=False, tsplit=32, prot=None, sent=False, oc='', lq=4, lk=5, xstk=8, bal33=True, noex=True, spe=True, two=True, ev=(0, 0, 0, 0, 27, 28), zpf=0, kvq=True, so=False, pkv=0, gr=23):
    k = Kern(NAME, 256, 768, MEGA_LDS, 168, sgprs=100)
    P_X, P_WQ, P_WK, P_WV, P_WO = 44, 46, 48, 50, 52
    P_WIN, P_WSP, P_BSP, P_WOUT, P_OUT, P_DBG, P_WS = 56, 58, 60, 62, 64, 66, 68
    sWid, sTok, sBlk, sTB, sFG, sBud = 3, 4, 5, 6, 7, 70
    sT64, sHG = 98, 99
    sNo = 96
    sFl = 72
    vL = 1
    end = k.lab("end"); gem = k.lab("gem")
    k(f"s_cmp_ge_u32 s2, 256\ns_cbranch_scc1 {end}")
    k.stamp(0); k.stamp_rt(5)
    k(f"s_load_dwordx8 s[{P_X}:{P_X+7}], s[0:1], {KA_X}\ns_load_dwordx2 s[{P_WO}:{P_WO+1}], s[0:1], {KA_WO}")
    k(f"s_load_dwordx8 s[{P_WIN}:{P_WIN+7}], s[0:1], {KA_WIN}\ns_load_dwordx4 s[{P_OUT}:{P_OUT+3}], s[0:1], {KA_OUT}\ns_load_dwordx2 s[{P_WS}:{P_WS+1}], s[0:1], {KA_WS}")
    k(f"""v_lshrrev_b32 v2, 6, v0
    v_and_b32 v1, 63, v0
    v_readfirstlane_b32 s{sWid}, v2
    v_and_b32 v2, 31, v0
    v_lshlrev_b32 v2, 2, v2
    v_add_u32 v2, {L_F}, v2
    v_mov_b32 v3, 0
    ds_write_b32 v2, v3
    v_and_b32 v2, 3, v0
    v_lshlrev_b32 v2, 8, v2
    v_add_u32 v2, {L_CS}, v2
    ds_write_b32 v2, v3
    s_and_b32 s{sTB}, s2, 7
    s_lshl_b32 s{sBlk}, s{sTB}, 5
    s_lshr_b32 s{sTok}, s2, 3
    s_add_u32 s{sBlk}, s{sBlk}, s{sTok}
    s_lshl_b32 s{sTok}, s{sBlk}, 3
    s_add_u32 s{sTok}, s{sTok}, s{sWid}
    s_lshl_b32 s{sTB}, s{sTB}, 1
    s_bfe_u32 s{sFG}, s2, 0x10003
    s_add_u32 s{sTB}, s{sTB}, s{sFG}
    s_lshr_b32 s{sFG}, s2, 4
    s_and_b32 s{sT64}, s2, 7
    s_lshl_b32 s{sT64}, s{sT64}, 2
    s_bfe_u32 s{sHG}, s2, 0x20003
    s_add_u32 s{sT64}, s{sT64}, s{sHG}
    s_lshr_b32 s{sHG}, s2, 5
    s_mov_b32 s{sBud}, 400000
    s_waitcnt lgkmcnt(0)""")
    k.srd(sFl, P_WS, SZ_FLAG, WS_FLAG)
    k(f"s_load_dwordx2 s[{sNo}:{sNo+1}], s[{sFl}:{sFl+1}], {hx(FL_E)}")
    k(f"s_cmp_ge_u32 s{sWid}, 8\ns_cbranch_scc1 {gem}")

    def again(l):
        k(f"s_sub_u32 s{sBud}, s{sBud}, 1\ns_cbranch_scc0 {l}")
    def lds_wait(addr, va, vd, slp=1):
        val = {F_XR: 8, F_GO: 4, F_OC: 10, F_XC: 1}[addr - L_F]
        l = k.lab("lw"); d = k.lab("lwd")
        k(f"v_mov_b32 v{va}, {addr}")
        k.label(l)
        k(f"ds_read_b32 v{vd}, v{va}\ns_waitcnt lgkmcnt(0)\nv_cmp_gt_u32 vcc, {val}, v{vd}\ns_cbranch_vccz {d}\ns_sleep {slp}")
        again(l)
        k.label(d)
    def lds_set(addr, va, vd):
        k(f"v_mov_b32 v{va}, {addr}\nv_mov_b32 v{vd}, 1\nds_write_b32 v{va}, v{vd}")
    def gcheck(vd):
        k(f"v_cmp_ne_u64 vcc, s[{sNo}:{sNo+1}], {v(vd,2)}")
    def gload(soff, voff, vd):
        return f"buffer_load_dwordx2 {v(vd,2)}, v{voff}, s[{sFl}:{sFl+3}], {soff} offen sc1"
    def gpoll(soff, voff, vd, mask, slp):
        l = k.lab("pl"); d = k.lab("pd")
        if mask is not None: k(f"s_mov_b64 exec, {hx(mask)}")
        k.label(l)
        k(gload(soff, voff, vd))
        k("s_waitcnt vmcnt(0)")
        gcheck(vd)
        k(f"s_cbranch_vccz {d}\ns_sleep {slp}")
        again(l)
        k.label(d)
        if mask is not None: k("s_mov_b64 exec, -1")
    def gset(soff, va, vd):
        k(f"""v_mov_b32 v{vd}, s{sNo}
        v_mov_b32 v{vd+1}, s{sNo+1}
        v_lshlrev_b32 v{va}, 3, v{vL}
        s_mov_b64 exec, 0xffff
        buffer_store_dwordx2 {v(vd,2)}, v{va}, s[{sFl}:{sFl+3}], {soff} offen sc1
        s_mov_b64 exec, -1""")
    def spoll(offs, s0, slp=1):
        l = k.lab("sp"); r = k.lab("spr"); d = k.lab("spd")
        k.label(l)
        for i, (so, im) in enumerate(offs):
            k(f"s_load_dwordx2 s[{s0+2*i}:{s0+2*i+1}], s[{sFl}:{sFl+1}], s{so} offset:{hx(im)} glc")
        k("s_waitcnt lgkmcnt(0)")
        for i in range(len(offs)):
            k(f"s_cmp_eq_u64 s[{s0+2*i}:{s0+2*i+1}], s[{sNo}:{sNo+1}]")
            k(f"s_cbranch_scc0 {r}" if i + 1 < len(offs) else f"s_cbranch_scc1 {d}")
        k.label(r)
        k(f"s_sleep {slp}")
        again(l)
        k.label(d)
    def nonce():
        k(f"s_waitcnt lgkmcnt(0)\ns_add_u32 s{sNo}, s{sNo}, 1")

    sX, sO, sT, sMask = 8, 12, 16, 24
    raw, f, st, vA = 4, 12, 28, 30
    nz = k.lab("nz")
    skipA = k.lab("skipA"); skipG = k.lab("skipG")
    if "skip" in MX and "gonly" in MX:
        k("s_barrier"); k.endpgm(P_WS, 4)
    if "skip" in MX: k(f"s_barrier\ns_mov_b32 s27, 1\ns_branch {skipA}")
    k.srd(sX, P_X, SZ_Q)
    k(f"s_mul_i32 s{sT}, s{sTok}, 1280\nv_lshlrev_b32 v{vA}, 4, v{vL}\ns_mov_b32 s{sMask}, 0xffff0000")
    for i in range(4, 8):
        k(f"v_mov_b32 v{raw+i}, 0")
    k(f"buffer_load_dwordx4 {v(raw,4)}, v{vA}, s[{sX}:{sX+3}], s{sT} offen {ntx}")
    k("s_mov_b64 exec, 0xffff")
    k(f"buffer_load_dwordx4 {v(raw+4,4)}, v{vA}, s[{sX}:{sX+3}], s{sT} offen offset:1024 {ntx}")
    k("s_mov_b64 exec, -1")
    def touch(idx, nq):
        k(f"s_mul_i32 s{sT+2}, s{idx}, {nq*128}\ns_lshl_b32 s{sT+3}, s{idx}, 7\ns_mov_b64 exec, {hx((1 << nq) - 1)}")
        k(f"buffer_load_dword v{vA+2}, v{vA+1}, s[28:31], s{sT+2} offen\ns_mov_b64 exec, 1")
        k(f"buffer_load_dword v{vA+2}, v{vA+1}, s[32:35], s{sT+3} offen")
        k(f"buffer_load_dword v{vA+2}, v{vA+1}, s[36:39], s{sT+3} offen\ns_mov_b64 exec, -1")
    k(f"v_lshlrev_b32 v{vA+1}, 7, v{vL}\ns_and_b32 s{sT+1}, s{sTok}, 255")
    k.srd(28, P_WQ, 640*1280); k.srd(32, P_WK, 25600); k.srd(36, P_WV, 25600)
    if 'g' in pf and kvq:
        k(f"s_lshl_b32 s{sT+1}, s2, 3\ns_add_u32 s{sT+1}, s{sT+1}, s{sWid}")
        touch(sT + 1, 4)
    elif 'g' in pf: touch(sTok, 4)
    elif 'x' in pf: touch(sT + 1, 25)
    k.srd(sO, P_WS, SZ_XN, WS_XN)
    nonce()
    assert not ('g' in pf and 'x' in pf) and 'b' not in pf
    sXt = 20
    def xn_compute(kvg=False):
        k("s_waitcnt vmcnt(3)" if ('x' in pf or 'g' in pf) else "s_waitcnt vmcnt(0)")
        for i in range(8):
            k(f"v_lshlrev_b32 v{f+2*i}, 16, v{raw+i}\nv_and_b32 v{f+2*i+1}, s{sMask}, v{raw+i}")
        k(f"v_add_f32 v{st}, v{f}, v{f+1}\nv_mul_f32 v{st+1}, v{f}, v{f}")
        for i in range(1, 16):
            if i > 1: k(f"v_add_f32 v{st}, v{st}, v{f+i}")
            k(f"v_fmac_f32 v{st+1}, v{f+i}, v{f+i}")
        for m in ("row_shr:1", "row_shr:2", "row_shr:4", "row_shr:8"):
            k("s_nop 0")
            for i in range(2):
                k(f"v_add_f32_dpp v{st+i}, v{st+i}, v{st+i} {m} row_mask:0xf bank_mask:0xf bound_ctrl:0")
        for m in ("row_bcast:15 row_mask:0xa", "row_bcast:31 row_mask:0xc"):
            k("s_nop 0")
            for i in range(2):
                k(f"v_add_f32_dpp v{st+i}, v{st+i}, v{st+i} {m} bank_mask:0xf")
        k(f"""v_mul_f32 v{st}, {fl(1.0/640)}, v{st}
        v_mul_f32 v{st+1}, {fl(1.0/640)}, v{st+1}
        v_fma_f32 v{st+1}, -v{st}, v{st}, v{st+1}
        v_max_f32 v{st+1}, 0, v{st+1}
        v_add_f32 v{st+1}, {fl(1e-5)}, v{st+1}
        v_rsq_f32 v{st+1}, v{st+1}
        s_mul_i32 s{sXt+2}, s{sTok}, {XN_ST}
        v_mul_f32 v{st}, v{st}, v{st+1}
        s_nop 0
        v_readlane_b32 s{sXt}, v{st+1}, 63
        v_readlane_b32 s{sXt+1}, v{st}, 63
        s_nop 1
        v_mov_b32 v{st}, s{sXt+1}""")
        for i in range(16):
            k(f"v_fma_f32 v{f+i}, v{f+i}, s{sXt}, -v{st}")
        for i in range(8):
            k(f"v_cvt_pk_bf16_f32 v{raw+i}, v{f+2*i}, v{f+2*i+1}")
        k(f"buffer_store_dwordx4 {v(raw,4)}, v{vA}, s[{sO}:{sO+3}], s{sXt+2} offen sc1")
        k("s_mov_b64 exec, 0xffff")
        k(f"buffer_store_dwordx4 {v(raw+4,4)}, v{vA}, s[{sO}:{sO+3}], s{sXt+2} offen offset:1024 sc1")
        if 'i' in pf and kvq and not kvg:
            k.srd(sO, P_WIN, 640*3456)
            k(f"s_lshl_b32 s{sXt}, s2, 3\ns_add_u32 s{sXt}, s{sXt}, s{sWid}\ns_mul_i32 s{sXt}, s{sXt}, {10*128}\ns_mov_b64 exec, 0x3ff")
            k(f"buffer_load_dword v{vA+2}, v{vA+1}, s[{sO}:{sO+3}], s{sXt} offen")
        elif 'i' in pf and not kvq:
            k.srd(sO, P_WIN, 640*3456)
            k(f"s_mul_i32 s{sXt}, s{sTok}, {9*128}\ns_mov_b64 exec, 0x1ff")
            k(f"buffer_load_dword v{vA+2}, v{vA+1}, s[{sO}:{sO+3}], s{sXt} offen")
        k("s_mov_b64 exec, -1")
    a = Alloc(36)
    fa = a(16, 4); fc = a(4, 4); fsx = a(4, 4)
    fX = [a(16, 4), a(16, 4)]; fW = [a(16, 4), a(16, 4)]
    fXa = a(4, 1); fWa = a()
    fN, fH = a(), a()
    fO = a(2, 2); fT = a(12, 4); fK = a(2, 2); fKa = a()
    assert a.n <= 168, a.n
    sI, sD, sKd, sB0 = 25, 26, 27, 28
    QS, STS, KVS = F_QS, F_STS, F_KVS
    k(f"""v_and_b32 v{fN}, 31, v{vL}
    v_lshrrev_b32 v{fH}, 5, v{vL}
    v_mov_b32 v{fO}, 0x3f803f80
    v_mov_b32 v{fO+1}, 0x3f803f80
    s_mov_b32 s{sKd}, 0
    s_lshl_b32 s{sT}, s{sWid}, 7
    v_lshl_add_u32 v{fKa}, v{vL}, 10, s{sT}""")
    def f_addr(rowb, woff):
        k(f"""v_bfe_u32 v{fT}, v{fN}, 1, 3
        v_xor_b32 v{fT}, v{fT}, v{fH}
        s_and_b32 s{sT}, s{sWid}, 1
        s_lshl_b32 s{sT}, s{sT}, 12
        s_add_u32 s{sT}, s{sT}, {F_B}
        v_lshl_add_u32 v{fT+1}, v{fN}, 7, s{sT}""")
        for q in range(4):
            k(f"v_xor_b32 v{fT+2}, {2*q}, v{fT}\nv_lshl_add_u32 v{fXa+q}, v{fT+2}, 4, v{fT+1}")
        k(f"""v_bfe_u32 v{fT}, v{vL}, 2, 2
        v_lshl_add_u32 v{fT}, v{fH}, 3, v{fT}
        v_mul_u32_u24 v{fT}, {rowb}, v{fT}
        v_bfe_u32 v{fT+1}, v{vL}, 4, 1
        v_lshl_add_u32 v{fT}, v{fT+1}, 5, v{fT}
        v_and_b32 v{fT+1}, 3, v{vL}
        v_lshl_add_u32 v{fT}, v{fT+1}, 3, v{fT}
        s_add_u32 s{sT}, {woff}, {F_B+8192}
        v_add_u32 v{fWa}, s{sT}, v{fT}""")
        for r in list(range(fa, fa + 16)) + list(range(fc, fc + 4)) + list(range(fsx, fsx + 4)):
            k(f"v_mov_b32 v{r}, 0")
    def f_pass(kind, rowb, first):
        uo = (0, 64, 128) if rowb == 192 else (0, 4096)
        xs_ = xst if rowb == 192 else xstk
        cf = lambda b: fX[0] + 32 * b
        def rd(b):
            r = []
            if kind == 'i': return r
            if kind == 'x':
                for u, o in enumerate(uo):
                    for q in range(2):
                        d = cf(b) + 8*u + 4*q
                        r.append(f"ds_read_b64_tr_b16 {v(d,2)}, v{fWa} offset:{o+16*rowb*q}")
                        r.append(f"ds_read_b64_tr_b16 {v(d+2,2)}, v{fWa} offset:{o+16*rowb*q+4*rowb}")
                return r
            for q in range(4):
                r.append(f"ds_read_b128 {v(fX[b]+4*q,4)}, v{fXa+q}")
                r.append(f"ds_read_b64_tr_b16 {v(fW[b]+4*q,2)}, v{fWa} offset:{16*rowb*q}")
                r.append(f"ds_read_b64_tr_b16 {v(fW[b]+4*q+2,2)}, v{fWa} offset:{16*rowb*q+4*rowb}")
            return r
        def adv():
            if kind == 'i': return
            k(f"s_mov_b32 s{sD}, {F_S}\ns_cmp_eq_u32 s{sI}, 5\ns_cmov_b32 s{sD}, {hx(-5*F_S)}")
            if kind != 'x':
                for q in range(4): k(f"v_add_u32 v{fXa+q}, s{sD}, v{fXa+q}")
            k(f"v_add_u32 v{fWa}, s{sD}, v{fWa}")
        def work(b, r):
            w = []
            if kind in 'ns':
                for q in range(4):
                    X, W = fX[b] + 4*q, fW[b] + 4*q
                    A_, B_ = (X, W) if kind == 's' else (W, X)
                    w.append(f"v_mfma_f32_32x32x16_bf16 {v(fa,16)}, {v(A_,4)}, {v(B_,4)}, {v(fa,16)}")
                for x in interleave(w[:3], r) + w[3:]: k(x)
            elif kind == 'x':
                for x in r: k(x)
                for j in range(4):
                    for u in range(len(uo)):
                        k(f"v_mfma_f32_4x4x4_16b_bf16 {v(fa+4*u,4)}, {v(fO,2)}, {v(cf(b)+8*u+2*j,2)}, {v(fa+4*u,4)}")
                    if len(uo) == 2: k("s_nop 0")
        loop = k.lab("fl"); nb = k.lab("fnb"); e1 = k.lab("fe1"); e2 = k.lab("fe2"); e3 = k.lab("fe3")
        n = len(rd(0))
        k(f"s_mov_b32 s{sI}, 0\ns_barrier")
        for x in rd(0): k(x)
        k.label(loop)
        adv()
        if first:
            k(f"s_cmp_lg_u32 s{sI}, {xs_}\ns_cbranch_scc1 {e1}\ns_waitcnt vmcnt({1 if ('i' in pf and not (kvq and rowb == 40)) else 0})")
            k.label(e1)
        k("s_waitcnt lgkmcnt(0)\ns_barrier")
        work(0, rd(1))
        if first and kind == 'x':
            k(f"s_cmp_lg_u32 s{sI}, {xs_}\ns_cbranch_scc1 {e2}\ns_cmp_lg_u32 s{sWid}, 7\ns_cbranch_scc1 {e2}\ns_lshl_b32 s{sT}, s{sBlk}, 7")
            gset(f"s{sT}", fT + 4, fT + 6)
            k.label(e2)
        k(f"s_add_u32 s{sI}, s{sI}, 1")
        adv()
        k(f"s_cmp_eq_u32 s{sI}, 9\ns_waitcnt lgkmcnt(0)\ns_cbranch_scc1 {nb}\ns_barrier")
        k.label(nb)
        work(1, rd(0))
        if rowb == 192:
            k(f"s_cmp_lg_u32 s{sI}, 7\ns_cbranch_scc1 {e3}\ns_mov_b32 s{sT}, {FL_Q}\ns_mov_b64 exec, 0xff")
            k(gload(f"s{sT}", fKa, fK))
            k("s_mov_b64 exec, -1")
            k.label(e3)
        k(f"s_add_u32 s{sI}, s{sI}, 1\ns_cmp_lt_u32 s{sI}, 10\ns_cbranch_scc1 {loop}")
        k("s_waitcnt lgkmcnt(0)")
    def kv_try():
        e = k.lab("kt")
        k("s_waitcnt vmcnt(0)\ns_mov_b64 exec, 0xff")
        gcheck(fK)
        k(f"s_mov_b64 exec, -1\ns_cbranch_vccnz {e}\ns_mov_b32 s{sKd}, 1")
        kv_first()
        k.label(e)
    def kv_first():
        k.srd(sB0, P_WS, SZ_KVG, WS_KV)
        k(f"""s_mul_i32 s{sT}, s{sWid}, {KV_G}
        s_mul_i32 m0, s{sWid}, {KV_TILE}
        v_lshlrev_b32 v{fT+8}, 4, v{vL}
        buffer_load_dwordx4 v{fT+8}, s[{sB0}:{sB0+3}], s{sT} offen sc1 lds
        buffer_load_dwordx4 v{fT+8}, s[{sB0}:{sB0+3}], s{sT} offen offset:1024 sc1 lds
        buffer_load_dwordx4 v{fT+8}, s[{sB0}:{sB0+3}], s{sT} offen offset:{KV_TILE-1024} sc1 lds""")
    def f_stats(nu):
        k(f"""s_and_b32 s{sT}, s{sWid}, 1
        s_lshl_b32 s{sT}, s{sT}, 2
        s_add_u32 s{sT}, s{sT}, {F_CS}
        v_lshlrev_b32 v{fT}, 4, v{fN}
        v_lshl_add_u32 v{fT}, v{fH}, 3, v{fT}
        v_add_u32 v{fT}, s{sT}, v{fT}""")
        for u in range(nu): k(f"ds_write_b32 v{fT}, v{fa+4*u} offset:{512*u}")
        k("s_waitcnt lgkmcnt(0)")
    def f_fold(swap):
        k(f"""s_lshr_b32 s{sT}, s{sWid}, 1
        s_lshl_b32 s{sT}, s{sT}, 9
        s_add_u32 s{sT}, s{sT}, {F_CS}
        v_lshlrev_b32 v{fT}, 4, v{fN}
        v_lshl_add_u32 v{fT}, v{fH}, 3, v{fT}
        v_add_u32 v{fT}, s{sT}, v{fT}
        ds_read_b64 {v(fc,2)}, v{fT}
        s_and_b32 s{sT}, s{sWid}, 1
        s_lshl_b32 s{sT}, s{sT}, 7
        s_add_u32 s{sT}, s{sT}, {STS}
        v_lshl_add_u32 v{fT}, v{fN}, 2, s{sT}
        ds_read_b32 v{fT+4}, v{fT}
        ds_read_b32 v{fT+5}, v{fT} offset:256
        s_waitcnt lgkmcnt(2)
        v_add_f32 v{fc+2}, v{fc}, v{fc+1}
        v_and_b32 v{fc+3}, s{sMask}, v{fc+2}
        v_sub_f32 v{fc+2}, v{fc+2}, v{fc+3}
        v_cvt_pk_bf16_f32 v{fc}, v{fc+3}, v{fc+3}
        v_cvt_pk_bf16_f32 v{fc+1}, v{fc+2}, 0
        s_waitcnt lgkmcnt(0)
        v_and_b32 v{fT+2}, s{sMask}, v{fT+4}
        v_sub_f32 v{fT+3}, v{fT+4}, v{fT+2}
        v_cvt_pk_bf16_f32 v{fT+6}, -v{fT+2}, -v{fT+3}
        v_cvt_pk_bf16_f32 v{fT+7}, -v{fT+2}, 0
        s_nop 1""")
        A_, B_ = (fT + 6, fc) if swap else (fc, fT + 6)
        k(f"v_mfma_f32_32x32x8_bf16 {v(fa,16)}, {v(A_,2)}, {v(B_,2)}, {v(fa,16)}")
    qp = k.lab("qp"); kx = k.lab("kx"); ki = k.lab("ki"); kvv = k.lab("kvv"); kj = k.lab("kj"); q1 = k.lab("q1"); q1x = k.lab("q1x"); qe = k.lab("qe"); qj = k.lab("qj"); q2x = k.lab("q2x")
    pk = fX[0]
    k(f"s_cmp_lg_u32 s{sHG}, 7\ns_cbranch_scc1 {q1}")
    k(f"""s_lshr_b32 s{sT+1}, s{sWid}, 1
    s_lshl_b32 s{sT+1}, s{sT+1}, 12
    s_and_b32 s{sT+3}, s{sWid}, 1
    s_mul_i32 s{sT+2}, s{sT+3}, {32*40}
    s_cmp_ge_u32 s{sWid}, 6
    s_cselect_b32 s{sT+1}, s{sT+2}, s{sT+1}
    s_mul_i32 s{sT+3}, s{sT+3}, {KV_G}
    s_add_u32 s{sT+3}, s{sT+3}, {KVS}""")
    f_addr(40, f"s{sT+1}")
    xn_compute(True)
    k(f"s_cmp_ge_u32 s{sWid}, 6\ns_cbranch_scc1 {kx}\ns_cmp_ge_u32 s{sWid}, 4\ns_cbranch_scc1 {ki}\ns_cmp_ge_u32 s{sWid}, 2\ns_cbranch_scc1 {kvv}")
    f_pass('n', 40, True)
    k("s_barrier")
    f_fold(False)
    k(f"v_lshl_add_u32 v{fT}, v{vL}, 4, s{sT+3}\nv_lshl_add_u32 v{fT+1}, v{fN}, 2, s{sT+3}\ns_nop 7\ns_nop 1")
    for i in range(12): k(f"v_mul_f32 v{fa+i}, v{fT+5}, v{fa+i}")
    for i in range(6): k(f"v_cvt_pk_bf16_f32 v{pk+i}, v{fa+2*i}, v{fa+2*i+1}")
    k(f"""v_permlane32_swap_b32 v{pk}, v{pk+2}
    v_permlane32_swap_b32 v{pk+1}, v{pk+3}
    ds_write_b128 v{fT}, {v(pk,4)} offset:{KV_KA}
    s_mov_b32 exec_hi, 0
    ds_write_b32 v{fT+1}, v{pk+4} offset:{KV_KB}
    ds_write_b32 v{fT+1}, v{pk+5} offset:{KV_KB+128}
    s_mov_b64 exec, -1
    s_branch {kj}""")
    k.label(kvv)
    f_pass('s', 40, True)
    k("s_barrier")
    f_fold(True)
    k(f"v_lshl_add_u32 v{fT}, v{fH}, 4, s{sT}")
    for j in range(4): k(f"ds_read_b128 {v(fW[0]+4*j,4)}, v{fT} offset:{256+32*j}")
    k(f"""v_mul_u32_u24 v{fT+1}, 336, v{fH}
    v_lshl_add_u32 v{fT+1}, v{fN}, 4, v{fT+1}
    v_add_u32 v{fT+1}, s{sT+3}, v{fT+1}
    v_cmp_eq_u32 vcc, 20, v{fN}
    s_nop 3
    s_waitcnt lgkmcnt(0)""")
    for i in range(16): k(f"v_mul_f32 v{fa+i}, v{fW[0]+i}, v{fa+i}")
    for i in range(8): k(f"v_cvt_pk_bf16_f32 v{pk+i}, v{fa+2*i}, v{fa+2*i+1}")
    for i in range(8): k(f"v_cndmask_b32 v{pk+i}, v{pk+i}, v{fO}, vcc")
    k(f"""s_mov_b32 exec_lo, 0x1fffff
    s_mov_b32 exec_hi, 0x1fffff
    ds_write_b128 v{fT+1}, {v(pk,4)} offset:{KV_V}
    ds_write_b128 v{fT+1}, {v(pk+4,4)} offset:{KV_V+672}
    s_mov_b64 exec, -1
    s_branch {kj}""")
    k.label(ki)
    f_pass('i', 40, True)
    k(f"s_barrier\ns_branch {kj}")
    k.label(kx)
    f_pass('x', 40, True)
    f_stats(2)
    k("s_barrier\ns_barrier")
    k.srd(sB0, P_WS, SZ_KVG, WS_KV)
    k(f"v_lshlrev_b32 v{fT+1}, 4, v{vL}\nv_add_u32 v{fT}, s{sT+3}, v{fT+1}")
    for i in range(3): k(f"ds_read_b128 {v(pk+4*i,4)}, v{fT} offset:{1024*i}")
    k(f"""s_lshl_b32 s{sT}, s{sT64}, 1
    s_and_b32 s{sT+1}, s{sWid}, 1
    s_add_u32 s{sT}, s{sT}, s{sT+1}
    s_mul_i32 s{sT+1}, s{sT}, {KV_G}
    s_waitcnt lgkmcnt(0)
    buffer_store_dwordx4 {v(pk,4)}, v{fT+1}, s[{sB0}:{sB0+3}], s{sT+1} offen sc1
    buffer_store_dwordx4 {v(pk+4,4)}, v{fT+1}, s[{sB0}:{sB0+3}], s{sT+1} offen offset:1024 sc1
    s_mov_b32 exec_hi, 0xff
    buffer_store_dwordx4 {v(pk+8,4)}, v{fT+1}, s[{sB0}:{sB0+3}], s{sT+1} offen offset:2048 sc1
    s_mov_b64 exec, -1
    s_lshl_b32 s{sT}, s{sT}, 7
    s_add_u32 s{sT}, s{sT}, {FL_Q}
    s_waitcnt vmcnt(0)""")
    gset(f"s{sT}", fT + 4, fT + 6)
    k("s_barrier")
    k(f"s_and_b32 s{sT+1}, s{sWid}, 1\ns_mul_i32 s{sT+1}, s{sT+1}, {32*192}")
    f_addr(192, f"s{sT+1}")
    f_pass('x', 192, False)
    k(f"s_branch {q2x}")
    k.label(kj)
    k("s_waitcnt lgkmcnt(0)\ns_barrier\ns_barrier")
    k(f"s_lshr_b32 s{sT+1}, s{sWid}, 1\ns_lshl_b32 s{sT+1}, s{sT+1}, 6")
    f_addr(192, f"s{sT+1}")
    f_pass('n', 192, False)
    k(f"s_branch {qe}")
    k.label(q1)
    k(f"""s_lshr_b32 s{sT+1}, s{sWid}, 1
    s_lshl_b32 s{sT+1}, s{sT+1}, 6
    s_and_b32 s{sT+2}, s{sWid}, 1
    s_mul_i32 s{sT+2}, s{sT+2}, {32*192}
    s_cmp_ge_u32 s{sWid}, 6
    s_cselect_b32 s{sT+1}, s{sT+2}, s{sT+1}""")
    f_addr(192, f"s{sT+1}")
    xn_compute()
    k(f"s_cmp_ge_u32 s{sWid}, 6\ns_cbranch_scc1 {q1x}")
    f_pass('n', 192, True)
    k.label(qe)
    k("s_barrier")
    f_fold(False)
    kv_try()
    k(f"""v_mul_f32 v{fT+5}, {fl(QSCALE)}, v{fT+5}
    s_and_b32 s{sT}, s{sWid}, 1
    s_mul_i32 s{sT}, s{sT}, {32*192}
    s_lshr_b32 s{sT+1}, s{sWid}, 1
    s_lshl_b32 s{sT+1}, s{sT+1}, 6
    s_add_u32 s{sT}, s{sT}, s{sT+1}
    s_add_u32 s{sT}, s{sT}, {QS}
    v_mul_u32_u24 v{fT}, 192, v{fN}
    v_lshl_add_u32 v{fT}, v{fH}, 3, v{fT}
    v_add_u32 v{fT}, s{sT}, v{fT}
    s_nop 1""")
    for i in range(16): k(f"v_mul_f32 v{fa+i}, v{fT+5}, v{fa+i}")
    for i in range(8): k(f"v_cvt_pk_bf16_f32 v{pk+i}, v{fa+2*i}, v{fa+2*i+1}")
    for j in range(4): k(f"ds_write_b64 v{fT}, {v(pk+2*j,2)} offset:{16*j}")
    k(f"s_waitcnt lgkmcnt(0)\ns_branch {qj}")
    k.label(q1x)
    f_pass('x', 192, True)
    k.label(q2x)
    f_stats(3)
    k("s_barrier")
    kv_try()
    k.label(qj)
    k.label(skipA)
    k(f"s_mov_b32 s40, s{sKd}\nv_mov_b32 v104, v{fKa}")
    def att_wait(step):
        t = 104
        d = k.lab("kvd")
        k(f"s_cmp_lg_u32 s40, 0\ns_cbranch_scc1 {d}\ns_mov_b32 s41, {FL_Q}")
        gpoll("s41", t, t + 2, 0xff, pslp)
        step()
        k.label(d)
    def att_tail(step):
        t = 104
        def pieces(p0, p1):
            for p in range(p0, p1):
                if p % 4 == 0:
                    k(f"s_mov_b32 m0, {1024*p}")
                    k("s_add_u32 s40, s40, 4096" if p else "s_nop 0")
                k(f"buffer_load_dwordx4 v{t}, s[28:31], s40 offen offset:{1024*(p%4)} sc1 lds")
        if step == 0:
            k(f"v_and_b32 v{t}, 31, v{vL}\nv_lshlrev_b32 v{t}, 7, v{t}\ns_mov_b32 s40, {FL_W}")
            k(gload("s40", t, t + 2))
            if so: lds_wait(L_F + F_XC, t + 4, t + 5, 2)
        elif "skip" in MX:
            pass
        elif step == 1:
            ok = k.lab("wfok")
            k("s_waitcnt vmcnt(12)")
            gcheck(t + 2)
            k(f"s_cbranch_vccz {ok}")
            gpoll("s40", t, t + 2, None, 4)
            k.label(ok)
            k.srd(28, P_WS, SZ_WF, WS_WF)
            k(f"s_lshr_b32 s40, s2, 5\ns_mul_i32 s40, s40, {47*5120}\nv_lshlrev_b32 v{t}, 4, v{vL}")
            pieces(0, tsplit)
            if not so: k(f"s_waitcnt vmcnt({tsplit})")
        else:
            pieces(tsplit, 60)
            k(f"v_mov_b32 v{t}, {L_F+F_OC}\nv_mov_b32 v{t+1}, 10\ns_waitcnt vmcnt(0)\nds_write_b32 v{t}, v{t+1}")
    n = (attn3 if two else attn2).emit_attn(k, sT64, sHG, sWid, vL, P_WS, 8, 4, 0, L_F, mega=att_wait, budget=sBud, gset=(None if so else gset), tb=tb, tail=att_tail, yph=yph, bal=bal)
    assert n <= 104, n

    k.label(gem)
    def sp(name):
        if name in SP: k.stamp(1 + SP.index(name))
    sA, sB, sO = 8, 12, 16
    sW, sCnt, sSoA, sBaseA, sSoB, sStepB, sM0A, sM0B, sMask, sNeed, sI = range(20, 31)
    sT = 32
    sTb, sM0F, sSoF = 40, 31, 71
    a = Alloc(2)
    vFw, vFa, vFl, vXw, vXa = a(), a(), a(), a(), a()
    vOne = a()
    acc = [a(16, 4), a(16, 4)]
    fs = [[[a(4, 4) for j in range(3)] for q in range(2)] for b in range(2)]
    z1 = a(16, 4); z2 = a(16, 4)
    vD = a(4, 1); vDb = a(2, 1)
    vWa = a(2, 1); vZa = a(4, 1)
    vBias = a(2, 2); vBias1 = vBias + 1
    vN, vH, vTok, vPg, vZf = a(), a(), a(), a(), a()
    vOnes = a(2, 2)
    vT = a(16, 4)
    assert a.n <= 168, a.n
    tmp = fs[1][0][0]
    sp('ka')
    k("s_setprio 3")
    k(f"""s_sub_u32 s{sW}, s{sWid}, 8
    v_lshrrev_b32 v{vT}, 3, v{vL}
    v_and_b32 v{vT+1}, 7, v{vL}
    s_lshl_b32 s{sT}, s{sTB}, 2
    s_add_u32 s{sT}, s{sT}, s{sW}
    s_mul_i32 s{sBaseA}, s{sT}, {32*1280}
    s_lshl_b32 s{sM0A}, s{sW}, 12
    s_add_u32 s{sM0A}, s{sM0A}, {L_A}
    s_lshl_b32 s{sM0B}, s{sW}, 11
    s_add_u32 s{sM0B}, s{sM0B}, {L_Z}""")
    def a_addr(stride):
        k(f"v_lshrrev_b32 v{vT}, 3, v{vL}\nv_and_b32 v{vT+1}, 7, v{vL}")
        for p in range(4):
            k(f"""v_add_u32 v{vT+2}, {8*p}, v{vT}
            v_bfe_u32 v{vT+3}, v{vT+2}, 1, 3
            v_xor_b32 v{vT+3}, v{vT+3}, v{vT+1}
            v_mul_u32_u24 v{vT+2}, {stride}, v{vT+2}
            v_lshl_add_u32 v{vD+p}, v{vT+3}, 4, v{vT+2}""")
            if p:
                k(f"v_subrev_u32 v{vD+p}, {1024*p}, v{vD+p}")
    def b_addr(stride):
        k(f"""v_lshrrev_b32 v{vT}, 3, v{vL}
        v_and_b32 v{vT+1}, 7, v{vL}
        v_bfe_u32 v{vT+2}, v{vL}, 4, 1
        v_lshlrev_b32 v{vT+2}, 1, v{vT+2}
        v_xor_b32 v{vT+1}, v{vT+1}, v{vT+2}
        v_mul_u32_u24 v{vT}, {stride}, v{vT}
        v_lshl_add_u32 v{vDb}, v{vT+1}, 4, v{vT}
        v_xor_b32 v{vT+1}, 4, v{vT+1}
        v_lshl_add_u32 v{vDb+1}, v{vT+1}, 4, v{vT}
        v_add_u32 v{vDb+1}, {8*stride-1024}, v{vDb+1}""")
    def setup_rest():
        k(f"""s_lshl_b32 s{sT+1}, s{sW}, 2
        s_add_u32 s{sT+2}, s{sT+1}, {L_F+F_G}
        v_mov_b32 v{vFw}, s{sT+2}
        s_add_u32 s{sT+2}, s{sT+1}, {L_F+F_AUX}
        v_mov_b32 v{vXw}, s{sT+2}
        v_and_b32 v{vFa}, 3, v{vL}
        v_lshlrev_b32 v{vFa}, 2, v{vFa}
        v_add_u32 v{vXa}, {L_F+F_AUX}, v{vFa}
        v_lshlrev_b32 v{vFa}, 6, v{vFa}
        v_add_u32 v{vFa}, {L_CS}, v{vFa}
        v_mov_b32 v{vPg}, 0
        s_lshl_b32 s{sM0F}, s{sW}, 8
        s_lshl_b32 s{sSoF}, s2, 10
        s_add_u32 s{sSoF}, s{sSoF}, s{sM0F}
        s_add_u32 s{sM0F}, s{sM0F}, {L_CS}
        v_and_b32 v{vN}, 31, v{vL}
        v_lshrrev_b32 v{vH}, 5, v{vL}
        s_mov_b32 s{sMask}, 0xffff0000
        s_mov_b32 s{sCnt}, 0
        v_mov_b32 v{vOne}, 1
        v_mov_b32 v{vOnes}, 0x3f803f80
        v_mov_b32 v{vOnes+1}, 0x3f803f80
        s_lshl_b32 s{sT+1}, s{sTB}, 7
        s_lshl_b32 s{sT+2}, s{sW}, 5
        s_add_u32 s{sT+1}, s{sT+1}, s{sT+2}
        v_add_u32 v{vTok}, s{sT+1}, v{vN}
        v_bfe_u32 v{vT+1}, v{vL}, 1, 3
        v_lshrrev_b32 v{vT+2}, 4, v{vL}
        v_xor_b32 v{vT+1}, v{vT+1}, v{vT+2}
        v_and_b32 v{vT+2}, 15, v{vL}
        v_lshlrev_b32 v{vT+2}, 7, v{vT+2}
        v_add_u32 v{vT+2}, s{sM0A}, v{vT+2}
        v_lshl_add_u32 v{vWa}, v{vT+1}, 4, v{vT+2}
        v_xor_b32 v{vT+1}, 4, v{vT+1}
        v_lshl_add_u32 v{vWa+1}, v{vT+1}, 4, v{vT+2}""")
        k.srd(sTb, P_WS, 256*1024, WS_TAB)
        k(f"v_lshlrev_b32 v{vT+1}, 2, v{vL}")
        k(f"buffer_store_dword v{vL}, v{vT+1}, s[{sTb}:{sTb+3}], s{sSoF} offen sc1")
        nonce()
    def nat_read_addr(rowb):
        k(f"""v_bfe_u32 v{vT}, v{vL}, 2, 2
        v_lshrrev_b32 v{vT+1}, 4, v{vL}
        v_lshl_add_u32 v{vT}, v{vT+1}, 3, v{vT}
        v_lshlrev_b32 v{vT}, 7, v{vT}
        v_and_b32 v{vT+1}, 3, v{vL}
        v_lshl_add_u32 v{vT}, v{vT+1}, 3, v{vT}
        v_add_u32 v{vT}, {L_Z}, v{vT}
        v_bfe_u32 v{vT+1}, v{vL}, 3, 2""")
        for fm in range(4):
            k(f"v_xor_b32 v{vT+2}, {fm}, v{vT+1}\nv_lshl_add_u32 v{vZa+fm}, v{vT+2}, 5, v{vT}")

    def spinw(va, val):
        l = k.lab("gspin"); d = k.lab("gspun")
        k.label(l)
        k(f"ds_read_b32 v{vFl}, v{va}\ns_waitcnt lgkmcnt(0)\nv_cmp_gt_u32 vcc, {val}, v{vFl}\ns_cbranch_vccz {d}\ns_sleep 1")
        again(l)
        k.label(d)
    def gsync():
        k(f"s_add_u32 s{sCnt}, s{sCnt}, 1\nv_mov_b32 v{vFl}, s{sCnt}\nds_write_b32 v{vXw}, v{vFl}")
        spinw(vXa, f"s{sCnt}")
    def set_flag(base, col=None):
        l = k.lab("nf")
        k(f"s_cmp_lg_u32 s{sW}, 0\ns_cbranch_scc1 {l}")
        k(f"s_lshl_b32 s{sT}, s{sTB}, 11\ns_lshl_b32 s{sT+1}, s{sFG}, 7\ns_add_u32 s{sT}, s{sT}, s{sT+1}\ns_add_u32 s{sT}, s{sT}, {base}")
        gset(f"s{sT}", vT, vT + 2)
        k.label(l)

    def ring_free():
        k(f"v_mov_b32 v{vT}, {L_F+F_GO}\ns_mov_b64 exec, 1\nds_add_u32 v{vT}, v{vOne}\ns_mov_b64 exec, -1")
    def set_wflag(base, n=0):
        k(f"s_lshl_b32 s{sT}, s{sTB}, 2\ns_add_u32 s{sT}, s{sT}, s{sW}\ns_lshl_b32 s{sT}, s{sT}, 11\ns_lshl_b32 s{sT+1}, s{sFG}, 7\ns_add_u32 s{sT}, s{sT}, s{sT+1}\ns_add_u32 s{sT}, s{sT}, {base}")
        k(f"s_waitcnt vmcnt({n})")
        gset(f"s{sT}", vT, vT + 2)
    def prefetch():
        if not ('q' in pf or 'i' in pf): return
        k(f"""s_min_u32 s{sT}, s{sFG}, 14
        s_sub_u32 s{sT}, s{sT}, 10
        s_lshl_b32 s{sT+1}, s{sW}, 4
        s_add_u32 s{sT+1}, s{sT+1}, s{sTB}
        s_mul_i32 s{sT+1}, s{sT+1}, 5
        s_add_u32 s{sT+1}, s{sT+1}, s{sT}
        s_lshl_b32 s{sT+1}, s{sT+1}, 13
        v_lshlrev_b32 v{vT+8}, 7, v{vL}""")
        if 'q' in pf:
            k.srd(sO, P_WQ, 640*1280)
            k(f"buffer_load_dword v{vT+9}, v{vT+8}, s[{sO}:{sO+3}], s{sT+1} offen")
        if 'i' in pf:
            k.srd(sO, P_WIN, 640*3456)
            k(f"buffer_load_dword v{vT+10}, v{vT+8}, s[{sO}:{sO+3}], s{sT+1} offen")
    def prefetch_sp():
        if 's' not in pf: return
        att_progress(1, vT + 5, 8)
        k(f"""s_sub_u32 s{sT}, s{sFG}, 14
        s_lshl_b32 s{sT}, s{sT}, 2
        s_add_u32 s{sT}, s{sT}, s{sW}
        s_lshl_b32 s{sT}, s{sT}, 16
        s_lshl_b32 s{sT+1}, s{sTB}, 19
        s_add_u32 s{sT}, s{sT}, s{sT+1}
        v_lshlrev_b32 v{vT+8}, 7, v{vL}""")
        k.srd(sO, P_WSP, 2048*4096)
        for i in range(8):
            k(f"buffer_load_dword v{vT+9}, v{vT+8}, s[{sO}:{sO+3}], s{sT} offen {ntw}\ns_add_u32 s{sT}, s{sT}, 8192")
            if i % 2 == 1: k("s_waitcnt vmcnt(0)")
    def u_addr():
        k.srd(sO, P_WS, SZ_OUF, WS_OUF)
        k(f"""v_lshrrev_b32 v{vT+1}, 4, v{vTok}
        v_mul_u32_u24 v{vT+1}, {47*1024}, v{vT+1}
        v_and_b32 v{vT+2}, 15, v{vTok}
        v_lshl_add_u32 v{vT+1}, v{vT+2}, 4, v{vT+1}
        v_lshl_add_u32 v{vT+1}, v{vH}, 8, v{vT+1}
        s_lshl_b32 s{sT}, s{sFG}, 11
        s_add_u32 s{sT}, s{sT}, {20*1024}""")
    def poison(with_u):
        pz = vT + 4
        for i in range(4): k(f"v_mov_b32 v{pz+i}, -1")
        if with_u:
            l = k.lab("pu")
            u_addr()
            for i in range(4):
                if i == 2: k(f"s_cmp_eq_u32 s{sFG}, 13\ns_cbranch_scc1 {l}")
                k(f"buffer_store_dwordx4 {v(pz,4)}, v{vT+1}, s[{sO}:{sO+3}], s{sT} offen offset:{512*i} sc1")
            k.label(l)
        else:
            k.srd(sO, P_WS, SZ_OUF, WS_OUF)
        k(f"""s_lshl_b32 s{sT}, s{sT64}, 2
        s_add_u32 s{sT}, s{sT}, s{sW}
        s_mul_i32 s{sT}, s{sT}, {47*1024}
        s_mul_i32 s{sT+1}, s{sHG}, 2560
        s_add_u32 s{sT}, s{sT}, s{sT+1}
        v_lshlrev_b32 v{vT+2}, 4, v{vL}
        buffer_store_dwordx4 {v(pz,4)}, v{vT+2}, s[{sO}:{sO+3}], s{sT} offen sc1
        buffer_store_dwordx4 {v(pz,4)}, v{vT+2}, s[{sO}:{sO+3}], s{sT} offen offset:1024 sc1
        s_mov_b32 exec_hi, 0
        buffer_store_dwordx4 {v(pz,4)}, v{vT+2}, s[{sO}:{sO+3}], s{sT} offen offset:2048 sc1
        s_mov_b32 exec_hi, -1""")
    def poison_done():
        k(f"v_mov_b32 v{vT+4}, {L_F+F_XC}\nds_write_b32 v{vT+4}, v{vOne}")
    def att_progress(val, va, slp):
        l = k.lab("ac"); d = k.lab("acd")
        k(f"v_and_b32 v{va}, 7, v{vL}\nv_lshlrev_b32 v{va}, 2, v{va}\nv_add_u32 v{va}, {L_F}, v{va}")
        k.label(l)
        k(f"ds_read_b32 v{vFl}, v{va}\ns_waitcnt lgkmcnt(0)\nv_cmp_gt_u32 vcc, {val}, v{vFl}\ns_cbranch_vccz {d}\ns_sleep {slp}")
        again(l)
        k.label(d)
    vm = []
    def vop(tag, txt):
        vm.append(tag); return txt
    def newer(tags):
        idx = [i for i, t in enumerate(vm) if t in tags]
        return len(vm) - 1 - max(idx) if idx else 63
    cohA = [ntx]; cohB = [""]
    def la(g, p): return vop(("A", g), f"buffer_load_dwordx4 v{vD+p}, s[{sA}:{sA+3}], s{sSoA} offen offset:{1024*p} {cohA[0]} lds")
    def lb(g, p): return vop(("B", g), f"buffer_load_dwordx4 v{vDb+p}, s[{sB}:{sB+3}], s{sSoB} offen offset:{1024*p} {cohB[0]} lds")
    wrapA = [False]; wrapB = [False]
    def advA():
        if wrapA[0]: k(f"s_add_u32 s37, s37, 128\ns_and_b32 s37, s37, 0xfff\ns_add_u32 s{sSoA}, s38, s37")
        else: k(f"s_add_u32 s{sSoA}, s{sSoA}, 128")
    def advB():
        if wrapB[0]: k(f"s_add_u32 s39, s39, 4096\ns_and_b32 s39, s39, 0x1ffff\ns_add_u32 s{sSoB}, s54, s39")
        else: k(f"s_add_u32 s{sSoB}, s{sSoB}, s{sStepB}")
    vWe = z2
    def abuf(g):
        if deep and g in (3, 4, 5, 9):
            e = {3: 0, 4: 1, 5: 2, 9: 0}[g]
            return vWe, 16384 * e, 16384 * e - 49152
        return vWa, 16384 * (g % 3), 16384 * (g % 3)
    def issue_a(g):
        k(f"s_add_u32 m0, s{sM0A}, {hx(abuf(g)[2])}\ns_nop 0")
        for p in range(4): k(la(g, p))
        k(f"s_add_u32 s{sSoA}, s{sSoA}, 128")
    def issue_b(g):
        k(f"s_add_u32 m0, s{sM0B}, {8192*(g%6)}\ns_nop 0")
        for p in range(2): k(lb(g, p))
        advB()
    FR = lambda b, i: fs[b][0][0] + 4 * i
    def reads(ty, half, b, g):
        ba, bz = g % 3, g % 6
        r = [f"ds_read_b128 {v(FR(b,tn),4)}, v{vWa+half} offset:{16384*ba+2048*tn}" for tn in range(2)]
        for fm in range(4):
            d = FR(b, 2 + fm)
            if ty == "frag":
                r.append(f"ds_read_b128 {v(d,4)}, v{vZf} offset:{8192*bz+2048*fm+1024*half}")
            else:
                r.append(f"ds_read_b64_tr_b16 {v(d,2)}, v{vZa+fm} offset:{8192*bz+4096*half}")
                r.append(f"ds_read_b64_tr_b16 {v(d+2,2)}, v{vZa+fm} offset:{8192*bz+4096*half+512}")
        return r
    vSx, vSq, vCs = z1, z1 + 4, [z1 + 8, z1 + 12]
    prio = [3]
    pat = [patz]
    inloop = [False]
    carry = [False]
    cold = []
    cacc = [acc]
    def half(b, hf, zero, stats, kv, rd, dm, ex=()):
        fast = prio[0] == 3
        n = len(rd)
        cut = [0, n, n, n] if fast else [0, (n + 1) // 2, n, n]
        cur = [3]
        def setp(p):
            if not fast and cur[0] != p:
                k(f"s_setprio {p}"); cur[0] = p
        for j in range(4):
            if True:
                setp(int(pat[0][4*hf + j]))
                abl = MX if (inloop[0] or "all" in MX) else ""
                for tn in range(2):
                    d = cacc[0][j >> 1] + 8*tn + 4*(j & 1)
                    k(f"v_mfma_f32_16x16x32_bf16 {v(d,4)}, {v(FR(b,2+j),4)}, {v(FR(b,tn),4)}, {'0' if zero else v(d,4)}")
                if "nord" in abl: rd = ["s_nop 0"] * len(rd)
                if "nodma" in abl: dm = [[], [], [], []]
                if j < 3 and cut[j+1] > cut[j]:
                    setp(rprio)
                    for x in rd[cut[j]:cut[j+1]]: k(x)
                if ex:
                    setp(3)
                    for x in ex[len(ex)*j//4:len(ex)*(j+1)//4]: k(x)
                if dm[j]:
                    setp(prio[0])
                    for f_ in dm[j]:
                        if thr is not None and not fast: k(f"s_waitcnt vmcnt({thr})")
                        k(f_())
        setp(3)
    def lf():
        return "\n".join([f"s_mov_b32 m0, s{sM0F}", f"s_add_u32 s{sSoF}, s{sSoF}, 4",
                          vop("F", f"buffer_load_dword v{vPg}, s[{sTb}:{sTb+3}], s{sSoF} offen lds")])
    def body(g, ty, ty_next, first=False, doA=True, doB=True, loop=False, dyn=False, tailA=None, tailB=None, cout=True, ex=(), needp=0):
        cin = carry[0]
        k("s_waitcnt lgkmcnt(0)")
        dm = [[], [], [], []]
        def a3():
            k(la(g + 2, 3)); advA(); return "s_nop 0"
        if cin: dm = [[lambda: la(g + 2, 2)], [a3], [], []]
        half(0, 0, first, False, False, reads(ty, 1, 1, g) + [f"ds_read_b32 v{vFl}, v{vFa}"], dm, ex[:len(ex)//2])
        if doB or tailB: k(f"s_add_u32 m0, s{sM0B}, {8192*((g+4)%6)}")
        if tailB: k(tailB)
        n = 7 if loop else min(63, newer({("A", g + 1)}))
        ok = k.lab("gok"); sl = k.lab("gslow")
        need = f"s{sNeed}" if (loop or dyn) else str(g - 2 + needp)
        acct = "acct" in MX and loop
        if acct: k("s_waitcnt lgkmcnt(0)\ns_memtime s[36:37]\ns_waitcnt lgkmcnt(0)")
        k(f"s_waitcnt vmcnt({n}) lgkmcnt(0)")
        if acct: k("s_memtime s[38:39]\ns_waitcnt lgkmcnt(0)\ns_sub_u32 s36, s38, s36\ns_add_u32 s82, s82, s36")
        k(f"v_cmp_gt_u32 vcc, {need}, v{vFl}\ns_cbranch_vccnz {sl}")
        cold.append((sl, need, ok))
        k.label(ok)
        if acct: k("s_memtime s[36:37]\ns_waitcnt lgkmcnt(0)\ns_sub_u32 s36, s36, s38\ns_add_u32 s84, s84, s36")
        def mark():
            if doB: advB()
            if not (ev[5] < 30 and g == ev[5] - 1): k(lf())
            t = []
            if doA or tailA: t.append(f"s_add_u32 m0, s{sM0A}, {16384*(g%3)}")
            if tailA: t.append(tailA)
            return "\n".join(t) or "s_nop 0"
        dm = [[], [mark], [], []]
        if doB or tailB: dm = [[lambda: lb(g + 4, 0)], [lambda: lb(g + 4, 1), mark], [], []]
        cout = cout and doA
        if doA or tailA:
            dm[2] = [lambda: la(g + 3, 0)] + ([] if cout else [lambda: la(g + 3, 1)])
            dm[3] = [lambda: la(g + 3, 1)] if cout else [lambda: la(g + 3, 2), lambda: la(g + 3, 3)]
        half(1, 1, False, False, False, reads(ty_next, 0, 0, g + 1) if ty_next else [], dm, ex[len(ex)//2:])
        if doA and not cout: advA()
        carry[0] = cout
        if loop or dyn: k(f"s_add_u32 s{sNeed}, s{sNeed}, 1")
    def hi(): pass
    def lo(): pass
    def prologue(g0, ty):
        k(f"s_add_u32 s{sSoF}, s{sSoF}, {4*(g0-4)}")
        k(lf())
        issue_b(g0 + 1); k(lf()); issue_a(g0 + 1); issue_b(g0 + 2); issue_b(g0 + 3); k(lf()); issue_a(g0 + 2)
        k(f"s_waitcnt vmcnt({newer({('A', g0)})})")
        spinw(vFa, g0 - 3)
        for r in reads(ty, 0, 0, g0): k(r)
    def src_win(off_const):
        k.srd(sB, P_WIN, 640*3456)
        k(f"""s_mul_i32 s{sSoB}, s{sW}, {16*3456}
        s_lshl_b32 s{sT}, s{sFG}, 7
        s_add_u32 s{sSoB}, s{sSoB}, s{sT}
        s_add_u32 s{sSoB}, s{sSoB}, {off_const}
        s_mov_b32 s{sStepB}, {64*3456}""")
    def load_mr():
        lds_wait(L_F + F_XR, vT, vT + 1)
        k.srd(sO, P_WS, SZ_XN, WS_XN)
        k(f"v_mul_u32_u24 v{vT+2}, {XN_ST}, v{vTok}")
        k(vop("mr", f"buffer_load_dwordx2 {v(vT+8,2)}, v{vT+2}, s[{sO}:{sO+3}], 0 offen offset:1280 sc1"))
    def src_xn():
        k.srd(sA, P_WS, SZ_XN, WS_XN)
        k(f"s_lshl_b32 s{sBaseA}, s{sTB}, 2\ns_add_u32 s{sBaseA}, s{sBaseA}, s{sW}\ns_mul_i32 s{sBaseA}, s{sBaseA}, {32*XN_ST}\ns_mov_b32 s{sSoA}, s{sBaseA}")
    def ln_fold(kv):
        mu, r = vT + 8, vT + 9
        k(f"""s_waitcnt vmcnt({newer({'mr'})})
        v_and_b32 v{vT+2}, s{sMask}, v{mu}
        v_sub_f32 v{vT+3}, v{mu}, v{vT+2}
        v_cvt_pk_bf16_f32 v{vT}, -v{vT+2}, -v{vT+3}
        v_cvt_pk_bf16_f32 v{vT+1}, -v{vT+2}, 0""")
        for u in range(2):
            c = vCs[u]
            k(f"""v_and_b32 v{c+3}, s{sMask}, v{c+2}
            v_sub_f32 v{c+2}, v{c+2}, v{c+3}
            v_cvt_pk_bf16_f32 v{c}, v{c+3}, v{c+3}
            v_cvt_pk_bf16_f32 v{c+1}, v{c+2}, 0""")
        k("s_nop 1")
        for u in range(2):
            A_, B_ = (vT, vCs[u]) if (kv and u == 1) else (vCs[u], vT)
            k(f"v_mfma_f32_32x32x8_bf16 {v(acc[u],16)}, {v(A_,2)}, {v(B_,2)}, {v(acc[u],16)}")
    def swap4(b0):
        k(f"v_permlane32_swap_b32 v{b0}, v{b0+2}\nv_permlane32_swap_b32 v{b0+1}, v{b0+3}")
    def swap44(*bs):
        for b0 in bs: k(f"v_permlane32_swap_b32 v{b0}, v{b0+2}\nv_permlane32_swap_b32 v{b0+1}, v{b0+3}")
        for b0 in bs: k(f"v_permlane16_swap_b32 v{b0}, v{b0+2}\nv_permlane16_swap_b32 v{b0+1}, v{b0+3}")
    def gelu(u, dst, stats):
        t = acc[u]
        if pkv & 1:
            E = range(0, 16, 2)
            for i in E: k(f"v_pk_mul_f32 {v(tmp+i,2)}, {v(t+i,2)}, {v(t+i,2)}")
            for i in E: k(f"v_pk_fma_f32 {v(tmp+i,2)}, {v(tmp+i,2)}, {v(vT+12,2)}, {v(vT+12,2)} op_sel:[0,0,1] op_sel_hi:[1,0,1]")
            for i in E: k(f"v_pk_mul_f32 {v(tmp+i,2)}, {v(tmp+i,2)}, {v(t+i,2)}")
            for i in range(16): k(f"v_exp_f32 v{tmp+i}, v{tmp+i}")
            for i in E: k(f"v_pk_add_f32 {v(tmp+i,2)}, {v(tmp+i,2)}, 1.0 op_sel_hi:[1,0]")
            for i in range(16): k(f"v_rcp_f32 v{tmp+i}, v{tmp+i}")
            for i in E: k(f"v_pk_mul_f32 {v(tmp+i,2)}, {v(tmp+i,2)}, {v(t+i,2)}")
            for i in E: k(f"v_cvt_pk_bf16_f32 v{dst+i//2}, v{tmp+i}, v{tmp+i+1}")
            for i in range(8):
                c = vT + 10 if i < 4 else vT + 6
                k(f"v_dot2c_f32_bf16 v{c}, v{vOnes}, v{dst+i}\nv_dot2c_f32_bf16 v{c+1}, v{dst+i}, v{dst+i}")
            return
        for g0 in range(0, 16, 8):
            R = range(g0, g0 + 8)
            for i in R: k(f"v_mul_f32 v{tmp+i-g0}, v{t+i}, v{t+i}")
            for i in R: k(f"v_fmaak_f32 v{tmp+i-g0}, v{vT+12}, v{tmp+i-g0}, {fl(GC0)}")
            for i in R: k(f"v_mul_f32 v{tmp+i-g0}, v{tmp+i-g0}, v{t+i}")
            for i in R: k(f"v_exp_f32 v{tmp+i-g0}, v{tmp+i-g0}")
            for i in R: k(f"v_add_f32 v{tmp+i-g0}, 1.0, v{tmp+i-g0}")
            for i in R: k(f"v_rcp_f32 v{tmp+i-g0}, v{tmp+i-g0}")
            for i in R: k(f"v_mul_f32 v{tmp+i-g0}, v{tmp+i-g0}, v{t+i}")
            for i in range(0, 8, 2): k(f"v_cvt_pk_bf16_f32 v{dst+(g0+i)//2}, v{tmp+i}, v{tmp+i+1}")
            if stats:
                c = vT + 10 if g0 == 0 else vT + 6
                for i in range(8):
                    k(f"v_add_f32 v{c}, v{c}, v{tmp+i}\nv_fmac_f32 v{c+1}, v{tmp+i}, v{tmp+i}")

    rep = k.lab("rep"); b10 = k.lab("b10"); outp = k.lab("outp"); outq = k.lab("outq"); kw = k.lab("kw"); kwd = k.lab("kwd")
    vx, vw = z2, z2 + 2
    k(f"v_lshrrev_b32 v{vT}, 3, v{vL}\nv_and_b32 v{vT+1}, 7, v{vL}")
    for p in range(2):
        k(f"""v_add_u32 v{vT+2}, {8*p}, v{vT}
        v_bfe_u32 v{vT+3}, v{vT+2}, 1, 3
        v_xor_b32 v{vT+3}, v{vT+3}, v{vT+1}
        v_mul_u32_u24 v{vT+2}, 1280, v{vT+2}
        v_lshl_add_u32 v{vx+p}, v{vT+3}, 4, v{vT+2}""")
    k(f"v_subrev_u32 v{vx+1}, 1024, v{vx+1}")
    k.srd(sA, P_X, SZ_Q)
    k(f"""s_lshl_b32 s{sBaseA}, s{sT64}, 2
    s_add_u32 s{sBaseA}, s{sBaseA}, s{sW}
    s_mul_i32 s{sBaseA}, s{sBaseA}, {16*1280}
    s_lshl_b32 s{sNeed}, s{sW}, 11
    s_add_u32 s{sNeed}, s{sNeed}, {F_B}""")
    sKr = 36
    def l_rot():
        if frot: k(f"s_lshr_b32 s{sKr}, s2, 3\ns_mul_i32 s{sKr}, s{sKr}, {frot}\ns_mul_i32 s{sT}, s{sKr}, 6554\ns_lshr_b32 s{sT}, s{sT}, 16\ns_mul_i32 s{sT}, s{sT}, 10\ns_sub_u32 s{sKr}, s{sKr}, s{sT}")
        else: k(f"s_mov_b32 s{sKr}, 0")
    def l_x(g):
        k(f"s_lshl_b32 s{sSoA}, s{sKr}, 7\ns_add_u32 m0, s{sNeed}, {F_S*(g%6)}\ns_add_u32 s{sSoA}, s{sBaseA}, s{sSoA}")
        for p in range(2): k(vop(("A", g), f"buffer_load_dwordx4 v{vx+p}, s[{sA}:{sA+3}], s{sSoA} offen offset:{1024*p} lds"))
    def l_w(g, n):
        k(f"s_mul_i32 s{sSoA}, s{sKr}, s{sStepB}\ns_add_u32 m0, s{sI}, {F_S*(g%6)}\ns_add_u32 s{sSoA}, s{sSoA}, s{sSoB}")
        for p in range(n): k(vop(("A", g), f"buffer_load_dwordx4 v{vw+p}, s[{sB}:{sB+3}], s{sSoA} offen offset:{1024*p} lds"))
        k(f"s_add_u32 s{sKr}, s{sKr}, 1\ns_cmp_eq_u32 s{sKr}, 10\ns_cmov_b32 s{sKr}, 0")
    lx, ls, lt, la_ = fs[0][0][0], fs[1][0][0], fs[1][0][0] + 16, z2 + 6
    def l_pass(n, x0done, mid=None, lead=3, xf=False):
        for g in range(lead):
            if not (g == 0 and x0done): l_x(g)
            l_w(g, n)
        if mid: mid()
        k(f"v_lshl_add_u32 v{la_}, v{vL}, 4, s{sNeed}\nv_add_u32 v{la_+1}, {3*F_S}, v{la_}")
        for i in range(16): k(f"v_mov_b32 v{ls+i}, 0")
        for g in range(10):
            k(f"s_waitcnt vmcnt({newer({('A', g)})})")
            if g == 0: sp('land0')
            k("s_barrier")
            if g == 0: sp('p1s')
            for p in range(2):
                k(f"ds_read_b128 {v(lx+4*p,4)}, v{la_+(g%6)//3} offset:{F_S*(g%3)+1024*p}")
            if g + lead < 10:
                l_x(g + lead); l_w(g + lead, n)
            if g == 9 and xf:
                k(f"s_lshl_b32 s{sT+3}, s{sTB}, 2\ns_add_u32 s{sT+3}, s{sT+3}, s{sW}\ns_lshl_b32 s{sT+3}, s{sT+3}, 9\nv_lshlrev_b32 v{vT+4}, 7, v{vL}\ns_mov_b64 exec, 0xf")
                k(gload(f"s{sT+3}", vT + 4, vT + 8))
                k("s_mov_b64 exec, -1")
            k("s_waitcnt lgkmcnt(0)")
            for hh in range(2):
                for p in range(2):
                    X = lx + 4*p + 2*hh
                    k(f"v_mfma_f32_4x4x4_16b_bf16 {v(ls+8*p,4)}, {v(vOnes,2)}, {v(X,2)}, {v(ls+8*p,4)}")
                    k(f"v_mfma_f32_4x4x4_16b_bf16 {v(ls+8*p+4,4)}, {v(X,2)}, {v(X,2)}, {v(ls+8*p+4,4)}")
        k(f"v_and_b32 v{lt}, 3, v{vL}\ns_nop 2")
        for i in range(1, 4):
            k(f"v_cmp_eq_u32 vcc, {i}, v{lt}\ns_nop 1")
            for p in range(2): k(f"v_cndmask_b32 v{ls+8*p+4}, v{ls+8*p+4}, v{ls+8*p+4+i}, vcc")
        R = [ls, ls + 8, ls + 4, ls + 12]
        for m in ("quad_perm:[1,0,3,2]", "quad_perm:[2,3,0,1]", "row_half_mirror"):
            for r in R: k(f"v_add_f32_dpp v{r}, v{r}, v{r} {m} row_mask:0xf bank_mask:0xf")
        for r in R: k(f"v_mul_f32 v{r}, {fl(1.0/640)}, v{r}")
        for p in range(2):
            mu, q_ = ls + 8*p, ls + 8*p + 4
            k(f"v_fma_f32 v{q_}, -v{mu}, v{mu}, v{q_}\nv_max_f32 v{q_}, 0, v{q_}\nv_add_f32 v{q_}, {fl(1e-5)}, v{q_}\nv_rsq_f32 v{q_}, v{q_}")
        k(f"""s_lshl_b32 s{sT}, s{sW}, 6
        s_add_u32 s{sT}, s{sT}, {F_STS}
        v_lshrrev_b32 v{lt}, 3, v{vL}
        v_lshl_add_u32 v{lt}, v{lt}, 2, s{sT}
        ds_write_b32 v{lt}, v{ls}
        ds_write_b32 v{lt}, v{ls+4} offset:256
        ds_write_b32 v{lt}, v{ls+8} offset:32
        ds_write_b32 v{lt}, v{ls+12} offset:288
        s_waitcnt lgkmcnt(0)""")
    def q_src():
        for p in range(3):
            k(f"""v_add_u32 v{vT}, {64*p}, v{vL}
            v_mul_u32_u24 v{vT+1}, 5462, v{vT}
            v_lshrrev_b32 v{vT+1}, 16, v{vT+1}
            v_mul_u32_u24 v{vT+2}, 12, v{vT+1}
            v_sub_u32 v{vT+2}, v{vT}, v{vT+2}
            v_min_u32 v{vT+2}, 9, v{vT+2}
            v_mul_u32_u24 v{vT+1}, 1280, v{vT+1}
            v_lshl_add_u32 v{vw+p}, v{vT+2}, 4, v{vT+1}""")
            if p: k(f"v_subrev_u32 v{vw+p}, {1024*p}, v{vw+p}")
        k.srd(sB, P_WQ, 640*1280)
        k(f"""s_mul_i32 s{sSoB}, s{sW}, {16*1280}
        s_mul_i32 s{sT}, s{sHG}, 160
        s_add_u32 s{sSoB}, s{sSoB}, s{sT}
        s_mov_b32 s{sStepB}, {64*1280}
        s_mul_i32 s{sI}, s{sW}, 3072
        s_add_u32 s{sI}, s{sI}, {F_B+8192}""")
    if "skip" in MX:
        k(f"s_barrier\ns_cmp_eq_u32 s{sHG}, 7\ns_cbranch_scc1 {end}")
        setup_rest(); a_addr(4096)
        k.srd(sA, P_WSP, 2048*4096)
        k(f"s_lshl_b32 s{sSoA}, s{sTB}, 2\ns_add_u32 s{sSoA}, s{sSoA}, s{sW}\ns_lshl_b32 s{sSoA}, s{sSoA}, 17")
        k(f"v_lshlrev_b32 v{vDb}, 4, v{vL}\nv_lshlrev_b32 v{vDb+1}, 4, v{vL}\ns_add_u32 s{sSoF}, s{sSoF}, {4*28}\ns_waitcnt vmcnt(0)")
        k(lf()); k(f"s_branch {skipG}")
    early = 'b' not in pf
    sKr = 36
    l_rot()
    if early: l_x(0)
    k(f"s_cmp_eq_u32 s{sHG}, 7\ns_cbranch_scc1 {rep}")
    q_src()
    def mid():
        setup_rest(); nat_read_addr(128); b_addr(3456); a_addr(XN_ST)
    if early: l_pass(3, True, mid, xf=True, lead=lq)
    else:
        mid(); k("s_barrier"); l_pass(3, False, xf=True)
    sp('p1l')
    k("s_barrier")
    src_win(13 * 128)
    issue_b(10)
    src_xn()
    xo = k.lab("xo")
    k("s_waitcnt vmcnt(2)\ns_mov_b64 exec, 0xf")
    gcheck(vT + 8)
    k(f"s_mov_b64 exec, -1\ns_cbranch_vccz {xo}")
    gpoll(f"s{sT+3}", vT + 4, vT + 8, 0xf, 2)
    k.label(xo)
    cohA[0] = "sc1"
    issue_a(10)
    prologue(10, "nat")

    k.label(b10)
    sp('p1')
    prio[0] = lprio
    vFg, vSt = vT + 8, tmp
    def z_ready():
        pd = k.lab("zpd")
        sp('zc')
        k(f"s_waitcnt vmcnt({newer({'pz'})})")
        gcheck(vFg)
        k(f"s_cbranch_vccz {pd}")
        k(f"s_lshl_b32 s{sT}, s{sW}, 13\ns_add_u32 s{sT}, s{sT}, {FL_Z}")
        gpoll(f"s{sT}", vT + 14, vFg, None, 4)
        k.label(pd)
        gsync()
        sp('zr')
        k.srd(sB, P_WS, SZ_Z2F, WS_Z2F)
        k(f"""s_lshl_b32 s{sT}, s{sFG}, 2
        s_add_u32 s{sT}, s{sT}, s{sW}
        s_lshl_b32 s{sSoB}, s{sT}, 16
        s_mov_b32 s{sStepB}, 2048
        v_add_u32 v{vZf}, {L_Z}, v{vDb}""")
        cohB[0] = "sc1"
        k(f"s_setprio {lprio}")
        for g in range(30, ev[5] + 4): issue_b(g)
        if ev[5] < 30: k(lf())
        k("s_setprio 3")
    for g in range(10, 30):
        if g == 16:
            src_win(0)
        if g == 17:
            k(f"s_mov_b32 s{sSoA}, s{sBaseA}")
        if g == 14 and so:
            poison(False)
        if g == 20:
            sp('p2')
            hi()
            s0 = k.lab("s0")
            k(f"v_mov_b32 v{vT+12}, {fl(GC1)}\nv_mov_b32 v{vT+13}, {fl(GC0)}\nv_mov_b32 v{vT+10}, 0\nv_mov_b32 v{vT+11}, 0\nv_mov_b32 v{vT+6}, 0\nv_mov_b32 v{vT+7}, 0\ns_nop 1")
            k(f"s_cmp_eq_u32 s{sFG}, 0\ns_cbranch_scc1 {s0}")
            gelu(0, z2, True)
            k.label(s0)
            gelu(1, z2 + 8, True)
            k.srd(sO, P_WS, SZ_ST, WS_ST)
            k(f"""v_permlane16_swap_b32 v{vT+10}, v{vT+6}
            v_permlane16_swap_b32 v{vT+11}, v{vT+7}
            v_add_f32 v{vT+10}, v{vT+10}, v{vT+6}
            v_add_f32 v{vT+11}, v{vT+11}, v{vT+7}
            v_mov_b32 v{vT+2}, v{vT+10}
            v_mov_b32 v{vT+3}, v{vT+11}
            s_mul_i32 s{sT}, s{sTB}, 14
            s_add_u32 s{sT}, s{sT}, s{sFG}
            v_permlane32_swap_b32 v{vT+10}, v{vT+2}
            v_permlane32_swap_b32 v{vT+11}, v{vT+3}
            s_lshl_b32 s{sT}, s{sT}, 11
            s_lshl_b32 s{sT+1}, s{sW}, 9
            v_add_f32 v{vT+4}, v{vT+10}, v{vT+2}
            v_add_f32 v{vT+6}, v{vT+11}, v{vT+3}
            v_mov_b32 v{vT+5}, s{sNo}
            v_mov_b32 v{vT+7}, s{sNo}
            v_lshlrev_b32 v{vT+2}, 4, v{vN}
            s_add_u32 s{sT}, s{sT}, s{sT+1}""")
            k(vop("st", f"buffer_store_dwordx4 {v(vT+4,4)}, v{vT+2}, s[{sO}:{sO+3}], s{sT} offen sc1"))
            k("s_nop 0")
        if g == gr:
            sp('e25')
            pr = [z1, z1 + 4, z1 + 8, z1 + 12, tmp + 8, tmp + 12, tmp + 16]
            gl = k.lab("gl"); gd = k.lab("gd")
            k(f"""v_mul_u32_u24 v{vT+14}, {7*2048}, v{vH}
            v_lshl_add_u32 v{vT+14}, v{vN}, 4, v{vT+14}
            s_mul_i32 s{sT+2}, s{sTB}, {14*2048}
            s_lshl_b32 s{sT+1}, s{sW}, 9
            s_add_u32 s{sT+2}, s{sT+2}, s{sT+1}""")
            def gloads():
                for i in range(7):
                    if i % 2 == 0: k(f"s_add_u32 s{sT+3}, s{sT+2}, {2048*i}")
                    k(f"buffer_load_dwordx4 {v(pr[i],4)}, v{vT+14}, s[{sO}:{sO+3}], s{sT+3} offen offset:{2048*(i%2)} sc1")
            gloads()
            sel, D = tmp, tmp + 8
            mur, r = vT + 10, vT + 11
            k(f"""v_and_b32 v{vT+2}, 15, v{vL}
            v_lshrrev_b32 v{vT+3}, 4, v{vL}
            v_lshlrev_b32 v{vT+3}, 2, v{vT+3}
            v_sub_u32 v{vT+2}, v{vT+2}, v{vT+3}
            v_mov_b32 v{vT+3}, 0x3f80
            v_mov_b32 v{vT+4}, 0x3f800000""")
            for q in (0, 1, 4, 5): k(f"v_mov_b32 v{sel+q}, 0")
            for q in range(2):
                k(f"""v_cmp_eq_u32 vcc, {2*q}, v{vT+2}
                v_cmp_eq_u32 s[{sT}:{sT+1}], {2*q+1}, v{vT+2}
                s_nop 0
                v_cndmask_b32 v{sel+2+q}, 0, v{vT+3}, vcc
                v_cndmask_b32 v{sel+2+q}, v{sel+2+q}, v{vT+4}, s[{sT}:{sT+1}]""")
            k.label(gl)
            k("s_waitcnt vmcnt(0)")
            for j, tg in ((1, sNo), (3, sNo)):
                t = vT + 4 + j // 2
                k(f"v_xor_b32 v{t}, s{tg}, v{pr[0]+j}")
                for i in range(1, 7):
                    k(f"v_xor_b32 v{vT+6}, s{tg}, v{pr[i]+j}\nv_or_b32 v{t}, v{t}, v{vT+6}")
            k(f"v_or_b32 v{vT+4}, v{vT+4}, v{vT+5}\nv_cmp_ne_u32 vcc, 0, v{vT+4}\ns_cbranch_vccz {gd}\ns_sleep 2")
            gloads()
            again(gl)
            k("s_waitcnt vmcnt(0)")
            k.label(gd)
            sp('sok')
            for i in range(1, 7):
                k(f"v_add_f32 v{z1}, v{z1}, v{pr[i]}\nv_add_f32 v{z1+2}, v{z1+2}, v{pr[i]+2}")
            k(f"v_mov_b32 v{z1+1}, v{z1+2}")
            k.srd(sO, P_WS, SZ_Z2F, WS_Z2F)
            k(f"""v_mov_b32 v{z1+2}, v{z1}
            v_mov_b32 v{z1+3}, v{z1+1}
            v_lshlrev_b32 v{vT+2}, 4, v{vL}
            s_lshl_b32 s{sT}, s{sFG}, 18
            v_permlane32_swap_b32 v{z1}, v{z1+2}
            v_permlane32_swap_b32 v{z1+1}, v{z1+3}
            v_add_f32 v{mur}, v{z1}, v{z1+2}
            v_add_f32 v{r}, v{z1+1}, v{z1+3}
            v_mul_f32 v{mur}, {fl(1.0/864)}, v{mur}
            v_mul_f32 v{r}, {fl(1.0/864)}, v{r}
            v_fma_f32 v{r}, -v{mur}, v{mur}, v{r}
            v_max_f32 v{r}, 0, v{r}
            v_add_f32 v{r}, {fl(1e-5)}, v{r}
            v_rsq_f32 v{r}, v{r}
            s_lshl_b32 s{sT+1}, s{sTB}, 12
            s_add_u32 s{sT}, s{sT}, s{sT+1}
            v_mul_f32 v{mur}, v{mur}, v{r}
            v_mov_b32 v{vT+7}, v{r}
            v_mov_b32 v{vT+6}, v{mur}
            s_lshl_b32 s{sT+1}, s{sW}, 10
            s_add_u32 s{sT}, s{sT}, s{sT+1}
            v_permlane16_swap_b32 v{r}, v{vT+7}
            v_permlane16_swap_b32 v{mur}, v{vT+6}""")
            s1 = k.lab("s1")
            for u in (1, 0):
                if u == 0:
                    k(f"s_cmp_eq_u32 s{sFG}, 0\ns_cbranch_scc1 {s1}\ns_sub_u32 s{sT}, s{sT}, 0x20000")
                k(f"s_add_u32 s{sT+1}, s{sT}, 0x10000")
                zz = z2 + 8*u
                for i in range(8):
                    m_, r_ = (mur, r) if i < 4 else (vT + 6, vT + 7)
                    k(f"""v_lshlrev_b32 v{vT+4}, 16, v{zz+i}
                    v_and_b32 v{vT+5}, s{sMask}, v{zz+i}
                    v_fma_f32 v{vT+4}, v{vT+4}, v{r_}, -v{m_}
                    v_fma_f32 v{vT+5}, v{vT+5}, v{r_}, -v{m_}
                    v_cvt_pk_bf16_f32 v{zz+i}, v{vT+4}, v{vT+5}""")
                k("s_nop 1")
                for c in range(2):
                    for tn in range(2):
                        k(f"v_mfma_f32_16x16x32_bf16 {v(D+8*c+4*tn,4)}, {v(zz+4*tn,4)}, {v(sel+2-2*c,4)}, 0")
                k("s_nop 4")
                for i in range(8): k(f"v_cvt_pk_bf16_f32 v{zz+i}, v{D+2*i}, v{D+2*i+1}")
                k("s_nop 0")
                swap44(zz, zz + 4)
                for c in range(2):
                    k(vop("zs", f"buffer_store_dwordx4 {v(zz+4*c,4)}, v{vT+2}, s[{sO}:{sO+3}], s{sT + c} offen sc1"))
            k.label(s1)
            del vm[-2:]
            lo()
        if g == gr + 1:
            sp('e26')
            hi()
            k(f"s_waitcnt vmcnt({newer({'zs'})})")
            sp('za')
            gsync(); set_flag(FL_Z)
            sp('zf')
            if so: poison_done()
            lo()
        if g == 27:
            sp('e27')
            hi()
            a_addr(4096)
            k.srd(sA, P_WSP, 2048*4096)
            k(f"s_lshl_b32 s{sSoA}, s{sTB}, 2\ns_add_u32 s{sSoA}, s{sSoA}, s{sW}\ns_lshl_b32 s{sSoA}, s{sSoA}, 17")
            cohA[0] = ntw
            if prot is not None:
                wrapA[0] = True
                k(f"""s_and_b32 s36, s{sTB}, 1
                s_mul_i32 s36, s36, {prot[0]}
                s_mul_i32 s37, s{sFG}, {prot[1]}
                s_add_u32 s36, s36, s37
                s_and_b32 s36, s36, 31
                s_mov_b32 s38, s{sSoA}
                s_lshl_b32 s37, s36, 7
                s_add_u32 s{sSoA}, s38, s37""")
            k.srd(sB, P_BSP, 4096)
            k(f"v_lshlrev_b32 v{vT+2}, 1, v{vTok}\nv_lshlrev_b32 v{vDb}, 4, v{vL}\nv_lshlrev_b32 v{vDb+1}, 4, v{vL}")
            k(vop("bias", f"buffer_load_ushort v{vBias}, v{vT+2}, s[{sB}:{sB+3}], 0 offen"))
            lo()
        if g == ev[4]:
            k(f"s_lshl_b32 s{sT}, s{sW}, 13\ns_add_u32 s{sT}, s{sT}, {FL_Z}\nv_and_b32 v{vT+14}, 15, v{vL}\nv_min_u32 v{vT+14}, 13, v{vT+14}\nv_and_or_b32 v{vT+14}, v{vL}, 48, v{vT+14}\nv_lshlrev_b32 v{vT+14}, 7, v{vT+14}")
            k(vop("pz", gload(f"s{sT}", vT + 14, vFg)))
        if g == ev[5]:
            z_ready()
        body(g, "nat", "nat" if g != 29 else ("frag" if ev[5] < 30 else None), first=(g in (10, 20)), doB=(g < 26 or g >= ev[5]), cout=(g not in (16, 26, ev[5] - 1)),
             needp=((ev[5] - 28) if (g == 29 and ev[5] < 30) else 0))
    sp('p3')
    k.label(skipG)
    if ev[5] == 30:
        z_ready()
        k("s_waitcnt vmcnt(2)")
        gsync()
        for r in reads("frag", 0, 0, 30): k(r)
    pat[0] = pats
    cacc[0] = [z1, z2]
    body(30, "frag", "frag", first=True, needp=max(0, ev[5] - 29) if ev[5] < 30 else 0)
    body(31, "frag", "frag")
    k(f"s_mov_b32 s{sNeed}, 30\ns_mov_b32 s{sI}, 0")
    loop = k.lab("gloop")
    sp('l0')
    if "acct" in MX: k("s_waitcnt lgkmcnt(0)\ns_mov_b32 s82, s80\ns_mov_b32 s84, s80")
    if "lin" in MX:
        for p in range(4): k(f"v_mov_b32 v{vD+p}, v{vDb}")
    if "glin" in MX:
        for p in range(4): k(f"v_add_u32 v{vWa+p}, s{sM0A}, v{vDb}")
    if "oob" in MX: k(f"s_mov_b32 s{sA+2}, 0\ns_mov_b32 s{sB+2}, 0")
    if "ooa" in MX: k(f"s_mov_b32 s{sA+2}, 0")
    if "ooz" in MX: k(f"s_mov_b32 s{sB+2}, 0")
    k.align(3)
    k.label(loop)
    inloop[0] = True
    if "nosc" in MX: cohB[0] = ""
    for g in range(32, 38):
        body(g, "frag", "frag", loop=True)
    inloop[0] = False
    k(f"s_add_u32 s{sI}, s{sI}, 1\ns_cmp_lt_u32 s{sI}, 3\ns_cbranch_scc1 {loop}")
    sp('l1')
    if "skip" in MX: k.endpgm(P_WS, 3)
    if "nopt" in MX:
        k("s_waitcnt lgkmcnt(0)")
        k.stamp(1); k("s_waitcnt lgkmcnt(0)")
        for i in range(32): k("s_nop 15")
        k.stamp(2); k("s_waitcnt lgkmcnt(0)")
        for i in range(256): k(f"v_add_u32 v{vT}, 1, v{vT}")
        k.stamp(3); k("s_waitcnt lgkmcnt(0)")
        for i in range(32): k(f"ds_read_b32 v{vT}, v{vFa}\ns_waitcnt lgkmcnt(0)")
        k.stamp(4); k("s_waitcnt lgkmcnt(0)")
    sG, sWb = sI, sBaseA
    def out_ids():
        k(f"s_lshr_b32 s{sG}, s2, 5\ns_mul_i32 s{sWb}, s{sG}, {47*5120}\ns_add_u32 s{sWb}, s{sWb}, {20*5120 - 1024 - L_A}")
    vm[:] = [((t[0], t[1] + 12) if isinstance(t, tuple) else t) for t in vm]
    def gelu4(r0):
        t = vT
        R = range(4)
        o = [f"v_mul_f32 v{t+i}, v{r0+i}, v{r0+i}" for i in R] + [f"v_fmaak_f32 v{t+i}, v{vT+12}, v{t+i}, {fl(GC0)}" for i in R]
        o += [f"v_mul_f32 v{t+i}, v{t+i}, v{r0+i}" for i in R] + [f"v_exp_f32 v{t+i}, v{t+i}" for i in R]
        o += [f"v_add_f32 v{t+i}, 1.0, v{t+i}" for i in R] + [f"v_rcp_f32 v{t+i}, v{t+i}" for i in R]
        return o + [f"v_mul_f32 v{r0+i}, v{t+i}, v{r0+i}" for i in R]
    for g in range(50, 62):
        tA = tB = None
        if g == 55:
            k(f"v_and_b32 v{vT+14}, 31, v{vL}\nv_lshlrev_b32 v{vT+14}, 7, v{vT+14}\ns_mov_b32 s{sT}, {FL_W}")
            k(gload(f"s{sT}", vT + 14, vFg))
        if g == 58:
            wk = k.lab("wok")
            gcheck(vFg)
            k(f"s_cbranch_vccz {wk}\ns_mov_b32 s{sT}, {FL_W}")
            gpoll(f"s{sT}", vT + 14, vFg, None, 4)
            k.label(wk)
            sp('g58')
            out_ids()
            k.srd(sB, P_WS, SZ_WF, WS_WF)
        if g == 59:
            k.srd(sA, P_WS, SZ_WF, WS_WF)
            cohA[0] = "sc1"
            hi()
            for p in range(4): k(f"v_mov_b32 v{vD+p}, v{vDb}")
            lo()
        if g >= 58: tB = f"s_add_u32 s{sSoB}, m0, s{sWb}"
        if g >= 59: tA = f"s_add_u32 s{sSoA}, m0, s{sWb}"
        body(g, "frag", "frag" if g < 61 else None, dyn=True, doA=(g < 59), doB=(g < 58), tailA=tA, tailB=tB, cout=(g < 58), ex=(gelu4(acc[0] + 4*(g - 50)) if g < 58 else ()))
    sp('p4')
    hi()
    fin = k.lab("gfin")
    def rest_w():
        gsync()
        k(f"s_lshl_b32 s{sT+1}, s{sW}, 12\ns_add_u32 m0, s{sT+1}, {L_Z}\ns_add_u32 s{sSoB}, m0, s{sWb}")
        for p in range(4):
            k(f"buffer_load_dwordx4 v{vDb}, s[{sB}:{sB+3}], s{sSoB} offen offset:{1024*p} sc1 lds")
    k.srd(sO, P_WS, SZ_OUF, WS_OUF)
    k(f"""v_lshlrev_b32 v{vBias}, 16, v{vBias}
    s_lshl_b32 s{sT}, s{sTB}, 2
    s_add_u32 s{sT}, s{sT}, s{sW}
    v_mov_b32 v{vBias1}, v{vBias}
    s_mul_i32 s{sT}, s{sT}, {2*47*1024}
    s_lshl_b32 s{sT+1}, s{sFG}, 11
    s_add_u32 s{sT}, s{sT}, s{sT+1}
    v_permlane16_swap_b32 v{vBias}, v{vBias1}
    s_add_u32 s{sT}, s{sT}, {20*1024}
    s_add_u32 s{sT+1}, s{sT}, {47*1024}""")
    for i in range(2):
        if i == 1:
            k(f"s_cmp_eq_u32 s{sFG}, 13\ns_cbranch_scc1 {fin}")
        ga = cacc[0][i]
        if pkv & 2:
            if pkv & 4: k('s_nop 7')
            for r in range(0, 16, 2): k(f"v_pk_add_f32 {v(ga+r,2)}, {v(ga+r,2)}, {v(vBias,2)} " + ("op_sel_hi:[1,0]" if r < 8 else "op_sel:[0,1] op_sel_hi:[1,1]"))
            for r in range(0, 16, 2): k(f"v_pk_mul_f32 {v(ga+r,2)}, {v(ga+r,2)}, {v(acc[i]+r,2)}")
        else:
            for r in range(16): k(f"v_add_f32 v{ga+r}, v{ga+r}, v{vBias if r < 8 else vBias1}")
            for r in range(16): k(f"v_mul_f32 v{ga+r}, v{ga+r}, v{acc[i]+r}")
        for r in range(8): k(f"v_cvt_pk_bf16_f32 v{tmp+8*i+r}, v{ga+2*r}, v{ga+2*r+1}")
        k("s_nop 0")
        swap44(tmp + 8*i, tmp + 8*i + 4)
        for tn in range(2):
            k(f"buffer_store_dwordx4 {v(tmp+8*i+4*tn,4)}, v{vDb}, s[{sO}:{sO+3}], s{sT+tn} offen offset:{1024*i} sc1")
    k.label(fin)
    sp('ust')
    rest_w()
    sp('urw')
    if not sent: set_wflag(FL_U, 4)
    sp('ufl')
    k(f"s_branch {outp}")

    k.label(rep)
    vm[:] = [("A", 0)] * 2
    k(f"s_cmp_ge_u32 s{sW}, 2\ns_cbranch_scc1 {kw}")
    k.srd(sB, P_WK, 25600)
    k(f"s_branch {kwd}")
    k.label(kw)
    k.srd(sB, P_WV, 25600)
    k.label(kwd)
    k(f"""v_lshlrev_b32 v{vw}, 4, v{vL}
    v_lshlrev_b32 v{vw+1}, 4, v{vL}
    s_and_b32 s{sSoB}, s{sW}, 1
    s_lshl_b32 s{sSoB}, s{sSoB}, 9
    s_mov_b32 s{sStepB}, 2560
    s_lshr_b32 s{sI}, s{sW}, 1
    s_lshl_b32 s{sI}, s{sI}, 12
    s_add_u32 s{sI}, s{sI}, s{sSoB}
    s_add_u32 s{sI}, s{sI}, {F_B+8192}""")
    if early: l_pass(2, True, setup_rest, lead=lk)
    else:
        setup_rest(); k("s_barrier"); l_pass(2, False, lead=4)
    sp('p1l')
    q_src()
    k("s_barrier\ns_barrier\ns_barrier")
    l_pass(3, False)
    k("s_barrier")
    rl = k.lab("rl")
    att_progress(1, vT + 5, 8)
    if spe: prefetch_sp()
    if so: poison(False)
    k(f"s_mov_b32 s{sNeed}, s{sT64}")
    k.label(rl)
    emit_repack(k, sNeed, sW, vL, P_WO, P_WOUT, P_WS, 8, acc[0], L_A, gsync, coh="sc1", rot=orot)
    k(f"s_add_u32 s{sNeed}, s{sNeed}, 32\ns_waitcnt vmcnt(0)")
    gsync()
    k(f"s_cmp_lt_u32 s{sNeed}, 47\ns_cbranch_scc1 {rl}")
    if so: poison_done()
    nf = k.lab("nf")
    k(f"s_cmp_lg_u32 s{sW}, 0\ns_cbranch_scc1 {nf}\ns_lshl_b32 s{sT}, s{sT64}, 7\ns_add_u32 s{sT}, s{sT}, {FL_W}")
    gset(f"s{sT}", vT, vT + 2)
    k.label(nf)
    k.label(outq)
    sp('p1')
    k(f"s_setprio {lprio}")
    out_ids()
    k.srd(sB, P_WS, SZ_WF, WS_WF)
    if not spe: prefetch_sp()
    if zpf:
        k(f"s_lshl_b32 s{sT}, s{sW}, 13\ns_add_u32 s{sT}, s{sT}, {FL_Z}\nv_and_b32 v{vT}, 15, v{vL}\nv_min_u32 v{vT}, 13, v{vT}\nv_and_or_b32 v{vT}, v{vL}, 48, v{vT}\nv_lshlrev_b32 v{vT}, 7, v{vT}")
        gpoll(f"s{sT}", vT, vT + 2, None, 16)
        gsync()
        zl = k.lab("zl")
        k.srd(sO, P_WS, SZ_Z2F, WS_Z2F)
        k(f"s_bfe_u32 s{sT}, s2, 0x20003\ns_lshl_b32 s{sT}, s{sT}, 2\ns_add_u32 s{sT}, s{sT}, s{sW}\nv_lshlrev_b32 v{vT+8}, 7, v{vL}")
        k.label(zl)
        k(f"""s_mul_i32 s{sT+1}, s{sT}, 2428
        s_lshr_b32 s{sT+1}, s{sT+1}, 16
        s_mul_i32 s{sT+2}, s{sT+1}, 27
        s_sub_u32 s{sT+2}, s{sT}, s{sT+2}
        s_lshl_b32 s{sT+2}, s{sT+2}, 17
        s_add_u32 s{sT+1}, s{sT+1}, {16 - zpf}
        s_lshl_b32 s{sT+1}, s{sT+1}, 13
        s_add_u32 s{sT+1}, s{sT+1}, s{sT+2}
        buffer_load_dword v{vT+9}, v{vT+8}, s[{sO}:{sO+3}], s{sT+1} offen sc1
        s_add_u32 s{sT}, s{sT}, 16
        s_cmp_lt_u32 s{sT}, {27 * zpf}
        s_waitcnt vmcnt(1)
        s_cbranch_scc1 {zl}""")
    att_progress(wfat, vT, 32)
    k(f"v_lshlrev_b32 v{vDb}, 4, v{vL}\nv_lshlrev_b32 v{vT}, 7, v{vL}\ns_mov_b32 s{sT}, {FL_W}")
    gpoll(f"s{sT}", vT, vT + 2, 0xffffffff, 16)
    if so:
        k(f"s_lshl_b32 s{sT}, s{sW}, 13\ns_add_u32 s{sT}, s{sT}, {FL_Z}\nv_and_b32 v{vT}, 15, v{vL}\nv_min_u32 v{vT}, 13, v{vT}\nv_and_or_b32 v{vT}, v{vL}, 48, v{vT}\nv_lshlrev_b32 v{vT}, 7, v{vT}")
        gpoll(f"s{sT}", vT, vT + 2, None, 16)
        gsync()
    if 'w' in pf:
        wl = k.lab("wl")
        k(f"""s_bfe_u32 s{sT}, s2, 0x20003
        s_lshl_b32 s{sT}, s{sT}, 2
        s_add_u32 s{sT}, s{sT}, s{sW}
        s_lshl_b32 s{sT}, s{sT}, 13
        v_lshlrev_b32 v{vT+8}, 7, v{vL}""")
        k.label(wl)
        k(f"""buffer_load_dword v{vT+9}, v{vT+8}, s[{sB}:{sB+3}], s{sT} offen sc1
        s_add_u32 s{sT}, s{sT}, {16*8192}
        s_cmp_lt_u32 s{sT}, {SZ_WF}
        s_waitcnt vmcnt(0)
        s_cbranch_scc1 {wl}""")
    k(f"s_mul_i32 s{sT}, s{sW}, {24*1024}\ns_add_u32 s{sT}, s{sT}, {L_A}")
    for p in range(24):
        if p % 4 == 0:
            k(f"s_add_u32 m0, s{sT}, {1024*p}\ns_add_u32 s{sSoB}, m0, s{sWb}")
        k(f"buffer_load_dwordx4 v{vDb}, s[{sB}:{sB+3}], s{sSoB} offen offset:{1024*(p%4)} sc1 lds")

    k.label(outp)
    sp('outp')
    sWF, sOU, sXo = sB, sA, sO
    sTT, sAo, sXof = sSoA, sStepB, sM0A
    a = Alloc(8)
    oacc = a(20, 4)
    af = a(80, 4)
    wb = [a(20, 4), a(20, 4)]
    xr = a(10, 2)
    vQ = a(4, 2)
    vA16, vW0, vW1, vXo, vP = a(), a(), a(), a(), a()
    assert a.n <= 168, a.n
    k.srd(sOU, P_WS, SZ_OUF, WS_OUF)
    k.srd(sXo, P_X, SZ_Q)
    k(f"""s_lshl_b32 s{sTT}, s{sT64}, 2
    s_add_u32 s{sTT}, s{sTT}, s{sW}
    s_mul_i32 s{sAo}, s{sTT}, {47*1024}
    s_mul_i32 s{sXof}, s{sTT}, {16*1280}
    s_mul_i32 s{sT}, s{sG}, 160
    s_add_u32 s{sXof}, s{sXof}, s{sT}
    v_lshlrev_b32 v{vA16}, 4, v{vL}
    v_add_u32 v{vW0}, {L_W}, v{vA16}
    v_add_u32 v{vW1}, {L_W+51200}, v{vA16}
    v_lshlrev_b32 v{vP}, 7, v{vL}
    v_and_b32 v{vXo}, 15, v{vL}
    v_mul_u32_u24 v{vXo}, 1280, v{vXo}
    v_lshrrev_b32 v{vQ}, 4, v{vL}
    v_lshl_add_u32 v{vXo}, v{vQ}, 3, v{vXo}""")
    k(f"s_setprio {lprio}")
    sWs, sWd = sT + 1, sT + 2
    k(f"s_mul_i32 s37, s{sG}, 5\ns_lshr_b32 s37, s37, 1\ns_mul_i32 s38, s{sG}, 27\ns_lshr_b32 s38, s38, 3")
    sU = sNeed
    vm[:] = []
    ld = []
    def lop(tag, txt): ld.append(tag); k(txt)
    def lnewer(tag): return min(15, len(ld) - 1 - max(i for i, t in enumerate(ld) if t == tag))
    def wpieces(step0, lds0, npieces, tag):
        per = npieces // 4
        def setup():
            k(f"""s_mul_i32 s{sWs}, s{sG}, {47*5120}
            s_mul_i32 s{sWd}, s{sW}, {per*1024}
            s_add_u32 s{sWs}, s{sWs}, s{sWd}
            s_add_u32 s{sWs}, s{sWs}, {step0*5120}
            s_add_u32 s{sWd}, s{sWd}, {lds0}""")
        def piece(p):
            if p == 0: setup()
            if p % 4 == 0:
                k(f"s_add_u32 m0, s{sWd}, {1024*p}")
                k(f"s_add_u32 s{sWs}, s{sWs}, 4096" if p else "s_nop 0")
            k(vop(tag, f"buffer_load_dwordx4 v{vA16}, s[{sWF}:{sWF+3}], s{sWs} offen offset:{1024*(p%4)} sc1 lds"))
        return [lambda p=p: piece(p) for p in range(per)]
    def aloads(steps, regs):
        def one(st, r):
            if orot:
                lo_, n_, sr = (0, 20, 37) if st < 20 else (20, 27, 38)
                k(f"s_add_u32 s{sT}, s{sr}, {st-lo_}\ns_sub_u32 s39, s{sT}, {n_}\ns_cselect_b32 s{sT}, s{sT}, s39\ns_lshl_b32 s{sT}, s{sT}, 10\ns_add_u32 s{sT}, s{sT}, s{sAo}")
                if lo_: k(f"s_add_u32 s{sT}, s{sT}, {lo_*1024}")
            else:
                k(f"s_add_u32 s{sT}, s{sAo}, {st*1024}")
            k(vop(("a", st), f"buffer_load_dwordx4 {v(af+4*r,4)}, v{vA16}, s[{sOU}:{sOU+3}], s{sT} offen sc1"))
        return [lambda st=st, r=r: one(st, r) for st, r in zip(steps, regs)]
    def wread(slot, b, u, tag):
        if isinstance(slot, tuple): base, o = vA16, slot[1] * 5120
        else: base, o = (vW0, slot * 5120) if slot < 10 else (vW1, (slot - 10) * 5120)
        lop(tag, f"ds_read_b128 {v(wb[b]+4*u,4)}, v{base} offset:{o+1024*u}")
    first = [True]
    def arrive():
        k(f"s_add_u32 s{sCnt}, s{sCnt}, 1\nv_mov_b32 v{vFl}, s{sCnt}")
        lop("w", f"ds_write_b32 v{vXw}, v{vFl}")
    def peek(): lop("pk", f"ds_read_b32 v{vQ}, v{vXa}")
    def check():
        sl = k.lab("oslow"); ok = k.lab("ook")
        k(f"s_waitcnt lgkmcnt({lnewer('pk')})\nv_cmp_gt_u32 vcc, s{sCnt}, v{vQ}\ns_cbranch_vccnz {sl}")
        k.label(ok)
        cold2.append((sl, ok))
    cold2 = []; cold3 = []
    def compute(seq, side, hooks={}):
        for i in range(min(2, len(seq))):
            for u in range(5): wread(seq[i][0], i % 2, u, ("r", i))
        for i, (sl, st, r) in enumerate(seq):
            b = i % 2
            nv = newer({("a", st)})
            k(f"s_waitcnt vmcnt({min(63, nv)}) lgkmcnt({lnewer(('r', i))})")
            if so and st < 20:
                a0 = af + 4*r
                sl = k.lab("vslow"); ok = k.lab("vok")
                k(f"v_max3_u32 v{vQ+1}, v{a0}, v{a0+1}, v{a0+2}\nv_max_u32 v{vQ+1}, v{vQ+1}, v{a0+3}\nv_cmp_eq_u32 vcc, -1, v{vQ+1}\ns_cbranch_vccnz {sl}")
                k.label(ok)
                cold3.append((sl, ok, st, r))
            if i in hooks: hooks[i]()
            sd = list(side.get(i, []))
            for u in range(5):
                c = "0" if first[0] else v(oacc+4*u, 4)
                k(f"v_mfma_f32_16x16x32_bf16 {v(oacc+4*u,4)}, {v(wb[b]+4*u,4)}, {v(af+4*r,4)}, {c}")
                if i + 2 < len(seq): wread(seq[i + 2][0], b, u, ("r", i + 2))
                if sd and u in ((1, 3, 4, 2, 0)[:len(side.get(i, []))]): sd.pop(0)()
            assert not sd
            first[0] = False
    def deal(em, i0, per):
        return {i0 + j: em[per*j:per*(j+1)] for j in range((len(em) + per - 1) // per)}
    for u in range(5):
        k(f"buffer_load_dwordx2 {v(xr+2*u,2)}, v{vXo}, s[{sXo}:{sXo+3}], s{sXof} offen offset:{32*u}")
    smode = [False]
    def probe_load(mask, vd, kind):
        k(f"s_mov_b64 exec, {hx(mask)}")
        if smode[0]: k(vop("of", f"buffer_load_dword v{vd}, v{vP}, s[{sOU}:{sOU+3}], s{sU} offen sc1"))
        else: k(vop("of", gload(f"s{sU}", vP, vd)))
        k("s_mov_b64 exec, -1")
    def probe_check(mask, vd):
        k(f"s_mov_b64 exec, {hx(mask)}")
        if smode[0]: k(f"v_cmp_eq_u32 vcc, -1, v{vd}")
        else: gcheck(vd)
        k("s_mov_b64 exec, -1")
    def probe(mask, slp):
        l = k.lab("pb"); d = k.lab("pbd")
        k.label(l)
        probe_load(mask, vQ, 0)
        k("s_waitcnt vmcnt(0)")
        probe_check(mask, vQ)
        k(f"s_cbranch_vccz {d}\ns_sleep {slp}")
        again(l)
        k.label(d)
    k("s_setprio 3")
    if sent:
        k(f"v_lshlrev_b32 v{vP}, 10, v{vL}\ns_add_u32 s{sU}, s{sAo}, {20*1024+1020}")
        probe((1 << 27) - 1, 1)
        gsync()
        k(f"v_mul_u32_u24 v{vP}, 2560, v{vL}\ns_add_u32 s{sU}, s{sAo}, 2556")
    else:
        k(f"s_lshr_b32 s{sU}, s{sTT}, 1\ns_lshl_b32 s{sU}, s{sU}, 11\ns_add_u32 s{sU}, s{sU}, {FL_U}")
        probe(0x3fff, 2)
        sp('upr')
        gsync()
        if so:
            k(f"v_mul_u32_u24 v{vP}, 2560, v{vL}\ns_add_u32 s{sU}, s{sAo}, 2556")
            smode[0] = True
        else:
            k(f"s_lshl_b32 s{sU}, s{sT64}, 10\ns_add_u32 s{sU}, s{sU}, {FL_O}")
    sp('upoll')
    k(f"s_setprio {oprio}")
    ul = aloads(range(20, 40), range(20))
    for e in ul[:8]: e()
    side = deal(ul[8:], 0, 2)
    side.update(deal(aloads(range(40, 47), range(7)), 8, 4))
    side.update(deal(wpieces(39, L_W + 5120, 40, "b2"), 10, 2))
    def oflag():
        probe_load(0xff, vQ + 2, 1)
    side[16] = [oflag]
    compute([(1 + i, 20 + i, i) for i in range(19)], side, {7: arrive, 9: peek, 10: check})
    sp('o4')
    k(f"s_waitcnt vmcnt(0)")
    gsync()
    late = k.lab("olate"); join = k.lab("ojoin")
    probe_check(0xff, vQ + 2)
    k(f"s_cbranch_vccnz {late}")
    seq3 = [(1 + i, 39 + i, ([19] + list(range(7)))[i]) for i in range(8)]
    oregs = list(range(7, 19)) + [19] + list(range(7))
    save = list(vm)
    em = wpieces(12, L_W + 9 * 5120, 40, "b3") + aloads(range(12), oregs[:12])
    compute(seq3, deal(em, 0, 3))
    k.label(join)
    sp('c3')
    lds_wait(L_F + F_OC, vQ, vQ + 1, 1)
    k("s_setprio 3")
    ld[:] = []
    seq4 = [(("T", i), i, oregs[i]) for i in range(12)] + [(9 + i, 12 + i, oregs[12 + i]) for i in range(8)]
    def b3_arrive():
        k(f"s_waitcnt vmcnt({newer({'b3'})})"); arrive()
    compute(seq4, deal(aloads(range(12, 20), oregs[12:]), 0, 2), {6: b3_arrive, 8: peek, 9: check})
    vm_fast = None
    sp('odone')
    k.srd(sXo, P_OUT, SZ_Q)
    k(f"s_mov_b32 s{sT}, 0xffff0000")
    t = wb[0]
    for u in range(5):
        for hh in range(2):
            k(f"v_lshlrev_b32 v{t+4*u+2*hh}, 16, v{xr+2*u+hh}\nv_and_b32 v{t+4*u+2*hh+1}, s{sT}, v{xr+2*u+hh}")
    for i in range(20):
        k(f"v_add_f32 v{t+i}, v{t+i}, v{oacc+i}")
    for u in range(5):
        k(f"v_cvt_pk_bf16_f32 v{xr+2*u}, v{t+4*u}, v{t+4*u+1}\nv_cvt_pk_bf16_f32 v{xr+2*u+1}, v{t+4*u+2}, v{t+4*u+3}")
    for u in range(5):
        k(f"buffer_store_dwordx2 {v(xr+2*u,2)}, v{vXo}, s[{sXo}:{sXo+3}], s{sXof} offen offset:{32*u} {oc}")
    ne = k.lab("ne")
    k(f"s_or_b32 s{sT}, s2, s{sW}\ns_cbranch_scc1 {ne}\ns_mov_b32 s{sT}, {hx(FL_E)}")
    gset(f"s{sT}", vP, vQ)
    k.label(ne)
    k.endpgm(P_WS, 3)
    k.label(late)
    vm[:] = save; ld[:] = []
    compute(seq3, deal(wpieces(12, L_W + 9 * 5120, 40, "b3"), 0, 2))
    probe(0xff, 1)
    for e in aloads(range(12), oregs[:12]): e()
    k(f"s_branch {join}")
    for sl, ok, st, r in cold3:
        a0 = af + 4*r
        k.label(sl)
        k("s_sleep 1")
        aloads([st], [r])[0]()
        k(f"s_waitcnt vmcnt(0)\nv_max3_u32 v{vQ+1}, v{a0}, v{a0+1}, v{a0+2}\nv_max_u32 v{vQ+1}, v{vQ+1}, v{a0+3}\nv_cmp_eq_u32 vcc, -1, v{vQ+1}\ns_cbranch_vccz {ok}")
        again(sl)
        k(f"s_branch {ok}")
    for sl, ok in cold2:
        k.label(sl)
        spinw(vXa, f"s{sCnt}")
        k(f"s_branch {ok}")
    for sl, need, ok in cold:
        k.label(sl)
        spinw(vFa, need)
        k(f"s_branch {ok}")
    k.label(end)
    k("s_endpgm")
    return k
```

```python
from common import *
import os

CH = 8 * KV_TILE
NSLOT = 3
ATT_LDS = NSLOT * CH
MARGIN = 100.0
TRIG = 2.0**12

def emit_attn(k, sT64, sHG, sW, vL, P_WS, sS, vb, lds_base, flag_base, slot=4, mega=None, budget=None, gset=None, tb=False, tail=None, yph=1, bal=0):
    GT = KV_G
    sKV, sQ = sS, sS + 4
    sT, sC, sSo, sM0, sDelta, sRet, sMask, sSlot = sS + 8, sS + 11, sS + 12, sS + 13, sS + 14, sS + 15, sS + 16, sS + 17
    sEx = sS + 18
    a = Alloc(vb)
    Sx = [a(16, 4), a(16, 4)]
    O = [a(16, 4), a(16, 4)]
    P = [a(8, 4), a(8, 4)]
    KA = a(4, 4); V0 = a(4, 4); V1 = a(4, 4)
    KB = a(2, 2)
    vKa, vKb, vVa, vD, vN, vH = [a() for _ in range(6)]
    assert a.n <= 104, a.n
    a = Alloc(112)
    QA = [a(4, 4), a(4, 4)]; QB = [a(2, 2), a(2, 2)]
    vM = [a(), a()]
    vFa, vFw, vFl = a(), a(), a()
    vT = a(6, 2)
    assert a.n <= 168
    G = lds_base + 2 * CH
    if STAMP: k("s_mov_b32 s88, 0")
    k.srd(sKV, P_WS, 64 * GT, WS_KV)
    k(f"""v_and_b32 v{vN}, 31, v{vL}
    v_lshrrev_b32 v{vH}, 5, v{vL}
    v_lshlrev_b32 v{vD}, 4, v{vL}
    s_mul_i32 s{sM0}, s{sW}, {KV_TILE}
    s_add_u32 s{sM0}, s{sM0}, {lds_base}
    s_mul_i32 s{sSo}, s{sW}, {GT}
    s_mov_b32 s{sMask}, 0xffff0000""")
    def dma(slot):
        k(f"s_add_u32 m0, s{sM0}, {slot}\ns_nop 0")
        for o in (0, 1024, KV_TILE - 1024):
            k(f"buffer_load_dwordx4 v{vD}, s[{sKV}:{sKV+3}], s{sSo} offen offset:{o} sc1 lds")
        k(f"s_add_u32 s{sSo}, s{sSo}, {8*GT}")
    def first_tile():
        dma(0)
        k(f"s_sub_u32 s{sSo}, s{sSo}, {8*GT}")
    mega(first_tile)
    k.stamp(2)
    k(f"s_add_u32 s{sSo}, s{sSo}, {8*GT}")
    dma(CH)
    def lane_addrs(base):
        k(f"""v_add_u32 v{vKa}, {base}, v{vD}
        v_lshlrev_b32 v{vKb}, 2, v{vL}
        v_add_u32 v{vKb}, {base}, v{vKb}
        v_min_u32 v{vVa}, 20, v{vN}
        v_lshlrev_b32 v{vVa}, 4, v{vVa}
        v_mul_u32_u24 v{vT}, 336, v{vH}
        v_add_u32 v{vVa}, v{vVa}, v{vT}
        v_add_u32 v{vVa}, {base}, v{vVa}""")
    k(f"s_lshr_b32 s{sT+2}, s{sW}, 2\ns_mul_i32 s{sT}, s{sT+2}, {KV_TILE}\ns_add_u32 s{sT}, s{sT}, {lds_base}")
    lane_addrs(f"s{sT}")
    k(f"""v_mov_b32 v{KB+1}, 0x3f803f80
    v_mov_b32 v{QB[0]+1}, 0
    v_mov_b32 v{QB[1]+1}, 0
    v_and_b32 v{vFa}, 7, v{vL}
    v_lshlrev_b32 v{vFa}, 2, v{vFa}
    v_add_u32 v{vFa}, {flag_base}, v{vFa}
    s_lshl_b32 s{sT}, s{sW}, 2
    s_add_u32 s{sT}, s{sT}, {flag_base}
    v_mov_b32 v{vFw}, s{sT}""")
    for r in range(P[1], P[1] + 8):
        k(f"v_mov_b32 v{r}, 0")
    k(f"v_mov_b32 v{V1+1}, 0x3f803f80")

    def publish(val):
        k(f"v_mov_b32 v{vFl}, {val}\nds_write_b32 v{vFw}, v{vFl}")
    def spin(val, va=None):
        l = k.lab("spin"); d = k.lab("spun")
        k.label(l)
        k(f"ds_read_b32 v{vFl}, v{va or vFa}\ns_waitcnt lgkmcnt(0)\nv_cmp_gt_u32 vcc, {val}, v{vFl}\ns_cbranch_vccz {d}\ns_sleep 1")
        k(f"s_sub_u32 s{budget}, s{budget}, 1\ns_cbranch_scc0 {l}")
        k.label(d)
    def set_m(x):
        k(f"""v_sub_f32 v{vT}, 0, v{vM[x]}
        v_and_b32 v{vT+1}, s{sMask}, v{vT}
        v_sub_f32 v{vT}, v{vT}, v{vT+1}
        v_and_b32 v{vT+2}, s{sMask}, v{vT}
        v_sub_f32 v{vT}, v{vT}, v{vT+2}
        v_lshrrev_b32 v{vT+1}, 16, v{vT+1}
        v_or_b32 v{vT+1}, v{vT+1}, v{vT+2}
        v_cmp_eq_u32 vcc, 0, v{vH}
        v_lshrrev_b32 v{vT}, 16, v{vT}
        s_nop 0
        v_cndmask_b32 v{QB[x]+1}, v{vT}, v{vT+1}, vcc
        s_nop 1""")
    def qk(x):
        S = Sx[x]
        return [f"v_mfma_f32_32x32x16_bf16 {v(S,16)}, {v(KA,4)}, {v(QA[x],4)}, 0",
                f"v_mfma_f32_32x32x8_bf16 {v(S,16)}, {v(KB,2)}, {v(QB[x],2)}, {v(S,16)}"]
    def pv(x):
        return [f"v_mfma_f32_32x32x16_bf16 {v(O[x],16)}, {v(V0,4)}, {v(P[x],4)}, {v(O[x],16)}",
                f"v_mfma_f32_32x32x16_bf16 {v(O[x],16)}, {v(V1,4)}, {v(P[x]+4,4)}, {v(O[x],16)}"]
    rdK = lambda j: [f"ds_read_b128 {v(KA,4)}, v{vKa} offset:{2*KV_TILE*j}", f"ds_read_b32 v{KB}, v{vKb} offset:{2*KV_TILE*j+KV_KB}"]
    rdV = lambda j: [f"ds_read_b128 {v(V0,4)}, v{vVa} offset:{2*KV_TILE*j+KV_V}", f"ds_read_b128 {v(V1,4)}, v{vVa} offset:{2*KV_TILE*j+KV_V+672}"]
    def maxtree(x, first, S=None):
        S = Sx[x] if S is None else S
        if first:
            k(f"v_max3_f32 v{vM[x]}, v{S}, v{S+1}, v{S+2}\nv_max_f32 v{vM[x]}, v{vM[x]}, v{S+3}")
        for i in range(4 if first else 0, 16, 2):
            k(f"v_max3_f32 v{vM[x]}, v{vM[x]}, v{S+i}, v{S+i+1}")
    def finish_max(margin):
        k(f"v_mov_b32 v{vT}, v{vM[0]}\nv_mov_b32 v{vT+1}, v{vM[1]}\ns_nop 0")
        for x in range(2): k(f"v_permlane32_swap_b32 v{vM[x]}, v{vT+x}")
        for x in range(2):
            k(f"v_max_f32 v{vM[x]}, v{vM[x]}, v{vT+x}\nv_ceil_f32 v{vM[x]}, v{vM[x]}")
            if margin: k(f"v_add_f32 v{vM[x]}, {fl(margin)}, v{vM[x]}")
        set_m(0); set_m(1)

    k(f"""s_and_b32 s{sT}, s{sW}, 1
    s_mul_i32 s{sT}, s{sT}, {32*192}
    s_and_b32 s{sT+1}, s{sW}, 2
    s_add_u32 s{sRet}, s{sT+1}, s{sT+2}
    s_mul_i32 s{sT+1}, s{sRet}, 40
    s_add_u32 s{sT}, s{sT}, {G}
    v_mul_u32_u24 v{vT}, 192, v{vN}
    v_add_u32 v{vT}, s{sT}, v{vT}
    v_lshl_add_u32 v{vT+1}, v{vH}, 4, v{vT}
    v_lshl_add_u32 v{vT+2}, v{vH}, 2, v{vT}
    s_xor_b32 s{sT}, s{sRet}, 1
    s_mul_i32 s{sT}, s{sT}, 40
    v_add_u32 v{vT+3}, s{sT}, v{vT+1}
    v_add_u32 v{vT+4}, s{sT}, v{vT+2}
    v_add_u32 v{vT+1}, s{sT+1}, v{vT+1}
    v_add_u32 v{vT+2}, s{sT+1}, v{vT+2}
    s_waitcnt vmcnt(3)""")
    publish(1)
    spin(1)
    for x in range(2):
        k(f"ds_read_b64 {v(QA[x],2)}, v{vT+1+2*x}\nds_read_b64 {v(QA[x]+2,2)}, v{vT+1+2*x} offset:8\nds_read_b32 v{QB[x]}, v{vT+2+2*x} offset:32")
    k.stamp(1)
    kb = [(V0, V1), (KA, KB)]
    sb = [O, Sx]
    order = (3, 2, 1, 0)
    def rdk(n): k(f"ds_read_b128 {v(kb[n%2][0],4)}, v{vKa} offset:{2*KV_TILE*order[n]}\nds_read_b32 v{kb[n%2][1]}, v{vKb} offset:{2*KV_TILE*order[n]+KV_KB}")
    rdk(0); rdk(1)
    for n in range(5):
        mf = []
        if n < 4:
            k(f"s_waitcnt lgkmcnt({2 if n < 3 else 0})")
            for x in range(2):
                D = sb[n % 2][x]
                mf += [f"v_mfma_f32_32x32x16_bf16 {v(D,16)}, {v(kb[n%2][0],4)}, {v(QA[x],4)}, 0",
                       f"v_mfma_f32_32x32x8_bf16 {v(D,16)}, {v(kb[n%2][1],2)}, {v(QB[x],2)}, {v(D,16)}"]
            for y in mf: k(y)
            if n < 2: rdk(n + 2)
        else:
            for r in list(range(O[0], O[0] + 32)) + list(range(V0, V0 + 8)):
                k(f"v_mov_b32 v{r}, 0")
        if n > 0:
            if n == 1 or n == 2 or n == 3: k("s_nop 5")
            maxtree(0, n == 1, sb[(n - 1) % 2][0]); maxtree(1, n == 1, sb[(n - 1) % 2][1])
    finish_max(MARGIN)
    for x in qk(0): k(x)
    k(f"s_mov_b32 s{sC}, 0\ns_mov_b32 s{sSlot}, 0\ns_nop 7\ns_nop 1")
    if os.environ.get("EXP"):
        for i in range(16): k(f"v_mov_b32 v{144+i}, {fl(-220.0)}")
    loop = k.lab("aloop")
    ent = {2: 0, 6: 0, 3: 1, 7: 1}
    rl = {i: k.lab(f"rin{i}") for i in ent}
    rb = {i: k.lab(f"rback{i}") for i in ent}
    k.align(6)
    k.label(loop)
    if STAMP and os.environ.get("ACH"):
        for si, cc in zip((2, 1), os.environ["ACH"].split(",")):
            l = k.lab("ach")
            k(f"s_cmp_lg_u32 s{sC}, {cc}\ns_cbranch_scc1 {l}")
            k.stamp(si)
            k.label(l)
        k.align(3)
    xs = k.lab("xs"); xd = k.lab("xd")
    for i in range(8):
        x, j = i % 2, i // 2
        S, Pc = Sx[x], P[x]
        if i in ent:
            k(f"s_cbranch_vccnz {rl[i]}" if not os.environ.get("EXP") else "s_nop 0")
            k.label(rb[i])
        if i == 6:
            k(f"v_cmp_gt_u32 vcc, s{sT}, v{vFl}\ns_cbranch_vccnz {xs}")
            k.label(xd)
            nod = k.lab("nod")
            k(f"s_cmp_ge_u32 s{sC}, 6\ns_cbranch_scc1 {nod}")
            dma(f"s{sT+1}")
            k.label(nod)
            k(f"v_add_u32 v{vKa}, s{sDelta}, v{vKa}\nv_add_u32 v{vKb}, s{sDelta}, v{vKb}")
        e = [f"v_exp_f32 v{S+n}, v{S+n}" for n in range(16)]
        c = [f"v_cvt_pk_bf16_f32 v{Pc+n}, v{S+2*n}, v{S+2*n+1}" for n in range(8)]
        m = qk(1 - x) + pv(1 - x)
        R = [[r] for r in rdK((j + 1) % 4) + rdV(j)] if x == 0 else [[], [], [], []]
        if i == 5: R[0] = [f"ds_read_b32 v{vFl}, v{vFa}"]
        seq = (["s_waitcnt lgkmcnt(2)"] if x else []) + [e[0], m[0]] + R[0] + e[1:5] + [c[0]]
        seq += [m[1]] + R[1] + e[5:7] + [c[1], c[2]]
        if i + 1 in ent:
            seq += [f"v_cmp_lt_f32 vcc, {fl(TRIG)}, v{O[1-x]+12}"]
        seq += [e[7], e[8]] + (["s_waitcnt lgkmcnt(0)"] if x else [])
        seq += [m[2]] + R[2] + e[9:11] + [c[3]] + e[11:13] + [c[4]]
        seq += [m[3]] + R[3] + [e[13], c[5]] + e[14:16] + [c[6], c[7]]
        EXP = os.environ.get("EXP", "")
        if "nopv" in EXP: seq = [y for y in seq if y not in (m[2], m[3])]
        if "hpv" in EXP: seq = [y for y in seq if y != m[3]]
        if "noqb" in EXP: seq = [(y if y != m[0] else y[:-1] + "v[144:159]") for y in seq if y != m[1]]
        if "nocvt" in EXP: seq = [y for y in seq if "cvt_pk" not in y]
        if "hexp" in EXP: seq = [y for n_, y in enumerate(seq) if not ("v_exp" in y and n_ % 2)]
        for y in seq: k(y)
        if i == yph:
            assert i % 2 == 1
            k(f"s_add_u32 s{sT}, s{sC}, 2\ns_waitcnt vmcnt(0)")
            publish(f"s{sT}")
            k(f"""s_mov_b32 s{sDelta}, {CH}
            s_cmp_eq_u32 s{sSlot}, {2*CH}
            s_cmov_b32 s{sDelta}, {hx(-2*CH)}
            s_sub_u32 s{sT+1}, s{sSlot}, {CH}
            s_cmp_eq_u32 s{sSlot}, 0
            s_cmov_b32 s{sT+1}, {2*CH}""")
    k(f"""v_add_u32 v{vVa}, s{sDelta}, v{vVa}
    s_add_u32 s{sSlot}, s{sSlot}, s{sDelta}
    s_add_u32 s{sC}, s{sC}, 1
    s_cmp_lt_u32 s{sC}, 8
    s_cbranch_scc1 {loop}""")
    k.stamp(3)
    if bal: k(f's_setprio {bal}')
    for y in pv(1): k(y)
    fin = k.lab("afin"); slow = k.lab("slow")
    def area(dst, w):
        k(f"s_mul_i32 s{dst}, s{w}, 3584\ns_add_u32 s{sDelta}, s{dst}, {G + 10240 - 5*3584}\ns_add_u32 s{dst}, s{dst}, {lds_base}\ns_cmp_ge_u32 s{w}, 5\ns_cselect_b32 s{dst}, s{sDelta}, s{dst}")
    area(sT, sW)
    k(f"s_xor_b32 s{sT+2}, s{sW}, 4")
    area(sT + 1, sT + 2)
    for x in range(2):
        k(f"v_maximum3_f32 v{vT+x}, |v{O[x]}|, |v{O[x]+1}|, |v{O[x]+2}|\nv_maximum3_f32 v{vT+x}, |v{O[x]+3}|, v{vT+x}, v{vT+x}")
        for i in range(4, 12, 2):
            k(f"v_maximum3_f32 v{vT+x}, |v{O[x]+i}|, |v{O[x]+i+1}|, v{vT+x}")
    k(f"""v_min_f32 v{vT+2}, v{vT}, v{vT+1}
    v_maximum3_f32 v{vT}, v{vT}, v{vT+1}, v{O[0]+12}
    v_cmp_gt_f32 vcc, {fl(2.0**-110)}, v{vT+2}
    v_maximum3_f32 v{vT}, v{vT}, v{vT}, v{O[1]+12}
    s_cbranch_vccnz {slow}
    v_cmp_ngt_f32 vcc, {fl(2.0**120)}, v{vT}
    s_cbranch_vccnz {slow}""")
    if os.environ.get("EXP"): k.L = [l for l in k.L if not (l.strip().startswith("s_cbranch_vccnz") and l.strip().endswith(slow))]
    k.label(fin)
    k(f"""v_add_u32 v{vT}, s{sT}, v{vD}
    v_mov_b32 v{O[1]+13}, v{vM[1]}
    v_lshlrev_b32 v{vT+2}, 3, v{vL}
    v_add_u32 v{vT+1}, s{sT}, v{vT+2}
    ds_write_b128 v{vT}, {v(O[1],4)}
    ds_write_b128 v{vT}, {v(O[1]+4,4)} offset:1024
    ds_write_b128 v{vT}, {v(O[1]+8,4)} offset:2048
    ds_write_b64 v{vT+1}, {v(O[1]+12,2)} offset:3072
    v_xor_b32 v{vT+3}, 16, v{vFw}
    v_add_u32 v{vT}, s{sT+1}, v{vD}
    v_add_u32 v{vT+1}, s{sT+1}, v{vT+2}
    s_waitcnt lgkmcnt(0)""")
    if os.environ.get('AT'): k.stamp(2)
    publish(10)
    k.srd(sQ, P_WS, SZ_OUF, WS_OUF)
    spin(10, vT + 3)
    X = Sx[0]
    k(f"""ds_read_b64 {v(X+12,2)}, v{vT+1} offset:3072
    ds_read_b128 {v(X,4)}, v{vT}
    ds_read_b128 {v(X+4,4)}, v{vT} offset:1024
    ds_read_b128 {v(X+8,4)}, v{vT} offset:2048""")
    k(f"""s_lshr_b32 s{sT}, s{sW}, 2
    s_and_b32 s{sT+1}, s{sW}, 2
    s_add_u32 s{sT}, s{sT}, s{sT+1}
    s_mul_i32 s{sT}, s{sT}, 5
    v_add_u32 v{vT}, s{sT}, v{vH}
    v_lshrrev_b32 v{vT+1}, 1, v{vT}
    v_and_b32 v{vT}, 1, v{vT}
    v_lshlrev_b32 v{vT}, 3, v{vT}
    v_lshl_add_u32 v{vT}, v{vT+1}, 8, v{vT}
    v_and_b32 v{vT+1}, 15, v{vN}
    v_lshl_add_u32 v{vT}, v{vT+1}, 4, v{vT}
    v_lshrrev_b32 v{vT+1}, 4, v{vN}
    v_mul_u32_u24 v{vT+1}, 2560, v{vT+1}
    s_and_b32 s{sT}, s{sW}, 1
    s_mul_i32 s{sT}, s{sT}, 5120
    s_add_u32 s{sT}, s{sT}, {G}
    v_add3_u32 v{vT}, v{vT}, v{vT+1}, s{sT}
    s_waitcnt lgkmcnt(3)
    v_max_f32 v{vT+1}, v{vM[0]}, v{X+13}
    v_sub_f32 v{vT+2}, v{vM[0]}, v{vT+1}
    v_sub_f32 v{vT+3}, v{X+13}, v{vT+1}
    v_cvt_i32_f32 v{vT+2}, v{vT+2}
    v_cvt_i32_f32 v{vT+3}, v{vT+3}
    v_ldexp_f32 v{O[0]+12}, v{O[0]+12}, v{vT+2}
    v_ldexp_f32 v{X+12}, v{X+12}, v{vT+3}
    v_add_f32 v{vT+4}, v{O[0]+12}, v{X+12}
    v_rcp_f32 v{vT+4}, v{vT+4}""")
    for i in range(12): k(f"v_ldexp_f32 v{O[0]+i}, v{O[0]+i}, v{vT+2}")
    k("s_waitcnt lgkmcnt(0)")
    for i in range(12): k(f"v_ldexp_f32 v{X+i}, v{X+i}, v{vT+3}")
    for i in range(12): k(f"v_add_f32 v{X+i}, v{X+i}, v{O[0]+i}")
    for i in range(12): k(f"v_mul_f32 v{X+i}, v{X+i}, v{vT+4}")
    for i in range(6): k(f"v_cvt_pk_bf16_f32 v{P[0]+i}, v{X+2*i}, v{X+2*i+1}")
    last = k.lab("last")
    k(f"""ds_write_b64 v{vT}, {v(P[0],2)}
    ds_write_b64 v{vT}, {v(P[0]+2,2)} offset:256
    s_mov_b32 exec_hi, 0
    ds_write_b64 v{vT}, {v(P[0]+4,2)} offset:512
    s_mov_b64 exec, 1
    v_mov_b32 v{vT+2}, {flag_base+48}
    v_mov_b32 v{vT+3}, 1
    s_waitcnt lgkmcnt(0)
    ds_add_rtn_u32 v{vT+3}, v{vT+2}, v{vT+3}
    s_waitcnt lgkmcnt(0)
    v_readfirstlane_b32 s{sT}, v{vT+3}
    s_mov_b64 exec, -1
    s_cmp_eq_u32 s{sT}, 7
    s_cbranch_scc1 {last}""")
    k.endpgm(P_WS, slot)
    k.label(last)
    if os.environ.get('AT'): k.stamp(1)
    tail(0)
    k(f"v_add_u32 v{vT}, {G}, v{vD}")
    for i in range(12):
        k(f"ds_read_b128 {v(Sx[0]+4*i,4)}, v{vT} offset:{2560*(i//3) + (0, 1024, 1536)[i%3]}")
    k(f"s_mul_i32 s{sT}, s{sT64}, {4*47*1024}\ns_mul_i32 s{sT+1}, s{sHG}, 2560\ns_add_u32 s{sT}, s{sT}, s{sT+1}")
    for i in range(12):
        k(f"s_waitcnt lgkmcnt({11-i})")
        k(f"buffer_store_dwordx4 {v(Sx[0]+4*i,4)}, v{vD}, s[{sQ}:{sQ+3}], s{sT} offen offset:{(0, 1024, 1536)[i%3]} sc1")
        if i % 3 == 2: k(f"s_add_u32 s{sT}, s{sT}, {47*1024}")
    k(f"s_lshl_b32 s{sT}, s{sT64}, 3\ns_add_u32 s{sT}, s{sT}, s{sHG}\ns_lshl_b32 s{sT}, s{sT}, 7\ns_add_u32 s{sT}, s{sT}, {FL_O}")
    tail(1)
    if gset: gset(f"s{sT}", vT + 4, vT + 2)
    if os.environ.get('AT'): k.stamp(3)
    tail(2)
    k.endpgm(P_WS, slot)
    k.label(xs)
    spin(f"s{sT}")
    k(f"s_branch {xd}")
    for x in range(2):
        rare = k.lab("rare")
        ph = [i for i in ent if ent[i] == x]
        k.label(rl[ph[0]])
        k(f"s_mov_b32 s{sRet}, 0\ns_branch {rare}")
        k.label(rl[ph[1]])
        k(f"s_mov_b32 s{sRet}, 1")
        k.label(rare)
        if STAMP: k("s_add_u32 s88, s88, 1")
        k("s_nop 7\ns_nop 3")
        k(f"""v_frexp_exp_i32_f32 v{vT+3}, v{O[x]+12}
        v_add_u32 v{vT+3}, {int(MARGIN)}, v{vT+3}
        v_max_i32 v{vT+3}, 0, v{vT+3}
        v_cvt_f32_i32 v{vT+4}, v{vT+3}
        v_add_f32 v{vT+5}, v{vM[x]}, v{vT+4}
        v_sub_f32 v{vT+4}, v{vT+5}, v{vM[x]}
        v_mov_b32 v{vM[x]}, v{vT+5}
        v_cvt_i32_f32 v{vT+3}, v{vT+4}
        v_sub_u32 v{vT+3}, 0, v{vT+3}""")
        for i in range(16): k(f"v_ldexp_f32 v{O[x]+i}, v{O[x]+i}, v{vT+3}")
        for i in range(16): k(f"v_sub_f32 v{Sx[x]+i}, v{Sx[x]+i}, v{vT+4}")
        set_m(x)
        k(f"s_cmp_eq_u32 s{sRet}, 0\ns_cbranch_scc1 {rb[ph[0]]}\ns_branch {rb[ph[1]]}")
    k.label(slow)
    p1 = k.lab("p1"); p2 = k.lab("p2")
    lane_addrs("0")
    k(f"""v_mov_b32 v{QB[0]+1}, 0
    v_mov_b32 v{QB[1]+1}, 0
    v_mov_b32 v{vM[0]}, 0xff7fffff
    v_mov_b32 v{vM[1]}, 0xff7fffff
    s_lshr_b32 s{sC}, s{sW}, 2
    s_mul_i32 s{sC}, s{sC}, {GT}
    s_mov_b32 s{sSo}, s{sC}""")
    def gK():
        k(f"buffer_load_dwordx4 {v(KA,4)}, v{vKa}, s[{sKV}:{sKV+3}], s{sSo} offen offset:{KV_KA} sc1")
        k(f"buffer_load_dword v{KB}, v{vKb}, s[{sKV}:{sKV+3}], s{sSo} offen offset:{KV_KB} sc1")
    nxt = lambda l: k(f"s_add_u32 s{sSo}, s{sSo}, {2*GT}\ns_cmp_lt_u32 s{sSo}, {64*GT}\ns_cbranch_scc1 {l}")
    k.label(p1)
    gK()
    k("s_waitcnt vmcnt(0)")
    for y in qk(0) + qk(1): k(y)
    k("s_nop 7\ns_nop 3")
    maxtree(0, False); maxtree(1, False)
    nxt(p1)
    finish_max(0)
    for i in range(32): k(f"v_mov_b32 v{O[0]+i}, 0")
    k(f"s_mov_b32 s{sSo}, s{sC}")
    k.label(p2)
    gK()
    k(f"buffer_load_dwordx4 {v(V0,4)}, v{vVa}, s[{sKV}:{sKV+3}], s{sSo} offen offset:{KV_V} sc1")
    k(f"buffer_load_dwordx4 {v(V1,4)}, v{vVa}, s[{sKV}:{sKV+3}], s{sSo} offen offset:{KV_V+672} sc1")
    k("s_waitcnt vmcnt(0)")
    for y in qk(0) + qk(1): k(y)
    k("s_nop 7\ns_nop 3")
    for n in range(32): k(f"v_exp_f32 v{Sx[0]+n}, v{Sx[0]+n}")
    k("s_nop 0")
    for n in range(16): k(f"v_cvt_pk_bf16_f32 v{P[0]+n}, v{Sx[0]+2*n}, v{Sx[0]+2*n+1}")
    k("s_nop 1")
    for y in pv(0) + pv(1): k(y)
    nxt(p2)
    k(f"s_nop 7\ns_nop 3\ns_branch {fin}")
    return 104
```

```python
from common import *
import os, math
from k2parts import emit_repack
import attn2, attn3
from attn2 import ATT_LDS, CH

MX = os.environ.get('MX', '')
SP = os.environ.get('SP', 'p1,p2,p3,p4').split(',')
QSCALE = math.log2(math.e) / math.sqrt(20.0)
GC0 = -2.0 * math.sqrt(2.0 / math.pi) * math.log2(math.e)
GC1 = GC0 * 0.044715

L_A = ATT_LDS
L_Z = L_A + 3 * 16384
L_W = L_A - 4096
L_CS = L_Z + 6 * 8192
L_F = L_CS + 2048
F_G, F_OC, F_XC, F_GO, F_XR, F_AUX = 32, 48, 52, 56, 60, 64
MEGA_LDS = L_F + 128
F_QS, F_STS, F_KVS, F_CS = 2 * CH, 2 * CH + 12288, 2 * CH + 12800, 2 * CH + 18176
F_B, F_S = ATT_LDS // 3, 20480
NAME = "parallel_sum__grouped_kv_mqa__mixer_gmlp__prompt_kernel"

def gen_mega(noatt=False, patz='33033303', pats='33333333', lprio=0, seam=True, oprio=0, pf='gis', ntx='', ntw='', repw='g', cpf=True, pslp=1, deep=False, tb=False, wfat=6, rprio=3, yph=3, thr=None, bal=3, ldot=True, xst=4, frot=0, orot=False, tsplit=12, prot=None, sent=False, oc='', lq=4, lk=5, xstk=4, bal33=True, noex=True, spe=True, two=True, ev=(0, 0, 0, 0, 27, 28), zpf=0, kvq=True, so=False, pkv=0, gr=23, m42=1, wt=0, us=2, xl=False, o2=True):
    k = Kern(NAME, 256, 768, MEGA_LDS, 168, sgprs=100)
    P_X, P_WQ, P_WK, P_WV, P_WO = 44, 46, 48, 50, 52
    P_WIN, P_WSP, P_BSP, P_WOUT, P_OUT, P_DBG, P_WS = 56, 58, 60, 62, 64, 66, 68
    sWid, sTok, sBlk, sTB, sFG, sBud = 3, 4, 5, 6, 7, 70
    sT64, sHG = 98, 99
    sNo = 96
    sFl = 72
    vL = 1
    end = k.lab("end"); gem = k.lab("gem")
    k(f"s_cmp_ge_u32 s2, 256\ns_cbranch_scc1 {end}")
    k.stamp(0); k.stamp_rt(5)
    k(f"s_load_dwordx8 s[{P_X}:{P_X+7}], s[0:1], {KA_X}\ns_load_dwordx2 s[{P_WO}:{P_WO+1}], s[0:1], {KA_WO}")
    k(f"s_load_dwordx8 s[{P_WIN}:{P_WIN+7}], s[0:1], {KA_WIN}\ns_load_dwordx4 s[{P_OUT}:{P_OUT+3}], s[0:1], {KA_OUT}\ns_load_dwordx2 s[{P_WS}:{P_WS+1}], s[0:1], {KA_WS}")
    k(f"""v_lshrrev_b32 v2, 6, v0
    v_and_b32 v1, 63, v0
    v_readfirstlane_b32 s{sWid}, v2
    v_and_b32 v2, 31, v0
    v_lshlrev_b32 v2, 2, v2
    v_add_u32 v2, {L_F}, v2
    v_mov_b32 v3, 0
    ds_write_b32 v2, v3
    v_and_b32 v2, 3, v0
    v_lshlrev_b32 v2, 8, v2
    v_add_u32 v2, {L_CS}, v2
    ds_write_b32 v2, v3
    s_and_b32 s{sTB}, s2, 7
    s_lshl_b32 s{sBlk}, s{sTB}, 5
    s_lshr_b32 s{sTok}, s2, 3
    s_add_u32 s{sBlk}, s{sBlk}, s{sTok}
    s_lshl_b32 s{sTok}, s{sBlk}, 3
    s_add_u32 s{sTok}, s{sTok}, s{sWid}
    s_lshl_b32 s{sTB}, s{sTB}, 1
    s_bfe_u32 s{sFG}, s2, 0x10003
    s_add_u32 s{sTB}, s{sTB}, s{sFG}
    s_lshr_b32 s{sFG}, s2, 4
    s_and_b32 s{sT64}, s2, 7
    s_lshl_b32 s{sT64}, s{sT64}, 2
    s_bfe_u32 s{sHG}, s2, 0x20003
    s_add_u32 s{sT64}, s{sT64}, s{sHG}
    s_lshr_b32 s{sHG}, s2, 5
    s_mov_b32 s{sBud}, 400000
    s_waitcnt lgkmcnt(0)""")
    if m42:
        k(f"""s_bfe_u32 s{sTB}, s2, 0x20001
        s_lshl_b32 s{sTB}, s{sTB}, 2
        s_bfe_u32 s{sFG}, s2, 0x20003
        s_add_u32 s{sTB}, s{sTB}, s{sFG}
        s_and_b32 s{sFG}, s2, 1
        s_mul_i32 s{sFG}, s{sFG}, 7
        s_add_u32 s{sFG}, s{sFG}, s{sHG}""")
    k.srd(sFl, P_WS, SZ_FLAG, WS_FLAG)
    k(f"s_load_dwordx2 s[{sNo}:{sNo+1}], s[{sFl}:{sFl+1}], {hx(FL_E)}")
    k(f"s_cmp_ge_u32 s{sWid}, 8\ns_cbranch_scc1 {gem}")

    def again(l):
        k(f"s_sub_u32 s{sBud}, s{sBud}, 1\ns_cbranch_scc0 {l}")
    def lds_wait(addr, va, vd, slp=1):
        val = {F_XR: 8, F_GO: 4, F_OC: 10, F_XC: 1}[addr - L_F]
        l = k.lab("lw"); d = k.lab("lwd")
        k(f"v_mov_b32 v{va}, {addr}")
        k.label(l)
        k(f"ds_read_b32 v{vd}, v{va}\ns_waitcnt lgkmcnt(0)\nv_cmp_gt_u32 vcc, {val}, v{vd}\ns_cbranch_vccz {d}\ns_sleep {slp}")
        again(l)
        k.label(d)
    def lds_set(addr, va, vd):
        k(f"v_mov_b32 v{va}, {addr}\nv_mov_b32 v{vd}, 1\nds_write_b32 v{va}, v{vd}")
    def gcheck(vd):
        k(f"v_cmp_ne_u64 vcc, s[{sNo}:{sNo+1}], {v(vd,2)}")
    def gload(soff, voff, vd):
        return f"buffer_load_dwordx2 {v(vd,2)}, v{voff}, s[{sFl}:{sFl+3}], {soff} offen sc1"
    def gpoll(soff, voff, vd, mask, slp):
        l = k.lab("pl"); d = k.lab("pd")
        if mask is not None: k(f"s_mov_b64 exec, {hx(mask)}")
        k.label(l)
        k(gload(soff, voff, vd))
        k("s_waitcnt vmcnt(0)")
        gcheck(vd)
        k(f"s_cbranch_vccz {d}\ns_sleep {slp}")
        again(l)
        k.label(d)
        if mask is not None: k("s_mov_b64 exec, -1")
    def gset(soff, va, vd):
        k(f"""v_mov_b32 v{vd}, s{sNo}
        v_mov_b32 v{vd+1}, s{sNo+1}
        v_lshlrev_b32 v{va}, 3, v{vL}
        s_mov_b64 exec, 0xffff
        buffer_store_dwordx2 {v(vd,2)}, v{va}, s[{sFl}:{sFl+3}], {soff} offen sc1
        s_mov_b64 exec, -1""")
    def spoll(offs, s0, slp=1):
        l = k.lab("sp"); r = k.lab("spr"); d = k.lab("spd")
        k.label(l)
        for i, (so, im) in enumerate(offs):
            k(f"s_load_dwordx2 s[{s0+2*i}:{s0+2*i+1}], s[{sFl}:{sFl+1}], s{so} offset:{hx(im)} glc")
        k("s_waitcnt lgkmcnt(0)")
        for i in range(len(offs)):
            k(f"s_cmp_eq_u64 s[{s0+2*i}:{s0+2*i+1}], s[{sNo}:{sNo+1}]")
            k(f"s_cbranch_scc0 {r}" if i + 1 < len(offs) else f"s_cbranch_scc1 {d}")
        k.label(r)
        k(f"s_sleep {slp}")
        again(l)
        k.label(d)
    def nonce():
        k(f"s_waitcnt lgkmcnt(0)\ns_add_u32 s{sNo}, s{sNo}, 1")

    sX, sO, sT, sMask = 8, 12, 16, 24
    raw, f, st, vA = 4, 12, 28, 30
    nz = k.lab("nz")
    skipA = k.lab("skipA"); skipG = k.lab("skipG")
    if "skip" in MX and "gonly" in MX:
        k("s_barrier"); k.endpgm(P_WS, 4)
    if "skip" in MX: k(f"s_barrier\ns_mov_b32 s27, 1\ns_branch {skipA}")
    k.srd(sX, P_X, SZ_Q)
    k(f"s_mul_i32 s{sT}, s{sTok}, 1280\nv_lshlrev_b32 v{vA}, 4, v{vL}\ns_mov_b32 s{sMask}, 0xffff0000")
    for i in range(4, 8):
        k(f"v_mov_b32 v{raw+i}, 0")
    k(f"buffer_load_dwordx4 {v(raw,4)}, v{vA}, s[{sX}:{sX+3}], s{sT} offen {ntx}")
    k("s_mov_b64 exec, 0xffff")
    k(f"buffer_load_dwordx4 {v(raw+4,4)}, v{vA}, s[{sX}:{sX+3}], s{sT} offen offset:1024 {ntx}")
    k("s_mov_b64 exec, -1")
    def touch(idx, nq):
        k(f"s_mul_i32 s{sT+2}, s{idx}, {nq*128}\ns_lshl_b32 s{sT+3}, s{idx}, 7\ns_mov_b64 exec, {hx((1 << nq) - 1)}")
        k(f"buffer_load_dword v{vA+2}, v{vA+1}, s[28:31], s{sT+2} offen\ns_mov_b64 exec, 1")
        k(f"buffer_load_dword v{vA+2}, v{vA+1}, s[32:35], s{sT+3} offen")
        k(f"buffer_load_dword v{vA+2}, v{vA+1}, s[36:39], s{sT+3} offen\ns_mov_b64 exec, -1")
    k(f"v_lshlrev_b32 v{vA+1}, 7, v{vL}\ns_and_b32 s{sT+1}, s{sTok}, 255")
    k.srd(28, P_WQ, 640*1280); k.srd(32, P_WK, 25600); k.srd(36, P_WV, 25600)
    if 'g' in pf and kvq:
        k(f"s_lshl_b32 s{sT+1}, s2, 3\ns_add_u32 s{sT+1}, s{sT+1}, s{sWid}")
        touch(sT + 1, 4)
    elif 'g' in pf: touch(sTok, 4)
    elif 'x' in pf: touch(sT + 1, 25)
    k.srd(sO, P_WS, SZ_XN, WS_XN)
    nonce()
    sXt = 20
    def xn_compute(kvg=False):
        if 'g' in pf and 'x' in pf:
            k("s_waitcnt vmcnt(0)")
            if not kvg:
                k(f"s_and_b32 s{sXt}, s{sTok}, 255\ns_mul_i32 s{sXt+1}, s{sXt}, {29*128}\ns_mov_b64 exec, {hx((1 << 29) - 1)}")
                k(f"buffer_load_dword v{vA+2}, v{vA+1}, s[28:31], s{sXt+1} offen\ns_mov_b64 exec, -1")
            if 'b' in pf: k("s_barrier")
        else:
            k("s_waitcnt vmcnt(3)" if ('x' in pf or 'g' in pf) else "s_waitcnt vmcnt(0)")
        for i in range(8):
            k(f"v_lshlrev_b32 v{f+2*i}, 16, v{raw+i}\nv_and_b32 v{f+2*i+1}, s{sMask}, v{raw+i}")
        k(f"v_add_f32 v{st}, v{f}, v{f+1}\nv_mul_f32 v{st+1}, v{f}, v{f}")
        for i in range(1, 16):
            if i > 1: k(f"v_add_f32 v{st}, v{st}, v{f+i}")
            k(f"v_fmac_f32 v{st+1}, v{f+i}, v{f+i}")
        for m in ("row_shr:1", "row_shr:2", "row_shr:4", "row_shr:8"):
            k("s_nop 0")
            for i in range(2):
                k(f"v_add_f32_dpp v{st+i}, v{st+i}, v{st+i} {m} row_mask:0xf bank_mask:0xf bound_ctrl:0")
        for m in ("row_bcast:15 row_mask:0xa", "row_bcast:31 row_mask:0xc"):
            k("s_nop 0")
            for i in range(2):
                k(f"v_add_f32_dpp v{st+i}, v{st+i}, v{st+i} {m} bank_mask:0xf")
        k(f"""v_mul_f32 v{st}, {fl(1.0/640)}, v{st}
        v_mul_f32 v{st+1}, {fl(1.0/640)}, v{st+1}
        v_fma_f32 v{st+1}, -v{st}, v{st}, v{st+1}
        v_max_f32 v{st+1}, 0, v{st+1}
        v_add_f32 v{st+1}, {fl(1e-5)}, v{st+1}
        v_rsq_f32 v{st+1}, v{st+1}
        s_mul_i32 s{sXt+2}, s{sTok}, {XN_ST}
        v_mul_f32 v{st}, v{st}, v{st+1}
        s_nop 0
        v_readlane_b32 s{sXt}, v{st+1}, 63
        v_readlane_b32 s{sXt+1}, v{st}, 63
        s_nop 1
        v_mov_b32 v{st}, s{sXt+1}""")
        for i in range(16):
            k(f"v_fma_f32 v{f+i}, v{f+i}, s{sXt}, -v{st}")
        for i in range(8):
            k(f"v_cvt_pk_bf16_f32 v{raw+i}, v{f+2*i}, v{f+2*i+1}")
        k(f"buffer_store_dwordx4 {v(raw,4)}, v{vA}, s[{sO}:{sO+3}], s{sXt+2} offen sc1")
        k("s_mov_b64 exec, 0xffff")
        k(f"buffer_store_dwordx4 {v(raw+4,4)}, v{vA}, s[{sO}:{sO+3}], s{sXt+2} offen offset:1024 sc1")
        if 'i' in pf and kvq and not kvg:
            k.srd(sO, P_WIN, 640*3456)
            k(f"s_lshl_b32 s{sXt}, s2, 3\ns_add_u32 s{sXt}, s{sXt}, s{sWid}\ns_mul_i32 s{sXt}, s{sXt}, {10*128}\ns_mov_b64 exec, 0x3ff")
            k(f"buffer_load_dword v{vA+2}, v{vA+1}, s[{sO}:{sO+3}], s{sXt} offen")
        elif 'i' in pf and not kvq:
            k.srd(sO, P_WIN, 640*3456)
            k(f"s_mul_i32 s{sXt}, s{sTok}, {9*128}\ns_mov_b64 exec, 0x1ff")
            k(f"buffer_load_dword v{vA+2}, v{vA+1}, s[{sO}:{sO+3}], s{sXt} offen")
        k("s_mov_b64 exec, -1")
    a = Alloc(36)
    fa = a(16, 4); fc = a(4, 4); fsx = a(4, 4)
    fX = [a(16, 4), a(16, 4)]; fW = [a(16, 4), a(16, 4)]
    fXa = a(4, 1); fWa = a()
    fN, fH = a(), a()
    fO = a(2, 2); fT = a(12, 4); fK = a(2, 2); fKa = a()
    assert a.n <= 168, a.n
    sI, sD, sKd, sB0 = 25, 26, 27, 28
    QS, STS, KVS = F_QS, F_STS, F_KVS
    k(f"""v_and_b32 v{fN}, 31, v{vL}
    v_lshrrev_b32 v{fH}, 5, v{vL}
    v_mov_b32 v{fO}, 0x3f803f80
    v_mov_b32 v{fO+1}, 0x3f803f80
    s_mov_b32 s{sKd}, 0
    s_lshl_b32 s{sT}, s{sWid}, 7
    v_lshl_add_u32 v{fKa}, v{vL}, 10, s{sT}""")
    def f_addr(rowb, woff):
        k(f"""v_bfe_u32 v{fT}, v{fN}, 1, 3
        v_xor_b32 v{fT}, v{fT}, v{fH}
        s_and_b32 s{sT}, s{sWid}, 1
        s_lshl_b32 s{sT}, s{sT}, 12
        s_add_u32 s{sT}, s{sT}, {F_B}
        v_lshl_add_u32 v{fT+1}, v{fN}, 7, s{sT}""")
        for q in range(4):
            k(f"v_xor_b32 v{fT+2}, {2*q}, v{fT}\nv_lshl_add_u32 v{fXa+q}, v{fT+2}, 4, v{fT+1}")
        k(f"""v_bfe_u32 v{fT}, v{vL}, 2, 2
        v_lshl_add_u32 v{fT}, v{fH}, 3, v{fT}
        v_mul_u32_u24 v{fT}, {rowb}, v{fT}
        v_bfe_u32 v{fT+1}, v{vL}, 4, 1
        v_lshl_add_u32 v{fT}, v{fT+1}, 5, v{fT}
        v_and_b32 v{fT+1}, 3, v{vL}
        v_lshl_add_u32 v{fT}, v{fT+1}, 3, v{fT}
        s_add_u32 s{sT}, {woff}, {F_B+8192}
        v_add_u32 v{fWa}, s{sT}, v{fT}""")
        if rowb == 192:
            k(f"s_and_b32 s{sT}, s{sHG}, 1\ns_lshl_b32 s{sT}, s{sT}, 5\nv_add_u32 v{fWa}, s{sT}, v{fWa}")
        for r in list(range(fa, fa + 16)) + list(range(fc, fc + 4)) + list(range(fsx, fsx + 4)):
            k(f"v_mov_b32 v{r}, 0")
    def f_pass(kind, rowb, first):
        uo = (0, 64, 128) if rowb == 192 else (0, 4096)
        xs_ = xst if rowb == 192 else xstk
        cf = lambda b: fX[0] + 32 * b
        def rd(b):
            r = []
            if kind == 'i': return r
            if kind == 'x':
                for u, o in enumerate(uo):
                    for q in range(2):
                        d = cf(b) + 8*u + 4*q
                        r.append(f"ds_read_b64_tr_b16 {v(d,2)}, v{fWa} offset:{o+16*rowb*q}")
                        r.append(f"ds_read_b64_tr_b16 {v(d+2,2)}, v{fWa} offset:{o+16*rowb*q+4*rowb}")
                return r
            for q in range(4):
                r.append(f"ds_read_b128 {v(fX[b]+4*q,4)}, v{fXa+q}")
                r.append(f"ds_read_b64_tr_b16 {v(fW[b]+4*q,2)}, v{fWa} offset:{16*rowb*q}")
                r.append(f"ds_read_b64_tr_b16 {v(fW[b]+4*q+2,2)}, v{fWa} offset:{16*rowb*q+4*rowb}")
            return r
        def adv():
            if kind == 'i': return
            k(f"s_mov_b32 s{sD}, {F_S}\ns_cmp_eq_u32 s{sI}, 5\ns_cmov_b32 s{sD}, {hx(-5*F_S)}")
            if kind != 'x':
                for q in range(4): k(f"v_add_u32 v{fXa+q}, s{sD}, v{fXa+q}")
            k(f"v_add_u32 v{fWa}, s{sD}, v{fWa}")
        def work(b, r):
            w = []
            if kind in 'ns':
                for q in range(4):
                    X, W = fX[b] + 4*q, fW[b] + 4*q
                    A_, B_ = (X, W) if kind == 's' else (W, X)
                    w.append(f"v_mfma_f32_32x32x16_bf16 {v(fa,16)}, {v(A_,4)}, {v(B_,4)}, {v(fa,16)}")
                for x in interleave(w[:3], r) + w[3:]: k(x)
            elif kind == 'x':
                for x in r: k(x)
                for j in range(4):
                    for u in range(len(uo)):
                        k(f"v_mfma_f32_4x4x4_16b_bf16 {v(fa+4*u,4)}, {v(fO,2)}, {v(cf(b)+8*u+2*j,2)}, {v(fa+4*u,4)}")
                    if len(uo) == 2: k("s_nop 0")
        loop = k.lab("fl"); nb = k.lab("fnb"); e1 = k.lab("fe1"); e2 = k.lab("fe2"); e3 = k.lab("fe3")
        n = len(rd(0))
        k(f"s_mov_b32 s{sI}, 0\ns_barrier")
        for x in rd(0): k(x)
        k.label(loop)
        adv()
        if first:
            k(f"s_cmp_lg_u32 s{sI}, {xs_}\ns_cbranch_scc1 {e1}\ns_waitcnt vmcnt({1 if ('i' in pf and not (kvq and rowb == 40)) else 0})")
            k.label(e1)
        k("s_waitcnt lgkmcnt(0)\ns_barrier")
        work(0, rd(1))
        if first and kind == 'x':
            k(f"s_cmp_lg_u32 s{sI}, {xs_}\ns_cbranch_scc1 {e2}\ns_cmp_lg_u32 s{sWid}, 7\ns_cbranch_scc1 {e2}\ns_lshl_b32 s{sT}, s{sBlk}, 7")
            gset(f"s{sT}", fT + 4, fT + 6)
            k.label(e2)
        k(f"s_add_u32 s{sI}, s{sI}, 1")
        adv()
        k(f"s_cmp_eq_u32 s{sI}, 9\ns_waitcnt lgkmcnt(0)\ns_cbranch_scc1 {nb}\ns_barrier")
        k.label(nb)
        work(1, rd(0))
        if rowb == 192:
            k(f"s_cmp_lg_u32 s{sI}, 7\ns_cbranch_scc1 {e3}\ns_mov_b32 s{sT}, {FL_Q}\ns_mov_b64 exec, 0xff")
            k(gload(f"s{sT}", fKa, fK))
            k("s_mov_b64 exec, -1")
            k.label(e3)
        k(f"s_add_u32 s{sI}, s{sI}, 1\ns_cmp_lt_u32 s{sI}, 10\ns_cbranch_scc1 {loop}")
        k("s_waitcnt lgkmcnt(0)")
    def kv_try():
        e = k.lab("kt")
        k("s_waitcnt vmcnt(0)\ns_mov_b64 exec, 0xff")
        gcheck(fK)
        k(f"s_mov_b64 exec, -1\ns_cbranch_vccnz {e}\ns_mov_b32 s{sKd}, 1")
        kv_first()
        k.label(e)
    def kv_first():
        k.srd(sB0, P_WS, SZ_KVG, WS_KV)
        k(f"""s_mul_i32 s{sT}, s{sWid}, {KV_G}
        s_mul_i32 m0, s{sWid}, {KV_TILE}
        v_lshlrev_b32 v{fT+8}, 4, v{vL}
        buffer_load_dwordx4 v{fT+8}, s[{sB0}:{sB0+3}], s{sT} offen sc1 lds
        buffer_load_dwordx4 v{fT+8}, s[{sB0}:{sB0+3}], s{sT} offen offset:1024 sc1 lds
        buffer_load_dwordx4 v{fT+8}, s[{sB0}:{sB0+3}], s{sT} offen offset:{KV_TILE-1024} sc1 lds""")
    def f_stats(nu):
        k(f"""s_and_b32 s{sT}, s{sWid}, 1
        s_lshl_b32 s{sT}, s{sT}, 2
        s_add_u32 s{sT}, s{sT}, {F_CS}
        v_lshlrev_b32 v{fT}, 4, v{fN}
        v_lshl_add_u32 v{fT}, v{fH}, 3, v{fT}
        v_add_u32 v{fT}, s{sT}, v{fT}""")
        for u in range(nu): k(f"ds_write_b32 v{fT}, v{fa+4*u} offset:{512*u}")
        k("s_waitcnt lgkmcnt(0)")
    def f_fold(swap):
        k(f"""s_lshr_b32 s{sT}, s{sWid}, 1
        s_lshl_b32 s{sT}, s{sT}, 9
        s_add_u32 s{sT}, s{sT}, {F_CS}
        v_lshlrev_b32 v{fT}, 4, v{fN}
        v_lshl_add_u32 v{fT}, v{fH}, 3, v{fT}
        v_add_u32 v{fT}, s{sT}, v{fT}
        ds_read_b64 {v(fc,2)}, v{fT}
        s_and_b32 s{sT}, s{sWid}, 1
        s_lshl_b32 s{sT}, s{sT}, 7
        s_add_u32 s{sT}, s{sT}, {STS}
        v_lshl_add_u32 v{fT}, v{fN}, 2, s{sT}
        ds_read_b32 v{fT+4}, v{fT}
        ds_read_b32 v{fT+5}, v{fT} offset:256
        s_waitcnt lgkmcnt(2)
        v_add_f32 v{fc+2}, v{fc}, v{fc+1}
        v_and_b32 v{fc+3}, s{sMask}, v{fc+2}
        v_sub_f32 v{fc+2}, v{fc+2}, v{fc+3}
        v_cvt_pk_bf16_f32 v{fc}, v{fc+3}, v{fc+3}
        v_cvt_pk_bf16_f32 v{fc+1}, v{fc+2}, 0
        s_waitcnt lgkmcnt(0)
        v_and_b32 v{fT+2}, s{sMask}, v{fT+4}
        v_sub_f32 v{fT+3}, v{fT+4}, v{fT+2}
        v_cvt_pk_bf16_f32 v{fT+6}, -v{fT+2}, -v{fT+3}
        v_cvt_pk_bf16_f32 v{fT+7}, -v{fT+2}, 0
        s_nop 1""")
        A_, B_ = (fT + 6, fc) if swap else (fc, fT + 6)
        k(f"v_mfma_f32_32x32x8_bf16 {v(fa,16)}, {v(A_,2)}, {v(B_,2)}, {v(fa,16)}")
    qp = k.lab("qp"); kx = k.lab("kx"); ki = k.lab("ki"); kvv = k.lab("kvv"); kj = k.lab("kj"); q1 = k.lab("q1"); q1x = k.lab("q1x"); qe = k.lab("qe"); qj = k.lab("qj"); q2x = k.lab("q2x")
    pk = fX[0]
    k(f"s_cmp_lg_u32 s{sHG}, 7\ns_cbranch_scc1 {q1}")
    k(f"""s_lshr_b32 s{sT+1}, s{sWid}, 1
    s_lshl_b32 s{sT+1}, s{sT+1}, 12
    s_and_b32 s{sT+3}, s{sWid}, 1
    s_mul_i32 s{sT+2}, s{sT+3}, {32*40}
    s_cmp_ge_u32 s{sWid}, 6
    s_cselect_b32 s{sT+1}, s{sT+2}, s{sT+1}
    s_mul_i32 s{sT+3}, s{sT+3}, {KV_G}
    s_add_u32 s{sT+3}, s{sT+3}, {KVS}""")
    f_addr(40, f"s{sT+1}")
    xn_compute(True)
    k(f"s_cmp_ge_u32 s{sWid}, 6\ns_cbranch_scc1 {kx}\ns_cmp_ge_u32 s{sWid}, 4\ns_cbranch_scc1 {ki}\ns_cmp_ge_u32 s{sWid}, 2\ns_cbranch_scc1 {kvv}")
    f_pass('n', 40, True)
    k("s_barrier")
    f_fold(False)
    k(f"v_lshl_add_u32 v{fT}, v{vL}, 4, s{sT+3}\nv_lshl_add_u32 v{fT+1}, v{fN}, 2, s{sT+3}\ns_nop 7\ns_nop 1")
    for i in range(12): k(f"v_mul_f32 v{fa+i}, v{fT+5}, v{fa+i}")
    for i in range(6): k(f"v_cvt_pk_bf16_f32 v{pk+i}, v{fa+2*i}, v{fa+2*i+1}")
    k(f"""v_permlane32_swap_b32 v{pk}, v{pk+2}
    v_permlane32_swap_b32 v{pk+1}, v{pk+3}
    ds_write_b128 v{fT}, {v(pk,4)} offset:{KV_KA}
    s_mov_b32 exec_hi, 0
    ds_write_b32 v{fT+1}, v{pk+4} offset:{KV_KB}
    ds_write_b32 v{fT+1}, v{pk+5} offset:{KV_KB+128}
    s_mov_b64 exec, -1
    s_branch {kj}""")
    k.label(kvv)
    f_pass('s', 40, True)
    k("s_barrier")
    f_fold(True)
    k(f"v_lshl_add_u32 v{fT}, v{fH}, 4, s{sT}")
    for j in range(4): k(f"ds_read_b128 {v(fW[0]+4*j,4)}, v{fT} offset:{256+32*j}")
    k(f"""v_mul_u32_u24 v{fT+1}, 336, v{fH}
    v_lshl_add_u32 v{fT+1}, v{fN}, 4, v{fT+1}
    v_add_u32 v{fT+1}, s{sT+3}, v{fT+1}
    v_cmp_eq_u32 vcc, 20, v{fN}
    s_nop 3
    s_waitcnt lgkmcnt(0)""")
    for i in range(16): k(f"v_mul_f32 v{fa+i}, v{fW[0]+i}, v{fa+i}")
    for i in range(8): k(f"v_cvt_pk_bf16_f32 v{pk+i}, v{fa+2*i}, v{fa+2*i+1}")
    for i in range(8): k(f"v_cndmask_b32 v{pk+i}, v{pk+i}, v{fO}, vcc")
    k(f"""s_mov_b32 exec_lo, 0x1fffff
    s_mov_b32 exec_hi, 0x1fffff
    ds_write_b128 v{fT+1}, {v(pk,4)} offset:{KV_V}
    ds_write_b128 v{fT+1}, {v(pk+4,4)} offset:{KV_V+672}
    s_mov_b64 exec, -1
    s_branch {kj}""")
    k.label(ki)
    f_pass('i', 40, True)
    k(f"s_barrier\ns_branch {kj}")
    k.label(kx)
    f_pass('x', 40, True)
    f_stats(2)
    k("s_barrier\ns_barrier")
    k.srd(sB0, P_WS, SZ_KVG, WS_KV)
    k(f"v_lshlrev_b32 v{fT+1}, 4, v{vL}\nv_add_u32 v{fT}, s{sT+3}, v{fT+1}")
    for i in range(3): k(f"ds_read_b128 {v(pk+4*i,4)}, v{fT} offset:{1024*i}")
    k(f"""s_lshl_b32 s{sT}, s{sT64}, 1
    s_and_b32 s{sT+1}, s{sWid}, 1
    s_add_u32 s{sT}, s{sT}, s{sT+1}
    s_mul_i32 s{sT+1}, s{sT}, {KV_G}
    s_waitcnt lgkmcnt(0)
    buffer_store_dwordx4 {v(pk,4)}, v{fT+1}, s[{sB0}:{sB0+3}], s{sT+1} offen sc1
    buffer_store_dwordx4 {v(pk+4,4)}, v{fT+1}, s[{sB0}:{sB0+3}], s{sT+1} offen offset:1024 sc1
    s_mov_b32 exec_hi, 0xff
    buffer_store_dwordx4 {v(pk+8,4)}, v{fT+1}, s[{sB0}:{sB0+3}], s{sT+1} offen offset:2048 sc1
    s_mov_b64 exec, -1
    s_lshl_b32 s{sT}, s{sT}, 7
    s_add_u32 s{sT}, s{sT}, {FL_Q}
    s_waitcnt vmcnt(0)""")
    gset(f"s{sT}", fT + 4, fT + 6)
    k("s_barrier")
    k(f"s_and_b32 s{sT+1}, s{sWid}, 1\ns_mul_i32 s{sT+1}, s{sT+1}, {32*192}")
    f_addr(192, f"s{sT+1}")
    f_pass('x', 192, False)
    k(f"s_branch {q2x}")
    k.label(kj)
    k("s_waitcnt lgkmcnt(0)\ns_barrier\ns_barrier")
    k(f"s_lshr_b32 s{sT+1}, s{sWid}, 1\ns_lshl_b32 s{sT+1}, s{sT+1}, 6")
    f_addr(192, f"s{sT+1}")
    f_pass('n', 192, False)
    k(f"s_branch {qe}")
    k.label(q1)
    k(f"""s_lshr_b32 s{sT+1}, s{sWid}, 1
    s_lshl_b32 s{sT+1}, s{sT+1}, 6
    s_and_b32 s{sT+2}, s{sWid}, 1
    s_mul_i32 s{sT+2}, s{sT+2}, {32*192}
    s_cmp_ge_u32 s{sWid}, 6
    s_cselect_b32 s{sT+1}, s{sT+2}, s{sT+1}""")
    f_addr(192, f"s{sT+1}")
    xn_compute()
    k(f"s_cmp_ge_u32 s{sWid}, 6\ns_cbranch_scc1 {q1x}")
    f_pass('n', 192, True)
    k.label(qe)
    k("s_barrier")
    f_fold(False)
    kv_try()
    k(f"""v_mul_f32 v{fT+5}, {fl(QSCALE)}, v{fT+5}
    s_and_b32 s{sT}, s{sWid}, 1
    s_mul_i32 s{sT}, s{sT}, {32*192}
    s_lshr_b32 s{sT+1}, s{sWid}, 1
    s_lshl_b32 s{sT+1}, s{sT+1}, 6
    s_add_u32 s{sT}, s{sT}, s{sT+1}
    s_add_u32 s{sT}, s{sT}, {QS}
    v_mul_u32_u24 v{fT}, 192, v{fN}
    v_lshl_add_u32 v{fT}, v{fH}, 3, v{fT}
    v_add_u32 v{fT}, s{sT}, v{fT}
    s_nop 1""")
    for i in range(16): k(f"v_mul_f32 v{fa+i}, v{fT+5}, v{fa+i}")
    for i in range(8): k(f"v_cvt_pk_bf16_f32 v{pk+i}, v{fa+2*i}, v{fa+2*i+1}")
    for j in range(4): k(f"ds_write_b64 v{fT}, {v(pk+2*j,2)} offset:{16*j}")
    k(f"s_waitcnt lgkmcnt(0)\ns_branch {qj}")
    k.label(q1x)
    f_pass('x', 192, True)
    k.label(q2x)
    f_stats(3)
    k("s_barrier")
    kv_try()
    k.label(qj)
    k.label(skipA)
    k(f"s_mov_b32 s40, s{sKd}\nv_mov_b32 v104, v{fKa}")
    def att_wait(step):
        t = 104
        d = k.lab("kvd")
        k(f"s_cmp_lg_u32 s40, 0\ns_cbranch_scc1 {d}\ns_mov_b32 s41, {FL_Q}")
        gpoll("s41", t, t + 2, 0xff, pslp)
        step()
        k.label(d)
    def att_tail(step):
        t = 104
        def pieces(p0, p1):
            for p in range(p0, p1):
                if p % 4 == 0:
                    k(f"s_mov_b32 m0, {1024*p}")
                    k("s_add_u32 s40, s40, 4096" if p else "s_nop 0")
                k(f"buffer_load_dwordx4 v{t}, s[28:31], s40 offen offset:{1024*(p%4)} sc1 lds")
        if step == 0:
            k(f"v_and_b32 v{t}, 31, v{vL}\nv_lshlrev_b32 v{t}, 7, v{t}\ns_mov_b32 s40, {FL_W}")
            k(gload("s40", t, t + 2))
            if so: lds_wait(L_F + F_XC, t + 4, t + 5, 2)
        elif "skip" in MX:
            pass
        elif step == 1:
            ok = k.lab("wfok")
            k("s_waitcnt vmcnt(12)")
            gcheck(t + 2)
            k(f"s_cbranch_vccz {ok}")
            gpoll("s40", t, t + 2, None, 4)
            k.label(ok)
            k.srd(28, P_WS, SZ_WF, WS_WF)
            k(f"s_lshr_b32 s40, s2, 5\ns_mul_i32 s40, s40, {47*5120}\nv_lshlrev_b32 v{t}, 4, v{vL}")
            pieces(0, tsplit)
            if not so: k(f"s_waitcnt vmcnt({tsplit})")
        else:
            pieces(tsplit, 60)
            k(f"v_mov_b32 v{t}, {L_F+F_OC}\nv_mov_b32 v{t+1}, 10\ns_waitcnt vmcnt(0)\nds_write_b32 v{t}, v{t+1}")
    n = (attn3 if two else attn2).emit_attn(k, sT64, sHG, sWid, vL, P_WS, 8, 4, 0, L_F, mega=att_wait, budget=sBud, gset=(None if so else gset), tb=tb, tail=att_tail, yph=yph, bal=bal)
    assert n <= 104, n

    k.label(gem)
    def sp(name):
        if name in SP: k.stamp(1 + SP.index(name))
    sA, sB, sO = 8, 12, 16
    sW, sCnt, sSoA, sBaseA, sSoB, sStepB, sM0A, sM0B, sMask, sNeed, sI = range(20, 31)
    sT = 32
    sTb, sM0F, sSoF = 40, 31, 71
    a = Alloc(2)
    vFw, vFa, vFl, vXw, vXa = a(), a(), a(), a(), a()
    vOne = a()
    acc = [a(16, 4), a(16, 4)]
    fs = [[[a(4, 4) for j in range(3)] for q in range(2)] for b in range(2)]
    z1 = a(16, 4); z2 = a(16, 4)
    vD = a(4, 1); vDb = a(2, 1)
    vWa = a(2, 1); vZa = a(4, 1)
    vBias = a(2, 2); vBias1 = vBias + 1
    vN, vH, vTok, vPg, vZf = a(), a(), a(), a(), a()
    vOnes = a(2, 2)
    vT = a(16, 4)
    assert a.n <= 168, a.n
    tmp = fs[1][0][0]
    sp('ka')
    k("s_setprio 3")
    k(f"""s_sub_u32 s{sW}, s{sWid}, 8
    v_lshrrev_b32 v{vT}, 3, v{vL}
    v_and_b32 v{vT+1}, 7, v{vL}
    s_lshl_b32 s{sT}, s{sTB}, 2
    s_add_u32 s{sT}, s{sT}, s{sW}
    s_mul_i32 s{sBaseA}, s{sT}, {32*1280}
    s_lshl_b32 s{sM0A}, s{sW}, 12
    s_add_u32 s{sM0A}, s{sM0A}, {L_A}
    s_lshl_b32 s{sM0B}, s{sW}, 11
    s_add_u32 s{sM0B}, s{sM0B}, {L_Z}""")
    def a_addr(stride):
        k(f"v_lshrrev_b32 v{vT}, 3, v{vL}\nv_and_b32 v{vT+1}, 7, v{vL}")
        for p in range(4):
            k(f"""v_add_u32 v{vT+2}, {8*p}, v{vT}
            v_bfe_u32 v{vT+3}, v{vT+2}, 1, 3
            v_xor_b32 v{vT+3}, v{vT+3}, v{vT+1}
            v_mul_u32_u24 v{vT+2}, {stride}, v{vT+2}
            v_lshl_add_u32 v{vD+p}, v{vT+3}, 4, v{vT+2}""")
            if p:
                k(f"v_subrev_u32 v{vD+p}, {1024*p}, v{vD+p}")
    def b_addr(stride):
        k(f"""v_lshrrev_b32 v{vT}, 3, v{vL}
        v_and_b32 v{vT+1}, 7, v{vL}
        v_bfe_u32 v{vT+2}, v{vL}, 4, 1
        v_lshlrev_b32 v{vT+2}, 1, v{vT+2}
        v_xor_b32 v{vT+1}, v{vT+1}, v{vT+2}
        v_mul_u32_u24 v{vT}, {stride}, v{vT}
        v_lshl_add_u32 v{vDb}, v{vT+1}, 4, v{vT}
        v_xor_b32 v{vT+1}, 4, v{vT+1}
        v_lshl_add_u32 v{vDb+1}, v{vT+1}, 4, v{vT}
        v_add_u32 v{vDb+1}, {8*stride-1024}, v{vDb+1}""")
    def setup_rest():
        k(f"""s_lshl_b32 s{sT+1}, s{sW}, 2
        s_add_u32 s{sT+2}, s{sT+1}, {L_F+F_G}
        v_mov_b32 v{vFw}, s{sT+2}
        s_add_u32 s{sT+2}, s{sT+1}, {L_F+F_AUX}
        v_mov_b32 v{vXw}, s{sT+2}
        v_and_b32 v{vFa}, 3, v{vL}
        v_lshlrev_b32 v{vFa}, 2, v{vFa}
        v_add_u32 v{vXa}, {L_F+F_AUX}, v{vFa}
        v_lshlrev_b32 v{vFa}, 6, v{vFa}
        v_add_u32 v{vFa}, {L_CS}, v{vFa}
        v_mov_b32 v{vPg}, 0
        s_lshl_b32 s{sM0F}, s{sW}, 8
        s_lshl_b32 s{sSoF}, s2, 10
        s_add_u32 s{sSoF}, s{sSoF}, s{sM0F}
        s_add_u32 s{sM0F}, s{sM0F}, {L_CS}
        v_and_b32 v{vN}, 31, v{vL}
        v_lshrrev_b32 v{vH}, 5, v{vL}
        s_mov_b32 s{sMask}, 0xffff0000
        s_mov_b32 s{sCnt}, 0
        v_mov_b32 v{vOne}, 1
        v_mov_b32 v{vOnes}, 0x3f803f80
        v_mov_b32 v{vOnes+1}, 0x3f803f80
        s_lshl_b32 s{sT+1}, s{sTB}, 7
        s_lshl_b32 s{sT+2}, s{sW}, 5
        s_add_u32 s{sT+1}, s{sT+1}, s{sT+2}
        v_add_u32 v{vTok}, s{sT+1}, v{vN}
        v_bfe_u32 v{vT+1}, v{vL}, 1, 3
        v_lshrrev_b32 v{vT+2}, 4, v{vL}
        v_xor_b32 v{vT+1}, v{vT+1}, v{vT+2}
        v_and_b32 v{vT+2}, 15, v{vL}
        v_lshlrev_b32 v{vT+2}, 7, v{vT+2}
        v_add_u32 v{vT+2}, s{sM0A}, v{vT+2}
        v_lshl_add_u32 v{vWa}, v{vT+1}, 4, v{vT+2}
        v_xor_b32 v{vT+1}, 4, v{vT+1}
        v_lshl_add_u32 v{vWa+1}, v{vT+1}, 4, v{vT+2}""")
        k.srd(sTb, P_WS, 256*1024, WS_TAB)
        k(f"v_lshlrev_b32 v{vT+1}, 2, v{vL}")
        k(f"buffer_store_dword v{vL}, v{vT+1}, s[{sTb}:{sTb+3}], s{sSoF} offen sc1")
        nonce()
    def nat_read_addr(rowb):
        k(f"""v_bfe_u32 v{vT}, v{vL}, 2, 2
        v_lshrrev_b32 v{vT+1}, 4, v{vL}
        v_lshl_add_u32 v{vT}, v{vT+1}, 3, v{vT}
        v_lshlrev_b32 v{vT}, 7, v{vT}
        v_and_b32 v{vT+1}, 3, v{vL}
        v_lshl_add_u32 v{vT}, v{vT+1}, 3, v{vT}
        v_add_u32 v{vT}, {L_Z}, v{vT}
        v_bfe_u32 v{vT+1}, v{vL}, 3, 2""")
        for fm in range(4):
            k(f"v_xor_b32 v{vT+2}, {fm}, v{vT+1}\nv_lshl_add_u32 v{vZa+fm}, v{vT+2}, 5, v{vT}")

    def spinw(va, val):
        l = k.lab("gspin"); d = k.lab("gspun")
        k.label(l)
        k(f"ds_read_b32 v{vFl}, v{va}\ns_waitcnt lgkmcnt(0)\nv_cmp_gt_u32 vcc, {val}, v{vFl}\ns_cbranch_vccz {d}\ns_sleep 1")
        again(l)
        k.label(d)
    def gsync():
        k(f"s_add_u32 s{sCnt}, s{sCnt}, 1\nv_mov_b32 v{vFl}, s{sCnt}\nds_write_b32 v{vXw}, v{vFl}")
        spinw(vXa, f"s{sCnt}")
    def set_flag(base, col=None):
        l = k.lab("nf")
        k(f"s_cmp_lg_u32 s{sW}, 0\ns_cbranch_scc1 {l}")
        k(f"s_lshl_b32 s{sT}, s{sTB}, 11\ns_lshl_b32 s{sT+1}, s{sFG}, 7\ns_add_u32 s{sT}, s{sT}, s{sT+1}\ns_add_u32 s{sT}, s{sT}, {base}")
        gset(f"s{sT}", vT, vT + 2)
        k.label(l)

    def ring_free():
        k(f"v_mov_b32 v{vT}, {L_F+F_GO}\ns_mov_b64 exec, 1\nds_add_u32 v{vT}, v{vOne}\ns_mov_b64 exec, -1")
    def set_wflag(base, n=0):
        k(f"s_lshl_b32 s{sT}, s{sTB}, 2\ns_add_u32 s{sT}, s{sT}, s{sW}\ns_lshl_b32 s{sT}, s{sT}, 11\ns_lshl_b32 s{sT+1}, s{sFG}, 7\ns_add_u32 s{sT}, s{sT}, s{sT+1}\ns_add_u32 s{sT}, s{sT}, {base}")
        k(f"s_waitcnt vmcnt({n})")
        gset(f"s{sT}", vT, vT + 2)
    def prefetch():
        if not ('q' in pf or 'i' in pf): return
        k(f"""s_min_u32 s{sT}, s{sFG}, 14
        s_sub_u32 s{sT}, s{sT}, 10
        s_lshl_b32 s{sT+1}, s{sW}, 4
        s_add_u32 s{sT+1}, s{sT+1}, s{sTB}
        s_mul_i32 s{sT+1}, s{sT+1}, 5
        s_add_u32 s{sT+1}, s{sT+1}, s{sT}
        s_lshl_b32 s{sT+1}, s{sT+1}, 13
        v_lshlrev_b32 v{vT+8}, 7, v{vL}""")
        if 'q' in pf:
            k.srd(sO, P_WQ, 640*1280)
            k(f"buffer_load_dword v{vT+9}, v{vT+8}, s[{sO}:{sO+3}], s{sT+1} offen")
        if 'i' in pf:
            k.srd(sO, P_WIN, 640*3456)
            k(f"buffer_load_dword v{vT+10}, v{vT+8}, s[{sO}:{sO+3}], s{sT+1} offen")
    def prefetch_sp():
        if 's' not in pf: return
        att_progress(1, vT + 5, 8)
        k(f"s_and_b32 s{sT}, s2, 1" if m42 else f"s_sub_u32 s{sT}, s{sFG}, 14")
        k(f"""s_lshl_b32 s{sT}, s{sT}, 2
        s_add_u32 s{sT}, s{sT}, s{sW}
        s_lshl_b32 s{sT}, s{sT}, 16
        s_lshl_b32 s{sT+1}, s{sTB}, 19
        s_add_u32 s{sT}, s{sT}, s{sT+1}
        v_lshlrev_b32 v{vT+8}, 7, v{vL}""")
        k.srd(sO, P_WSP, 2048*4096)
        for i in range(16 if m42 == 2 else 8):
            if i == 8: k(f"s_sub_u32 s{sT}, s{sT}, 65536\ns_xor_b32 s{sT}, s{sT}, 0x40000")
            k(f"buffer_load_dword v{vT+9}, v{vT+8}, s[{sO}:{sO+3}], s{sT} offen {ntw}\ns_add_u32 s{sT}, s{sT}, 8192")
            if i % 2 == 1: k("s_waitcnt vmcnt(0)")
    def u_addr():
        k.srd(sO, P_WS, SZ_OUF, WS_OUF)
        k(f"""v_lshrrev_b32 v{vT+1}, 4, v{vTok}
        v_mul_u32_u24 v{vT+1}, {47*1024}, v{vT+1}
        v_and_b32 v{vT+2}, 15, v{vTok}
        v_lshl_add_u32 v{vT+1}, v{vT+2}, 4, v{vT+1}
        v_lshl_add_u32 v{vT+1}, v{vH}, 8, v{vT+1}
        s_lshl_b32 s{sT}, s{sFG}, 11
        s_add_u32 s{sT}, s{sT}, {20*1024}""")
    def poison(with_u):
        pz = vT + 4
        for i in range(4): k(f"v_mov_b32 v{pz+i}, -1")
        if with_u:
            l = k.lab("pu")
            u_addr()
            for i in range(4):
                if i == 2: k(f"s_cmp_eq_u32 s{sFG}, 13\ns_cbranch_scc1 {l}")
                k(f"buffer_store_dwordx4 {v(pz,4)}, v{vT+1}, s[{sO}:{sO+3}], s{sT} offen offset:{512*i} sc1")
            k.label(l)
        else:
            k.srd(sO, P_WS, SZ_OUF, WS_OUF)
        k(f"""s_lshl_b32 s{sT}, s{sT64}, 2
        s_add_u32 s{sT}, s{sT}, s{sW}
        s_mul_i32 s{sT}, s{sT}, {47*1024}
        s_mul_i32 s{sT+1}, s{sHG}, 2560
        s_add_u32 s{sT}, s{sT}, s{sT+1}
        v_lshlrev_b32 v{vT+2}, 4, v{vL}
        buffer_store_dwordx4 {v(pz,4)}, v{vT+2}, s[{sO}:{sO+3}], s{sT} offen sc1
        buffer_store_dwordx4 {v(pz,4)}, v{vT+2}, s[{sO}:{sO+3}], s{sT} offen offset:1024 sc1
        s_mov_b32 exec_hi, 0
        buffer_store_dwordx4 {v(pz,4)}, v{vT+2}, s[{sO}:{sO+3}], s{sT} offen offset:2048 sc1
        s_mov_b32 exec_hi, -1""")
    def poison_done():
        k(f"v_mov_b32 v{vT+4}, {L_F+F_XC}\nds_write_b32 v{vT+4}, v{vOne}")
    def att_progress(val, va, slp):
        l = k.lab("ac"); d = k.lab("acd")
        k(f"v_and_b32 v{va}, 7, v{vL}\nv_lshlrev_b32 v{va}, 2, v{va}\nv_add_u32 v{va}, {L_F}, v{va}")
        k.label(l)
        k(f"ds_read_b32 v{vFl}, v{va}\ns_waitcnt lgkmcnt(0)\nv_cmp_gt_u32 vcc, {val}, v{vFl}\ns_cbranch_vccz {d}\ns_sleep {slp}")
        again(l)
        k.label(d)
    vm = []
    def vop(tag, txt):
        vm.append(tag); return txt
    def newer(tags):
        idx = [i for i, t in enumerate(vm) if t in tags]
        return len(vm) - 1 - max(idx) if idx else 63
    cohA = [ntx]; cohB = [""]
    def la(g, p): return vop(("A", g), f"buffer_load_dwordx4 v{vD+p}, s[{sA}:{sA+3}], s{sSoA} offen offset:{1024*p} {cohA[0]} lds")
    def lb(g, p): return vop(("B", g), f"buffer_load_dwordx4 v{vDb+p}, s[{sB}:{sB+3}], s{sSoB} offen offset:{1024*p} {cohB[0]} lds")
    wrapA = [False]; wrapB = [False]
    def advA():
        if wrapA[0]: k(f"s_add_u32 s37, s37, 128\ns_and_b32 s37, s37, 0xfff\ns_add_u32 s{sSoA}, s38, s37")
        else: k(f"s_add_u32 s{sSoA}, s{sSoA}, 128")
    def advB():
        if wrapB[0]: k(f"s_add_u32 s39, s39, 4096\ns_and_b32 s39, s39, 0x1ffff\ns_add_u32 s{sSoB}, s54, s39")
        else: k(f"s_add_u32 s{sSoB}, s{sSoB}, s{sStepB}")
    vWe = z2
    def abuf(g):
        if deep and g in (3, 4, 5, 9):
            e = {3: 0, 4: 1, 5: 2, 9: 0}[g]
            return vWe, 16384 * e, 16384 * e - 49152
        return vWa, 16384 * (g % 3), 16384 * (g % 3)
    def issue_a(g):
        k(f"s_add_u32 m0, s{sM0A}, {hx(abuf(g)[2])}\ns_nop 0")
        for p in range(4): k(la(g, p))
        k(f"s_add_u32 s{sSoA}, s{sSoA}, 128")
    def issue_b(g):
        k(f"s_add_u32 m0, s{sM0B}, {8192*(g%6)}\ns_nop 0")
        for p in range(2): k(lb(g, p))
        advB()
    FR = lambda b, i: fs[b][0][0] + 4 * i
    def reads(ty, half, b, g):
        ba, bz = g % 3, g % 6
        r = [f"ds_read_b128 {v(FR(b,tn),4)}, v{vWa+half} offset:{16384*ba+2048*tn}" for tn in range(2)]
        for fm in range(4):
            d = FR(b, 2 + fm)
            if ty == "frag":
                r.append(f"ds_read_b128 {v(d,4)}, v{vZf} offset:{8192*bz+2048*fm+1024*half}")
            else:
                r.append(f"ds_read_b64_tr_b16 {v(d,2)}, v{vZa+fm} offset:{8192*bz+4096*half}")
                r.append(f"ds_read_b64_tr_b16 {v(d+2,2)}, v{vZa+fm} offset:{8192*bz+4096*half+512}")
        return r
    vSx, vSq, vCs = z1, z1 + 4, [z1 + 8, z1 + 12]
    prio = [3]
    pat = [patz]
    inloop = [False]
    carry = [False]
    cold = []
    cacc = [acc]
    def half(b, hf, zero, stats, kv, rd, dm, ex=()):
        fast = prio[0] == 3
        n = len(rd)
        cut = [0, n, n, n] if fast else [0, (n + 1) // 2, n, n]
        cur = [3]
        def setp(p):
            if not fast and cur[0] != p:
                k(f"s_setprio {p}"); cur[0] = p
        for j in range(4):
            if True:
                setp(int(pat[0][4*hf + j]))
                abl = MX if (inloop[0] or "all" in MX) else ""
                for tn in range(2):
                    d = cacc[0][j >> 1] + 8*tn + 4*(j & 1)
                    k(f"v_mfma_f32_16x16x32_bf16 {v(d,4)}, {v(FR(b,2+j),4)}, {v(FR(b,tn),4)}, {'0' if zero else v(d,4)}")
                if "nord" in abl: rd = ["s_nop 0"] * len(rd)
                if "nodma" in abl: dm = [[], [], [], []]
                if j < 3 and cut[j+1] > cut[j]:
                    setp(rprio)
                    for x in rd[cut[j]:cut[j+1]]: k(x)
                if ex:
                    setp(3)
                    for x in ex[len(ex)*j//4:len(ex)*(j+1)//4]: k(x)
                if dm[j]:
                    setp(prio[0])
                    for f_ in dm[j]:
                        if thr is not None and not fast: k(f"s_waitcnt vmcnt({thr})")
                        k(f_())
        setp(3)
    def lf():
        return "\n".join([f"s_mov_b32 m0, s{sM0F}", f"s_add_u32 s{sSoF}, s{sSoF}, 4",
                          vop("F", f"buffer_load_dword v{vPg}, s[{sTb}:{sTb+3}], s{sSoF} offen lds")])
    def body(g, ty, ty_next, first=False, doA=True, doB=True, loop=False, dyn=False, tailA=None, tailB=None, cout=True, ex=(), needp=0):
        cin = carry[0]
        k("s_waitcnt lgkmcnt(0)")
        dm = [[], [], [], []]
        def a3():
            k(la(g + 2, 3)); advA(); return "s_nop 0"
        if cin: dm = [[lambda: la(g + 2, 2)], [a3], [], []]
        half(0, 0, first, False, False, reads(ty, 1, 1, g) + [f"ds_read_b32 v{vFl}, v{vFa}"], dm, ex[:len(ex)//2])
        if doB or tailB: k(f"s_add_u32 m0, s{sM0B}, {8192*((g+4)%6)}")
        if tailB: k(tailB)
        n = 7 if loop else min(63, newer({("A", g + 1)}))
        ok = k.lab("gok"); sl = k.lab("gslow")
        need = f"s{sNeed}" if (loop or dyn) else str(g - 2 + needp)
        acct = "acct" in MX and loop
        if acct: k("s_waitcnt lgkmcnt(0)\ns_memtime s[36:37]\ns_waitcnt lgkmcnt(0)")
        k(f"s_waitcnt vmcnt({n}) lgkmcnt(0)")
        if acct: k("s_memtime s[38:39]\ns_waitcnt lgkmcnt(0)\ns_sub_u32 s36, s38, s36\ns_add_u32 s82, s82, s36")
        k(f"v_cmp_gt_u32 vcc, {need}, v{vFl}\ns_cbranch_vccnz {sl}")
        cold.append((sl, need, ok))
        k.label(ok)
        if acct: k("s_memtime s[36:37]\ns_waitcnt lgkmcnt(0)\ns_sub_u32 s36, s36, s38\ns_add_u32 s84, s84, s36")
        def mark():
            if doB: advB()
            if not (ev[5] < 30 and g == ev[5] - 1): k(lf())
            t = []
            if doA or tailA: t.append(f"s_add_u32 m0, s{sM0A}, {16384*(g%3)}")
            if tailA: t.append(tailA)
            return "\n".join(t) or "s_nop 0"
        dm = [[], [mark], [], []]
        if doB or tailB: dm = [[lambda: lb(g + 4, 0)], [lambda: lb(g + 4, 1), mark], [], []]
        cout = cout and doA
        if doA or tailA:
            dm[2] = [lambda: la(g + 3, 0)] + ([] if cout else [lambda: la(g + 3, 1)])
            dm[3] = [lambda: la(g + 3, 1)] if cout else [lambda: la(g + 3, 2), lambda: la(g + 3, 3)]
        half(1, 1, False, False, False, reads(ty_next, 0, 0, g + 1) if ty_next else [], dm, ex[len(ex)//2:])
        if doA and not cout: advA()
        carry[0] = cout
        if loop or dyn: k(f"s_add_u32 s{sNeed}, s{sNeed}, 1")
    def hi(): pass
    def lo(): pass
    def prologue(g0, ty):
        k(f"s_add_u32 s{sSoF}, s{sSoF}, {4*(g0-4)}")
        k(lf())
        issue_b(g0 + 1); k(lf()); issue_a(g0 + 1); issue_b(g0 + 2); issue_b(g0 + 3); k(lf()); issue_a(g0 + 2)
        k(f"s_waitcnt vmcnt({newer({('A', g0)})})")
        spinw(vFa, g0 - 3)
        for r in reads(ty, 0, 0, g0): k(r)
    def src_win(off_const):
        k.srd(sB, P_WIN, 640*3456)
        k(f"""s_mul_i32 s{sSoB}, s{sW}, {16*3456}
        s_lshl_b32 s{sT}, s{sFG}, 7
        s_add_u32 s{sSoB}, s{sSoB}, s{sT}
        s_add_u32 s{sSoB}, s{sSoB}, {off_const}
        s_mov_b32 s{sStepB}, {64*3456}""")
    def load_mr():
        lds_wait(L_F + F_XR, vT, vT + 1)
        k.srd(sO, P_WS, SZ_XN, WS_XN)
        k(f"v_mul_u32_u24 v{vT+2}, {XN_ST}, v{vTok}")
        k(vop("mr", f"buffer_load_dwordx2 {v(vT+8,2)}, v{vT+2}, s[{sO}:{sO+3}], 0 offen offset:1280 sc1"))
    def src_xn():
        k.srd(sA, P_WS, SZ_XN, WS_XN)
        k(f"s_lshl_b32 s{sBaseA}, s{sTB}, 2\ns_add_u32 s{sBaseA}, s{sBaseA}, s{sW}\ns_mul_i32 s{sBaseA}, s{sBaseA}, {32*XN_ST}\ns_mov_b32 s{sSoA}, s{sBaseA}")
    def ln_fold(kv):
        mu, r = vT + 8, vT + 9
        k(f"""s_waitcnt vmcnt({newer({'mr'})})
        v_and_b32 v{vT+2}, s{sMask}, v{mu}
        v_sub_f32 v{vT+3}, v{mu}, v{vT+2}
        v_cvt_pk_bf16_f32 v{vT}, -v{vT+2}, -v{vT+3}
        v_cvt_pk_bf16_f32 v{vT+1}, -v{vT+2}, 0""")
        for u in range(2):
            c = vCs[u]
            k(f"""v_and_b32 v{c+3}, s{sMask}, v{c+2}
            v_sub_f32 v{c+2}, v{c+2}, v{c+3}
            v_cvt_pk_bf16_f32 v{c}, v{c+3}, v{c+3}
            v_cvt_pk_bf16_f32 v{c+1}, v{c+2}, 0""")
        k("s_nop 1")
        for u in range(2):
            A_, B_ = (vT, vCs[u]) if (kv and u == 1) else (vCs[u], vT)
            k(f"v_mfma_f32_32x32x8_bf16 {v(acc[u],16)}, {v(A_,2)}, {v(B_,2)}, {v(acc[u],16)}")
    def swap4(b0):
        k(f"v_permlane32_swap_b32 v{b0}, v{b0+2}\nv_permlane32_swap_b32 v{b0+1}, v{b0+3}")
    def swap44(*bs):
        for b0 in bs: k(f"v_permlane32_swap_b32 v{b0}, v{b0+2}\nv_permlane32_swap_b32 v{b0+1}, v{b0+3}")
        for b0 in bs: k(f"v_permlane16_swap_b32 v{b0}, v{b0+2}\nv_permlane16_swap_b32 v{b0+1}, v{b0+3}")
    def gelu(u, dst, stats):
        t = acc[u]
        if pkv & 1:
            E = range(0, 16, 2)
            for i in E: k(f"v_pk_mul_f32 {v(tmp+i,2)}, {v(t+i,2)}, {v(t+i,2)}")
            for i in E: k(f"v_pk_fma_f32 {v(tmp+i,2)}, {v(tmp+i,2)}, {v(vT+12,2)}, {v(vT+12,2)} op_sel:[0,0,1] op_sel_hi:[1,0,1]")
            for i in E: k(f"v_pk_mul_f32 {v(tmp+i,2)}, {v(tmp+i,2)}, {v(t+i,2)}")
            for i in range(16): k(f"v_exp_f32 v{tmp+i}, v{tmp+i}")
            for i in E: k(f"v_pk_add_f32 {v(tmp+i,2)}, {v(tmp+i,2)}, 1.0 op_sel_hi:[1,0]")
            for i in range(16): k(f"v_rcp_f32 v{tmp+i}, v{tmp+i}")
            for i in E: k(f"v_pk_mul_f32 {v(tmp+i,2)}, {v(tmp+i,2)}, {v(t+i,2)}")
            for i in E: k(f"v_cvt_pk_bf16_f32 v{dst+i//2}, v{tmp+i}, v{tmp+i+1}")
            for i in range(8):
                c = vT + 10 if i < 4 else vT + 6
                k(f"v_dot2c_f32_bf16 v{c}, v{vOnes}, v{dst+i}\nv_dot2c_f32_bf16 v{c+1}, v{dst+i}, v{dst+i}")
            return
        for g0 in range(0, 16, 8):
            R = range(g0, g0 + 8)
            for i in R: k(f"v_mul_f32 v{tmp+i-g0}, v{t+i}, v{t+i}")
            for i in R: k(f"v_fmaak_f32 v{tmp+i-g0}, v{vT+12}, v{tmp+i-g0}, {fl(GC0)}")
            for i in R: k(f"v_mul_f32 v{tmp+i-g0}, v{tmp+i-g0}, v{t+i}")
            for i in R: k(f"v_exp_f32 v{tmp+i-g0}, v{tmp+i-g0}")
            for i in R: k(f"v_add_f32 v{tmp+i-g0}, 1.0, v{tmp+i-g0}")
            for i in R: k(f"v_rcp_f32 v{tmp+i-g0}, v{tmp+i-g0}")
            for i in R: k(f"v_mul_f32 v{tmp+i-g0}, v{tmp+i-g0}, v{t+i}")
            for i in range(0, 8, 2): k(f"v_cvt_pk_bf16_f32 v{dst+(g0+i)//2}, v{tmp+i}, v{tmp+i+1}")
            if stats:
                c = vT + 10 if g0 == 0 else vT + 6
                for i in range(8):
                    k(f"v_add_f32 v{c}, v{c}, v{tmp+i}\nv_fmac_f32 v{c+1}, v{tmp+i}, v{tmp+i}")

    rep = k.lab("rep"); b10 = k.lab("b10"); outp = k.lab("outp"); outq = k.lab("outq"); kw = k.lab("kw"); kwd = k.lab("kwd")
    vx, vw = z2, z2 + 2
    k(f"v_lshrrev_b32 v{vT}, 3, v{vL}\nv_and_b32 v{vT+1}, 7, v{vL}")
    for p in range(2):
        k(f"""v_add_u32 v{vT+2}, {8*p}, v{vT}
        v_bfe_u32 v{vT+3}, v{vT+2}, 1, 3
        v_xor_b32 v{vT+3}, v{vT+3}, v{vT+1}
        v_mul_u32_u24 v{vT+2}, 1280, v{vT+2}
        v_lshl_add_u32 v{vx+p}, v{vT+3}, 4, v{vT+2}""")
    k(f"v_subrev_u32 v{vx+1}, 1024, v{vx+1}")
    k.srd(sA, P_X, SZ_Q)
    k(f"""s_lshl_b32 s{sBaseA}, s{sT64}, 2
    s_add_u32 s{sBaseA}, s{sBaseA}, s{sW}
    s_mul_i32 s{sBaseA}, s{sBaseA}, {16*1280}
    s_lshl_b32 s{sNeed}, s{sW}, 11
    s_add_u32 s{sNeed}, s{sNeed}, {F_B}""")
    sKr = 36
    def l_rot():
        if frot: k(f"s_lshr_b32 s{sKr}, s2, 3\ns_mul_i32 s{sKr}, s{sKr}, {frot}\ns_mul_i32 s{sT}, s{sKr}, 6554\ns_lshr_b32 s{sT}, s{sT}, 16\ns_mul_i32 s{sT}, s{sT}, 10\ns_sub_u32 s{sKr}, s{sKr}, s{sT}")
        else: k(f"s_mov_b32 s{sKr}, 0")
    def l_x(g):
        k(f"s_lshl_b32 s{sSoA}, s{sKr}, 7\ns_add_u32 m0, s{sNeed}, {F_S*(g%6)}\ns_add_u32 s{sSoA}, s{sBaseA}, s{sSoA}")
        for p in range(2): k(vop(("A", g), f"buffer_load_dwordx4 v{vx+p}, s[{sA}:{sA+3}], s{sSoA} offen offset:{1024*p} lds"))
    def l_w(g, n):
        k(f"s_mul_i32 s{sSoA}, s{sKr}, s{sStepB}\ns_add_u32 m0, s{sI}, {F_S*(g%6)}\ns_add_u32 s{sSoA}, s{sSoA}, s{sSoB}")
        for p in range(n): k(vop(("A", g), f"buffer_load_dwordx4 v{vw+p}, s[{sB}:{sB+3}], s{sSoA} offen offset:{1024*p} lds"))
        k(f"s_add_u32 s{sKr}, s{sKr}, 1\ns_cmp_eq_u32 s{sKr}, 10\ns_cmov_b32 s{sKr}, 0")
    lx, ls, lt, la_ = fs[0][0][0], fs[1][0][0], fs[1][0][0] + 16, z2 + 6
    def l_pass(n, x0done, mid=None, lead=3, xf=False):
        for g in range(lead):
            if not (g == 0 and x0done): l_x(g)
            l_w(g, n)
        if mid: mid()
        k(f"v_lshl_add_u32 v{la_}, v{vL}, 4, s{sNeed}\nv_add_u32 v{la_+1}, {3*F_S}, v{la_}")
        for i in range(16): k(f"v_mov_b32 v{ls+i}, 0")
        for g in range(10):
            k(f"s_waitcnt vmcnt({newer({('A', g)})})")
            if g == 0: sp('land0')
            sp(f'w{g}')
            k("s_barrier")
            if g == 0: sp('p1s')
            sp(f'f{g}')
            for p in range(2):
                k(f"ds_read_b128 {v(lx+4*p,4)}, v{la_+(g%6)//3} offset:{F_S*(g%3)+1024*p}")
            if g + lead < 10:
                l_x(g + lead); l_w(g + lead, n)
            if g == 9 and xf:
                k(f"s_lshl_b32 s{sT+3}, s{sTB}, 2\ns_add_u32 s{sT+3}, s{sT+3}, s{sW}\ns_lshl_b32 s{sT+3}, s{sT+3}, 9\nv_lshlrev_b32 v{vT+4}, 7, v{vL}\ns_mov_b64 exec, 0xf")
                k(gload(f"s{sT+3}", vT + 4, vT + 8))
                k("s_mov_b64 exec, -1")
            k("s_waitcnt lgkmcnt(0)")
            for hh in range(2):
                for p in range(2):
                    X = lx + 4*p + 2*hh
                    k(f"v_mfma_f32_4x4x4_16b_bf16 {v(ls+8*p,4)}, {v(vOnes,2)}, {v(X,2)}, {v(ls+8*p,4)}")
                    k(f"v_mfma_f32_4x4x4_16b_bf16 {v(ls+8*p+4,4)}, {v(X,2)}, {v(X,2)}, {v(ls+8*p+4,4)}")
        k(f"v_and_b32 v{lt}, 3, v{vL}\ns_nop 2")
        for i in range(1, 4):
            k(f"v_cmp_eq_u32 vcc, {i}, v{lt}\ns_nop 1")
            for p in range(2): k(f"v_cndmask_b32 v{ls+8*p+4}, v{ls+8*p+4}, v{ls+8*p+4+i}, vcc")
        R = [ls, ls + 8, ls + 4, ls + 12]
        for m in ("quad_perm:[1,0,3,2]", "quad_perm:[2,3,0,1]", "row_half_mirror"):
            for r in R: k(f"v_add_f32_dpp v{r}, v{r}, v{r} {m} row_mask:0xf bank_mask:0xf")
        for r in R: k(f"v_mul_f32 v{r}, {fl(1.0/640)}, v{r}")
        for p in range(2):
            mu, q_ = ls + 8*p, ls + 8*p + 4
            k(f"v_fma_f32 v{q_}, -v{mu}, v{mu}, v{q_}\nv_max_f32 v{q_}, 0, v{q_}\nv_add_f32 v{q_}, {fl(1e-5)}, v{q_}\nv_rsq_f32 v{q_}, v{q_}")
        k(f"""s_lshl_b32 s{sT}, s{sW}, 6
        s_add_u32 s{sT}, s{sT}, {F_STS}
        v_lshrrev_b32 v{lt}, 3, v{vL}
        v_lshl_add_u32 v{lt}, v{lt}, 2, s{sT}
        ds_write_b32 v{lt}, v{ls}
        ds_write_b32 v{lt}, v{ls+4} offset:256
        ds_write_b32 v{lt}, v{ls+8} offset:32
        ds_write_b32 v{lt}, v{ls+12} offset:288
        s_waitcnt lgkmcnt(0)""")
    def q_src():
        for p in range(3):
            k(f"""v_add_u32 v{vT}, {64*p}, v{vL}
            v_mul_u32_u24 v{vT+1}, 5462, v{vT}
            v_lshrrev_b32 v{vT+1}, 16, v{vT+1}
            v_mul_u32_u24 v{vT+2}, 12, v{vT+1}
            v_sub_u32 v{vT+2}, v{vT}, v{vT+2}
            v_mul_u32_u24 v{vT+1}, 1280, v{vT+1}
            v_lshl_add_u32 v{vw+p}, v{vT+2}, 4, v{vT+1}""")
            if p: k(f"v_subrev_u32 v{vw+p}, {1024*p}, v{vw+p}")
        k.srd(sB, P_WQ, 640*1280)
        k(f"""s_mul_i32 s{sSoB}, s{sW}, {16*1280}
        s_mul_i32 s{sT}, s{sHG}, 160
        s_and_b32 s{sT}, s{sT}, 0xffffffc0
        s_add_u32 s{sSoB}, s{sSoB}, s{sT}
        s_mov_b32 s{sStepB}, {64*1280}
        s_mul_i32 s{sI}, s{sW}, 3072
        s_add_u32 s{sI}, s{sI}, {F_B+8192}""")
    if "skip" in MX:
        k(f"s_barrier\ns_cmp_eq_u32 s{sHG}, 7\ns_cbranch_scc1 {end}")
        setup_rest(); a_addr(4096)
        k.srd(sA, P_WSP, 2048*4096)
        k(f"s_lshl_b32 s{sSoA}, s{sTB}, 2\ns_add_u32 s{sSoA}, s{sSoA}, s{sW}\ns_lshl_b32 s{sSoA}, s{sSoA}, 17")
        k(f"v_lshlrev_b32 v{vDb}, 4, v{vL}\nv_lshlrev_b32 v{vDb+1}, 4, v{vL}\ns_add_u32 s{sSoF}, s{sSoF}, {4*28}\ns_waitcnt vmcnt(0)")
        k(lf()); k(f"s_branch {skipG}")
    early = 'b' not in pf
    sKr = 36
    l_rot()
    if early: l_x(0)
    k(f"s_cmp_eq_u32 s{sHG}, 7\ns_cbranch_scc1 {rep}")
    q_src()
    def mid():
        setup_rest(); nat_read_addr(128); b_addr(3456); a_addr(XN_ST)
    if early: l_pass(3, True, mid, xf=True, lead=lq)
    else:
        mid(); k("s_barrier"); l_pass(3, False, xf=True, lead=lq)
    sp('p1l')
    k("s_barrier")
    src_win(13 * 128)
    issue_b(10)
    src_xn()
    xo = k.lab("xo")
    k("s_waitcnt vmcnt(2)\ns_mov_b64 exec, 0xf")
    gcheck(vT + 8)
    k(f"s_mov_b64 exec, -1\ns_cbranch_vccz {xo}")
    gpoll(f"s{sT+3}", vT + 4, vT + 8, 0xf, 2)
    k.label(xo)
    sp('xo')
    cohA[0] = "sc1"
    issue_a(10)
    prologue(10, "nat")

    k.label(b10)
    sp('p1')
    prio[0] = lprio
    vFg, vSt = vT + 8, tmp
    def z_ready():
        pd = k.lab("zpd")
        sp('zc')
        k(f"s_waitcnt vmcnt({newer({'pz'})})")
        gcheck(vFg)
        k(f"s_cbranch_vccz {pd}")
        k(f"s_lshl_b32 s{sT}, s{sW}, 13\ns_add_u32 s{sT}, s{sT}, {FL_Z}")
        gpoll(f"s{sT}", vT + 14, vFg, None, 4)
        k.label(pd)
        gsync()
        sp('zr')
        k.srd(sB, P_WS, SZ_Z2F, WS_Z2F)
        k(f"""s_lshl_b32 s{sT}, s{sFG}, 2
        s_add_u32 s{sT}, s{sT}, s{sW}
        s_lshl_b32 s{sSoB}, s{sT}, 16
        s_mov_b32 s{sStepB}, 2048
        v_add_u32 v{vZf}, {L_Z}, v{vDb}""")
        cohB[0] = "sc1"
        k(f"s_setprio {lprio}")
        for g in range(30, ev[5] + 4): issue_b(g)
        if ev[5] < 30: k(lf())
        k("s_setprio 3")
    for g in range(10, 30):
        if g == 16:
            src_win(0)
        if g == 17:
            k(f"s_mov_b32 s{sSoA}, s{sBaseA}")
        if g == 14 and so:
            poison(False)
        if g == 20:
            sp('p2')
            hi()
            s0 = k.lab("s0")
            k(f"v_mov_b32 v{vT+12}, {fl(GC1)}\nv_mov_b32 v{vT+13}, {fl(GC0)}\nv_mov_b32 v{vT+10}, 0\nv_mov_b32 v{vT+11}, 0\nv_mov_b32 v{vT+6}, 0\nv_mov_b32 v{vT+7}, 0\ns_nop 1")
            k(f"s_cmp_eq_u32 s{sFG}, 0\ns_cbranch_scc1 {s0}")
            gelu(0, z2, True)
            k.label(s0)
            gelu(1, z2 + 8, True)
            k.srd(sO, P_WS, SZ_ST, WS_ST)
            k(f"""v_permlane16_swap_b32 v{vT+10}, v{vT+6}
            v_permlane16_swap_b32 v{vT+11}, v{vT+7}
            v_add_f32 v{vT+10}, v{vT+10}, v{vT+6}
            v_add_f32 v{vT+11}, v{vT+11}, v{vT+7}
            v_mov_b32 v{vT+2}, v{vT+10}
            v_mov_b32 v{vT+3}, v{vT+11}
            s_mul_i32 s{sT}, s{sTB}, 14
            s_add_u32 s{sT}, s{sT}, s{sFG}
            v_permlane32_swap_b32 v{vT+10}, v{vT+2}
            v_permlane32_swap_b32 v{vT+11}, v{vT+3}
            s_lshl_b32 s{sT}, s{sT}, 11
            s_lshl_b32 s{sT+1}, s{sW}, 9
            v_add_f32 v{vT+4}, v{vT+10}, v{vT+2}
            v_add_f32 v{vT+6}, v{vT+11}, v{vT+3}
            v_mov_b32 v{vT+5}, s{sNo}
            v_mov_b32 v{vT+7}, s{sNo}
            v_lshlrev_b32 v{vT+2}, 4, v{vN}
            s_add_u32 s{sT}, s{sT}, s{sT+1}""")
            k(vop("st", f"buffer_store_dwordx4 {v(vT+4,4)}, v{vT+2}, s[{sO}:{sO+3}], s{sT} offen sc1"))
            k("s_nop 0")
        if g == gr:
            sp('e25')
            pr = [z1, z1 + 4, z1 + 8, z1 + 12, tmp + 8, tmp + 12, tmp + 16]
            gl = k.lab("gl"); gd = k.lab("gd")
            k(f"""v_mul_u32_u24 v{vT+14}, {7*2048}, v{vH}
            v_lshl_add_u32 v{vT+14}, v{vN}, 4, v{vT+14}
            s_mul_i32 s{sT+2}, s{sTB}, {14*2048}
            s_lshl_b32 s{sT+1}, s{sW}, 9
            s_add_u32 s{sT+2}, s{sT+2}, s{sT+1}""")
            def gloads():
                for i in range(7):
                    if i % 2 == 0: k(f"s_add_u32 s{sT+3}, s{sT+2}, {2048*i}")
                    k(f"buffer_load_dwordx4 {v(pr[i],4)}, v{vT+14}, s[{sO}:{sO+3}], s{sT+3} offen offset:{2048*(i%2)} sc1")
            gloads()
            sel, D = tmp, tmp + 8
            mur, r = vT + 10, vT + 11
            k(f"""v_and_b32 v{vT+2}, 15, v{vL}
            v_lshrrev_b32 v{vT+3}, 4, v{vL}
            v_lshlrev_b32 v{vT+3}, 2, v{vT+3}
            v_sub_u32 v{vT+2}, v{vT+2}, v{vT+3}
            v_mov_b32 v{vT+3}, 0x3f80
            v_mov_b32 v{vT+4}, 0x3f800000""")
            for q in (0, 1, 4, 5): k(f"v_mov_b32 v{sel+q}, 0")
            for q in range(2):
                k(f"""v_cmp_eq_u32 vcc, {2*q}, v{vT+2}
                v_cmp_eq_u32 s[{sT}:{sT+1}], {2*q+1}, v{vT+2}
                s_nop 0
                v_cndmask_b32 v{sel+2+q}, 0, v{vT+3}, vcc
                v_cndmask_b32 v{sel+2+q}, v{sel+2+q}, v{vT+4}, s[{sT}:{sT+1}]""")
            k.label(gl)
            k("s_waitcnt vmcnt(0)")
            for j, tg in ((1, sNo), (3, sNo)):
                t = vT + 4 + j // 2
                k(f"v_xor_b32 v{t}, s{tg}, v{pr[0]+j}")
                for i in range(1, 7):
                    k(f"v_xor_b32 v{vT+6}, s{tg}, v{pr[i]+j}\nv_or_b32 v{t}, v{t}, v{vT+6}")
            k(f"v_or_b32 v{vT+4}, v{vT+4}, v{vT+5}\nv_cmp_ne_u32 vcc, 0, v{vT+4}\ns_cbranch_vccz {gd}\ns_sleep 2")
            gloads()
            again(gl)
            k("s_waitcnt vmcnt(0)")
            k.label(gd)
            sp('sok')
            for i in range(1, 7):
                k(f"v_add_f32 v{z1}, v{z1}, v{pr[i]}\nv_add_f32 v{z1+2}, v{z1+2}, v{pr[i]+2}")
            k(f"v_mov_b32 v{z1+1}, v{z1+2}")
            k.srd(sO, P_WS, SZ_Z2F, WS_Z2F)
            k(f"""v_mov_b32 v{z1+2}, v{z1}
            v_mov_b32 v{z1+3}, v{z1+1}
            v_lshlrev_b32 v{vT+2}, 4, v{vL}
            s_lshl_b32 s{sT}, s{sFG}, 18
            v_permlane32_swap_b32 v{z1}, v{z1+2}
            v_permlane32_swap_b32 v{z1+1}, v{z1+3}
            v_add_f32 v{mur}, v{z1}, v{z1+2}
            v_add_f32 v{r}, v{z1+1}, v{z1+3}
            v_mul_f32 v{mur}, {fl(1.0/864)}, v{mur}
            v_mul_f32 v{r}, {fl(1.0/864)}, v{r}
            v_fma_f32 v{r}, -v{mur}, v{mur}, v{r}
            v_max_f32 v{r}, 0, v{r}
            v_add_f32 v{r}, {fl(1e-5)}, v{r}
            v_rsq_f32 v{r}, v{r}
            s_lshl_b32 s{sT+1}, s{sTB}, 12
            s_add_u32 s{sT}, s{sT}, s{sT+1}
            v_mul_f32 v{mur}, v{mur}, v{r}
            v_mov_b32 v{vT+7}, v{r}
            v_mov_b32 v{vT+6}, v{mur}
            s_lshl_b32 s{sT+1}, s{sW}, 10
            s_add_u32 s{sT}, s{sT}, s{sT+1}
            v_permlane16_swap_b32 v{r}, v{vT+7}
            v_permlane16_swap_b32 v{mur}, v{vT+6}""")
            s1 = k.lab("s1")
            for u in (1, 0):
                if u == 0:
                    k(f"s_cmp_eq_u32 s{sFG}, 0\ns_cbranch_scc1 {s1}\ns_sub_u32 s{sT}, s{sT}, 0x20000")
                k(f"s_add_u32 s{sT+1}, s{sT}, 0x10000")
                zz = z2 + 8*u
                for i in range(8):
                    m_, r_ = (mur, r) if i < 4 else (vT + 6, vT + 7)
                    k(f"""v_lshlrev_b32 v{vT+4}, 16, v{zz+i}
                    v_and_b32 v{vT+5}, s{sMask}, v{zz+i}
                    v_fma_f32 v{vT+4}, v{vT+4}, v{r_}, -v{m_}
                    v_fma_f32 v{vT+5}, v{vT+5}, v{r_}, -v{m_}
                    v_cvt_pk_bf16_f32 v{zz+i}, v{vT+4}, v{vT+5}""")
                k("s_nop 1")
                for c in range(2):
                    for tn in range(2):
                        k(f"v_mfma_f32_16x16x32_bf16 {v(D+8*c+4*tn,4)}, {v(zz+4*tn,4)}, {v(sel+2-2*c,4)}, 0")
                k("s_nop 4")
                for i in range(8): k(f"v_cvt_pk_bf16_f32 v{zz+i}, v{D+2*i}, v{D+2*i+1}")
                k("s_nop 0")
                swap44(zz, zz + 4)
                for c in range(2):
                    k(vop("zs", f"buffer_store_dwordx4 {v(zz+4*c,4)}, v{vT+2}, s[{sO}:{sO+3}], s{sT + c} offen sc1"))
            k.label(s1)
            del vm[-2:]
            lo()
        if g == gr + 1:
            sp('e26')
            hi()
            k(f"s_waitcnt vmcnt({newer({'zs'})})")
            sp('za')
            gsync(); set_flag(FL_Z)
            sp('zf')
            if so: poison_done()
            lo()
        if g == 27:
            sp('e27')
            hi()
            a_addr(4096)
            k.srd(sA, P_WSP, 2048*4096)
            k(f"s_lshl_b32 s{sSoA}, s{sTB}, 2\ns_add_u32 s{sSoA}, s{sSoA}, s{sW}\ns_lshl_b32 s{sSoA}, s{sSoA}, 17")
            cohA[0] = ntw
            if prot is not None:
                wrapA[0] = True
                k(f"""s_and_b32 s36, s{sTB}, 1
                s_mul_i32 s36, s36, {prot[0]}
                s_mul_i32 s37, s{sFG}, {prot[1]}
                s_add_u32 s36, s36, s37
                s_and_b32 s36, s36, 31
                s_mov_b32 s38, s{sSoA}
                s_lshl_b32 s37, s36, 7
                s_add_u32 s{sSoA}, s38, s37""")
            k.srd(sB, P_BSP, 4096)
            k(f"v_lshlrev_b32 v{vT+2}, 1, v{vTok}\nv_lshlrev_b32 v{vDb}, 4, v{vL}\nv_lshlrev_b32 v{vDb+1}, 4, v{vL}")
            k(vop("bias", f"buffer_load_ushort v{vBias}, v{vT+2}, s[{sB}:{sB+3}], 0 offen"))
            lo()
        if g == ev[4]:
            k(f"s_lshl_b32 s{sT}, s{sW}, 13\ns_add_u32 s{sT}, s{sT}, {FL_Z}\nv_and_b32 v{vT+14}, 15, v{vL}\nv_min_u32 v{vT+14}, 13, v{vT+14}\nv_and_or_b32 v{vT+14}, v{vL}, 48, v{vT+14}\nv_lshlrev_b32 v{vT+14}, 7, v{vT+14}")
            k(vop("pz", gload(f"s{sT}", vT + 14, vFg)))
        if g == ev[5]:
            z_ready()
        body(g, "nat", "nat" if g != 29 else ("frag" if ev[5] < 30 else None), first=(g in (10, 20)), doB=(g < 26 or g >= ev[5]), cout=(g not in (16, 26, ev[5] - 1)),
             needp=((ev[5] - 28) if (g == 29 and ev[5] < 30) else 0))
    sp('p3')
    k.label(skipG)
    if ev[5] == 30:
        z_ready()
        k("s_waitcnt vmcnt(2)")
        gsync()
        for r in reads("frag", 0, 0, 30): k(r)
    pat[0] = pats
    cacc[0] = [z1, z2]
    body(30, "frag", "frag", first=True, needp=max(0, ev[5] - 29) if ev[5] < 30 else 0)
    body(31, "frag", "frag")
    k(f"s_mov_b32 s{sNeed}, 30\ns_mov_b32 s{sI}, 0")
    loop = k.lab("gloop")
    sp('l0')
    if "acct" in MX: k("s_waitcnt lgkmcnt(0)\ns_mov_b32 s82, s80\ns_mov_b32 s84, s80")
    if "lin" in MX:
        for p in range(4): k(f"v_mov_b32 v{vD+p}, v{vDb}")
    if "glin" in MX:
        for p in range(4): k(f"v_add_u32 v{vWa+p}, s{sM0A}, v{vDb}")
    if "oob" in MX: k(f"s_mov_b32 s{sA+2}, 0\ns_mov_b32 s{sB+2}, 0")
    if "ooa" in MX: k(f"s_mov_b32 s{sA+2}, 0")
    if "ooz" in MX: k(f"s_mov_b32 s{sB+2}, 0")
    k.align(3)
    k.label(loop)
    inloop[0] = True
    if "nosc" in MX: cohB[0] = ""
    for g in range(32, 38):
        body(g, "frag", "frag", loop=True)
    inloop[0] = False
    k(f"s_add_u32 s{sI}, s{sI}, 1\ns_cmp_lt_u32 s{sI}, 3\ns_cbranch_scc1 {loop}")
    sp('l1')
    if "skip" in MX: k.endpgm(P_WS, 3)
    if "nopt" in MX:
        k("s_waitcnt lgkmcnt(0)")
        k.stamp(1); k("s_waitcnt lgkmcnt(0)")
        for i in range(32): k("s_nop 15")
        k.stamp(2); k("s_waitcnt lgkmcnt(0)")
        for i in range(256): k(f"v_add_u32 v{vT}, 1, v{vT}")
        k.stamp(3); k("s_waitcnt lgkmcnt(0)")
        for i in range(32): k(f"ds_read_b32 v{vT}, v{vFa}\ns_waitcnt lgkmcnt(0)")
        k.stamp(4); k("s_waitcnt lgkmcnt(0)")
    sG, sWb = sI, sBaseA
    def out_ids():
        k(f"s_lshr_b32 s{sG}, s2, 5\ns_mul_i32 s{sWb}, s{sG}, {47*5120}\ns_add_u32 s{sWb}, s{sWb}, {20*5120 - 1024 - L_A}")
    vm[:] = [((t[0], t[1] + 12) if isinstance(t, tuple) else t) for t in vm]
    def gelu4(r0):
        t = vT
        R = range(4)
        o = [f"v_mul_f32 v{t+i}, v{r0+i}, v{r0+i}" for i in R] + [f"v_fmaak_f32 v{t+i}, v{vT+12}, v{t+i}, {fl(GC0)}" for i in R]
        o += [f"v_mul_f32 v{t+i}, v{t+i}, v{r0+i}" for i in R] + [f"v_exp_f32 v{t+i}, v{t+i}" for i in R]
        o += [f"v_add_f32 v{t+i}, 1.0, v{t+i}" for i in R] + [f"v_rcp_f32 v{t+i}, v{t+i}" for i in R]
        return o + [f"v_mul_f32 v{r0+i}, v{t+i}, v{r0+i}" for i in R]
    def wtouch():
        k(f"""s_bfe_u32 s{sT}, s2, 0x20003
        s_lshl_b32 s{sT}, s{sT}, 2
        s_add_u32 s{sT}, s{sT}, s{sW}
        s_mul_i32 s{sT+1}, s{sT}, {50*128}
        s_mul_i32 s{sT+2}, s{sT}, {20*128}
        s_mul_i32 s{sT}, s{sG}, {47*5120}
        s_add_u32 s{sT+1}, s{sT+1}, s{sT}
        s_add_u32 s{sT+2}, s{sT+2}, s{sT}
        s_add_u32 s{sT+2}, s{sT+2}, {39*5120}
        v_min_u32 v{vT+4}, 49, v{vL}
        v_lshlrev_b32 v{vT+4}, 7, v{vT+4}
        v_min_u32 v{vT+5}, 19, v{vL}
        v_lshlrev_b32 v{vT+5}, 7, v{vT+5}
        buffer_load_dword v{vZa}, v{vT+5}, s[{sB}:{sB+3}], s{sT+2} offen sc1
        buffer_load_dword v{vZa}, v{vT+4}, s[{sB}:{sB+3}], s{sT+1} offen sc1""")
    for g in range(50, 62):
        tA = tB = None
        if g == 55:
            k(f"v_and_b32 v{vT+14}, 31, v{vL}\nv_lshlrev_b32 v{vT+14}, 7, v{vT+14}\ns_mov_b32 s{sT}, {FL_W}")
            k(gload(f"s{sT}", vT + 14, vFg))
        if g == 58:
            sp('g58a')
            wk = k.lab("wok")
            gcheck(vFg)
            k(f"s_cbranch_vccz {wk}\ns_mov_b32 s{sT}, {FL_W}")
            gpoll(f"s{sT}", vT + 14, vFg, None, 4)
            k.label(wk)
            sp('g58')
            out_ids()
            k.srd(sB, P_WS, SZ_WF, WS_WF)
        if g == 59:
            k.srd(sA, P_WS, SZ_WF, WS_WF)
            cohA[0] = "sc1"
            hi()
            for p in range(4): k(f"v_mov_b32 v{vD+p}, v{vDb}")
            lo()
        if g == wt: wtouch()
        if g >= 58: tB = f"s_add_u32 s{sSoB}, m0, s{sWb}"
        if g >= 59: tA = f"s_add_u32 s{sSoA}, m0, s{sWb}"
        body(g, "frag", "frag" if g < 61 else None, dyn=True, doA=(g < 59), doB=(g < 58), tailA=tA, tailB=tB, cout=(g < 58), ex=(gelu4(acc[0] + 4*(g - 50)) if g < 58 else ()))
    sp('p4')
    hi()
    fin = k.lab("gfin")
    def rest_w():
        gsync()
        k(f"s_lshl_b32 s{sT+1}, s{sW}, 12\ns_add_u32 m0, s{sT+1}, {L_Z}\ns_add_u32 s{sSoB}, m0, s{sWb}")
        for p in range(4):
            k(f"buffer_load_dwordx4 v{vDb}, s[{sB}:{sB+3}], s{sSoB} offen offset:{1024*p} sc1 lds")
    k.srd(sO, P_WS, SZ_OUF, WS_OUF)
    k(f"""v_lshlrev_b32 v{vBias}, 16, v{vBias}
    s_lshl_b32 s{sT}, s{sTB}, 2
    s_add_u32 s{sT}, s{sT}, s{sW}
    v_mov_b32 v{vBias1}, v{vBias}
    s_mul_i32 s{sT}, s{sT}, {2*47*1024}
    s_lshl_b32 s{sT+1}, s{sFG}, 11
    s_add_u32 s{sT}, s{sT}, s{sT+1}
    v_permlane16_swap_b32 v{vBias}, v{vBias1}
    s_add_u32 s{sT}, s{sT}, {20*1024}
    s_add_u32 s{sT+1}, s{sT}, {47*1024}""")
    for i in range(2):
        if i == 1:
            k(f"s_cmp_eq_u32 s{sFG}, 13\ns_cbranch_scc1 {fin}")
        ga = cacc[0][i]
        if pkv & 2:
            if pkv & 4: k('s_nop 7')
            for r in range(0, 16, 2): k(f"v_pk_add_f32 {v(ga+r,2)}, {v(ga+r,2)}, {v(vBias,2)} " + ("op_sel_hi:[1,0]" if r < 8 else "op_sel:[0,1] op_sel_hi:[1,1]"))
            for r in range(0, 16, 2): k(f"v_pk_mul_f32 {v(ga+r,2)}, {v(ga+r,2)}, {v(acc[i]+r,2)}")
        else:
            for r in range(16): k(f"v_add_f32 v{ga+r}, v{ga+r}, v{vBias if r < 8 else vBias1}")
            for r in range(16): k(f"v_mul_f32 v{ga+r}, v{ga+r}, v{acc[i]+r}")
        for r in range(8): k(f"v_cvt_pk_bf16_f32 v{tmp+8*i+r}, v{ga+2*r}, v{ga+2*r+1}")
        k("s_nop 0")
        swap44(tmp + 8*i, tmp + 8*i + 4)
        for tn in range(2):
            k(f"buffer_store_dwordx4 {v(tmp+8*i+4*tn,4)}, v{vDb}, s[{sO}:{sO+3}], s{sT+tn} offen offset:{1024*i} sc1")
    k.label(fin)
    sp('ust')
    rest_w()
    sp('urw')
    if not sent: set_wflag(FL_U, 4)
    sp('ufl')
    if wt == 62: wtouch()
    k(f"s_branch {outp}")

    k.label(rep)
    vm[:] = [("A", 0)] * 2
    k(f"s_cmp_ge_u32 s{sW}, 2\ns_cbranch_scc1 {kw}")
    k.srd(sB, P_WK, 25600)
    k(f"s_branch {kwd}")
    k.label(kw)
    k.srd(sB, P_WV, 25600)
    k.label(kwd)
    k(f"""v_lshlrev_b32 v{vw}, 4, v{vL}
    v_lshlrev_b32 v{vw+1}, 4, v{vL}
    s_and_b32 s{sSoB}, s{sW}, 1
    s_lshl_b32 s{sSoB}, s{sSoB}, 9
    s_mov_b32 s{sStepB}, 2560
    s_lshr_b32 s{sI}, s{sW}, 1
    s_lshl_b32 s{sI}, s{sI}, 12
    s_add_u32 s{sI}, s{sI}, s{sSoB}
    s_add_u32 s{sI}, s{sI}, {F_B+8192}""")
    if early: l_pass(2, True, setup_rest, lead=lk)
    else:
        l_pass(2, False, lambda: (setup_rest(), k("s_barrier")), lead=lk)
    sp('p1l')
    q_src()
    k("s_barrier\ns_barrier\ns_barrier")
    l_pass(3, False)
    k("s_barrier")
    rl = k.lab("rl")
    att_progress(1, vT + 5, 8)
    if spe: prefetch_sp()
    if so: poison(False)
    k(f"s_mov_b32 s{sNeed}, s{sT64}")
    k.label(rl)
    emit_repack(k, sNeed, sW, vL, P_WO, P_WOUT, P_WS, 8, acc[0], L_A, gsync, coh="sc1", rot=orot)
    k(f"s_add_u32 s{sNeed}, s{sNeed}, 32\ns_waitcnt vmcnt(0)")
    gsync()
    k(f"s_cmp_lt_u32 s{sNeed}, 47\ns_cbranch_scc1 {rl}")
    if so: poison_done()
    nf = k.lab("nf")
    k(f"s_cmp_lg_u32 s{sW}, 0\ns_cbranch_scc1 {nf}\ns_lshl_b32 s{sT}, s{sT64}, 7\ns_add_u32 s{sT}, s{sT}, {FL_W}")
    gset(f"s{sT}", vT, vT + 2)
    k.label(nf)
    k.label(outq)
    sp('p1')
    k(f"s_setprio {lprio}")
    out_ids()
    k.srd(sB, P_WS, SZ_WF, WS_WF)
    if not spe: prefetch_sp()
    if zpf:
        k(f"s_lshl_b32 s{sT}, s{sW}, 13\ns_add_u32 s{sT}, s{sT}, {FL_Z}\nv_and_b32 v{vT}, 15, v{vL}\nv_min_u32 v{vT}, 13, v{vT}\nv_and_or_b32 v{vT}, v{vL}, 48, v{vT}\nv_lshlrev_b32 v{vT}, 7, v{vT}")
        gpoll(f"s{sT}", vT, vT + 2, None, 16)
        gsync()
        zl = k.lab("zl")
        k.srd(sO, P_WS, SZ_Z2F, WS_Z2F)
        k(f"s_bfe_u32 s{sT}, s2, 0x20003\ns_lshl_b32 s{sT}, s{sT}, 2\ns_add_u32 s{sT}, s{sT}, s{sW}\nv_lshlrev_b32 v{vT+8}, 7, v{vL}")
        k.label(zl)
        k(f"""s_mul_i32 s{sT+1}, s{sT}, 2428
        s_lshr_b32 s{sT+1}, s{sT+1}, 16
        s_mul_i32 s{sT+2}, s{sT+1}, 27
        s_sub_u32 s{sT+2}, s{sT}, s{sT+2}
        s_lshl_b32 s{sT+2}, s{sT+2}, 17
        s_add_u32 s{sT+1}, s{sT+1}, {16 - zpf}
        s_lshl_b32 s{sT+1}, s{sT+1}, 13
        s_add_u32 s{sT+1}, s{sT+1}, s{sT+2}
        buffer_load_dword v{vT+9}, v{vT+8}, s[{sO}:{sO+3}], s{sT+1} offen sc1
        s_add_u32 s{sT}, s{sT}, 16
        s_cmp_lt_u32 s{sT}, {27 * zpf}
        s_waitcnt vmcnt(1)
        s_cbranch_scc1 {zl}""")
    att_progress(wfat, vT, 32)
    k(f"v_lshlrev_b32 v{vDb}, 4, v{vL}\nv_lshlrev_b32 v{vT}, 7, v{vL}\ns_mov_b32 s{sT}, {FL_W}")
    gpoll(f"s{sT}", vT, vT + 2, 0xffffffff, 16)
    if so:
        k(f"s_lshl_b32 s{sT}, s{sW}, 13\ns_add_u32 s{sT}, s{sT}, {FL_Z}\nv_and_b32 v{vT}, 15, v{vL}\nv_min_u32 v{vT}, 13, v{vT}\nv_and_or_b32 v{vT}, v{vL}, 48, v{vT}\nv_lshlrev_b32 v{vT}, 7, v{vT}")
        gpoll(f"s{sT}", vT, vT + 2, None, 16)
        gsync()
    if 'w' in pf:
        wl = k.lab("wl")
        k(f"""s_bfe_u32 s{sT}, s2, 0x20003
        s_lshl_b32 s{sT}, s{sT}, 2
        s_add_u32 s{sT}, s{sT}, s{sW}
        s_lshl_b32 s{sT}, s{sT}, 13
        v_lshlrev_b32 v{vT+8}, 7, v{vL}""")
        k.label(wl)
        k(f"""buffer_load_dword v{vT+9}, v{vT+8}, s[{sB}:{sB+3}], s{sT} offen sc1
        s_add_u32 s{sT}, s{sT}, {16*8192}
        s_cmp_lt_u32 s{sT}, {SZ_WF}
        s_waitcnt vmcnt(0)
        s_cbranch_scc1 {wl}""")
    k(f"s_mul_i32 s{sT}, s{sW}, {24*1024}\ns_add_u32 s{sT}, s{sT}, {L_A}")
    for p in range(24):
        if p % 4 == 0:
            k(f"s_add_u32 m0, s{sT}, {1024*p}\ns_add_u32 s{sSoB}, m0, s{sWb}")
        k(f"buffer_load_dwordx4 v{vDb}, s[{sB}:{sB+3}], s{sSoB} offen offset:{1024*(p%4)} sc1 lds")

    if 'v' in pf:
        vl = k.lab("vl")
        k(f"""s_bfe_u32 s{sT}, s2, 0x20003
        s_lshl_b32 s{sT}, s{sT}, 2
        s_add_u32 s{sT}, s{sT}, s{sW}
        s_lshr_b32 s{sT+1}, s{sT}, 1
        s_mul_i32 s{sT+1}, s{sT+1}, {47*5120}
        s_and_b32 s{sT}, s{sT}, 1
        s_lshl_b32 s{sT}, s{sT}, 13
        v_lshlrev_b32 v{vT+8}, 7, v{vL}""")
        k.label(vl)
        k(f"""s_add_u32 s{sT+2}, s{sT}, {39*5120}
        s_sub_u32 s{sT+3}, s{sT}, {8*5120}
        s_cselect_b32 s{sT+2}, s{sT+2}, s{sT+3}
        s_add_u32 s{sT+2}, s{sT+2}, s{sT+1}
        buffer_load_dword v{vT+9}, v{vT+8}, s[{sB}:{sB+3}], s{sT+2} offen sc1
        s_add_u32 s{sT}, s{sT}, 16384
        s_cmp_lt_u32 s{sT}, {28*5120}
        s_waitcnt vmcnt(1)
        s_cbranch_scc1 {vl}
        s_waitcnt vmcnt(0)""")
    k.label(outp)
    sp('outp')
    sWF, sOU, sXo = sB, sA, sO
    sTT, sAo, sXof = sSoA, sStepB, sM0A
    a = Alloc(8)
    oacc = a(20, 4)
    af = a(80, 4)
    wb = [a(20, 4), a(20, 4)]
    xr = a(10, 2)
    vQ = a(4, 2)
    vA16, vW0, vW1, vXo, vP = a(), a(), a(), a(), a()
    assert a.n <= 168, a.n
    k.srd(sOU, P_WS, SZ_OUF, WS_OUF)
    k.srd(sXo, P_X, SZ_Q)
    k(f"""s_lshl_b32 s{sTT}, s{sT64}, 2
    s_add_u32 s{sTT}, s{sTT}, s{sW}
    s_mul_i32 s{sAo}, s{sTT}, {47*1024}
    s_mul_i32 s{sXof}, s{sTT}, {16*1280}
    s_mul_i32 s{sT}, s{sG}, 160
    s_add_u32 s{sXof}, s{sXof}, s{sT}
    v_lshlrev_b32 v{vA16}, 4, v{vL}
    v_add_u32 v{vW0}, {L_W}, v{vA16}
    v_add_u32 v{vW1}, {L_W+51200}, v{vA16}
    v_lshlrev_b32 v{vP}, 7, v{vL}
    v_and_b32 v{vXo}, 15, v{vL}
    v_mul_u32_u24 v{vXo}, 1280, v{vXo}
    v_lshrrev_b32 v{vQ}, 4, v{vL}
    v_lshl_add_u32 v{vXo}, v{vQ}, 3, v{vXo}""")
    k(f"s_setprio {lprio}")
    sWs, sWd = sT + 1, sT + 2
    k(f"s_mul_i32 s37, s{sG}, 5\ns_lshr_b32 s37, s37, 1\ns_mul_i32 s38, s{sG}, 27\ns_lshr_b32 s38, s38, 3")
    sU = sNeed
    vm[:] = []
    ld = []
    def lop(tag, txt): ld.append(tag); k(txt)
    def lnewer(tag): return min(15, len(ld) - 1 - max(i for i, t in enumerate(ld) if t == tag))
    def wpieces(step0, lds0, npieces, tag):
        per = npieces // 4
        def setup():
            k(f"""s_mul_i32 s{sWs}, s{sG}, {47*5120}
            s_mul_i32 s{sWd}, s{sW}, {per*1024}
            s_add_u32 s{sWs}, s{sWs}, s{sWd}
            s_add_u32 s{sWs}, s{sWs}, {step0*5120}
            s_add_u32 s{sWd}, s{sWd}, {lds0}""")
        def piece(p):
            if p == 0: setup()
            if p % 4 == 0:
                k(f"s_add_u32 m0, s{sWd}, {1024*p}")
                k(f"s_add_u32 s{sWs}, s{sWs}, 4096" if p else "s_nop 0")
            k(vop(tag, f"buffer_load_dwordx4 v{vA16}, s[{sWF}:{sWF+3}], s{sWs} offen offset:{1024*(p%4)} sc1 lds"))
        return [lambda p=p: piece(p) for p in range(per)]
    def aloads(steps, regs):
        def one(st, r):
            if orot:
                lo_, n_, sr = (0, 20, 37) if st < 20 else (20, 27, 38)
                k(f"s_add_u32 s{sT}, s{sr}, {st-lo_}\ns_sub_u32 s39, s{sT}, {n_}\ns_cselect_b32 s{sT}, s{sT}, s39\ns_lshl_b32 s{sT}, s{sT}, 10\ns_add_u32 s{sT}, s{sT}, s{sAo}")
                if lo_: k(f"s_add_u32 s{sT}, s{sT}, {lo_*1024}")
            else:
                k(f"s_add_u32 s{sT}, s{sAo}, {st*1024}")
            k(vop(("a", st), f"buffer_load_dwordx4 {v(af+4*r,4)}, v{vA16}, s[{sOU}:{sOU+3}], s{sT} offen sc1"))
        return [lambda st=st, r=r: one(st, r) for st, r in zip(steps, regs)]
    def wread(slot, b, u, tag):
        if isinstance(slot, tuple): base, o = vA16, slot[1] * 5120
        else: base, o = (vW0, slot * 5120) if slot < 10 else (vW1, (slot - 10) * 5120)
        lop(tag, f"ds_read_b128 {v(wb[b]+4*u,4)}, v{base} offset:{o+1024*u}")
    first = [True]
    def arrive():
        k(f"s_add_u32 s{sCnt}, s{sCnt}, 1\nv_mov_b32 v{vFl}, s{sCnt}")
        lop("w", f"ds_write_b32 v{vXw}, v{vFl}")
    def peek(): lop("pk", f"ds_read_b32 v{vQ}, v{vXa}")
    def check():
        sl = k.lab("oslow"); ok = k.lab("ook")
        k(f"s_waitcnt lgkmcnt({lnewer('pk')})\nv_cmp_gt_u32 vcc, s{sCnt}, v{vQ}\ns_cbranch_vccnz {sl}")
        k.label(ok)
        cold2.append((sl, ok))
    cold2 = []; cold3 = []; novm = [False]
    def compute(seq, side, hooks={}):
        for i in range(min(2, len(seq))):
            for u in range(5): wread(seq[i][0], i % 2, u, ("r", i))
        for i, (sl, st, r) in enumerate(seq):
            b = i % 2
            nv = 63 if novm[0] else newer({("a", st)})
            k(f"s_waitcnt vmcnt({min(63, nv)}) lgkmcnt({lnewer(('r', i))})")
            if so and st < 20:
                a0 = af + 4*r
                sl = k.lab("vslow"); ok = k.lab("vok")
                k(f"v_max3_u32 v{vQ+1}, v{a0}, v{a0+1}, v{a0+2}\nv_max_u32 v{vQ+1}, v{vQ+1}, v{a0+3}\nv_cmp_eq_u32 vcc, -1, v{vQ+1}\ns_cbranch_vccnz {sl}")
                k.label(ok)
                cold3.append((sl, ok, st, r))
            sp(f's{st}')
            if i in hooks: hooks[i]()
            sd = list(side.get(i, []))
            for u in range(5):
                c = "0" if first[0] else v(oacc+4*u, 4)
                k(f"v_mfma_f32_16x16x32_bf16 {v(oacc+4*u,4)}, {v(wb[b]+4*u,4)}, {v(af+4*r,4)}, {c}")
                if i + 2 < len(seq): wread(seq[i + 2][0], b, u, ("r", i + 2))
                if sd and u in ((1, 3, 4, 2, 0)[:len(side.get(i, []))]): sd.pop(0)()
            assert not sd
            first[0] = False
    def deal(em, i0, per):
        return {i0 + j: em[per*j:per*(j+1)] for j in range((len(em) + per - 1) // per)}
    def xload(u): k(vop("x", f"buffer_load_dwordx2 {v(xr+2*u,2)}, v{vXo}, s[{sXo}:{sXo+3}], s{sXof} offen offset:{32*u}"))
    if not xl:
        for u in range(5): xload(u)
    smode = [False]
    def probe_load(mask, vd, kind):
        k(f"s_mov_b64 exec, {hx(mask)}")
        if smode[0]: k(vop("of", f"buffer_load_dword v{vd}, v{vP}, s[{sOU}:{sOU+3}], s{sU} offen sc1"))
        else: k(vop("of", gload(f"s{sU}", vP, vd)))
        k("s_mov_b64 exec, -1")
    def probe_check(mask, vd):
        k(f"s_mov_b64 exec, {hx(mask)}")
        if smode[0]: k(f"v_cmp_eq_u32 vcc, -1, v{vd}")
        else: gcheck(vd)
        k("s_mov_b64 exec, -1")
    def probe(mask, slp):
        l = k.lab("pb"); d = k.lab("pbd")
        k.label(l)
        probe_load(mask, vQ, 0)
        k("s_waitcnt vmcnt(0)")
        probe_check(mask, vQ)
        k(f"s_cbranch_vccz {d}\ns_sleep {slp}")
        again(l)
        k.label(d)
    if o2:
        k(f"s_mul_i32 s{sWs}, s{sG}, {47*5120}\ns_mul_i32 s{sWd}, s{sW}, 10240\ns_add_u32 s{sWs}, s{sWs}, s{sWd}\ns_add_u32 s{sWs}, s{sWs}, {39*5120}")
        k(f"s_add_u32 s{sWd}, s{sWd}, {L_W + 5120}\nv_add_u32 v{vFw}, s{sWd}, v{vA16}")
        for p in range(10):
            if p and p % 4 == 0: k(f"s_add_u32 s{sWs}, s{sWs}, 4096")
            k(f"buffer_load_dwordx4 {v(af+40+4*p,4)}, v{vA16}, s[{sWF}:{sWF+3}], s{sWs} offen offset:{1024*(p%4)} sc1")
    k("s_setprio 3")
    if sent:
        k(f"v_lshlrev_b32 v{vP}, 10, v{vL}\ns_add_u32 s{sU}, s{sAo}, {20*1024+1020}")
        probe((1 << 27) - 1, 1)
        gsync()
        k(f"v_mul_u32_u24 v{vP}, 2560, v{vL}\ns_add_u32 s{sU}, s{sAo}, 2556")
    else:
        k(f"s_lshr_b32 s{sU}, s{sTT}, 1\ns_lshl_b32 s{sU}, s{sU}, 11\ns_add_u32 s{sU}, s{sU}, {FL_U}")
        k("s_waitcnt vmcnt(0)")
        gsync()
        probe(0x3fff, us)
        sp('upr')
        if so:
            k(f"v_mul_u32_u24 v{vP}, 2560, v{vL}\ns_add_u32 s{sU}, s{sAo}, 2556")
            smode[0] = True
        else:
            k(f"s_lshl_b32 s{sU}, s{sT64}, 10\ns_add_u32 s{sU}, s{sU}, {FL_O}")
    sp('upoll')
    k(f"s_setprio {oprio}")
    if o2:
        ul = aloads(range(20, 47), [i % 10 for i in range(27)])
        for e in ul[:10]: e()
        side = {i + 1: [ul[10 + i]] for i in range(17)}
        wr = [lambda p=p: lop("ww", f"ds_write_b128 v{vFw}, {v(af+40+4*p,4)} offset:{1024*p}") for p in range(10)]
        for i, e in deal(wr, 10, 2).items(): side[i] = side[i] + e
        for i, e in deal(wpieces(12, L_W + 9 * 5120, 40, "b3"), 17, 2).items(): side[i] = side.get(i, []) + e
        side[18] = [lambda: probe_load(0xff, vQ + 2, 1)] + side[18]
        sOd = sMask
        ofirst = aloads(range(10), range(10, 20))
        def arrive2():
            k(f"s_waitcnt lgkmcnt({lnewer('ww')})"); arrive()
        def otry():
            k(f"s_waitcnt vmcnt({newer({'of'})})")
            novm[0] = True
            probe_check(0xff, vQ + 2)
            k(f"s_cmp_eq_u64 vcc, 0\ns_cselect_b32 s{sOd}, 1, 0")
        def cond(e):
            def f_():
                l = k.lab("oc")
                k(f"s_cmp_eq_u32 s{sOd}, 0\ns_cbranch_scc1 {l}")
                e()
                k.label(l)
            return f_
        side.update(deal([cond(e) for e in ofirst], 22, 2))
        seq = [(1 + i if i < 19 else i - 18, 20 + i, i % 10) for i in range(27)]
        compute(seq, side, {7: arrive, 9: peek, 10: check, 15: arrive2, 16: peek, 17: check, 22: otry})
        novm[0] = False
        sp('o4')
        late = k.lab("olate"); join = k.lab("ojoin")
        k(f"s_cmp_eq_u32 s{sOd}, 0\ns_cbranch_scc1 {late}")
        k.label(join)
        sp('c3')
        lds_wait(L_F + F_OC, vQ, vQ + 1, 1)
        k("s_setprio 3")
        ld[:] = []
        oregs = list(range(10, 20)) + list(range(10))
        seq4 = [(("T", i), i, oregs[i]) for i in range(12)] + [(9 + i, 12 + i, oregs[12 + i]) for i in range(8)]
        def b3_arrive():
            k(f"s_waitcnt vmcnt({newer({'b3'})})"); arrive()
        compute(seq4, deal(aloads(range(10, 20), range(10)), 0, 2), {6: b3_arrive, 8: peek, 9: check})
    else:
        ul = aloads(range(20, 40), range(20))
        for e in ul[:8]: e()
        side = deal(ul[8:], 0, 2)
        side.update(deal(aloads(range(40, 47), range(7)), 8, 4))
        side.update(deal(wpieces(39, L_W + 5120, 40, "b2"), 10, 2))
        def oflag():
            probe_load(0xff, vQ + 2, 1)
        side[16] = [oflag]
        if xl:
            side[15] = [lambda: xload(0), lambda: xload(1)]; side[17] = [lambda: xload(2), lambda: xload(3)]; side[18] = [lambda: xload(4)]
        compute([(1 + i, 20 + i, i) for i in range(19)], side, {7: arrive, 9: peek, 10: check})
        sp('o4')
        k(f"s_waitcnt vmcnt(0)")
        gsync()
        late = k.lab("olate"); join = k.lab("ojoin")
        probe_check(0xff, vQ + 2)
        k(f"s_cbranch_vccnz {late}")
        seq3 = [(1 + i, 39 + i, ([19] + list(range(7)))[i]) for i in range(8)]
        oregs = list(range(7, 19)) + [19] + list(range(7))
        save = list(vm)
        em = wpieces(12, L_W + 9 * 5120, 40, "b3") + aloads(range(12), oregs[:12])
        compute(seq3, deal(em, 0, 3))
        k.label(join)
        sp('c3')
        lds_wait(L_F + F_OC, vQ, vQ + 1, 1)
        k("s_setprio 3")
        ld[:] = []
        seq4 = [(("T", i), i, oregs[i]) for i in range(12)] + [(9 + i, 12 + i, oregs[12 + i]) for i in range(8)]
        def b3_arrive():
            k(f"s_waitcnt vmcnt({newer({'b3'})})"); arrive()
        compute(seq4, deal(aloads(range(12, 20), oregs[12:]), 0, 2), {6: b3_arrive, 8: peek, 9: check})
        vm_fast = None
    sp('odone')
    k.srd(sXo, P_OUT, SZ_Q)
    k(f"s_mov_b32 s{sT}, 0xffff0000")
    t = wb[0]
    for u in range(5):
        for hh in range(2):
            k(f"v_lshlrev_b32 v{t+4*u+2*hh}, 16, v{xr+2*u+hh}\nv_and_b32 v{t+4*u+2*hh+1}, s{sT}, v{xr+2*u+hh}")
    for i in range(20):
        k(f"v_add_f32 v{t+i}, v{t+i}, v{oacc+i}")
    for u in range(5):
        k(f"v_cvt_pk_bf16_f32 v{xr+2*u}, v{t+4*u}, v{t+4*u+1}\nv_cvt_pk_bf16_f32 v{xr+2*u+1}, v{t+4*u+2}, v{t+4*u+3}")
    for u in range(5):
        k(f"buffer_store_dwordx2 {v(xr+2*u,2)}, v{vXo}, s[{sXo}:{sXo+3}], s{sXof} offen offset:{32*u} {oc}")
    ne = k.lab("ne")
    k(f"s_or_b32 s{sT}, s2, s{sW}\ns_cbranch_scc1 {ne}\ns_mov_b32 s{sT}, {hx(FL_E)}")
    gset(f"s{sT}", vP, vQ)
    k.label(ne)
    k.endpgm(P_WS, 3)
    k.label(late)
    if o2:
        probe(0xff, 1)
        for e in ofirst: e()
    else:
        vm[:] = save; ld[:] = []
        compute(seq3, deal(wpieces(12, L_W + 9 * 5120, 40, "b3"), 0, 2))
        probe(0xff, 1)
        for e in aloads(range(12), oregs[:12]): e()
    k(f"s_branch {join}")
    for sl, ok, st, r in cold3:
        a0 = af + 4*r
        k.label(sl)
        k("s_sleep 1")
        aloads([st], [r])[0]()
        k(f"s_waitcnt vmcnt(0)\nv_max3_u32 v{vQ+1}, v{a0}, v{a0+1}, v{a0+2}\nv_max_u32 v{vQ+1}, v{vQ+1}, v{a0+3}\nv_cmp_eq_u32 vcc, -1, v{vQ+1}\ns_cbranch_vccz {ok}")
        again(sl)
        k(f"s_branch {ok}")
    for sl, ok in cold2:
        k.label(sl)
        spinw(vXa, f"s{sCnt}")
        k(f"s_branch {ok}")
    for sl, need, ok in cold:
        k.label(sl)
        spinw(vFa, need)
        k(f"s_branch {ok}")
    k.label(end)
    k("s_endpgm")
    return k
```

```python
from common import *
import os, math
from k2parts import emit_repack
import attn2, attn3
from attn2 import ATT_LDS, CH

MX = os.environ.get('MX', '')
SP = os.environ.get('SP', 'p1,p2,p3,p4').split(',')
QSCALE = math.log2(math.e) / math.sqrt(20.0)
GC0 = -2.0 * math.sqrt(2.0 / math.pi) * math.log2(math.e)
GC1 = GC0 * 0.044715

L_A = ATT_LDS
L_Z = L_A + 3 * 16384
L_W = L_A - 4096
L_CS = L_Z + 6 * 8192
L_F = L_CS + 2048
F_G, F_OC, F_XC, F_GO, F_XR, F_AUX = 32, 48, 52, 56, 60, 64
MEGA_LDS = L_F + 128
F_QS, F_STS, F_KVS, F_CS = 2 * CH, 2 * CH + 12288, 2 * CH + 12800, 2 * CH + 18176
F_B, F_S = ATT_LDS // 3, 20480
NAME = "parallel_sum__grouped_kv_mqa__mixer_gmlp__prompt_kernel"

def gen_mega(noatt=False, patz='33033303', pats='33333333', lprio=0, seam=True, oprio=0, pf='gis', ntx='', ntw='', repw='g', cpf=True, pslp=1, deep=False, tb=False, wfat=6, rprio=3, yph=3, thr=None, bal=3, ldot=True, xst=2, frot=0, orot=False, tsplit=12, prot=None, sent=False, oc='', lq=4, lk=5, xstk=2, bal33=True, noex=True, spe=True, two=True, ev=(0, 0, 0, 0, 27, 28), zpf=0, kvq=True, so=False, pkv=0, gr=23, m42=1, wt=0, us=2, xl=False, o2=True, ist=5, pb=True, zrot=None):
    k = Kern(NAME, 256, 768, MEGA_LDS, 168, sgprs=100)
    P_X, P_WQ, P_WK, P_WV, P_WO = 44, 46, 48, 50, 52
    P_WIN, P_WSP, P_BSP, P_WOUT, P_OUT, P_DBG, P_WS = 56, 58, 60, 62, 64, 66, 68
    sWid, sTok, sBlk, sTB, sFG, sBud = 3, 4, 5, 6, 7, 70
    sT64, sHG = 98, 99
    sNo = 96
    sFl = 72
    vL = 1
    end = k.lab("end"); gem = k.lab("gem")
    k(f"s_cmp_ge_u32 s2, 256\ns_cbranch_scc1 {end}")
    k.stamp(0); k.stamp_rt(5)
    k(f"s_load_dwordx8 s[{P_X}:{P_X+7}], s[0:1], {KA_X}\ns_load_dwordx2 s[{P_WO}:{P_WO+1}], s[0:1], {KA_WO}")
    k(f"s_load_dwordx8 s[{P_WIN}:{P_WIN+7}], s[0:1], {KA_WIN}\ns_load_dwordx4 s[{P_OUT}:{P_OUT+3}], s[0:1], {KA_OUT}\ns_load_dwordx2 s[{P_WS}:{P_WS+1}], s[0:1], {KA_WS}")
    k(f"""v_lshrrev_b32 v2, 6, v0
    v_and_b32 v1, 63, v0
    v_readfirstlane_b32 s{sWid}, v2
    v_and_b32 v2, 31, v0
    v_lshlrev_b32 v2, 2, v2
    v_add_u32 v2, {L_F}, v2
    v_mov_b32 v3, 0
    ds_write_b32 v2, v3
    v_and_b32 v2, 3, v0
    v_lshlrev_b32 v2, 8, v2
    v_add_u32 v2, {L_CS}, v2
    ds_write_b32 v2, v3
    s_and_b32 s{sTB}, s2, 7
    s_lshl_b32 s{sBlk}, s{sTB}, 5
    s_lshr_b32 s{sTok}, s2, 3
    s_add_u32 s{sBlk}, s{sBlk}, s{sTok}
    s_lshl_b32 s{sTok}, s{sBlk}, 3
    s_add_u32 s{sTok}, s{sTok}, s{sWid}
    s_lshl_b32 s{sTB}, s{sTB}, 1
    s_bfe_u32 s{sFG}, s2, 0x10003
    s_add_u32 s{sTB}, s{sTB}, s{sFG}
    s_lshr_b32 s{sFG}, s2, 4
    s_and_b32 s{sT64}, s2, 7
    s_lshl_b32 s{sT64}, s{sT64}, 2
    s_bfe_u32 s{sHG}, s2, 0x20003
    s_add_u32 s{sT64}, s{sT64}, s{sHG}
    s_lshr_b32 s{sHG}, s2, 5
    s_mov_b32 s{sBud}, 400000
    s_waitcnt lgkmcnt(0)""")
    if m42:
        k(f"""s_bfe_u32 s{sTB}, s2, 0x20001
        s_lshl_b32 s{sTB}, s{sTB}, 2
        s_bfe_u32 s{sFG}, s2, 0x20003
        s_add_u32 s{sTB}, s{sTB}, s{sFG}
        s_and_b32 s{sFG}, s2, 1
        s_mul_i32 s{sFG}, s{sFG}, 7
        s_add_u32 s{sFG}, s{sFG}, s{sHG}""")
    k.srd(sFl, P_WS, SZ_FLAG, WS_FLAG)
    k(f"s_load_dwordx2 s[{sNo}:{sNo+1}], s[{sFl}:{sFl+1}], {hx(FL_E)}")
    k(f"s_cmp_ge_u32 s{sWid}, 8\ns_cbranch_scc1 {gem}")

    def again(l):
        k(f"s_sub_u32 s{sBud}, s{sBud}, 1\ns_cbranch_scc0 {l}")
    def lds_wait(addr, va, vd, slp=1):
        val = {F_XR: 8, F_GO: 4, F_OC: 10, F_XC: 1}[addr - L_F]
        l = k.lab("lw"); d = k.lab("lwd")
        k(f"v_mov_b32 v{va}, {addr}")
        k.label(l)
        k(f"ds_read_b32 v{vd}, v{va}\ns_waitcnt lgkmcnt(0)\nv_cmp_gt_u32 vcc, {val}, v{vd}\ns_cbranch_vccz {d}\ns_sleep {slp}")
        again(l)
        k.label(d)
    def lds_set(addr, va, vd):
        k(f"v_mov_b32 v{va}, {addr}\nv_mov_b32 v{vd}, 1\nds_write_b32 v{va}, v{vd}")
    def gcheck(vd):
        k(f"v_cmp_ne_u64 vcc, s[{sNo}:{sNo+1}], {v(vd,2)}")
    def gload(soff, voff, vd):
        return f"buffer_load_dwordx2 {v(vd,2)}, v{voff}, s[{sFl}:{sFl+3}], {soff} offen sc1"
    def gpoll(soff, voff, vd, mask, slp):
        l = k.lab("pl"); d = k.lab("pd")
        if mask is not None: k(f"s_mov_b64 exec, {hx(mask)}")
        k.label(l)
        k(gload(soff, voff, vd))
        k("s_waitcnt vmcnt(0)")
        gcheck(vd)
        k(f"s_cbranch_vccz {d}\ns_sleep {slp}")
        again(l)
        k.label(d)
        if mask is not None: k("s_mov_b64 exec, -1")
    def gset(soff, va, vd):
        k(f"""v_mov_b32 v{vd}, s{sNo}
        v_mov_b32 v{vd+1}, s{sNo+1}
        v_lshlrev_b32 v{va}, 3, v{vL}
        s_mov_b64 exec, 0xffff
        buffer_store_dwordx2 {v(vd,2)}, v{va}, s[{sFl}:{sFl+3}], {soff} offen sc1
        s_mov_b64 exec, -1""")
    def spoll(offs, s0, slp=1):
        l = k.lab("sp"); r = k.lab("spr"); d = k.lab("spd")
        k.label(l)
        for i, (so, im) in enumerate(offs):
            k(f"s_load_dwordx2 s[{s0+2*i}:{s0+2*i+1}], s[{sFl}:{sFl+1}], s{so} offset:{hx(im)} glc")
        k("s_waitcnt lgkmcnt(0)")
        for i in range(len(offs)):
            k(f"s_cmp_eq_u64 s[{s0+2*i}:{s0+2*i+1}], s[{sNo}:{sNo+1}]")
            k(f"s_cbranch_scc0 {r}" if i + 1 < len(offs) else f"s_cbranch_scc1 {d}")
        k.label(r)
        k(f"s_sleep {slp}")
        again(l)
        k.label(d)
    def nonce():
        k(f"s_waitcnt lgkmcnt(0)\ns_add_u32 s{sNo}, s{sNo}, 1")

    sX, sO, sT, sMask = 8, 12, 16, 24
    raw, f, st, vA = 4, 12, 28, 30
    nz = k.lab("nz")
    skipA = k.lab("skipA"); skipG = k.lab("skipG")
    if "skip" in MX and "gonly" in MX:
        k("s_barrier"); k.endpgm(P_WS, 4)
    if "skip" in MX: k(f"s_barrier\ns_mov_b32 s27, 1\ns_branch {skipA}")
    k.srd(sX, P_X, SZ_Q)
    k(f"s_mul_i32 s{sT}, s{sTok}, 1280\nv_lshlrev_b32 v{vA}, 4, v{vL}\ns_mov_b32 s{sMask}, 0xffff0000")
    for i in range(4, 8):
        k(f"v_mov_b32 v{raw+i}, 0")
    k(f"buffer_load_dwordx4 {v(raw,4)}, v{vA}, s[{sX}:{sX+3}], s{sT} offen {ntx}")
    k("s_mov_b64 exec, 0xffff")
    k(f"buffer_load_dwordx4 {v(raw+4,4)}, v{vA}, s[{sX}:{sX+3}], s{sT} offen offset:1024 {ntx}")
    k("s_mov_b64 exec, -1")
    def touch(idx, nq):
        k(f"s_mul_i32 s{sT+2}, s{idx}, {nq*128}\ns_lshl_b32 s{sT+3}, s{idx}, 7\ns_mov_b64 exec, {hx((1 << nq) - 1)}")
        k(f"buffer_load_dword v{vA+2}, v{vA+1}, s[28:31], s{sT+2} offen\ns_mov_b64 exec, 1")
        k(f"buffer_load_dword v{vA+2}, v{vA+1}, s[32:35], s{sT+3} offen")
        k(f"buffer_load_dword v{vA+2}, v{vA+1}, s[36:39], s{sT+3} offen\ns_mov_b64 exec, -1")
    k(f"v_lshlrev_b32 v{vA+1}, 7, v{vL}\ns_and_b32 s{sT+1}, s{sTok}, 255")
    k.srd(28, P_WQ, 640*1280); k.srd(32, P_WK, 25600); k.srd(36, P_WV, 25600)
    if 'g' in pf and kvq:
        k(f"s_lshl_b32 s{sT+1}, s2, 3\ns_add_u32 s{sT+1}, s{sT+1}, s{sWid}")
        touch(sT + 1, 4)
        if ist == -1:
            k.srd(sO, P_WIN, 640*3456)
            k(f"s_mul_i32 s{sT+2}, s{sT+1}, {10*128}\ns_mov_b64 exec, 0x3ff")
            k(f"buffer_load_dword v{vA+2}, v{vA+1}, s[{sO}:{sO+3}], s{sT+2} offen\ns_mov_b64 exec, -1")
    elif 'g' in pf: touch(sTok, 4)
    elif 'x' in pf: touch(sT + 1, 25)
    k.srd(sO, P_WS, SZ_XN, WS_XN)
    nonce()
    sXt = 20
    def xn_compute(kvg=False):
        if 'g' in pf and 'x' in pf:
            k("s_waitcnt vmcnt(0)")
            if not kvg:
                k(f"s_and_b32 s{sXt}, s{sTok}, 255\ns_mul_i32 s{sXt+1}, s{sXt}, {29*128}\ns_mov_b64 exec, {hx((1 << 29) - 1)}")
                k(f"buffer_load_dword v{vA+2}, v{vA+1}, s[28:31], s{sXt+1} offen\ns_mov_b64 exec, -1")
            if 'b' in pf: k("s_barrier")
        else:
            k(f"s_waitcnt vmcnt({4 if ist == -1 else 3})" if ('x' in pf or 'g' in pf) else "s_waitcnt vmcnt(0)")
        for i in range(8):
            k(f"v_lshlrev_b32 v{f+2*i}, 16, v{raw+i}\nv_and_b32 v{f+2*i+1}, s{sMask}, v{raw+i}")
        k(f"v_add_f32 v{st}, v{f}, v{f+1}\nv_mul_f32 v{st+1}, v{f}, v{f}")
        for i in range(1, 16):
            if i > 1: k(f"v_add_f32 v{st}, v{st}, v{f+i}")
            k(f"v_fmac_f32 v{st+1}, v{f+i}, v{f+i}")
        for m in ("row_shr:1", "row_shr:2", "row_shr:4", "row_shr:8"):
            k("s_nop 0")
            for i in range(2):
                k(f"v_add_f32_dpp v{st+i}, v{st+i}, v{st+i} {m} row_mask:0xf bank_mask:0xf bound_ctrl:0")
        for m in ("row_bcast:15 row_mask:0xa", "row_bcast:31 row_mask:0xc"):
            k("s_nop 0")
            for i in range(2):
                k(f"v_add_f32_dpp v{st+i}, v{st+i}, v{st+i} {m} bank_mask:0xf")
        k(f"""v_mul_f32 v{st}, {fl(1.0/640)}, v{st}
        v_mul_f32 v{st+1}, {fl(1.0/640)}, v{st+1}
        v_fma_f32 v{st+1}, -v{st}, v{st}, v{st+1}
        v_max_f32 v{st+1}, 0, v{st+1}
        v_add_f32 v{st+1}, {fl(1e-5)}, v{st+1}
        v_rsq_f32 v{st+1}, v{st+1}
        s_mul_i32 s{sXt+2}, s{sTok}, {XN_ST}
        v_mul_f32 v{st}, v{st}, v{st+1}
        s_nop 0
        v_readlane_b32 s{sXt}, v{st+1}, 63
        v_readlane_b32 s{sXt+1}, v{st}, 63
        s_nop 1
        v_mov_b32 v{st}, s{sXt+1}""")
        for i in range(16):
            k(f"v_fma_f32 v{f+i}, v{f+i}, s{sXt}, -v{st}")
        for i in range(8):
            k(f"v_cvt_pk_bf16_f32 v{raw+i}, v{f+2*i}, v{f+2*i+1}")
        k(f"buffer_store_dwordx4 {v(raw,4)}, v{vA}, s[{sO}:{sO+3}], s{sXt+2} offen sc1")
        k("s_mov_b64 exec, 0xffff")
        k(f"buffer_store_dwordx4 {v(raw+4,4)}, v{vA}, s[{sO}:{sO+3}], s{sXt+2} offen offset:1024 sc1")
        if ist is not None: pass
        elif 'i' in pf and kvq and not kvg:
            k.srd(sO, P_WIN, 640*3456)
            k(f"s_lshl_b32 s{sXt}, s2, 3\ns_add_u32 s{sXt}, s{sXt}, s{sWid}\ns_mul_i32 s{sXt}, s{sXt}, {10*128}\ns_mov_b64 exec, 0x3ff")
            k(f"buffer_load_dword v{vA+2}, v{vA+1}, s[{sO}:{sO+3}], s{sXt} offen")
        elif 'i' in pf and not kvq:
            k.srd(sO, P_WIN, 640*3456)
            k(f"s_mul_i32 s{sXt}, s{sTok}, {9*128}\ns_mov_b64 exec, 0x1ff")
            k(f"buffer_load_dword v{vA+2}, v{vA+1}, s[{sO}:{sO+3}], s{sXt} offen")
        k("s_mov_b64 exec, -1")
    a = Alloc(36)
    fa = a(16, 4); fc = a(4, 4); fsx = a(4, 4)
    fX = [a(16, 4), a(16, 4)]; fW = [a(16, 4), a(16, 4)]
    fXa = a(4, 1); fWa = a()
    fN, fH = a(), a()
    fO = a(2, 2); fT = a(12, 4); fK = a(2, 2); fKa = a()
    assert a.n <= 168, a.n
    sI, sD, sKd, sB0 = 25, 26, 27, 28
    QS, STS, KVS = F_QS, F_STS, F_KVS
    k(f"""v_and_b32 v{fN}, 31, v{vL}
    v_lshrrev_b32 v{fH}, 5, v{vL}
    v_mov_b32 v{fO}, 0x3f803f80
    v_mov_b32 v{fO+1}, 0x3f803f80
    s_mov_b32 s{sKd}, 0
    s_lshl_b32 s{sT}, s{sWid}, 7
    v_lshl_add_u32 v{fKa}, v{vL}, 10, s{sT}""")
    def f_addr(rowb, woff):
        k(f"""v_bfe_u32 v{fT}, v{fN}, 1, 3
        v_xor_b32 v{fT}, v{fT}, v{fH}
        s_and_b32 s{sT}, s{sWid}, 1
        s_lshl_b32 s{sT}, s{sT}, 12
        s_add_u32 s{sT}, s{sT}, {F_B}
        v_lshl_add_u32 v{fT+1}, v{fN}, 7, s{sT}""")
        for q in range(4):
            k(f"v_xor_b32 v{fT+2}, {2*q}, v{fT}\nv_lshl_add_u32 v{fXa+q}, v{fT+2}, 4, v{fT+1}")
        k(f"""v_bfe_u32 v{fT}, v{vL}, 2, 2
        v_lshl_add_u32 v{fT}, v{fH}, 3, v{fT}
        v_mul_u32_u24 v{fT}, {rowb}, v{fT}
        v_bfe_u32 v{fT+1}, v{vL}, 4, 1
        v_lshl_add_u32 v{fT}, v{fT+1}, 5, v{fT}
        v_and_b32 v{fT+1}, 3, v{vL}
        v_lshl_add_u32 v{fT}, v{fT+1}, 3, v{fT}
        s_add_u32 s{sT}, {woff}, {F_B+8192}
        v_add_u32 v{fWa}, s{sT}, v{fT}""")
        if rowb == 192:
            k(f"s_and_b32 s{sT}, s{sHG}, 1\ns_lshl_b32 s{sT}, s{sT}, 5\nv_add_u32 v{fWa}, s{sT}, v{fWa}")
        for r in list(range(fa, fa + 16)) + list(range(fc, fc + 4)) + list(range(fsx, fsx + 4)):
            k(f"v_mov_b32 v{r}, 0")
    def f_pass(kind, rowb, first):
        uo = (0, 64, 128) if rowb == 192 else (0, 4096)
        xs_ = xst if rowb == 192 else xstk
        cf = lambda b: fX[0] + 32 * b
        def rd(b):
            r = []
            if kind == 'i': return r
            if kind == 'x':
                for u, o in enumerate(uo):
                    for q in range(2):
                        d = cf(b) + 8*u + 4*q
                        r.append(f"ds_read_b64_tr_b16 {v(d,2)}, v{fWa} offset:{o+16*rowb*q}")
                        r.append(f"ds_read_b64_tr_b16 {v(d+2,2)}, v{fWa} offset:{o+16*rowb*q+4*rowb}")
                return r
            for q in range(4):
                r.append(f"ds_read_b128 {v(fX[b]+4*q,4)}, v{fXa+q}")
                r.append(f"ds_read_b64_tr_b16 {v(fW[b]+4*q,2)}, v{fWa} offset:{16*rowb*q}")
                r.append(f"ds_read_b64_tr_b16 {v(fW[b]+4*q+2,2)}, v{fWa} offset:{16*rowb*q+4*rowb}")
            return r
        def adv():
            if kind == 'i': return
            k(f"s_mov_b32 s{sD}, {F_S}\ns_cmp_eq_u32 s{sI}, 5\ns_cmov_b32 s{sD}, {hx(-5*F_S)}")
            if kind != 'x':
                for q in range(4): k(f"v_add_u32 v{fXa+q}, s{sD}, v{fXa+q}")
            k(f"v_add_u32 v{fWa}, s{sD}, v{fWa}")
        def work(b, r):
            w = []
            if kind in 'ns':
                for q in range(4):
                    X, W = fX[b] + 4*q, fW[b] + 4*q
                    A_, B_ = (X, W) if kind == 's' else (W, X)
                    w.append(f"v_mfma_f32_32x32x16_bf16 {v(fa,16)}, {v(A_,4)}, {v(B_,4)}, {v(fa,16)}")
                for x in interleave(w[:3], r) + w[3:]: k(x)
            elif kind == 'x':
                for x in r: k(x)
                for j in range(4):
                    for u in range(len(uo)):
                        k(f"v_mfma_f32_4x4x4_16b_bf16 {v(fa+4*u,4)}, {v(fO,2)}, {v(cf(b)+8*u+2*j,2)}, {v(fa+4*u,4)}")
                    if len(uo) == 2: k("s_nop 0")
        loop = k.lab("fl"); nb = k.lab("fnb"); e1 = k.lab("fe1"); e2 = k.lab("fe2"); e3 = k.lab("fe3")
        n = len(rd(0))
        k(f"s_mov_b32 s{sI}, 0\ns_barrier")
        for x in rd(0): k(x)
        k.label(loop)
        def xn_wait():
            if first:
                k(f"s_cmp_lg_u32 s{sI}, {xs_ + (1 if pb else 0)}\ns_cbranch_scc1 {e1}\ns_waitcnt vmcnt({1 if ('i' in pf and ist is None and not (kvq and rowb == 40)) else 0})")
                k.label(e1)
        def xn_flag():
            if first and kind == 'x':
                k(f"s_cmp_lg_u32 s{sI}, {xs_ + (1 if pb else 0)}\ns_cbranch_scc1 {e2}\ns_cmp_lg_u32 s{sWid}, 7\ns_cbranch_scc1 {e2}\ns_lshl_b32 s{sT}, s{sBlk}, 7")
                gset(f"s{sT}", fT + 4, fT + 6)
                k.label(e2)
        adv()
        if not pb: xn_wait()
        k("s_waitcnt lgkmcnt(0)" + ("" if pb else "\ns_barrier"))
        work(0, rd(1))
        if not pb: xn_flag()
        k(f"s_add_u32 s{sI}, s{sI}, 1")
        adv()
        if pb: xn_wait()
        k(f"s_cmp_eq_u32 s{sI}, 9\ns_waitcnt lgkmcnt(0)\ns_cbranch_scc1 {nb}\ns_barrier")
        k.label(nb)
        if pb: xn_flag()
        work(1, rd(0))
        if rowb == 192 and first and ist is not None and ist >= 0:
            e5 = k.lab("fe5")
            k(f"s_cmp_lg_u32 s{sI}, {ist}\ns_cbranch_scc1 {e5}")
            k.srd(sO, P_WIN, 640*3456)
            k(f"s_lshl_b32 s{sXt}, s2, 3\ns_add_u32 s{sXt}, s{sXt}, s{sWid}\ns_mul_i32 s{sXt}, s{sXt}, {10*128}\ns_mov_b64 exec, 0x3ff")
            k(f"buffer_load_dword v{vA+2}, v{vA+1}, s[{sO}:{sO+3}], s{sXt} offen\ns_mov_b64 exec, -1")
            k.label(e5)
        if rowb == 192:
            k(f"s_cmp_lg_u32 s{sI}, 7\ns_cbranch_scc1 {e3}\ns_mov_b32 s{sT}, {FL_Q}\ns_mov_b64 exec, 0xff")
            k(gload(f"s{sT}", fKa, fK))
            k("s_mov_b64 exec, -1")
            k.label(e3)
        k(f"s_add_u32 s{sI}, s{sI}, 1\ns_cmp_lt_u32 s{sI}, 10\ns_cbranch_scc1 {loop}")
        k("s_waitcnt lgkmcnt(0)")
    def kv_try():
        e = k.lab("kt")
        k("s_waitcnt vmcnt(0)\ns_mov_b64 exec, 0xff")
        gcheck(fK)
        k(f"s_mov_b64 exec, -1\ns_cbranch_vccnz {e}\ns_mov_b32 s{sKd}, 1")
        kv_first()
        k.label(e)
    def kv_first():
        k.srd(sB0, P_WS, SZ_KVG, WS_KV)
        k(f"""s_mul_i32 s{sT}, s{sWid}, {KV_G}
        s_mul_i32 m0, s{sWid}, {KV_TILE}
        v_lshlrev_b32 v{fT+8}, 4, v{vL}
        buffer_load_dwordx4 v{fT+8}, s[{sB0}:{sB0+3}], s{sT} offen sc1 lds
        buffer_load_dwordx4 v{fT+8}, s[{sB0}:{sB0+3}], s{sT} offen offset:1024 sc1 lds
        buffer_load_dwordx4 v{fT+8}, s[{sB0}:{sB0+3}], s{sT} offen offset:{KV_TILE-1024} sc1 lds""")
    def f_stats(nu):
        k(f"""s_and_b32 s{sT}, s{sWid}, 1
        s_lshl_b32 s{sT}, s{sT}, 2
        s_add_u32 s{sT}, s{sT}, {F_CS}
        v_lshlrev_b32 v{fT}, 4, v{fN}
        v_lshl_add_u32 v{fT}, v{fH}, 3, v{fT}
        v_add_u32 v{fT}, s{sT}, v{fT}""")
        for u in range(nu): k(f"ds_write_b32 v{fT}, v{fa+4*u} offset:{512*u}")
        k("s_waitcnt lgkmcnt(0)")
    def f_fold(swap):
        k(f"""s_lshr_b32 s{sT}, s{sWid}, 1
        s_lshl_b32 s{sT}, s{sT}, 9
        s_add_u32 s{sT}, s{sT}, {F_CS}
        v_lshlrev_b32 v{fT}, 4, v{fN}
        v_lshl_add_u32 v{fT}, v{fH}, 3, v{fT}
        v_add_u32 v{fT}, s{sT}, v{fT}
        ds_read_b64 {v(fc,2)}, v{fT}
        s_and_b32 s{sT}, s{sWid}, 1
        s_lshl_b32 s{sT}, s{sT}, 7
        s_add_u32 s{sT}, s{sT}, {STS}
        v_lshl_add_u32 v{fT}, v{fN}, 2, s{sT}
        ds_read_b32 v{fT+4}, v{fT}
        ds_read_b32 v{fT+5}, v{fT} offset:256
        s_waitcnt lgkmcnt(2)
        v_add_f32 v{fc+2}, v{fc}, v{fc+1}
        v_and_b32 v{fc+3}, s{sMask}, v{fc+2}
        v_sub_f32 v{fc+2}, v{fc+2}, v{fc+3}
        v_cvt_pk_bf16_f32 v{fc}, v{fc+3}, v{fc+3}
        v_cvt_pk_bf16_f32 v{fc+1}, v{fc+2}, 0
        s_waitcnt lgkmcnt(0)
        v_and_b32 v{fT+2}, s{sMask}, v{fT+4}
        v_sub_f32 v{fT+3}, v{fT+4}, v{fT+2}
        v_cvt_pk_bf16_f32 v{fT+6}, -v{fT+2}, -v{fT+3}
        v_cvt_pk_bf16_f32 v{fT+7}, -v{fT+2}, 0
        s_nop 1""")
        A_, B_ = (fT + 6, fc) if swap else (fc, fT + 6)
        k(f"v_mfma_f32_32x32x8_bf16 {v(fa,16)}, {v(A_,2)}, {v(B_,2)}, {v(fa,16)}")
    qp = k.lab("qp"); kx = k.lab("kx"); ki = k.lab("ki"); kvv = k.lab("kvv"); kj = k.lab("kj"); q1 = k.lab("q1"); q1x = k.lab("q1x"); qe = k.lab("qe"); qj = k.lab("qj"); q2x = k.lab("q2x")
    pk = fX[0]
    k(f"s_cmp_lg_u32 s{sHG}, 7\ns_cbranch_scc1 {q1}")
    k(f"""s_lshr_b32 s{sT+1}, s{sWid}, 1
    s_lshl_b32 s{sT+1}, s{sT+1}, 12
    s_and_b32 s{sT+3}, s{sWid}, 1
    s_mul_i32 s{sT+2}, s{sT+3}, {32*40}
    s_cmp_ge_u32 s{sWid}, 6
    s_cselect_b32 s{sT+1}, s{sT+2}, s{sT+1}
    s_mul_i32 s{sT+3}, s{sT+3}, {KV_G}
    s_add_u32 s{sT+3}, s{sT+3}, {KVS}""")
    f_addr(40, f"s{sT+1}")
    xn_compute(True)
    k(f"s_cmp_ge_u32 s{sWid}, 6\ns_cbranch_scc1 {kx}\ns_cmp_ge_u32 s{sWid}, 4\ns_cbranch_scc1 {ki}\ns_cmp_ge_u32 s{sWid}, 2\ns_cbranch_scc1 {kvv}")
    f_pass('n', 40, True)
    k("s_barrier")
    f_fold(False)
    k(f"v_lshl_add_u32 v{fT}, v{vL}, 4, s{sT+3}\nv_lshl_add_u32 v{fT+1}, v{fN}, 2, s{sT+3}\ns_nop 7\ns_nop 1")
    for i in range(12): k(f"v_mul_f32 v{fa+i}, v{fT+5}, v{fa+i}")
    for i in range(6): k(f"v_cvt_pk_bf16_f32 v{pk+i}, v{fa+2*i}, v{fa+2*i+1}")
    k(f"""v_permlane32_swap_b32 v{pk}, v{pk+2}
    v_permlane32_swap_b32 v{pk+1}, v{pk+3}
    ds_write_b128 v{fT}, {v(pk,4)} offset:{KV_KA}
    s_mov_b32 exec_hi, 0
    ds_write_b32 v{fT+1}, v{pk+4} offset:{KV_KB}
    ds_write_b32 v{fT+1}, v{pk+5} offset:{KV_KB+128}
    s_mov_b64 exec, -1
    s_branch {kj}""")
    k.label(kvv)
    f_pass('s', 40, True)
    k("s_barrier")
    f_fold(True)
    k(f"v_lshl_add_u32 v{fT}, v{fH}, 4, s{sT}")
    for j in range(4): k(f"ds_read_b128 {v(fW[0]+4*j,4)}, v{fT} offset:{256+32*j}")
    k(f"""v_mul_u32_u24 v{fT+1}, 336, v{fH}
    v_lshl_add_u32 v{fT+1}, v{fN}, 4, v{fT+1}
    v_add_u32 v{fT+1}, s{sT+3}, v{fT+1}
    v_cmp_eq_u32 vcc, 20, v{fN}
    s_nop 3
    s_waitcnt lgkmcnt(0)""")
    for i in range(16): k(f"v_mul_f32 v{fa+i}, v{fW[0]+i}, v{fa+i}")
    for i in range(8): k(f"v_cvt_pk_bf16_f32 v{pk+i}, v{fa+2*i}, v{fa+2*i+1}")
    for i in range(8): k(f"v_cndmask_b32 v{pk+i}, v{pk+i}, v{fO}, vcc")
    k(f"""s_mov_b32 exec_lo, 0x1fffff
    s_mov_b32 exec_hi, 0x1fffff
    ds_write_b128 v{fT+1}, {v(pk,4)} offset:{KV_V}
    ds_write_b128 v{fT+1}, {v(pk+4,4)} offset:{KV_V+672}
    s_mov_b64 exec, -1
    s_branch {kj}""")
    k.label(ki)
    f_pass('i', 40, True)
    k(f"s_barrier\ns_branch {kj}")
    k.label(kx)
    f_pass('x', 40, True)
    f_stats(2)
    k("s_barrier\ns_barrier")
    k.srd(sB0, P_WS, SZ_KVG, WS_KV)
    k(f"v_lshlrev_b32 v{fT+1}, 4, v{vL}\nv_add_u32 v{fT}, s{sT+3}, v{fT+1}")
    for i in range(3): k(f"ds_read_b128 {v(pk+4*i,4)}, v{fT} offset:{1024*i}")
    k(f"""s_lshl_b32 s{sT}, s{sT64}, 1
    s_and_b32 s{sT+1}, s{sWid}, 1
    s_add_u32 s{sT}, s{sT}, s{sT+1}
    s_mul_i32 s{sT+1}, s{sT}, {KV_G}
    s_waitcnt lgkmcnt(0)
    buffer_store_dwordx4 {v(pk,4)}, v{fT+1}, s[{sB0}:{sB0+3}], s{sT+1} offen sc1
    buffer_store_dwordx4 {v(pk+4,4)}, v{fT+1}, s[{sB0}:{sB0+3}], s{sT+1} offen offset:1024 sc1
    s_mov_b32 exec_hi, 0xff
    buffer_store_dwordx4 {v(pk+8,4)}, v{fT+1}, s[{sB0}:{sB0+3}], s{sT+1} offen offset:2048 sc1
    s_mov_b64 exec, -1
    s_lshl_b32 s{sT}, s{sT}, 7
    s_add_u32 s{sT}, s{sT}, {FL_Q}
    s_waitcnt vmcnt(0)""")
    gset(f"s{sT}", fT + 4, fT + 6)
    k("s_barrier")
    k(f"s_and_b32 s{sT+1}, s{sWid}, 1\ns_mul_i32 s{sT+1}, s{sT+1}, {32*192}")
    f_addr(192, f"s{sT+1}")
    f_pass('x', 192, False)
    k(f"s_branch {q2x}")
    k.label(kj)
    k("s_waitcnt lgkmcnt(0)\ns_barrier\ns_barrier")
    k(f"s_lshr_b32 s{sT+1}, s{sWid}, 1\ns_lshl_b32 s{sT+1}, s{sT+1}, 6")
    f_addr(192, f"s{sT+1}")
    f_pass('n', 192, False)
    k(f"s_branch {qe}")
    k.label(q1)
    k(f"""s_lshr_b32 s{sT+1}, s{sWid}, 1
    s_lshl_b32 s{sT+1}, s{sT+1}, 6
    s_and_b32 s{sT+2}, s{sWid}, 1
    s_mul_i32 s{sT+2}, s{sT+2}, {32*192}
    s_cmp_ge_u32 s{sWid}, 6
    s_cselect_b32 s{sT+1}, s{sT+2}, s{sT+1}""")
    f_addr(192, f"s{sT+1}")
    xn_compute()
    k(f"s_cmp_ge_u32 s{sWid}, 6\ns_cbranch_scc1 {q1x}")
    f_pass('n', 192, True)
    k.label(qe)
    k("s_barrier")
    f_fold(False)
    kv_try()
    k(f"""v_mul_f32 v{fT+5}, {fl(QSCALE)}, v{fT+5}
    s_and_b32 s{sT}, s{sWid}, 1
    s_mul_i32 s{sT}, s{sT}, {32*192}
    s_lshr_b32 s{sT+1}, s{sWid}, 1
    s_lshl_b32 s{sT+1}, s{sT+1}, 6
    s_add_u32 s{sT}, s{sT}, s{sT+1}
    s_add_u32 s{sT}, s{sT}, {QS}
    v_mul_u32_u24 v{fT}, 192, v{fN}
    v_lshl_add_u32 v{fT}, v{fH}, 3, v{fT}
    v_add_u32 v{fT}, s{sT}, v{fT}
    s_nop 1""")
    for i in range(16): k(f"v_mul_f32 v{fa+i}, v{fT+5}, v{fa+i}")
    for i in range(8): k(f"v_cvt_pk_bf16_f32 v{pk+i}, v{fa+2*i}, v{fa+2*i+1}")
    for j in range(4): k(f"ds_write_b64 v{fT}, {v(pk+2*j,2)} offset:{16*j}")
    k(f"s_waitcnt lgkmcnt(0)\ns_branch {qj}")
    k.label(q1x)
    f_pass('x', 192, True)
    k.label(q2x)
    f_stats(3)
    k("s_barrier")
    kv_try()
    k.label(qj)
    k.label(skipA)
    k(f"s_mov_b32 s40, s{sKd}\nv_mov_b32 v104, v{fKa}")
    def att_wait(step):
        t = 104
        d = k.lab("kvd")
        k(f"s_cmp_lg_u32 s40, 0\ns_cbranch_scc1 {d}\ns_mov_b32 s41, {FL_Q}")
        gpoll("s41", t, t + 2, 0xff, pslp)
        step()
        k.label(d)
    def att_tail(step):
        t = 104
        def pieces(p0, p1):
            for p in range(p0, p1):
                if p % 4 == 0:
                    k(f"s_mov_b32 m0, {1024*p}")
                    k("s_add_u32 s40, s40, 4096" if p else "s_nop 0")
                k(f"buffer_load_dwordx4 v{t}, s[28:31], s40 offen offset:{1024*(p%4)} sc1 lds")
        if step == 0:
            k(f"v_and_b32 v{t}, 31, v{vL}\nv_lshlrev_b32 v{t}, 7, v{t}\ns_mov_b32 s40, {FL_W}")
            k(gload("s40", t, t + 2))
            if so: lds_wait(L_F + F_XC, t + 4, t + 5, 2)
        elif "skip" in MX:
            pass
        elif step == 1:
            ok = k.lab("wfok")
            k("s_waitcnt vmcnt(12)")
            gcheck(t + 2)
            k(f"s_cbranch_vccz {ok}")
            gpoll("s40", t, t + 2, None, 4)
            k.label(ok)
            k.srd(28, P_WS, SZ_WF, WS_WF)
            k(f"s_lshr_b32 s40, s2, 5\ns_mul_i32 s40, s40, {47*5120}\nv_lshlrev_b32 v{t}, 4, v{vL}")
            pieces(0, tsplit)
            if not so: k(f"s_waitcnt vmcnt({tsplit})")
        else:
            pieces(tsplit, 60)
            k(f"v_mov_b32 v{t}, {L_F+F_OC}\nv_mov_b32 v{t+1}, 10\ns_waitcnt vmcnt(0)\nds_write_b32 v{t}, v{t+1}")
    n = (attn3 if two else attn2).emit_attn(k, sT64, sHG, sWid, vL, P_WS, 8, 4, 0, L_F, mega=att_wait, budget=sBud, gset=(None if so else gset), tb=tb, tail=att_tail, yph=yph, bal=bal)
    assert n <= 104, n

    k.label(gem)
    def sp(name):
        if name in SP: k.stamp(1 + SP.index(name))
    sA, sB, sO = 8, 12, 16
    sW, sCnt, sSoA, sBaseA, sSoB, sStepB, sM0A, sM0B, sMask, sNeed, sI = range(20, 31)
    sT = 32
    sTb, sM0F, sSoF = 40, 31, 71
    a = Alloc(2)
    vFw, vFa, vFl, vXw, vXa = a(), a(), a(), a(), a()
    vOne = a()
    acc = [a(16, 4), a(16, 4)]
    fs = [[[a(4, 4) for j in range(3)] for q in range(2)] for b in range(2)]
    z1 = a(16, 4); z2 = a(16, 4)
    vD = a(4, 1); vDb = a(2, 1)
    vWa = a(2, 1); vZa = a(4, 1)
    vBias = a(2, 2); vBias1 = vBias + 1
    vN, vH, vTok, vPg, vZf = a(), a(), a(), a(), a()
    vOnes = a(2, 2)
    vT = a(16, 4)
    assert a.n <= 168, a.n
    tmp = fs[1][0][0]
    sp('ka')
    k("s_setprio 3")
    k(f"""s_sub_u32 s{sW}, s{sWid}, 8
    v_lshrrev_b32 v{vT}, 3, v{vL}
    v_and_b32 v{vT+1}, 7, v{vL}
    s_lshl_b32 s{sT}, s{sTB}, 2
    s_add_u32 s{sT}, s{sT}, s{sW}
    s_mul_i32 s{sBaseA}, s{sT}, {32*1280}
    s_lshl_b32 s{sM0A}, s{sW}, 12
    s_add_u32 s{sM0A}, s{sM0A}, {L_A}
    s_lshl_b32 s{sM0B}, s{sW}, 11
    s_add_u32 s{sM0B}, s{sM0B}, {L_Z}""")
    def a_addr(stride):
        k(f"v_lshrrev_b32 v{vT}, 3, v{vL}\nv_and_b32 v{vT+1}, 7, v{vL}")
        for p in range(4):
            k(f"""v_add_u32 v{vT+2}, {8*p}, v{vT}
            v_bfe_u32 v{vT+3}, v{vT+2}, 1, 3
            v_xor_b32 v{vT+3}, v{vT+3}, v{vT+1}
            v_mul_u32_u24 v{vT+2}, {stride}, v{vT+2}
            v_lshl_add_u32 v{vD+p}, v{vT+3}, 4, v{vT+2}""")
            if p:
                k(f"v_subrev_u32 v{vD+p}, {1024*p}, v{vD+p}")
    def b_addr(stride):
        k(f"""v_lshrrev_b32 v{vT}, 3, v{vL}
        v_and_b32 v{vT+1}, 7, v{vL}
        v_bfe_u32 v{vT+2}, v{vL}, 4, 1
        v_lshlrev_b32 v{vT+2}, 1, v{vT+2}
        v_xor_b32 v{vT+1}, v{vT+1}, v{vT+2}
        v_mul_u32_u24 v{vT}, {stride}, v{vT}
        v_lshl_add_u32 v{vDb}, v{vT+1}, 4, v{vT}
        v_xor_b32 v{vT+1}, 4, v{vT+1}
        v_lshl_add_u32 v{vDb+1}, v{vT+1}, 4, v{vT}
        v_add_u32 v{vDb+1}, {8*stride-1024}, v{vDb+1}""")
    def setup_rest():
        k(f"""s_lshl_b32 s{sT+1}, s{sW}, 2
        s_add_u32 s{sT+2}, s{sT+1}, {L_F+F_G}
        v_mov_b32 v{vFw}, s{sT+2}
        s_add_u32 s{sT+2}, s{sT+1}, {L_F+F_AUX}
        v_mov_b32 v{vXw}, s{sT+2}
        v_and_b32 v{vFa}, 3, v{vL}
        v_lshlrev_b32 v{vFa}, 2, v{vFa}
        v_add_u32 v{vXa}, {L_F+F_AUX}, v{vFa}
        v_lshlrev_b32 v{vFa}, 6, v{vFa}
        v_add_u32 v{vFa}, {L_CS}, v{vFa}
        v_mov_b32 v{vPg}, 0
        s_lshl_b32 s{sM0F}, s{sW}, 8
        s_lshl_b32 s{sSoF}, s2, 10
        s_add_u32 s{sSoF}, s{sSoF}, s{sM0F}
        s_add_u32 s{sM0F}, s{sM0F}, {L_CS}
        v_and_b32 v{vN}, 31, v{vL}
        v_lshrrev_b32 v{vH}, 5, v{vL}
        s_mov_b32 s{sMask}, 0xffff0000
        s_mov_b32 s{sCnt}, 0
        v_mov_b32 v{vOne}, 1
        v_mov_b32 v{vOnes}, 0x3f803f80
        v_mov_b32 v{vOnes+1}, 0x3f803f80
        s_lshl_b32 s{sT+1}, s{sTB}, 7
        s_lshl_b32 s{sT+2}, s{sW}, 5
        s_add_u32 s{sT+1}, s{sT+1}, s{sT+2}
        v_add_u32 v{vTok}, s{sT+1}, v{vN}
        v_bfe_u32 v{vT+1}, v{vL}, 1, 3
        v_lshrrev_b32 v{vT+2}, 4, v{vL}
        v_xor_b32 v{vT+1}, v{vT+1}, v{vT+2}
        v_and_b32 v{vT+2}, 15, v{vL}
        v_lshlrev_b32 v{vT+2}, 7, v{vT+2}
        v_add_u32 v{vT+2}, s{sM0A}, v{vT+2}
        v_lshl_add_u32 v{vWa}, v{vT+1}, 4, v{vT+2}
        v_xor_b32 v{vT+1}, 4, v{vT+1}
        v_lshl_add_u32 v{vWa+1}, v{vT+1}, 4, v{vT+2}""")
        k.srd(sTb, P_WS, 256*1024, WS_TAB)
        k(f"v_lshlrev_b32 v{vT+1}, 2, v{vL}")
        k(f"buffer_store_dword v{vL}, v{vT+1}, s[{sTb}:{sTb+3}], s{sSoF} offen sc1")
        nonce()
    def nat_read_addr(rowb):
        k(f"""v_bfe_u32 v{vT}, v{vL}, 2, 2
        v_lshrrev_b32 v{vT+1}, 4, v{vL}
        v_lshl_add_u32 v{vT}, v{vT+1}, 3, v{vT}
        v_lshlrev_b32 v{vT}, 7, v{vT}
        v_and_b32 v{vT+1}, 3, v{vL}
        v_lshl_add_u32 v{vT}, v{vT+1}, 3, v{vT}
        v_add_u32 v{vT}, {L_Z}, v{vT}
        v_bfe_u32 v{vT+1}, v{vL}, 3, 2""")
        for fm in range(4):
            k(f"v_xor_b32 v{vT+2}, {fm}, v{vT+1}\nv_lshl_add_u32 v{vZa+fm}, v{vT+2}, 5, v{vT}")

    def spinw(va, val):
        l = k.lab("gspin"); d = k.lab("gspun")
        k.label(l)
        k(f"ds_read_b32 v{vFl}, v{va}\ns_waitcnt lgkmcnt(0)\nv_cmp_gt_u32 vcc, {val}, v{vFl}\ns_cbranch_vccz {d}\ns_sleep 1")
        again(l)
        k.label(d)
    def gsync():
        k(f"s_add_u32 s{sCnt}, s{sCnt}, 1\nv_mov_b32 v{vFl}, s{sCnt}\nds_write_b32 v{vXw}, v{vFl}")
        spinw(vXa, f"s{sCnt}")
    def set_flag(base, col=None):
        l = k.lab("nf")
        k(f"s_cmp_lg_u32 s{sW}, 0\ns_cbranch_scc1 {l}")
        k(f"s_lshl_b32 s{sT}, s{sTB}, 11\ns_lshl_b32 s{sT+1}, s{sFG}, 7\ns_add_u32 s{sT}, s{sT}, s{sT+1}\ns_add_u32 s{sT}, s{sT}, {base}")
        gset(f"s{sT}", vT, vT + 2)
        k.label(l)

    def ring_free():
        k(f"v_mov_b32 v{vT}, {L_F+F_GO}\ns_mov_b64 exec, 1\nds_add_u32 v{vT}, v{vOne}\ns_mov_b64 exec, -1")
    def set_wflag(base, n=0):
        k(f"s_lshl_b32 s{sT}, s{sTB}, 2\ns_add_u32 s{sT}, s{sT}, s{sW}\ns_lshl_b32 s{sT}, s{sT}, 11\ns_lshl_b32 s{sT+1}, s{sFG}, 7\ns_add_u32 s{sT}, s{sT}, s{sT+1}\ns_add_u32 s{sT}, s{sT}, {base}")
        k(f"s_waitcnt vmcnt({n})")
        gset(f"s{sT}", vT, vT + 2)
    def prefetch():
        if not ('q' in pf or 'i' in pf): return
        k(f"""s_min_u32 s{sT}, s{sFG}, 14
        s_sub_u32 s{sT}, s{sT}, 10
        s_lshl_b32 s{sT+1}, s{sW}, 4
        s_add_u32 s{sT+1}, s{sT+1}, s{sTB}
        s_mul_i32 s{sT+1}, s{sT+1}, 5
        s_add_u32 s{sT+1}, s{sT+1}, s{sT}
        s_lshl_b32 s{sT+1}, s{sT+1}, 13
        v_lshlrev_b32 v{vT+8}, 7, v{vL}""")
        if 'q' in pf:
            k.srd(sO, P_WQ, 640*1280)
            k(f"buffer_load_dword v{vT+9}, v{vT+8}, s[{sO}:{sO+3}], s{sT+1} offen")
        if 'i' in pf:
            k.srd(sO, P_WIN, 640*3456)
            k(f"buffer_load_dword v{vT+10}, v{vT+8}, s[{sO}:{sO+3}], s{sT+1} offen")
    def prefetch_sp():
        if 's' not in pf: return
        att_progress(1, vT + 5, 8)
        k(f"s_and_b32 s{sT}, s2, 1" if m42 else f"s_sub_u32 s{sT}, s{sFG}, 14")
        k(f"""s_lshl_b32 s{sT}, s{sT}, 2
        s_add_u32 s{sT}, s{sT}, s{sW}
        s_lshl_b32 s{sT}, s{sT}, 16
        s_lshl_b32 s{sT+1}, s{sTB}, 19
        s_add_u32 s{sT}, s{sT}, s{sT+1}
        v_lshlrev_b32 v{vT+8}, 7, v{vL}""")
        k.srd(sO, P_WSP, 2048*4096)
        for i in range(16 if m42 == 2 else 8):
            if i == 8: k(f"s_sub_u32 s{sT}, s{sT}, 65536\ns_xor_b32 s{sT}, s{sT}, 0x40000")
            k(f"buffer_load_dword v{vT+9}, v{vT+8}, s[{sO}:{sO+3}], s{sT} offen {ntw}\ns_add_u32 s{sT}, s{sT}, 8192")
            if i % 2 == 1: k("s_waitcnt vmcnt(0)")
    def u_addr():
        k.srd(sO, P_WS, SZ_OUF, WS_OUF)
        k(f"""v_lshrrev_b32 v{vT+1}, 4, v{vTok}
        v_mul_u32_u24 v{vT+1}, {47*1024}, v{vT+1}
        v_and_b32 v{vT+2}, 15, v{vTok}
        v_lshl_add_u32 v{vT+1}, v{vT+2}, 4, v{vT+1}
        v_lshl_add_u32 v{vT+1}, v{vH}, 8, v{vT+1}
        s_lshl_b32 s{sT}, s{sFG}, 11
        s_add_u32 s{sT}, s{sT}, {20*1024}""")
    def poison(with_u):
        pz = vT + 4
        for i in range(4): k(f"v_mov_b32 v{pz+i}, -1")
        if with_u:
            l = k.lab("pu")
            u_addr()
            for i in range(4):
                if i == 2: k(f"s_cmp_eq_u32 s{sFG}, 13\ns_cbranch_scc1 {l}")
                k(f"buffer_store_dwordx4 {v(pz,4)}, v{vT+1}, s[{sO}:{sO+3}], s{sT} offen offset:{512*i} sc1")
            k.label(l)
        else:
            k.srd(sO, P_WS, SZ_OUF, WS_OUF)
        k(f"""s_lshl_b32 s{sT}, s{sT64}, 2
        s_add_u32 s{sT}, s{sT}, s{sW}
        s_mul_i32 s{sT}, s{sT}, {47*1024}
        s_mul_i32 s{sT+1}, s{sHG}, 2560
        s_add_u32 s{sT}, s{sT}, s{sT+1}
        v_lshlrev_b32 v{vT+2}, 4, v{vL}
        buffer_store_dwordx4 {v(pz,4)}, v{vT+2}, s[{sO}:{sO+3}], s{sT} offen sc1
        buffer_store_dwordx4 {v(pz,4)}, v{vT+2}, s[{sO}:{sO+3}], s{sT} offen offset:1024 sc1
        s_mov_b32 exec_hi, 0
        buffer_store_dwordx4 {v(pz,4)}, v{vT+2}, s[{sO}:{sO+3}], s{sT} offen offset:2048 sc1
        s_mov_b32 exec_hi, -1""")
    def poison_done():
        k(f"v_mov_b32 v{vT+4}, {L_F+F_XC}\nds_write_b32 v{vT+4}, v{vOne}")
    def att_progress(val, va, slp):
        l = k.lab("ac"); d = k.lab("acd")
        k(f"v_and_b32 v{va}, 7, v{vL}\nv_lshlrev_b32 v{va}, 2, v{va}\nv_add_u32 v{va}, {L_F}, v{va}")
        k.label(l)
        k(f"ds_read_b32 v{vFl}, v{va}\ns_waitcnt lgkmcnt(0)\nv_cmp_gt_u32 vcc, {val}, v{vFl}\ns_cbranch_vccz {d}\ns_sleep {slp}")
        again(l)
        k.label(d)
    vm = []
    def vop(tag, txt):
        vm.append(tag); return txt
    def newer(tags):
        idx = [i for i, t in enumerate(vm) if t in tags]
        return len(vm) - 1 - max(idx) if idx else 63
    cohA = [ntx]; cohB = [""]
    def la(g, p): return vop(("A", g), f"buffer_load_dwordx4 v{vD+p}, s[{sA}:{sA+3}], s{sSoA} offen offset:{1024*p} {cohA[0]} lds")
    def lb(g, p): return vop(("B", g), f"buffer_load_dwordx4 v{vDb+p}, s[{sB}:{sB+3}], s{sSoB} offen offset:{1024*p} {cohB[0]} lds")
    wrapA = [False]; wrapB = [False]; natA = [bool(zrot)]; natB = [bool(zrot)]
    def advA():
        if wrapA[0]: k(f"s_add_u32 s37, s37, 128\ns_and_b32 s37, s37, 0xfff\ns_add_u32 s{sSoA}, s38, s37")
        elif natA[0]: k(f"s_add_u32 s{sSoA}, s{sSoA}, 128\ns_cmp_eq_u32 s{sSoA}, s37\ns_cmov_b32 s{sSoA}, s{sBaseA}")
        else: k(f"s_add_u32 s{sSoA}, s{sSoA}, 128")
    def advB():
        if wrapB[0]: k(f"s_add_u32 s39, s39, 4096\ns_and_b32 s39, s39, 0x1ffff\ns_add_u32 s{sSoB}, s54, s39")
        elif natB[0]: k(f"s_add_u32 s{sSoB}, s{sSoB}, s{sStepB}\ns_cmp_eq_u32 s{sSoB}, s39\ns_cmov_b32 s{sSoB}, s38")
        else: k(f"s_add_u32 s{sSoB}, s{sSoB}, s{sStepB}")
    vWe = z2
    def abuf(g):
        if deep and g in (3, 4, 5, 9):
            e = {3: 0, 4: 1, 5: 2, 9: 0}[g]
            return vWe, 16384 * e, 16384 * e - 49152
        return vWa, 16384 * (g % 3), 16384 * (g % 3)
    def issue_a(g):
        k(f"s_add_u32 m0, s{sM0A}, {hx(abuf(g)[2])}\ns_nop 0")
        for p in range(4): k(la(g, p))
        advA()
    def issue_b(g):
        k(f"s_add_u32 m0, s{sM0B}, {8192*(g%6)}\ns_nop 0")
        for p in range(2): k(lb(g, p))
        advB()
    FR = lambda b, i: fs[b][0][0] + 4 * i
    def reads(ty, half, b, g):
        ba, bz = g % 3, g % 6
        r = [f"ds_read_b128 {v(FR(b,tn),4)}, v{vWa+half} offset:{16384*ba+2048*tn}" for tn in range(2)]
        for fm in range(4):
            d = FR(b, 2 + fm)
            if ty == "frag":
                r.append(f"ds_read_b128 {v(d,4)}, v{vZf} offset:{8192*bz+2048*fm+1024*half}")
            else:
                r.append(f"ds_read_b64_tr_b16 {v(d,2)}, v{vZa+fm} offset:{8192*bz+4096*half}")
                r.append(f"ds_read_b64_tr_b16 {v(d+2,2)}, v{vZa+fm} offset:{8192*bz+4096*half+512}")
        return r
    vSx, vSq, vCs = z1, z1 + 4, [z1 + 8, z1 + 12]
    prio = [3]
    pat = [patz]
    inloop = [False]
    carry = [False]
    cold = []
    cacc = [acc]
    def half(b, hf, zero, stats, kv, rd, dm, ex=()):
        fast = prio[0] == 3
        n = len(rd)
        cut = [0, n, n, n] if fast else [0, (n + 1) // 2, n, n]
        cur = [3]
        def setp(p):
            if not fast and cur[0] != p:
                k(f"s_setprio {p}"); cur[0] = p
        for j in range(4):
            if True:
                setp(int(pat[0][4*hf + j]))
                abl = MX if (inloop[0] or "all" in MX) else ""
                for tn in range(2):
                    d = cacc[0][j >> 1] + 8*tn + 4*(j & 1)
                    k(f"v_mfma_f32_16x16x32_bf16 {v(d,4)}, {v(FR(b,2+j),4)}, {v(FR(b,tn),4)}, {'0' if zero else v(d,4)}")
                if "nord" in abl: rd = ["s_nop 0"] * len(rd)
                if "nodma" in abl: dm = [[], [], [], []]
                if j < 3 and cut[j+1] > cut[j]:
                    setp(rprio)
                    for x in rd[cut[j]:cut[j+1]]: k(x)
                if ex:
                    setp(3)
                    for x in ex[len(ex)*j//4:len(ex)*(j+1)//4]: k(x)
                if dm[j]:
                    setp(prio[0])
                    for f_ in dm[j]:
                        if thr is not None and not fast: k(f"s_waitcnt vmcnt({thr})")
                        k(f_())
        setp(3)
    def lf():
        return "\n".join([f"s_mov_b32 m0, s{sM0F}", f"s_add_u32 s{sSoF}, s{sSoF}, 4",
                          vop("F", f"buffer_load_dword v{vPg}, s[{sTb}:{sTb+3}], s{sSoF} offen lds")])
    def body(g, ty, ty_next, first=False, doA=True, doB=True, loop=False, dyn=False, tailA=None, tailB=None, cout=True, ex=(), needp=0):
        cin = carry[0]
        k("s_waitcnt lgkmcnt(0)")
        dm = [[], [], [], []]
        def a3():
            k(la(g + 2, 3)); advA(); return "s_nop 0"
        if cin: dm = [[lambda: la(g + 2, 2)], [a3], [], []]
        half(0, 0, first, False, False, reads(ty, 1, 1, g) + [f"ds_read_b32 v{vFl}, v{vFa}"], dm, ex[:len(ex)//2])
        if doB or tailB: k(f"s_add_u32 m0, s{sM0B}, {8192*((g+4)%6)}")
        if tailB: k(tailB)
        n = 7 if loop else min(63, newer({("A", g + 1)}))
        ok = k.lab("gok"); sl = k.lab("gslow")
        need = f"s{sNeed}" if (loop or dyn) else str(g - 2 + needp)
        acct = "acct" in MX and loop
        if acct: k("s_waitcnt lgkmcnt(0)\ns_memtime s[36:37]\ns_waitcnt lgkmcnt(0)")
        k(f"s_waitcnt vmcnt({n}) lgkmcnt(0)")
        if acct: k("s_memtime s[38:39]\ns_waitcnt lgkmcnt(0)\ns_sub_u32 s36, s38, s36\ns_add_u32 s82, s82, s36")
        k(f"v_cmp_gt_u32 vcc, {need}, v{vFl}\ns_cbranch_vccnz {sl}")
        cold.append((sl, need, ok))
        k.label(ok)
        if acct: k("s_memtime s[36:37]\ns_waitcnt lgkmcnt(0)\ns_sub_u32 s36, s36, s38\ns_add_u32 s84, s84, s36")
        def mark():
            if doB: advB()
            if not (ev[5] < 30 and g == ev[5] - 1): k(lf())
            t = []
            if doA or tailA: t.append(f"s_add_u32 m0, s{sM0A}, {16384*(g%3)}")
            if tailA: t.append(tailA)
            return "\n".join(t) or "s_nop 0"
        dm = [[], [mark], [], []]
        if doB or tailB: dm = [[lambda: lb(g + 4, 0)], [lambda: lb(g + 4, 1), mark], [], []]
        cout = cout and doA
        if doA or tailA:
            dm[2] = [lambda: la(g + 3, 0)] + ([] if cout else [lambda: la(g + 3, 1)])
            dm[3] = [lambda: la(g + 3, 1)] if cout else [lambda: la(g + 3, 2), lambda: la(g + 3, 3)]
        half(1, 1, False, False, False, reads(ty_next, 0, 0, g + 1) if ty_next else [], dm, ex[len(ex)//2:])
        if doA and not cout: advA()
        carry[0] = cout
        if loop or dyn: k(f"s_add_u32 s{sNeed}, s{sNeed}, 1")
    def hi(): pass
    def lo(): pass
    def prologue(g0, ty):
        k(f"s_add_u32 s{sSoF}, s{sSoF}, {4*(g0-4)}")
        k(lf())
        issue_b(g0 + 1); k(lf()); issue_a(g0 + 1); issue_b(g0 + 2); issue_b(g0 + 3); k(lf()); issue_a(g0 + 2)
        k(f"s_waitcnt vmcnt({newer({('A', g0)})})")
        spinw(vFa, g0 - 3)
        for r in reads(ty, 0, 0, g0): k(r)
    def src_win(off_const):
        k.srd(sB, P_WIN, 640*3456)
        k(f"""s_mul_i32 s{sSoB}, s{sW}, {16*3456}
        s_lshl_b32 s{sT}, s{sFG}, 7
        s_add_u32 s{sSoB}, s{sSoB}, s{sT}
        s_add_u32 s{sSoB}, s{sSoB}, {off_const}
        s_mov_b32 s{sStepB}, {64*3456}""")
        if zrot:
            k(f"s_mov_b32 s38, s{sSoB}\ns_add_u32 s39, s38, {640*3456}\ns_mul_i32 s{sT}, s36, s{sStepB}\ns_add_u32 s{sSoB}, s{sSoB}, s{sT}")
    def load_mr():
        lds_wait(L_F + F_XR, vT, vT + 1)
        k.srd(sO, P_WS, SZ_XN, WS_XN)
        k(f"v_mul_u32_u24 v{vT+2}, {XN_ST}, v{vTok}")
        k(vop("mr", f"buffer_load_dwordx2 {v(vT+8,2)}, v{vT+2}, s[{sO}:{sO+3}], 0 offen offset:1280 sc1"))
    def src_xn():
        k.srd(sA, P_WS, SZ_XN, WS_XN)
        k(f"s_lshl_b32 s{sBaseA}, s{sTB}, 2\ns_add_u32 s{sBaseA}, s{sBaseA}, s{sW}\ns_mul_i32 s{sBaseA}, s{sBaseA}, {32*XN_ST}\ns_mov_b32 s{sSoA}, s{sBaseA}")
        if zrot: k(f"s_add_u32 s37, s{sBaseA}, 1280\ns_lshl_b32 s{sT}, s36, 7\ns_add_u32 s{sSoA}, s{sSoA}, s{sT}")
    def ln_fold(kv):
        mu, r = vT + 8, vT + 9
        k(f"""s_waitcnt vmcnt({newer({'mr'})})
        v_and_b32 v{vT+2}, s{sMask}, v{mu}
        v_sub_f32 v{vT+3}, v{mu}, v{vT+2}
        v_cvt_pk_bf16_f32 v{vT}, -v{vT+2}, -v{vT+3}
        v_cvt_pk_bf16_f32 v{vT+1}, -v{vT+2}, 0""")
        for u in range(2):
            c = vCs[u]
            k(f"""v_and_b32 v{c+3}, s{sMask}, v{c+2}
            v_sub_f32 v{c+2}, v{c+2}, v{c+3}
            v_cvt_pk_bf16_f32 v{c}, v{c+3}, v{c+3}
            v_cvt_pk_bf16_f32 v{c+1}, v{c+2}, 0""")
        k("s_nop 1")
        for u in range(2):
            A_, B_ = (vT, vCs[u]) if (kv and u == 1) else (vCs[u], vT)
            k(f"v_mfma_f32_32x32x8_bf16 {v(acc[u],16)}, {v(A_,2)}, {v(B_,2)}, {v(acc[u],16)}")
    def swap4(b0):
        k(f"v_permlane32_swap_b32 v{b0}, v{b0+2}\nv_permlane32_swap_b32 v{b0+1}, v{b0+3}")
    def swap44(*bs):
        for b0 in bs: k(f"v_permlane32_swap_b32 v{b0}, v{b0+2}\nv_permlane32_swap_b32 v{b0+1}, v{b0+3}")
        for b0 in bs: k(f"v_permlane16_swap_b32 v{b0}, v{b0+2}\nv_permlane16_swap_b32 v{b0+1}, v{b0+3}")
    def gelu(u, dst, stats):
        t = acc[u]
        if pkv & 1:
            E = range(0, 16, 2)
            for i in E: k(f"v_pk_mul_f32 {v(tmp+i,2)}, {v(t+i,2)}, {v(t+i,2)}")
            for i in E: k(f"v_pk_fma_f32 {v(tmp+i,2)}, {v(tmp+i,2)}, {v(vT+12,2)}, {v(vT+12,2)} op_sel:[0,0,1] op_sel_hi:[1,0,1]")
            for i in E: k(f"v_pk_mul_f32 {v(tmp+i,2)}, {v(tmp+i,2)}, {v(t+i,2)}")
            for i in range(16): k(f"v_exp_f32 v{tmp+i}, v{tmp+i}")
            for i in E: k(f"v_pk_add_f32 {v(tmp+i,2)}, {v(tmp+i,2)}, 1.0 op_sel_hi:[1,0]")
            for i in range(16): k(f"v_rcp_f32 v{tmp+i}, v{tmp+i}")
            for i in E: k(f"v_pk_mul_f32 {v(tmp+i,2)}, {v(tmp+i,2)}, {v(t+i,2)}")
            for i in E: k(f"v_cvt_pk_bf16_f32 v{dst+i//2}, v{tmp+i}, v{tmp+i+1}")
            for i in range(8):
                c = vT + 10 if i < 4 else vT + 6
                k(f"v_dot2c_f32_bf16 v{c}, v{vOnes}, v{dst+i}\nv_dot2c_f32_bf16 v{c+1}, v{dst+i}, v{dst+i}")
            return
        for g0 in range(0, 16, 8):
            R = range(g0, g0 + 8)
            for i in R: k(f"v_mul_f32 v{tmp+i-g0}, v{t+i}, v{t+i}")
            for i in R: k(f"v_fmaak_f32 v{tmp+i-g0}, v{vT+12}, v{tmp+i-g0}, {fl(GC0)}")
            for i in R: k(f"v_mul_f32 v{tmp+i-g0}, v{tmp+i-g0}, v{t+i}")
            for i in R: k(f"v_exp_f32 v{tmp+i-g0}, v{tmp+i-g0}")
            for i in R: k(f"v_add_f32 v{tmp+i-g0}, 1.0, v{tmp+i-g0}")
            for i in R: k(f"v_rcp_f32 v{tmp+i-g0}, v{tmp+i-g0}")
            for i in R: k(f"v_mul_f32 v{tmp+i-g0}, v{tmp+i-g0}, v{t+i}")
            for i in range(0, 8, 2): k(f"v_cvt_pk_bf16_f32 v{dst+(g0+i)//2}, v{tmp+i}, v{tmp+i+1}")
            if stats:
                c = vT + 10 if g0 == 0 else vT + 6
                for i in range(8):
                    k(f"v_add_f32 v{c}, v{c}, v{tmp+i}\nv_fmac_f32 v{c+1}, v{tmp+i}, v{tmp+i}")

    rep = k.lab("rep"); b10 = k.lab("b10"); outp = k.lab("outp"); outq = k.lab("outq"); kw = k.lab("kw"); kwd = k.lab("kwd")
    vx, vw = z2, z2 + 2
    k(f"v_lshrrev_b32 v{vT}, 3, v{vL}\nv_and_b32 v{vT+1}, 7, v{vL}")
    for p in range(2):
        k(f"""v_add_u32 v{vT+2}, {8*p}, v{vT}
        v_bfe_u32 v{vT+3}, v{vT+2}, 1, 3
        v_xor_b32 v{vT+3}, v{vT+3}, v{vT+1}
        v_mul_u32_u24 v{vT+2}, 1280, v{vT+2}
        v_lshl_add_u32 v{vx+p}, v{vT+3}, 4, v{vT+2}""")
    k(f"v_subrev_u32 v{vx+1}, 1024, v{vx+1}")
    k.srd(sA, P_X, SZ_Q)
    k(f"""s_lshl_b32 s{sBaseA}, s{sT64}, 2
    s_add_u32 s{sBaseA}, s{sBaseA}, s{sW}
    s_mul_i32 s{sBaseA}, s{sBaseA}, {16*1280}
    s_lshl_b32 s{sNeed}, s{sW}, 11
    s_add_u32 s{sNeed}, s{sNeed}, {F_B}""")
    sKr = 36
    def l_rot():
        if frot: k(f"s_lshr_b32 s{sKr}, s2, 3\ns_mul_i32 s{sKr}, s{sKr}, {frot}\ns_mul_i32 s{sT}, s{sKr}, 6554\ns_lshr_b32 s{sT}, s{sT}, 16\ns_mul_i32 s{sT}, s{sT}, 10\ns_sub_u32 s{sKr}, s{sKr}, s{sT}")
        else: k(f"s_mov_b32 s{sKr}, 0")
    def l_x(g):
        k(f"s_lshl_b32 s{sSoA}, s{sKr}, 7\ns_add_u32 m0, s{sNeed}, {F_S*(g%6)}\ns_add_u32 s{sSoA}, s{sBaseA}, s{sSoA}")
        for p in range(2): k(vop(("A", g), f"buffer_load_dwordx4 v{vx+p}, s[{sA}:{sA+3}], s{sSoA} offen offset:{1024*p} lds"))
    def l_w(g, n):
        k(f"s_mul_i32 s{sSoA}, s{sKr}, s{sStepB}\ns_add_u32 m0, s{sI}, {F_S*(g%6)}\ns_add_u32 s{sSoA}, s{sSoA}, s{sSoB}")
        for p in range(n): k(vop(("A", g), f"buffer_load_dwordx4 v{vw+p}, s[{sB}:{sB+3}], s{sSoA} offen offset:{1024*p} lds"))
        k(f"s_add_u32 s{sKr}, s{sKr}, 1\ns_cmp_eq_u32 s{sKr}, 10\ns_cmov_b32 s{sKr}, 0")
    lx, ls, lt, la_ = fs[0][0][0], fs[1][0][0], fs[1][0][0] + 16, z2 + 6
    def l_pass(n, x0done, mid=None, lead=3, xf=False):
        if pb: lead = 4
        for g in range(lead):
            if not (g == 0 and x0done): l_x(g)
            l_w(g, n)
        if mid: mid()
        k(f"v_lshl_add_u32 v{la_}, v{vL}, 4, s{sNeed}\nv_add_u32 v{la_+1}, {3*F_S}, v{la_}")
        for i in range(16): k(f"v_mov_b32 v{ls+i}, 0")
        for g in range(10):
            if not pb or g % 2 == 0:
                k(f"s_waitcnt vmcnt({newer({('A', g + (1 if pb else 0))})})")
                if g == 0: sp('land0')
                sp(f'w{g}')
                k("s_barrier")
            if g == 0: sp('p1s')
            sp(f'f{g}')
            for p in range(2):
                k(f"ds_read_b128 {v(lx+4*p,4)}, v{la_+(g%6)//3} offset:{F_S*(g%3)+1024*p}")
            if g + lead < 10:
                l_x(g + lead); l_w(g + lead, n)
            if g == 9 and xf:
                k(f"s_lshl_b32 s{sT+3}, s{sTB}, 2\ns_add_u32 s{sT+3}, s{sT+3}, s{sW}\ns_lshl_b32 s{sT+3}, s{sT+3}, 9\nv_lshlrev_b32 v{vT+4}, 7, v{vL}\ns_mov_b64 exec, 0xf")
                k(gload(f"s{sT+3}", vT + 4, vT + 8))
                k("s_mov_b64 exec, -1")
            k("s_waitcnt lgkmcnt(0)")
            for hh in range(2):
                for p in range(2):
                    X = lx + 4*p + 2*hh
                    k(f"v_mfma_f32_4x4x4_16b_bf16 {v(ls+8*p,4)}, {v(vOnes,2)}, {v(X,2)}, {v(ls+8*p,4)}")
                    k(f"v_mfma_f32_4x4x4_16b_bf16 {v(ls+8*p+4,4)}, {v(X,2)}, {v(X,2)}, {v(ls+8*p+4,4)}")
        k(f"v_and_b32 v{lt}, 3, v{vL}\ns_nop 2")
        for i in range(1, 4):
            k(f"v_cmp_eq_u32 vcc, {i}, v{lt}\ns_nop 1")
            for p in range(2): k(f"v_cndmask_b32 v{ls+8*p+4}, v{ls+8*p+4}, v{ls+8*p+4+i}, vcc")
        R = [ls, ls + 8, ls + 4, ls + 12]
        for m in ("quad_perm:[1,0,3,2]", "quad_perm:[2,3,0,1]", "row_half_mirror"):
            for r in R: k(f"v_add_f32_dpp v{r}, v{r}, v{r} {m} row_mask:0xf bank_mask:0xf")
        for r in R: k(f"v_mul_f32 v{r}, {fl(1.0/640)}, v{r}")
        for p in range(2):
            mu, q_ = ls + 8*p, ls + 8*p + 4
            k(f"v_fma_f32 v{q_}, -v{mu}, v{mu}, v{q_}\nv_max_f32 v{q_}, 0, v{q_}\nv_add_f32 v{q_}, {fl(1e-5)}, v{q_}\nv_rsq_f32 v{q_}, v{q_}")
        k(f"""s_lshl_b32 s{sT}, s{sW}, 6
        s_add_u32 s{sT}, s{sT}, {F_STS}
        v_lshrrev_b32 v{lt}, 3, v{vL}
        v_lshl_add_u32 v{lt}, v{lt}, 2, s{sT}
        ds_write_b32 v{lt}, v{ls}
        ds_write_b32 v{lt}, v{ls+4} offset:256
        ds_write_b32 v{lt}, v{ls+8} offset:32
        ds_write_b32 v{lt}, v{ls+12} offset:288
        s_waitcnt lgkmcnt(0)""")
    def q_src():
        for p in range(3):
            k(f"""v_add_u32 v{vT}, {64*p}, v{vL}
            v_mul_u32_u24 v{vT+1}, 5462, v{vT}
            v_lshrrev_b32 v{vT+1}, 16, v{vT+1}
            v_mul_u32_u24 v{vT+2}, 12, v{vT+1}
            v_sub_u32 v{vT+2}, v{vT}, v{vT+2}
            v_mul_u32_u24 v{vT+1}, 1280, v{vT+1}
            v_lshl_add_u32 v{vw+p}, v{vT+2}, 4, v{vT+1}""")
            if p: k(f"v_subrev_u32 v{vw+p}, {1024*p}, v{vw+p}")
        k.srd(sB, P_WQ, 640*1280)
        k(f"""s_mul_i32 s{sSoB}, s{sW}, {16*1280}
        s_mul_i32 s{sT}, s{sHG}, 160
        s_and_b32 s{sT}, s{sT}, 0xffffffc0
        s_add_u32 s{sSoB}, s{sSoB}, s{sT}
        s_mov_b32 s{sStepB}, {64*1280}
        s_mul_i32 s{sI}, s{sW}, 3072
        s_add_u32 s{sI}, s{sI}, {F_B+8192}""")
    if "skip" in MX:
        k(f"s_barrier\ns_cmp_eq_u32 s{sHG}, 7\ns_cbranch_scc1 {end}")
        setup_rest(); a_addr(4096)
        k.srd(sA, P_WSP, 2048*4096)
        k(f"s_lshl_b32 s{sSoA}, s{sTB}, 2\ns_add_u32 s{sSoA}, s{sSoA}, s{sW}\ns_lshl_b32 s{sSoA}, s{sSoA}, 17")
        k(f"v_lshlrev_b32 v{vDb}, 4, v{vL}\nv_lshlrev_b32 v{vDb+1}, 4, v{vL}\ns_add_u32 s{sSoF}, s{sSoF}, {4*28}\ns_waitcnt vmcnt(0)")
        k(lf()); k(f"s_branch {skipG}")
    early = 'b' not in pf
    sKr = 36
    l_rot()
    if early: l_x(0)
    k(f"s_cmp_eq_u32 s{sHG}, 7\ns_cbranch_scc1 {rep}")
    q_src()
    def mid():
        setup_rest(); nat_read_addr(128); b_addr(3456); a_addr(XN_ST)
    if early: l_pass(3, True, mid, xf=True, lead=lq)
    else:
        mid(); k("s_barrier"); l_pass(3, False, xf=True, lead=lq)
    sp('p1l')
    k("s_barrier")
    if zrot:
        k(f"s_mul_i32 s36, s{sFG}, {zrot[0]}\ns_mul_i32 s37, s{sTB}, {zrot[1]}\ns_add_u32 s36, s36, s37\ns_mul_i32 s37, s36, 6554\ns_lshr_b32 s37, s37, 16\ns_mul_i32 s37, s37, 10\ns_sub_u32 s36, s36, s37")
    src_win(13 * 128)
    issue_b(10)
    src_xn()
    xo = k.lab("xo")
    k("s_waitcnt vmcnt(2)\ns_mov_b64 exec, 0xf")
    gcheck(vT + 8)
    k(f"s_mov_b64 exec, -1\ns_cbranch_vccz {xo}")
    gpoll(f"s{sT+3}", vT + 4, vT + 8, 0xf, 2)
    k.label(xo)
    sp('xo')
    cohA[0] = "sc1"
    issue_a(10)
    prologue(10, "nat")

    k.label(b10)
    sp('p1')
    prio[0] = lprio
    vFg, vSt = vT + 8, tmp
    def z_ready():
        pd = k.lab("zpd")
        sp('zc')
        k(f"s_waitcnt vmcnt({newer({'pz'})})")
        gcheck(vFg)
        k(f"s_cbranch_vccz {pd}")
        k(f"s_lshl_b32 s{sT}, s{sW}, 13\ns_add_u32 s{sT}, s{sT}, {FL_Z}")
        gpoll(f"s{sT}", vT + 14, vFg, None, 4)
        k.label(pd)
        gsync()
        sp('zr')
        k.srd(sB, P_WS, SZ_Z2F, WS_Z2F)
        k(f"""s_lshl_b32 s{sT}, s{sFG}, 2
        s_add_u32 s{sT}, s{sT}, s{sW}
        s_lshl_b32 s{sSoB}, s{sT}, 16
        s_mov_b32 s{sStepB}, 2048
        v_add_u32 v{vZf}, {L_Z}, v{vDb}""")
        cohB[0] = "sc1"; natB[0] = False
        k(f"s_setprio {lprio}")
        for g in range(30, ev[5] + 4): issue_b(g)
        if ev[5] < 30: k(lf())
        k("s_setprio 3")
    for g in range(10, 30):
        sp(f'b{g}')
        if g == 16:
            src_win(0)
        if g == 17 and not zrot:
            k(f"s_mov_b32 s{sSoA}, s{sBaseA}")
        if g == 14 and so:
            poison(False)
        if g == 20:
            sp('p2')
            hi()
            s0 = k.lab("s0")
            k(f"v_mov_b32 v{vT+12}, {fl(GC1)}\nv_mov_b32 v{vT+13}, {fl(GC0)}\nv_mov_b32 v{vT+10}, 0\nv_mov_b32 v{vT+11}, 0\nv_mov_b32 v{vT+6}, 0\nv_mov_b32 v{vT+7}, 0\ns_nop 1")
            k(f"s_cmp_eq_u32 s{sFG}, 0\ns_cbranch_scc1 {s0}")
            gelu(0, z2, True)
            k.label(s0)
            gelu(1, z2 + 8, True)
            k.srd(sO, P_WS, SZ_ST, WS_ST)
            k(f"""v_permlane16_swap_b32 v{vT+10}, v{vT+6}
            v_permlane16_swap_b32 v{vT+11}, v{vT+7}
            v_add_f32 v{vT+10}, v{vT+10}, v{vT+6}
            v_add_f32 v{vT+11}, v{vT+11}, v{vT+7}
            v_mov_b32 v{vT+2}, v{vT+10}
            v_mov_b32 v{vT+3}, v{vT+11}
            s_mul_i32 s{sT}, s{sTB}, 14
            s_add_u32 s{sT}, s{sT}, s{sFG}
            v_permlane32_swap_b32 v{vT+10}, v{vT+2}
            v_permlane32_swap_b32 v{vT+11}, v{vT+3}
            s_lshl_b32 s{sT}, s{sT}, 11
            s_lshl_b32 s{sT+1}, s{sW}, 9
            v_add_f32 v{vT+4}, v{vT+10}, v{vT+2}
            v_add_f32 v{vT+6}, v{vT+11}, v{vT+3}
            v_mov_b32 v{vT+5}, s{sNo}
            v_mov_b32 v{vT+7}, s{sNo}
            v_lshlrev_b32 v{vT+2}, 4, v{vN}
            s_add_u32 s{sT}, s{sT}, s{sT+1}""")
            k(vop("st", f"buffer_store_dwordx4 {v(vT+4,4)}, v{vT+2}, s[{sO}:{sO+3}], s{sT} offen sc1"))
            k("s_nop 0")
        if g == gr:
            sp('e25')
            pr = [z1, z1 + 4, z1 + 8, z1 + 12, tmp + 8, tmp + 12, tmp + 16]
            gl = k.lab("gl"); gd = k.lab("gd")
            k(f"""v_mul_u32_u24 v{vT+14}, {7*2048}, v{vH}
            v_lshl_add_u32 v{vT+14}, v{vN}, 4, v{vT+14}
            s_mul_i32 s{sT+2}, s{sTB}, {14*2048}
            s_lshl_b32 s{sT+1}, s{sW}, 9
            s_add_u32 s{sT+2}, s{sT+2}, s{sT+1}""")
            def gloads():
                for i in range(7):
                    if i % 2 == 0: k(f"s_add_u32 s{sT+3}, s{sT+2}, {2048*i}")
                    k(f"buffer_load_dwordx4 {v(pr[i],4)}, v{vT+14}, s[{sO}:{sO+3}], s{sT+3} offen offset:{2048*(i%2)} sc1")
            gloads()
            sel, D = tmp, tmp + 8
            mur, r = vT + 10, vT + 11
            k(f"""v_and_b32 v{vT+2}, 15, v{vL}
            v_lshrrev_b32 v{vT+3}, 4, v{vL}
            v_lshlrev_b32 v{vT+3}, 2, v{vT+3}
            v_sub_u32 v{vT+2}, v{vT+2}, v{vT+3}
            v_mov_b32 v{vT+3}, 0x3f80
            v_mov_b32 v{vT+4}, 0x3f800000""")
            for q in (0, 1, 4, 5): k(f"v_mov_b32 v{sel+q}, 0")
            for q in range(2):
                k(f"""v_cmp_eq_u32 vcc, {2*q}, v{vT+2}
                v_cmp_eq_u32 s[{sT}:{sT+1}], {2*q+1}, v{vT+2}
                s_nop 0
                v_cndmask_b32 v{sel+2+q}, 0, v{vT+3}, vcc
                v_cndmask_b32 v{sel+2+q}, v{sel+2+q}, v{vT+4}, s[{sT}:{sT+1}]""")
            k.label(gl)
            k("s_waitcnt vmcnt(0)")
            for j, tg in ((1, sNo), (3, sNo)):
                t = vT + 4 + j // 2
                k(f"v_xor_b32 v{t}, s{tg}, v{pr[0]+j}")
                for i in range(1, 7):
                    k(f"v_xor_b32 v{vT+6}, s{tg}, v{pr[i]+j}\nv_or_b32 v{t}, v{t}, v{vT+6}")
            k(f"v_or_b32 v{vT+4}, v{vT+4}, v{vT+5}\nv_cmp_ne_u32 vcc, 0, v{vT+4}\ns_cbranch_vccz {gd}\ns_sleep 2")
            gloads()
            again(gl)
            k("s_waitcnt vmcnt(0)")
            k.label(gd)
            sp('sok')
            for i in range(1, 7):
                k(f"v_add_f32 v{z1}, v{z1}, v{pr[i]}\nv_add_f32 v{z1+2}, v{z1+2}, v{pr[i]+2}")
            k(f"v_mov_b32 v{z1+1}, v{z1+2}")
            k.srd(sO, P_WS, SZ_Z2F, WS_Z2F)
            k(f"""v_mov_b32 v{z1+2}, v{z1}
            v_mov_b32 v{z1+3}, v{z1+1}
            v_lshlrev_b32 v{vT+2}, 4, v{vL}
            s_lshl_b32 s{sT}, s{sFG}, 18
            v_permlane32_swap_b32 v{z1}, v{z1+2}
            v_permlane32_swap_b32 v{z1+1}, v{z1+3}
            v_add_f32 v{mur}, v{z1}, v{z1+2}
            v_add_f32 v{r}, v{z1+1}, v{z1+3}
            v_mul_f32 v{mur}, {fl(1.0/864)}, v{mur}
            v_mul_f32 v{r}, {fl(1.0/864)}, v{r}
            v_fma_f32 v{r}, -v{mur}, v{mur}, v{r}
            v_max_f32 v{r}, 0, v{r}
            v_add_f32 v{r}, {fl(1e-5)}, v{r}
            v_rsq_f32 v{r}, v{r}
            s_lshl_b32 s{sT+1}, s{sTB}, 12
            s_add_u32 s{sT}, s{sT}, s{sT+1}
            v_mul_f32 v{mur}, v{mur}, v{r}
            v_mov_b32 v{vT+7}, v{r}
            v_mov_b32 v{vT+6}, v{mur}
            s_lshl_b32 s{sT+1}, s{sW}, 10
            s_add_u32 s{sT}, s{sT}, s{sT+1}
            v_permlane16_swap_b32 v{r}, v{vT+7}
            v_permlane16_swap_b32 v{mur}, v{vT+6}""")
            s1 = k.lab("s1")
            for u in (1, 0):
                if u == 0:
                    k(f"s_cmp_eq_u32 s{sFG}, 0\ns_cbranch_scc1 {s1}\ns_sub_u32 s{sT}, s{sT}, 0x20000")
                k(f"s_add_u32 s{sT+1}, s{sT}, 0x10000")
                zz = z2 + 8*u
                for i in range(8):
                    m_, r_ = (mur, r) if i < 4 else (vT + 6, vT + 7)
                    k(f"""v_lshlrev_b32 v{vT+4}, 16, v{zz+i}
                    v_and_b32 v{vT+5}, s{sMask}, v{zz+i}
                    v_fma_f32 v{vT+4}, v{vT+4}, v{r_}, -v{m_}
                    v_fma_f32 v{vT+5}, v{vT+5}, v{r_}, -v{m_}
                    v_cvt_pk_bf16_f32 v{zz+i}, v{vT+4}, v{vT+5}""")
                k("s_nop 1")
                for c in range(2):
                    for tn in range(2):
                        k(f"v_mfma_f32_16x16x32_bf16 {v(D+8*c+4*tn,4)}, {v(zz+4*tn,4)}, {v(sel+2-2*c,4)}, 0")
                k("s_nop 4")
                for i in range(8): k(f"v_cvt_pk_bf16_f32 v{zz+i}, v{D+2*i}, v{D+2*i+1}")
                k("s_nop 0")
                swap44(zz, zz + 4)
                for c in range(2):
                    k(vop("zs", f"buffer_store_dwordx4 {v(zz+4*c,4)}, v{vT+2}, s[{sO}:{sO+3}], s{sT + c} offen sc1"))
            k.label(s1)
            del vm[-2:]
            lo()
        if g == gr + 1:
            sp('e26')
            hi()
            k(f"s_waitcnt vmcnt({newer({'zs'})})")
            sp('za')
            gsync(); set_flag(FL_Z)
            sp('zf')
            if so: poison_done()
            lo()
        if g == 27:
            sp('e27')
            hi()
            a_addr(4096)
            k.srd(sA, P_WSP, 2048*4096)
            k(f"s_lshl_b32 s{sSoA}, s{sTB}, 2\ns_add_u32 s{sSoA}, s{sSoA}, s{sW}\ns_lshl_b32 s{sSoA}, s{sSoA}, 17")
            cohA[0] = ntw; natA[0] = False
            if prot is not None:
                wrapA[0] = True
                k(f"""s_and_b32 s36, s{sTB}, 1
                s_mul_i32 s36, s36, {prot[0]}
                s_mul_i32 s37, s{sFG}, {prot[1]}
                s_add_u32 s36, s36, s37
                s_and_b32 s36, s36, 31
                s_mov_b32 s38, s{sSoA}
                s_lshl_b32 s37, s36, 7
                s_add_u32 s{sSoA}, s38, s37""")
            k.srd(sB, P_BSP, 4096)
            k(f"v_lshlrev_b32 v{vT+2}, 1, v{vTok}\nv_lshlrev_b32 v{vDb}, 4, v{vL}\nv_lshlrev_b32 v{vDb+1}, 4, v{vL}")
            k(vop("bias", f"buffer_load_ushort v{vBias}, v{vT+2}, s[{sB}:{sB+3}], 0 offen"))
            lo()
        if g == ev[4]:
            k(f"s_lshl_b32 s{sT}, s{sW}, 13\ns_add_u32 s{sT}, s{sT}, {FL_Z}\nv_and_b32 v{vT+14}, 15, v{vL}\nv_min_u32 v{vT+14}, 13, v{vT+14}\nv_and_or_b32 v{vT+14}, v{vL}, 48, v{vT+14}\nv_lshlrev_b32 v{vT+14}, 7, v{vT+14}")
            k(vop("pz", gload(f"s{sT}", vT + 14, vFg)))
        if g == ev[5]:
            z_ready()
        body(g, "nat", "nat" if g != 29 else ("frag" if ev[5] < 30 else None), first=(g in (10, 20)), doB=(g < 26 or g >= ev[5]), cout=(g not in (16, 26, ev[5] - 1)),
             needp=((ev[5] - 28) if (g == 29 and ev[5] < 30) else 0))
    sp('p3')
    k.label(skipG)
    if ev[5] == 30:
        z_ready()
        k("s_waitcnt vmcnt(2)")
        gsync()
        for r in reads("frag", 0, 0, 30): k(r)
    pat[0] = pats
    cacc[0] = [z1, z2]
    body(30, "frag", "frag", first=True, needp=max(0, ev[5] - 29) if ev[5] < 30 else 0)
    body(31, "frag", "frag")
    k(f"s_mov_b32 s{sNeed}, 30\ns_mov_b32 s{sI}, 0")
    loop = k.lab("gloop")
    sp('l0')
    if "acct" in MX: k("s_waitcnt lgkmcnt(0)\ns_mov_b32 s82, s80\ns_mov_b32 s84, s80")
    if "lin" in MX:
        for p in range(4): k(f"v_mov_b32 v{vD+p}, v{vDb}")
    if "glin" in MX:
        for p in range(4): k(f"v_add_u32 v{vWa+p}, s{sM0A}, v{vDb}")
    if "oob" in MX: k(f"s_mov_b32 s{sA+2}, 0\ns_mov_b32 s{sB+2}, 0")
    if "ooa" in MX: k(f"s_mov_b32 s{sA+2}, 0")
    if "ooz" in MX: k(f"s_mov_b32 s{sB+2}, 0")
    k.align(3)
    k.label(loop)
    inloop[0] = True
    if "nosc" in MX: cohB[0] = ""
    for g in range(32, 38):
        body(g, "frag", "frag", loop=True)
    inloop[0] = False
    k(f"s_add_u32 s{sI}, s{sI}, 1\ns_cmp_lt_u32 s{sI}, 3\ns_cbranch_scc1 {loop}")
    sp('l1')
    if "skip" in MX: k.endpgm(P_WS, 3)
    if "nopt" in MX:
        k("s_waitcnt lgkmcnt(0)")
        k.stamp(1); k("s_waitcnt lgkmcnt(0)")
        for i in range(32): k("s_nop 15")
        k.stamp(2); k("s_waitcnt lgkmcnt(0)")
        for i in range(256): k(f"v_add_u32 v{vT}, 1, v{vT}")
        k.stamp(3); k("s_waitcnt lgkmcnt(0)")
        for i in range(32): k(f"ds_read_b32 v{vT}, v{vFa}\ns_waitcnt lgkmcnt(0)")
        k.stamp(4); k("s_waitcnt lgkmcnt(0)")
    sG, sWb = sI, sBaseA
    def out_ids():
        k(f"s_lshr_b32 s{sG}, s2, 5\ns_mul_i32 s{sWb}, s{sG}, {47*5120}\ns_add_u32 s{sWb}, s{sWb}, {20*5120 - 1024 - L_A}")
    vm[:] = [((t[0], t[1] + 12) if isinstance(t, tuple) else t) for t in vm]
    def gelu4(r0):
        t = vT
        R = range(4)
        o = [f"v_mul_f32 v{t+i}, v{r0+i}, v{r0+i}" for i in R] + [f"v_fmaak_f32 v{t+i}, v{vT+12}, v{t+i}, {fl(GC0)}" for i in R]
        o += [f"v_mul_f32 v{t+i}, v{t+i}, v{r0+i}" for i in R] + [f"v_exp_f32 v{t+i}, v{t+i}" for i in R]
        o += [f"v_add_f32 v{t+i}, 1.0, v{t+i}" for i in R] + [f"v_rcp_f32 v{t+i}, v{t+i}" for i in R]
        return o + [f"v_mul_f32 v{r0+i}, v{t+i}, v{r0+i}" for i in R]
    def wtouch():
        k(f"""s_bfe_u32 s{sT}, s2, 0x20003
        s_lshl_b32 s{sT}, s{sT}, 2
        s_add_u32 s{sT}, s{sT}, s{sW}
        s_mul_i32 s{sT+1}, s{sT}, {50*128}
        s_mul_i32 s{sT+2}, s{sT}, {20*128}
        s_mul_i32 s{sT}, s{sG}, {47*5120}
        s_add_u32 s{sT+1}, s{sT+1}, s{sT}
        s_add_u32 s{sT+2}, s{sT+2}, s{sT}
        s_add_u32 s{sT+2}, s{sT+2}, {39*5120}
        v_min_u32 v{vT+4}, 49, v{vL}
        v_lshlrev_b32 v{vT+4}, 7, v{vT+4}
        v_min_u32 v{vT+5}, 19, v{vL}
        v_lshlrev_b32 v{vT+5}, 7, v{vT+5}
        buffer_load_dword v{vZa}, v{vT+5}, s[{sB}:{sB+3}], s{sT+2} offen sc1
        buffer_load_dword v{vZa}, v{vT+4}, s[{sB}:{sB+3}], s{sT+1} offen sc1""")
    for g in range(50, 62):
        tA = tB = None
        if g == 55:
            k(f"v_and_b32 v{vT+14}, 31, v{vL}\nv_lshlrev_b32 v{vT+14}, 7, v{vT+14}\ns_mov_b32 s{sT}, {FL_W}")
            k(gload(f"s{sT}", vT + 14, vFg))
        if g == 58:
            sp('g58a')
            wk = k.lab("wok")
            gcheck(vFg)
            k(f"s_cbranch_vccz {wk}\ns_mov_b32 s{sT}, {FL_W}")
            gpoll(f"s{sT}", vT + 14, vFg, None, 4)
            k.label(wk)
            sp('g58')
            out_ids()
            k.srd(sB, P_WS, SZ_WF, WS_WF)
        if g == 59:
            k.srd(sA, P_WS, SZ_WF, WS_WF)
            cohA[0] = "sc1"
            hi()
            for p in range(4): k(f"v_mov_b32 v{vD+p}, v{vDb}")
            lo()
        if g == wt: wtouch()
        if g >= 58: tB = f"s_add_u32 s{sSoB}, m0, s{sWb}"
        if g >= 59: tA = f"s_add_u32 s{sSoA}, m0, s{sWb}"
        body(g, "frag", "frag" if g < 61 else None, dyn=True, doA=(g < 59), doB=(g < 58), tailA=tA, tailB=tB, cout=(g < 58), ex=(gelu4(acc[0] + 4*(g - 50)) if g < 58 else ()))
    sp('p4')
    hi()
    fin = k.lab("gfin")
    def rest_w():
        gsync()
        k(f"s_lshl_b32 s{sT+1}, s{sW}, 12\ns_add_u32 m0, s{sT+1}, {L_Z}\ns_add_u32 s{sSoB}, m0, s{sWb}")
        for p in range(4):
            k(f"buffer_load_dwordx4 v{vDb}, s[{sB}:{sB+3}], s{sSoB} offen offset:{1024*p} sc1 lds")
    k.srd(sO, P_WS, SZ_OUF, WS_OUF)
    k(f"""v_lshlrev_b32 v{vBias}, 16, v{vBias}
    s_lshl_b32 s{sT}, s{sTB}, 2
    s_add_u32 s{sT}, s{sT}, s{sW}
    v_mov_b32 v{vBias1}, v{vBias}
    s_mul_i32 s{sT}, s{sT}, {2*47*1024}
    s_lshl_b32 s{sT+1}, s{sFG}, 11
    s_add_u32 s{sT}, s{sT}, s{sT+1}
    v_permlane16_swap_b32 v{vBias}, v{vBias1}
    s_add_u32 s{sT}, s{sT}, {20*1024}
    s_add_u32 s{sT+1}, s{sT}, {47*1024}""")
    for i in range(2):
        if i == 1:
            k(f"s_cmp_eq_u32 s{sFG}, 13\ns_cbranch_scc1 {fin}")
        ga = cacc[0][i]
        if pkv & 2:
            if pkv & 4: k('s_nop 7')
            for r in range(0, 16, 2): k(f"v_pk_add_f32 {v(ga+r,2)}, {v(ga+r,2)}, {v(vBias,2)} " + ("op_sel_hi:[1,0]" if r < 8 else "op_sel:[0,1] op_sel_hi:[1,1]"))
            for r in range(0, 16, 2): k(f"v_pk_mul_f32 {v(ga+r,2)}, {v(ga+r,2)}, {v(acc[i]+r,2)}")
        else:
            for r in range(16): k(f"v_add_f32 v{ga+r}, v{ga+r}, v{vBias if r < 8 else vBias1}")
            for r in range(16): k(f"v_mul_f32 v{ga+r}, v{ga+r}, v{acc[i]+r}")
        for r in range(8): k(f"v_cvt_pk_bf16_f32 v{tmp+8*i+r}, v{ga+2*r}, v{ga+2*r+1}")
        k("s_nop 0")
        swap44(tmp + 8*i, tmp + 8*i + 4)
        for tn in range(2):
            k(f"buffer_store_dwordx4 {v(tmp+8*i+4*tn,4)}, v{vDb}, s[{sO}:{sO+3}], s{sT+tn} offen offset:{1024*i} sc1")
    k.label(fin)
    sp('ust')
    rest_w()
    sp('urw')
    if not sent: set_wflag(FL_U, 4)
    sp('ufl')
    if wt == 62: wtouch()
    k(f"s_branch {outp}")

    k.label(rep)
    vm[:] = [("A", 0)] * 2
    k(f"s_cmp_ge_u32 s{sW}, 2\ns_cbranch_scc1 {kw}")
    k.srd(sB, P_WK, 25600)
    k(f"s_branch {kwd}")
    k.label(kw)
    k.srd(sB, P_WV, 25600)
    k.label(kwd)
    k(f"""v_lshlrev_b32 v{vw}, 4, v{vL}
    v_lshlrev_b32 v{vw+1}, 4, v{vL}
    s_and_b32 s{sSoB}, s{sW}, 1
    s_lshl_b32 s{sSoB}, s{sSoB}, 9
    s_mov_b32 s{sStepB}, 2560
    s_lshr_b32 s{sI}, s{sW}, 1
    s_lshl_b32 s{sI}, s{sI}, 12
    s_add_u32 s{sI}, s{sI}, s{sSoB}
    s_add_u32 s{sI}, s{sI}, {F_B+8192}""")
    if early: l_pass(2, True, setup_rest, lead=lk)
    else:
        l_pass(2, False, lambda: (setup_rest(), k("s_barrier")), lead=lk)
    sp('p1l')
    q_src()
    k("s_barrier\ns_barrier\ns_barrier")
    l_pass(3, False)
    k("s_barrier")
    rl = k.lab("rl")
    att_progress(1, vT + 5, 8)
    if spe: prefetch_sp()
    if so: poison(False)
    k(f"s_mov_b32 s{sNeed}, s{sT64}")
    k.label(rl)
    emit_repack(k, sNeed, sW, vL, P_WO, P_WOUT, P_WS, 8, acc[0], L_A, gsync, coh="sc1", rot=orot)
    k(f"s_add_u32 s{sNeed}, s{sNeed}, 32\ns_waitcnt vmcnt(0)")
    gsync()
    k(f"s_cmp_lt_u32 s{sNeed}, 47\ns_cbranch_scc1 {rl}")
    if so: poison_done()
    nf = k.lab("nf")
    k(f"s_cmp_lg_u32 s{sW}, 0\ns_cbranch_scc1 {nf}\ns_lshl_b32 s{sT}, s{sT64}, 7\ns_add_u32 s{sT}, s{sT}, {FL_W}")
    gset(f"s{sT}", vT, vT + 2)
    k.label(nf)
    k.label(outq)
    sp('p1')
    k(f"s_setprio {lprio}")
    out_ids()
    k.srd(sB, P_WS, SZ_WF, WS_WF)
    if not spe: prefetch_sp()
    if zpf:
        k(f"s_lshl_b32 s{sT}, s{sW}, 13\ns_add_u32 s{sT}, s{sT}, {FL_Z}\nv_and_b32 v{vT}, 15, v{vL}\nv_min_u32 v{vT}, 13, v{vT}\nv_and_or_b32 v{vT}, v{vL}, 48, v{vT}\nv_lshlrev_b32 v{vT}, 7, v{vT}")
        gpoll(f"s{sT}", vT, vT + 2, None, 16)
        gsync()
        zl = k.lab("zl")
        k.srd(sO, P_WS, SZ_Z2F, WS_Z2F)
        k(f"s_bfe_u32 s{sT}, s2, 0x20003\ns_lshl_b32 s{sT}, s{sT}, 2\ns_add_u32 s{sT}, s{sT}, s{sW}\nv_lshlrev_b32 v{vT+8}, 7, v{vL}")
        k.label(zl)
        k(f"""s_mul_i32 s{sT+1}, s{sT}, 2428
        s_lshr_b32 s{sT+1}, s{sT+1}, 16
        s_mul_i32 s{sT+2}, s{sT+1}, 27
        s_sub_u32 s{sT+2}, s{sT}, s{sT+2}
        s_lshl_b32 s{sT+2}, s{sT+2}, 17
        s_add_u32 s{sT+1}, s{sT+1}, {16 - zpf}
        s_lshl_b32 s{sT+1}, s{sT+1}, 13
        s_add_u32 s{sT+1}, s{sT+1}, s{sT+2}
        buffer_load_dword v{vT+9}, v{vT+8}, s[{sO}:{sO+3}], s{sT+1} offen sc1
        s_add_u32 s{sT}, s{sT}, 16
        s_cmp_lt_u32 s{sT}, {27 * zpf}
        s_waitcnt vmcnt(1)
        s_cbranch_scc1 {zl}""")
    att_progress(wfat, vT, 32)
    k(f"v_lshlrev_b32 v{vDb}, 4, v{vL}\nv_lshlrev_b32 v{vT}, 7, v{vL}\ns_mov_b32 s{sT}, {FL_W}")
    gpoll(f"s{sT}", vT, vT + 2, 0xffffffff, 16)
    if so:
        k(f"s_lshl_b32 s{sT}, s{sW}, 13\ns_add_u32 s{sT}, s{sT}, {FL_Z}\nv_and_b32 v{vT}, 15, v{vL}\nv_min_u32 v{vT}, 13, v{vT}\nv_and_or_b32 v{vT}, v{vL}, 48, v{vT}\nv_lshlrev_b32 v{vT}, 7, v{vT}")
        gpoll(f"s{sT}", vT, vT + 2, None, 16)
        gsync()
    if 'w' in pf:
        wl = k.lab("wl")
        k(f"""s_bfe_u32 s{sT}, s2, 0x20003
        s_lshl_b32 s{sT}, s{sT}, 2
        s_add_u32 s{sT}, s{sT}, s{sW}
        s_lshl_b32 s{sT}, s{sT}, 13
        v_lshlrev_b32 v{vT+8}, 7, v{vL}""")
        k.label(wl)
        k(f"""buffer_load_dword v{vT+9}, v{vT+8}, s[{sB}:{sB+3}], s{sT} offen sc1
        s_add_u32 s{sT}, s{sT}, {16*8192}
        s_cmp_lt_u32 s{sT}, {SZ_WF}
        s_waitcnt vmcnt(0)
        s_cbranch_scc1 {wl}""")
    k(f"s_mul_i32 s{sT}, s{sW}, {24*1024}\ns_add_u32 s{sT}, s{sT}, {L_A}")
    for p in range(24):
        if p % 4 == 0:
            k(f"s_add_u32 m0, s{sT}, {1024*p}\ns_add_u32 s{sSoB}, m0, s{sWb}")
        k(f"buffer_load_dwordx4 v{vDb}, s[{sB}:{sB+3}], s{sSoB} offen offset:{1024*(p%4)} sc1 lds")

    if 'v' in pf:
        vl = k.lab("vl")
        k(f"""s_bfe_u32 s{sT}, s2, 0x20003
        s_lshl_b32 s{sT}, s{sT}, 2
        s_add_u32 s{sT}, s{sT}, s{sW}
        s_lshr_b32 s{sT+1}, s{sT}, 1
        s_mul_i32 s{sT+1}, s{sT+1}, {47*5120}
        s_and_b32 s{sT}, s{sT}, 1
        s_lshl_b32 s{sT}, s{sT}, 13
        v_lshlrev_b32 v{vT+8}, 7, v{vL}""")
        k.label(vl)
        k(f"""s_add_u32 s{sT+2}, s{sT}, {39*5120}
        s_sub_u32 s{sT+3}, s{sT}, {8*5120}
        s_cselect_b32 s{sT+2}, s{sT+2}, s{sT+3}
        s_add_u32 s{sT+2}, s{sT+2}, s{sT+1}
        buffer_load_dword v{vT+9}, v{vT+8}, s[{sB}:{sB+3}], s{sT+2} offen sc1
        s_add_u32 s{sT}, s{sT}, 16384
        s_cmp_lt_u32 s{sT}, {28*5120}
        s_waitcnt vmcnt(1)
        s_cbranch_scc1 {vl}
        s_waitcnt vmcnt(0)""")
    k.label(outp)
    sp('outp')
    sWF, sOU, sXo = sB, sA, sO
    sTT, sAo, sXof = sSoA, sStepB, sM0A
    a = Alloc(8)
    oacc = a(20, 4)
    af = a(80, 4)
    wb = [a(20, 4), a(20, 4)]
    xr = a(10, 2)
    vQ = a(4, 2)
    vA16, vW0, vW1, vXo, vP = a(), a(), a(), a(), a()
    assert a.n <= 168, a.n
    k.srd(sOU, P_WS, SZ_OUF, WS_OUF)
    k.srd(sXo, P_X, SZ_Q)
    k(f"""s_lshl_b32 s{sTT}, s{sT64}, 2
    s_add_u32 s{sTT}, s{sTT}, s{sW}
    s_mul_i32 s{sAo}, s{sTT}, {47*1024}
    s_mul_i32 s{sXof}, s{sTT}, {16*1280}
    s_mul_i32 s{sT}, s{sG}, 160
    s_add_u32 s{sXof}, s{sXof}, s{sT}
    v_lshlrev_b32 v{vA16}, 4, v{vL}
    v_add_u32 v{vW0}, {L_W}, v{vA16}
    v_add_u32 v{vW1}, {L_W+51200}, v{vA16}
    v_lshlrev_b32 v{vP}, 7, v{vL}
    v_and_b32 v{vXo}, 15, v{vL}
    v_mul_u32_u24 v{vXo}, 1280, v{vXo}
    v_lshrrev_b32 v{vQ}, 4, v{vL}
    v_lshl_add_u32 v{vXo}, v{vQ}, 3, v{vXo}""")
    k(f"s_setprio {lprio}")
    sWs, sWd = sT + 1, sT + 2
    k(f"s_mul_i32 s37, s{sG}, 5\ns_lshr_b32 s37, s37, 1\ns_mul_i32 s38, s{sG}, 27\ns_lshr_b32 s38, s38, 3")
    sU = sNeed
    vm[:] = []
    ld = []
    def lop(tag, txt): ld.append(tag); k(txt)
    def lnewer(tag): return min(15, len(ld) - 1 - max(i for i, t in enumerate(ld) if t == tag))
    def wpieces(step0, lds0, npieces, tag):
        per = npieces // 4
        def setup():
            k(f"""s_mul_i32 s{sWs}, s{sG}, {47*5120}
            s_mul_i32 s{sWd}, s{sW}, {per*1024}
            s_add_u32 s{sWs}, s{sWs}, s{sWd}
            s_add_u32 s{sWs}, s{sWs}, {step0*5120}
            s_add_u32 s{sWd}, s{sWd}, {lds0}""")
        def piece(p):
            if p == 0: setup()
            if p % 4 == 0:
                k(f"s_add_u32 m0, s{sWd}, {1024*p}")
                k(f"s_add_u32 s{sWs}, s{sWs}, 4096" if p else "s_nop 0")
            k(vop(tag, f"buffer_load_dwordx4 v{vA16}, s[{sWF}:{sWF+3}], s{sWs} offen offset:{1024*(p%4)} sc1 lds"))
        return [lambda p=p: piece(p) for p in range(per)]
    def aloads(steps, regs):
        def one(st, r):
            if orot:
                lo_, n_, sr = (0, 20, 37) if st < 20 else (20, 27, 38)
                k(f"s_add_u32 s{sT}, s{sr}, {st-lo_}\ns_sub_u32 s39, s{sT}, {n_}\ns_cselect_b32 s{sT}, s{sT}, s39\ns_lshl_b32 s{sT}, s{sT}, 10\ns_add_u32 s{sT}, s{sT}, s{sAo}")
                if lo_: k(f"s_add_u32 s{sT}, s{sT}, {lo_*1024}")
            else:
                k(f"s_add_u32 s{sT}, s{sAo}, {st*1024}")
            k(vop(("a", st), f"buffer_load_dwordx4 {v(af+4*r,4)}, v{vA16}, s[{sOU}:{sOU+3}], s{sT} offen sc1"))
        return [lambda st=st, r=r: one(st, r) for st, r in zip(steps, regs)]
    def wread(slot, b, u, tag):
        if isinstance(slot, tuple): base, o = vA16, slot[1] * 5120
        else: base, o = (vW0, slot * 5120) if slot < 10 else (vW1, (slot - 10) * 5120)
        lop(tag, f"ds_read_b128 {v(wb[b]+4*u,4)}, v{base} offset:{o+1024*u}")
    first = [True]
    def arrive():
        k(f"s_add_u32 s{sCnt}, s{sCnt}, 1\nv_mov_b32 v{vFl}, s{sCnt}")
        lop("w", f"ds_write_b32 v{vXw}, v{vFl}")
    def peek(): lop("pk", f"ds_read_b32 v{vQ}, v{vXa}")
    def check():
        sl = k.lab("oslow"); ok = k.lab("ook")
        k(f"s_waitcnt lgkmcnt({lnewer('pk')})\nv_cmp_gt_u32 vcc, s{sCnt}, v{vQ}\ns_cbranch_vccnz {sl}")
        k.label(ok)
        cold2.append((sl, ok))
    cold2 = []; cold3 = []; novm = [False]
    def compute(seq, side, hooks={}):
        for i in range(min(2, len(seq))):
            for u in range(5): wread(seq[i][0], i % 2, u, ("r", i))
        for i, (sl, st, r) in enumerate(seq):
            b = i % 2
            nv = 63 if novm[0] else newer({("a", st)})
            k(f"s_waitcnt vmcnt({min(63, nv)}) lgkmcnt({lnewer(('r', i))})")
            if so and st < 20:
                a0 = af + 4*r
                sl = k.lab("vslow"); ok = k.lab("vok")
                k(f"v_max3_u32 v{vQ+1}, v{a0}, v{a0+1}, v{a0+2}\nv_max_u32 v{vQ+1}, v{vQ+1}, v{a0+3}\nv_cmp_eq_u32 vcc, -1, v{vQ+1}\ns_cbranch_vccnz {sl}")
                k.label(ok)
                cold3.append((sl, ok, st, r))
            sp(f's{st}')
            if i in hooks: hooks[i]()
            sd = list(side.get(i, []))
            for u in range(5):
                c = "0" if first[0] else v(oacc+4*u, 4)
                k(f"v_mfma_f32_16x16x32_bf16 {v(oacc+4*u,4)}, {v(wb[b]+4*u,4)}, {v(af+4*r,4)}, {c}")
                if i + 2 < len(seq): wread(seq[i + 2][0], b, u, ("r", i + 2))
                if sd and u in ((1, 3, 4, 2, 0)[:len(side.get(i, []))]): sd.pop(0)()
            assert not sd
            first[0] = False
    def deal(em, i0, per):
        return {i0 + j: em[per*j:per*(j+1)] for j in range((len(em) + per - 1) // per)}
    def xload(u): k(vop("x", f"buffer_load_dwordx2 {v(xr+2*u,2)}, v{vXo}, s[{sXo}:{sXo+3}], s{sXof} offen offset:{32*u}"))
    if not xl:
        for u in range(5): xload(u)
    smode = [False]
    def probe_load(mask, vd, kind):
        k(f"s_mov_b64 exec, {hx(mask)}")
        if smode[0]: k(vop("of", f"buffer_load_dword v{vd}, v{vP}, s[{sOU}:{sOU+3}], s{sU} offen sc1"))
        else: k(vop("of", gload(f"s{sU}", vP, vd)))
        k("s_mov_b64 exec, -1")
    def probe_check(mask, vd):
        k(f"s_mov_b64 exec, {hx(mask)}")
        if smode[0]: k(f"v_cmp_eq_u32 vcc, -1, v{vd}")
        else: gcheck(vd)
        k("s_mov_b64 exec, -1")
    def probe(mask, slp):
        l = k.lab("pb"); d = k.lab("pbd")
        k.label(l)
        probe_load(mask, vQ, 0)
        k("s_waitcnt vmcnt(0)")
        probe_check(mask, vQ)
        k(f"s_cbranch_vccz {d}\ns_sleep {slp}")
        again(l)
        k.label(d)
    if o2:
        k(f"s_mul_i32 s{sWs}, s{sG}, {47*5120}\ns_mul_i32 s{sWd}, s{sW}, 10240\ns_add_u32 s{sWs}, s{sWs}, s{sWd}\ns_add_u32 s{sWs}, s{sWs}, {39*5120}")
        k(f"s_add_u32 s{sWd}, s{sWd}, {L_W + 5120}\nv_add_u32 v{vFw}, s{sWd}, v{vA16}")
        for p in range(10):
            if p and p % 4 == 0: k(f"s_add_u32 s{sWs}, s{sWs}, 4096")
            k(f"buffer_load_dwordx4 {v(af+40+4*p,4)}, v{vA16}, s[{sWF}:{sWF+3}], s{sWs} offen offset:{1024*(p%4)} sc1")
    k("s_setprio 3")
    if sent:
        k(f"v_lshlrev_b32 v{vP}, 10, v{vL}\ns_add_u32 s{sU}, s{sAo}, {20*1024+1020}")
        probe((1 << 27) - 1, 1)
        gsync()
        k(f"v_mul_u32_u24 v{vP}, 2560, v{vL}\ns_add_u32 s{sU}, s{sAo}, 2556")
    else:
        k(f"s_lshr_b32 s{sU}, s{sTT}, 1\ns_lshl_b32 s{sU}, s{sU}, 11\ns_add_u32 s{sU}, s{sU}, {FL_U}")
        k("s_waitcnt vmcnt(0)")
        gsync()
        probe(0x3fff, us)
        sp('upr')
        if so:
            k(f"v_mul_u32_u24 v{vP}, 2560, v{vL}\ns_add_u32 s{sU}, s{sAo}, 2556")
            smode[0] = True
        else:
            k(f"s_lshl_b32 s{sU}, s{sT64}, 10\ns_add_u32 s{sU}, s{sU}, {FL_O}")
    sp('upoll')
    k(f"s_setprio {oprio}")
    if o2:
        ul = aloads(range(20, 47), [i % 10 for i in range(27)])
        for e in ul[:10]: e()
        side = {i + 1: [ul[10 + i]] for i in range(17)}
        wr = [lambda p=p: lop("ww", f"ds_write_b128 v{vFw}, {v(af+40+4*p,4)} offset:{1024*p}") for p in range(10)]
        for i, e in deal(wr, 10, 2).items(): side[i] = side[i] + e
        for i, e in deal(wpieces(12, L_W + 9 * 5120, 40, "b3"), 17, 2).items(): side[i] = side.get(i, []) + e
        side[18] = [lambda: probe_load(0xff, vQ + 2, 1)] + side[18]
        sOd = sMask
        ofirst = aloads(range(10), range(10, 20))
        def arrive2():
            k(f"s_waitcnt lgkmcnt({lnewer('ww')})"); arrive()
        def otry():
            k(f"s_waitcnt vmcnt({newer({'of'})})")
            novm[0] = True
            probe_check(0xff, vQ + 2)
            k(f"s_cmp_eq_u64 vcc, 0\ns_cselect_b32 s{sOd}, 1, 0")
        def cond(e):
            def f_():
                l = k.lab("oc")
                k(f"s_cmp_eq_u32 s{sOd}, 0\ns_cbranch_scc1 {l}")
                e()
                k.label(l)
            return f_
        side.update(deal([cond(e) for e in ofirst], 22, 2))
        seq = [(1 + i if i < 19 else i - 18, 20 + i, i % 10) for i in range(27)]
        compute(seq, side, {7: arrive, 9: peek, 10: check, 15: arrive2, 16: peek, 17: check, 22: otry})
        novm[0] = False
        sp('o4')
        late = k.lab("olate"); join = k.lab("ojoin")
        k(f"s_cmp_eq_u32 s{sOd}, 0\ns_cbranch_scc1 {late}")
        k.label(join)
        sp('c3')
        lds_wait(L_F + F_OC, vQ, vQ + 1, 1)
        k("s_setprio 3")
        ld[:] = []
        oregs = list(range(10, 20)) + list(range(10))
        seq4 = [(("T", i), i, oregs[i]) for i in range(12)] + [(9 + i, 12 + i, oregs[12 + i]) for i in range(8)]
        def b3_arrive():
            k(f"s_waitcnt vmcnt({newer({'b3'})})"); arrive()
        compute(seq4, deal(aloads(range(10, 20), range(10)), 0, 2), {6: b3_arrive, 8: peek, 9: check})
    else:
        ul = aloads(range(20, 40), range(20))
        for e in ul[:8]: e()
        side = deal(ul[8:], 0, 2)
        side.update(deal(aloads(range(40, 47), range(7)), 8, 4))
        side.update(deal(wpieces(39, L_W + 5120, 40, "b2"), 10, 2))
        def oflag():
            probe_load(0xff, vQ + 2, 1)
        side[16] = [oflag]
        if xl:
            side[15] = [lambda: xload(0), lambda: xload(1)]; side[17] = [lambda: xload(2), lambda: xload(3)]; side[18] = [lambda: xload(4)]
        compute([(1 + i, 20 + i, i) for i in range(19)], side, {7: arrive, 9: peek, 10: check})
        sp('o4')
        k(f"s_waitcnt vmcnt(0)")
        gsync()
        late = k.lab("olate"); join = k.lab("ojoin")
        probe_check(0xff, vQ + 2)
        k(f"s_cbranch_vccnz {late}")
        seq3 = [(1 + i, 39 + i, ([19] + list(range(7)))[i]) for i in range(8)]
        oregs = list(range(7, 19)) + [19] + list(range(7))
        save = list(vm)
        em = wpieces(12, L_W + 9 * 5120, 40, "b3") + aloads(range(12), oregs[:12])
        compute(seq3, deal(em, 0, 3))
        k.label(join)
        sp('c3')
        lds_wait(L_F + F_OC, vQ, vQ + 1, 1)
        k("s_setprio 3")
        ld[:] = []
        seq4 = [(("T", i), i, oregs[i]) for i in range(12)] + [(9 + i, 12 + i, oregs[12 + i]) for i in range(8)]
        def b3_arrive():
            k(f"s_waitcnt vmcnt({newer({'b3'})})"); arrive()
        compute(seq4, deal(aloads(range(12, 20), oregs[12:]), 0, 2), {6: b3_arrive, 8: peek, 9: check})
        vm_fast = None
    sp('odone')
    k.srd(sXo, P_OUT, SZ_Q)
    k(f"s_mov_b32 s{sT}, 0xffff0000")
    t = wb[0]
    for u in range(5):
        for hh in range(2):
            k(f"v_lshlrev_b32 v{t+4*u+2*hh}, 16, v{xr+2*u+hh}\nv_and_b32 v{t+4*u+2*hh+1}, s{sT}, v{xr+2*u+hh}")
    for i in range(20):
        k(f"v_add_f32 v{t+i}, v{t+i}, v{oacc+i}")
    for u in range(5):
        k(f"v_cvt_pk_bf16_f32 v{xr+2*u}, v{t+4*u}, v{t+4*u+1}\nv_cvt_pk_bf16_f32 v{xr+2*u+1}, v{t+4*u+2}, v{t+4*u+3}")
    for u in range(5):
        k(f"buffer_store_dwordx2 {v(xr+2*u,2)}, v{vXo}, s[{sXo}:{sXo+3}], s{sXof} offen offset:{32*u} {oc}")
    ne = k.lab("ne")
    k(f"s_or_b32 s{sT}, s2, s{sW}\ns_cbranch_scc1 {ne}\ns_mov_b32 s{sT}, {hx(FL_E)}")
    gset(f"s{sT}", vP, vQ)
    k.label(ne)
    k.endpgm(P_WS, 3)
    k.label(late)
    if o2:
        probe(0xff, 1)
        for e in ofirst: e()
    else:
        vm[:] = save; ld[:] = []
        compute(seq3, deal(wpieces(12, L_W + 9 * 5120, 40, "b3"), 0, 2))
        probe(0xff, 1)
        for e in aloads(range(12), oregs[:12]): e()
    k(f"s_branch {join}")
    for sl, ok, st, r in cold3:
        a0 = af + 4*r
        k.label(sl)
        k("s_sleep 1")
        aloads([st], [r])[0]()
        k(f"s_waitcnt vmcnt(0)\nv_max3_u32 v{vQ+1}, v{a0}, v{a0+1}, v{a0+2}\nv_max_u32 v{vQ+1}, v{vQ+1}, v{a0+3}\nv_cmp_eq_u32 vcc, -1, v{vQ+1}\ns_cbranch_vccz {ok}")
        again(sl)
        k(f"s_branch {ok}")
    for sl, ok in cold2:
        k.label(sl)
        spinw(vXa, f"s{sCnt}")
        k(f"s_branch {ok}")
    for sl, need, ok in cold:
        k.label(sl)
        spinw(vFa, need)
        k(f"s_branch {ok}")
    k.label(end)
    k("s_endpgm")
    return k
```

```python
from common import *
import os, math
from k2parts import emit_repack
import attn2, attn3
from attn2 import ATT_LDS, CH

MX = os.environ.get('MX', '')
SP = os.environ.get('SP', 'p1,p2,p3,p4').split(',')
QSCALE = math.log2(math.e) / math.sqrt(20.0)
GC0 = -2.0 * math.sqrt(2.0 / math.pi) * math.log2(math.e)
GC1 = GC0 * 0.044715

L_A = ATT_LDS
L_Z = L_A + 3 * 16384
L_W = L_A - 4096
L_CS = L_Z + 6 * 8192
L_F = L_CS + 2048
F_G, F_OC, F_XC, F_GO, F_XR, F_AUX = 32, 48, 52, 56, 60, 64
MEGA_LDS = L_F + 128
F_QS, F_STS, F_KVS, F_CS = 2 * CH, 2 * CH + 12288, 2 * CH + 12800, 2 * CH + 18176
F_B, F_S = ATT_LDS // 3, 20480
NAME = "parallel_sum__grouped_kv_mqa__mixer_gmlp__prompt_kernel"

def gen_mega(noatt=False, patz='33333333', pats='33333333', lprio=0, seam=True, oprio=0, pf='gis', ntx='', ntw='', repw='g', cpf=True, pslp=1, deep=False, tb=False, wfat=6, rprio=3, yph=3, thr=None, bal=3, ldot=True, xst=2, frot=0, orot=False, tsplit=12, prot=None, sent=False, oc='', lq=4, lk=5, xstk=2, bal33=True, noex=True, spe=True, two=True, ev=(0, 0, 0, 0, 27, 28), zpf=0, kvq=True, so=False, pkv=0, gr=23, m42=1, wt=0, us=2, xl=False, o2=True, ist=5, pb=True, zrot=None, g1n=4, g2n=8):
    k = Kern(NAME, 256, 768, MEGA_LDS, 168, sgprs=100)
    P_X, P_WQ, P_WK, P_WV, P_WO = 44, 46, 48, 50, 52
    P_WIN, P_WSP, P_BSP, P_WOUT, P_OUT, P_DBG, P_WS = 56, 58, 60, 62, 64, 66, 68
    sWid, sTok, sBlk, sTB, sFG, sBud = 3, 4, 5, 6, 7, 70
    sT64, sHG = 98, 99
    sNo = 96
    sFl = 72
    vL = 1
    end = k.lab("end"); gem = k.lab("gem")
    k(f"s_cmp_ge_u32 s2, 256\ns_cbranch_scc1 {end}")
    k.stamp(0); k.stamp_rt(5)
    k(f"s_load_dwordx8 s[{P_X}:{P_X+7}], s[0:1], {KA_X}\ns_load_dwordx2 s[{P_WO}:{P_WO+1}], s[0:1], {KA_WO}")
    k(f"s_load_dwordx8 s[{P_WIN}:{P_WIN+7}], s[0:1], {KA_WIN}\ns_load_dwordx4 s[{P_OUT}:{P_OUT+3}], s[0:1], {KA_OUT}\ns_load_dwordx2 s[{P_WS}:{P_WS+1}], s[0:1], {KA_WS}")
    k(f"""v_lshrrev_b32 v2, 6, v0
    v_and_b32 v1, 63, v0
    v_readfirstlane_b32 s{sWid}, v2
    v_and_b32 v2, 31, v0
    v_lshlrev_b32 v2, 2, v2
    v_add_u32 v2, {L_F}, v2
    v_mov_b32 v3, 0
    ds_write_b32 v2, v3
    v_and_b32 v2, 3, v0
    v_lshlrev_b32 v2, 8, v2
    v_add_u32 v2, {L_CS}, v2
    ds_write_b32 v2, v3
    s_and_b32 s{sTB}, s2, 7
    s_lshl_b32 s{sBlk}, s{sTB}, 5
    s_lshr_b32 s{sTok}, s2, 3
    s_add_u32 s{sBlk}, s{sBlk}, s{sTok}
    s_lshl_b32 s{sTok}, s{sBlk}, 3
    s_add_u32 s{sTok}, s{sTok}, s{sWid}
    s_lshl_b32 s{sTB}, s{sTB}, 1
    s_bfe_u32 s{sFG}, s2, 0x10003
    s_add_u32 s{sTB}, s{sTB}, s{sFG}
    s_lshr_b32 s{sFG}, s2, 4
    s_and_b32 s{sT64}, s2, 7
    s_lshl_b32 s{sT64}, s{sT64}, 2
    s_bfe_u32 s{sHG}, s2, 0x20003
    s_add_u32 s{sT64}, s{sT64}, s{sHG}
    s_lshr_b32 s{sHG}, s2, 5
    s_mov_b32 s{sBud}, 400000
    s_waitcnt lgkmcnt(0)""")
    if m42:
        k(f"""s_bfe_u32 s{sTB}, s2, 0x20001
        s_lshl_b32 s{sTB}, s{sTB}, 2
        s_bfe_u32 s{sFG}, s2, 0x20003
        s_add_u32 s{sTB}, s{sTB}, s{sFG}
        s_and_b32 s{sFG}, s2, 1
        s_mul_i32 s{sFG}, s{sFG}, 7
        s_add_u32 s{sFG}, s{sFG}, s{sHG}""")
    k.srd(sFl, P_WS, SZ_FLAG, WS_FLAG)
    k(f"s_load_dwordx2 s[{sNo}:{sNo+1}], s[{sFl}:{sFl+1}], {hx(FL_E)}")
    k(f"s_cmp_ge_u32 s{sWid}, 8\ns_cbranch_scc1 {gem}")

    def again(l):
        k(f"s_sub_u32 s{sBud}, s{sBud}, 1\ns_cbranch_scc0 {l}")
    def lds_wait(addr, va, vd, slp=1):
        val = {F_XR: 8, F_GO: 4, F_OC: 10, F_XC: 1}[addr - L_F]
        l = k.lab("lw"); d = k.lab("lwd")
        k(f"v_mov_b32 v{va}, {addr}")
        k.label(l)
        k(f"ds_read_b32 v{vd}, v{va}\ns_waitcnt lgkmcnt(0)\nv_cmp_gt_u32 vcc, {val}, v{vd}\ns_cbranch_vccz {d}\ns_sleep {slp}")
        again(l)
        k.label(d)
    def lds_set(addr, va, vd):
        k(f"v_mov_b32 v{va}, {addr}\nv_mov_b32 v{vd}, 1\nds_write_b32 v{va}, v{vd}")
    def gcheck(vd):
        k(f"v_cmp_ne_u64 vcc, s[{sNo}:{sNo+1}], {v(vd,2)}")
    def gload(soff, voff, vd):
        return f"buffer_load_dwordx2 {v(vd,2)}, v{voff}, s[{sFl}:{sFl+3}], {soff} offen sc1"
    def gpoll(soff, voff, vd, mask, slp):
        l = k.lab("pl"); d = k.lab("pd")
        if mask is not None: k(f"s_mov_b64 exec, {hx(mask)}")
        k.label(l)
        k(gload(soff, voff, vd))
        k("s_waitcnt vmcnt(0)")
        gcheck(vd)
        k(f"s_cbranch_vccz {d}\ns_sleep {slp}")
        again(l)
        k.label(d)
        if mask is not None: k("s_mov_b64 exec, -1")
    def gset(soff, va, vd):
        k(f"""v_mov_b32 v{vd}, s{sNo}
        v_mov_b32 v{vd+1}, s{sNo+1}
        v_lshlrev_b32 v{va}, 3, v{vL}
        s_mov_b64 exec, 0xffff
        buffer_store_dwordx2 {v(vd,2)}, v{va}, s[{sFl}:{sFl+3}], {soff} offen sc1
        s_mov_b64 exec, -1""")
    def spoll(offs, s0, slp=1):
        l = k.lab("sp"); r = k.lab("spr"); d = k.lab("spd")
        k.label(l)
        for i, (so, im) in enumerate(offs):
            k(f"s_load_dwordx2 s[{s0+2*i}:{s0+2*i+1}], s[{sFl}:{sFl+1}], s{so} offset:{hx(im)} glc")
        k("s_waitcnt lgkmcnt(0)")
        for i in range(len(offs)):
            k(f"s_cmp_eq_u64 s[{s0+2*i}:{s0+2*i+1}], s[{sNo}:{sNo+1}]")
            k(f"s_cbranch_scc0 {r}" if i + 1 < len(offs) else f"s_cbranch_scc1 {d}")
        k.label(r)
        k(f"s_sleep {slp}")
        again(l)
        k.label(d)
    def nonce():
        k(f"s_waitcnt lgkmcnt(0)\ns_add_u32 s{sNo}, s{sNo}, 1")

    sX, sO, sT, sMask = 8, 12, 16, 24
    raw, f, st, vA = 4, 12, 28, 30
    nz = k.lab("nz")
    skipA = k.lab("skipA"); skipG = k.lab("skipG")
    if "skip" in MX and "gonly" in MX:
        k("s_barrier"); k.endpgm(P_WS, 4)
    if "skip" in MX: k(f"s_barrier\ns_mov_b32 s27, 1\ns_branch {skipA}")
    k.srd(sX, P_X, SZ_Q)
    k(f"s_mul_i32 s{sT}, s{sTok}, 1280\nv_lshlrev_b32 v{vA}, 4, v{vL}\ns_mov_b32 s{sMask}, 0xffff0000")
    for i in range(4, 8):
        k(f"v_mov_b32 v{raw+i}, 0")
    k(f"buffer_load_dwordx4 {v(raw,4)}, v{vA}, s[{sX}:{sX+3}], s{sT} offen {ntx}")
    k("s_mov_b64 exec, 0xffff")
    k(f"buffer_load_dwordx4 {v(raw+4,4)}, v{vA}, s[{sX}:{sX+3}], s{sT} offen offset:1024 {ntx}")
    k("s_mov_b64 exec, -1")
    def touch(idx, nq):
        k(f"s_mul_i32 s{sT+2}, s{idx}, {nq*128}\ns_lshl_b32 s{sT+3}, s{idx}, 7\ns_mov_b64 exec, {hx((1 << nq) - 1)}")
        k(f"buffer_load_dword v{vA+2}, v{vA+1}, s[28:31], s{sT+2} offen\ns_mov_b64 exec, 1")
        k(f"buffer_load_dword v{vA+2}, v{vA+1}, s[32:35], s{sT+3} offen")
        k(f"buffer_load_dword v{vA+2}, v{vA+1}, s[36:39], s{sT+3} offen\ns_mov_b64 exec, -1")
    k(f"v_lshlrev_b32 v{vA+1}, 7, v{vL}\ns_and_b32 s{sT+1}, s{sTok}, 255")
    k.srd(28, P_WQ, 640*1280); k.srd(32, P_WK, 25600); k.srd(36, P_WV, 25600)
    if 'g' in pf and kvq:
        k(f"s_lshl_b32 s{sT+1}, s2, 3\ns_add_u32 s{sT+1}, s{sT+1}, s{sWid}")
        touch(sT + 1, 4)
        if ist == -1:
            k.srd(sO, P_WIN, 640*3456)
            k(f"s_mul_i32 s{sT+2}, s{sT+1}, {10*128}\ns_mov_b64 exec, 0x3ff")
            k(f"buffer_load_dword v{vA+2}, v{vA+1}, s[{sO}:{sO+3}], s{sT+2} offen\ns_mov_b64 exec, -1")
    elif 'g' in pf: touch(sTok, 4)
    elif 'x' in pf: touch(sT + 1, 25)
    k.srd(sO, P_WS, SZ_XN, WS_XN)
    nonce()
    sXt = 20
    def xn_compute(kvg=False):
        if 'g' in pf and 'x' in pf:
            k("s_waitcnt vmcnt(0)")
            if not kvg:
                k(f"s_and_b32 s{sXt}, s{sTok}, 255\ns_mul_i32 s{sXt+1}, s{sXt}, {29*128}\ns_mov_b64 exec, {hx((1 << 29) - 1)}")
                k(f"buffer_load_dword v{vA+2}, v{vA+1}, s[28:31], s{sXt+1} offen\ns_mov_b64 exec, -1")
            if 'b' in pf: k("s_barrier")
        else:
            k(f"s_waitcnt vmcnt({4 if ist == -1 else 3})" if ('x' in pf or 'g' in pf) else "s_waitcnt vmcnt(0)")
        for i in range(8):
            k(f"v_lshlrev_b32 v{f+2*i}, 16, v{raw+i}\nv_and_b32 v{f+2*i+1}, s{sMask}, v{raw+i}")
        k(f"v_add_f32 v{st}, v{f}, v{f+1}\nv_mul_f32 v{st+1}, v{f}, v{f}")
        for i in range(1, 16):
            if i > 1: k(f"v_add_f32 v{st}, v{st}, v{f+i}")
            k(f"v_fmac_f32 v{st+1}, v{f+i}, v{f+i}")
        for m in ("row_shr:1", "row_shr:2", "row_shr:4", "row_shr:8"):
            k("s_nop 0")
            for i in range(2):
                k(f"v_add_f32_dpp v{st+i}, v{st+i}, v{st+i} {m} row_mask:0xf bank_mask:0xf bound_ctrl:0")
        for m in ("row_bcast:15 row_mask:0xa", "row_bcast:31 row_mask:0xc"):
            k("s_nop 0")
            for i in range(2):
                k(f"v_add_f32_dpp v{st+i}, v{st+i}, v{st+i} {m} bank_mask:0xf")
        k(f"""v_mul_f32 v{st}, {fl(1.0/640)}, v{st}
        v_mul_f32 v{st+1}, {fl(1.0/640)}, v{st+1}
        v_fma_f32 v{st+1}, -v{st}, v{st}, v{st+1}
        v_max_f32 v{st+1}, 0, v{st+1}
        v_add_f32 v{st+1}, {fl(1e-5)}, v{st+1}
        v_rsq_f32 v{st+1}, v{st+1}
        s_mul_i32 s{sXt+2}, s{sTok}, {XN_ST}
        v_mul_f32 v{st}, v{st}, v{st+1}
        s_nop 0
        v_readlane_b32 s{sXt}, v{st+1}, 63
        v_readlane_b32 s{sXt+1}, v{st}, 63
        s_nop 1
        v_mov_b32 v{st}, s{sXt+1}""")
        for i in range(16):
            k(f"v_fma_f32 v{f+i}, v{f+i}, s{sXt}, -v{st}")
        for i in range(8):
            k(f"v_cvt_pk_bf16_f32 v{raw+i}, v{f+2*i}, v{f+2*i+1}")
        k(f"buffer_store_dwordx4 {v(raw,4)}, v{vA}, s[{sO}:{sO+3}], s{sXt+2} offen sc1")
        k("s_mov_b64 exec, 0xffff")
        k(f"buffer_store_dwordx4 {v(raw+4,4)}, v{vA}, s[{sO}:{sO+3}], s{sXt+2} offen offset:1024 sc1")
        if ist is not None: pass
        elif 'i' in pf and kvq and not kvg:
            k.srd(sO, P_WIN, 640*3456)
            k(f"s_lshl_b32 s{sXt}, s2, 3\ns_add_u32 s{sXt}, s{sXt}, s{sWid}\ns_mul_i32 s{sXt}, s{sXt}, {10*128}\ns_mov_b64 exec, 0x3ff")
            k(f"buffer_load_dword v{vA+2}, v{vA+1}, s[{sO}:{sO+3}], s{sXt} offen")
        elif 'i' in pf and not kvq:
            k.srd(sO, P_WIN, 640*3456)
            k(f"s_mul_i32 s{sXt}, s{sTok}, {9*128}\ns_mov_b64 exec, 0x1ff")
            k(f"buffer_load_dword v{vA+2}, v{vA+1}, s[{sO}:{sO+3}], s{sXt} offen")
        k("s_mov_b64 exec, -1")
    a = Alloc(36)
    fa = a(16, 4); fc = a(4, 4); fsx = a(4, 4)
    fX = [a(16, 4), a(16, 4)]; fW = [a(16, 4), a(16, 4)]
    fXa = a(4, 1); fWa = a()
    fN, fH = a(), a()
    fO = a(2, 2); fT = a(12, 4); fK = a(2, 2); fKa = a()
    assert a.n <= 168, a.n
    sI, sD, sKd, sB0 = 25, 26, 27, 28
    QS, STS, KVS = F_QS, F_STS, F_KVS
    k(f"""v_and_b32 v{fN}, 31, v{vL}
    v_lshrrev_b32 v{fH}, 5, v{vL}
    v_mov_b32 v{fO}, 0x3f803f80
    v_mov_b32 v{fO+1}, 0x3f803f80
    s_mov_b32 s{sKd}, 0
    s_lshl_b32 s{sT}, s{sWid}, 7
    v_lshl_add_u32 v{fKa}, v{vL}, 10, s{sT}""")
    def f_addr(rowb, woff):
        k(f"""v_bfe_u32 v{fT}, v{fN}, 1, 3
        v_xor_b32 v{fT}, v{fT}, v{fH}
        s_and_b32 s{sT}, s{sWid}, 1
        s_lshl_b32 s{sT}, s{sT}, 12
        s_add_u32 s{sT}, s{sT}, {F_B}
        v_lshl_add_u32 v{fT+1}, v{fN}, 7, s{sT}""")
        for q in range(4):
            k(f"v_xor_b32 v{fT+2}, {2*q}, v{fT}\nv_lshl_add_u32 v{fXa+q}, v{fT+2}, 4, v{fT+1}")
        k(f"""v_bfe_u32 v{fT}, v{vL}, 2, 2
        v_lshl_add_u32 v{fT}, v{fH}, 3, v{fT}
        v_mul_u32_u24 v{fT}, {rowb}, v{fT}
        v_bfe_u32 v{fT+1}, v{vL}, 4, 1
        v_lshl_add_u32 v{fT}, v{fT+1}, 5, v{fT}
        v_and_b32 v{fT+1}, 3, v{vL}
        v_lshl_add_u32 v{fT}, v{fT+1}, 3, v{fT}
        s_add_u32 s{sT}, {woff}, {F_B+8192}
        v_add_u32 v{fWa}, s{sT}, v{fT}""")
        if rowb == 192:
            k(f"s_and_b32 s{sT}, s{sHG}, 1\ns_lshl_b32 s{sT}, s{sT}, 5\nv_add_u32 v{fWa}, s{sT}, v{fWa}")
        for r in list(range(fa, fa + 16)) + list(range(fc, fc + 4)) + list(range(fsx, fsx + 4)):
            k(f"v_mov_b32 v{r}, 0")
    def f_pass(kind, rowb, first):
        uo = (0, 64, 128) if rowb == 192 else (0, 4096)
        xs_ = xst if rowb == 192 else xstk
        cf = lambda b: fX[0] + 32 * b
        def rd(b):
            r = []
            if kind == 'i': return r
            if kind == 'x':
                for u, o in enumerate(uo):
                    for q in range(2):
                        d = cf(b) + 8*u + 4*q
                        r.append(f"ds_read_b64_tr_b16 {v(d,2)}, v{fWa} offset:{o+16*rowb*q}")
                        r.append(f"ds_read_b64_tr_b16 {v(d+2,2)}, v{fWa} offset:{o+16*rowb*q+4*rowb}")
                return r
            for q in range(4):
                r.append(f"ds_read_b128 {v(fX[b]+4*q,4)}, v{fXa+q}")
                r.append(f"ds_read_b64_tr_b16 {v(fW[b]+4*q,2)}, v{fWa} offset:{16*rowb*q}")
                r.append(f"ds_read_b64_tr_b16 {v(fW[b]+4*q+2,2)}, v{fWa} offset:{16*rowb*q+4*rowb}")
            return r
        def adv():
            if kind == 'i': return
            k(f"s_mov_b32 s{sD}, {F_S}\ns_cmp_eq_u32 s{sI}, 5\ns_cmov_b32 s{sD}, {hx(-5*F_S)}")
            if kind != 'x':
                for q in range(4): k(f"v_add_u32 v{fXa+q}, s{sD}, v{fXa+q}")
            k(f"v_add_u32 v{fWa}, s{sD}, v{fWa}")
        def work(b, r):
            w = []
            if kind in 'ns':
                for q in range(4):
                    X, W = fX[b] + 4*q, fW[b] + 4*q
                    A_, B_ = (X, W) if kind == 's' else (W, X)
                    w.append(f"v_mfma_f32_32x32x16_bf16 {v(fa,16)}, {v(A_,4)}, {v(B_,4)}, {v(fa,16)}")
                for x in interleave(w[:3], r) + w[3:]: k(x)
            elif kind == 'x':
                for x in r: k(x)
                for j in range(4):
                    for u in range(len(uo)):
                        k(f"v_mfma_f32_4x4x4_16b_bf16 {v(fa+4*u,4)}, {v(fO,2)}, {v(cf(b)+8*u+2*j,2)}, {v(fa+4*u,4)}")
                    if len(uo) == 2: k("s_nop 0")
        loop = k.lab("fl"); nb = k.lab("fnb"); e1 = k.lab("fe1"); e2 = k.lab("fe2"); e3 = k.lab("fe3")
        n = len(rd(0))
        k(f"s_mov_b32 s{sI}, 0\ns_barrier")
        for x in rd(0): k(x)
        k.label(loop)
        def xn_wait():
            if first:
                k(f"s_cmp_lg_u32 s{sI}, {xs_ + (1 if pb else 0)}\ns_cbranch_scc1 {e1}\ns_waitcnt vmcnt({1 if ('i' in pf and ist is None and not (kvq and rowb == 40)) else 0})")
                k.label(e1)
        def xn_flag():
            if first and kind == 'x':
                k(f"s_cmp_lg_u32 s{sI}, {xs_ + (1 if pb else 0)}\ns_cbranch_scc1 {e2}\ns_cmp_lg_u32 s{sWid}, 7\ns_cbranch_scc1 {e2}\ns_lshl_b32 s{sT}, s{sBlk}, 7")
                gset(f"s{sT}", fT + 4, fT + 6)
                k.label(e2)
        adv()
        if not pb: xn_wait()
        k("s_waitcnt lgkmcnt(0)" + ("" if pb else "\ns_barrier"))
        work(0, rd(1))
        if not pb: xn_flag()
        k(f"s_add_u32 s{sI}, s{sI}, 1")
        adv()
        if pb: xn_wait()
        k(f"s_cmp_eq_u32 s{sI}, 9\ns_waitcnt lgkmcnt(0)\ns_cbranch_scc1 {nb}\ns_barrier")
        k.label(nb)
        if pb: xn_flag()
        work(1, rd(0))
        if rowb == 192 and first and ist is not None and ist >= 0:
            e5 = k.lab("fe5")
            k(f"s_cmp_lg_u32 s{sI}, {ist}\ns_cbranch_scc1 {e5}")
            k.srd(sO, P_WIN, 640*3456)
            k(f"s_lshl_b32 s{sXt}, s2, 3\ns_add_u32 s{sXt}, s{sXt}, s{sWid}\ns_mul_i32 s{sXt}, s{sXt}, {10*128}\ns_mov_b64 exec, 0x3ff")
            k(f"buffer_load_dword v{vA+2}, v{vA+1}, s[{sO}:{sO+3}], s{sXt} offen\ns_mov_b64 exec, -1")
            k.label(e5)
        if rowb == 192:
            k(f"s_cmp_lg_u32 s{sI}, 7\ns_cbranch_scc1 {e3}\ns_mov_b32 s{sT}, {FL_Q}\ns_mov_b64 exec, 0xff")
            k(gload(f"s{sT}", fKa, fK))
            k("s_mov_b64 exec, -1")
            k.label(e3)
        k(f"s_add_u32 s{sI}, s{sI}, 1\ns_cmp_lt_u32 s{sI}, 10\ns_cbranch_scc1 {loop}")
        k("s_waitcnt lgkmcnt(0)")
    def kv_try():
        e = k.lab("kt")
        k("s_waitcnt vmcnt(0)\ns_mov_b64 exec, 0xff")
        gcheck(fK)
        k(f"s_mov_b64 exec, -1\ns_cbranch_vccnz {e}\ns_mov_b32 s{sKd}, 1")
        kv_first()
        k.label(e)
    def kv_first():
        k.srd(sB0, P_WS, SZ_KVG, WS_KV)
        k(f"""s_mul_i32 s{sT}, s{sWid}, {KV_G}
        s_mul_i32 m0, s{sWid}, {KV_TILE}
        v_lshlrev_b32 v{fT+8}, 4, v{vL}
        buffer_load_dwordx4 v{fT+8}, s[{sB0}:{sB0+3}], s{sT} offen sc1 lds
        buffer_load_dwordx4 v{fT+8}, s[{sB0}:{sB0+3}], s{sT} offen offset:1024 sc1 lds
        buffer_load_dwordx4 v{fT+8}, s[{sB0}:{sB0+3}], s{sT} offen offset:{KV_TILE-1024} sc1 lds""")
    def f_stats(nu):
        k(f"""s_and_b32 s{sT}, s{sWid}, 1
        s_lshl_b32 s{sT}, s{sT}, 2
        s_add_u32 s{sT}, s{sT}, {F_CS}
        v_lshlrev_b32 v{fT}, 4, v{fN}
        v_lshl_add_u32 v{fT}, v{fH}, 3, v{fT}
        v_add_u32 v{fT}, s{sT}, v{fT}""")
        for u in range(nu): k(f"ds_write_b32 v{fT}, v{fa+4*u} offset:{512*u}")
        k("s_waitcnt lgkmcnt(0)")
    def f_fold(swap):
        k(f"""s_lshr_b32 s{sT}, s{sWid}, 1
        s_lshl_b32 s{sT}, s{sT}, 9
        s_add_u32 s{sT}, s{sT}, {F_CS}
        v_lshlrev_b32 v{fT}, 4, v{fN}
        v_lshl_add_u32 v{fT}, v{fH}, 3, v{fT}
        v_add_u32 v{fT}, s{sT}, v{fT}
        ds_read_b64 {v(fc,2)}, v{fT}
        s_and_b32 s{sT}, s{sWid}, 1
        s_lshl_b32 s{sT}, s{sT}, 7
        s_add_u32 s{sT}, s{sT}, {STS}
        v_lshl_add_u32 v{fT}, v{fN}, 2, s{sT}
        ds_read_b32 v{fT+4}, v{fT}
        ds_read_b32 v{fT+5}, v{fT} offset:256
        s_waitcnt lgkmcnt(2)
        v_add_f32 v{fc+2}, v{fc}, v{fc+1}
        v_and_b32 v{fc+3}, s{sMask}, v{fc+2}
        v_sub_f32 v{fc+2}, v{fc+2}, v{fc+3}
        v_cvt_pk_bf16_f32 v{fc}, v{fc+3}, v{fc+3}
        v_cvt_pk_bf16_f32 v{fc+1}, v{fc+2}, 0
        s_waitcnt lgkmcnt(0)
        v_and_b32 v{fT+2}, s{sMask}, v{fT+4}
        v_sub_f32 v{fT+3}, v{fT+4}, v{fT+2}
        v_cvt_pk_bf16_f32 v{fT+6}, -v{fT+2}, -v{fT+3}
        v_cvt_pk_bf16_f32 v{fT+7}, -v{fT+2}, 0
        s_nop 1""")
        A_, B_ = (fT + 6, fc) if swap else (fc, fT + 6)
        k(f"v_mfma_f32_32x32x8_bf16 {v(fa,16)}, {v(A_,2)}, {v(B_,2)}, {v(fa,16)}")
    qp = k.lab("qp"); kx = k.lab("kx"); ki = k.lab("ki"); kvv = k.lab("kvv"); kj = k.lab("kj"); q1 = k.lab("q1"); q1x = k.lab("q1x"); qe = k.lab("qe"); qj = k.lab("qj"); q2x = k.lab("q2x")
    pk = fX[0]
    k(f"s_cmp_lg_u32 s{sHG}, 7\ns_cbranch_scc1 {q1}")
    k(f"""s_lshr_b32 s{sT+1}, s{sWid}, 1
    s_lshl_b32 s{sT+1}, s{sT+1}, 12
    s_and_b32 s{sT+3}, s{sWid}, 1
    s_mul_i32 s{sT+2}, s{sT+3}, {32*40}
    s_cmp_ge_u32 s{sWid}, 6
    s_cselect_b32 s{sT+1}, s{sT+2}, s{sT+1}
    s_mul_i32 s{sT+3}, s{sT+3}, {KV_G}
    s_add_u32 s{sT+3}, s{sT+3}, {KVS}""")
    f_addr(40, f"s{sT+1}")
    xn_compute(True)
    k(f"s_cmp_ge_u32 s{sWid}, 6\ns_cbranch_scc1 {kx}\ns_cmp_ge_u32 s{sWid}, 4\ns_cbranch_scc1 {ki}\ns_cmp_ge_u32 s{sWid}, 2\ns_cbranch_scc1 {kvv}")
    f_pass('n', 40, True)
    k("s_barrier")
    f_fold(False)
    k(f"v_lshl_add_u32 v{fT}, v{vL}, 4, s{sT+3}\nv_lshl_add_u32 v{fT+1}, v{fN}, 2, s{sT+3}\ns_nop 7\ns_nop 1")
    for i in range(12): k(f"v_mul_f32 v{fa+i}, v{fT+5}, v{fa+i}")
    for i in range(6): k(f"v_cvt_pk_bf16_f32 v{pk+i}, v{fa+2*i}, v{fa+2*i+1}")
    k(f"""v_permlane32_swap_b32 v{pk}, v{pk+2}
    v_permlane32_swap_b32 v{pk+1}, v{pk+3}
    ds_write_b128 v{fT}, {v(pk,4)} offset:{KV_KA}
    s_mov_b32 exec_hi, 0
    ds_write_b32 v{fT+1}, v{pk+4} offset:{KV_KB}
    ds_write_b32 v{fT+1}, v{pk+5} offset:{KV_KB+128}
    s_mov_b64 exec, -1
    s_branch {kj}""")
    k.label(kvv)
    f_pass('s', 40, True)
    k("s_barrier")
    f_fold(True)
    k(f"v_lshl_add_u32 v{fT}, v{fH}, 4, s{sT}")
    for j in range(4): k(f"ds_read_b128 {v(fW[0]+4*j,4)}, v{fT} offset:{256+32*j}")
    k(f"""v_mul_u32_u24 v{fT+1}, 336, v{fH}
    v_lshl_add_u32 v{fT+1}, v{fN}, 4, v{fT+1}
    v_add_u32 v{fT+1}, s{sT+3}, v{fT+1}
    v_cmp_eq_u32 vcc, 20, v{fN}
    s_nop 3
    s_waitcnt lgkmcnt(0)""")
    for i in range(16): k(f"v_mul_f32 v{fa+i}, v{fW[0]+i}, v{fa+i}")
    for i in range(8): k(f"v_cvt_pk_bf16_f32 v{pk+i}, v{fa+2*i}, v{fa+2*i+1}")
    for i in range(8): k(f"v_cndmask_b32 v{pk+i}, v{pk+i}, v{fO}, vcc")
    k(f"""s_mov_b32 exec_lo, 0x1fffff
    s_mov_b32 exec_hi, 0x1fffff
    ds_write_b128 v{fT+1}, {v(pk,4)} offset:{KV_V}
    ds_write_b128 v{fT+1}, {v(pk+4,4)} offset:{KV_V+672}
    s_mov_b64 exec, -1
    s_branch {kj}""")
    k.label(ki)
    f_pass('i', 40, True)
    k(f"s_barrier\ns_branch {kj}")
    k.label(kx)
    f_pass('x', 40, True)
    f_stats(2)
    k("s_barrier\ns_barrier")
    k.srd(sB0, P_WS, SZ_KVG, WS_KV)
    k(f"v_lshlrev_b32 v{fT+1}, 4, v{vL}\nv_add_u32 v{fT}, s{sT+3}, v{fT+1}")
    for i in range(3): k(f"ds_read_b128 {v(pk+4*i,4)}, v{fT} offset:{1024*i}")
    k(f"""s_lshl_b32 s{sT}, s{sT64}, 1
    s_and_b32 s{sT+1}, s{sWid}, 1
    s_add_u32 s{sT}, s{sT}, s{sT+1}
    s_mul_i32 s{sT+1}, s{sT}, {KV_G}
    s_waitcnt lgkmcnt(0)
    buffer_store_dwordx4 {v(pk,4)}, v{fT+1}, s[{sB0}:{sB0+3}], s{sT+1} offen sc1
    buffer_store_dwordx4 {v(pk+4,4)}, v{fT+1}, s[{sB0}:{sB0+3}], s{sT+1} offen offset:1024 sc1
    s_mov_b32 exec_hi, 0xff
    buffer_store_dwordx4 {v(pk+8,4)}, v{fT+1}, s[{sB0}:{sB0+3}], s{sT+1} offen offset:2048 sc1
    s_mov_b64 exec, -1
    s_lshl_b32 s{sT}, s{sT}, 7
    s_add_u32 s{sT}, s{sT}, {FL_Q}
    s_waitcnt vmcnt(0)""")
    gset(f"s{sT}", fT + 4, fT + 6)
    k("s_barrier")
    k(f"s_and_b32 s{sT+1}, s{sWid}, 1\ns_mul_i32 s{sT+1}, s{sT+1}, {32*192}")
    f_addr(192, f"s{sT+1}")
    f_pass('x', 192, False)
    k(f"s_branch {q2x}")
    k.label(kj)
    k("s_waitcnt lgkmcnt(0)\ns_barrier\ns_barrier")
    k(f"s_lshr_b32 s{sT+1}, s{sWid}, 1\ns_lshl_b32 s{sT+1}, s{sT+1}, 6")
    f_addr(192, f"s{sT+1}")
    f_pass('n', 192, False)
    k(f"s_branch {qe}")
    k.label(q1)
    k(f"""s_lshr_b32 s{sT+1}, s{sWid}, 1
    s_lshl_b32 s{sT+1}, s{sT+1}, 6
    s_and_b32 s{sT+2}, s{sWid}, 1
    s_mul_i32 s{sT+2}, s{sT+2}, {32*192}
    s_cmp_ge_u32 s{sWid}, 6
    s_cselect_b32 s{sT+1}, s{sT+2}, s{sT+1}""")
    f_addr(192, f"s{sT+1}")
    xn_compute()
    k(f"s_cmp_ge_u32 s{sWid}, 6\ns_cbranch_scc1 {q1x}")
    f_pass('n', 192, True)
    k.label(qe)
    k("s_barrier")
    f_fold(False)
    kv_try()
    k(f"""v_mul_f32 v{fT+5}, {fl(QSCALE)}, v{fT+5}
    s_and_b32 s{sT}, s{sWid}, 1
    s_mul_i32 s{sT}, s{sT}, {32*192}
    s_lshr_b32 s{sT+1}, s{sWid}, 1
    s_lshl_b32 s{sT+1}, s{sT+1}, 6
    s_add_u32 s{sT}, s{sT}, s{sT+1}
    s_add_u32 s{sT}, s{sT}, {QS}
    v_mul_u32_u24 v{fT}, 192, v{fN}
    v_lshl_add_u32 v{fT}, v{fH}, 3, v{fT}
    v_add_u32 v{fT}, s{sT}, v{fT}
    s_nop 1""")
    for i in range(16): k(f"v_mul_f32 v{fa+i}, v{fT+5}, v{fa+i}")
    for i in range(8): k(f"v_cvt_pk_bf16_f32 v{pk+i}, v{fa+2*i}, v{fa+2*i+1}")
    for j in range(4): k(f"ds_write_b64 v{fT}, {v(pk+2*j,2)} offset:{16*j}")
    k(f"s_waitcnt lgkmcnt(0)\ns_branch {qj}")
    k.label(q1x)
    f_pass('x', 192, True)
    k.label(q2x)
    f_stats(3)
    k("s_barrier")
    kv_try()
    k.label(qj)
    k.label(skipA)
    k(f"s_mov_b32 s40, s{sKd}\nv_mov_b32 v104, v{fKa}")
    def att_wait(step):
        t = 104
        d = k.lab("kvd")
        k(f"s_cmp_lg_u32 s40, 0\ns_cbranch_scc1 {d}\ns_mov_b32 s41, {FL_Q}")
        gpoll("s41", t, t + 2, 0xff, pslp)
        step()
        k.label(d)
    def att_tail(step):
        t = 104
        def pieces(p0, p1):
            for p in range(p0, p1):
                if p % 4 == 0:
                    k(f"s_mov_b32 m0, {1024*p}")
                    k("s_add_u32 s40, s40, 4096" if p else "s_nop 0")
                k(f"buffer_load_dwordx4 v{t}, s[28:31], s40 offen offset:{1024*(p%4)} sc1 lds")
        if step == 0:
            k(f"v_and_b32 v{t}, 31, v{vL}\nv_lshlrev_b32 v{t}, 7, v{t}\ns_mov_b32 s40, {FL_W}")
            k(gload("s40", t, t + 2))
            if so: lds_wait(L_F + F_XC, t + 4, t + 5, 2)
        elif "skip" in MX:
            pass
        elif step == 1:
            ok = k.lab("wfok")
            k("s_waitcnt vmcnt(12)")
            gcheck(t + 2)
            k(f"s_cbranch_vccz {ok}")
            gpoll("s40", t, t + 2, None, 4)
            k.label(ok)
            k.srd(28, P_WS, SZ_WF, WS_WF)
            k(f"s_lshr_b32 s40, s2, 5\ns_mul_i32 s40, s40, {47*5120}\nv_lshlrev_b32 v{t}, 4, v{vL}")
            pieces(0, tsplit)
            if not so: k(f"s_waitcnt vmcnt({tsplit})")
        else:
            pieces(tsplit, 60)
            k(f"v_mov_b32 v{t}, {L_F+F_OC}\nv_mov_b32 v{t+1}, 10\ns_waitcnt vmcnt(0)\nds_write_b32 v{t}, v{t+1}")
    n = (attn3 if two else attn2).emit_attn(k, sT64, sHG, sWid, vL, P_WS, 8, 4, 0, L_F, mega=att_wait, budget=sBud, gset=(None if so else gset), tb=tb, tail=att_tail, yph=yph, bal=bal)
    assert n <= 104, n

    k.label(gem)
    def sp(name):
        if name in SP: k.stamp(1 + SP.index(name))
    sA, sB, sO = 8, 12, 16
    sW, sCnt, sSoA, sBaseA, sSoB, sStepB, sM0A, sM0B, sMask, sNeed, sI = range(20, 31)
    sT = 32
    sTb, sM0F, sSoF = 40, 31, 71
    a = Alloc(2)
    vFw, vFa, vFl, vXw, vXa = a(), a(), a(), a(), a()
    vOne = a()
    acc = [a(16, 4), a(16, 4)]
    fs = [[[a(4, 4) for j in range(3)] for q in range(2)] for b in range(2)]
    z1 = a(16, 4); z2 = a(16, 4)
    vD = a(4, 1); vDb = a(2, 1)
    vWa = a(2, 1); vZa = a(4, 1)
    vBias = a(2, 2); vBias1 = vBias + 1
    vN, vH, vTok, vPg, vZf = a(), a(), a(), a(), a()
    vOnes = a(2, 2)
    vT = a(16, 4)
    assert a.n <= 168, a.n
    tmp = fs[1][0][0]
    sp('ka')
    k("s_setprio 3")
    k(f"""s_sub_u32 s{sW}, s{sWid}, 8
    v_lshrrev_b32 v{vT}, 3, v{vL}
    v_and_b32 v{vT+1}, 7, v{vL}
    s_lshl_b32 s{sT}, s{sTB}, 2
    s_add_u32 s{sT}, s{sT}, s{sW}
    s_mul_i32 s{sBaseA}, s{sT}, {32*1280}
    s_lshl_b32 s{sM0A}, s{sW}, 12
    s_add_u32 s{sM0A}, s{sM0A}, {L_A}
    s_lshl_b32 s{sM0B}, s{sW}, 11
    s_add_u32 s{sM0B}, s{sM0B}, {L_Z}""")
    def a_addr(stride):
        k(f"v_lshrrev_b32 v{vT}, 3, v{vL}\nv_and_b32 v{vT+1}, 7, v{vL}")
        for p in range(4):
            k(f"""v_add_u32 v{vT+2}, {8*p}, v{vT}
            v_bfe_u32 v{vT+3}, v{vT+2}, 1, 3
            v_xor_b32 v{vT+3}, v{vT+3}, v{vT+1}
            v_mul_u32_u24 v{vT+2}, {stride}, v{vT+2}
            v_lshl_add_u32 v{vD+p}, v{vT+3}, 4, v{vT+2}""")
            if p:
                k(f"v_subrev_u32 v{vD+p}, {1024*p}, v{vD+p}")
    def b_addr(stride):
        k(f"""v_lshrrev_b32 v{vT}, 3, v{vL}
        v_and_b32 v{vT+1}, 7, v{vL}
        v_bfe_u32 v{vT+2}, v{vL}, 4, 1
        v_lshlrev_b32 v{vT+2}, 1, v{vT+2}
        v_xor_b32 v{vT+1}, v{vT+1}, v{vT+2}
        v_mul_u32_u24 v{vT}, {stride}, v{vT}
        v_lshl_add_u32 v{vDb}, v{vT+1}, 4, v{vT}
        v_xor_b32 v{vT+1}, 4, v{vT+1}
        v_lshl_add_u32 v{vDb+1}, v{vT+1}, 4, v{vT}
        v_add_u32 v{vDb+1}, {8*stride-1024}, v{vDb+1}""")
    def setup_rest():
        k(f"""s_lshl_b32 s{sT+1}, s{sW}, 2
        s_add_u32 s{sT+2}, s{sT+1}, {L_F+F_G}
        v_mov_b32 v{vFw}, s{sT+2}
        s_add_u32 s{sT+2}, s{sT+1}, {L_F+F_AUX}
        v_mov_b32 v{vXw}, s{sT+2}
        v_and_b32 v{vFa}, 3, v{vL}
        v_lshlrev_b32 v{vFa}, 2, v{vFa}
        v_add_u32 v{vXa}, {L_F+F_AUX}, v{vFa}
        v_lshlrev_b32 v{vFa}, 6, v{vFa}
        v_add_u32 v{vFa}, {L_CS}, v{vFa}
        v_mov_b32 v{vPg}, 0
        s_lshl_b32 s{sM0F}, s{sW}, 8
        s_lshl_b32 s{sSoF}, s2, 10
        s_add_u32 s{sSoF}, s{sSoF}, s{sM0F}
        s_add_u32 s{sM0F}, s{sM0F}, {L_CS}
        v_and_b32 v{vN}, 31, v{vL}
        v_lshrrev_b32 v{vH}, 5, v{vL}
        s_mov_b32 s{sMask}, 0xffff0000
        s_mov_b32 s{sCnt}, 0
        v_mov_b32 v{vOne}, 1
        v_mov_b32 v{vOnes}, 0x3f803f80
        v_mov_b32 v{vOnes+1}, 0x3f803f80
        s_lshl_b32 s{sT+1}, s{sTB}, 7
        s_lshl_b32 s{sT+2}, s{sW}, 5
        s_add_u32 s{sT+1}, s{sT+1}, s{sT+2}
        v_add_u32 v{vTok}, s{sT+1}, v{vN}
        v_bfe_u32 v{vT+1}, v{vL}, 1, 3
        v_lshrrev_b32 v{vT+2}, 4, v{vL}
        v_xor_b32 v{vT+1}, v{vT+1}, v{vT+2}
        v_and_b32 v{vT+2}, 15, v{vL}
        v_lshlrev_b32 v{vT+2}, 7, v{vT+2}
        v_add_u32 v{vT+2}, s{sM0A}, v{vT+2}
        v_lshl_add_u32 v{vWa}, v{vT+1}, 4, v{vT+2}
        v_xor_b32 v{vT+1}, 4, v{vT+1}
        v_lshl_add_u32 v{vWa+1}, v{vT+1}, 4, v{vT+2}""")
        k.srd(sTb, P_WS, 256*1024, WS_TAB)
        k(f"v_lshlrev_b32 v{vT+1}, 2, v{vL}")
        k(f"buffer_store_dword v{vL}, v{vT+1}, s[{sTb}:{sTb+3}], s{sSoF} offen sc1")
        nonce()
    def nat_read_addr(rowb):
        k(f"""v_bfe_u32 v{vT}, v{vL}, 2, 2
        v_lshrrev_b32 v{vT+1}, 4, v{vL}
        v_lshl_add_u32 v{vT}, v{vT+1}, 3, v{vT}
        v_lshlrev_b32 v{vT}, 7, v{vT}
        v_and_b32 v{vT+1}, 3, v{vL}
        v_lshl_add_u32 v{vT}, v{vT+1}, 3, v{vT}
        v_add_u32 v{vT}, {L_Z}, v{vT}
        v_bfe_u32 v{vT+1}, v{vL}, 3, 2""")
        for fm in range(4):
            k(f"v_xor_b32 v{vT+2}, {fm}, v{vT+1}\nv_lshl_add_u32 v{vZa+fm}, v{vT+2}, 5, v{vT}")

    def spinw(va, val):
        l = k.lab("gspin"); d = k.lab("gspun")
        k.label(l)
        k(f"ds_read_b32 v{vFl}, v{va}\ns_waitcnt lgkmcnt(0)\nv_cmp_gt_u32 vcc, {val}, v{vFl}\ns_cbranch_vccz {d}\ns_sleep 1")
        again(l)
        k.label(d)
    def gsync():
        k(f"s_add_u32 s{sCnt}, s{sCnt}, 1\nv_mov_b32 v{vFl}, s{sCnt}\nds_write_b32 v{vXw}, v{vFl}")
        spinw(vXa, f"s{sCnt}")
    def set_flag(base, col=None):
        l = k.lab("nf")
        k(f"s_cmp_lg_u32 s{sW}, 0\ns_cbranch_scc1 {l}")
        k(f"s_lshl_b32 s{sT}, s{sTB}, 11\ns_lshl_b32 s{sT+1}, s{sFG}, 7\ns_add_u32 s{sT}, s{sT}, s{sT+1}\ns_add_u32 s{sT}, s{sT}, {base}")
        gset(f"s{sT}", vT, vT + 2)
        k.label(l)

    def ring_free():
        k(f"v_mov_b32 v{vT}, {L_F+F_GO}\ns_mov_b64 exec, 1\nds_add_u32 v{vT}, v{vOne}\ns_mov_b64 exec, -1")
    def set_wflag(base, n=0):
        k(f"s_lshl_b32 s{sT}, s{sTB}, 2\ns_add_u32 s{sT}, s{sT}, s{sW}\ns_lshl_b32 s{sT}, s{sT}, 11\ns_lshl_b32 s{sT+1}, s{sFG}, 7\ns_add_u32 s{sT}, s{sT}, s{sT+1}\ns_add_u32 s{sT}, s{sT}, {base}")
        k(f"s_waitcnt vmcnt({n})")
        gset(f"s{sT}", vT, vT + 2)
    def prefetch():
        if not ('q' in pf or 'i' in pf): return
        k(f"""s_min_u32 s{sT}, s{sFG}, 14
        s_sub_u32 s{sT}, s{sT}, 10
        s_lshl_b32 s{sT+1}, s{sW}, 4
        s_add_u32 s{sT+1}, s{sT+1}, s{sTB}
        s_mul_i32 s{sT+1}, s{sT+1}, 5
        s_add_u32 s{sT+1}, s{sT+1}, s{sT}
        s_lshl_b32 s{sT+1}, s{sT+1}, 13
        v_lshlrev_b32 v{vT+8}, 7, v{vL}""")
        if 'q' in pf:
            k.srd(sO, P_WQ, 640*1280)
            k(f"buffer_load_dword v{vT+9}, v{vT+8}, s[{sO}:{sO+3}], s{sT+1} offen")
        if 'i' in pf:
            k.srd(sO, P_WIN, 640*3456)
            k(f"buffer_load_dword v{vT+10}, v{vT+8}, s[{sO}:{sO+3}], s{sT+1} offen")
    def prefetch_sp():
        if 's' not in pf: return
        att_progress(1, vT + 5, 8)
        k(f"s_and_b32 s{sT}, s2, 1" if m42 else f"s_sub_u32 s{sT}, s{sFG}, 14")
        k(f"""s_lshl_b32 s{sT}, s{sT}, 2
        s_add_u32 s{sT}, s{sT}, s{sW}
        s_lshl_b32 s{sT}, s{sT}, 16
        s_lshl_b32 s{sT+1}, s{sTB}, 19
        s_add_u32 s{sT}, s{sT}, s{sT+1}
        v_lshlrev_b32 v{vT+8}, 7, v{vL}""")
        k.srd(sO, P_WSP, 2048*4096)
        for i in range(16 if m42 == 2 else 8):
            if i == 8: k(f"s_sub_u32 s{sT}, s{sT}, 65536\ns_xor_b32 s{sT}, s{sT}, 0x40000")
            k(f"buffer_load_dword v{vT+9}, v{vT+8}, s[{sO}:{sO+3}], s{sT} offen {ntw}\ns_add_u32 s{sT}, s{sT}, 8192")
            if i % 2 == 1: k("s_waitcnt vmcnt(0)")
    def u_addr():
        k.srd(sO, P_WS, SZ_OUF, WS_OUF)
        k(f"""v_lshrrev_b32 v{vT+1}, 4, v{vTok}
        v_mul_u32_u24 v{vT+1}, {47*1024}, v{vT+1}
        v_and_b32 v{vT+2}, 15, v{vTok}
        v_lshl_add_u32 v{vT+1}, v{vT+2}, 4, v{vT+1}
        v_lshl_add_u32 v{vT+1}, v{vH}, 8, v{vT+1}
        s_lshl_b32 s{sT}, s{sFG}, 11
        s_add_u32 s{sT}, s{sT}, {20*1024}""")
    def poison(with_u):
        pz = vT + 4
        for i in range(4): k(f"v_mov_b32 v{pz+i}, -1")
        if with_u:
            l = k.lab("pu")
            u_addr()
            for i in range(4):
                if i == 2: k(f"s_cmp_eq_u32 s{sFG}, 13\ns_cbranch_scc1 {l}")
                k(f"buffer_store_dwordx4 {v(pz,4)}, v{vT+1}, s[{sO}:{sO+3}], s{sT} offen offset:{512*i} sc1")
            k.label(l)
        else:
            k.srd(sO, P_WS, SZ_OUF, WS_OUF)
        k(f"""s_lshl_b32 s{sT}, s{sT64}, 2
        s_add_u32 s{sT}, s{sT}, s{sW}
        s_mul_i32 s{sT}, s{sT}, {47*1024}
        s_mul_i32 s{sT+1}, s{sHG}, 2560
        s_add_u32 s{sT}, s{sT}, s{sT+1}
        v_lshlrev_b32 v{vT+2}, 4, v{vL}
        buffer_store_dwordx4 {v(pz,4)}, v{vT+2}, s[{sO}:{sO+3}], s{sT} offen sc1
        buffer_store_dwordx4 {v(pz,4)}, v{vT+2}, s[{sO}:{sO+3}], s{sT} offen offset:1024 sc1
        s_mov_b32 exec_hi, 0
        buffer_store_dwordx4 {v(pz,4)}, v{vT+2}, s[{sO}:{sO+3}], s{sT} offen offset:2048 sc1
        s_mov_b32 exec_hi, -1""")
    def poison_done():
        k(f"v_mov_b32 v{vT+4}, {L_F+F_XC}\nds_write_b32 v{vT+4}, v{vOne}")
    def att_progress(val, va, slp):
        l = k.lab("ac"); d = k.lab("acd")
        k(f"v_and_b32 v{va}, 7, v{vL}\nv_lshlrev_b32 v{va}, 2, v{va}\nv_add_u32 v{va}, {L_F}, v{va}")
        k.label(l)
        k(f"ds_read_b32 v{vFl}, v{va}\ns_waitcnt lgkmcnt(0)\nv_cmp_gt_u32 vcc, {val}, v{vFl}\ns_cbranch_vccz {d}\ns_sleep {slp}")
        again(l)
        k.label(d)
    vm = []
    def vop(tag, txt):
        vm.append(tag); return txt
    def newer(tags):
        idx = [i for i, t in enumerate(vm) if t in tags]
        return len(vm) - 1 - max(idx) if idx else 63
    cohA = [ntx]; cohB = [""]
    def la(g, p): return vop(("A", g), f"buffer_load_dwordx4 v{vD+p}, s[{sA}:{sA+3}], s{sSoA} offen offset:{1024*p} {cohA[0]} lds")
    def lb(g, p): return vop(("B", g), f"buffer_load_dwordx4 v{vDb+p}, s[{sB}:{sB+3}], s{sSoB} offen offset:{1024*p} {cohB[0]} lds")
    wrapA = [False]; wrapB = [False]; natA = [bool(zrot)]; natB = [bool(zrot)]
    def advA():
        if wrapA[0]: k(f"s_add_u32 s37, s37, 128\ns_and_b32 s37, s37, 0xfff\ns_add_u32 s{sSoA}, s38, s37")
        elif natA[0]: k(f"s_add_u32 s{sSoA}, s{sSoA}, 128\ns_cmp_eq_u32 s{sSoA}, s37\ns_cmov_b32 s{sSoA}, s{sBaseA}")
        else: k(f"s_add_u32 s{sSoA}, s{sSoA}, 128")
    def advB():
        if wrapB[0]: k(f"s_add_u32 s39, s39, 4096\ns_and_b32 s39, s39, 0x1ffff\ns_add_u32 s{sSoB}, s54, s39")
        elif natB[0]: k(f"s_add_u32 s{sSoB}, s{sSoB}, s{sStepB}\ns_cmp_eq_u32 s{sSoB}, s39\ns_cmov_b32 s{sSoB}, s38")
        else: k(f"s_add_u32 s{sSoB}, s{sSoB}, s{sStepB}")
    vWe = z2
    def abuf(g):
        if deep and g in (3, 4, 5, 9):
            e = {3: 0, 4: 1, 5: 2, 9: 0}[g]
            return vWe, 16384 * e, 16384 * e - 49152
        return vWa, 16384 * (g % 3), 16384 * (g % 3)
    def issue_a(g):
        k(f"s_add_u32 m0, s{sM0A}, {hx(abuf(g)[2])}\ns_nop 0")
        for p in range(4): k(la(g, p))
        advA()
    def issue_b(g):
        k(f"s_add_u32 m0, s{sM0B}, {8192*(g%6)}\ns_nop 0")
        for p in range(2): k(lb(g, p))
        advB()
    FR = lambda b, i: fs[b][0][0] + 4 * i
    ast = lambda g: g if g >= 30 else 20 + (g - 10) // 2
    def reads(ty, half, b, g):
        ba, bz = ast(g) % 3, g % 6
        if g >= 30: r = [f"ds_read_b128 {v(FR(b,tn),4)}, v{vWa+half} offset:{16384*ba+2048*tn}" for tn in range(2)]
        elif half == 0: r = [f"ds_read_b128 {v(FR(g%2,tn),4)}, v{vWa+g%2} offset:{16384*ba+2048*tn}" for tn in range(2)]
        else: r = []
        for fm in range(4):
            d = FR(b, 2 + fm)
            if ty == "frag":
                r.append(f"ds_read_b128 {v(d,4)}, v{vZf} offset:{8192*bz+2048*fm+1024*half}")
            else:
                r.append(f"ds_read_b64_tr_b16 {v(d,2)}, v{vZa+fm} offset:{8192*bz+4096*half}")
                r.append(f"ds_read_b64_tr_b16 {v(d+2,2)}, v{vZa+fm} offset:{8192*bz+4096*half+512}")
        return r
    vSx, vSq, vCs = z1, z1 + 4, [z1 + 8, z1 + 12]
    prio = [3]
    pat = [patz]
    inloop = [False]
    carry = [False]
    cold = []
    cacc = [acc]
    def half(b, hf, zero, stats, kv, rd, dm, ex=(), xb=None, ac=None):
        fast = prio[0] == 3
        n = len(rd)
        cut = [0, n, n, n] if fast else [0, (n + 1) // 2, n, n]
        cur = [3]
        def setp(p):
            if not fast and cur[0] != p:
                k(f"s_setprio {p}"); cur[0] = p
        for j in range(4):
            if True:
                setp(int(pat[0][4*hf + j]))
                abl = MX if (inloop[0] or "all" in MX) else ""
                for tn in range(2):
                    d = (ac or cacc[0])[j >> 1] + 8*tn + 4*(j & 1)
                    k(f"v_mfma_f32_16x16x32_bf16 {v(d,4)}, {v(FR(b,2+j),4)}, {v(FR(b if xb is None else xb,tn),4)}, {'0' if zero else v(d,4)}")
                if "nord" in abl: rd = ["s_nop 0"] * len(rd)
                if "nodma" in abl: dm = [[], [], [], []]
                if j < 3 and cut[j+1] > cut[j]:
                    setp(rprio)
                    for x in rd[cut[j]:cut[j+1]]: k(x)
                if ex:
                    setp(3)
                    for x in ex[len(ex)*j//4:len(ex)*(j+1)//4]: k(x)
                if dm[j]:
                    setp(prio[0])
                    for f_ in dm[j]:
                        if thr is not None and not fast: k(f"s_waitcnt vmcnt({thr})")
                        k(f_())
        setp(3)
    def lf():
        return "\n".join([f"s_mov_b32 m0, s{sM0F}", f"s_add_u32 s{sSoF}, s{sSoF}, 4",
                          vop("F", f"buffer_load_dword v{vPg}, s[{sTb}:{sTb+3}], s{sSoF} offen lds")])
    def body(g, ty, ty_next, first=False, doA=True, doB=True, loop=False, dyn=False, tailA=None, tailB=None, cout=True, ex=(), needp=0):
        cin = carry[0]
        z0, z1_ = (dict(xb=g % 2, ac=[z1, z2]), dict(xb=g % 2, ac=acc)) if g < 30 else ({}, {})
        k("s_waitcnt lgkmcnt(0)")
        dm = [[], [], [], []]
        def a3():
            k(la(ast(g - 1) + 3, 3)); advA(); return "s_nop 0"
        if cin: dm = [[lambda: la(ast(g - 1) + 3, 2)], [a3], [], []]
        half(0, 0, first, False, False, reads(ty, 1, 1, g) + [f"ds_read_b32 v{vFl}, v{vFa}"], dm, ex[:len(ex)//2], **z0)
        if doB or tailB: k(f"s_add_u32 m0, s{sM0B}, {8192*((g+4)%6)}")
        if tailB: k(tailB)
        n = 7 if loop else min(63, newer({("A", ast(g + 1))}))
        ok = k.lab("gok"); sl = k.lab("gslow")
        need = f"s{sNeed}" if (loop or dyn) else str(g - 2 + needp)
        acct = "acct" in MX and loop
        if acct: k("s_waitcnt lgkmcnt(0)\ns_memtime s[36:37]\ns_waitcnt lgkmcnt(0)")
        k(f"s_waitcnt vmcnt({n}) lgkmcnt(0)")
        if acct: k("s_memtime s[38:39]\ns_waitcnt lgkmcnt(0)\ns_sub_u32 s36, s38, s36\ns_add_u32 s82, s82, s36")
        k(f"v_cmp_gt_u32 vcc, {need}, v{vFl}\ns_cbranch_vccnz {sl}")
        cold.append((sl, need, ok))
        k.label(ok)
        if acct: k("s_memtime s[36:37]\ns_waitcnt lgkmcnt(0)\ns_sub_u32 s36, s36, s38\ns_add_u32 s84, s84, s36")
        def mark():
            if doB: advB()
            k(lf())
            t = []
            if doA or tailA: t.append(f"s_add_u32 m0, s{sM0A}, {16384*(ast(g)%3)}")
            if tailA: t.append(tailA)
            return "\n".join(t) or "s_nop 0"
        dm = [[], [mark], [], []]
        if doB or tailB: dm = [[lambda: lb(g + 4, 0)], [lambda: lb(g + 4, 1), mark], [], []]
        cout = cout and doA
        if doA or tailA:
            dm[2] = [lambda: la(ast(g) + 3, 0)] + ([] if cout else [lambda: la(ast(g) + 3, 1)])
            dm[3] = [lambda: la(ast(g) + 3, 1)] if cout else [lambda: la(ast(g) + 3, 2), lambda: la(ast(g) + 3, 3)]
        half(1, 1, first and g < 30, False, False, reads(ty_next, 0, 0, g + 1) if ty_next else [], dm, ex[len(ex)//2:], **z1_)
        if doA and not cout: advA()
        carry[0] = cout
        if loop or dyn: k(f"s_add_u32 s{sNeed}, s{sNeed}, 1")
    def hi(): pass
    def lo(): pass
    def prologue(g0, ty):
        k(f"s_add_u32 s{sSoF}, s{sSoF}, {4*(g0-4)}")
        k(lf())
        issue_b(g0 + 1); k(lf()); issue_b(g0 + 2); issue_b(g0 + 3); k(lf()); issue_a(21); issue_a(22)
        k(f"s_waitcnt vmcnt({newer({('A', 20)})})")
        spinw(vFa, g0 - 3)
        for r in reads(ty, 0, 0, g0): k(r)
    def src_win():
        k.srd(sB, P_WIN, 640*3456)
        k(f"""s_and_b32 s{sSoB}, s{sW}, 1
        s_mul_i32 s{sSoB}, s{sSoB}, {16*3456}
        s_lshl_b32 s{sT}, s{sFG}, 7
        s_add_u32 s{sSoB}, s{sSoB}, s{sT}
        s_add_u32 s{sT}, s{sSoB}, {13*128}
        s_cmp_lt_u32 s{sW}, 2
        s_cselect_b32 s{sSoB}, s{sT}, s{sSoB}
        s_mov_b32 s{sStepB}, {32*3456}""")
    def load_mr():
        lds_wait(L_F + F_XR, vT, vT + 1)
        k.srd(sO, P_WS, SZ_XN, WS_XN)
        k(f"v_mul_u32_u24 v{vT+2}, {XN_ST}, v{vTok}")
        k(vop("mr", f"buffer_load_dwordx2 {v(vT+8,2)}, v{vT+2}, s[{sO}:{sO+3}], 0 offen offset:1280 sc1"))
    def src_xn():
        k.srd(sA, P_WS, SZ_XN, WS_XN)
        k(f"s_lshl_b32 s{sBaseA}, s{sTB}, 2\ns_add_u32 s{sBaseA}, s{sBaseA}, s{sW}\ns_mul_i32 s{sBaseA}, s{sBaseA}, {32*XN_ST}\ns_mov_b32 s{sSoA}, s{sBaseA}")
        if zrot: k(f"s_add_u32 s37, s{sBaseA}, 1280\ns_lshl_b32 s{sT}, s36, 7\ns_add_u32 s{sSoA}, s{sSoA}, s{sT}")
    def ln_fold(kv):
        mu, r = vT + 8, vT + 9
        k(f"""s_waitcnt vmcnt({newer({'mr'})})
        v_and_b32 v{vT+2}, s{sMask}, v{mu}
        v_sub_f32 v{vT+3}, v{mu}, v{vT+2}
        v_cvt_pk_bf16_f32 v{vT}, -v{vT+2}, -v{vT+3}
        v_cvt_pk_bf16_f32 v{vT+1}, -v{vT+2}, 0""")
        for u in range(2):
            c = vCs[u]
            k(f"""v_and_b32 v{c+3}, s{sMask}, v{c+2}
            v_sub_f32 v{c+2}, v{c+2}, v{c+3}
            v_cvt_pk_bf16_f32 v{c}, v{c+3}, v{c+3}
            v_cvt_pk_bf16_f32 v{c+1}, v{c+2}, 0""")
        k("s_nop 1")
        for u in range(2):
            A_, B_ = (vT, vCs[u]) if (kv and u == 1) else (vCs[u], vT)
            k(f"v_mfma_f32_32x32x8_bf16 {v(acc[u],16)}, {v(A_,2)}, {v(B_,2)}, {v(acc[u],16)}")
    def swap4(b0):
        k(f"v_permlane32_swap_b32 v{b0}, v{b0+2}\nv_permlane32_swap_b32 v{b0+1}, v{b0+3}")
    def swap44(*bs):
        for b0 in bs: k(f"v_permlane32_swap_b32 v{b0}, v{b0+2}\nv_permlane32_swap_b32 v{b0+1}, v{b0+3}")
        for b0 in bs: k(f"v_permlane16_swap_b32 v{b0}, v{b0+2}\nv_permlane16_swap_b32 v{b0+1}, v{b0+3}")
    def gelu(u, dst, stats):
        t = (z1, z2)[u]
        if pkv & 1:
            E = range(0, 16, 2)
            for i in E: k(f"v_pk_mul_f32 {v(tmp+i,2)}, {v(t+i,2)}, {v(t+i,2)}")
            for i in E: k(f"v_pk_fma_f32 {v(tmp+i,2)}, {v(tmp+i,2)}, {v(vT+12,2)}, {v(vT+12,2)} op_sel:[0,0,1] op_sel_hi:[1,0,1]")
            for i in E: k(f"v_pk_mul_f32 {v(tmp+i,2)}, {v(tmp+i,2)}, {v(t+i,2)}")
            for i in range(16): k(f"v_exp_f32 v{tmp+i}, v{tmp+i}")
            for i in E: k(f"v_pk_add_f32 {v(tmp+i,2)}, {v(tmp+i,2)}, 1.0 op_sel_hi:[1,0]")
            for i in range(16): k(f"v_rcp_f32 v{tmp+i}, v{tmp+i}")
            for i in E: k(f"v_pk_mul_f32 {v(tmp+i,2)}, {v(tmp+i,2)}, {v(t+i,2)}")
            for i in E: k(f"v_cvt_pk_bf16_f32 v{dst+i//2}, v{tmp+i}, v{tmp+i+1}")
            for i in range(8):
                c = vT + 10 if i < 4 else vT + 6
                k(f"v_dot2c_f32_bf16 v{c}, v{vOnes}, v{dst+i}\nv_dot2c_f32_bf16 v{c+1}, v{dst+i}, v{dst+i}")
            return
        for g0 in range(0, 16, 8):
            R = range(g0, g0 + 8)
            for i in R: k(f"v_mul_f32 v{tmp+i-g0}, v{t+i}, v{t+i}")
            for i in R: k(f"v_fmaak_f32 v{tmp+i-g0}, v{vT+12}, v{tmp+i-g0}, {fl(GC0)}")
            for i in R: k(f"v_mul_f32 v{tmp+i-g0}, v{tmp+i-g0}, v{t+i}")
            for i in R: k(f"v_exp_f32 v{tmp+i-g0}, v{tmp+i-g0}")
            for i in R: k(f"v_add_f32 v{tmp+i-g0}, 1.0, v{tmp+i-g0}")
            for i in R: k(f"v_rcp_f32 v{tmp+i-g0}, v{tmp+i-g0}")
            for i in R: k(f"v_mul_f32 v{tmp+i-g0}, v{tmp+i-g0}, v{t+i}")
            for i in range(0, 8, 2): k(f"v_cvt_pk_bf16_f32 v{dst+(g0+i)//2}, v{tmp+i}, v{tmp+i+1}")
            if stats:
                c = vT + 10 if g0 == 0 else vT + 6
                for i in range(8):
                    k(f"v_add_f32 v{c}, v{c}, v{tmp+i}\nv_fmac_f32 v{c+1}, v{tmp+i}, v{tmp+i}")

    rep = k.lab("rep"); b10 = k.lab("b10"); outp = k.lab("outp"); outq = k.lab("outq"); kw = k.lab("kw"); kwd = k.lab("kwd")
    vx, vw = z2, z2 + 2
    k(f"v_lshrrev_b32 v{vT}, 3, v{vL}\nv_and_b32 v{vT+1}, 7, v{vL}")
    for p in range(2):
        k(f"""v_add_u32 v{vT+2}, {8*p}, v{vT}
        v_bfe_u32 v{vT+3}, v{vT+2}, 1, 3
        v_xor_b32 v{vT+3}, v{vT+3}, v{vT+1}
        v_mul_u32_u24 v{vT+2}, 1280, v{vT+2}
        v_lshl_add_u32 v{vx+p}, v{vT+3}, 4, v{vT+2}""")
    k(f"v_subrev_u32 v{vx+1}, 1024, v{vx+1}")
    k.srd(sA, P_X, SZ_Q)
    k(f"""s_lshl_b32 s{sBaseA}, s{sT64}, 2
    s_add_u32 s{sBaseA}, s{sBaseA}, s{sW}
    s_mul_i32 s{sBaseA}, s{sBaseA}, {16*1280}
    s_lshl_b32 s{sNeed}, s{sW}, 11
    s_add_u32 s{sNeed}, s{sNeed}, {F_B}""")
    sKr = 36
    def l_rot():
        if frot: k(f"s_lshr_b32 s{sKr}, s2, 3\ns_mul_i32 s{sKr}, s{sKr}, {frot}\ns_mul_i32 s{sT}, s{sKr}, 6554\ns_lshr_b32 s{sT}, s{sT}, 16\ns_mul_i32 s{sT}, s{sT}, 10\ns_sub_u32 s{sKr}, s{sKr}, s{sT}")
        else: k(f"s_mov_b32 s{sKr}, 0")
    def l_x(g):
        k(f"s_lshl_b32 s{sSoA}, s{sKr}, 7\ns_add_u32 m0, s{sNeed}, {F_S*(g%6)}\ns_add_u32 s{sSoA}, s{sBaseA}, s{sSoA}")
        for p in range(2): k(vop(("A", g), f"buffer_load_dwordx4 v{vx+p}, s[{sA}:{sA+3}], s{sSoA} offen offset:{1024*p} lds"))
    def l_w(g, n):
        k(f"s_mul_i32 s{sSoA}, s{sKr}, s{sStepB}\ns_add_u32 m0, s{sI}, {F_S*(g%6)}\ns_add_u32 s{sSoA}, s{sSoA}, s{sSoB}")
        for p in range(n): k(vop(("A", g), f"buffer_load_dwordx4 v{vw+p}, s[{sB}:{sB+3}], s{sSoA} offen offset:{1024*p} lds"))
        k(f"s_add_u32 s{sKr}, s{sKr}, 1\ns_cmp_eq_u32 s{sKr}, 10\ns_cmov_b32 s{sKr}, 0")
    lx, ls, lt, la_ = fs[0][0][0], fs[1][0][0], fs[1][0][0] + 16, z2 + 6
    def l_pass(n, x0done, mid=None, lead=3, xf=False):
        if pb: lead = 4
        for g in range(lead):
            if not (g == 0 and x0done): l_x(g)
            l_w(g, n)
        if mid: mid()
        k(f"v_lshl_add_u32 v{la_}, v{vL}, 4, s{sNeed}\nv_add_u32 v{la_+1}, {3*F_S}, v{la_}")
        for i in range(16): k(f"v_mov_b32 v{ls+i}, 0")
        for g in range(10):
            if not pb or g % 2 == 0:
                k(f"s_waitcnt vmcnt({newer({('A', g + (1 if pb else 0))})})")
                if g == 0: sp('land0')
                sp(f'w{g}')
                k("s_barrier")
            if g == 0: sp('p1s')
            sp(f'f{g}')
            for p in range(2):
                k(f"ds_read_b128 {v(lx+4*p,4)}, v{la_+(g%6)//3} offset:{F_S*(g%3)+1024*p}")
            if g + lead < 10:
                l_x(g + lead); l_w(g + lead, n)
            if g == 9 and xf:
                k(f"s_lshl_b32 s{sT+3}, s{sTB}, 2\ns_add_u32 s{sT+3}, s{sT+3}, s{sW}\ns_lshl_b32 s{sT+3}, s{sT+3}, 9\nv_lshlrev_b32 v{vT+4}, 7, v{vL}\ns_mov_b64 exec, 0xf")
                k(gload(f"s{sT+3}", vT + 4, vT + 8))
                k("s_mov_b64 exec, -1")
            k("s_waitcnt lgkmcnt(0)")
            for hh in range(2):
                for p in range(2):
                    X = lx + 4*p + 2*hh
                    k(f"v_mfma_f32_4x4x4_16b_bf16 {v(ls+8*p,4)}, {v(vOnes,2)}, {v(X,2)}, {v(ls+8*p,4)}")
                    k(f"v_mfma_f32_4x4x4_16b_bf16 {v(ls+8*p+4,4)}, {v(X,2)}, {v(X,2)}, {v(ls+8*p+4,4)}")
        k(f"v_and_b32 v{lt}, 3, v{vL}\ns_nop 2")
        for i in range(1, 4):
            k(f"v_cmp_eq_u32 vcc, {i}, v{lt}\ns_nop 1")
            for p in range(2): k(f"v_cndmask_b32 v{ls+8*p+4}, v{ls+8*p+4}, v{ls+8*p+4+i}, vcc")
        R = [ls, ls + 8, ls + 4, ls + 12]
        for m in ("quad_perm:[1,0,3,2]", "quad_perm:[2,3,0,1]", "row_half_mirror"):
            for r in R: k(f"v_add_f32_dpp v{r}, v{r}, v{r} {m} row_mask:0xf bank_mask:0xf")
        for r in R: k(f"v_mul_f32 v{r}, {fl(1.0/640)}, v{r}")
        for p in range(2):
            mu, q_ = ls + 8*p, ls + 8*p + 4
            k(f"v_fma_f32 v{q_}, -v{mu}, v{mu}, v{q_}\nv_max_f32 v{q_}, 0, v{q_}\nv_add_f32 v{q_}, {fl(1e-5)}, v{q_}\nv_rsq_f32 v{q_}, v{q_}")
        k(f"""s_lshl_b32 s{sT}, s{sW}, 6
        s_add_u32 s{sT}, s{sT}, {F_STS}
        v_lshrrev_b32 v{lt}, 3, v{vL}
        v_lshl_add_u32 v{lt}, v{lt}, 2, s{sT}
        ds_write_b32 v{lt}, v{ls}
        ds_write_b32 v{lt}, v{ls+4} offset:256
        ds_write_b32 v{lt}, v{ls+8} offset:32
        ds_write_b32 v{lt}, v{ls+12} offset:288
        s_waitcnt lgkmcnt(0)""")
    def q_src():
        for p in range(3):
            k(f"""v_add_u32 v{vT}, {64*p}, v{vL}
            v_mul_u32_u24 v{vT+1}, 5462, v{vT}
            v_lshrrev_b32 v{vT+1}, 16, v{vT+1}
            v_mul_u32_u24 v{vT+2}, 12, v{vT+1}
            v_sub_u32 v{vT+2}, v{vT}, v{vT+2}
            v_mul_u32_u24 v{vT+1}, 1280, v{vT+1}
            v_lshl_add_u32 v{vw+p}, v{vT+2}, 4, v{vT+1}""")
            if p: k(f"v_subrev_u32 v{vw+p}, {1024*p}, v{vw+p}")
        k.srd(sB, P_WQ, 640*1280)
        k(f"""s_mul_i32 s{sSoB}, s{sW}, {16*1280}
        s_mul_i32 s{sT}, s{sHG}, 160
        s_and_b32 s{sT}, s{sT}, 0xffffffc0
        s_add_u32 s{sSoB}, s{sSoB}, s{sT}
        s_mov_b32 s{sStepB}, {64*1280}
        s_mul_i32 s{sI}, s{sW}, 3072
        s_add_u32 s{sI}, s{sI}, {F_B+8192}""")
    if "skip" in MX:
        k(f"s_barrier\ns_cmp_eq_u32 s{sHG}, 7\ns_cbranch_scc1 {end}")
        setup_rest(); a_addr(4096)
        k.srd(sA, P_WSP, 2048*4096)
        k(f"s_lshl_b32 s{sSoA}, s{sTB}, 2\ns_add_u32 s{sSoA}, s{sSoA}, s{sW}\ns_lshl_b32 s{sSoA}, s{sSoA}, 17")
        k(f"v_lshlrev_b32 v{vDb}, 4, v{vL}\nv_lshlrev_b32 v{vDb+1}, 4, v{vL}\ns_add_u32 s{sSoF}, s{sSoF}, {4*28}\ns_waitcnt vmcnt(0)")
        k(lf()); k(f"s_branch {skipG}")
    early = 'b' not in pf
    sKr = 36
    l_rot()
    if early: l_x(0)
    k(f"s_cmp_eq_u32 s{sHG}, 7\ns_cbranch_scc1 {rep}")
    q_src()
    def mid():
        setup_rest(); nat_read_addr(128); b_addr(3456); a_addr(XN_ST)
    if early: l_pass(3, True, mid, xf=True, lead=lq)
    else:
        mid(); k("s_barrier"); l_pass(3, False, xf=True, lead=lq)
    sp('p1l')
    k("s_barrier")
    if zrot:
        k(f"s_mul_i32 s36, s{sFG}, {zrot[0]}\ns_mul_i32 s37, s{sTB}, {zrot[1]}\ns_add_u32 s36, s36, s37\ns_mul_i32 s37, s36, 6554\ns_lshr_b32 s37, s37, 16\ns_mul_i32 s37, s37, 10\ns_sub_u32 s36, s36, s37")
    src_win()
    issue_b(10)
    src_xn()
    xo = k.lab("xo")
    k("s_waitcnt vmcnt(2)\ns_mov_b64 exec, 0xf")
    gcheck(vT + 8)
    k(f"s_mov_b64 exec, -1\ns_cbranch_vccz {xo}")
    gpoll(f"s{sT+3}", vT + 4, vT + 8, 0xf, 2)
    k.label(xo)
    sp('xo')
    cohA[0] = "sc1"
    issue_a(20)
    prologue(10, "nat")

    k.label(b10)
    sp('p1')
    prio[0] = lprio
    vFg, vSt = vT + 8, tmp
    def z_ready():
        pd = k.lab("zpd")
        sp('zc')
        k(f"s_waitcnt vmcnt({newer({'pz'})})")
        gcheck(vFg)
        k(f"s_cbranch_vccz {pd}")
        k(f"s_lshl_b32 s{sT}, s{sW}, 13\ns_add_u32 s{sT}, s{sT}, {FL_Z}")
        gpoll(f"s{sT}", vT + 14, vFg, None, 4)
        k.label(pd)
        gsync()
        sp('zr')
        k.srd(sB, P_WS, SZ_Z2F, WS_Z2F)
        k(f"""s_lshl_b32 s{sT}, s{sFG}, 2
        s_add_u32 s{sT}, s{sT}, s{sW}
        s_lshl_b32 s{sSoB}, s{sT}, 16
        s_mov_b32 s{sStepB}, 2048
        v_add_u32 v{vZf}, {L_Z}, v{vDb}""")
        cohB[0] = "sc1"; natB[0] = False
        k(f"s_setprio {lprio}")
        for g in range(30, ev[5] + 4): issue_b(g)
        if ev[5] < 30: k(lf())
        k("s_setprio 3")
    def gelu4(r0):
        t = vT
        R = range(4)
        o = [f"v_mul_f32 v{t+i}, v{r0+i}, v{r0+i}" for i in R] + [f"v_fmaak_f32 v{t+i}, v{vT+12}, v{t+i}, {fl(GC0)}" for i in R]
        o += [f"v_mul_f32 v{t+i}, v{t+i}, v{r0+i}" for i in R] + [f"v_exp_f32 v{t+i}, v{t+i}" for i in R]
        o += [f"v_add_f32 v{t+i}, 1.0, v{t+i}" for i in R] + [f"v_rcp_f32 v{t+i}, v{t+i}" for i in R]
        return o + [f"v_mul_f32 v{r0+i}, v{t+i}, v{r0+i}" for i in R]
    for g in range(10, 30):
        sp(f'b{g}')
        if g == 25:
            sp('e27')
            hi()
            a_addr(4096)
            k.srd(sA, P_WSP, 2048*4096)
            k(f"s_lshl_b32 s{sSoA}, s{sTB}, 2\ns_add_u32 s{sSoA}, s{sSoA}, s{sW}\ns_lshl_b32 s{sSoA}, s{sSoA}, 17")
            cohA[0] = ntw; natA[0] = False
            if prot is not None:
                wrapA[0] = True
                k(f"""s_and_b32 s36, s{sTB}, 1
                s_mul_i32 s36, s36, {prot[0]}
                s_mul_i32 s37, s{sFG}, {prot[1]}
                s_add_u32 s36, s36, s37
                s_and_b32 s36, s36, 31
                s_mov_b32 s38, s{sSoA}
                s_lshl_b32 s37, s36, 7
                s_add_u32 s{sSoA}, s38, s37""")
        if g == 27:
            k.srd(sB, P_BSP, 4096)
            k(f"v_lshlrev_b32 v{vT+2}, 1, v{vTok}\nv_lshlrev_b32 v{vDb}, 4, v{vL}\nv_lshlrev_b32 v{vDb+1}, 4, v{vL}")
            k(vop("bias", f"buffer_load_ushort v{vBias}, v{vT+2}, s[{sB}:{sB+3}], 0 offen"))
            lo()
        body(g, "nat", "nat" if g != 29 else None, first=(g == 10), doA=(g % 2 == 1), doB=(g < 26), cout=(g != 29))
    sp('p2')
    hi()
    s0 = k.lab("s0")
    k(f"v_mov_b32 v{vT+12}, {fl(GC1)}\nv_mov_b32 v{vT+13}, {fl(GC0)}\nv_mov_b32 v{vT+10}, 0\nv_mov_b32 v{vT+11}, 0\nv_mov_b32 v{vT+6}, 0\nv_mov_b32 v{vT+7}, 0\ns_nop 1")
    k(f"s_cmp_eq_u32 s{sFG}, 0\ns_cbranch_scc1 {s0}")
    gelu(0, z1, True)
    k.label(s0)
    gelu(1, z2, True)
    k.srd(sO, P_WS, SZ_ST, WS_ST)
    k(f"""v_permlane16_swap_b32 v{vT+10}, v{vT+6}
    v_permlane16_swap_b32 v{vT+11}, v{vT+7}
    v_add_f32 v{vT+10}, v{vT+10}, v{vT+6}
    v_add_f32 v{vT+11}, v{vT+11}, v{vT+7}
    v_mov_b32 v{vT+2}, v{vT+10}
    v_mov_b32 v{vT+3}, v{vT+11}
    s_mul_i32 s{sT}, s{sTB}, 14
    s_add_u32 s{sT}, s{sT}, s{sFG}
    v_permlane32_swap_b32 v{vT+10}, v{vT+2}
    v_permlane32_swap_b32 v{vT+11}, v{vT+3}
    s_lshl_b32 s{sT}, s{sT}, 11
    s_lshl_b32 s{sT+1}, s{sW}, 9
    v_add_f32 v{vT+4}, v{vT+10}, v{vT+2}
    v_add_f32 v{vT+6}, v{vT+11}, v{vT+3}
    v_mov_b32 v{vT+5}, s{sNo}
    v_mov_b32 v{vT+7}, s{sNo}
    v_lshlrev_b32 v{vT+2}, 4, v{vN}
    s_add_u32 s{sT}, s{sT}, s{sT+1}""")
    k(vop("st", f"buffer_store_dwordx4 {v(vT+4,4)}, v{vT+2}, s[{sO}:{sO+3}], s{sT} offen sc1"))
    k("s_nop 0")
    for i in range(g1n):
        for x in gelu4(acc[0] + 4*i): k(x)
    sp('e25')
    pr = [FR(0, i) for i in range(6)] + [tmp + 8]
    sm = FR(0, 0)
    gl = k.lab("gl"); gd = k.lab("gd")
    k(f"""v_mul_u32_u24 v{vT+14}, {7*2048}, v{vH}
    v_lshl_add_u32 v{vT+14}, v{vN}, 4, v{vT+14}
    s_mul_i32 s{sT+2}, s{sTB}, {14*2048}
    s_lshl_b32 s{sT+1}, s{sW}, 9
    s_add_u32 s{sT+2}, s{sT+2}, s{sT+1}""")
    def gloads():
        for i in range(7):
            if i % 2 == 0: k(f"s_add_u32 s{sT+3}, s{sT+2}, {2048*i}")
            k(f"buffer_load_dwordx4 {v(pr[i],4)}, v{vT+14}, s[{sO}:{sO+3}], s{sT+3} offen offset:{2048*(i%2)} sc1")
    gloads()
    sel, D = tmp, tmp + 8
    mur, r = vT + 10, vT + 11
    k(f"""v_and_b32 v{vT+2}, 15, v{vL}
    v_lshrrev_b32 v{vT+3}, 4, v{vL}
    v_lshlrev_b32 v{vT+3}, 2, v{vT+3}
    v_sub_u32 v{vT+2}, v{vT+2}, v{vT+3}
    v_mov_b32 v{vT+3}, 0x3f80
    v_mov_b32 v{vT+4}, 0x3f800000""")
    for q in (0, 1, 4, 5): k(f"v_mov_b32 v{sel+q}, 0")
    for q in range(2):
        k(f"""v_cmp_eq_u32 vcc, {2*q}, v{vT+2}
        v_cmp_eq_u32 s[{sT}:{sT+1}], {2*q+1}, v{vT+2}
        s_nop 0
        v_cndmask_b32 v{sel+2+q}, 0, v{vT+3}, vcc
        v_cndmask_b32 v{sel+2+q}, v{sel+2+q}, v{vT+4}, s[{sT}:{sT+1}]""")
    k.label(gl)
    k("s_waitcnt vmcnt(0)")
    for j, tg in ((1, sNo), (3, sNo)):
        t = vT + 4 + j // 2
        k(f"v_xor_b32 v{t}, s{tg}, v{pr[0]+j}")
        for i in range(1, 7):
            k(f"v_xor_b32 v{vT+6}, s{tg}, v{pr[i]+j}\nv_or_b32 v{t}, v{t}, v{vT+6}")
    k(f"v_or_b32 v{vT+4}, v{vT+4}, v{vT+5}\nv_cmp_ne_u32 vcc, 0, v{vT+4}\ns_cbranch_vccz {gd}\ns_sleep 2")
    gloads()
    again(gl)
    k("s_waitcnt vmcnt(0)")
    k.label(gd)
    sp('sok')
    for i in range(1, 7):
        k(f"v_add_f32 v{sm}, v{sm}, v{pr[i]}\nv_add_f32 v{sm+2}, v{sm+2}, v{pr[i]+2}")
    k(f"v_mov_b32 v{sm+1}, v{sm+2}")
    k.srd(sO, P_WS, SZ_Z2F, WS_Z2F)
    k(f"""v_mov_b32 v{sm+2}, v{sm}
    v_mov_b32 v{sm+3}, v{sm+1}
    v_lshlrev_b32 v{vT+2}, 4, v{vL}
    s_lshl_b32 s{sT}, s{sFG}, 18
    v_permlane32_swap_b32 v{sm}, v{sm+2}
    v_permlane32_swap_b32 v{sm+1}, v{sm+3}
    v_add_f32 v{mur}, v{sm}, v{sm+2}
    v_add_f32 v{r}, v{sm+1}, v{sm+3}
    v_mul_f32 v{mur}, {fl(1.0/864)}, v{mur}
    v_mul_f32 v{r}, {fl(1.0/864)}, v{r}
    v_fma_f32 v{r}, -v{mur}, v{mur}, v{r}
    v_max_f32 v{r}, 0, v{r}
    v_add_f32 v{r}, {fl(1e-5)}, v{r}
    v_rsq_f32 v{r}, v{r}
    s_lshl_b32 s{sT+1}, s{sTB}, 12
    s_add_u32 s{sT}, s{sT}, s{sT+1}
    v_mul_f32 v{mur}, v{mur}, v{r}
    v_mov_b32 v{vT+7}, v{r}
    v_mov_b32 v{vT+6}, v{mur}
    s_lshl_b32 s{sT+1}, s{sW}, 10
    s_add_u32 s{sT}, s{sT}, s{sT+1}
    v_permlane16_swap_b32 v{r}, v{vT+7}
    v_permlane16_swap_b32 v{mur}, v{vT+6}""")
    s1 = k.lab("s1")
    for u in (1, 0):
        if u == 0:
            k(f"s_cmp_eq_u32 s{sFG}, 0\ns_cbranch_scc1 {s1}\ns_sub_u32 s{sT}, s{sT}, 0x20000")
        k(f"s_add_u32 s{sT+1}, s{sT}, 0x10000")
        zz = (z1, z2)[u]
        for i in range(8):
            m_, r_ = (mur, r) if i < 4 else (vT + 6, vT + 7)
            k(f"""v_lshlrev_b32 v{vT+4}, 16, v{zz+i}
            v_and_b32 v{vT+5}, s{sMask}, v{zz+i}
            v_fma_f32 v{vT+4}, v{vT+4}, v{r_}, -v{m_}
            v_fma_f32 v{vT+5}, v{vT+5}, v{r_}, -v{m_}
            v_cvt_pk_bf16_f32 v{zz+i}, v{vT+4}, v{vT+5}""")
        k("s_nop 1")
        for c in range(2):
            for tn in range(2):
                k(f"v_mfma_f32_16x16x32_bf16 {v(D+8*c+4*tn,4)}, {v(zz+4*tn,4)}, {v(sel+2-2*c,4)}, 0")
        k("s_nop 4")
        for i in range(8): k(f"v_cvt_pk_bf16_f32 v{zz+i}, v{D+2*i}, v{D+2*i+1}")
        k("s_nop 0")
        swap44(zz, zz + 4)
        for c in range(2):
            k(vop("zs", f"buffer_store_dwordx4 {v(zz+4*c,4)}, v{vT+2}, s[{sO}:{sO+3}], s{sT + c} offen sc1"))
    k.label(s1)
    del vm[-2:]
    lo()
    k("s_waitcnt vmcnt(0)")
    gsync(); set_flag(FL_Z)
    sp('zf')
    for i in range(g1n, g2n):
        for x in gelu4(acc[0] + 4*i): k(x)
    k(f"s_lshl_b32 s{sT}, s{sW}, 13\ns_add_u32 s{sT}, s{sT}, {FL_Z}\nv_and_b32 v{vT+14}, 15, v{vL}\nv_min_u32 v{vT+14}, 13, v{vT+14}\nv_and_or_b32 v{vT+14}, v{vL}, 48, v{vT+14}\nv_lshlrev_b32 v{vT+14}, 7, v{vT+14}")
    k(vop("pz", gload(f"s{sT}", vT + 14, vFg)))
    k.label(skipG)
    ev = (0, 0, 0, 0, 30, 30)
    z_ready()
    k("s_waitcnt vmcnt(2)")
    gsync()
    for r in reads("frag", 0, 0, 30): k(r)
    sp('p3')
    pat[0] = pats
    cacc[0] = [z1, z2]
    body(30, "frag", "frag", first=True, needp=max(0, ev[5] - 29) if ev[5] < 30 else 0)
    body(31, "frag", "frag")
    k(f"s_mov_b32 s{sNeed}, 30\ns_mov_b32 s{sI}, 0")
    loop = k.lab("gloop")
    sp('l0')
    if "acct" in MX: k("s_waitcnt lgkmcnt(0)\ns_mov_b32 s82, s80\ns_mov_b32 s84, s80")
    if "lin" in MX:
        for p in range(4): k(f"v_mov_b32 v{vD+p}, v{vDb}")
    if "glin" in MX:
        for p in range(4): k(f"v_add_u32 v{vWa+p}, s{sM0A}, v{vDb}")
    if "oob" in MX: k(f"s_mov_b32 s{sA+2}, 0\ns_mov_b32 s{sB+2}, 0")
    if "ooa" in MX: k(f"s_mov_b32 s{sA+2}, 0")
    if "ooz" in MX: k(f"s_mov_b32 s{sB+2}, 0")
    k.align(3)
    k.label(loop)
    inloop[0] = True
    if "nosc" in MX: cohB[0] = ""
    for g in range(32, 38):
        body(g, "frag", "frag", loop=True)
    inloop[0] = False
    k(f"s_add_u32 s{sI}, s{sI}, 1\ns_cmp_lt_u32 s{sI}, 3\ns_cbranch_scc1 {loop}")
    sp('l1')
    if "skip" in MX: k.endpgm(P_WS, 3)
    if "nopt" in MX:
        k("s_waitcnt lgkmcnt(0)")
        k.stamp(1); k("s_waitcnt lgkmcnt(0)")
        for i in range(32): k("s_nop 15")
        k.stamp(2); k("s_waitcnt lgkmcnt(0)")
        for i in range(256): k(f"v_add_u32 v{vT}, 1, v{vT}")
        k.stamp(3); k("s_waitcnt lgkmcnt(0)")
        for i in range(32): k(f"ds_read_b32 v{vT}, v{vFa}\ns_waitcnt lgkmcnt(0)")
        k.stamp(4); k("s_waitcnt lgkmcnt(0)")
    sG, sWb = sI, sBaseA
    def out_ids():
        k(f"s_lshr_b32 s{sG}, s2, 5\ns_mul_i32 s{sWb}, s{sG}, {47*5120}\ns_add_u32 s{sWb}, s{sWb}, {20*5120 - 1024 - L_A}")
    vm[:] = [((t[0], t[1] + 12) if isinstance(t, tuple) else t) for t in vm]
    def gelu4(r0):
        t = vT
        R = range(4)
        o = [f"v_mul_f32 v{t+i}, v{r0+i}, v{r0+i}" for i in R] + [f"v_fmaak_f32 v{t+i}, v{vT+12}, v{t+i}, {fl(GC0)}" for i in R]
        o += [f"v_mul_f32 v{t+i}, v{t+i}, v{r0+i}" for i in R] + [f"v_exp_f32 v{t+i}, v{t+i}" for i in R]
        o += [f"v_add_f32 v{t+i}, 1.0, v{t+i}" for i in R] + [f"v_rcp_f32 v{t+i}, v{t+i}" for i in R]
        return o + [f"v_mul_f32 v{r0+i}, v{t+i}, v{r0+i}" for i in R]
    def wtouch():
        k(f"""s_bfe_u32 s{sT}, s2, 0x20003
        s_lshl_b32 s{sT}, s{sT}, 2
        s_add_u32 s{sT}, s{sT}, s{sW}
        s_mul_i32 s{sT+1}, s{sT}, {50*128}
        s_mul_i32 s{sT+2}, s{sT}, {20*128}
        s_mul_i32 s{sT}, s{sG}, {47*5120}
        s_add_u32 s{sT+1}, s{sT+1}, s{sT}
        s_add_u32 s{sT+2}, s{sT+2}, s{sT}
        s_add_u32 s{sT+2}, s{sT+2}, {39*5120}
        v_min_u32 v{vT+4}, 49, v{vL}
        v_lshlrev_b32 v{vT+4}, 7, v{vT+4}
        v_min_u32 v{vT+5}, 19, v{vL}
        v_lshlrev_b32 v{vT+5}, 7, v{vT+5}
        buffer_load_dword v{vZa}, v{vT+5}, s[{sB}:{sB+3}], s{sT+2} offen sc1
        buffer_load_dword v{vZa}, v{vT+4}, s[{sB}:{sB+3}], s{sT+1} offen sc1""")
    for g in range(50, 62):
        tA = tB = None
        if g == 55:
            k(f"v_and_b32 v{vT+14}, 31, v{vL}\nv_lshlrev_b32 v{vT+14}, 7, v{vT+14}\ns_mov_b32 s{sT}, {FL_W}")
            k(gload(f"s{sT}", vT + 14, vFg))
        if g == 58:
            sp('g58a')
            wk = k.lab("wok")
            gcheck(vFg)
            k(f"s_cbranch_vccz {wk}\ns_mov_b32 s{sT}, {FL_W}")
            gpoll(f"s{sT}", vT + 14, vFg, None, 4)
            k.label(wk)
            sp('g58')
            out_ids()
            k.srd(sB, P_WS, SZ_WF, WS_WF)
        if g == 59:
            k.srd(sA, P_WS, SZ_WF, WS_WF)
            cohA[0] = "sc1"
            hi()
            for p in range(4): k(f"v_mov_b32 v{vD+p}, v{vDb}")
            lo()
        if g == wt: wtouch()
        if g >= 58: tB = f"s_add_u32 s{sSoB}, m0, s{sWb}"
        if g >= 59: tA = f"s_add_u32 s{sSoA}, m0, s{sWb}"
        body(g, "frag", "frag" if g < 61 else None, dyn=True, doA=(g < 59), doB=(g < 58), tailA=tA, tailB=tB, cout=(g < 58), ex=(gelu4(acc[0] + 4*(g - 50)) if g2n <= g - 50 < 8 else ()))
    sp('p4')
    hi()
    fin = k.lab("gfin")
    def rest_w():
        gsync()
        k(f"s_lshl_b32 s{sT+1}, s{sW}, 12\ns_add_u32 m0, s{sT+1}, {L_Z}\ns_add_u32 s{sSoB}, m0, s{sWb}")
        for p in range(4):
            k(f"buffer_load_dwordx4 v{vDb}, s[{sB}:{sB+3}], s{sSoB} offen offset:{1024*p} sc1 lds")
    k.srd(sO, P_WS, SZ_OUF, WS_OUF)
    k(f"""v_lshlrev_b32 v{vBias}, 16, v{vBias}
    s_lshl_b32 s{sT}, s{sTB}, 2
    s_add_u32 s{sT}, s{sT}, s{sW}
    v_mov_b32 v{vBias1}, v{vBias}
    s_mul_i32 s{sT}, s{sT}, {2*47*1024}
    s_lshl_b32 s{sT+1}, s{sFG}, 11
    s_add_u32 s{sT}, s{sT}, s{sT+1}
    v_permlane16_swap_b32 v{vBias}, v{vBias1}
    s_add_u32 s{sT}, s{sT}, {20*1024}
    s_add_u32 s{sT+1}, s{sT}, {47*1024}""")
    for i in range(2):
        if i == 1:
            k(f"s_cmp_eq_u32 s{sFG}, 13\ns_cbranch_scc1 {fin}")
        ga = cacc[0][i]
        if pkv & 2:
            if pkv & 4: k('s_nop 7')
            for r in range(0, 16, 2): k(f"v_pk_add_f32 {v(ga+r,2)}, {v(ga+r,2)}, {v(vBias,2)} " + ("op_sel_hi:[1,0]" if r < 8 else "op_sel:[0,1] op_sel_hi:[1,1]"))
            for r in range(0, 16, 2): k(f"v_pk_mul_f32 {v(ga+r,2)}, {v(ga+r,2)}, {v(acc[i]+r,2)}")
        else:
            for r in range(16): k(f"v_add_f32 v{ga+r}, v{ga+r}, v{vBias if r < 8 else vBias1}")
            for r in range(16): k(f"v_mul_f32 v{ga+r}, v{ga+r}, v{acc[i]+r}")
        for r in range(8): k(f"v_cvt_pk_bf16_f32 v{tmp+8*i+r}, v{ga+2*r}, v{ga+2*r+1}")
        k("s_nop 0")
        swap44(tmp + 8*i, tmp + 8*i + 4)
        for tn in range(2):
            k(f"buffer_store_dwordx4 {v(tmp+8*i+4*tn,4)}, v{vDb}, s[{sO}:{sO+3}], s{sT+tn} offen offset:{1024*i} sc1")
    k.label(fin)
    sp('ust')
    rest_w()
    sp('urw')
    if not sent: set_wflag(FL_U, 4)
    sp('ufl')
    if wt == 62: wtouch()
    k(f"s_branch {outp}")

    k.label(rep)
    vm[:] = [("A", 0)] * 2
    k(f"s_cmp_ge_u32 s{sW}, 2\ns_cbranch_scc1 {kw}")
    k.srd(sB, P_WK, 25600)
    k(f"s_branch {kwd}")
    k.label(kw)
    k.srd(sB, P_WV, 25600)
    k.label(kwd)
    k(f"""v_lshlrev_b32 v{vw}, 4, v{vL}
    v_lshlrev_b32 v{vw+1}, 4, v{vL}
    s_and_b32 s{sSoB}, s{sW}, 1
    s_lshl_b32 s{sSoB}, s{sSoB}, 9
    s_mov_b32 s{sStepB}, 2560
    s_lshr_b32 s{sI}, s{sW}, 1
    s_lshl_b32 s{sI}, s{sI}, 12
    s_add_u32 s{sI}, s{sI}, s{sSoB}
    s_add_u32 s{sI}, s{sI}, {F_B+8192}""")
    if early: l_pass(2, True, setup_rest, lead=lk)
    else:
        l_pass(2, False, lambda: (setup_rest(), k("s_barrier")), lead=lk)
    sp('p1l')
    q_src()
    k("s_barrier\ns_barrier\ns_barrier")
    l_pass(3, False)
    k("s_barrier")
    rl = k.lab("rl")
    att_progress(1, vT + 5, 8)
    if spe: prefetch_sp()
    if so: poison(False)
    k(f"s_mov_b32 s{sNeed}, s{sT64}")
    k.label(rl)
    emit_repack(k, sNeed, sW, vL, P_WO, P_WOUT, P_WS, 8, acc[0], L_A, gsync, coh="sc1", rot=orot)
    k(f"s_add_u32 s{sNeed}, s{sNeed}, 32\ns_waitcnt vmcnt(0)")
    gsync()
    k(f"s_cmp_lt_u32 s{sNeed}, 47\ns_cbranch_scc1 {rl}")
    if so: poison_done()
    nf = k.lab("nf")
    k(f"s_cmp_lg_u32 s{sW}, 0\ns_cbranch_scc1 {nf}\ns_lshl_b32 s{sT}, s{sT64}, 7\ns_add_u32 s{sT}, s{sT}, {FL_W}")
    gset(f"s{sT}", vT, vT + 2)
    k.label(nf)
    k.label(outq)
    sp('p1')
    k(f"s_setprio {lprio}")
    out_ids()
    k.srd(sB, P_WS, SZ_WF, WS_WF)
    if not spe: prefetch_sp()
    if zpf:
        k(f"s_lshl_b32 s{sT}, s{sW}, 13\ns_add_u32 s{sT}, s{sT}, {FL_Z}\nv_and_b32 v{vT}, 15, v{vL}\nv_min_u32 v{vT}, 13, v{vT}\nv_and_or_b32 v{vT}, v{vL}, 48, v{vT}\nv_lshlrev_b32 v{vT}, 7, v{vT}")
        gpoll(f"s{sT}", vT, vT + 2, None, 16)
        gsync()
        zl = k.lab("zl")
        k.srd(sO, P_WS, SZ_Z2F, WS_Z2F)
        k(f"s_bfe_u32 s{sT}, s2, 0x20003\ns_lshl_b32 s{sT}, s{sT}, 2\ns_add_u32 s{sT}, s{sT}, s{sW}\nv_lshlrev_b32 v{vT+8}, 7, v{vL}")
        k.label(zl)
        k(f"""s_mul_i32 s{sT+1}, s{sT}, 2428
        s_lshr_b32 s{sT+1}, s{sT+1}, 16
        s_mul_i32 s{sT+2}, s{sT+1}, 27
        s_sub_u32 s{sT+2}, s{sT}, s{sT+2}
        s_lshl_b32 s{sT+2}, s{sT+2}, 17
        s_add_u32 s{sT+1}, s{sT+1}, {16 - zpf}
        s_lshl_b32 s{sT+1}, s{sT+1}, 13
        s_add_u32 s{sT+1}, s{sT+1}, s{sT+2}
        buffer_load_dword v{vT+9}, v{vT+8}, s[{sO}:{sO+3}], s{sT+1} offen sc1
        s_add_u32 s{sT}, s{sT}, 16
        s_cmp_lt_u32 s{sT}, {27 * zpf}
        s_waitcnt vmcnt(1)
        s_cbranch_scc1 {zl}""")
    att_progress(wfat, vT, 32)
    k(f"v_lshlrev_b32 v{vDb}, 4, v{vL}\nv_lshlrev_b32 v{vT}, 7, v{vL}\ns_mov_b32 s{sT}, {FL_W}")
    gpoll(f"s{sT}", vT, vT + 2, 0xffffffff, 16)
    if so:
        k(f"s_lshl_b32 s{sT}, s{sW}, 13\ns_add_u32 s{sT}, s{sT}, {FL_Z}\nv_and_b32 v{vT}, 15, v{vL}\nv_min_u32 v{vT}, 13, v{vT}\nv_and_or_b32 v{vT}, v{vL}, 48, v{vT}\nv_lshlrev_b32 v{vT}, 7, v{vT}")
        gpoll(f"s{sT}", vT, vT + 2, None, 16)
        gsync()
    if 'w' in pf:
        wl = k.lab("wl")
        k(f"""s_bfe_u32 s{sT}, s2, 0x20003
        s_lshl_b32 s{sT}, s{sT}, 2
        s_add_u32 s{sT}, s{sT}, s{sW}
        s_lshl_b32 s{sT}, s{sT}, 13
        v_lshlrev_b32 v{vT+8}, 7, v{vL}""")
        k.label(wl)
        k(f"""buffer_load_dword v{vT+9}, v{vT+8}, s[{sB}:{sB+3}], s{sT} offen sc1
        s_add_u32 s{sT}, s{sT}, {16*8192}
        s_cmp_lt_u32 s{sT}, {SZ_WF}
        s_waitcnt vmcnt(0)
        s_cbranch_scc1 {wl}""")
    k(f"s_mul_i32 s{sT}, s{sW}, {24*1024}\ns_add_u32 s{sT}, s{sT}, {L_A}")
    for p in range(24):
        if p % 4 == 0:
            k(f"s_add_u32 m0, s{sT}, {1024*p}\ns_add_u32 s{sSoB}, m0, s{sWb}")
        k(f"buffer_load_dwordx4 v{vDb}, s[{sB}:{sB+3}], s{sSoB} offen offset:{1024*(p%4)} sc1 lds")

    if 'v' in pf:
        vl = k.lab("vl")
        k(f"""s_bfe_u32 s{sT}, s2, 0x20003
        s_lshl_b32 s{sT}, s{sT}, 2
        s_add_u32 s{sT}, s{sT}, s{sW}
        s_lshr_b32 s{sT+1}, s{sT}, 1
        s_mul_i32 s{sT+1}, s{sT+1}, {47*5120}
        s_and_b32 s{sT}, s{sT}, 1
        s_lshl_b32 s{sT}, s{sT}, 13
        v_lshlrev_b32 v{vT+8}, 7, v{vL}""")
        k.label(vl)
        k(f"""s_add_u32 s{sT+2}, s{sT}, {39*5120}
        s_sub_u32 s{sT+3}, s{sT}, {8*5120}
        s_cselect_b32 s{sT+2}, s{sT+2}, s{sT+3}
        s_add_u32 s{sT+2}, s{sT+2}, s{sT+1}
        buffer_load_dword v{vT+9}, v{vT+8}, s[{sB}:{sB+3}], s{sT+2} offen sc1
        s_add_u32 s{sT}, s{sT}, 16384
        s_cmp_lt_u32 s{sT}, {28*5120}
        s_waitcnt vmcnt(1)
        s_cbranch_scc1 {vl}
        s_waitcnt vmcnt(0)""")
    k.label(outp)
    sp('outp')
    sWF, sOU, sXo = sB, sA, sO
    sTT, sAo, sXof = sSoA, sStepB, sM0A
    a = Alloc(8)
    oacc = a(20, 4)
    af = a(80, 4)
    wb = [a(20, 4), a(20, 4)]
    xr = a(10, 2)
    vQ = a(4, 2)
    vA16, vW0, vW1, vXo, vP = a(), a(), a(), a(), a()
    assert a.n <= 168, a.n
    k.srd(sOU, P_WS, SZ_OUF, WS_OUF)
    k.srd(sXo, P_X, SZ_Q)
    k(f"""s_lshl_b32 s{sTT}, s{sT64}, 2
    s_add_u32 s{sTT}, s{sTT}, s{sW}
    s_mul_i32 s{sAo}, s{sTT}, {47*1024}
    s_mul_i32 s{sXof}, s{sTT}, {16*1280}
    s_mul_i32 s{sT}, s{sG}, 160
    s_add_u32 s{sXof}, s{sXof}, s{sT}
    v_lshlrev_b32 v{vA16}, 4, v{vL}
    v_add_u32 v{vW0}, {L_W}, v{vA16}
    v_add_u32 v{vW1}, {L_W+51200}, v{vA16}
    v_lshlrev_b32 v{vP}, 7, v{vL}
    v_and_b32 v{vXo}, 15, v{vL}
    v_mul_u32_u24 v{vXo}, 1280, v{vXo}
    v_lshrrev_b32 v{vQ}, 4, v{vL}
    v_lshl_add_u32 v{vXo}, v{vQ}, 3, v{vXo}""")
    k(f"s_setprio {lprio}")
    sWs, sWd = sT + 1, sT + 2
    k(f"s_mul_i32 s37, s{sG}, 5\ns_lshr_b32 s37, s37, 1\ns_mul_i32 s38, s{sG}, 27\ns_lshr_b32 s38, s38, 3")
    sU = sNeed
    vm[:] = []
    ld = []
    def lop(tag, txt): ld.append(tag); k(txt)
    def lnewer(tag): return min(15, len(ld) - 1 - max(i for i, t in enumerate(ld) if t == tag))
    def wpieces(step0, lds0, npieces, tag):
        per = npieces // 4
        def setup():
            k(f"""s_mul_i32 s{sWs}, s{sG}, {47*5120}
            s_mul_i32 s{sWd}, s{sW}, {per*1024}
            s_add_u32 s{sWs}, s{sWs}, s{sWd}
            s_add_u32 s{sWs}, s{sWs}, {step0*5120}
            s_add_u32 s{sWd}, s{sWd}, {lds0}""")
        def piece(p):
            if p == 0: setup()
            if p % 4 == 0:
                k(f"s_add_u32 m0, s{sWd}, {1024*p}")
                k(f"s_add_u32 s{sWs}, s{sWs}, 4096" if p else "s_nop 0")
            k(vop(tag, f"buffer_load_dwordx4 v{vA16}, s[{sWF}:{sWF+3}], s{sWs} offen offset:{1024*(p%4)} sc1 lds"))
        return [lambda p=p: piece(p) for p in range(per)]
    def aloads(steps, regs):
        def one(st, r):
            if orot:
                lo_, n_, sr = (0, 20, 37) if st < 20 else (20, 27, 38)
                k(f"s_add_u32 s{sT}, s{sr}, {st-lo_}\ns_sub_u32 s39, s{sT}, {n_}\ns_cselect_b32 s{sT}, s{sT}, s39\ns_lshl_b32 s{sT}, s{sT}, 10\ns_add_u32 s{sT}, s{sT}, s{sAo}")
                if lo_: k(f"s_add_u32 s{sT}, s{sT}, {lo_*1024}")
            else:
                k(f"s_add_u32 s{sT}, s{sAo}, {st*1024}")
            k(vop(("a", st), f"buffer_load_dwordx4 {v(af+4*r,4)}, v{vA16}, s[{sOU}:{sOU+3}], s{sT} offen sc1"))
        return [lambda st=st, r=r: one(st, r) for st, r in zip(steps, regs)]
    def wread(slot, b, u, tag):
        if isinstance(slot, tuple): base, o = vA16, slot[1] * 5120
        else: base, o = (vW0, slot * 5120) if slot < 10 else (vW1, (slot - 10) * 5120)
        lop(tag, f"ds_read_b128 {v(wb[b]+4*u,4)}, v{base} offset:{o+1024*u}")
    first = [True]
    def arrive():
        k(f"s_add_u32 s{sCnt}, s{sCnt}, 1\nv_mov_b32 v{vFl}, s{sCnt}")
        lop("w", f"ds_write_b32 v{vXw}, v{vFl}")
    def peek(): lop("pk", f"ds_read_b32 v{vQ}, v{vXa}")
    def check():
        sl = k.lab("oslow"); ok = k.lab("ook")
        k(f"s_waitcnt lgkmcnt({lnewer('pk')})\nv_cmp_gt_u32 vcc, s{sCnt}, v{vQ}\ns_cbranch_vccnz {sl}")
        k.label(ok)
        cold2.append((sl, ok))
    cold2 = []; cold3 = []; novm = [False]
    def compute(seq, side, hooks={}):
        for i in range(min(2, len(seq))):
            for u in range(5): wread(seq[i][0], i % 2, u, ("r", i))
        for i, (sl, st, r) in enumerate(seq):
            b = i % 2
            nv = 63 if novm[0] else newer({("a", st)})
            k(f"s_waitcnt vmcnt({min(63, nv)}) lgkmcnt({lnewer(('r', i))})")
            if so and st < 20:
                a0 = af + 4*r
                sl = k.lab("vslow"); ok = k.lab("vok")
                k(f"v_max3_u32 v{vQ+1}, v{a0}, v{a0+1}, v{a0+2}\nv_max_u32 v{vQ+1}, v{vQ+1}, v{a0+3}\nv_cmp_eq_u32 vcc, -1, v{vQ+1}\ns_cbranch_vccnz {sl}")
                k.label(ok)
                cold3.append((sl, ok, st, r))
            sp(f's{st}')
            if i in hooks: hooks[i]()
            sd = list(side.get(i, []))
            for u in range(5):
                c = "0" if first[0] else v(oacc+4*u, 4)
                k(f"v_mfma_f32_16x16x32_bf16 {v(oacc+4*u,4)}, {v(wb[b]+4*u,4)}, {v(af+4*r,4)}, {c}")
                if i + 2 < len(seq): wread(seq[i + 2][0], b, u, ("r", i + 2))
                if sd and u in ((1, 3, 4, 2, 0)[:len(side.get(i, []))]): sd.pop(0)()
            assert not sd
            first[0] = False
    def deal(em, i0, per):
        return {i0 + j: em[per*j:per*(j+1)] for j in range((len(em) + per - 1) // per)}
    def xload(u): k(vop("x", f"buffer_load_dwordx2 {v(xr+2*u,2)}, v{vXo}, s[{sXo}:{sXo+3}], s{sXof} offen offset:{32*u}"))
    if not xl:
        for u in range(5): xload(u)
    smode = [False]
    def probe_load(mask, vd, kind):
        k(f"s_mov_b64 exec, {hx(mask)}")
        if smode[0]: k(vop("of", f"buffer_load_dword v{vd}, v{vP}, s[{sOU}:{sOU+3}], s{sU} offen sc1"))
        else: k(vop("of", gload(f"s{sU}", vP, vd)))
        k("s_mov_b64 exec, -1")
    def probe_check(mask, vd):
        k(f"s_mov_b64 exec, {hx(mask)}")
        if smode[0]: k(f"v_cmp_eq_u32 vcc, -1, v{vd}")
        else: gcheck(vd)
        k("s_mov_b64 exec, -1")
    def probe(mask, slp):
        l = k.lab("pb"); d = k.lab("pbd")
        k.label(l)
        probe_load(mask, vQ, 0)
        k("s_waitcnt vmcnt(0)")
        probe_check(mask, vQ)
        k(f"s_cbranch_vccz {d}\ns_sleep {slp}")
        again(l)
        k.label(d)
    if o2:
        k(f"s_mul_i32 s{sWs}, s{sG}, {47*5120}\ns_mul_i32 s{sWd}, s{sW}, 10240\ns_add_u32 s{sWs}, s{sWs}, s{sWd}\ns_add_u32 s{sWs}, s{sWs}, {39*5120}")
        k(f"s_add_u32 s{sWd}, s{sWd}, {L_W + 5120}\nv_add_u32 v{vFw}, s{sWd}, v{vA16}")
        for p in range(10):
            if p and p % 4 == 0: k(f"s_add_u32 s{sWs}, s{sWs}, 4096")
            k(f"buffer_load_dwordx4 {v(af+40+4*p,4)}, v{vA16}, s[{sWF}:{sWF+3}], s{sWs} offen offset:{1024*(p%4)} sc1")
    k("s_setprio 3")
    if sent:
        k(f"v_lshlrev_b32 v{vP}, 10, v{vL}\ns_add_u32 s{sU}, s{sAo}, {20*1024+1020}")
        probe((1 << 27) - 1, 1)
        gsync()
        k(f"v_mul_u32_u24 v{vP}, 2560, v{vL}\ns_add_u32 s{sU}, s{sAo}, 2556")
    else:
        k(f"s_lshr_b32 s{sU}, s{sTT}, 1\ns_lshl_b32 s{sU}, s{sU}, 11\ns_add_u32 s{sU}, s{sU}, {FL_U}")
        k("s_waitcnt vmcnt(0)")
        gsync()
        probe(0x3fff, us)
        sp('upr')
        if so:
            k(f"v_mul_u32_u24 v{vP}, 2560, v{vL}\ns_add_u32 s{sU}, s{sAo}, 2556")
            smode[0] = True
        else:
            k(f"s_lshl_b32 s{sU}, s{sT64}, 10\ns_add_u32 s{sU}, s{sU}, {FL_O}")
    sp('upoll')
    k(f"s_setprio {oprio}")
    if o2:
        ul = aloads(range(20, 47), [i % 10 for i in range(27)])
        for e in ul[:10]: e()
        side = {i + 1: [ul[10 + i]] for i in range(17)}
        wr = [lambda p=p: lop("ww", f"ds_write_b128 v{vFw}, {v(af+40+4*p,4)} offset:{1024*p}") for p in range(10)]
        for i, e in deal(wr, 10, 2).items(): side[i] = side[i] + e
        for i, e in deal(wpieces(12, L_W + 9 * 5120, 40, "b3"), 17, 2).items(): side[i] = side.get(i, []) + e
        side[18] = [lambda: probe_load(0xff, vQ + 2, 1)] + side[18]
        sOd = sMask
        ofirst = aloads(range(10), range(10, 20))
        def arrive2():
            k(f"s_waitcnt lgkmcnt({lnewer('ww')})"); arrive()
        def otry():
            k(f"s_waitcnt vmcnt({newer({'of'})})")
            novm[0] = True
            probe_check(0xff, vQ + 2)
            k(f"s_cmp_eq_u64 vcc, 0\ns_cselect_b32 s{sOd}, 1, 0")
        def cond(e):
            def f_():
                l = k.lab("oc")
                k(f"s_cmp_eq_u32 s{sOd}, 0\ns_cbranch_scc1 {l}")
                e()
                k.label(l)
            return f_
        side.update(deal([cond(e) for e in ofirst], 22, 2))
        seq = [(1 + i if i < 19 else i - 18, 20 + i, i % 10) for i in range(27)]
        compute(seq, side, {7: arrive, 9: peek, 10: check, 15: arrive2, 16: peek, 17: check, 22: otry})
        novm[0] = False
        sp('o4')
        late = k.lab("olate"); join = k.lab("ojoin")
        k(f"s_cmp_eq_u32 s{sOd}, 0\ns_cbranch_scc1 {late}")
        k.label(join)
        sp('c3')
        lds_wait(L_F + F_OC, vQ, vQ + 1, 1)
        k("s_setprio 3")
        ld[:] = []
        oregs = list(range(10, 20)) + list(range(10))
        seq4 = [(("T", i), i, oregs[i]) for i in range(12)] + [(9 + i, 12 + i, oregs[12 + i]) for i in range(8)]
        def b3_arrive():
            k(f"s_waitcnt vmcnt({newer({'b3'})})"); arrive()
        compute(seq4, deal(aloads(range(10, 20), range(10)), 0, 2), {6: b3_arrive, 8: peek, 9: check})
    else:
        ul = aloads(range(20, 40), range(20))
        for e in ul[:8]: e()
        side = deal(ul[8:], 0, 2)
        side.update(deal(aloads(range(40, 47), range(7)), 8, 4))
        side.update(deal(wpieces(39, L_W + 5120, 40, "b2"), 10, 2))
        def oflag():
            probe_load(0xff, vQ + 2, 1)
        side[16] = [oflag]
        if xl:
            side[15] = [lambda: xload(0), lambda: xload(1)]; side[17] = [lambda: xload(2), lambda: xload(3)]; side[18] = [lambda: xload(4)]
        compute([(1 + i, 20 + i, i) for i in range(19)], side, {7: arrive, 9: peek, 10: check})
        sp('o4')
        k(f"s_waitcnt vmcnt(0)")
        gsync()
        late = k.lab("olate"); join = k.lab("ojoin")
        probe_check(0xff, vQ + 2)
        k(f"s_cbranch_vccnz {late}")
        seq3 = [(1 + i, 39 + i, ([19] + list(range(7)))[i]) for i in range(8)]
        oregs = list(range(7, 19)) + [19] + list(range(7))
        save = list(vm)
        em = wpieces(12, L_W + 9 * 5120, 40, "b3") + aloads(range(12), oregs[:12])
        compute(seq3, deal(em, 0, 3))
        k.label(join)
        sp('c3')
        lds_wait(L_F + F_OC, vQ, vQ + 1, 1)
        k("s_setprio 3")
        ld[:] = []
        seq4 = [(("T", i), i, oregs[i]) for i in range(12)] + [(9 + i, 12 + i, oregs[12 + i]) for i in range(8)]
        def b3_arrive():
            k(f"s_waitcnt vmcnt({newer({'b3'})})"); arrive()
        compute(seq4, deal(aloads(range(12, 20), oregs[12:]), 0, 2), {6: b3_arrive, 8: peek, 9: check})
        vm_fast = None
    sp('odone')
    k.srd(sXo, P_OUT, SZ_Q)
    k(f"s_mov_b32 s{sT}, 0xffff0000")
    t = wb[0]
    for u in range(5):
        for hh in range(2):
            k(f"v_lshlrev_b32 v{t+4*u+2*hh}, 16, v{xr+2*u+hh}\nv_and_b32 v{t+4*u+2*hh+1}, s{sT}, v{xr+2*u+hh}")
    for i in range(20):
        k(f"v_add_f32 v{t+i}, v{t+i}, v{oacc+i}")
    for u in range(5):
        k(f"v_cvt_pk_bf16_f32 v{xr+2*u}, v{t+4*u}, v{t+4*u+1}\nv_cvt_pk_bf16_f32 v{xr+2*u+1}, v{t+4*u+2}, v{t+4*u+3}")
    for u in range(5):
        k(f"buffer_store_dwordx2 {v(xr+2*u,2)}, v{vXo}, s[{sXo}:{sXo+3}], s{sXof} offen offset:{32*u} {oc}")
    ne = k.lab("ne")
    k(f"s_or_b32 s{sT}, s2, s{sW}\ns_cbranch_scc1 {ne}\ns_mov_b32 s{sT}, {hx(FL_E)}")
    gset(f"s{sT}", vP, vQ)
    k.label(ne)
    k.endpgm(P_WS, 3)
    k.label(late)
    if o2:
        probe(0xff, 1)
        for e in ofirst: e()
    else:
        vm[:] = save; ld[:] = []
        compute(seq3, deal(wpieces(12, L_W + 9 * 5120, 40, "b3"), 0, 2))
        probe(0xff, 1)
        for e in aloads(range(12), oregs[:12]): e()
    k(f"s_branch {join}")
    for sl, ok, st, r in cold3:
        a0 = af + 4*r
        k.label(sl)
        k("s_sleep 1")
        aloads([st], [r])[0]()
        k(f"s_waitcnt vmcnt(0)\nv_max3_u32 v{vQ+1}, v{a0}, v{a0+1}, v{a0+2}\nv_max_u32 v{vQ+1}, v{vQ+1}, v{a0+3}\nv_cmp_eq_u32 vcc, -1, v{vQ+1}\ns_cbranch_vccz {ok}")
        again(sl)
        k(f"s_branch {ok}")
    for sl, ok in cold2:
        k.label(sl)
        spinw(vXa, f"s{sCnt}")
        k(f"s_branch {ok}")
    for sl, need, ok in cold:
        k.label(sl)
        spinw(vFa, need)
        k(f"s_branch {ok}")
    k.label(end)
    k("s_endpgm")
    return k
```
